```python
import torch

def _softmax(x, axis=-1):
    return torch.softmax(x, dim=axis)
def _gelu(x):
    return torch.nn.functional.gelu(x, approximate="tanh")
def _silu(x):
    return torch.nn.functional.silu(x)
def _sigmoid(x):
    return torch.sigmoid(x)
def _layernorm(x, axis=-1, eps=1e-5):
    m = x.mean(dim=axis, keepdim=True)
    v = x.var(dim=axis, keepdim=True, unbiased=False)
    return (x - m) / torch.sqrt(v + eps)
def _scatter_add(tgt, idx, src, axis=0):
    return tgt.clone().index_add_(axis, idx, src)
def _segment_sum(src, seg, n):
    out = torch.zeros((n,) + src.shape[1:], dtype=src.dtype)
    return out.index_add_(0, seg, src)
def _pad(x, pw):
    flat = tuple(v for pair in reversed(pw) for v in pair)
    return torch.nn.functional.pad(x, flat)

kernel_name = 'parallel_sum__linear_kernel_hedgehog__geglu_ffn__prompt'

def setup_inputs():

    _w = (lambda a: (lambda t: t.to(torch.bfloat16) if t.is_floating_point() else t)(torch.as_tensor(a)))
    def _A_setup():
        B, S, D, H = 1, 2048, 448, 16
        Dh = D // H
        return {
            "x": _w((lambda *s: torch.randn(*s, dtype=torch.bfloat16) * 0.05)(B, S, D)),
            "wqkv": _w((lambda *s: torch.randn(*s, dtype=torch.bfloat16) * 0.8)(D, 3 * D)),
            "w_phi": _w((lambda *s: torch.randn(*s, dtype=torch.bfloat16) * 0.8)(H, Dh, Dh) * (Dh ** -0.5)),
            "wo": _w((lambda *s: torch.randn(*s, dtype=torch.bfloat16) * 0.2)(D, D)),
        }
    _A_in = _A_setup()

    def _B_setup():
        B, S, D, F = 1, 2048, 448, 1792
        return {
            "x": _w((lambda *s: torch.randn(*s, dtype=torch.bfloat16) * 0.05)(B, S, D)),
            "w_gate": _w((lambda *s: torch.randn(*s, dtype=torch.bfloat16) * 0.1)(D, F)),
            "w_up": _w((lambda *s: torch.randn(*s, dtype=torch.bfloat16) * 0.1)(D, F)),
            "w_down": _w((lambda *s: torch.randn(*s, dtype=torch.bfloat16) * 0.1)(F, D)),
        }
    _B_in = _B_setup()

    return {
        "A_x": _A_in["x"],
        "A_wqkv": _A_in["wqkv"],
        "A_w_phi": _A_in["w_phi"],
        "A_wo": _A_in["wo"],
        "B_x": _B_in["x"],
        "B_w_gate": _B_in["w_gate"],
        "B_w_up": _B_in["w_up"],
        "B_w_down": _B_in["w_down"],
    }

def reference(A_x, A_wqkv, A_w_phi, A_wo, B_x, B_w_gate, B_w_up, B_w_down):
    def _A_ref(x, wqkv, w_phi, wo):
        B, S, D = x.shape
        H = 16; Dh = D // H
        qkv = (lambda x, *d: x.permute(*d))((x @ wqkv).reshape(B, S, 3, H, Dh), 2, 0, 3, 1, 4)
        q, k, v = qkv[0], qkv[1], qkv[2]
        pq = torch.einsum("bhsd,hdf->bhsf", q, w_phi)
        pk = torch.einsum("bhsd,hdf->bhsf", k, w_phi)
        phi_q = torch.concatenate([_softmax(pq, axis=-1), _softmax(-pq, axis=-1)], axis=-1)
        phi_k = torch.concatenate([_softmax(pk, axis=-1), _softmax(-pk, axis=-1)], axis=-1)
        kv = torch.einsum("bhsf,bhsd->bhfd", phi_k, v)
        z  = torch.einsum("bhsf->bhf", phi_k)
        num = torch.einsum("bhqf,bhfd->bhqd", phi_q, kv)
        den = torch.einsum("bhqf,bhf->bhq", phi_q, z)[..., None] + 1e-6
        o = num / den
        return (lambda x, *d: x.permute(*d))(o, 0, 2, 1, 3).reshape(B, S, D) @ wo

    def _B_ref(x, w_gate, w_up, w_down):
        return (_gelu(x @ w_gate) * (x @ w_up)) @ w_down

    x = A_x
    xn = _layernorm(x, axis=-1)
    return x + _A_ref(xn, A_wqkv, A_w_phi, A_wo) + _B_ref(xn, B_w_gate, B_w_up, B_w_down)
```

```python
import re

REG_RE = re.compile(r'\b([vsa])\[(\d+):(\d+)\]|\b([vsa])(\d+)\b|\b(vcc|exec|m0)\b')
TRANS = ("v_exp_f32", "v_log_f32", "v_rcp_f32", "v_rsq_f32", "v_sqrt_f32", "v_sin_f32", "v_cos_f32")
NO_DST_SALU = ("s_cmp", "s_cbranch", "s_branch", "s_waitcnt", "s_nop", "s_barrier", "s_endpgm", "s_setprio", "s_sleep", "s_bitcmp")

def regs_of(op):
    out = []
    for m in REG_RE.finditer(op):
        if m.group(1):
            out += [(m.group(1), i) for i in range(int(m.group(2)), int(m.group(3)) + 1)]
        elif m.group(4):
            out.append((m.group(4), int(m.group(5))))
        else:
            n = m.group(6)
            if n == "vcc": out += [("s", 106), ("s", 107)]
            elif n == "exec": out += [("s", 126), ("s", 127)]
            else: out.append(("s", 124))
    return out

def split_ops(s):
    ops, depth, cur = [], 0, ""
    for ch in s:
        if ch == "[": depth += 1
        if ch == "]": depth -= 1
        if ch == "," and depth == 0:
            ops.append(cur.strip()); cur = ""
        else:
            cur += ch
    if cur.strip(): ops.append(cur.strip())
    return ops

class I:
    __slots__ = ("text", "op", "kind", "rd", "wr", "tag", "opt", "passes", "srcC", "srcAB", "dpp", "pseudo", "arg", "wide", "states", "lds_dma", "opsel")
    def __init__(self, text, tag=None, opt=False):
        self.text = text; self.tag = tag; self.opt = opt
        self.pseudo = None; self.arg = None
        self.rd = set(); self.wr = set(); self.passes = 0; self.srcC = (); self.srcAB = set()
        self.dpp = False; self.wide = set(); self.states = 1; self.lds_dma = False; self.opsel = False
        t = text.split(";")[0].strip()
        if t.endswith(":") or t.startswith("."):
            self.op = "label"; self.kind = "label"; self.states = 0; return
        parts = t.split(None, 1)
        op = parts[0]; rest = parts[1] if len(parts) > 1 else ""
        self.op = op
        ops = split_ops(rest)
        opregs = []
        for o in ops:
            opregs.append(regs_of(o.split(" ")[0] if not o.startswith(("-", "abs", "|")) else o.split(" ")[0]))
        base = re.sub(r"_(e32|e64|dpp|sdwa)$", "", op)
        if op.startswith("v_mfma"):
            self.kind = "mfma"
            self.passes = 8 if "32x32x16" in op else 4
            self.wr = set(opregs[0]); self.srcAB = set(opregs[1]) | set(opregs[2]); self.srcC = tuple(opregs[3])
            self.rd = self.srcAB | set(self.srcC)
        elif op.startswith("v_"):
            self.kind = "trans" if base in TRANS else ("dot" if base.startswith("v_dot") else "valu")
            self.dpp = op.endswith("_dpp") or "quad_perm" in rest or "row_" in rest
            self.opsel = "op_sel" in rest or op.endswith("_sdwa")
            self.wr = set(opregs[0]); srcs = opregs[1:]
            if base in ("v_add_co_u32", "v_sub_co_u32", "v_addc_co_u32", "v_subb_co_u32", "v_subrev_co_u32"):
                self.wr |= set(opregs[1]); srcs = opregs[2:]
            for r in srcs: self.rd |= set(r)
            if base.startswith(("v_fmac", "v_dot2c", "v_pk_fmac", "v_writelane")) or self.dpp: self.rd |= set(opregs[0])
            if "swap" in base:
                self.rd |= set(opregs[0]); self.wr |= set(opregs[1])
            if base.startswith("v_dot2c"): self.srcC = tuple(opregs[0])
            elif base.startswith("v_dot"): self.srcC = tuple(opregs[3])
        elif op.startswith("ds_"):
            self.kind = "ds"
            if op.startswith(("ds_read", "ds_bpermute", "ds_permute", "ds_swizzle")) or "_rtn" in op:
                self.wr = set(opregs[0]); srcs = opregs[1:]
            else: srcs = opregs
            for r in srcs: self.rd |= set(r)
        elif op.startswith(("buffer_", "global_")):
            self.kind = "vmem"
            words = rest.split()
            self.lds_dma = ("lds" in words) or "_lds_" in op
            if self.lds_dma:
                for r in opregs: self.rd |= set(r)
                self.rd.add(("s", 124))
            elif "_load" in op:
                self.wr = set(opregs[0])
                for r in opregs[1:]: self.rd |= set(r)
            else:
                for r in opregs: self.rd |= set(r)
                if "atomic" in op and "sc0" in words: self.wr = set(opregs[0])
                if op.endswith(("x4", "x3")):
                    self.wide = set(opregs[0]) if op.startswith("buffer_") else set(opregs[1])
        elif op.startswith(("s_load", "s_memtime", "s_memrealtime", "s_buffer_load")):
            self.kind = "smem"
            self.wr = set(opregs[0])
            for r in opregs[1:]: self.rd |= set(r)
        elif op.startswith("s_"):
            self.kind = "salu"
            if op.startswith(NO_DST_SALU):
                for r in opregs: self.rd |= set(r)
                if op == "s_nop": self.states = int(rest.strip(), 0) + 1
            else:
                self.wr = set(opregs[0])
                for r in opregs[1:]: self.rd |= set(r)
                if op.startswith(("s_addk", "s_mulk")): self.rd |= set(opregs[0])
                if "saveexec" in op: self.wr |= {("s", 126), ("s", 127)}; self.rd |= {("s", 126), ("s", 127)}
        else:
            raise ValueError("unknown instruction: " + text)

def pseudo(kind, arg=None):
    i = I("x:"); i.pseudo = kind; i.arg = arg; i.kind = "pseudo"; i.text = ""; return i

class Stream(list):
    def e(self, text, tag=None, opt=False):
        for line in text.strip().split("\n"):
            line = line.strip()
            if line and not line.startswith(";"):
                self.append(I(line, tag, opt))
        return self
    def wait_vm(self, *tags, opt=False):
        p = pseudo("wait_vm", tags); p.opt = opt; self.append(p); return self
    def wait_lgkm(self, *tags): self.append(pseudo("wait_lgkm", tags)); return self
    def fence(self): self.append(pseudo("fence")); return self
    def comment(self, s): self.append(pseudo("comment", s)); return self

def merge(main, side, ratio=None, lead=0):
    out = Stream()
    nm = sum(1 for i in main if i.kind == "mfma")
    def cost(i): return 0 if i.kind in ("pseudo", "label") else (2 if i.kind == "trans" or "permlane" in i.op else 1)
    total = sum(cost(i) for i in side)
    per = ratio if ratio is not None else (total + nm - 1) / max(nm, 1)
    si = 0; budget = lead
    for ins in main:
        out.append(ins)
        if ins.kind == "mfma":
            budget += per
            while si < len(side) and budget >= cost(side[si]):
                budget -= cost(side[si]); out.append(side[si]); si += 1
    out.extend(side[si:])
    return out

def finalize(prog):
    out = []
    vmq = []; lgq = []
    def emit(i): out.append(i)
    def need_from(q, idx):
        return sum(1 for j in q[idx + 1:] if not j.opt)
    def do_wait(vm=None, lg=None, opt=False):
        parts = []
        if vm is not None: parts.append(f"vmcnt({min(vm, 63)})")
        if lg is not None: parts.append(f"lgkmcnt({min(lg, 15)})")
        if parts: emit(I("s_waitcnt " + " ".join(parts), opt=opt))
    for ins in prog:
        if ins.kind == "pseudo":
            if ins.pseudo == "comment":
                c = I("x:"); c.text = "; " + ins.arg; c.kind = "label"; c.states = 0; emit(c)
            elif ins.pseudo == "fence":
                do_wait(0, 0); vmq.clear(); lgq.clear(); emit(I("s_nop 7")); emit(I("s_nop 7"))
            elif ins.pseudo == "wait_vm":
                idx = max([k for k, j in enumerate(vmq) if (not ins.arg) or j.tag in ins.arg], default=-1)
                if idx >= 0:
                    do_wait(vm=need_from(vmq, idx), opt=ins.opt)
                    if not ins.opt: del vmq[:idx + 1]
            elif ins.pseudo == "wait_lgkm":
                idx = max([k for k, j in enumerate(lgq) if (not ins.arg) or j.tag in ins.arg], default=-1)
                if idx >= 0:
                    if any(j.kind == "smem" for j in lgq): do_wait(lg=0); lgq.clear()
                    else: do_wait(lg=need_from(lgq, idx)); del lgq[:idx + 1]
            continue
        if ins.kind == "label":
            emit(ins); continue
        touched = ins.rd | ins.wr
        vi = max([k for k, j in enumerate(vmq) if j.wr & touched], default=-1)
        li = max([k for k, j in enumerate(lgq) if j.wr & touched], default=-1)
        vm = lg = None
        if vi >= 0:
            vm = need_from(vmq, vi)
            if not ins.opt: del vmq[:vi + 1]
        if li >= 0:
            if any(j.kind == "smem" for j in lgq):
                lg = 0
                if not ins.opt: lgq.clear()
            else:
                lg = need_from(lgq, li)
                if not ins.opt: del lgq[:li + 1]
        do_wait(vm, lg, ins.opt)
        need = 0; dist = 0
        isvalu = ins.kind in ("valu", "trans", "dot")
        for p in reversed(out):
            if dist >= 20: break
            if p.kind == "label": continue
            req = 0
            if not p.opt or True:
                pv = p.kind in ("valu", "trans", "dot")
                if pv:
                    vw = {r for r in p.wr if r[0] in "va"}; sw = {r for r in p.wr if r[0] == "s"}
                    if ins.kind == "mfma" and vw & ins.rd: req = max(req, 2)
                    if ins.dpp and vw & ins.rd: req = max(req, 2)
                    if "permlane" in ins.op and vw & ins.rd: req = max(req, 2)
                    if ins.op.startswith(("v_readfirstlane", "v_readlane")) and vw & ins.rd: req = max(req, 1)
                    if p.kind == "trans" and isvalu and ins.kind != "trans" and vw & ins.rd: req = max(req, 1)
                    if p.opsel and isvalu and vw & touched: req = max(req, 1)
                    if p.kind == "dot" and vw & touched:
                        same = (ins.op == p.op and set(ins.srcC) == vw and not (vw & (ins.rd - set(ins.srcC))))
                        if not same: req = max(req, 3)
                    if sw & ins.rd:
                        if ins.kind == "vmem": req = max(req, 5)
                        elif ins.op.startswith(("v_readlane", "v_writelane")): req = max(req, 4)
                        elif isvalu or ins.kind == "mfma": req = max(req, 2)
                        elif ins.kind in ("salu", "smem"): req = max(req, 1)
                if p.kind == "mfma":
                    big = 12 if p.passes == 8 else 8
                    if ins.kind == "mfma":
                        if p.wr & ins.srcAB: req = max(req, big)
                        if p.wr & set(ins.srcC):
                            if not (set(ins.srcC) == p.wr and ins.passes == p.passes): req = max(req, big - 2)
                        elif p.wr & ins.wr: req = max(req, big - 2)
                    elif p.wr & touched: req = max(req, big)
                    if isvalu and set(p.srcC) & ins.wr: req = max(req, 7 if p.passes == 8 else 3)
                if p.kind == "salu" and ("s", 124) in p.wr and ins.lds_dma: req = max(req, 1)
                if p.wide and p.wide & ins.wr: req = max(req, 2)
            if req > dist: need = max(need, req - dist)
            if not p.opt: dist += p.states
        while need > 0:
            n = min(need, 16); emit(I(f"s_nop {n - 1}", opt=ins.opt)); need -= n
        emit(ins)
        if ins.kind == "vmem": vmq.append(ins)
        elif ins.kind in ("ds", "smem"): lgq.append(ins)
        if ins.op == "s_waitcnt" and not ins.opt:
            m = re.search(r"vmcnt\((\d+)\)", ins.text)
            if m and int(m.group(1)) == 0: vmq.clear()
            m = re.search(r"lgkmcnt\((\d+)\)", ins.text)
            if m and int(m.group(1)) == 0: lgq.clear()
    return out

def render(prog):
    return "\n".join((i.text if i.kind == "label" else "    " + i.text) for i in prog) + "\n"

def stats(prog):
    from collections import Counter
    c = Counter(i.kind for i in prog)
    nops = sum(i.states for i in prog if i.op == "s_nop")
    return dict(c), nops
```

```python
import sys, os, struct
sys.path.insert(0, os.path.dirname(os.path.abspath(__file__)))
from dsl import *

NAME = "parallel_sum__linear_kernel_hedgehog__geglu_ffn__prompt"
K1 = NAME + "_kernel"
K2 = "k2_kernel"

HF_OFF = 0
W2_OFF = 0x900000
KVP_OFF = 0xB00000
WS_SIZE = 0xC00000
NKS = 144

OPT = dict(mimic_ffn=False, hf_flags="", )

def f32(x): return "0x%08x" % struct.unpack("<I", struct.pack("<f", x))[0]
def vr(a, n=4): return f"v[{a}:{a+n-1}]"
def ar(a, n=4): return f"a[{a}:{a+n-1}]"
MF = "v_mfma_f32_32x32x16_bf16"
MF16 = "v_mfma_f32_16x16x32_bf16"

def srd(S, d, lo, nbytes):
    S.e(f"s_mov_b32 s{d}, s{lo}\ns_mov_b32 s{d+1}, s{lo+1}\ns_mov_b32 s{d+2}, {nbytes}\ns_mov_b32 s{d+3}, 0x20000")

def gen_k2():
    S = Stream()
    S.e(f"""
    s_cmp_ge_u32 s2, 224
    s_cbranch_scc1 K2_END
    s_load_dwordx2 s[4:5], s[0:1], 0
    s_load_dwordx2 s[6:7], s[0:1], 64
    s_load_dwordx2 s[8:9], s[0:1], 80
    v_lshrrev_b32 v1, 6, v0
    v_and_b32 v2, 63, v0
    v_readfirstlane_b32 s3, v1
    s_and_b32 s30, s2, 7
    s_lshr_b32 s31, s2, 3
    s_and_b32 s32, s31, 3
    s_lshl_b32 s30, s30, 2
    s_add_u32 s30, s30, s32
    s_lshr_b32 s31, s31, 2
    """)
    S.e(f"""
    s_and_b32 s33, s3, 1
    s_lshr_b32 s34, s3, 1
    s_lshl_b32 s35, s30, 1
    s_add_u32 s36, s35, s33
    s_xor_b32 s37, s36, 1
    s_lshl_b32 s35, s31, 1
    s_add_u32 s38, s35, s34
    s_xor_b32 s39, s38, 1
    s_mul_i32 s40, s3, {36*1024}
    s_mul_i32 s41, s36, {NKS*1024}
    s_mul_i32 s42, s37, {NKS*1024}
    s_mul_i32 s43, s38, {NKS*1024}
    s_mul_i32 s44, s39, {NKS*1024}
    s_add_u32 s41, s41, s40
    s_add_u32 s42, s42, s40
    s_add_u32 s40, s40, {W2_OFF}
    s_add_u32 s43, s43, s40
    s_add_u32 s44, s44, s40
    v_lshlrev_b32 v3, 4, v2
    v_add_u32 v4, s43, v3
    v_add_u32 v5, s44, v3
    v_add_u32 v6, s41, v3
    v_add_u32 v7, s42, v3
    """)
    S.e("s_waitcnt lgkmcnt(0)")
    srd(S, 12, 8, WS_SIZE); srd(S, 16, 4, 2048 * 896); srd(S, 20, 6, 2048 * 896)
    D = 12
    def loads(i):
        sl = (i % D) * 16
        if i % 4 == 0: S.e(f"s_mov_b32 s45, {(i // 4) * 4096}")
        for q in range(4):
            S.e(f"buffer_load_dwordx4 {ar(sl + 4*q)}, v{4+q}, s[12:15], s45 offen offset:{(i % 4) * 1024}")
    for i in range(D): loads(i)
    S.e(f"""
    v_and_b32 v8, 31, v2
    v_lshrrev_b32 v9, 5, v2
    s_lshl_b32 s46, s36, 5
    v_add_u32 v8, s46, v8
    v_mul_u32_u24 v8, 896, v8
    v_lshlrev_b32 v9, 5, v9
    s_lshl_b32 s46, s38, 6
    v_add3_u32 v8, v8, v9, s46
    """)
    ACC = 64
    xl = False
    for i in range(36):
        sl = (i % D) * 16
        for lq in range(4):
            ni, mi = lq >> 1, lq & 1
            c = "0" if i == 0 else vr(ACC + 16*lq, 16)
            S.e(f"{MF} {vr(ACC + 16*lq, 16)}, {ar(sl + 4*ni)}, {ar(sl + 8 + 4*mi)}, {c}")
        if i + D < 36: loads(i + D)
        elif not xl:
            xl = True
            S.e("buffer_load_dwordx4 v[16:19], v8, s[16:19], 0 offen\nbuffer_load_dwordx4 v[20:23], v8, s[16:19], 0 offen offset:16")
    for lq in range(1, 4):
        S.e(f"s_xor_b32 s47, s3, {lq}\ns_mul_i32 s47, s47, {3*4096}\ns_add_u32 s47, s47, {(lq-1)*4096}\nv_add_u32 v{9+lq}, s47, v3")
    S.e(f"s_mul_i32 s47, s3, {3*4096}\nv_add_u32 v13, s47, v3")
    for lq in range(1, 4):
        for rq in range(4):
            S.e(f"ds_write_b128 v{9+lq}, {vr(ACC + 16*lq + 4*rq)} offset:{rq*1024}")
    S.wait_lgkm(); S.e("s_barrier")
    for p in range(3):
        for rq in range(4):
            S.e(f"ds_read_b128 {vr(128 + 16*p + 4*rq)}, v13 offset:{p*4096 + rq*1024}")
    for i in range(8):
        S.e(f"v_lshlrev_b32 v{24+2*i}, 16, v{16+i}\nv_and_b32 v{25+2*i}, 0xffff0000, v{16+i}")
    for i in range(16): S.e(f"v_add_f32 v{ACC+i}, v{ACC+i}, v{128+i}")
    for i in range(16): S.e(f"v_add_f32 v{144+i}, v{144+i}, v{160+i}")
    for i in range(16): S.e(f"v_add_f32 v{ACC+i}, v{ACC+i}, v{144+i}")
    for i in range(16): S.e(f"v_add_f32 v{ACC+i}, v{ACC+i}, v{24+i}")
    for i in range(8): S.e(f"v_cvt_pk_bf16_f32 v{40+i}, v{ACC+2*i}, v{ACC+2*i+1}")
    S.e("buffer_store_dwordx4 v[40:43], v8, s[20:23], 0 offen\nbuffer_store_dwordx4 v[44:47], v8, s[20:23], 0 offen offset:16")
    S.e("K2_END:\ns_endpgm")
    return S

XR = 0; AREA = 12288
W0 = 98304; W0S = 12288
MISC = 147456
W2SCR = MISC; KVF = MISC
WPHI = MISC + 8192; ZERO = WPHI + 1568
CS = MISC + 10240
CNT = MISC + 10880
PK = W0; PKS = 144; VVS = 80

V_L = 1
V_L16 = 2
V_XE, V_XO = 3, 4
V_AX = 5
V_D0, V_D1 = 9, 10
V_G12, V_U12 = 11, 12
V_AT = 13
V_AC = 16
V_AH = 19
V_RINV, V_SD = 21, 22
V_CSA = 23
XF = 24
ACC0 = 136
SC = 184
CA = 235
PHA = 240
BP = 244; AP = 248; VK0 = 252; VK1 = 253; ONES = 254; W2A = 255
S_X, S_WG, S_WU, S_WS, S_DBG, S_D0, S_D1, S_W2, S_WP = 24, 32, 36, 40, 44, 48, 52, 56, 60
S_MT, S_C4, S_HL, S_HEAD, S_TYPE, S_XROW, S_AREA, S_D0L, S_D1L = 64, 65, 66, 67, 68, 69, 70, 71, 72
S_ODD = 73
S_T = 74
S_HH = 80
S_HFB = 82
S_U0, S_U12 = 83, 84
S_W2D = 85
S_PERM = 86
S_G = 87
M1 = "s[88:89]"; M2 = "s[90:91]"
HHM = f"s[{S_HH}:{S_HH+1}]"
t0, t1, t2, t3, t4, t5 = [f"s{S_T+i}" for i in range(6)]

def sq(d): return f"s[{d}:{d+3}]"

def k1_prologue():
    S = Stream()
    T = SC
    S.e(f"""
    s_cmp_ge_u32 s2, 256
    s_cbranch_scc1 K1_END
    s_load_dwordx16 s[4:19], s[0:1], 0
    s_load_dwordx4 s[20:23], s[0:1], 72
    v_lshrrev_b32 v{T}, 6, v0
    v_and_b32 v{V_L}, 63, v0
    v_readfirstlane_b32 s3, v{T}
    v_lshlrev_b32 v{V_L16}, 4, v{V_L}
    s_and_b32 {t0}, s2, 7
    s_lshr_b32 {t1}, s2, 3
    s_and_b32 s{S_MT}, {t0}, 1
    s_lshl_b32 s{S_MT}, s{S_MT}, 2
    s_and_b32 {t2}, {t1}, 3
    s_add_u32 s{S_MT}, s{S_MT}, {t2}
    s_lshr_b32 s{S_C4}, {t0}, 1
    s_lshr_b32 {t1}, {t1}, 2
    s_and_b32 s{S_TYPE}, {t1}, 1
    s_lshr_b32 s{S_HL}, {t1}, 1
    s_lshl_b32 s{S_HEAD}, s{S_C4}, 2
    s_add_u32 s{S_HEAD}, s{S_HEAD}, s{S_HL}
    s_and_b32 s{S_ODD}, s{S_HEAD}, 1
    s_lshl_b32 {t0}, s{S_MT}, 3
    s_add_u32 {t0}, {t0}, s3
    s_mul_i32 s{S_XROW}, {t0}, {32*896}
    s_mul_i32 s{S_HFB}, {t0}, {NKS*1024}
    s_mul_i32 s{S_AREA}, s3, {AREA}
    s_mov_b32 s{S_HH}, 0
    s_mov_b32 s{S_HH+1}, -1
    s_mov_b32 s{S_PERM}, 0x07060302
    v_lshrrev_b32 v{T}, 3, v{V_L}
    v_mul_u32_u24 v{T}, 896, v{T}
    v_and_b32 v{T+1}, 7, v{V_L}
    v_lshrrev_b32 v{T+2}, 4, v{V_L}
    v_xor_b32 v{T+1}, v{T+1}, v{T+2}
    v_lshl_add_u32 v{V_XE}, v{T+1}, 4, v{T}
    v_xor_b32 v{V_XO}, 64, v{V_XE}
    s_waitcnt lgkmcnt(0)
    """)
    srd(S, S_X, 4, 2048 * 896)
    x_dma(S, 0)
    S.e(f"s_cmp_eq_u32 s{S_TYPE}, 1\ns_cbranch_scc1 K1_kv")
    return S

def x_dma(S, c):
    for q in range(4):
        S.e(f"s_add_u32 m0, s{S_AREA}, {(c % 3) * 4096 + q * 1024}")
        S.e(f"s_add_u32 {t0}, s{S_XROW}, {q * 8 * 896 + c * 128}")
        S.e(f"buffer_load_dwordx4 v{V_XO if q & 1 else V_XE}, {sq(S_X)}, {t0} offen lds", tag=f"x{c}")

def w0_dma(S, c, typ):
    st0, st1 = (229376, 172032) if typ == "q" else (172032, 229376)
    S.e(f"s_add_u32 m0, s{S_D0L}, {(c % 4) * W0S}")
    S.e(f"s_mov_b32 {t0}, {c * st0}")
    S.e(f"buffer_load_dwordx4 v{V_D0}, {sq(S_D0)}, {t0} offen lds", tag=f"w{c}")
    lab = f"K1_{typ}_skipw{c}"
    S.e(f"s_cmp_ge_u32 s3, 4\ns_cbranch_scc1 {lab}")
    S.e(f"s_add_u32 m0, s{S_D1L}, {(c % 4) * W0S}\ns_mov_b32 {t0}, {c * st1}", opt=True)
    S.e(f"buffer_load_dwordx4 v{V_D1}, {sq(S_D1)}, {t0} offen lds", tag=f"w{c}", opt=True)
    S.e(f"{lab}:")

def w12_loc(ks):
    if ks < 16: return (ks >> 1) * AREA + 4096 + (ks & 1) * 2048
    if ks < 24: return (ks - 16) * AREA + 8192
    return (ks - 24) * AREA + 8192 + 2048

def w12_pair(S, ldsoff, ks_mul, ks_add, tag, opt=False):
    S.e(f"s_mul_i32 {t0}, s3, {ks_mul * 57344}\ns_add_u32 {t0}, {t0}, {ks_add * 57344}", opt=opt)
    S.e(f"s_add_u32 m0, s{S_AREA}, {ldsoff}", opt=opt)
    S.e(f"buffer_load_dwordx4 v{V_G12}, {sq(S_WG)}, {t0} offen lds", tag=tag, opt=opt)
    S.e(f"s_add_u32 m0, s{S_AREA}, {ldsoff + 1024}", opt=opt)
    S.e(f"buffer_load_dwordx4 v{V_U12}, {sq(S_WU)}, {t0} offen lds", tag=tag, opt=opt)

def bf16r(S, d, src):
    S.e(f"v_cvt_pk_bf16_f32 v{d}, {src}, {src}\nv_lshlrev_b32 v{d}, 16, v{d}")

def xhalf(S, op, x, t):
    S.e(f"v_mov_b32 v{t}, v{x}\nv_permlane32_swap_b32 v{t}, v{x}\n{op} v{x}, v{x}, v{t}")

def geglu(S, a, T, unit_sgpr, unit_add):
    if OPT["mimic_ffn"]:
        for i in range(16): S.e(f"v_mul_f32 v{a+i}, v{a+i}, v{V_RINV}")
        for i in range(8): S.e(f"v_cvt_pk_bf16_f32 v{T+i}, v{a+2*i}, v{a+2*i+1}")
        for i in range(8): S.e(f"v_lshlrev_b32 v{a+2*i}, 16, v{T+i}\nv_and_b32 v{a+2*i+1}, 0xffff0000, v{T+i}")
        for i in range(8): S.e(f"v_mul_f32 v{T+i}, v{a+i}, v{a+i}")
        for i in range(8): S.e(f"v_fma_f32 v{T+i}, v{T+i}, v{VK1}, v{VK0}")
        for i in range(8): S.e(f"v_mul_f32 v{T+i}, v{T+i}, v{a+i}")
        for i in range(8): S.e(f"v_exp_f32 v{T+i}, v{T+i}")
        for i in range(8): S.e(f"v_add_f32 v{T+i}, 1.0, v{T+i}")
        for i in range(8): S.e(f"v_rcp_f32 v{T+i}, v{T+i}")
        for i in range(8): S.e(f"v_mul_f32 v{a+i}, v{a+i}, v{T+i}")
        for i in range(4): S.e(f"v_cvt_pk_bf16_f32 v{T+i}, v{a+2*i}, v{a+2*i+1}")
        for i in range(4): S.e(f"v_lshlrev_b32 v{a+2*i}, 16, v{T+i}\nv_and_b32 v{a+2*i+1}, 0xffff0000, v{T+i}")
        for i in range(8): S.e(f"v_mul_f32 v{a+i}, v{a+i}, v{a+8+i}")
    else:
        for i in range(8): S.e(f"v_mul_f32 v{a+i}, v{a+i}, v{V_RINV}")
        for i in range(8): S.e(f"v_mul_f32 v{T+i}, v{a+i}, v{a+i}")
        for i in range(8): S.e(f"v_fma_f32 v{T+i}, v{T+i}, v{VK1}, v{VK0}")
        for i in range(8): S.e(f"v_mul_f32 v{T+i}, v{T+i}, v{a+i}")
        for i in range(8): S.e(f"v_exp_f32 v{T+i}, v{T+i}")
        for i in range(8): S.e(f"v_mul_f32 v{a+i}, v{a+i}, v{a+8+i}")
        for i in range(8): S.e(f"v_fma_f32 v{T+i}, v{T+i}, v{V_SD}, v{V_SD}")
        for i in range(8): S.e(f"v_rcp_f32 v{T+i}, v{T+i}")
        for i in range(8): S.e(f"v_mul_f32 v{a+i}, v{a+i}, v{T+i}")
    for i in range(4): S.e(f"v_cvt_pk_bf16_f32 v{T+8+i}, v{a+2*i}, v{a+2*i+1}")
    S.e(f"s_add_u32 s{S_G}, s{unit_sgpr}, {unit_add * 1024}")
    S.e(f"buffer_store_dwordx4 {vr(T+8)}, v{V_L16}, {sq(S_WS)}, s{S_G} offen{OPT['hf_flags']}", tag="hst")

def softmax2(S, P, E, T):
    for i in range(8): S.e(f"v_cvt_pk_bf16_f32 v{E+i}, v{P+2*i}, v{P+2*i+1}")
    for i in range(8): S.e(f"v_lshlrev_b32 v{P+2*i}, 16, v{E+i}\nv_and_b32 v{P+2*i+1}, 0xffff0000, v{E+i}")
    L = T + 7
    S.e(f"v_mov_b32 v{L}, {f32(1.4426950408889634)}\nv_mov_b32 v{T+4}, 0xff800000\nv_mov_b32 v{T+5}, 0x7f800000")
    for i in range(12, 16): S.e(f"v_cndmask_b32_e64 v{E+i}, v{P+i}, v{T+4}, {HHM}")
    for i in range(12, 16): S.e(f"v_cndmask_b32_e64 v{P+i}, v{P+i}, v{T+5}, {HHM}")
    pp = lambda i: (E + i if i >= 12 else P + i)
    MX, MN = T, T + 1
    S.e(f"v_max3_f32 v{MX}, v{pp(0)}, v{pp(1)}, v{pp(2)}\nv_min3_f32 v{MN}, v{P}, v{P+1}, v{P+2}")
    for i in range(3, 15, 2):
        S.e(f"v_max3_f32 v{MX}, v{MX}, v{pp(i)}, v{pp(i+1)}\nv_min3_f32 v{MN}, v{MN}, v{P+i}, v{P+i+1}")
    S.e(f"v_max_f32 v{MX}, v{MX}, v{pp(15)}\nv_min_f32 v{MN}, v{MN}, v{P+15}")
    xhalf(S, "v_max_f32", MX, T + 2); xhalf(S, "v_min_f32", MN, T + 3)
    S.e(f"v_mul_f32 v{MX}, v{MX}, v{L}\nv_mul_f32 v{MN}, v{MN}, v{L}")
    for i in range(16): S.e(f"v_fma_f32 v{E+i}, v{pp(i)}, v{L}, -v{MX}")
    for i in range(16): S.e(f"v_fma_f32 v{P+i}, -v{P+i}, v{L}, v{MN}")
    for i in range(16): S.e(f"v_exp_f32 v{E+i}, v{E+i}")
    for i in range(16): S.e(f"v_exp_f32 v{P+i}, v{P+i}")
    SP, SM = T, T + 1
    S.e(f"v_add_f32 v{SP}, v{E}, v{E+1}\nv_add_f32 v{T+2}, v{E+2}, v{E+3}\nv_add_f32 v{SM}, v{P}, v{P+1}\nv_add_f32 v{T+3}, v{P+2}, v{P+3}")
    for i in range(4, 16, 2):
        S.e(f"v_add_f32 v{SP}, v{SP}, v{E+i}\nv_add_f32 v{T+2}, v{T+2}, v{E+i+1}\nv_add_f32 v{SM}, v{SM}, v{P+i}\nv_add_f32 v{T+3}, v{T+3}, v{P+i+1}")
    S.e(f"v_add_f32 v{SP}, v{SP}, v{T+2}\nv_add_f32 v{SM}, v{SM}, v{T+3}")
    xhalf(S, "v_add_f32", SP, T + 2); xhalf(S, "v_add_f32", SM, T + 3)
    S.e(f"v_rcp_f32 v{SP}, v{SP}\nv_rcp_f32 v{SM}, v{SM}")
    for i in range(16): S.e(f"v_mul_f32 v{E+i}, v{E+i}, v{SP}")
    for i in range(16): S.e(f"v_mul_f32 v{P+i}, v{P+i}, v{SM}")
    for i in range(8): S.e(f"v_cvt_pk_bf16_f32 v{E+i}, v{E+2*i}, v{E+2*i+1}")
    for i in range(8): S.e(f"v_cvt_pk_bf16_f32 v{E+8+i}, v{P+2*i}, v{P+2*i+1}")

def corr_mfma(S, acc, tile, T, first=False):
    S.e(f"ds_read_b32 v{T}, v{V_CSA} offset:{tile * 128}")
    S.e(f"""
    v_and_b32 v{T+1}, 0xffff0000, v{T}
    v_sub_f32 v{T+1}, v{T}, v{T+1}
    v_and_b32 v{T+2}, 0xffff0000, v{T+1}
    v_sub_f32 v{T+2}, v{T+1}, v{T+2}
    v_perm_b32 v{AP}, v{T+1}, v{T}, s{S_PERM}
    v_lshrrev_b32 v{AP+1}, 16, v{T+2}
    {MF} {vr(acc,16)}, {vr(AP)}, {vr(BP)}, {'0' if first else vr(acc,16)}
    """)

def p12_pass(tile, acc, bufs, AHI, hooks=None):
    S = Stream()
    order = sorted(range(28), key=w12_loc)
    S.e(f"v_add_u32 v{AHI}, 49152, v{V_AH+tile}")
    def rd(n):
        ks = order[n]; loc = w12_loc(ks); b = bufs[n % len(bufs)]
        a = V_AH + tile
        if loc >= 49152: a = AHI; loc -= 49152
        for e in range(2): S.e(f"ds_read_b64_tr_b16 {vr(b + 2*e, 2)}, v{a} offset:{loc + e*256}")
    depth = len(bufs) - 1
    for n in range(depth): rd(n)
    corr_mfma(S, acc, 3 + tile, SC + 44, first=True)
    for n in range(28):
        if n + depth < 28: rd(n + depth)
        S.e(f"{MF} {vr(acc,16)}, {vr(bufs[n % len(bufs)])}, {vr(XF + 4*order[n])}, {vr(acc,16)}")
        if hooks and n in hooks: S.extend(hooks[n])
    return S, order

def k1_body(typ):
    q = typ == "q"
    S = Stream()
    T = SC
    S.e(f"K1_{typ}:")
    S.e(f"""
    s_mul_i32 {t0}, s{S_C4}, 896
    s_mul_i32 {t1}, s{S_HEAD}, 56
    s_lshl_b32 {t2}, s{S_ODD}, 3
    s_sub_u32 {t1}, {t1}, {t2}
    s_and_b32 {t3}, s3, 3
    s_lshr_b32 {t4}, s3, 2
    v_lshrrev_b32 v{T}, 2, v{V_L}
    v_and_b32 v{T+1}, 3, v{V_L}
    v_mul_u32_u24 v{T+3}, 3584, v{T}
    v_mul_u32_u24 v{T+4}, 2688, v{T}
    v_lshl_add_u32 v{T+4}, v{T+1}, 4, v{T+4}
    """)
    if q:
        S.e(f"""
        s_lshl_b32 {t5}, s{S_HL}, 7
        s_add_u32 {t0}, {t0}, {t5}
        s_cmp_eq_u32 {t4}, 0
        s_cselect_b32 s{S_D0}, s14, s16
        s_cselect_b32 s{S_D0+1}, s15, s17
        s_mov_b32 s{S_D0+2}, {448*3584}
        s_mov_b32 s{S_D0+3}, 0x20000
        s_lshl_b32 {t5}, {t4}, 1
        v_xor_b32 v{T+2}, {t5}, v{T+1}
        s_mul_i32 {t5}, {t3}, {16*3584}
        s_add_u32 {t5}, {t5}, {t0}
        v_lshl_add_u32 v{T+2}, v{T+2}, 4, v{T+3}
        v_add_u32 v{V_D0}, {t5}, v{T+2}
        """)
        srd(S, S_D1, 6, 448 * 2688)
        S.e(f"""
        s_mul_i32 {t5}, {t3}, {16*2688}
        s_add_u32 {t5}, {t5}, {t1}
        v_add_u32 v{V_D1}, {t5}, v{T+4}
        s_lshr_b32 s{S_U0}, {t0}, 5
        s_add_u32 {t0}, {t0}, 64
        s_lshr_b32 s{S_U12}, {t0}, 5
        """)
    else:
        srd(S, S_D0, 6, 448 * 2688)
        S.e(f"""
        s_mul_i32 {t5}, {t4}, 896
        s_add_u32 {t1}, {t1}, {t5}
        s_add_u32 {t1}, {t1}, 896
        s_mul_i32 {t5}, {t3}, {16*2688}
        s_add_u32 {t5}, {t5}, {t1}
        v_add_u32 v{V_D0}, {t5}, v{T+4}
        s_add_u32 {t0}, {t0}, 512
        s_mul_i32 {t1}, s{S_HL}, 3
        s_and_b32 {t2}, s{S_HL}, 1
        s_add_u32 {t5}, {t1}, {t2}
        s_lshl_b32 {t2}, {t2}, 1
        s_add_u32 {t1}, {t1}, 2
        s_sub_u32 {t1}, {t1}, {t2}
        s_lshl_b32 {t1}, {t1}, 5
        s_add_u32 {t1}, {t1}, {t0}
        s_lshl_b32 {t5}, {t5}, 5
        s_add_u32 {t0}, {t0}, {t5}
        s_lshr_b32 s{S_U0}, {t1}, 5
        s_lshr_b32 s{S_U12}, {t0}, 5
        s_bfe_u32 {t2}, s3, 0x10001
        s_cmp_eq_u32 {t2}, 0
        s_cselect_b32 s{S_D1}, s14, s16
        s_cselect_b32 s{S_D1+1}, s15, s17
        s_mov_b32 s{S_D1+2}, {448*3584}
        s_mov_b32 s{S_D1+3}, 0x20000
        s_lshl_b32 {t2}, {t2}, 2
        v_lshrrev_b32 v{T+5}, 1, v{V_L}
        v_xor_b32 v{T+5}, {t2}, v{T+5}
        v_mul_u32_u24 v{T+5}, 3584, v{T+5}
        v_and_b32 v{T+6}, 1, v{V_L}
        v_lshl_add_u32 v{T+5}, v{T+6}, 4, v{T+5}
        s_and_b32 {t2}, s3, 1
        s_mul_i32 {t2}, {t2}, {32*3584}
        s_add_u32 {t2}, {t2}, {t1}
        v_add_u32 v{V_D1}, {t2}, v{T+5}
        """)
    S.e(f"""
    s_lshl_b32 s{S_D0L}, {t3}, 11
    s_lshl_b32 {t5}, {t4}, 10
    s_add_u32 s{S_D0L}, s{S_D0L}, {t5}
    s_add_u32 s{S_D0L}, s{S_D0L}, {W0}
    s_lshl_b32 s{S_D1L}, {t3}, 10
    s_add_u32 s{S_D1L}, s{S_D1L}, {W0 + 8192}
    v_lshl_add_u32 v{V_G12}, v{T+1}, 4, v{T+3}
    v_add_u32 v{V_G12}, {t0}, v{V_G12}
    v_xor_b32 v{V_U12}, 32, v{V_G12}
    """)
    w0_dma(S, 0, typ); x_dma(S, 1); w0_dma(S, 1, typ); x_dma(S, 2); w0_dma(S, 2, typ)
    srd(S, S_WG, 14, 448 * 3584); srd(S, S_WU, 16, 448 * 3584); srd(S, S_WS, 22, WS_SIZE); srd(S, S_DBG, 20, 256); srd(S, S_WP, 8, 16 * 1568)
    S.e(f"s_lshl_b32 s{S_U0}, s{S_U0}, 10\ns_add_u32 s{S_U0}, s{S_U0}, s{S_HFB}\ns_lshl_b32 s{S_U12}, s{S_U12}, 10\ns_add_u32 s{S_U12}, s{S_U12}, s{S_HFB}")
    lab = f"K1_{typ}_nophi"
    S.e(f"""
    s_lshl_b32 {t0}, s3, 10
    v_add_u32 v{T+2}, {t0}, v{V_L16}
    v_mov_b32 v{T+4}, 1568
    v_cmp_gt_u32_e64 {M1}, v{T+4}, v{T+2}
    v_mov_b32 v{T+4}, 0x7fffff00
    v_cndmask_b32_e64 v{T+2}, v{T+4}, v{T+2}, {M1}
    s_mul_i32 {t1}, s{S_HEAD}, 1568
    s_cmp_ge_u32 s3, 2
    s_cbranch_scc1 {lab}
    """)
    S.e(f"s_add_u32 m0, {t0}, {WPHI}", opt=True)
    S.e(f"buffer_load_dwordx4 v{T+2}, {sq(S_WP)}, {t1} offen lds", tag="phi", opt=True)
    S.e(f"{lab}:")
    S.e(f"""
    s_lshl_b32 {t0}, s2, 3
    s_add_u32 {t0}, {t0}, s3
    s_min_u32 {t0}, {t0}, 2015
    s_mul_hi_u32 {t1}, {t0}, 0x12492493
    s_mul_i32 {t2}, {t1}, 14
    s_sub_u32 {t2}, {t0}, {t2}
    s_mul_i32 s{S_W2D}, {t2}, {NKS}
    s_add_u32 s{S_W2D}, s{S_W2D}, {t1}
    s_lshl_b32 s{S_W2D}, s{S_W2D}, 10
    s_add_u32 s{S_W2D}, s{S_W2D}, {W2_OFF}
    s_lshl_b32 {t2}, {t2}, 6
    s_mov_b32 {t3}, {1792*896}
    s_cmp_lt_u32 {t1}, 112
    s_cselect_b32 s{S_W2}, s18, s10
    s_cselect_b32 s{S_W2+1}, s19, s11
    s_cselect_b32 s{S_W2+2}, {t3}, {448*896}
    s_mov_b32 s{S_W2+3}, 0x20000
    s_cselect_b64 {M2}, -1, 0
    s_sub_u32 {t3}, {t1}, 112
    s_lshr_b32 {t4}, {t3}, 1
    s_mul_i32 {t4}, {t4}, 28
    s_and_b32 {t3}, {t3}, 1
    s_lshl_b32 {t3}, {t3}, 3
    v_lshrrev_b32 v{T+2}, 3, v{T}
    v_and_b32 v{T+4}, 3, v{T}
    v_lshl_add_u32 v{T+2}, v{T+2}, 2, v{T+4}
    v_add_u32 v{T+2}, {t3}, v{T+2}
    v_bfe_u32 v{T+4}, v{T}, 2, 1
    v_mad_u32_u24 v{T+4}, v{T+4}, 14, v{T+2}
    v_add_u32 v{T+4}, {t4}, v{T+4}
    v_cmp_gt_u32_e64 {M1}, 14, v{T+2}
    v_mov_b32 v{T+5}, 0x100000
    v_cndmask_b32_e64 v{T+4}, v{T+5}, v{T+4}, {M1}
    s_lshl_b32 {t1}, {t1}, 4
    v_add_u32 v{T+2}, {t1}, v{T}
    v_cndmask_b32_e64 v{T+4}, v{T+4}, v{T+2}, {M2}
    v_mul_u32_u24 v{T+4}, 896, v{T+4}
    v_lshl_add_u32 v{T+4}, v{T+1}, 4, v{T+4}
    s_lshl_b32 {t0}, s3, 10
    s_add_u32 m0, {t0}, {W2SCR}
    """)
    S.e(f"buffer_load_dwordx4 v{T+4}, {sq(S_W2)}, {t2} offen lds", tag="w2")
    R, C, HH, NH = T + 1, T + 2, T + 3, T + 4
    S.e(f"""
    v_lshrrev_b32 v{HH}, 5, v{V_L}
    v_bfe_u32 v{NH}, v{V_L}, 4, 1
    v_bfe_u32 v{R}, v{V_L}, 2, 2
    v_and_b32 v{C}, 3, v{V_L}
    v_and_b32 v{T+5}, 31, v{V_L}
    v_lshlrev_b32 v{V_CSA}, 2, v{T+5}
    v_add_u32 v{V_CSA}, {CS}, v{V_CSA}
    v_bfe_u32 v{T+6}, v{V_L}, 1, 3
    v_xor_b32 v{T+6}, v{T+6}, v{HH}
    v_lshlrev_b32 v{T+5}, 7, v{T+5}
    v_lshl_add_u32 v{T+5}, v{T+6}, 4, v{T+5}
    v_add_u32 v{V_AX}, s{S_AREA}, v{T+5}
    v_xor_b32 v{V_AX+1}, 32, v{V_AX}
    v_xor_b32 v{V_AX+2}, 64, v{V_AX}
    v_xor_b32 v{V_AX+3}, 0x60, v{V_AX}
    v_lshl_add_u32 v{T+5}, v{HH}, 3, v{R}
    v_lshlrev_b32 v{T+6}, 6, v{T+5}
    v_lshl_add_u32 v{T+7}, v{C}, 3, v{T+6}
    v_mul_u32_u24 v{T+8}, 1056, v{NH}
    v_add_u32 v{V_AH}, v{T+7}, v{T+8}
    v_xor_b32 v{V_AH+1}, 32, v{V_AH}
    v_lshl_add_u32 v{T+8}, v{NH}, 2, v{C}
    v_add_u32 v{T+8}, s{S_ODD}, v{T+8}
    v_and_b32 v{T+8}, 7, v{T+8}
    v_lshl_add_u32 v{T+8}, v{T+8}, 3, v{T+6}
    s_lshr_b32 {t0}, s3, 1
    s_and_b32 {t1}, s3, 1
    s_lshl_b32 {t2}, {t1}, 8
    """)
    if q:
        S.e(f"""
        v_add_u32 v{V_AT}, {W0 + 8192}, v{T+8}
        v_add_u32 v{V_AT+1}, {W0}, v{V_AH}
        v_add_u32 v{V_AT+2}, {W0}, v{V_AH+1}
        s_lshl_b32 {t3}, {t0}, 10
        s_add_u32 {t3}, {t3}, {t2}
        v_add_u32 v{V_AC}, {t3}, v{V_AT}
        s_lshl_b32 {t3}, {t0}, 11
        s_add_u32 {t3}, {t3}, {t2}
        v_add_u32 v{V_AC+1}, {t3}, v{V_AT+1}
        v_add_u32 v{V_AC+2}, {t3}, v{V_AT+2}
        """)
    else:
        S.e(f"""
        v_add_u32 v{V_AT}, {W0}, v{T+8}
        v_lshlrev_b32 v{T+6}, 5, v{T+5}
        v_lshl_add_u32 v{T+6}, v{C}, 3, v{T+6}
        v_mul_u32_u24 v{T+7}, 2176, v{NH}
        v_add_u32 v{V_AT+1}, v{T+6}, v{T+7}
        v_add_u32 v{V_AT+1}, {W0 + 8192}, v{V_AT+1}
        v_xor_b32 v{V_AT+2}, 0x80, v{V_AT+1}
        s_lshl_b32 {t3}, {t0}, 11
        s_add_u32 {t3}, {t3}, {t2}
        v_add_u32 v{V_AC}, {t3}, v{V_AT}
        s_lshl_b32 {t3}, {t1}, 7
        v_xor_b32 v{V_AC+2}, {t3}, v{V_AT+1}
        s_lshl_b32 {t3}, {t0}, 9
        v_add_u32 v{V_AC+2}, {t3}, v{V_AC+2}
        """)
    S.e(f"""
    v_lshl_add_u32 v{T+9}, v{HH}, 2, v{R}
    v_lshlrev_b32 v{T+6}, 6, v{T+9}
    v_and_b32 v{T+7}, 1, v{C}
    v_lshl_add_u32 v{T+6}, v{T+7}, 5, v{T+6}
    v_lshrrev_b32 v{T+7}, 1, v{C}
    v_lshl_add_u32 v{T+7}, v{NH}, 1, v{T+7}
    v_lshl_add_u32 v{T+6}, v{T+7}, 3, v{T+6}
    s_lshl_b32 {t0}, s3, 10
    s_add_u32 {t0}, {t0}, {W2SCR}
    v_add_u32 v{W2A}, {t0}, v{T+6}
    v_mul_u32_u24 v{T+6}, 56, v{T+9}
    v_lshl_add_u32 v{T+7}, v{NH}, 2, v{C}
    v_lshl_add_u32 v{T+6}, v{T+7}, 3, v{T+6}
    v_add_u32 v{T+6}, {WPHI}, v{T+6}
    v_cmp_eq_u32_e64 {M1}, 7, v{T+7}
    s_or_b64 {M2}, {M1}, {HHM}
    v_mov_b32 v{T+7}, {ZERO}
    """)
    for te in range(4):
        S.e(f"v_add_u32 v{T+8}, {te * 448}, v{T+6}")
        S.e(f"v_cndmask_b32_e64 v{PHA+te}, v{T+8}, v{T+7}, {M2 if te == 3 else M1}")
    S.e(f"""
    v_mov_b32 v{T}, 0
    v_mov_b32 v{T+1}, 0
    v_mov_b32 v{T+2}, 0
    v_mov_b32 v{T+3}, 0
    v_add_u32 v{T+4}, {CS}, v{V_L16}
    ds_write_b128 v{T+4}, {vr(T)}
    """)
    BUF = [SC, SC + 12]; CT = SC + 24; ST = SC + 30; W2T = SC + 36
    for i in range(5): S.e(f"v_mov_b32 v{CA+i}, 0")
    for i in range(4): S.e(f"v_mov_b32 v{ST+i}, 0")
    S.e(f"v_mov_b32 v{ONES}, 0x3f803f80")
    S.e(f"v_mov_b32 v{VK0}, {f32(-2.302208198)}\nv_mov_b32 v{VK1}, {f32(-2.302208198*0.044715)}")
    S.e(f"v_mov_b32 v{BP+2}, 0\nv_mov_b32 v{BP+3}, 0\nv_mov_b32 v{AP+2}, 0\nv_mov_b32 v{AP+3}, 0")

    def a_reads(c, s, buf):
        base = (c % 4) * W0S
        for e in range(2):
            if q:
                S.e(f"ds_read_b64_tr_b16 {vr(buf + 2*e, 2)}, v{V_AT} offset:{base + s*1024 + e*256}")
                S.e(f"ds_read_b64_tr_b16 {vr(buf + 4 + 2*e, 2)}, v{V_AT+1} offset:{base + s*2048 + e*256}")
                S.e(f"ds_read_b64_tr_b16 {vr(buf + 8 + 2*e, 2)}, v{V_AT+2} offset:{base + s*2048 + e*256}")
            else:
                S.e(f"ds_read_b64_tr_b16 {vr(buf + 2*e, 2)}, v{V_AT} offset:{base + s*2048 + e*256}")
                S.e(f"ds_read_b64_tr_b16 {vr(buf + 4 + 2*e, 2)}, v{V_AT} offset:{base + s*2048 + 1024 + e*256}")
                S.e(f"ds_read_b64_tr_b16 {vr(buf + 8 + 2*e, 2)}, v{V_AT+1+e} offset:{base + s*512}")
    def cs_reads(c):
        base = (c % 4) * W0S
        if q:
            for t in range(3): S.e(f"ds_read_b64_tr_b16 {vr(CT + 2*t, 2)}, v{V_AC+t} offset:{base}")
        else:
            S.e(f"ds_read_b64_tr_b16 {vr(CT, 2)}, v{V_AC} offset:{base}")
            S.e(f"ds_read_b64_tr_b16 {vr(CT+2, 2)}, v{V_AC} offset:{base + 1024}")
            S.e(f"ds_read_b64_tr_b16 {vr(CT+4, 2)}, v{V_AC+2} offset:{base}")
    def mfmas(c, s, buf):
        ks = 4 * c + s
        for t in range(3):
            cc = "0" if ks == 0 else vr(ACC0 + 16*t, 16)
            S.e(f"{MF} {vr(ACC0 + 16*t, 16)}, {vr(buf + 4*t)}, {vr(XF + 4*ks)}, {cc}")
    def stats(c, s):
        for j in range(4):
            r = XF + 4 * (4*c + s) + j
            S.e(f"v_dot2c_f32_bf16 v{ST + (j&1)}, v{r}, v{ONES}\nv_dot2c_f32_bf16 v{ST + 2 + (j&1)}, v{r}, v{r}")
    def x_read(c):
        S.wait_vm(f"x{c}")
        for s in range(4):
            S.e(f"ds_read_b128 {vr(XF + 4*(4*c+s))}, v{V_AX+s} offset:{(c % 3) * 4096}", tag=f"xr{c}")
    def x_next(c):
        S.wait_lgkm(f"xr{c}")
        if c + 3 <= 6: x_dma(S, c + 3)
        elif c == 4:
            w12_pair(S, 4096, 2, 0, "w12"); w12_pair(S, 4096 + 2048, 2, 1, "w12")
        elif c == 5:
            w12_pair(S, 8192, 1, 16, "w12")
            lab = f"K1_{typ}_skipw12"
            S.e(f"s_cmp_ge_u32 s3, 4\ns_cbranch_scc1 {lab}")
            w12_pair(S, 8192 + 2048, 1, 24, "w12", opt=True)
            S.e(f"{lab}:")
    def bar_w(c):
        S.wait_lgkm(); S.wait_vm(f"w{c}"); S.e("s_barrier")
        if c + 3 <= 6: w0_dma(S, c + 3, typ)

    x_read(0); x_next(0)
    bar_w(0)
    a_reads(0, 0, BUF[0])
    for c in range(7):
        S.comment(f"chunk {c}")
        a_reads(c, 1, BUF[1]); mfmas(c, 0, BUF[0]); stats(c, 0); stats(c, 1)
        a_reads(c, 2, BUF[0]); mfmas(c, 1, BUF[1])
        if c < 6: x_read(c + 1)
        a_reads(c, 3, BUF[1]); cs_reads(c); mfmas(c, 2, BUF[0]); stats(c, 2); stats(c, 3)
        if c < 6:
            x_next(c + 1)
            bar_w(c + 1)
            a_reads(c + 1, 0, BUF[0])
        mfmas(c, 3, BUF[1])
        for t in range(3):
            S.e(f"v_dot2c_f32_bf16 v{CA+t}, v{CT+2*t}, v{ONES}\nv_dot2c_f32_bf16 v{CA+t}, v{CT+2*t+1}, v{ONES}")
        if c == 2:
            S.wait_vm("w2")
            S.e(f"ds_read_b64_tr_b16 {vr(W2T, 2)}, v{W2A}\nds_read_b64_tr_b16 {vr(W2T+2, 2)}, v{W2A} offset:512")
            S.e(f"buffer_store_dwordx4 {vr(W2T)}, v{V_L16}, {sq(S_WS)}, s{S_W2D} offen{OPT['hf_flags']}", tag="w2st")
    for t in range(3): S.e(f"ds_add_f32 v{V_CSA}, v{CA+t} offset:{t*128}")
    T = SC
    S.e(f"v_add_f32 v{ST}, v{ST}, v{ST+1}\nv_add_f32 v{ST+2}, v{ST+2}, v{ST+3}")
    xhalf(S, "v_add_f32", ST, T); xhalf(S, "v_add_f32", ST + 2, T + 1)
    S.e(f"""
    v_mul_f32 v{ST}, {f32(1/448)}, v{ST}
    v_mul_f32 v{ST+2}, {f32(1/448)}, v{ST+2}
    v_fma_f32 v{ST+2}, -v{ST}, v{ST}, v{ST+2}
    v_max_f32 v{ST+2}, 0, v{ST+2}
    """)
    bf16r(S, ST + 2, f"v{ST+2}")
    S.e(f"v_add_f32 v{ST+2}, {f32(1e-5)}, v{ST+2}")
    bf16r(S, ST + 2, f"v{ST+2}")
    S.e(f"v_sqrt_f32 v{ST+2}, v{ST+2}")
    bf16r(S, V_SD, f"v{ST+2}")
    S.e(f"""
    v_rcp_f32 v{V_RINV}, v{V_SD}
    v_cvt_pk_bf16_f32 v{T}, -v{ST}, -v{ST}
    v_cndmask_b32_e64 v{BP}, v{T}, v{BP+2}, {HHM}
    v_and_b32 v{BP+1}, 0xffff, v{BP}
    """)
    S.wait_vm("phi")
    S.wait_lgkm(); S.e("s_barrier")
    WPF = SC; QB = SC + 8; E = SC + 16; TT = SC + 32
    A0, A1, A2 = ACC0, ACC0 + 16, ACC0 + 32
    for te in range(4): S.e(f"ds_read_b64_tr_b16 {vr(WPF + 2*te, 2)}, v{PHA+te}")
    for t in range(3): corr_mfma(S, ACC0 + 16*t, t, SC + 44)
    for i in range(16): S.e(f"v_mul_f32 v{A0+i}, v{A0+i}, v{V_RINV}")
    for i in range(8): S.e(f"v_cvt_pk_bf16_f32 v{QB+i}, v{A0+2*i}, v{A0+2*i+1}")
    S.e(f"{MF} {vr(A0,16)}, {vr(WPF)}, {vr(QB)}, 0\n{MF} {vr(A0,16)}, {vr(WPF+4)}, {vr(QB+4)}, {vr(A0,16)}")
    if not q:
        for i in range(16): S.e(f"v_mul_f32 v{A1+i}, v{A1+i}, v{V_RINV}")
        for i in range(8): S.e(f"v_cvt_pk_bf16_f32 v{A1+i}, v{A1+2*i}, v{A1+2*i+1}")
        S.e(f"""
        v_mov_b32 v{A1+8}, 0x3f80
        v_cndmask_b32_e64 v{A1+6}, v{A1+6}, v{A1+8}, {HHM}
        v_and_b32 v{A1+9}, 31, v{V_L}
        v_lshrrev_b32 v{A1+10}, 5, v{V_L}
        v_lshlrev_b32 v{A1+10}, 5, v{A1+10}
        v_mul_u32_u24 v{A1+11}, {VVS}, v{A1+9}
        v_add3_u32 v{A1+11}, v{A1+11}, v{A1+10}, s{S_AREA}
        v_mul_u32_u24 v{A1+12}, {PKS}, v{A1+9}
        s_mul_i32 {t0}, s3, {32*PKS}
        s_add_u32 {t0}, {t0}, {PK}
        v_add3_u32 v{A1+12}, v{A1+12}, v{A1+10}, {t0}
        ds_write_b128 v{A1+11}, {vr(A1)}
        ds_write_b128 v{A1+11}, {vr(A1+4)} offset:16
        """)
    softmax2(S, A0, E, TT)
    if not q:
        S.e(f"""
        ds_write_b128 v{A1+12}, {vr(E)}
        ds_write_b128 v{A1+12}, {vr(E+4)} offset:16
        ds_write_b128 v{A1+12}, {vr(E+8)} offset:64
        ds_write_b128 v{A1+12}, {vr(E+12)} offset:80
        """)
    S.e(f"v_add_u32 v{TT}, s{S_AREA}, v{V_AH}\nv_add_u32 v{TT+1}, s{S_AREA}, v{V_AH+1}")
    S.wait_vm("w12")
    regs = [A0, A0 + 8, SC, SC + 8]
    def cs12(n, off, opt=False):
        for t in range(2):
            for e in range(2):
                S.e(f"ds_read_b64_tr_b16 {vr(regs[n] + 4*t + 2*e, 2)}, v{TT+t} offset:{off + e*256}", opt=opt)
    def cs12d(n, opt=False):
        for t in range(2):
            for j in range(4): S.e(f"v_dot2c_f32_bf16 v{CA+3+t}, v{regs[n] + 4*t + j}, v{ONES}", opt=opt)
    cs12(0, 4096); cs12(1, 6144); cs12(2, 8192)
    lab = f"K1_{typ}_skipcs"
    S.e(f"s_cmp_ge_u32 s3, 4\ns_cbranch_scc1 {lab}")
    cs12(3, 10240, True); cs12d(3, True)
    S.e(f"{lab}:")
    cs12d(0); cs12d(1); cs12d(2)
    S.e(f"ds_add_f32 v{V_CSA}, v{CA+3} offset:384\nds_add_f32 v{V_CSA}, v{CA+4} offset:512")
    S.wait_lgkm(); S.e("s_barrier")
    PB = [SC, SC + 4, SC + 8]; AHI = SC + 12; GT = SC + 32
    if not q:
        KA, KB = SC + 13, SC + 14
        KD = A1
        FB = A0
        S.e(f"""
        v_lshrrev_b32 v{GT}, 4, v{V_L}
        v_bfe_u32 v{GT+1}, v{V_L}, 2, 2
        v_lshl_add_u32 v{GT}, v{GT}, 3, v{GT+1}
        v_and_b32 v{GT+1}, 3, v{V_L}
        v_lshlrev_b32 v{GT+1}, 3, v{GT+1}
        v_mul_u32_u24 v{GT+2}, {PKS}, v{GT}
        s_lshr_b32 {t0}, s3, 1
        s_lshl_b32 {t0}, {t0}, 5
        s_add_u32 {t0}, {t0}, {PK}
        v_add3_u32 v{KA}, v{GT+2}, v{GT+1}, {t0}
        v_mul_u32_u24 v{GT+2}, {VVS}, v{GT}
        s_and_b32 {t0}, s3, 1
        s_lshl_b32 {t0}, {t0}, 5
        v_add3_u32 v{KB}, v{GT+2}, v{GT+1}, {t0}
        v_add_u32 v{KB+1}, 49152, v{KB}
        """)
        def kvrd(kk):
            b = FB + 8 * (kk & 1)
            for e in range(2):
                S.e(f"ds_read_b64_tr_b16 {vr(b + 2*e, 2)}, v{KA} offset:{kk*32*PKS + e*4*PKS}")
                S.e(f"ds_read_b64_tr_b16 {vr(b + 4 + 2*e, 2)}, v{KB + (kk >> 2)} offset:{(kk & 3)*AREA + e*4*VVS}")
        kvrd(0)
        for kk in range(8):
            if kk + 1 < 8: kvrd(kk + 1)
            b = FB + 8 * (kk & 1)
            S.e(f"{MF16} {vr(KD)}, {vr(b)}, {vr(b+4)}, {'0' if kk == 0 else vr(KD)}")
        S.e(f"""
        s_lshl_b32 {t0}, s{S_HEAD}, 3
        s_add_u32 {t0}, {t0}, s{S_MT}
        s_lshl_b32 {t0}, {t0}, 3
        s_add_u32 {t0}, {t0}, s3
        s_lshl_b32 {t0}, {t0}, 10
        s_add_u32 {t0}, {t0}, {KVP_OFF}
        """)
        S.e(f"buffer_store_dwordx4 {vr(KD)}, v{V_L16}, {sq(S_WS)}, {t0} offen sc1", tag="kvst")
        sig = Stream()
        sig.wait_vm("kvst")
        sig.e(f"""
        v_mov_b32 v{KA}, {CNT}
        v_mov_b32 v{KB}, 1
        s_mov_b64 exec, 1
        ds_add_rtn_u32 v{KB+1}, v{KA}, v{KB}
        s_mov_b64 exec, -1
        v_readfirstlane_b32 {t1}, v{KB+1}
        s_lshl_b32 {t2}, s{S_HEAD}, 2
        v_mov_b32 v{KA}, 0
        s_cmp_lg_u32 {t1}, 7
        s_cbranch_scc1 K1_kv_nosig
        """)
        sig.e(f"s_mov_b64 exec, 1", opt=True)
        sig.e(f"buffer_atomic_add v{KB}, v{KA}, {sq(S_DBG)}, {t2} offen", opt=True)
        sig.e(f"s_mov_b64 exec, -1", opt=True)
        sig.e("K1_kv_nosig:")
        P1, _ = p12_pass(0, A0, PB, AHI)
        side = Stream(); geglu(side, A2, GT, S_U0, 0)
        S.extend(merge(P1, side, ratio=5))
        S.extend(sig)
        P2, _ = p12_pass(1, A1, PB, AHI)
        side = Stream(); geglu(side, A0, GT, S_U12, 0)
        S.extend(merge(P2, side, ratio=5))
        geglu(S, A1, GT, S_U12, 1)
    else:
        P1, _ = p12_pass(0, A0, PB, AHI)
        side = Stream(); geglu(side, A1, GT, S_U0, 0); geglu(side, A2, GT, S_U0, 1)
        S.extend(merge(P1, side, ratio=7))
        KO = A2; U = A2 + 1
        S.e(f"""
        v_and_b32 v{U}, 31, v{V_L}
        v_lshrrev_b32 v{U+1}, 3, v{U}
        v_and_b32 v{U+2}, 3, v{U}
        v_lshl_add_u32 v{U+1}, v{U+1}, 2, v{U+2}
        v_bfe_u32 v{U+2}, v{U}, 2, 1
        v_mad_u32_u24 v{U+2}, v{U+2}, 14, v{U+1}
        v_cmp_eq_u32_e64 {M1}, 14, v{U+1}
        v_cndmask_b32_e64 v{U+2}, v{U+2}, 28, {M1}
        v_bfe_u32 v{U+3}, v{U+2}, 2, 1
        v_lshrrev_b32 v{U+4}, 3, v{U+2}
        v_and_b32 v{U+5}, 3, v{U+2}
        v_lshl_add_u32 v{U+4}, v{U+4}, 2, v{U+5}
        v_lshrrev_b32 v{U+5}, 5, v{V_L}
        v_lshl_add_u32 v{U+3}, v{U+5}, 1, v{U+3}
        v_lshlrev_b32 v{U+3}, 10, v{U+3}
        v_lshl_add_u32 v{U+3}, v{U+4}, 4, v{U+3}
        s_lshr_b32 {t0}, s3, 2
        s_lshl_b32 {t0}, {t0}, 12
        s_and_b32 {t1}, s3, 3
        s_lshl_b32 {t2}, {t1}, 8
        s_add_u32 {t0}, {t0}, {t2}
        v_add_u32 v{U+3}, {t0}, v{U+3}
        v_cmp_eq_u32_e64 {M1}, 15, v{U+1}
        s_cmp_eq_u32 {t1}, 3
        s_cselect_b64 {M2}, {HHM}, 0
        s_or_b64 {M1}, {M1}, {M2}
        v_mov_b32 v{U+4}, 0x7f000000
        v_cndmask_b32_e64 v{KO}, v{U+3}, v{U+4}, {M1}
        s_lshl_b32 {t4}, s{S_HEAD}, 2
        v_mov_b32 v{U+6}, 0
        """)
        S.e(f"buffer_load_dword v{U+7}, v{U+6}, {sq(S_DBG)}, {t4} offen sc1", tag="poll")
        P2, order = p12_pass(1, A1, PB, AHI)
        KL = [XF + 4 * order[i] for i in range(8)]
        hook = Stream()
        hook.e(f"""
        v_readfirstlane_b32 {t1}, v{U+7}
        s_mov_b32 {t3}, 0
        s_cmp_ge_u32 {t1}, 8
        s_cbranch_scc1 K1_q_ready
        K1_q_poll:
        """)
        hook.e(f"""
        s_sleep 2
        buffer_load_dword v{U+7}, v{U+6}, {sq(S_DBG)}, {t4} offen sc1
        s_waitcnt vmcnt(0)
        v_readfirstlane_b32 {t1}, v{U+7}
        s_add_u32 {t3}, {t3}, 1
        s_cmp_ge_u32 {t3}, 0x8000
        s_cbranch_scc1 K1_q_ready
        s_cmp_lt_u32 {t1}, 8
        s_cbranch_scc1 K1_q_poll
        """, opt=True)
        hook.e(f"""
        K1_q_ready:
        s_lshl_b32 {t0}, s{S_HEAD}, 16
        s_add_u32 {t0}, {t0}, {KVP_OFF}
        """)
        for i in range(8):
            hook.e(f"buffer_load_dwordx4 {vr(KL[i])}, v{KO}, {sq(S_WS)}, {t0} offen sc1", tag="kvl")
            if i < 7: hook.e(f"s_add_u32 {t0}, {t0}, 8192")
        side = Stream(); geglu(side, A0, GT, S_U12, 0)
        M = merge(P2, side, ratio=7)
        cnt = 0; pos = None
        for idx, ins in enumerate(M):
            if ins.kind == "mfma":
                cnt += 1
                if cnt == 20: pos = idx + 1; break
        S.extend(M[:pos]); S.extend(hook); S.extend(M[pos:])
        geglu(S, A1, GT, S_U12, 1)
        for j in range(4):
            S.e(f"v_add_f32 v{KL[0]+j}, v{KL[0]+j}, v{KL[1]+j}\nv_add_f32 v{KL[2]+j}, v{KL[2]+j}, v{KL[3]+j}\nv_add_f32 v{KL[4]+j}, v{KL[4]+j}, v{KL[5]+j}\nv_add_f32 v{KL[6]+j}, v{KL[6]+j}, v{KL[7]+j}")
        for j in range(4):
            S.e(f"v_add_f32 v{KL[0]+j}, v{KL[0]+j}, v{KL[2]+j}\nv_add_f32 v{KL[4]+j}, v{KL[4]+j}, v{KL[6]+j}")
        for j in range(4): S.e(f"v_add_f32 v{KL[0]+j}, v{KL[0]+j}, v{KL[4]+j}")
        S.e(f"""
        v_cvt_pk_bf16_f32 v{KL[1]}, v{KL[0]}, v{KL[0]+1}
        v_cvt_pk_bf16_f32 v{KL[1]+1}, v{KL[0]+2}, v{KL[0]+3}
        s_lshr_b32 {t0}, s3, 1
        s_lshl_b32 {t0}, {t0}, 10
        s_and_b32 {t1}, s3, 1
        s_lshl_b32 {t1}, {t1}, 3
        s_add_u32 {t0}, {t0}, {t1}
        s_add_u32 {t0}, {t0}, {KVF}
        v_add_u32 v{U}, {t0}, v{V_L16}
        ds_write_b64 v{U}, {vr(KL[1], 2)}
        v_add_u32 v{U+1}, {KVF}, v{V_L16}
        """)
        S.wait_lgkm(); S.e("s_barrier")
        KF = A0
        for k in range(4): S.e(f"ds_read_b128 {vr(KF + 4*k)}, v{U+1} offset:{k*1024}")
        O = A1
        for k in range(4): S.e(f"{MF} {vr(O,16)}, {vr(KF + 4*k)}, {vr(E + 4*k)}, {'0' if k == 0 else vr(O,16)}")
        bf16r(S, GT, f"v{O+14}")
        S.e(f"v_add_f32 v{GT}, {f32(1e-6)}, v{GT}")
        bf16r(S, GT, f"v{GT}")
        S.e(f"v_rcp_f32 v{GT}, v{GT}")
        for i in range(7): S.e(f"v_cvt_pk_bf16_f32 v{GT+1+i}, v{O+2*i}, v{O+2*i+1}")
        for i in range(7): S.e(f"v_lshlrev_b32 v{O+2*i}, 16, v{GT+1+i}\nv_and_b32 v{O+2*i+1}, 0xffff0000, v{GT+1+i}")
        for i in range(14): S.e(f"v_mul_f32 v{O+i}, v{O+i}, v{GT}")
        for i in range(7): S.e(f"v_cvt_pk_bf16_f32 v{KF+i}, v{O+2*i}, v{O+2*i+1}")
        S.e(f"""
        v_mov_b32 v{KF+7}, 0
        s_lshl_b32 {t0}, s{S_HEAD}, 11
        s_add_u32 {t0}, {t0}, s{S_HFB}
        s_add_u32 {t0}, {t0}, {112*1024}
        buffer_store_dwordx4 {vr(KF)}, v{V_L16}, {sq(S_WS)}, {t0} offen{OPT['hf_flags']}
        buffer_store_dwordx4 {vr(KF+4)}, v{V_L16}, {sq(S_WS)}, {t0} offen offset:1024{OPT['hf_flags']}
        """)
    S.e("s_endpgm")
    return S

def gen_k1():
    pro = k1_prologue()
    out = []
    for typ in ("q", "kv"):
        full = finalize(list(pro) + list(k1_body(typ)))
        idx = next(i for i, x in enumerate(full) if x.text == f"K1_{typ}:")
        if typ == "q": out += full
        else: out += full[idx:]
    out.append(I("K1_END:")); out.append(I("s_endpgm"))
    return out

def kd(name, vg, acc, sg=102):
    return f""".p2align 6
.amdhsa_kernel {name}
  .amdhsa_next_free_vgpr {vg}
  .amdhsa_next_free_sgpr {sg}
  .amdhsa_accum_offset {acc}
  .amdhsa_group_segment_fixed_size 0
  .amdhsa_kernarg_size 88
  .amdhsa_user_sgpr_count 2
  .amdhsa_user_sgpr_kernarg_segment_ptr 1
  .amdhsa_system_sgpr_workgroup_id_x 1
.end_amdhsa_kernel
"""

def build(path):
    k1 = gen_k1(); k2 = finalize(gen_k2())
    print("K1", stats(k1), "K2", stats(k2), file=sys.stderr)
    ref = open(f"cdna_kernels/{NAME}.s.ref").read().split("\n")
    hdr = [l for l in ref if l.startswith(";") and "@launch" not in l and "Override" not in l and "grid=ceil" not in l]
    txt = "\n".join(hdr) + "\n"
    txt += f"; @launch kernel={K1} grid=(256,1,1) block=(512,1,1) lds=163840\n"
    txt += f"; @launch kernel={K2} grid=(224,1,1) block=(256,1,1) lds=49152\n"
    txt += '.amdgcn_target "amdgcn-amd-amdhsa--gfx950"\n.text\n'
    for name, prog in ((K1, k1), (K2, k2)):
        txt += f".globl {name}\n.p2align 8\n.type {name},@function\n{name}:\n" + render(prog)
    txt += '.section .rodata,"a"\n' + kd(K1, 256, 256) + kd(K2, 256 + 192, 256)
    open(path, "w").write(txt)

if __name__ == "__main__":
    for a in sys.argv[2:]:
        k, v = a.split("=")
        OPT[k] = {"True": True, "False": False}.get(v, v.replace("_", " ") if k.endswith("flags") else v)
    build(sys.argv[1] if len(sys.argv) > 1 else f"cdna_kernels/{NAME}.s")
```

```python
import re

REG_RE = re.compile(r'\b([vsa])\[(\d+):(\d+)\]|\b([vsa])(\d+)\b|\b(vcc|exec|m0)\b')
TRANS = ("v_exp_f32", "v_log_f32", "v_rcp_f32", "v_rsq_f32", "v_sqrt_f32", "v_sin_f32", "v_cos_f32")
NO_DST_SALU = ("s_cmp", "s_cbranch", "s_branch", "s_waitcnt", "s_nop", "s_barrier", "s_endpgm", "s_setprio", "s_sleep", "s_bitcmp")

def regs_of(op):
    out = []
    for m in REG_RE.finditer(op):
        if m.group(1):
            out += [(m.group(1), i) for i in range(int(m.group(2)), int(m.group(3)) + 1)]
        elif m.group(4):
            out.append((m.group(4), int(m.group(5))))
        else:
            n = m.group(6)
            if n == "vcc": out += [("s", 106), ("s", 107)]
            elif n == "exec": out += [("s", 126), ("s", 127)]
            else: out.append(("s", 124))
    return out

def split_ops(s):
    ops, depth, cur = [], 0, ""
    for ch in s:
        if ch == "[": depth += 1
        if ch == "]": depth -= 1
        if ch == "," and depth == 0:
            ops.append(cur.strip()); cur = ""
        else:
            cur += ch
    if cur.strip(): ops.append(cur.strip())
    return ops

class I:
    __slots__ = ("text", "op", "kind", "rd", "wr", "tag", "opt", "passes", "srcC", "srcAB", "dpp", "pseudo", "arg", "wide", "states", "lds_dma", "opsel")
    def __init__(self, text, tag=None, opt=False):
        self.text = text; self.tag = tag; self.opt = opt
        self.pseudo = None; self.arg = None
        self.rd = set(); self.wr = set(); self.passes = 0; self.srcC = (); self.srcAB = set()
        self.dpp = False; self.wide = set(); self.states = 1; self.lds_dma = False; self.opsel = False
        t = text.split(";")[0].strip()
        if t.endswith(":") or t.startswith("."):
            self.op = "label"; self.kind = "label"; self.states = 0; return
        parts = t.split(None, 1)
        op = parts[0]; rest = parts[1] if len(parts) > 1 else ""
        self.op = op
        ops = split_ops(rest)
        opregs = []
        for o in ops:
            opregs.append(regs_of(o.split(" ")[0] if not o.startswith(("-", "abs", "|")) else o.split(" ")[0]))
        base = re.sub(r"_(e32|e64|dpp|sdwa)$", "", op)
        if op.startswith("v_mfma"):
            self.kind = "mfma"
            self.passes = 8 if "32x32x16" in op else 4
            self.wr = set(opregs[0]); self.srcAB = set(opregs[1]) | set(opregs[2]); self.srcC = tuple(opregs[3])
            self.rd = self.srcAB | set(self.srcC)
        elif op.startswith("v_"):
            self.kind = "trans" if base in TRANS else ("dot" if base.startswith("v_dot") else "valu")
            self.dpp = op.endswith("_dpp") or "quad_perm" in rest or "row_" in rest
            self.opsel = "op_sel" in rest or op.endswith("_sdwa")
            self.wr = set(opregs[0]); srcs = opregs[1:]
            if base in ("v_add_co_u32", "v_sub_co_u32", "v_addc_co_u32", "v_subb_co_u32", "v_subrev_co_u32"):
                self.wr |= set(opregs[1]); srcs = opregs[2:]
            for r in srcs: self.rd |= set(r)
            if base.startswith(("v_fmac", "v_dot2c", "v_pk_fmac", "v_writelane")) or self.dpp: self.rd |= set(opregs[0])
            if "swap" in base:
                self.rd |= set(opregs[0]); self.wr |= set(opregs[1])
            if base.startswith("v_dot2c"): self.srcC = tuple(opregs[0])
            elif base.startswith("v_dot"): self.srcC = tuple(opregs[3])
        elif op.startswith("ds_"):
            self.kind = "ds"
            if op.startswith(("ds_read", "ds_bpermute", "ds_permute", "ds_swizzle")) or "_rtn" in op:
                self.wr = set(opregs[0]); srcs = opregs[1:]
            else: srcs = opregs
            for r in srcs: self.rd |= set(r)
        elif op.startswith(("buffer_", "global_")):
            self.kind = "vmem"
            words = rest.split()
            self.lds_dma = ("lds" in words) or "_lds_" in op
            if self.lds_dma:
                for r in opregs: self.rd |= set(r)
                self.rd.add(("s", 124))
            elif "_load" in op:
                self.wr = set(opregs[0])
                for r in opregs[1:]: self.rd |= set(r)
            else:
                for r in opregs: self.rd |= set(r)
                if "atomic" in op and "sc0" in words: self.wr = set(opregs[0])
                if op.endswith(("x4", "x3")):
                    self.wide = set(opregs[0]) if op.startswith("buffer_") else set(opregs[1])
        elif op.startswith(("s_load", "s_memtime", "s_memrealtime", "s_buffer_load")):
            self.kind = "smem"
            self.wr = set(opregs[0])
            for r in opregs[1:]: self.rd |= set(r)
        elif op.startswith("s_"):
            self.kind = "salu"
            if op.startswith(NO_DST_SALU):
                for r in opregs: self.rd |= set(r)
                if op == "s_nop": self.states = int(rest.strip(), 0) + 1
            else:
                self.wr = set(opregs[0])
                for r in opregs[1:]: self.rd |= set(r)
                if op.startswith(("s_addk", "s_mulk")): self.rd |= set(opregs[0])
                if "saveexec" in op: self.wr |= {("s", 126), ("s", 127)}; self.rd |= {("s", 126), ("s", 127)}
        else:
            raise ValueError("unknown instruction: " + text)

def pseudo(kind, arg=None):
    i = I("x:"); i.pseudo = kind; i.arg = arg; i.kind = "pseudo"; i.text = ""; return i

class Stream(list):
    def e(self, text, tag=None, opt=False):
        for line in text.strip().split("\n"):
            line = line.strip()
            if line and not line.startswith(";"):
                self.append(I(line, tag, opt))
        return self
    def wait_vm(self, *tags, opt=False):
        p = pseudo("wait_vm", tags); p.opt = opt; self.append(p); return self
    def wait_lgkm(self, *tags): self.append(pseudo("wait_lgkm", tags)); return self
    def fence(self): self.append(pseudo("fence")); return self
    def mark(self, n): self.append(pseudo("mark", n)); return self
    def need(self, n): self.append(pseudo("need", n)); return self
    def atomic_begin(self): self.append(pseudo("atomic_begin")); return self
    def atomic_end(self): self.append(pseudo("atomic_end")); return self
    def comment(self, s): self.append(pseudo("comment", s)); return self

def merge(main, side, ratio=None, lead=0):
    out = Stream()
    nm = sum(1 for i in main if i.kind == "mfma")
    def cost(i):
        if i.kind in ("pseudo", "label"): return 0
        if i.kind == "salu": return 0.5
        return 2 if (i.kind == "trans" or "permlane" in i.op) else 1
    total = sum(cost(i) for i in side)
    per = ratio if ratio is not None else (total + nm - 1) / max(nm, 1)
    si = 0; budget = lead; marks = set()
    def step_side(force=False):
        nonlocal si, budget
        ins = side[si]
        if ins.kind == "pseudo" and ins.pseudo == "need":
            if ins.arg not in marks:
                if force: raise ValueError("merge deadlock on " + ins.arg)
                return False
            si += 1; return True
        if ins.kind == "pseudo" and ins.pseudo == "mark":
            marks.add(ins.arg); si += 1; return True
        if ins.kind == "pseudo" and ins.pseudo == "atomic_begin":
            si += 1
            while not (side[si].kind == "pseudo" and side[si].pseudo == "atomic_end"):
                budget -= cost(side[si]); out.append(side[si]); si += 1
            si += 1; return True
        if not force and budget < cost(ins): return False
        budget -= cost(ins); out.append(ins); si += 1; return True
    for ins in main:
        if ins.kind == "pseudo" and ins.pseudo == "mark":
            marks.add(ins.arg); continue
        if ins.kind == "pseudo" and ins.pseudo == "need":
            while ins.arg not in marks: step_side(force=True)
            budget = min(budget, 0); continue
        out.append(ins)
        if ins.kind == "mfma":
            budget = min(budget + per, 2 * per)
            while si < len(side) and step_side(): pass
    while si < len(side): step_side(force=True)
    return out

def finalize(prog):
    out = []
    vmq = []; lgq = []
    def emit(i): out.append(i)
    def need_from(q, idx):
        return sum(1 for j in q[idx + 1:] if not j.opt)
    def do_wait(vm=None, lg=None, opt=False):
        parts = []
        if vm is not None: parts.append(f"vmcnt({min(vm, 63)})")
        if lg is not None: parts.append(f"lgkmcnt({min(lg, 15)})")
        if parts: emit(I("s_waitcnt " + " ".join(parts), opt=opt))
    for ins in prog:
        if ins.kind == "pseudo":
            if ins.pseudo == "comment":
                c = I("x:"); c.text = "; " + ins.arg; c.kind = "label"; c.states = 0; emit(c)
            elif ins.pseudo == "forget_opt":
                vmq[:] = [j for j in vmq if not j.opt]
            elif ins.pseudo == "fence":
                do_wait(0, 0); vmq.clear(); lgq.clear(); emit(I("s_nop 7")); emit(I("s_nop 7"))
            elif ins.pseudo == "wait_vm":
                idx = max([k for k, j in enumerate(vmq) if (not ins.arg) or j.tag in ins.arg], default=-1)
                if idx >= 0:
                    do_wait(vm=need_from(vmq, idx), opt=ins.opt)
                    if not ins.opt: del vmq[:idx + 1]
            elif ins.pseudo == "wait_lgkm":
                idx = max([k for k, j in enumerate(lgq) if (not ins.arg) or j.tag in ins.arg], default=-1)
                if idx >= 0:
                    if any(j.kind == "smem" for j in lgq): do_wait(lg=0); lgq.clear()
                    else: do_wait(lg=need_from(lgq, idx)); del lgq[:idx + 1]
            continue
        if ins.kind == "label":
            emit(ins); continue
        touched = ins.rd | ins.wr
        vi = max([k for k, j in enumerate(vmq) if j.wr & touched], default=-1)
        li = max([k for k, j in enumerate(lgq) if j.wr & touched], default=-1)
        vm = lg = None
        if vi >= 0:
            vm = need_from(vmq, vi)
            if not ins.opt: del vmq[:vi + 1]
        if li >= 0:
            if any(j.kind == "smem" for j in lgq):
                lg = 0
                if not ins.opt: lgq.clear()
            else:
                lg = need_from(lgq, li)
                if not ins.opt: del lgq[:li + 1]
        do_wait(vm, lg, ins.opt)
        need = 0; dist = 0
        isvalu = ins.kind in ("valu", "trans", "dot")
        for p in reversed(out):
            if dist >= 20: break
            if p.kind == "label": continue
            req = 0
            if not p.opt or True:
                pv = p.kind in ("valu", "trans", "dot")
                if pv:
                    vw = {r for r in p.wr if r[0] in "va"}; sw = {r for r in p.wr if r[0] == "s"}
                    if ins.kind == "mfma" and vw & ins.rd: req = max(req, 2)
                    if ins.dpp and vw & ins.rd: req = max(req, 2)
                    if "permlane" in ins.op and vw & ins.rd: req = max(req, 2)
                    if ins.op.startswith(("v_readfirstlane", "v_readlane")) and vw & ins.rd: req = max(req, 1)
                    if p.kind == "trans" and isvalu and ins.kind != "trans" and vw & ins.rd: req = max(req, 1)
                    if p.opsel and isvalu and vw & touched: req = max(req, 1)
                    if p.kind == "dot" and vw & touched:
                        same = (ins.op == p.op and set(ins.srcC) == vw and not (vw & (ins.rd - set(ins.srcC))))
                        if not same: req = max(req, 3)
                    if sw & ins.rd:
                        if ins.kind == "vmem": req = max(req, 5)
                        elif ins.op.startswith(("v_readlane", "v_writelane")): req = max(req, 4)
                        elif isvalu or ins.kind == "mfma": req = max(req, 2)
                        elif ins.kind in ("salu", "smem"): req = max(req, 1)
                if p.kind == "mfma":
                    big = 12 if p.passes == 8 else 8
                    if ins.kind == "mfma":
                        if p.wr & ins.srcAB: req = max(req, big)
                        if p.wr & set(ins.srcC):
                            if not (set(ins.srcC) == p.wr and ins.passes == p.passes): req = max(req, big - 2)
                            elif "4x4x4" in p.op: req = max(req, 2)
                        elif p.wr & ins.wr: req = max(req, big - 2)
                    elif p.wr & touched: req = max(req, big)
                    if isvalu and set(p.srcC) & ins.wr: req = max(req, 7 if p.passes == 8 else 3)
                if p.kind == "salu" and ("s", 124) in p.wr and ins.lds_dma: req = max(req, 1)
                if p.wide and p.wide & ins.wr: req = max(req, 2)
            if req > dist: need = max(need, req - dist)
            if not p.opt: dist += p.states
        while need > 0:
            n = min(need, 16); emit(I(f"s_nop {n - 1}", opt=ins.opt)); need -= n
        emit(ins)
        if ins.kind == "vmem": vmq.append(ins)
        elif ins.kind in ("ds", "smem"): lgq.append(ins)
        if ins.op == "s_waitcnt" and not ins.opt:
            m = re.search(r"vmcnt\((\d+)\)", ins.text)
            if m and int(m.group(1)) == 0: vmq.clear()
            m = re.search(r"lgkmcnt\((\d+)\)", ins.text)
            if m and int(m.group(1)) == 0: lgq.clear()
    return out

def render(prog):
    return "\n".join((i.text if i.kind == "label" else "    " + i.text) for i in prog) + "\n"

def stats(prog):
    from collections import Counter
    c = Counter(i.kind for i in prog)
    nops = sum(i.states for i in prog if i.op == "s_nop")
    return dict(c), nops
```

```python
import sys, os, struct
sys.path.insert(0, os.path.dirname(os.path.abspath(__file__)))
from dsl import *

NAME = "parallel_sum__linear_kernel_hedgehog__geglu_ffn__prompt"
K1 = NAME + "_kernel"
K2 = "k2_kernel"

HF_OFF = 0
KVP_OFF = 0xB00000
PHF_OFF = 0x1000000
WS_SIZE = 0x1400000
NKS = 144

OPT = dict(mimic_ffn=False, hf_flags=" sc1", k2d="8", prefetch=True)

def f32(x): return "0x%08x" % struct.unpack("<I", struct.pack("<f", x))[0]
def vr(a, n=4): return f"v[{a}:{a+n-1}]"
def ar(a, n=4): return f"a[{a}:{a+n-1}]"
MF = "v_mfma_f32_32x32x16_bf16"
MF16 = "v_mfma_f32_16x16x32_bf16"

def srd(S, d, lo, nbytes):
    S.e(f"s_mov_b32 s{d}, s{lo}\ns_mov_b32 s{d+1}, s{lo+1}\ns_mov_b32 s{d+2}, {nbytes}\ns_mov_b32 s{d+3}, 0x20000")

STAMP_REGS = [92, 94, 96, 98, 100, 28, 30, 4, 6, 8, 10, 12, 14, 16, 18, 20]
ST_OFF = 0xD00000
class Stamper:
    def __init__(self, regs=STAMP_REGS): self.n = 0; self.names = []; self.regs = regs
    def __call__(self, S, name, fine=False):
        if not OPT.get("stamps"): return
        if (OPT.get("stamps") == "fine") != fine and name != "end": return
        r = self.regs[self.n]; self.n += 1; self.names.append(name)
        S.e(f"{'s_memtime' if fine else 's_memrealtime'} s[{r}:{r+1}]")
    def flush(self, S, srd_s, base, vtmp, nwaves):
        if not OPT.get("stamps"): return
        S.e("s_waitcnt lgkmcnt(0)")
        for i in range(self.n): S.e(f"v_mov_b32 v{vtmp+i}, s{self.regs[i]}")
        S.e(f"s_mul_i32 s88, s2, {nwaves*64}\ns_lshl_b32 s89, s3, 6\ns_add_u32 s88, s88, s89\ns_add_u32 s88, s88, {base}\nv_mov_b32 v0, 0\ns_mov_b64 exec, 1")
        for i in range(0, 16, 4): S.e(f"buffer_store_dwordx4 v[{vtmp+i}:{vtmp+i+3}], v0, {srd_s}, s88 offen offset:{i*4}")
        print("stamps", self.names, file=sys.stderr)

K2_NS = 18
K2_LDS = 4 * K2_NS * 2048
def gen_k2():
    S = Stream()
    D = int(OPT["k2d"])
    st = Stamper([92, 94, 96, 98, 100, 60, 62, 64, 66]); st.n = 1; st.names = ["start"]
    S.e(f"""
    s_cmp_ge_u32 s2, 256
    s_cbranch_scc1 K2_END
    {'s_memrealtime s[92:93]' if OPT.get('stamps') else ''}
    s_load_dwordx2 s[4:5], s[0:1], 0
    s_load_dwordx2 s[10:11], s[0:1], 24
    s_load_dwordx4 s[48:51], s[0:1], 56
    s_load_dwordx4 s[68:71], s[0:1], 72
    v_lshrrev_b32 v1, 6, v0
    v_and_b32 v2, 63, v0
    v_readfirstlane_b32 s3, v1
    s_cmp_ge_u32 s2, 224
    s_cbranch_scc1 K2_OW
    s_and_b32 s30, s2, 7
    s_lshr_b32 s31, s2, 3
    s_and_b32 s32, s31, 3
    s_and_b32 s33, s30, 1
    s_lshl_b32 s33, s33, 2
    s_lshr_b32 s30, s30, 1
    s_add_u32 s30, s30, s33
    s_lshl_b32 s30, s30, 2
    s_add_u32 s30, s30, s32
    s_lshr_b32 s31, s31, 2
    s_and_b32 s33, s3, 1
    s_lshr_b32 s34, s3, 1
    s_lshl_b32 s35, s30, 1
    s_add_u32 s36, s35, s33
    s_xor_b32 s37, s36, 1
    s_lshl_b32 s35, s31, 1
    s_add_u32 s38, s35, s34
    s_mul_i32 s41, s36, {NKS*1024}
    s_mul_i32 s42, s37, {NKS*1024}
    v_lshlrev_b32 v3, 4, v2
    v_add_u32 v6, s41, v3
    v_add_u32 v7, s42, v3
    s_mul_i32 s40, s3, {28*1024}
    s_lshl_b32 s41, s3, 13
    s_add_u32 s41, s41, {112*1024 - 28*1024}
    s_mul_i32 s43, s3, {28*16*896}
    s_mul_i32 s44, s3, {4*28*896}
    s_mul_i32 s46, s3, {K2_NS*2048}
    v_lshrrev_b32 v10, 3, v2
    v_and_b32 v11, 7, v2
    v_bfe_u32 v12, v2, 4, 1
    v_lshlrev_b32 v12, 2, v12
    v_xor_b32 v11, v11, v12
    s_lshl_b32 s47, s31, 7
    v_lshlrev_b32 v11, 4, v11
    v_add_u32 v11, s47, v11
    v_mul_u32_u24 v4, 896, v10
    v_add_u32 v4, v4, v11
    v_lshrrev_b32 v12, 2, v10
    v_and_b32 v13, 3, v10
    v_mad_u32_u24 v12, v12, 14, v13
    v_mul_u32_u24 v5, 896, v12
    v_add_u32 v5, v5, v11
    v_cmp_lt_u32_e64 s[52:53], 1, v13
    v_mov_b32 v12, 0x7f000000
    v_cndmask_b32_e64 v9, v5, v12, s[52:53]
    """)
    S.e("s_waitcnt lgkmcnt(0)")
    srd(S, 12, 70, WS_SIZE); srd(S, 72, 68, 256); srd(S, 16, 4, 2048 * 896); srd(S, 20, 50, 2048 * 896); srd(S, 24, 48, 1792 * 896); srd(S, 56, 10, 448 * 896)
    def loads(i):
        sl = (i % D) * 8
        ls = (i % K2_NS) * 2048
        for u in range(2):
            S.e(f"s_add_u32 m0, s46, {ls + u*1024}")
            if i < 28:
                S.e(f"s_add_u32 s45, s43, {(16*i + 8*u) * 896}")
                S.e(f"buffer_load_dwordx4 v4, s[24:27], s45 offen lds", tag=f"a{i}")
            else:
                hd, t = (i - 28) >> 1, (i - 28) & 1
                S.e(f"s_add_u32 s45, s44, {(28*hd + 8*t + 4*u) * 896}")
                S.e(f"buffer_load_dwordx4 v{9 if (t and u) else 5}, s[56:59], s45 offen lds", tag=f"a{i}")
        S.e(f"s_add_u32 s45, s{40 if i < 28 else 41}, {i * 1024}")
        if i == 24:
            S.e("s_lshr_b32 s54, s30, 4\ns_lshl_b32 s54, s54, 7\nv_mov_b32 v13, 0")
            S.e("buffer_load_dword v12, v13, s[72:75], s54 offen sc1", tag="poll")
        if i == 28:
            S.e("""
            v_readfirstlane_b32 s55, v12
            s_mov_b32 s76, 0
            s_cmp_ge_u32 s55, 16
            s_cbranch_scc1 K2_ok
            """)
            S.e("""
            K2_loop:
            s_sleep 4
            buffer_load_dword v12, v13, s[72:75], s54 offen sc1
            s_waitcnt vmcnt(0)
            v_readfirstlane_b32 s55, v12
            s_add_u32 s76, s76, 1
            s_cmp_ge_u32 s55, 16
            s_cbranch_scc1 K2_ok
            s_cmp_lt_u32 s76, 0x8000
            s_cbranch_scc1 K2_loop
            """, opt=True)
            S.e("K2_ok:")
        for q in range(2):
            S.e(f"buffer_load_dwordx4 {ar(sl + 4*q)}, v{6+q}, s[12:15], s45 offen{' sc1' if i >= 28 else ''}")
    for i in range(4): loads(i)
    S.e(f"""
    v_bfe_u32 v10, v2, 2, 2
    v_lshrrev_b32 v11, 5, v2
    v_lshl_add_u32 v11, v11, 2, v10
    v_lshlrev_b32 v11, 7, v11
    v_lshrrev_b32 v10, 1, v10
    v_xor_b32 v10, s34, v10
    v_lshl_add_u32 v11, v10, 6, v11
    v_and_b32 v10, 1, v2
    v_lshl_add_u32 v11, v10, 5, v11
    v_bfe_u32 v10, v2, 1, 1
    v_bfe_u32 v12, v2, 4, 1
    v_lshl_add_u32 v10, v12, 1, v10
    v_lshl_add_u32 v11, v10, 3, v11
    v_add_u32 v14, s46, v11
    v_xor_b32 v15, 64, v14
    v_and_b32 v8, 31, v2
    v_lshrrev_b32 v10, 5, v2
    s_lshl_b32 s47, s36, 5
    v_add_u32 v8, s47, v8
    v_mul_u32_u24 v8, 896, v8
    v_lshlrev_b32 v10, 5, v10
    s_lshl_b32 s47, s38, 6
    v_add3_u32 v8, v8, v10, s47
    """)
    for i in range(4, D): loads(i)
    st(S, "issued")
    ACC = 64
    AB = [48, 56]
    def areads(i):
        S.wait_vm(f"a{i}")
        for ni in range(2):
            for e in range(2):
                S.e(f"ds_read_b64_tr_b16 {vr(AB[i & 1] + 4*ni + 2*e, 2)}, v{14+ni} offset:{(i % K2_NS) * 2048 + e*1024}")
    areads(0)
    xl = False
    for i in range(36):
        sl = (i % D) * 8
        if i + 1 < 36: areads(i + 1)
        for lq in range(4):
            ni, mi = lq >> 1, lq & 1
            c = "0" if i == 0 else vr(ACC + 16*lq, 16)
            S.e(f"{MF} {vr(ACC + 16*lq, 16)}, {vr(AB[i & 1] + 4*ni)}, {ar(sl + 4*mi)}, {c}")
        if i in (0, 11, 23): st(S, f"ks{i}")
        if i + D < 36: loads(i + D)
        elif not xl:
            xl = True
            S.e("buffer_load_dwordx4 v[16:19], v8, s[16:19], 0 offen\nbuffer_load_dwordx4 v[20:23], v8, s[16:19], 0 offen offset:16")
    st(S, "mfmadone")
    S.e(f"v_add_u32 v10, s46, v3")
    for lq in range(1, 4):
        S.e(f"s_xor_b32 s47, s3, {lq}\ns_mul_i32 s47, s47, {K2_NS*2048}\ns_add_u32 s47, s47, {(lq-1)*4096}\nv_add_u32 v{10+lq}, s47, v3")
    for lq in range(1, 4):
        for rq in range(4):
            S.e(f"ds_write_b128 v10, {vr(ACC + 16*lq + 4*rq)} offset:{(lq-1)*4096 + rq*1024}")
    for i in range(8):
        S.e(f"v_lshlrev_b32 v{24+2*i}, 16, v{16+i}\nv_and_b32 v{25+2*i}, 0xffff0000, v{16+i}")
    for i in range(16): S.e(f"v_add_f32 v{ACC+i}, v{ACC+i}, v{24+i}")
    S.wait_lgkm(); S.e("s_barrier")
    for p in range(3):
        for rq in range(4):
            S.e(f"ds_read_b128 {vr(128 + 16*p + 4*rq)}, v{11+p} offset:{rq*1024}")
    for i in range(16): S.e(f"v_add_f32 v{ACC+i}, v{ACC+i}, v{128+i}")
    for i in range(16): S.e(f"v_add_f32 v{144+i}, v{144+i}, v{160+i}")
    for i in range(16): S.e(f"v_add_f32 v{ACC+i}, v{ACC+i}, v{144+i}")
    for i in range(8): S.e(f"v_cvt_pk_bf16_f32 v{40+i}, v{ACC+2*i}, v{ACC+2*i+1}")
    S.e("buffer_store_dwordx4 v[40:43], v8, s[20:23], 0 offen\nbuffer_store_dwordx4 v[44:47], v8, s[20:23], 0 offen offset:16")
    st(S, "end")
    st.flush(S, "s[12:15]", ST_OFF + 0x40000, 24, 4)
    S.e("s_endpgm")
    return S

def gen_k2_ow():
    S = Stream()
    st = Stamper([92, 94, 96, 98, 100, 60, 62, 64, 66]); st.n = 1; st.names = ["start"]
    U = 5; KO = 4
    S.e(f"""
    K2_OW:
    s_sub_u32 s30, s2, 224
    s_lshr_b32 s31, s30, 1
    s_and_b32 s32, s30, 1
    v_lshlrev_b32 v3, 4, v2
    v_and_b32 v{U}, 31, v2
    v_lshrrev_b32 v{U+1}, 3, v{U}
    v_and_b32 v{U+2}, 3, v{U}
    v_lshl_add_u32 v{U+1}, v{U+1}, 2, v{U+2}
    v_bfe_u32 v{U+2}, v{U}, 2, 1
    v_mad_u32_u24 v{U+2}, v{U+2}, 14, v{U+1}
    v_cmp_lt_u32_e64 s[52:53], 13, v{U+1}
    v_cndmask_b32_e64 v{U+2}, v{U+2}, 28, s[52:53]
    v_bfe_u32 v{U+3}, v{U+2}, 2, 1
    v_lshrrev_b32 v{U+4}, 3, v{U+2}
    v_and_b32 v{U+5}, 3, v{U+2}
    v_lshl_add_u32 v{U+4}, v{U+4}, 2, v{U+5}
    v_lshrrev_b32 v{U+5}, 5, v2
    v_lshl_add_u32 v{U+3}, v{U+5}, 1, v{U+3}
    v_lshlrev_b32 v{U+3}, 10, v{U+3}
    v_lshl_add_u32 v{U+3}, v{U+4}, 4, v{U+3}
    s_lshr_b32 s33, s3, 1
    s_lshl_b32 s33, s33, 12
    s_and_b32 s34, s3, 1
    s_lshl_b32 s34, s34, 9
    s_add_u32 s33, s33, s34
    v_add_u32 v{KO}, s33, v{U+3}
    s_lshl_b32 s33, s3, 10
    v_add_u32 v{U}, s33, v3
    s_lshl_b32 s35, s31, 16
    s_add_u32 s35, s35, {KVP_OFF}
    s_lshl_b32 s36, s32, 5
    s_lshl_b32 s37, s3, 3
    s_add_u32 s36, s36, s37
    s_lshl_b32 s37, s36, 4
    s_add_u32 s37, s37, s31
    s_lshl_b32 s37, s37, 12
    s_add_u32 s37, s37, {PHF_OFF}
    s_mul_i32 s38, s36, {NKS*1024}
    s_lshl_b32 s39, s31, 11
    s_add_u32 s38, s38, s39
    s_add_u32 s38, s38, {112*1024}
    s_waitcnt lgkmcnt(0)
    """)
    srd(S, 12, 70, WS_SIZE); srd(S, 72, 68, 256)
    KL = 16
    for i in range(8):
        for e in range(2):
            S.e(f"buffer_load_dwordx4 {vr(KL + 8*i + 4*e)}, v{KO}, s[12:15], s35 offen offset:{e*256}")
        if i < 7: S.e("s_add_u32 s35, s35, 8192")
    def phl(m):
        for k in range(4):
            S.e(f"buffer_load_dwordx4 {ar(16*m + 4*k)}, v3, s[12:15], s37 offen offset:{k*1024}")
        if m < 7: S.e(f"s_add_u32 s37, s37, {16*4096}")
    phl(0); phl(1)
    for step in (1, 2, 4):
        for i in range(0, 8, 2*step):
            for j in range(8): S.e(f"v_add_f32 v{KL+8*i+j}, v{KL+8*i+j}, v{KL+8*(i+step)+j}")
    for j in range(4): S.e(f"v_cvt_pk_bf16_f32 v{KL+8+j}, v{KL+2*j}, v{KL+2*j+1}")
    S.e(f"ds_write_b128 v{U}, {vr(KL+8)}")
    phl(2); phl(3)
    S.wait_lgkm(); S.e("s_barrier")
    st(S, "kv")
    KF = 32
    for k in range(4): S.e(f"ds_read_b128 {vr(KF + 4*k)}, v3 offset:{k*1024}")
    OB = [64, 80, 96];
    def mm(m):
        O = OB[m % 3]
        for k in range(4): S.e(f"{MF} {vr(O,16)}, {vr(KF + 4*k)}, {ar(16*m + 4*k)}, {'0' if k == 0 else vr(O,16)}")
    mm(0)
    for m in range(8):
        if m + 4 < 8: phl(m + 4)
        if m + 1 < 8: mm(m + 1)
        O = OB[m % 3]; GT = 112 + 16 * (m & 1); R = GT + 8
        S.e(f"v_cvt_pk_bf16_f32 v{GT}, v{O+14}, v{O+14}\nv_lshlrev_b32 v{GT}, 16, v{GT}\nv_add_f32 v{GT}, {f32(1e-6)}, v{GT}\nv_cvt_pk_bf16_f32 v{GT}, v{GT}, v{GT}\nv_lshlrev_b32 v{GT}, 16, v{GT}\nv_rcp_f32 v{GT}, v{GT}")
        for i in range(7): S.e(f"v_cvt_pk_bf16_f32 v{GT+1+i}, v{O+2*i}, v{O+2*i+1}")
        for i in range(7): S.e(f"v_lshlrev_b32 v{O+2*i}, 16, v{GT+1+i}\nv_and_b32 v{O+2*i+1}, 0xffff0000, v{GT+1+i}")
        for i in range(7): S.e(f"v_pk_mul_f32 {vr(O+2*i,2)}, {vr(O+2*i,2)}, {vr(GT,2)} op_sel_hi:[1,0]")
        for i in range(7): S.e(f"v_cvt_pk_bf16_f32 v{R+i}, v{O+2*i}, v{O+2*i+1}")
        S.e(f"v_mov_b32 v{R+7}, 0")
        S.e(f"buffer_store_dwordx4 {vr(R)}, v3, s[12:15], s38 offen sc1\nbuffer_store_dwordx4 {vr(R+4)}, v3, s[12:15], s38 offen offset:1024 sc1")
        if m < 7: S.e(f"s_add_u32 s38, s38, {NKS*1024}")
    st(S, "stored")
    S.e(f"""
    s_waitcnt vmcnt(0)
    s_barrier
    s_cmp_lg_u32 s3, 0
    s_cbranch_scc1 K2_OWE
    """)
    S.e(f"""
    s_lshl_b32 s33, s32, 7
    v_mov_b32 v4, 0
    v_mov_b32 v5, 1
    s_mov_b64 exec, 1
    buffer_atomic_add v5, v4, s[72:75], s33 offen
    s_mov_b64 exec, -1
    """, opt=True)
    S.e("K2_OWE:")
    st(S, "end")
    st.flush(S, "s[12:15]", ST_OFF + 0x40000, 24, 4)
    S.e("K2_END:\ns_endpgm")
    return S

AREA = 12288
W0 = 98304; WS_ = 20480
MISC = 159744
WPHI = MISC
CNT = MISC + 2048
STATS_OFF = 0xC00000
CSP = W0 + 20480
KVF = W0 + 20480 + 8192
VV = W0 + 40960; VVS = 80
NVG1 = 168

V_L = 1; V_L16 = 2; V_Z = 3
V_AX = 4; V_AT = 8
V_CSA = 13; V_PHA = 14; V_TMP = 15
V_RINV, V_SD = 16, 17
V_C0, V_C1, V_S2 = 18, 19, 20
BP = 24
XB = 28; AB = 36; ACC = 56; SC = 136
PT = 136; STV = 152
S_X, S_WG, S_WU, S_WS, S_DBG, S_WQ, S_D1, S_W2, S_WP = 24, 32, 36, 40, 44, 48, 52, 56, 60
S_MT, S_C4, S_HL, S_HEAD, S_TYPE, S_XROW, S_AREA, S_D0L, S_H = 64, 65, 66, 67, 68, 69, 70, 71, 72
S_ODD = 73
S_T = 74
S_HH = 80
S_HFB = 82
S_U0, S_U12 = 83, 84
S_M = 85
S_SROW = 86
S_G = 87
M1 = "s[88:89]"; M2 = "s[90:91]"
HHM = f"s[{S_HH}:{S_HH+1}]"
t0, t1, t2, t3, t4, t5 = [f"s{S_T+i}" for i in range(6)]
tm = f"s{S_M}"
def sq(d): return f"s[{d}:{d+3}]"
STAMPR = [92, 94, 96, 98, 100, 28, 30, 4, 6, 8, 10, 12, 14, 16, 18, 20]

def k1_prologue():
    S = Stream()
    S.e(f"""
    s_cmp_ge_u32 s2, 256
    s_cbranch_scc1 K1_END
    {'s_memrealtime s[92:93]' if OPT.get('stamps') else ''}
    s_load_dwordx16 s[4:19], s[0:1], 0
    s_load_dwordx4 s[20:23], s[0:1], 72
    v_lshrrev_b32 v{PT}, 6, v0
    v_and_b32 v{V_L}, 63, v0
    v_readfirstlane_b32 s3, v{PT}
    v_lshlrev_b32 v{V_L16}, 4, v{V_L}
    v_mov_b32 v{V_Z}, 0
    s_and_b32 {t0}, s2, 7
    s_lshr_b32 {t1}, s2, 3
    s_and_b32 s{S_MT}, {t0}, 1
    s_lshl_b32 s{S_MT}, s{S_MT}, 2
    s_and_b32 {t2}, {t1}, 3
    s_add_u32 s{S_MT}, s{S_MT}, {t2}
    s_lshr_b32 s{S_C4}, {t0}, 1
    s_lshr_b32 {t1}, {t1}, 2
    s_and_b32 s{S_TYPE}, {t1}, 1
    s_lshr_b32 s{S_HL}, {t1}, 1
    s_lshl_b32 s{S_HEAD}, s{S_C4}, 2
    s_add_u32 s{S_HEAD}, s{S_HEAD}, s{S_HL}
    s_and_b32 s{S_ODD}, s{S_HEAD}, 1
    s_lshl_b32 {t2}, s{S_MT}, 2
    s_add_u32 {t2}, {t2}, s{S_C4}
    s_lshl_b32 {t2}, {t2}, 3
    s_add_u32 {t2}, {t2}, {t1}
    s_lshl_b32 {t2}, {t2}, 3
    s_add_u32 s{S_SROW}, {t2}, s3
    s_mov_b32 s{S_HH}, 0
    s_mov_b32 s{S_HH+1}, -1
    s_mul_i32 {t0}, s{S_C4}, 896
    s_lshl_b32 {tm}, s{S_HL}, 7
    s_add_u32 {t3}, {t0}, {tm}
    s_add_u32 {t0}, {t0}, 512
    s_mul_i32 {t1}, s{S_HL}, 3
    s_and_b32 {t2}, s{S_HL}, 1
    s_add_u32 {t5}, {t1}, {t2}
    s_lshl_b32 {t2}, {t2}, 1
    s_add_u32 {t1}, {t1}, 2
    s_sub_u32 {t1}, {t1}, {t2}
    s_lshl_b32 {t1}, {t1}, 5
    s_add_u32 {t1}, {t1}, {t0}
    s_lshl_b32 {t5}, {t5}, 5
    s_add_u32 {t0}, {t0}, {t5}
    s_cmp_eq_u32 s{S_TYPE}, 1
    s_cselect_b32 s{S_U0}, {t1}, {t3}
    s_cselect_b32 s{S_U12}, {t0}, {t3}
    s_cmp_ge_u32 s3, 8
    s_cbranch_scc1 K1_helper
    """)
    return S

def bf16r(S, d, src):
    S.e(f"v_cvt_pk_bf16_f32 v{d}, {src}, {src}\nv_lshlrev_b32 v{d}, 16, v{d}")
def xhalf(S, op, x, t):
    S.e(f"v_mov_b32 v{t}, v{x}\nv_permlane32_swap_b32 v{t}, v{x}\n{op} v{x}, v{x}, v{t}")
def wave_sum(S, x, t):
    for m in ("quad_perm:[1,0,3,2]", "quad_perm:[2,3,0,1]", "row_half_mirror", "row_mirror"):
        S.e(f"v_add_f32_dpp v{x}, v{x}, v{x} {m} row_mask:0xf bank_mask:0xf")
    S.e(f"v_mov_b32 v{t}, v{x}\nv_permlane16_swap_b32 v{t}, v{x}\nv_add_f32 v{x}, v{x}, v{t}")
    xhalf(S, "v_add_f32", x, t)

def signal(tag, cnt_off, dbg_expr, lab, A, B, Cc, last):
    G = Stream()
    G.wait_vm(tag)
    G.e(f"""
    v_mov_b32 v{A}, {CNT + cnt_off}
    v_mov_b32 v{B}, 1
    s_mov_b64 exec, 1
    ds_add_rtn_u32 v{Cc}, v{A}, v{B}
    s_mov_b64 exec, -1
    v_readfirstlane_b32 {t1}, v{Cc}
    {dbg_expr}
    s_cmp_lg_u32 {t1}, {last}
    s_cbranch_scc1 {lab}
    """)
    G.e(f"s_mov_b64 exec, 1", opt=True)
    G.e(f"buffer_atomic_add v{B}, v{V_Z}, {sq(S_DBG)}, {t2} offen", opt=True)
    G.e(f"s_mov_b64 exec, -1", opt=True)
    G.e(f"{lab}:")
    return G
def poll(lab, dbg_expr, target, D, who=None):
    G = Stream()
    if who is not None: G.e(f"s_cmp_lg_u32 s3, {who}\ns_cbranch_scc1 {lab}_ok")
    G.e(f"""
    {dbg_expr}
    s_mov_b32 {t3}, 0
    {lab}_loop:
    buffer_load_dword v{D}, v{V_Z}, {sq(S_DBG)}, {t2} offen sc1
    s_waitcnt vmcnt(0)
    v_readfirstlane_b32 {t1}, v{D}
    s_add_u32 {t3}, {t3}, 1
    s_cmp_ge_u32 {t1}, {target}
    s_cbranch_scc1 {lab}_ok
    s_sleep {OPT.get('sleep', 4)}
    s_cmp_lt_u32 {t3}, 0x8000
    s_cbranch_scc1 {lab}_loop
    """, opt=True)
    G.e(f"{lab}_ok:")
    return G
STCNT = f"s_lshl_b32 {t2}, s{S_MT}, 5\ns_add_u32 {t2}, {t2}, 8"
KVCNT = f"s_lshl_b32 {t2}, s{S_HEAD}, 4"

def tile_addrs(S, typ, AT, T):
    R, C, HH, NH = T + 1, T + 2, T + 3, T + 4
    S.e(f"""
    v_lshrrev_b32 v{HH}, 5, v{V_L}
    v_bfe_u32 v{NH}, v{V_L}, 4, 1
    v_bfe_u32 v{R}, v{V_L}, 2, 2
    v_and_b32 v{C}, 3, v{V_L}
    v_lshl_add_u32 v{T+5}, v{HH}, 3, v{R}
    v_lshlrev_b32 v{T+6}, 6, v{T+5}
    v_lshl_add_u32 v{T+8}, v{NH}, 2, v{C}
    v_add_u32 v{T+8}, s{S_ODD}, v{T+8}
    v_and_b32 v{T+8}, 7, v{T+8}
    v_lshl_add_u32 v{T+8}, v{T+8}, 3, v{T+6}
    """)
    if typ == "q":
        S.e(f"""
        v_add_u32 v{AT}, {W0 + 16384}, v{T+8}
        v_lshrrev_b32 v{T+6}, 1, v{C}
        v_and_b32 v{T+7}, 2, v{R}
        v_xor_b32 v{T+6}, v{T+6}, v{T+7}
        v_lshl_add_u32 v{T+6}, v{NH}, 2, v{T+6}
        v_lshlrev_b32 v{T+7}, 7, v{T+5}
        v_lshl_add_u32 v{T+7}, v{T+6}, 4, v{T+7}
        v_and_b32 v{T+6}, 1, v{C}
        v_lshl_add_u32 v{T+7}, v{T+6}, 3, v{T+7}
        v_lshl_add_u32 v{T+7}, v{NH}, 13, v{T+7}
        v_add_u32 v{AT+1}, {W0}, v{T+7}
        v_xor_b32 v{AT+2}, 32, v{AT+1}
        v_xor_b32 v{AT+3}, 64, v{AT+1}
        v_xor_b32 v{AT+4}, 0x60, v{AT+1}
        """)
    else:
        S.e(f"""
        v_add_u32 v{AT}, {W0}, v{T+8}
        v_lshl_add_u32 v{T+7}, v{C}, 3, v{T+6}
        v_mul_u32_u24 v{T+8}, 1056, v{NH}
        v_add_u32 v{AT+1}, v{T+7}, v{T+8}
        v_add_u32 v{AT+1}, {W0 + 2048}, v{AT+1}
        v_xor_b32 v{AT+2}, 32, v{AT+1}
        v_lshlrev_b32 v{T+6}, 5, v{T+5}
        v_lshl_add_u32 v{T+6}, v{C}, 3, v{T+6}
        v_mul_u32_u24 v{T+7}, 2176, v{NH}
        v_add_u32 v{AT+3}, v{T+6}, v{T+7}
        v_add_u32 v{AT+3}, {W0 + 16384}, v{AT+3}
        v_xor_b32 v{AT+4}, 0x80, v{AT+3}
        """)
def tile_read_args(typ, t, s, e):
    if typ == "q":
        return (0, s*1024 + e*256) if t == 0 else (t, s*2048 + e*512)
    if t == 0: return (0, s*4096 + e*256)
    if t == 1: return (0, s*4096 + 1024 + e*256)
    if t == 2: return (3 + e, s*512)
    return (t - 2, s*4096 + e*256)

def k1_helper_head():
    S = Stream(); T = PT
    S.e("K1_helper:")
    S.e(f"s_setprio {OPT.get('hprio', 3)}")
    S.e(f"""
    s_sub_u32 s{S_H}, s3, 8
    s_lshl_b32 {t0}, s{S_MT}, 2
    s_add_u32 {t0}, {t0}, s{S_H}
    s_mul_i32 s{S_XROW}, {t0}, {64*896}
    s_mul_i32 s{S_AREA}, s{S_H}, {2*AREA}
    v_lshrrev_b32 v{T+7}, 3, v{V_L}
    v_mul_u32_u24 v{T}, 896, v{T+7}
    v_and_b32 v{T+8}, 7, v{V_L}
    v_lshrrev_b32 v{T+2}, 4, v{V_L}
    v_xor_b32 v{T+1}, v{T+8}, v{T+2}
    v_lshl_add_u32 v4, v{T+1}, 4, v{T}
    v_xor_b32 v5, 64, v4
    s_mul_i32 {t1}, s{S_HEAD}, 56
    s_lshl_b32 {t2}, s{S_ODD}, 3
    s_sub_u32 {t1}, {t1}, {t2}
    v_lshrrev_b32 v{T}, 2, v{V_L}
    v_and_b32 v{T+1}, 3, v{V_L}
    v_mul_u32_u24 v{T+4}, 2688, v{T}
    v_lshl_add_u32 v{T+4}, v{T+1}, 4, v{T+4}
    s_mul_i32 {tm}, s{S_H}, {16*2688}
    s_add_u32 {t1}, {t1}, {tm}
    v_add_u32 v6, {t1}, v{T+4}
    s_waitcnt lgkmcnt(0)
    """)
    srd(S, S_X, 4, 2048 * 896); srd(S, S_WQ, 6, 448 * 2688); srd(S, S_WG, 14, 448 * 3584); srd(S, S_WU, 16, 448 * 3584)
    S.e(f"s_cmp_eq_u32 s{S_TYPE}, 1\ns_cbranch_scc1 K1_hkv")
    return S

def k1_helper(typ):
    q = typ == "q"
    S = Stream(); T = PT
    S.e(f"K1_h{typ}:")
    st = Stamper(STAMPR); st.n = 1; st.names = ["start"]
    V_XE, V_XO, V_DQ, V_DG, V_DU, V_DS = 4, 5, 6, 7, 8, 9
    V_AC = 10
    V_PF = 16
    CT = 20; CA = 40; CU = 46
    if q:
        S.e(f"""
        v_bfe_u32 v{T+2}, v{V_L}, 4, 1
        v_lshlrev_b32 v{T+2}, 1, v{T+2}
        v_xor_b32 v{T+2}, v{T+2}, v{T+8}
        v_mul_u32_u24 v{T+3}, 3584, v{T+7}
        v_lshl_add_u32 v{T+2}, v{T+2}, 4, v{T+3}
        s_mul_i32 {tm}, s{S_H}, {16*3584}
        s_add_u32 {tm}, {tm}, s{S_U0}
        v_add_u32 v{V_DG}, {tm}, v{T+2}
        v_xor_b32 v{V_DU}, 64, v{V_DG}
        """)
    else:
        S.e(f"""
        v_mul_u32_u24 v{T+3}, 3584, v{T}
        v_lshl_add_u32 v{V_DG}, v{T+1}, 4, v{T+3}
        s_mul_i32 {tm}, s{S_H}, {16*3584}
        s_add_u32 {tm}, {tm}, s{S_U12}
        v_add_u32 v{V_DG}, {tm}, v{V_DG}
        v_xor_b32 v{V_DU}, 32, v{V_DG}
        s_lshr_b32 {t2}, s{S_H}, 1
        s_cmp_eq_u32 {t2}, 0
        s_cselect_b32 s{S_D1}, s14, s16
        s_cselect_b32 s{S_D1+1}, s15, s17
        s_mov_b32 s{S_D1+2}, {448*3584}
        s_mov_b32 s{S_D1+3}, 0x20000
        s_lshl_b32 {t2}, {t2}, 2
        v_lshrrev_b32 v{T+5}, 1, v{V_L}
        v_xor_b32 v{T+5}, {t2}, v{T+5}
        v_mul_u32_u24 v{T+5}, 3584, v{T+5}
        v_and_b32 v{T+6}, 1, v{V_L}
        v_lshl_add_u32 v{T+5}, v{T+6}, 4, v{T+5}
        s_and_b32 {t2}, s{S_H}, 1
        s_mul_i32 {t2}, {t2}, {32*3584}
        s_add_u32 {t2}, {t2}, s{S_U0}
        v_add_u32 v{V_DS}, {t2}, v{T+5}
        """)
    S.e(f"s_lshl_b32 s{S_D0L}, s{S_H}, 10\ns_add_u32 s{S_D0L}, s{S_D0L}, {W0}\ns_lshl_b32 s{S_G}, s{S_H}, {11 if q else 12}\ns_add_u32 s{S_G}, s{S_G}, {W0}")
    def dma(c, part=None):
        sb = (c % 3) * WS_
        def one(m0expr, soff, v, srdreg):
            S.e(f"s_add_u32 m0, {m0expr}\n{soff}")
            S.e(f"buffer_load_dwordx4 v{v}, {sq(srdreg)}, {tm} offen lds", tag=f"d{c}")
        def xs(lo, hi):
            for i in range(lo, hi):
                wv, qq = i >> 2, i & 3
                one(f"s{S_AREA}, {wv*AREA + (c % 3)*4096 + qq*1024}", f"s_add_u32 {tm}, s{S_XROW}, {(wv*32 + qq*8)*896 + c*128}", V_XO if qq & 1 else V_XE, S_X)
        if part == 1: pass
        elif q:
            one(f"s{S_D0L}, {sb + 16384}", f"s_mov_b32 {tm}, {c*172032}", V_DQ, S_WQ)
            for rg in range(2):
                one(f"s{S_G}, {sb + rg*1024}", f"s_mov_b32 {tm}, {c*229376 + rg*8*3584}", V_DG, S_WG)
                one(f"s{S_G}, {sb + 8192 + rg*1024}", f"s_mov_b32 {tm}, {c*229376 + rg*8*3584}", V_DU, S_WU)
        else:
            one(f"s{S_G}, {sb}", f"s_mov_b32 {tm}, {c*172032 + 896}", V_DQ, S_WQ)
            one(f"s{S_G}, {sb + 1024}", f"s_mov_b32 {tm}, {c*172032 + 1792}", V_DQ, S_WQ)
            one(f"s{S_G}, {sb + 2048}", f"s_mov_b32 {tm}, {c*229376}", V_DG, S_WG)
            one(f"s{S_G}, {sb + 3072}", f"s_mov_b32 {tm}, {c*229376}", V_DU, S_WU)
            one(f"s{S_D0L}, {sb + 16384}", f"s_mov_b32 {tm}, {c*229376}", V_DS, S_D1)
        k = int(OPT.get('split1', 1))
        if part == 0: xs(0, k)
        elif part == 1: xs(k, 8)
        else: xs(0, 8)
    dma(0); dma(1, 0)
    st(S, "setup")
    S.wait_vm("d0"); S.e("s_barrier")
    st(S, "bar0")
    dma(1, 1); dma(2)
    srd(S, S_WS, 22, WS_SIZE); srd(S, S_DBG, 20, 256); srd(S, S_WP, 8, 16 * 1568)
    for i in range(2):
        S.e(f"""
        v_lshrrev_b32 v{T+9}, 4, v{V_L}
        s_lshl_b32 {t0}, s{S_H}, 3
        s_add_u32 {t0}, {t0}, {4*i}
        v_add_u32 v{T+9}, {t0}, v{T+9}
        v_bfe_u32 v{T+10}, v{V_L}, 3, 1
        v_and_b32 v{T+11}, 7, v{V_L}
        v_mad_u32_u24 v{T+10}, v{T+10}, 7, v{T+11}
        v_mad_u32_u24 v{T+10}, v{T+9}, 14, v{T+10}
        v_lshlrev_b32 v{T+10}, 2, v{T+10}
        v_cmp_eq_u32_e64 {M1}, 7, v{T+11}
        s_cmp_eq_u32 {t0}, 28
        s_cselect_b64 {M1}, -1, {M1}
        v_mov_b32 v{T+11}, 0x7fffff00
        v_cndmask_b32_e64 v{T+10}, v{T+10}, v{T+11}, {M1}
        s_mul_i32 {t1}, s{S_HEAD}, 1568
        s_lshl_b32 {t0}, {t0}, 6
        s_add_u32 m0, {t0}, {WPHI}
        """)
        S.e(f"buffer_load_dword v{T+10}, {sq(S_WP)}, {t1} offen lds", tag="phi")
    if OPT["prefetch"]:
        S.e(f"""
        s_lshr_b32 {t0}, s2, 3
        s_lshl_b32 {t0}, {t0}, 2
        s_add_u32 {t0}, {t0}, s{S_H}
        s_lshl_b32 {t0}, {t0}, 14
        s_mov_b32 {t3}, {1792*896}
        s_cmp_lt_u32 {t0}, {t3}
        s_cselect_b32 s{S_W2}, s18, s10
        s_cselect_b32 s{S_W2+1}, s19, s11
        s_cselect_b32 s{S_W2+2}, {t3}, {448*896}
        s_mov_b32 s{S_W2+3}, 0x20000
        s_cselect_b32 {t3}, 0, {t3}
        s_sub_u32 {t0}, {t0}, {t3}
        v_lshlrev_b32 v{V_PF}, 7, v{V_L}
        v_add_u32 v{V_PF}, {t0}, v{V_PF}
        v_add_u32 v{V_PF+1}, 0x2000, v{V_PF}
        """)
    for c in range(7):
        if c == 6: S.extend(poll(f"K1_h{typ}_pst", STCNT, 32, V_TMP, who=8))
        if c > 0:
            S.wait_lgkm(); S.wait_vm(f"d{c}"); S.e("s_barrier")
        if c in (2, 4, 6): st(S, f"bar{c}")
        F = (lambda n: st(S, n, fine=True)) if c in (3, 4) else (lambda n: None)
        F("bar")
        if 1 <= c and c + 2 <= 6: dma(c + 2)
        F("dma")
        if c == 5 and OPT["prefetch"]:
            S.e(f"buffer_load_dword v{V_PF}, v{V_PF}, {sq(S_W2)}, 0 offen\nbuffer_load_dword v{V_PF+1}, v{V_PF+1}, {sq(S_W2)}, 0 offen", tag="pf")
    S.wait_vm("phi"); S.wait_lgkm(); S.e("s_barrier")
    st(S, "B1")
    if not q:
        X = 20; KA = 4; KB = 8
        S.e(f"""
        v_lshrrev_b32 v{X}, 4, v{V_L}
        v_bfe_u32 v{X+1}, v{V_L}, 2, 2
        v_lshl_add_u32 v{X}, v{X}, 3, v{X+1}
        v_bfe_u32 v{X+2}, v{V_L}, 1, 1
        s_lshl_b32 {t0}, s{S_H}, 1
        v_add_u32 v{X+2}, {t0}, v{X+2}
        v_xor_b32 v{X+2}, v{X+2}, v{X+1}
        v_lshlrev_b32 v{X+3}, 7, v{X}
        v_lshl_add_u32 v{X+3}, v{X+2}, 4, v{X+3}
        v_and_b32 v{X+2}, 1, v{V_L}
        v_lshl_add_u32 v{KA}, v{X+2}, 3, v{X+3}
        v_xor_b32 v{KA+1}, 64, v{KA}
        v_add_u32 v{KA+2}, 49152, v{KA}
        v_add_u32 v{KA+3}, 49152, v{KA+1}
        v_and_b32 v{X+1}, 3, v{V_L}
        v_lshlrev_b32 v{X+1}, 3, v{X+1}
        v_mul_u32_u24 v{X+2}, {VVS}, v{X}
        v_add_u32 v{KB}, v{X+2}, v{X+1}
        v_add_u32 v{KB}, {VV}, v{KB}
        s_lshl_b32 {t4}, s{S_HEAD}, 3
        s_add_u32 {t4}, {t4}, s{S_MT}
        s_lshl_b32 {t4}, {t4}, 2
        s_add_u32 {t4}, {t4}, s{S_H}
        s_lshl_b32 {t4}, {t4}, 11
        s_add_u32 {t4}, {t4}, {KVP_OFF}
        """)
        S.e("s_barrier")
        st(S, "B2")
        FB = 32; KD = 24
        for kk in range(8):
            b = FB + 12 * kk
            for e in range(2):
                S.e(f"ds_read_b64_tr_b16 {vr(b + 2*e, 2)}, v{KA + e + 2*(kk >> 2)} offset:{(kk & 3)*AREA + e*512}")
                for dh in range(2):
                    S.e(f"ds_read_b64_tr_b16 {vr(b + 4 + 4*dh + 2*e, 2)}, v{KB} offset:{kk*32*VVS + e*4*VVS + dh*32}")
        for kk in range(8):
            b = FB + 12 * kk
            for dh in range(2):
                S.e(f"{MF16} {vr(KD + 4*dh)}, {vr(b)}, {vr(b + 4 + 4*dh)}, {'0' if kk == 0 else vr(KD + 4*dh)}")
        for dh in range(2):
            S.e(f"buffer_store_dwordx4 {vr(KD + 4*dh)}, v{V_L16}, {sq(S_WS)}, {t4} offen offset:{dh*1024} sc1", tag="kvst")
        st(S, "kvst")
    st(S, "end")
    st.flush(S, sq(S_WS), ST_OFF, 24, 12)
    S.e("s_endpgm")
    return S
def geglu(S, a, T, unit_sgpr, unit_add):
    for i in range(8): S.e(f"v_mul_f32 v{T+i}, v{a+i}, v{a+i}")
    for i in range(8): S.e(f"v_fma_f32 v{T+i}, v{T+i}, v{V_C1}, v{V_C0}")
    for i in range(8): S.e(f"v_mul_f32 v{T+i}, v{T+i}, v{a+i}")
    for i in range(8): S.e(f"v_exp_f32 v{T+i}, v{T+i}")
    for i in range(8): S.e(f"v_mul_f32 v{a+i}, v{a+i}, v{a+8+i}")
    for i in range(8): S.e(f"v_fma_f32 v{T+i}, v{T+i}, v{V_S2}, v{V_S2}")
    for i in range(8): S.e(f"v_rcp_f32 v{T+i}, v{T+i}")
    for i in range(8): S.e(f"v_mul_f32 v{a+i}, v{a+i}, v{T+i}")
    for i in range(4): S.e(f"v_cvt_pk_bf16_f32 v{T+8+i}, v{a+2*i}, v{a+2*i+1}")
    S.e(f"s_add_u32 s{S_G}, s{unit_sgpr}, {unit_add * 1024}")
    S.e(f"buffer_store_dwordx4 {vr(T+8)}, v{V_L16}, {sq(S_WS)}, s{S_G} offen{OPT['hf_flags']}", tag="hst")


def softmax14(S, P, E, T):
    N = 14
    for i in range(7): S.e(f"v_cvt_pk_bf16_f32 v{E+i}, v{P+2*i}, v{P+2*i+1}")
    for i in range(7): S.e(f"v_lshlrev_b32 v{P+2*i}, 16, v{E+i}\nv_and_b32 v{P+2*i+1}, 0xffff0000, v{E+i}")
    L = T + 4
    S.e(f"v_mov_b32 v{L}, {f32(1.4426950408889634)}")
    MX, MN = T, T + 1
    S.e(f"v_max3_f32 v{MX}, v{P}, v{P+1}, v{P+2}\nv_min3_f32 v{MN}, v{P}, v{P+1}, v{P+2}")
    for i in range(3, 13, 2):
        S.e(f"v_max3_f32 v{MX}, v{MX}, v{P+i}, v{P+i+1}\nv_min3_f32 v{MN}, v{MN}, v{P+i}, v{P+i+1}")
    S.e(f"v_max_f32 v{MX}, v{MX}, v{P+13}\nv_min_f32 v{MN}, v{MN}, v{P+13}")
    S.e(f"v_mov_b32 v{T+2}, v{MX}\nv_mov_b32 v{T+3}, v{MN}\nv_permlane32_swap_b32 v{T+2}, v{MX}\nv_permlane32_swap_b32 v{T+3}, v{MN}")
    S.e(f"v_max_f32 v{MX}, v{MX}, v{T+2}\nv_min_f32 v{MN}, v{MN}, v{T+3}")
    S.e(f"v_mul_f32 v{MX}, v{MX}, v{L}\nv_mul_f32 v{MN}, v{MN}, v{L}")
    for i in range(N): S.e(f"v_fma_f32 v{E+i}, v{P+i}, v{L}, -v{MX}")
    for i in range(N): S.e(f"v_fma_f32 v{P+i}, -v{P+i}, v{L}, v{MN}")
    for i in range(N): S.e(f"v_exp_f32 v{E+i}, v{E+i}")
    for i in range(N): S.e(f"v_exp_f32 v{P+i}, v{P+i}")
    SP, SM = T, T + 1
    S.e(f"v_add_f32 v{SP}, v{E}, v{E+1}\nv_add_f32 v{T+2}, v{E+2}, v{E+3}\nv_add_f32 v{SM}, v{P}, v{P+1}\nv_add_f32 v{T+3}, v{P+2}, v{P+3}")
    for i in range(4, N, 2):
        S.e(f"v_add_f32 v{SP}, v{SP}, v{E+i}\nv_add_f32 v{T+2}, v{T+2}, v{E+i+1}\nv_add_f32 v{SM}, v{SM}, v{P+i}\nv_add_f32 v{T+3}, v{T+3}, v{P+i+1}")
    S.e(f"v_add_f32 v{SP}, v{SP}, v{T+2}\nv_add_f32 v{SM}, v{SM}, v{T+3}")
    S.e(f"v_mov_b32 v{T+2}, v{SP}\nv_mov_b32 v{T+3}, v{SM}\nv_permlane32_swap_b32 v{T+2}, v{SP}\nv_permlane32_swap_b32 v{T+3}, v{SM}")
    S.e(f"v_add_f32 v{SP}, v{SP}, v{T+2}\nv_add_f32 v{SM}, v{SM}, v{T+3}")
    S.e(f"v_rcp_f32 v{SP}, v{SP}\nv_rcp_f32 v{SM}, v{SM}")
    for i in range(N): S.e(f"v_mul_f32 v{E+i}, v{E+i}, v{SP}")
    for i in range(N): S.e(f"v_mul_f32 v{P+i}, v{P+i}, v{SM}")
    for i in range(7): S.e(f"v_cvt_pk_bf16_f32 v{E+i}, v{E+2*i}, v{E+2*i+1}")
    for i in range(7): S.e(f"v_cvt_pk_bf16_f32 v{E+8+i}, v{P+2*i}, v{P+2*i+1}")
    S.e(f"v_mov_b32 v{E+7}, 0\nv_mov_b32 v{E+15}, 0")


def stats_consts(S):
    S.e(f"""
    v_mov_b32 v{BP}, v{V_RINV}
    v_mov_b32 v{BP+1}, v{V_RINV}
    v_mov_b32 v{BP+2}, v{V_RINV}
    v_mov_b32 v{BP+3}, v{V_RINV}
    v_rcp_f32 v{V_RINV}, v{V_SD}
    v_mul_f32 v{V_S2}, v{V_SD}, v{V_SD}
    v_mul_f32 v{V_C0}, {f32(-2.302208198)}, v{V_RINV}
    v_mul_f32 v{V_C1}, v{V_RINV}, v{V_RINV}
    v_mul_f32 v{V_C1}, v{V_C1}, v{V_C0}
    v_mul_f32 v{V_C1}, {f32(0.044715)}, v{V_C1}
    """)


def k1_compute_head():
    S = Stream(); T = PT
    S.e(f"""
    s_lshl_b32 {t0}, s{S_MT}, 3
    s_add_u32 {t0}, {t0}, s3
    s_mul_i32 s{S_HFB}, {t0}, {NKS*1024}
    s_mul_i32 s{S_AREA}, s3, {AREA}
    s_mul_i32 {t2}, s{S_SROW}, 896
    v_cmp_gt_u32_e64 {M2}, 56, v{V_L}
    v_mov_b32 v{T+2}, 0x7f000000
    v_cndmask_b32_e64 v{T+2}, v{T+2}, v{V_L16}, {M2}
    s_waitcnt lgkmcnt(0)
    """)
    srd(S, S_X, 4, 2048 * 896)
    S.e(f"buffer_load_dwordx4 {vr(STV)}, v{T+2}, {sq(S_X)}, {t2} offen", tag="strow")
    srd(S, S_WS, 22, WS_SIZE); srd(S, S_DBG, 20, 256)
    S.e(f"""
    s_lshl_b32 s{S_U0}, s{S_U0}, 5
    s_add_u32 s{S_U0}, s{S_U0}, s{S_HFB}
    s_lshl_b32 s{S_U12}, s{S_U12}, 5
    s_add_u32 s{S_U12}, s{S_U12}, s{S_HFB}
    v_lshrrev_b32 v{T+3}, 5, v{V_L}
    v_and_b32 v{T+5}, 31, v{V_L}
    v_bfe_u32 v{T+6}, v{V_L}, 1, 3
    v_xor_b32 v{T+6}, v{T+6}, v{T+3}
    v_lshlrev_b32 v{T+5}, 7, v{T+5}
    v_lshl_add_u32 v{T+5}, v{T+6}, 4, v{T+5}
    v_add_u32 v{V_AX}, s{S_AREA}, v{T+5}
    v_xor_b32 v{V_AX+1}, 32, v{V_AX}
    v_xor_b32 v{V_AX+2}, 64, v{V_AX}
    v_xor_b32 v{V_AX+3}, 0x60, v{V_AX}
    v_add_u32 v{V_CSA}, {CSP}, v{V_L16}
    v_bfe_u32 v{T+1}, v{V_L}, 2, 2
    v_lshl_add_u32 v{T+9}, v{T+3}, 2, v{T+1}
    v_lshlrev_b32 v{T+9}, 6, v{T+9}
    v_and_b32 v{T+10}, 1, v{V_L}
    v_lshl_add_u32 v{T+9}, v{T+10}, 5, v{T+9}
    v_bfe_u32 v{T+10}, v{V_L}, 1, 1
    v_bfe_u32 v{T+4}, v{V_L}, 4, 1
    v_lshl_add_u32 v{T+10}, v{T+4}, 1, v{T+10}
    v_lshl_add_u32 v{T+9}, v{T+10}, 3, v{T+9}
    v_add_u32 v{V_PHA}, {WPHI}, v{T+9}
    v_mov_b32 v{T+9}, {CNT}
    ds_write_b32 v{T+9}, v{V_Z}
    ds_write_b32 v{T+9}, v{V_Z} offset:4
    """)
    U = PT
    for j in range(4): S.e(f"v_lshlrev_b32 v{U+2*j}, 16, v{STV+j}\nv_and_b32 v{U+2*j+1}, 0xffff0000, v{STV+j}")
    S.e(f"""
    v_add_f32 v{U+8}, v{U}, v{U+1}
    v_add_f32 v{U+9}, v{U+2}, v{U+3}
    v_add_f32 v{U+10}, v{U+4}, v{U+5}
    v_add_f32 v{U+11}, v{U+6}, v{U+7}
    v_add_f32 v{U+8}, v{U+8}, v{U+9}
    v_add_f32 v{U+10}, v{U+10}, v{U+11}
    v_add_f32 v{U+8}, v{U+8}, v{U+10}
    """)
    wave_sum(S, U + 8, U + 9)
    S.e(f"v_mul_f32 v{U+8}, {f32(1/448)}, v{U+8}")
    for j in range(8): S.e(f"v_sub_f32 v{U+j}, v{U+j}, v{U+8}")
    S.e(f"v_mul_f32 v{U+9}, v{U}, v{U}\nv_mul_f32 v{U+10}, v{U+1}, v{U+1}")
    for j in range(2, 8): S.e(f"v_fmac_f32 v{U+9+(j&1)}, v{U+j}, v{U+j}")
    S.e(f"v_add_f32 v{U+9}, v{U+9}, v{U+10}\nv_cndmask_b32_e64 v{U+9}, 0, v{U+9}, {M2}")
    wave_sum(S, U + 9, U + 10)
    S.e(f"v_mul_f32 v{U+9}, {f32(1/448)}, v{U+9}")
    bf16r(S, U + 9, f"v{U+9}")
    S.e(f"v_add_f32 v{U+9}, {f32(1e-5)}, v{U+9}")
    bf16r(S, U + 9, f"v{U+9}")
    S.e(f"v_sqrt_f32 v{U+9}, v{U+9}")
    bf16r(S, STV + 1, f"v{U+9}")
    S.e(f"""
    v_cvt_pk_bf16_f32 v{STV}, -v{U+8}, -v{U+8}
    s_lshl_b32 {t0}, s{S_SROW}, 3
    s_add_u32 {t0}, {t0}, {STATS_OFF}
    s_mov_b64 exec, 1
    """)
    S.e(f"buffer_store_dwordx2 {vr(STV, 2)}, v{V_Z}, {sq(S_WS)}, {t0} offen sc1", tag="stst")
    S.e("s_mov_b64 exec, -1")
    S.e(f"s_cmp_eq_u32 s{S_TYPE}, 1\ns_cbranch_scc1 K1_kv")
    return S

def k1_compute(typ):
    q = typ == "q"
    S = Stream(); T = PT
    S.e(f"K1_{typ}:")
    st = Stamper(STAMPR); st.n = 1; st.names = ["start"]
    tile_addrs(S, typ, V_AT, T)
    pend = []
    DB = OPT.get("dbuf", True)
    def ABn(n): return (AB if n % 2 == 1 else SC + 8) if DB else AB
    def a_read(n, t):
        c, s = n >> 2, n & 3
        for e in range(2):
            a, imm = tile_read_args(typ, t, s, e)
            S.e(f"ds_read_b64_tr_b16 {vr(ABn(n) + 4*t + 2*e, 2)}, v{V_AT+a} offset:{(c % 3)*WS_ + imm}")
    def x_read(n):
        c, s = n >> 2, n & 3
        S.e(f"ds_read_b128 {vr(XB + 4*(n & 1))}, v{V_AX+s} offset:{(c % 3) * 4096}")
    def kstep(n):
        if OPT.get("pp"):
            lab = f"K1_{typ}_pp{n}"
            S.e(f"s_setprio {n & 1}\ns_cmp_lt_u32 s3, 4\ns_cbranch_scc1 {lab}")
            S.e(f"s_setprio {1 - (n & 1)}", opt=True)
            S.e(f"{lab}:")
        if n + 1 < 28: x_read(n + 1)
        if DB and n + 1 < 28:
            a_read(n + 1, 0); a_read(n + 1, 1)
        for t in range(5):
            S.e(f"{MF} {vr(ACC + 16*t, 16)}, {vr(ABn(n) + 4*t)}, {vr(XB + 4*(n & 1))}, {'0' if n == 0 else vr(ACC + 16*t, 16)}")
            if n + 1 < 28:
                if not DB: a_read(n + 1, t)
                elif t + 2 < 5: a_read(n + 1, t + 2)
            if pend: S.extend(pend.pop(0))
    CA = 21; CU = [SC + i for i in range(8)] + [SC + 28, SC + 29]
    for i in range(5): S.e(f"v_mov_b32 v{CA+i}, 0")
    def colsum(n):
        lab = f"K1_{typ}_cs{n}"
        S.e(f"s_cmp_lg_u32 s3, {n & 7}\ns_cbranch_scc1 {lab}")
        for j in range(4):
            for t in range(5): S.e(f"v_lshlrev_b32 v{CU[t]}, 16, v{ABn(n) + 4*t + j}", opt=True)
            for t in range(5): S.e(f"v_and_b32 v{CU[5+t]}, 0xffff0000, v{ABn(n) + 4*t + j}", opt=True)
            for t in range(5): S.e(f"v_add_f32 v{CA+t}, v{CA+t}, v{CU[t]}", opt=True)
            for t in range(5): S.e(f"v_add_f32 v{CA+t}, v{CA+t}, v{CU[5+t]}", opt=True)
        S.e(f"{lab}:")
    st(S, "setup")
    S.wait_lgkm(); S.e("s_barrier")
    st(S, "bar0")
    x_read(0)
    for t in range(5): a_read(0, t)
    for c in range(7):
        S.comment(f"chunk {c}")
        if c in (2, 4, 6): st(S, f"chunk{c}")
        F = (lambda n: st(S, n, fine=True)) if c == 3 else (lambda n: None)
        n = 4 * c
        F("c3")
        if c == 1: pend.append(signal("stst", 4, STCNT, f"K1_{typ}_nosigst", SC + 4, SC + 5, SC + 6, 7))
        kstep(n); F("k0"); kstep(n + 1); F("k1"); kstep(n + 2); F("k2")
        if c < 6:
            S.wait_lgkm(); S.e("s_barrier")
            if c == 5:
                G = Stream()
                G.e(f"""
                v_and_b32 v{V_TMP}, 31, v{V_L}
                v_lshlrev_b32 v{V_TMP}, 3, v{V_TMP}
                s_lshl_b32 {t0}, s{S_MT}, 3
                s_add_u32 {t0}, {t0}, s3
                s_lshl_b32 {t0}, {t0}, 8
                s_add_u32 {t0}, {t0}, {STATS_OFF}
                buffer_load_dwordx2 {vr(V_RINV, 2)}, v{V_TMP}, {sq(S_WS)}, {t0} offen sc1
                """)
                pend.append(G)
        else:
            colsum(27)
            TP = SC
            S.e(f"s_lshr_b32 {t0}, s3, 2\ns_lshl_b32 {t0}, {t0}, 10\ns_and_b32 {t1}, s3, 3\ns_lshl_b32 {t1}, {t1}, 2\ns_add_u32 {t0}, {t0}, {t1}\nv_add_u32 v{TP}, {t0}, v{V_CSA}")
            for t in range(5): S.e(f"v_cvt_pk_bf16_f32 v{TP+1+t}, v{CA+t}, v{CA+t}")
            for t in range(5): S.e(f"v_lshlrev_b32 v{TP+1+t}, 16, v{TP+1+t}")
            for t in range(5): S.e(f"v_sub_f32 v{TP+1+t}, v{CA+t}, v{TP+1+t}")
            for t in range(5): S.e(f"v_cvt_pk_bf16_f32 v{TP+1+t}, v{CA+t}, v{TP+1+t}")
            for t in range(5): S.e(f"ds_write_b32 v{TP}, v{TP+1+t} offset:{t*2048}")
            S.wait_lgkm(); S.e("s_barrier")
            CR = SC + 8
            for t in range(5): S.e(f"ds_read_b128 {vr(CR + 4*t)}, v{V_CSA} offset:{t*2048}")
            stats_consts(S)
        F("bar")
        kstep(n + 3); F("k3")
    st(S, "S1")
    for t in range(5): S.e(f"ds_read_b128 {vr(AB + 4*t)}, v{V_CSA} offset:{t*2048 + 1024}")
    for t in range(5): S.e(f"{MF} {vr(ACC + 16*t,16)}, {vr(CR + 4*t)}, {vr(BP)}, {vr(ACC + 16*t,16)}")
    for t in range(5): S.e(f"{MF} {vr(ACC + 16*t,16)}, {vr(AB + 4*t)}, {vr(BP)}, {vr(ACC + 16*t,16)}")
    WPF = XB; E = AB; QB = E + 8; TT = 4; GT = SC; GT2 = SC + 12
    for te in range(4): S.e(f"ds_read_b64_tr_b16 {vr(WPF + 2*te, 2)}, v{V_PHA} offset:{te * 512}")
    A0 = ACC
    if not q:
        W = SC + 24; X = 4
        S.e(f"""
        v_and_b32 v{X}, 31, v{V_L}
        v_lshrrev_b32 v{X+1}, 5, v{V_L}
        v_mul_u32_u24 v{X+2}, {VVS}, v{X}
        v_lshl_add_u32 v{X+2}, v{X+1}, 5, v{X+2}
        s_mul_i32 {t0}, s3, {32*VVS}
        s_add_u32 {t0}, {t0}, {VV}
        v_add_u32 v{W+4}, {t0}, v{X+2}
        v_lshlrev_b32 v{X+1}, 1, v{X+1}
        v_and_b32 v{X+3}, 7, v{V_L}
        v_xor_b32 v{X+1}, v{X+1}, v{X+3}
        v_lshlrev_b32 v{X}, 7, v{X}
        v_lshl_add_u32 v{X}, v{X+1}, 4, v{X}
        v_add_u32 v{W}, s{S_AREA}, v{X}
        v_xor_b32 v{W+1}, 16, v{W}
        v_xor_b32 v{W+2}, 64, v{W}
        v_xor_b32 v{W+3}, 0x50, v{W}
        """)
    for i in range(16): S.e(f"v_mul_f32 v{A0+i}, v{A0+i}, v{V_RINV}")
    for i in range(8): S.e(f"v_cvt_pk_bf16_f32 v{QB+i}, v{A0+2*i}, v{A0+2*i+1}")
    S.e(f"{MF} {vr(A0,16)}, {vr(WPF)}, {vr(QB)}, 0\n{MF} {vr(A0,16)}, {vr(WPF+4)}, {vr(QB+4)}, {vr(A0,16)}")
    if q:
        geglu(S, ACC + 16, GT, S_U0, 0)
        softmax14(S, A0, E, TT)
        S.e(f"""
        s_lshl_b32 {t0}, s{S_MT}, 3
        s_add_u32 {t0}, {t0}, s3
        s_lshl_b32 {t0}, {t0}, 4
        s_add_u32 {t0}, {t0}, s{S_HEAD}
        s_lshl_b32 {t0}, {t0}, 12
        s_add_u32 {t0}, {t0}, {PHF_OFF}
        """)
        for k in range(4): S.e(f"buffer_store_dwordx4 {vr(E + 4*k)}, v{V_L16}, {sq(S_WS)}, {t0} offen offset:{k*1024}{OPT['hf_flags']}")
        st(S, "att")
        geglu(S, ACC + 32, GT2, S_U0, 1)
        geglu(S, ACC + 48, GT, S_U0, 2)
        geglu(S, ACC + 64, GT2, S_U0, 3)
    else:
        A1 = ACC + 16
        for i in range(16): S.e(f"v_mul_f32 v{A1+i}, v{A1+i}, v{V_RINV}")
        for i in range(8): S.e(f"v_cvt_pk_bf16_f32 v{A1+i}, v{A1+2*i}, v{A1+2*i+1}")
        S.e(f"""
        v_mov_b32 v{A1+8}, 0x3f80
        v_cndmask_b32_e64 v{A1+6}, v{A1+6}, v{A1+8}, {HHM}
        ds_write_b128 v{W+4}, {vr(A1)}
        ds_write_b128 v{W+4}, {vr(A1+4)} offset:16
        """)
        softmax14(S, A0, E, TT)
        for k in range(4): S.e(f"ds_write_b128 v{W+k}, {vr(E+4*k)}")
        st(S, "att")
        S.wait_lgkm(); S.e("s_barrier")
        st(S, "B2")
        geglu(S, ACC + 32, GT, S_U0, 0)
        geglu(S, ACC + 48, GT2, S_U12, 0)
        geglu(S, ACC + 64, GT, S_U12, 1)
    st(S, "end")
    st.flush(S, sq(S_WS), ST_OFF, 24, 12)
    S.e("s_endpgm")
    return S

def add_colsum_paths(prog):
    out = []; alt = []; i = 0
    CA = 21; CU = [SC, SC + 1, SC + 2, SC + 3]
    while i < len(prog):
        ins = prog[i]
        if ins.text.startswith("; KB"):
            _, _, typ, n, ab = ins.text.split(); n = int(n); ab = int(ab)
            j = i + 1
            while not prog[j].text.startswith("; KE"): j += 1
            body = prog[i + 1:j]
            if n < 27:
                out.append(I(f"s_cmp_eq_u32 s3, {n & 7}")); out.append(I(f"s_cbranch_scc1 K1_{typ}_alt{n}"))
                out += body
                out.append(I(f"K1_{typ}_join{n}:"))
                alt.append(I(f"K1_{typ}_alt{n}:"))
                labs = [b.text[:-1] for b in body if b.kind == "label" and b.text.endswith(":")]
                t = 0
                for b in body:
                    txt = b.text
                    for l in labs: txt = txt.replace(l, l + "_a")
                    c = I(txt) if not txt.startswith(";") else b
                    alt.append(c)
                    if b.kind == "mfma":
                        for jj in (0, 2):
                            r = ab + 4*t + jj
                            for x in (f"v_lshlrev_b32 v{CU[0]}, 16, v{r}", f"v_and_b32 v{CU[1]}, 0xffff0000, v{r}", f"v_lshlrev_b32 v{CU[2]}, 16, v{r+1}", f"v_and_b32 v{CU[3]}, 0xffff0000, v{r+1}",
                                      f"v_add_f32 v{CU[0]}, v{CU[0]}, v{CU[1]}", f"v_add_f32 v{CU[2]}, v{CU[2]}, v{CU[3]}", f"v_add_f32 v{CA+t}, v{CA+t}, v{CU[0]}", f"v_add_f32 v{CA+t}, v{CA+t}, v{CU[2]}"):
                                alt.append(I(x))
                        t += 1
                alt.append(I(f"s_branch K1_{typ}_join{n}"))
            else:
                out += body
            i = j + 1
            continue
        out.append(ins); i += 1
    return out + alt

def gen_k1():
    pro = list(k1_prologue()); ch = list(k1_compute_head()); hh = list(k1_helper_head())
    out = []
    def part(prefix, body, label):
        full = finalize(prefix + list(body))
        idx = next(i for i, x in enumerate(full) if x.text == label) if label else 0
        return full[idx:]
    out += add_colsum_paths(part(pro + ch, k1_compute("q"), None))
    out += add_colsum_paths(part(pro + ch, k1_compute("kv"), "K1_kv:"))
    out += part(pro + hh, k1_helper("q"), "K1_helper:")
    out += part(pro + hh, k1_helper("kv"), "K1_hkv:")
    out.append(I("K1_END:")); out.append(I("s_endpgm"))
    return out

def kd(name, vg, acc, sg=102):
    return f""".p2align 6
.amdhsa_kernel {name}
  .amdhsa_next_free_vgpr {vg}
  .amdhsa_next_free_sgpr {sg}
  .amdhsa_accum_offset {acc}
  .amdhsa_group_segment_fixed_size 0
  .amdhsa_kernarg_size 88
  .amdhsa_user_sgpr_count 2
  .amdhsa_user_sgpr_kernarg_segment_ptr 1
  .amdhsa_system_sgpr_workgroup_id_x 1
.end_amdhsa_kernel
"""

def build(path):
    k1 = gen_k1(); k2 = finalize(gen_k2()) + finalize(gen_k2_ow())
    print("K1", stats(k1), "K2", stats(k2), file=sys.stderr)
    ref = open(f"cdna_kernels/{NAME}.s.ref").read().split("\n")
    hdr = [l for l in ref if l.startswith(";") and "@launch" not in l and "Override" not in l and "grid=ceil" not in l]
    txt = "\n".join(hdr) + "\n"
    txt += f"; @launch kernel={K1} grid=(256,1,1) block=(768,1,1) lds=163840\n"
    txt += f"; @launch kernel={K2} grid=(256,1,1) block=(256,1,1) lds={K2_LDS}\n"
    txt += '.amdgcn_target "amdgcn-amd-amdhsa--gfx950"\n.text\n'
    for name, prog in ((K1, k1), (K2, k2)):
        txt += f".globl {name}\n.p2align 8\n.type {name},@function\n{name}:\n" + render(prog)
    txt += '.section .rodata,"a"\n' + kd(K1, NVG1, NVG1) + kd(K2, 256 + 128, 256)
    open(path, "w").write(txt)

if __name__ == "__main__":
    for a in sys.argv[2:]:
        k, v = a.split("=")
        OPT[k] = {"True": True, "False": False}.get(v, v.replace("_", " ") if k.endswith("flags") else v)
    build(sys.argv[1] if len(sys.argv) > 1 else f"cdna_kernels/{NAME}.s")
```

```python
import sys, os, struct
sys.path.insert(0, os.path.dirname(os.path.abspath(__file__)))
from dsl import *

NAME = "parallel_sum__linear_kernel_hedgehog__geglu_ffn__prompt"
K1 = NAME + "_kernel"
K2 = "k2_kernel"

HF_OFF = 0
KVP_OFF = 0xB00000
PHF_OFF = 0x1000000
WS_SIZE = 0x1400000
NKS = 144

OPT = dict(mimic_ffn=False, hf_flags=" sc1", k2d="8", prefetch=True)

def f32(x): return "0x%08x" % struct.unpack("<I", struct.pack("<f", x))[0]
def vr(a, n=4): return f"v[{a}:{a+n-1}]"
def ar(a, n=4): return f"a[{a}:{a+n-1}]"
MF = "v_mfma_f32_32x32x16_bf16"
MF16 = "v_mfma_f32_16x16x32_bf16"

def srd(S, d, lo, nbytes):
    S.e(f"s_mov_b32 s{d}, s{lo}\ns_mov_b32 s{d+1}, s{lo+1}\ns_mov_b32 s{d+2}, {nbytes}\ns_mov_b32 s{d+3}, 0x20000")

STAMP_REGS = [92, 94, 96, 98, 100, 28, 30, 4, 6, 8, 10, 12, 14, 16, 18, 20]
ST_OFF = 0xD00000
class Stamper:
    def __init__(self, regs=STAMP_REGS): self.n = 0; self.names = []; self.regs = regs
    def __call__(self, S, name, fine=False):
        if not OPT.get("stamps"): return
        if (OPT.get("stamps") == "fine") != fine and name != "end": return
        r = self.regs[self.n]; self.n += 1; self.names.append(name)
        S.e(f"{'s_memtime' if fine else 's_memrealtime'} s[{r}:{r+1}]")
    def flush(self, S, srd_s, base, vtmp, nwaves):
        if not OPT.get("stamps"): return
        S.e("s_waitcnt lgkmcnt(0)")
        for i in range(self.n): S.e(f"v_mov_b32 v{vtmp+i}, s{self.regs[i]}")
        S.e(f"s_mul_i32 s88, s2, {nwaves*64}\ns_lshl_b32 s89, s3, 6\ns_add_u32 s88, s88, s89\ns_add_u32 s88, s88, {base}\nv_mov_b32 v0, 0\ns_mov_b64 exec, 1")
        for i in range(0, 16, 4): S.e(f"buffer_store_dwordx4 v[{vtmp+i}:{vtmp+i+3}], v0, {srd_s}, s88 offen offset:{i*4}")
        print("stamps", self.names, file=sys.stderr)

AREA = 12288
W0 = 98304; WS_ = 20480
MISC = 159744
WPHI = MISC
CNT = MISC + 2048
STATS_OFF = 0xC00000
REG2 = 18432
CSP = 147456; KVF = 147456 + 5120
PKO = 12288; VVO = 16384
NVG1 = 168

V_L = 1; V_L16 = 2; V_Z = 3
V_AX = 4; V_AT = 8
V_CSA = 13; V_PHA = 14; V_TMP = 15
V_RINV, V_SD = 16, 17
V_C0, V_C1, V_S2 = 18, 19, 20
BP = 24
XB = 28; AB = 36; ACC = 56; SC = 136
PT = 136; STV = 152
S_PF, S_X, S_OUT, S_WG, S_WU, S_WS, S_DBG, S_WQ, S_D1, S_WD, S_WO = 12, 24, 28, 32, 36, 40, 44, 48, 52, 56, 60
S_MT, S_C4, S_HL, S_HEAD, S_TYPE, S_XROW, S_AREA, S_D0L, S_H = 64, 65, 66, 67, 68, 69, 70, 71, 72
S_ODD = 73
S_T = 74
S_HH = 80
S_HFB = 82
S_U0, S_U12 = 83, 84
S_M = 85
S_SROW = 86
S_G = 87
M1 = "s[88:89]"; M2 = "s[90:91]"
HHM = f"s[{S_HH}:{S_HH+1}]"
t0, t1, t2, t3, t4, t5 = [f"s{S_T+i}" for i in range(6)]
tm = f"s{S_M}"
S_M64, S_N64, S_MT2 = 65, 66, 73
def sq(d): return f"s[{d}:{d+3}]"
STAMPR = [92, 94, 96, 98, 100, 4, 6, 8, 10, 16, 18, 20, 22]
B_OWNMT = f"s_lshl_b32 {t2}, s{S_MT}, 5"
B_MT2 = f"s_lshl_b32 {t2}, s{S_MT2}, 5"
B_KV = f"s_lshl_b32 {t2}, s{S_HEAD}, 1\ns_add_u32 {t2}, {t2}, 1"

def bf16r(S, d, src):
    S.e(f"v_cvt_pk_bf16_f32 v{d}, {src}, {src}\nv_lshlrev_b32 v{d}, 16, v{d}")

def xhalf(S, op, x, t):
    S.e(f"v_mov_b32 v{t}, v{x}\nv_permlane32_swap_b32 v{t}, v{x}\n{op} v{x}, v{x}, v{t}")

def wave_sum(S, x, t):
    for m in ("quad_perm:[1,0,3,2]", "quad_perm:[2,3,0,1]", "row_half_mirror", "row_mirror"):
        S.e(f"v_add_f32_dpp v{x}, v{x}, v{x} {m} row_mask:0xf bank_mask:0xf")
    S.e(f"v_mov_b32 v{t}, v{x}\nv_permlane16_swap_b32 v{t}, v{x}\nv_add_f32 v{x}, v{x}, v{t}")
    xhalf(S, "v_add_f32", x, t)


MB_OFF = 0xE00000; MB_STRIDE = 4096 + 256
def signal(tag, cnt_off, kind, lab, A, B, Cc, last):
    G = Stream()
    if tag: G.wait_vm(*tag.split(","))
    G.e(f"""
    v_mov_b32 v{A}, {CNT + cnt_off}
    v_mov_b32 v{B}, 1
    s_mov_b64 exec, 1
    ds_add_rtn_u32 v{Cc}, v{A}, v{B}
    s_mov_b64 exec, -1
    v_readfirstlane_b32 {t1}, v{Cc}
    s_cmp_lg_u32 {t1}, {last}
    s_cbranch_scc1 {lab}
    """)
    if kind == "init":
        G.e(f"s_lshr_b32 {t2}, s{S_SROW}, 3\ns_mov_b64 exec, 1", opt=True)
        G.e(f"buffer_store_byte v{B}, v{V_Z}, {sq(S_DBG)}, {t2} offen sc1", opt=True)
    elif kind in ("h", "o"):
        G.e(f"""
        s_and_b32 {t1}, s{S_MT}, 3
        s_lshl_b32 {t1}, {t1}, 1
        s_lshr_b32 {t2}, s{S_MT}, 2
        s_add_u32 {t1}, {t1}, {t2}
        s_mul_i32 {t1}, {t1}, {MB_STRIDE}
        {f's_bfe_u32 {t2}, s{S_SROW}, 0x50003' if kind == 'h' else f's_add_u32 {t2}, s{S_HEAD}, 32'}
        s_add_u32 {t1}, {t1}, {t2}
        s_add_u32 {t1}, {t1}, {MB_OFF}
        v_mul_u32_u24 v{Cc}, {8*MB_STRIDE}, v{V_L}
        s_mov_b64 exec, 0xfffffff
        """, opt=True)
        G.e(f"buffer_store_byte v{B}, v{Cc}, {sq(S_WS)}, {t1} offen sc1", opt=True)
    else:
        G.e(f"""
        s_lshr_b32 {t1}, s{S_HEAD}, 2
        s_lshl_b32 {t1}, {t1}, 1
        s_and_b32 {t2}, s{S_HEAD}, 3
        s_lshl_b32 {t2}, {t2}, 6
        s_add_u32 {t1}, {t1}, {t2}
        s_mul_i32 {t1}, {t1}, {MB_STRIDE}
        s_add_u32 {t1}, {t1}, s{S_MT}
        s_add_u32 {t1}, {t1}, {MB_OFF + 48}
        v_and_b32 v{Cc}, 3, v{V_L}
        v_lshlrev_b32 v{Cc}, 3, v{Cc}
        v_lshrrev_b32 v{A}, 2, v{V_L}
        v_add_u32 v{Cc}, v{Cc}, v{A}
        v_mul_u32_u24 v{Cc}, {MB_STRIDE}, v{Cc}
        v_mov_b32 v{A}, {CNT + cnt_off}
        s_mov_b64 exec, 0xff
        """, opt=True)
        G.e(f"buffer_store_byte v{B}, v{Cc}, {sq(S_WS)}, {t1} offen sc1", opt=True)
    G.e(f"s_mov_b64 exec, -1", opt=True)
    G.e(f"{lab}:")
    return G
def poll(lab, kind, D, A, who=None):
    G = Stream()
    if who is not None: G.e(f"s_cmp_lg_u32 s3, {who}\ns_cbranch_scc1 {lab}_ok")
    if kind == "init":
        setup = f"v_lshlrev_b32 v{A}, 2, v{V_L}\ns_mov_b32 {t2}, 0\ns_mov_b32 {t4}, 0x01010101"
        ld = f"buffer_load_dword v{D}, v{A}, {sq(S_DBG)}, {t2} offen sc1"
        cmp = f"v_cmp_ne_u32_e64 {M1}, {t4}, v{D}"
    else:
        base, mask = {"h": (0, 7), "o": (32, 3), "kv": (48, 1)}[kind]
        setup = f"v_and_b32 v{A}, {mask}, v{V_L}\nv_lshlrev_b32 v{A}, 2, v{A}\ns_mul_i32 {t2}, s2, {MB_STRIDE}\ns_add_u32 {t2}, {t2}, {MB_OFF + base}\ns_mov_b32 {t4}, 0x01010101"
        ld = f"buffer_load_dword v{D}, v{A}, {sq(S_WS)}, {t2} offen sc1"
        cmp = f"v_cmp_ne_u32_e64 {M1}, {t4}, v{D}"
    G.e(f"""
    {setup}
    s_mov_b32 {t3}, 0
    {lab}_loop:
    {ld}
    s_waitcnt vmcnt(0)
    {cmp}
    s_add_u32 {t3}, {t3}, 1
    s_cmp_eq_u64 {M1}, 0
    s_cbranch_scc1 {lab}_ok
    s_sleep {OPT.get('sleep', 4) if kind != 'init' else 16}
    s_cmp_lt_u32 {t3}, 0x8000
    s_cbranch_scc1 {lab}_loop
    """, opt=True)
    G.e(f"{lab}_ok:")
    return G

def tile_addrs(S, typ, AT, T):
    R, C, HH, NH = T + 1, T + 2, T + 3, T + 4
    S.e(f"""
    v_lshrrev_b32 v{HH}, 5, v{V_L}
    v_bfe_u32 v{NH}, v{V_L}, 4, 1
    v_bfe_u32 v{R}, v{V_L}, 2, 2
    v_and_b32 v{C}, 3, v{V_L}
    v_lshl_add_u32 v{T+5}, v{HH}, 3, v{R}
    v_lshlrev_b32 v{T+6}, 6, v{T+5}
    v_lshl_add_u32 v{T+8}, v{NH}, 2, v{C}
    v_add_u32 v{T+8}, s{S_ODD}, v{T+8}
    v_and_b32 v{T+8}, 7, v{T+8}
    v_lshl_add_u32 v{T+8}, v{T+8}, 3, v{T+6}
    """)
    if typ == "q":
        S.e(f"""
        v_add_u32 v{AT}, {W0 + 16384}, v{T+8}
        v_lshrrev_b32 v{T+6}, 1, v{C}
        v_and_b32 v{T+7}, 2, v{R}
        v_xor_b32 v{T+6}, v{T+6}, v{T+7}
        v_lshl_add_u32 v{T+6}, v{NH}, 2, v{T+6}
        v_lshlrev_b32 v{T+7}, 7, v{T+5}
        v_lshl_add_u32 v{T+7}, v{T+6}, 4, v{T+7}
        v_and_b32 v{T+6}, 1, v{C}
        v_lshl_add_u32 v{T+7}, v{T+6}, 3, v{T+7}
        v_lshl_add_u32 v{T+7}, v{NH}, 13, v{T+7}
        v_add_u32 v{AT+1}, {W0}, v{T+7}
        v_xor_b32 v{AT+2}, 32, v{AT+1}
        v_xor_b32 v{AT+3}, 64, v{AT+1}
        v_xor_b32 v{AT+4}, 0x60, v{AT+1}
        """)
    else:
        S.e(f"""
        v_add_u32 v{AT}, {W0}, v{T+8}
        v_lshl_add_u32 v{T+7}, v{C}, 3, v{T+6}
        v_mul_u32_u24 v{T+8}, 1056, v{NH}
        v_add_u32 v{AT+1}, v{T+7}, v{T+8}
        v_add_u32 v{AT+1}, {W0 + 2048}, v{AT+1}
        v_xor_b32 v{AT+2}, 32, v{AT+1}
        v_lshlrev_b32 v{T+6}, 5, v{T+5}
        v_lshl_add_u32 v{T+6}, v{C}, 3, v{T+6}
        v_mul_u32_u24 v{T+7}, 2176, v{NH}
        v_add_u32 v{AT+3}, v{T+6}, v{T+7}
        v_add_u32 v{AT+3}, {W0 + 16384}, v{AT+3}
        v_xor_b32 v{AT+4}, 0x80, v{AT+3}
        """)

def tile_read_args(typ, t, s, e):
    if typ == "q":
        return (0, s*1024 + e*256) if t == 0 else (t, s*2048 + e*512)
    if t == 0: return (0, s*4096 + e*256)
    if t == 1: return (0, s*4096 + 1024 + e*256)
    if t == 2: return (3 + e, s*512)
    return (t - 2, s*4096 + e*256)

def geglu(S, a, T, unit_sgpr, unit_add):
    for i in range(8): S.e(f"v_mul_f32 v{T+i}, v{a+i}, v{a+i}")
    for i in range(8): S.e(f"v_fma_f32 v{T+i}, v{T+i}, v{V_C1}, v{V_C0}")
    for i in range(8): S.e(f"v_mul_f32 v{T+i}, v{T+i}, v{a+i}")
    for i in range(8): S.e(f"v_exp_f32 v{T+i}, v{T+i}")
    for i in range(8): S.e(f"v_mul_f32 v{a+i}, v{a+i}, v{a+8+i}")
    for i in range(8): S.e(f"v_fma_f32 v{T+i}, v{T+i}, v{V_S2}, v{V_S2}")
    for i in range(8): S.e(f"v_rcp_f32 v{T+i}, v{T+i}")
    for i in range(8): S.e(f"v_mul_f32 v{a+i}, v{a+i}, v{T+i}")
    for i in range(4): S.e(f"v_cvt_pk_bf16_f32 v{T+8+i}, v{a+2*i}, v{a+2*i+1}")
    S.e(f"s_add_u32 s{S_G}, s{unit_sgpr}, {unit_add * 1024}")
    S.e(f"buffer_store_dwordx4 {vr(T+8)}, v{V_L16}, {sq(S_WS)}, s{S_G} offen{OPT['hf_flags']}", tag="hst")


def softmax14(S, P, E, T):
    N = 14
    for i in range(7): S.e(f"v_cvt_pk_bf16_f32 v{E+i}, v{P+2*i}, v{P+2*i+1}")
    for i in range(7): S.e(f"v_lshlrev_b32 v{P+2*i}, 16, v{E+i}\nv_and_b32 v{P+2*i+1}, 0xffff0000, v{E+i}")
    L = T + 4
    S.e(f"v_mov_b32 v{L}, {f32(1.4426950408889634)}")
    MX, MN = T, T + 1
    S.e(f"v_max3_f32 v{MX}, v{P}, v{P+1}, v{P+2}\nv_min3_f32 v{MN}, v{P}, v{P+1}, v{P+2}")
    for i in range(3, 13, 2):
        S.e(f"v_max3_f32 v{MX}, v{MX}, v{P+i}, v{P+i+1}\nv_min3_f32 v{MN}, v{MN}, v{P+i}, v{P+i+1}")
    S.e(f"v_max_f32 v{MX}, v{MX}, v{P+13}\nv_min_f32 v{MN}, v{MN}, v{P+13}")
    S.e(f"v_mov_b32 v{T+2}, v{MX}\nv_mov_b32 v{T+3}, v{MN}\nv_permlane32_swap_b32 v{T+2}, v{MX}\nv_permlane32_swap_b32 v{T+3}, v{MN}")
    S.e(f"v_max_f32 v{MX}, v{MX}, v{T+2}\nv_min_f32 v{MN}, v{MN}, v{T+3}")
    S.e(f"v_mul_f32 v{MX}, v{MX}, v{L}\nv_mul_f32 v{MN}, v{MN}, v{L}")
    for i in range(N): S.e(f"v_fma_f32 v{E+i}, v{P+i}, v{L}, -v{MX}")
    for i in range(N): S.e(f"v_fma_f32 v{P+i}, -v{P+i}, v{L}, v{MN}")
    for i in range(N): S.e(f"v_exp_f32 v{E+i}, v{E+i}")
    for i in range(N): S.e(f"v_exp_f32 v{P+i}, v{P+i}")
    SP, SM = T, T + 1
    S.e(f"v_add_f32 v{SP}, v{E}, v{E+1}\nv_add_f32 v{T+2}, v{E+2}, v{E+3}\nv_add_f32 v{SM}, v{P}, v{P+1}\nv_add_f32 v{T+3}, v{P+2}, v{P+3}")
    for i in range(4, N, 2):
        S.e(f"v_add_f32 v{SP}, v{SP}, v{E+i}\nv_add_f32 v{T+2}, v{T+2}, v{E+i+1}\nv_add_f32 v{SM}, v{SM}, v{P+i}\nv_add_f32 v{T+3}, v{T+3}, v{P+i+1}")
    S.e(f"v_add_f32 v{SP}, v{SP}, v{T+2}\nv_add_f32 v{SM}, v{SM}, v{T+3}")
    S.e(f"v_mov_b32 v{T+2}, v{SP}\nv_mov_b32 v{T+3}, v{SM}\nv_permlane32_swap_b32 v{T+2}, v{SP}\nv_permlane32_swap_b32 v{T+3}, v{SM}")
    S.e(f"v_add_f32 v{SP}, v{SP}, v{T+2}\nv_add_f32 v{SM}, v{SM}, v{T+3}")
    S.e(f"v_rcp_f32 v{SP}, v{SP}\nv_rcp_f32 v{SM}, v{SM}")
    for i in range(N): S.e(f"v_mul_f32 v{E+i}, v{E+i}, v{SP}")
    for i in range(N): S.e(f"v_mul_f32 v{P+i}, v{P+i}, v{SM}")
    for i in range(7): S.e(f"v_cvt_pk_bf16_f32 v{E+i}, v{E+2*i}, v{E+2*i+1}")
    for i in range(7): S.e(f"v_cvt_pk_bf16_f32 v{E+8+i}, v{P+2*i}, v{P+2*i+1}")
    S.e(f"v_mov_b32 v{E+7}, 0\nv_mov_b32 v{E+15}, 0")


def stats_consts(S):
    S.e(f"""
    v_mov_b32 v{BP}, v{V_RINV}
    v_mov_b32 v{BP+1}, v{V_RINV}
    v_mov_b32 v{BP+2}, v{V_RINV}
    v_mov_b32 v{BP+3}, v{V_RINV}
    v_rcp_f32 v{V_RINV}, v{V_SD}
    v_mul_f32 v{V_S2}, v{V_SD}, v{V_SD}
    v_mul_f32 v{V_C0}, {f32(-2.302208198)}, v{V_RINV}
    v_mul_f32 v{V_C1}, v{V_RINV}, v{V_RINV}
    v_mul_f32 v{V_C1}, v{V_C1}, v{V_C0}
    v_mul_f32 v{V_C1}, {f32(0.044715)}, v{V_C1}
    """)


def prologue():
    S = Stream()
    S.e(f"""
    s_cmp_ge_u32 s2, 256
    s_cbranch_scc1 K_END
    {'s_memrealtime s[92:93]' if OPT.get('stamps') else ''}
    s_load_dwordx16 s[4:19], s[0:1], 0
    s_load_dwordx4 s[20:23], s[0:1], 72
    s_load_dwordx2 s[{S_OUT}:{S_OUT+1}], s[0:1], 64
    v_lshrrev_b32 v{PT}, 6, v0
    v_and_b32 v{V_L}, 63, v0
    v_readfirstlane_b32 s3, v{PT}
    v_lshlrev_b32 v{V_L16}, 4, v{V_L}
    v_mov_b32 v{V_Z}, 0
    s_and_b32 {t0}, s2, 7
    s_lshr_b32 {t1}, s2, 3
    s_and_b32 s{S_MT}, {t0}, 1
    s_lshl_b32 s{S_MT}, s{S_MT}, 2
    s_and_b32 {t2}, {t1}, 3
    s_add_u32 s{S_MT}, s{S_MT}, {t2}
    s_lshr_b32 s{S_C4}, {t0}, 1
    s_lshr_b32 {t1}, {t1}, 2
    s_and_b32 s{S_TYPE}, {t1}, 1
    s_lshr_b32 s{S_HL}, {t1}, 1
    s_lshl_b32 s{S_HEAD}, s{S_C4}, 2
    s_add_u32 s{S_HEAD}, s{S_HEAD}, s{S_HL}
    s_and_b32 s{S_ODD}, s{S_HEAD}, 1
    s_lshl_b32 {t2}, s{S_MT}, 2
    s_add_u32 {t2}, {t2}, s{S_C4}
    s_lshl_b32 {t2}, {t2}, 3
    s_add_u32 {t2}, {t2}, {t1}
    s_lshl_b32 {t2}, {t2}, 3
    s_and_b32 {t3}, s3, 7
    s_add_u32 s{S_SROW}, {t2}, {t3}
    s_mov_b32 s{S_HH}, 0
    s_mov_b32 s{S_HH+1}, -1
    s_mul_i32 {t0}, s{S_C4}, 896
    s_lshl_b32 {tm}, s{S_HL}, 7
    s_add_u32 {t3}, {t0}, {tm}
    s_add_u32 {t0}, {t0}, 512
    s_mul_i32 {t1}, s{S_HL}, 3
    s_and_b32 {t2}, s{S_HL}, 1
    s_add_u32 {t5}, {t1}, {t2}
    s_lshl_b32 {t2}, {t2}, 1
    s_add_u32 {t1}, {t1}, 2
    s_sub_u32 {t1}, {t1}, {t2}
    s_lshl_b32 {t1}, {t1}, 5
    s_add_u32 {t1}, {t1}, {t0}
    s_lshl_b32 {t5}, {t5}, 5
    s_add_u32 {t0}, {t0}, {t5}
    s_cmp_eq_u32 s{S_TYPE}, 1
    s_cselect_b32 s{S_U0}, {t1}, {t3}
    s_cselect_b32 s{S_U12}, {t0}, {t3}
    s_cmp_ge_u32 s3, 8
    s_cbranch_scc1 K_helper
    """)
    return S

def p2_ids(S):
    S.e(f"""
    s_and_b32 {t0}, s2, 7
    s_lshr_b32 {t1}, s2, 3
    s_and_b32 {t2}, {t0}, 1
    s_lshl_b32 {t2}, {t2}, 2
    s_lshr_b32 {t0}, {t0}, 1
    s_add_u32 s{S_MT2}, {t0}, {t2}
    s_lshl_b32 s{S_M64}, s{S_MT2}, 2
    s_and_b32 {t2}, {t1}, 3
    s_add_u32 s{S_M64}, s{S_M64}, {t2}
    s_lshr_b32 s{S_N64}, {t1}, 2
    """)
def p2_a_voffsets(S, VD, VO, VOM, T):
    S.e(f"""
    v_lshrrev_b32 v{T}, 3, v{V_L}
    v_and_b32 v{T+1}, 7, v{V_L}
    v_bfe_u32 v{T+2}, v{V_L}, 4, 1
    v_lshlrev_b32 v{T+2}, 2, v{T+2}
    v_xor_b32 v{T+1}, v{T+1}, v{T+2}
    s_lshl_b32 {t0}, s{S_N64}, 7
    v_lshlrev_b32 v{T+1}, 4, v{T+1}
    v_add_u32 v{T+1}, {t0}, v{T+1}
    v_mul_u32_u24 v{VD}, 896, v{T}
    v_add_u32 v{VD}, v{VD}, v{T+1}
    """)
    if VO is not None:
        S.e(f"""
        v_lshrrev_b32 v{T+2}, 2, v{T}
        v_and_b32 v{T+3}, 3, v{T}
        v_mad_u32_u24 v{T+2}, v{T+2}, 14, v{T+3}
        v_mul_u32_u24 v{VO}, 896, v{T+2}
        v_add_u32 v{VO}, v{VO}, v{T+1}
        v_cmp_lt_u32_e64 {M1}, 1, v{T+3}
        v_mov_b32 v{T+2}, 0x7f000000
        v_cndmask_b32_e64 v{VOM}, v{VO}, v{T+2}, {M1}
        """)

def helper_head():
    S = Stream(); T = PT
    S.e("K_helper:")
    S.e(f"s_setprio {OPT.get('hprio', 3)}")
    S.e(f"""
    s_sub_u32 s{S_H}, s3, 8
    s_lshl_b32 {t0}, s{S_MT}, 2
    s_add_u32 {t0}, {t0}, s{S_H}
    s_mul_i32 s{S_XROW}, {t0}, {64*896}
    s_mul_i32 s{S_AREA}, s{S_H}, {2*AREA}
    v_lshrrev_b32 v{T+7}, 3, v{V_L}
    v_mul_u32_u24 v{T}, 896, v{T+7}
    v_and_b32 v{T+8}, 7, v{V_L}
    v_lshrrev_b32 v{T+2}, 4, v{V_L}
    v_xor_b32 v{T+1}, v{T+8}, v{T+2}
    v_lshl_add_u32 v4, v{T+1}, 4, v{T}
    v_xor_b32 v5, 64, v4
    s_mul_i32 {t1}, s{S_HEAD}, 56
    s_lshl_b32 {t2}, s{S_ODD}, 3
    s_sub_u32 {t1}, {t1}, {t2}
    v_lshrrev_b32 v{T}, 2, v{V_L}
    v_and_b32 v{T+1}, 3, v{V_L}
    v_mul_u32_u24 v{T+4}, 2688, v{T}
    v_lshl_add_u32 v{T+4}, v{T+1}, 4, v{T+4}
    s_mul_i32 {tm}, s{S_H}, {16*2688}
    s_add_u32 {t1}, {t1}, {tm}
    v_add_u32 v6, {t1}, v{T+4}
    s_waitcnt lgkmcnt(0)
    """)
    srd(S, S_X, 4, 2048 * 896); srd(S, S_WQ, 6, 448 * 2688); srd(S, S_WG, 14, 448 * 3584); srd(S, S_WU, 16, 448 * 3584)
    S.e(f"s_cmp_eq_u32 s{S_TYPE}, 1\ns_cbranch_scc1 K_hkv")
    return S

def helper(typ):
    q = typ == "q"
    S = Stream(); T = PT
    S.e(f"K_h{typ}:")
    st = Stamper(STAMPR); st.n = 1; st.names = ["start"]
    V_XE, V_XO, V_DQ, V_DG, V_DU, V_DS = 4, 5, 6, 7, 8, 9
    V_AC = 10; V_PF = 16; V_WD = 18
    CT = 20; CA = 40; CU = 46
    if q:
        S.e(f"""
        v_bfe_u32 v{T+2}, v{V_L}, 4, 1
        v_lshlrev_b32 v{T+2}, 1, v{T+2}
        v_xor_b32 v{T+2}, v{T+2}, v{T+8}
        v_mul_u32_u24 v{T+3}, 3584, v{T+7}
        v_lshl_add_u32 v{T+2}, v{T+2}, 4, v{T+3}
        s_mul_i32 {tm}, s{S_H}, {16*3584}
        s_add_u32 {tm}, {tm}, s{S_U0}
        v_add_u32 v{V_DG}, {tm}, v{T+2}
        v_xor_b32 v{V_DU}, 64, v{V_DG}
        """)
    else:
        S.e(f"""
        v_mul_u32_u24 v{T+3}, 3584, v{T}
        v_lshl_add_u32 v{V_DG}, v{T+1}, 4, v{T+3}
        s_mul_i32 {tm}, s{S_H}, {16*3584}
        s_add_u32 {tm}, {tm}, s{S_U12}
        v_add_u32 v{V_DG}, {tm}, v{V_DG}
        v_xor_b32 v{V_DU}, 32, v{V_DG}
        s_lshr_b32 {t2}, s{S_H}, 1
        s_cmp_eq_u32 {t2}, 0
        s_cselect_b32 s{S_D1}, s14, s16
        s_cselect_b32 s{S_D1+1}, s15, s17
        s_mov_b32 s{S_D1+2}, {448*3584}
        s_mov_b32 s{S_D1+3}, 0x20000
        s_lshl_b32 {t2}, {t2}, 2
        v_lshrrev_b32 v{T+5}, 1, v{V_L}
        v_xor_b32 v{T+5}, {t2}, v{T+5}
        v_mul_u32_u24 v{T+5}, 3584, v{T+5}
        v_and_b32 v{T+6}, 1, v{V_L}
        v_lshl_add_u32 v{T+5}, v{T+6}, 4, v{T+5}
        s_and_b32 {t2}, s{S_H}, 1
        s_mul_i32 {t2}, {t2}, {32*3584}
        s_add_u32 {t2}, {t2}, s{S_U0}
        v_add_u32 v{V_DS}, {t2}, v{T+5}
        """)
    S.e(f"s_lshl_b32 s{S_D0L}, s{S_H}, 10\ns_add_u32 s{S_D0L}, s{S_D0L}, {W0}\ns_lshl_b32 s{S_G}, s{S_H}, {11 if q else 12}\ns_add_u32 s{S_G}, s{S_G}, {W0}")
    def dma(c, part=None):
        sb = (c % 3) * WS_
        def one(m0expr, soff, v, srdreg):
            S.e(f"s_add_u32 m0, {m0expr}\n{soff}")
            S.e(f"buffer_load_dwordx4 v{v}, {sq(srdreg)}, {tm} offen lds", tag=f"d{c}")
        def xs(lo, hi):
            for i in range(lo, hi):
                wv, qq = i >> 2, i & 3
                one(f"s{S_AREA}, {wv*AREA + (c % 3)*4096 + qq*1024}", f"s_add_u32 {tm}, s{S_XROW}, {(wv*32 + qq*8)*896 + c*128}", V_XO if qq & 1 else V_XE, S_X)
        if part == 1: pass
        elif q:
            one(f"s{S_D0L}, {sb + 16384}", f"s_mov_b32 {tm}, {c*172032}", V_DQ, S_WQ)
            for rg in range(2):
                one(f"s{S_G}, {sb + rg*1024}", f"s_mov_b32 {tm}, {c*229376 + rg*8*3584}", V_DG, S_WG)
                one(f"s{S_G}, {sb + 8192 + rg*1024}", f"s_mov_b32 {tm}, {c*229376 + rg*8*3584}", V_DU, S_WU)
        else:
            one(f"s{S_G}, {sb}", f"s_mov_b32 {tm}, {c*172032 + 896}", V_DQ, S_WQ)
            one(f"s{S_G}, {sb + 1024}", f"s_mov_b32 {tm}, {c*172032 + 1792}", V_DQ, S_WQ)
            one(f"s{S_G}, {sb + 2048}", f"s_mov_b32 {tm}, {c*229376}", V_DG, S_WG)
            one(f"s{S_G}, {sb + 3072}", f"s_mov_b32 {tm}, {c*229376}", V_DU, S_WU)
            one(f"s{S_D0L}, {sb + 16384}", f"s_mov_b32 {tm}, {c*229376}", V_DS, S_D1)
        k = int(OPT.get('split1', 1))
        if part == 0: xs(0, k)
        elif part == 1: xs(k, 8)
        else: xs(0, 8)
    dma(0)
    tile_addrs(S, typ, V_AC, 60)
    for t in range(5):
        stride = (1024 if t == 0 else 2048) if q else (512 if t >= 3 else 4096)
        S.e(f"s_mul_i32 {t0}, s{S_H}, {stride}\nv_add_u32 v{V_AC+t}, {t0}, v{V_AC+t}")
    for i in range(5): S.e(f"v_mov_b32 v{CA+i}, 0")
    dma(1, 0)
    S.wait_vm("d0"); S.e("s_barrier")
    st(S, "bar0")
    dma(1, 1)
    def colsum_rd(c):
        for t in range(5):
            for e in range(2):
                a, imm = tile_read_args(typ, t, 0, e)
                S.e(f"ds_read_b64_tr_b16 {vr(CT + 4*t + 2*e, 2)}, v{V_AC+a} offset:{(c % 3)*WS_ + imm}")
    def colsum_add():
        for j in range(4):
            for t in range(5): S.e(f"v_lshlrev_b32 v{CU+t}, 16, v{CT + 4*t + j}")
            for t in range(5): S.e(f"v_and_b32 v{CU+5+t}, 0xffff0000, v{CT + 4*t + j}")
            for t in range(5): S.e(f"v_add_f32 v{CA+t}, v{CA+t}, v{CU+t}")
            for t in range(5): S.e(f"v_add_f32 v{CA+t}, v{CA+t}, v{CU+5+t}")
    colsum_rd(0)
    dma(2)
    S.wait_lgkm(); S.wait_vm("d1"); S.e("s_barrier")
    dma(3)
    colsum_add()
    srd(S, S_WS, 22, WS_SIZE); srd(S, S_DBG, 20, 256); srd(S, S_WO, 8, 16 * 1568); srd(S, S_WD, 18, 1792 * 896)
    for i in range(2):
        S.e(f"""
        v_lshrrev_b32 v{T+9}, 4, v{V_L}
        s_lshl_b32 {t0}, s{S_H}, 3
        s_add_u32 {t0}, {t0}, {4*i}
        v_add_u32 v{T+9}, {t0}, v{T+9}
        v_bfe_u32 v{T+10}, v{V_L}, 3, 1
        v_and_b32 v{T+11}, 7, v{V_L}
        v_mad_u32_u24 v{T+10}, v{T+10}, 7, v{T+11}
        v_mad_u32_u24 v{T+10}, v{T+9}, 14, v{T+10}
        v_lshlrev_b32 v{T+10}, 2, v{T+10}
        v_cmp_eq_u32_e64 {M1}, 7, v{T+11}
        s_cmp_eq_u32 {t0}, 28
        s_cselect_b64 {M1}, -1, {M1}
        v_mov_b32 v{T+11}, 0x7fffff00
        v_cndmask_b32_e64 v{T+10}, v{T+10}, v{T+11}, {M1}
        s_mul_i32 {t1}, s{S_HEAD}, 1568
        s_lshl_b32 {t0}, {t0}, 6
        s_add_u32 m0, {t0}, {WPHI}
        """)
        S.e(f"buffer_load_dword v{T+10}, {sq(S_WO)}, {t1} offen lds", tag="phi")
    if OPT["prefetch"]:
        S.e(f"""
        s_lshr_b32 {t0}, s2, 3
        s_lshl_b32 {t0}, {t0}, 2
        s_add_u32 {t0}, {t0}, s{S_H}
        s_lshl_b32 {t0}, {t0}, 14
        s_mov_b32 {t3}, {1792*896}
        s_cmp_lt_u32 {t0}, {t3}
        s_cselect_b32 s{S_PF}, s18, s10
        s_cselect_b32 s{S_PF+1}, s19, s11
        s_cselect_b32 s{S_PF+2}, {t3}, {448*896}
        s_mov_b32 s{S_PF+3}, 0x20000
        s_cselect_b32 {t3}, 0, {t3}
        s_sub_u32 {t0}, {t0}, {t3}
        v_lshlrev_b32 v{V_PF}, 7, v{V_L}
        v_add_u32 v{V_PF}, {t0}, v{V_PF}
        v_add_u32 v{V_PF+1}, 0x2000, v{V_PF}
        """)
    p2_ids(S)
    p2_a_voffsets(S, V_WD, None, None, 60)
    colsum_rd(1)
    for c in range(2, 7):
        if c == 6: S.extend(poll(f"K_h{typ}_pst", "init", V_TMP, 19, who=8))
        S.wait_lgkm(); S.wait_vm(f"d{c}"); S.e("s_barrier")
        if c in (4,): st(S, f"bar{c}")
        if c + 2 <= 6: dma(c + 2)
        if c == int(OPT.get("pfc", 4)) and OPT["prefetch"]:
            S.e(f"buffer_load_dword v{V_PF}, v{V_PF}, {sq(S_PF)}, 0 offen\nbuffer_load_dword v{V_PF+1}, v{V_PF+1}, {sq(S_PF)}, 0 offen", tag="pf")
        colsum_add()
        colsum_rd(c)
    colsum_add()
    S.e(f"s_lshl_b32 {t0}, s{S_H}, 2\ns_add_u32 {t0}, {t0}, {CSP}\nv_add_u32 v{T}, {t0}, v{V_L16}")
    for t in range(5): S.e(f"v_cvt_pk_bf16_f32 v{T+1+t}, v{CA+t}, v{CA+t}")
    for t in range(5): S.e(f"v_lshlrev_b32 v{T+1+t}, 16, v{T+1+t}")
    for t in range(5): S.e(f"v_sub_f32 v{T+1+t}, v{CA+t}, v{T+1+t}")
    for t in range(5): S.e(f"v_cvt_pk_bf16_f32 v{T+1+t}, v{CA+t}, v{T+1+t}")
    for t in range(5): S.e(f"ds_write_b32 v{T}, v{T+1+t} offset:{t*1024}")
    S.e(f"""
    s_mul_i32 s{S_AREA}, s{S_H}, {2*REG2}
    s_mul_i32 s{S_XROW}, s{S_H}, {2*14*16*896}
    s_cmp_ge_u32 s2, 224
    s_cselect_b32 {t0}, 0x40000000, 0
    s_add_u32 s{S_XROW}, s{S_XROW}, {t0}
    """)
    S.wait_vm("phi"); S.wait_lgkm(); S.e("s_barrier")
    st(S, "B1")
    def adma(lo, hi):
        for i in range(lo, hi):
            for wv in range(2):
                for u in range(2):
                    S.e(f"s_add_u32 m0, s{S_AREA}, {wv*REG2 + i*2048 + u*1024}\ns_add_u32 {tm}, s{S_XROW}, {((wv*14 + i)*16 + 8*u)*896}")
                    S.e(f"buffer_load_dwordx4 v{V_WD}, {sq(S_WD)}, {tm} offen lds", tag="a1")
    if q:
        adma(0, 9)
        KO = 4; U = 5
        S.e(f"""
        v_and_b32 v{U}, 31, v{V_L}
        v_lshrrev_b32 v{U+1}, 3, v{U}
        v_and_b32 v{U+2}, 3, v{U}
        v_lshl_add_u32 v{U+1}, v{U+1}, 2, v{U+2}
        v_bfe_u32 v{U+2}, v{U}, 2, 1
        v_mad_u32_u24 v{U+2}, v{U+2}, 14, v{U+1}
        v_cmp_lt_u32_e64 {M1}, 13, v{U+1}
        v_cndmask_b32_e64 v{U+2}, v{U+2}, 28, {M1}
        v_bfe_u32 v{U+3}, v{U+2}, 2, 1
        v_lshrrev_b32 v{U+4}, 3, v{U+2}
        v_and_b32 v{U+5}, 3, v{U+2}
        v_lshl_add_u32 v{U+4}, v{U+4}, 2, v{U+5}
        v_lshrrev_b32 v{U+5}, 5, v{V_L}
        v_lshl_add_u32 v{U+3}, v{U+5}, 1, v{U+3}
        v_lshlrev_b32 v{U+3}, 10, v{U+3}
        v_lshl_add_u32 v{U+3}, v{U+4}, 4, v{U+3}
        s_lshr_b32 {t0}, s{S_H}, 1
        s_lshl_b32 {t0}, {t0}, 12
        s_and_b32 {t1}, s{S_H}, 1
        s_lshl_b32 {t1}, {t1}, 9
        s_add_u32 {t0}, {t0}, {t1}
        v_add_u32 v{KO}, {t0}, v{U+3}
        s_lshl_b32 {t0}, s{S_H}, 10
        s_add_u32 {t0}, {t0}, {KVF}
        v_add_u32 v{U}, {t0}, v{V_L16}
        """)
        S.wait_vm("a1"); S.e("s_barrier")
        st(S, "B3")
        S.extend(poll("K_hq_pkv", "kv", V_TMP, 19, who=8))
        S.e(f"""
        v_mov_b32 v{U+1}, {CNT}
        v_mov_b32 v{U+2}, 1
        s_cmp_lg_u32 s3, 8
        s_cbranch_scc1 K_hq_spin
        """)
        S.e(f"ds_write_b32 v{U+1}, v{U+2}\ns_branch K_hq_go", opt=True)
        S.e(f"""
        K_hq_spin:
        s_sleep 1
        ds_read_b32 v{U+2}, v{U+1}
        s_waitcnt lgkmcnt(0)
        v_readfirstlane_b32 {t1}, v{U+2}
        s_cmp_eq_u32 {t1}, 0
        s_cbranch_scc1 K_hq_spin
        """, opt=True)
        S.e("K_hq_go:")
        st(S, "kvrdy")
        S.e(f"s_lshl_b32 {t0}, s{S_HEAD}, 16\ns_add_u32 {t0}, {t0}, {KVP_OFF}")
        KL = 20
        for i in range(8):
            for e in range(2):
                S.e(f"buffer_load_dwordx4 {vr(KL + 8*i + 4*e)}, v{KO}, {sq(S_WS)}, {t0} offen offset:{e*256} sc1")
            if i < 7: S.e(f"s_add_u32 {t0}, {t0}, 8192")
        for step in (1, 2, 4):
            for i in range(0, 8, 2*step):
                for j in range(8): S.e(f"v_add_f32 v{KL+8*i+j}, v{KL+8*i+j}, v{KL+8*(i+step)+j}")
        for j in range(4): S.e(f"v_cvt_pk_bf16_f32 v{KL+8+j}, v{KL+2*j}, v{KL+2*j+1}")
        S.e(f"ds_write_b128 v{U}, {vr(KL+8)}")
        S.wait_lgkm(); S.e("s_barrier")
        st(S, "B4")
    else:
        adma(0, 6)
        X = 20; KA = 4; KB = 10
        S.e(f"""
        v_lshrrev_b32 v{X}, 4, v{V_L}
        v_bfe_u32 v{X+1}, v{V_L}, 2, 2
        v_lshl_add_u32 v{X}, v{X}, 3, v{X+1}
        v_bfe_u32 v{X+2}, v{V_L}, 1, 1
        s_lshl_b32 {t0}, s{S_H}, 1
        v_add_u32 v{X+4}, {t0}, v{X+2}
        v_xor_b32 v{X+4}, v{X+4}, v{X+1}
        v_lshlrev_b32 v{X+3}, 7, v{X}
        v_lshl_add_u32 v{X+3}, v{X+4}, 4, v{X+3}
        v_and_b32 v{X+5}, 1, v{V_L}
        v_lshl_add_u32 v{KA}, v{X+5}, 3, v{X+3}
        v_add_u32 v{KA}, {PKO}, v{KA}
        v_xor_b32 v{KA+1}, 64, v{KA}
        v_lshrrev_b32 v{X+4}, 1, v{X+1}
        v_xor_b32 v{X+4}, v{X+4}, v{X+2}
        v_lshlrev_b32 v{X+3}, 6, v{X}
        v_lshl_add_u32 v{X+3}, v{X+4}, 4, v{X+3}
        v_lshl_add_u32 v{KB}, v{X+5}, 3, v{X+3}
        v_add_u32 v{KB}, {VVO}, v{KB}
        v_xor_b32 v{KB+1}, 32, v{KB}
        """)
        for rg in (1, 2):
            for k in range(2):
                S.e(f"v_add_u32 v{KA+2*rg+k}, {rg*3*REG2}, v{KA+k}\nv_add_u32 v{KB+2*rg+k}, {rg*3*REG2}, v{KB+k}")
        S.e(f"""
        s_lshl_b32 {t4}, s{S_HEAD}, 3
        s_add_u32 {t4}, {t4}, s{S_MT}
        s_lshl_b32 {t4}, {t4}, 2
        s_add_u32 {t4}, {t4}, s{S_H}
        s_lshl_b32 {t4}, {t4}, 11
        s_add_u32 {t4}, {t4}, {KVP_OFF}
        """)
        S.e("s_barrier")
        st(S, "B2")
        FB = 32; KD = 24
        for kk in range(8):
            b = FB + 12 * kk; rg = kk // 3; ro = (kk % 3) * REG2
            for e in range(2):
                S.e(f"ds_read_b64_tr_b16 {vr(b + 2*e, 2)}, v{KA + 2*rg + e} offset:{ro + e*512}")
                for dh in range(2):
                    S.e(f"ds_read_b64_tr_b16 {vr(b + 4 + 4*dh + 2*e, 2)}, v{KB + 2*rg + (e ^ dh)} offset:{ro + e*256}")
        for kk in range(8):
            b = FB + 12 * kk
            for dh in range(2):
                S.e(f"{MF16} {vr(KD + 4*dh)}, {vr(b)}, {vr(b + 4 + 4*dh)}, {'0' if kk == 0 else vr(KD + 4*dh)}")
        for dh in range(2):
            S.e(f"buffer_store_dwordx4 {vr(KD + 4*dh)}, v{V_L16}, {sq(S_WS)}, {t4} offen offset:{dh*1024} sc1", tag="kvst")
        st(S, "kvst")
        S.extend(signal("kvst", 0, "kv", "K_hkv_nosig", 4, 5, 6, 3))
        S.e(f"""
        K_hkv_spin:
        s_sleep 1
        ds_read_b32 v6, v4
        s_waitcnt lgkmcnt(0)
        v_readfirstlane_b32 {t1}, v6
        s_cmp_lt_u32 {t1}, 4
        s_cbranch_scc1 K_hkv_spin
        """)
        adma(6, 9)
        S.wait_vm("a1"); S.e("s_barrier")
        st(S, "B3")
        S.e(f"s_cmp_ge_u32 s2, 224\ns_cbranch_scc1 K_h{typ}_fin")
    S.extend(poll(f"K_h{typ}_ph", "h", V_TMP, 19, who=8))
    S.e("s_barrier")
    st(S, "B5")
    S.extend(poll(f"K_h{typ}_po", "o", V_TMP, 19, who=8))
    S.e("s_barrier")
    st(S, "B6")
    S.e("s_barrier")
    S.e(f"K_h{typ}_fin:")
    st(S, "end")
    st.flush(S, sq(S_WS), ST_OFF, 24, 12)
    S.e("s_endpgm")
    return S
def compute_head():
    S = Stream(); T = PT
    S.e(f"""
    s_lshl_b32 {t0}, s{S_MT}, 3
    s_add_u32 {t0}, {t0}, s3
    s_mul_i32 s{S_HFB}, {t0}, {NKS*1024}
    s_mul_i32 s{S_AREA}, s3, {AREA}
    s_mul_i32 {t2}, s{S_SROW}, 896
    v_cmp_gt_u32_e64 {M2}, 56, v{V_L}
    v_mov_b32 v{T+2}, 0x7f000000
    v_cndmask_b32_e64 v{T+2}, v{T+2}, v{V_L16}, {M2}
    s_waitcnt lgkmcnt(0)
    """)
    srd(S, S_X, 4, 2048 * 896)
    S.e(f"buffer_load_dwordx4 {vr(STV)}, v{T+2}, {sq(S_X)}, {t2} offen", tag="strow")
    srd(S, S_WS, 22, WS_SIZE); srd(S, S_DBG, 20, 256); srd(S, S_WD, 18, 1792 * 896); srd(S, S_WO, 10, 448 * 896)
    S.e(f"s_mov_b32 s{S_OUT+2}, {2048*896}\ns_mov_b32 s{S_OUT+3}, 0x20000")
    S.e(f"""
    s_lshl_b32 s{S_U0}, s{S_U0}, 5
    s_add_u32 s{S_U0}, s{S_U0}, s{S_HFB}
    s_lshl_b32 s{S_U12}, s{S_U12}, 5
    s_add_u32 s{S_U12}, s{S_U12}, s{S_HFB}
    v_lshrrev_b32 v{T+3}, 5, v{V_L}
    v_and_b32 v{T+5}, 31, v{V_L}
    v_bfe_u32 v{T+6}, v{V_L}, 1, 3
    v_xor_b32 v{T+6}, v{T+6}, v{T+3}
    v_lshlrev_b32 v{T+5}, 7, v{T+5}
    v_lshl_add_u32 v{T+5}, v{T+6}, 4, v{T+5}
    v_add_u32 v{V_AX}, s{S_AREA}, v{T+5}
    v_xor_b32 v{V_AX+1}, 32, v{V_AX}
    v_xor_b32 v{V_AX+2}, 64, v{V_AX}
    v_xor_b32 v{V_AX+3}, 0x60, v{V_AX}
    v_add_u32 v{V_CSA}, {CSP}, v{V_L16}
    v_bfe_u32 v{T+1}, v{V_L}, 2, 2
    v_lshl_add_u32 v{T+9}, v{T+3}, 2, v{T+1}
    v_lshlrev_b32 v{T+9}, 6, v{T+9}
    v_and_b32 v{T+10}, 1, v{V_L}
    v_lshl_add_u32 v{T+9}, v{T+10}, 5, v{T+9}
    v_bfe_u32 v{T+10}, v{V_L}, 1, 1
    v_bfe_u32 v{T+4}, v{V_L}, 4, 1
    v_lshl_add_u32 v{T+10}, v{T+4}, 1, v{T+10}
    v_lshl_add_u32 v{T+9}, v{T+10}, 3, v{T+9}
    v_add_u32 v{V_PHA}, {WPHI}, v{T+9}
    v_mov_b32 v{T+9}, {CNT}
    ds_write_b32 v{T+9}, v{V_Z}
    ds_write_b32 v{T+9}, v{V_Z} offset:4
    ds_write_b32 v{T+9}, v{V_Z} offset:8
    ds_write_b32 v{T+9}, v{V_Z} offset:12
    """)
    U = PT
    for j in range(4): S.e(f"v_lshlrev_b32 v{U+2*j}, 16, v{STV+j}\nv_and_b32 v{U+2*j+1}, 0xffff0000, v{STV+j}")
    S.e(f"""
    v_add_f32 v{U+8}, v{U}, v{U+1}
    v_add_f32 v{U+9}, v{U+2}, v{U+3}
    v_add_f32 v{U+10}, v{U+4}, v{U+5}
    v_add_f32 v{U+11}, v{U+6}, v{U+7}
    v_add_f32 v{U+8}, v{U+8}, v{U+9}
    v_add_f32 v{U+10}, v{U+10}, v{U+11}
    v_add_f32 v{U+8}, v{U+8}, v{U+10}
    """)
    wave_sum(S, U + 8, U + 9)
    S.e(f"v_mul_f32 v{U+8}, {f32(1/448)}, v{U+8}")
    for j in range(8): S.e(f"v_sub_f32 v{U+j}, v{U+j}, v{U+8}")
    S.e(f"v_mul_f32 v{U+9}, v{U}, v{U}\nv_mul_f32 v{U+10}, v{U+1}, v{U+1}")
    for j in range(2, 8): S.e(f"v_fmac_f32 v{U+9+(j&1)}, v{U+j}, v{U+j}")
    S.e(f"v_add_f32 v{U+9}, v{U+9}, v{U+10}\nv_cndmask_b32_e64 v{U+9}, 0, v{U+9}, {M2}")
    wave_sum(S, U + 9, U + 10)
    S.e(f"v_mul_f32 v{U+9}, {f32(1/448)}, v{U+9}")
    bf16r(S, U + 9, f"v{U+9}")
    S.e(f"v_add_f32 v{U+9}, {f32(1e-5)}, v{U+9}")
    bf16r(S, U + 9, f"v{U+9}")
    S.e(f"v_sqrt_f32 v{U+9}, v{U+9}")
    bf16r(S, STV + 1, f"v{U+9}")
    S.e(f"""
    v_cvt_pk_bf16_f32 v{STV}, -v{U+8}, -v{U+8}
    s_lshl_b32 {t0}, s{S_SROW}, 3
    s_add_u32 {t0}, {t0}, {STATS_OFF}
    s_mov_b64 exec, 1
    """)
    S.e(f"buffer_store_dwordx2 {vr(STV, 2)}, v{V_Z}, {sq(S_WS)}, {t0} offen sc1", tag="stst")
    S.e(f"s_mul_i32 {t0}, s2, {MB_STRIDE}\ns_lshl_b32 {t1}, s3, 3\ns_add_u32 {t0}, {t0}, {t1}\ns_add_u32 {t0}, {t0}, {MB_OFF}\nv_mov_b32 v{STV+2}, 0\nv_mov_b32 v{STV+3}, 0")
    S.e(f"buffer_store_dwordx2 {vr(STV+2, 2)}, v{V_Z}, {sq(S_WS)}, {t0} offen sc1", tag="stst")
    S.e("s_mov_b64 exec, -1")
    S.e(f"s_cmp_eq_u32 s{S_TYPE}, 1\ns_cbranch_scc1 K_kv")
    return S


def compute(typ):
    q = typ == "q"
    S = Stream(); T = PT
    S.e(f"K_{typ}:")
    st = Stamper(STAMPR); st.n = 1; st.names = ["start"]
    tile_addrs(S, typ, V_AT, T)
    p2_ids(S)
    pend = []
    def ABn(n): return AB if n % 2 == 1 else SC + 8
    def a_read(n, t):
        c, s = n >> 2, n & 3
        for e in range(2):
            a, imm = tile_read_args(typ, t, s, e)
            S.e(f"ds_read_b64_tr_b16 {vr(ABn(n) + 4*t + 2*e, 2)}, v{V_AT+a} offset:{(c % 3)*WS_ + imm}")
    def x_read(n):
        c, s = n >> 2, n & 3
        S.e(f"ds_read_b128 {vr(XB + 4*(n & 1))}, v{V_AX+s} offset:{(c % 3) * 4096}")
    def kstep(n):
        if n + 1 < 28:
            x_read(n + 1); a_read(n + 1, 0); a_read(n + 1, 1)
        for t in range(5):
            S.e(f"{MF} {vr(ACC + 16*t, 16)}, {vr(ABn(n) + 4*t)}, {vr(XB + 4*(n & 1))}, {'0' if n == 0 else vr(ACC + 16*t, 16)}")
            if n + 1 < 28 and t + 2 < 5: a_read(n + 1, t + 2)
            if pend: S.extend(pend.pop(0))
    S.wait_lgkm(); S.e("s_barrier")
    st(S, "bar0")
    x_read(0)
    for t in range(5): a_read(0, t)
    for c in range(7):
        S.comment(f"chunk {c}")
        if c in (4,): st(S, f"chunk{c}")
        n = 4 * c
        if c == 1: pend.append(signal("stst", 4, "init", f"K_{typ}_nosigst", SC + 4, SC + 5, SC + 6, 7))
        kstep(n); kstep(n + 1); kstep(n + 2)
        S.wait_lgkm(); S.e("s_barrier")
        if c == 5:
            G = Stream()
            G.e(f"""
            v_and_b32 v{V_TMP}, 31, v{V_L}
            v_lshlrev_b32 v{V_TMP}, 3, v{V_TMP}
            s_lshl_b32 {t0}, s{S_MT}, 3
            s_add_u32 {t0}, {t0}, s3
            s_lshl_b32 {t0}, {t0}, 8
            s_add_u32 {t0}, {t0}, {STATS_OFF}
            buffer_load_dwordx2 {vr(V_RINV, 2)}, v{V_TMP}, {sq(S_WS)}, {t0} offen sc1
            """)
            pend.append(G)
        if c == 6:
            CR = SC + 8
            for t in range(5): S.e(f"ds_read_b128 {vr(CR + 4*t)}, v{V_CSA} offset:{t*1024}")
            stats_consts(S)
        kstep(n + 3)
    st(S, "S1")
    WPF = XB; E = AB; QB = E + 8; TT = 4; GT = SC; GT2 = SC + 12
    A0 = ACC
    S.e(f"{MF} {vr(ACC,16)}, {vr(CR)}, {vr(BP)}, {vr(ACC,16)}")
    for te in range(4): S.e(f"ds_read_b64_tr_b16 {vr(WPF + 2*te, 2)}, v{V_PHA} offset:{te * 512}")
    for t in range(1, 5): S.e(f"{MF} {vr(ACC + 16*t,16)}, {vr(CR + 4*t)}, {vr(BP)}, {vr(ACC + 16*t,16)}")
    S.e(f"s_mul_i32 s{S_AREA}, s3, {REG2}")
    if not q:
        W = SC + 28; X = 4
        S.e(f"""
        v_and_b32 v{X}, 31, v{V_L}
        v_lshrrev_b32 v{X+1}, 5, v{V_L}
        v_lshlrev_b32 v{X+1}, 1, v{X+1}
        v_bfe_u32 v{X+2}, v{V_L}, 1, 2
        v_xor_b32 v{X+2}, v{X+2}, v{X+1}
        v_lshlrev_b32 v{X+3}, 6, v{X}
        v_lshl_add_u32 v{X+3}, v{X+2}, 4, v{X+3}
        s_add_u32 {t0}, s{S_AREA}, {VVO}
        v_add_u32 v9, {t0}, v{X+3}
        v_xor_b32 v10, 16, v9
        v_and_b32 v{X+3}, 7, v{V_L}
        v_xor_b32 v{X+1}, v{X+1}, v{X+3}
        v_lshlrev_b32 v{X}, 7, v{X}
        v_lshl_add_u32 v{X}, v{X+1}, 4, v{X}
        s_add_u32 {t0}, s{S_AREA}, {PKO}
        v_add_u32 v{W}, {t0}, v{X}
        v_xor_b32 v{W+1}, 16, v{W}
        v_xor_b32 v{W+2}, 64, v{W}
        v_xor_b32 v{W+3}, 0x50, v{W}
        """)
    for i in range(16): S.e(f"v_mul_f32 v{A0+i}, v{A0+i}, v{V_RINV}")
    for i in range(8): S.e(f"v_cvt_pk_bf16_f32 v{QB+i}, v{A0+2*i}, v{A0+2*i+1}")
    S.e(f"{MF} {vr(A0,16)}, {vr(WPF)}, {vr(QB)}, 0\n{MF} {vr(A0,16)}, {vr(WPF+4)}, {vr(QB+4)}, {vr(A0,16)}")
    if q:
        geglu(S, ACC + 16, GT, S_U0, 0)
        geglu(S, ACC + 32, GT2, S_U0, 1)
        geglu(S, ACC + 48, GT, S_U0, 2)
        geglu(S, ACC + 64, GT2, S_U0, 3)
        st(S, "ffn")
        softmax14(S, A0, E, TT)
    else:
        A1 = ACC + 16
        for i in range(16): S.e(f"v_mul_f32 v{A1+i}, v{A1+i}, v{V_RINV}")
        for i in range(8): S.e(f"v_cvt_pk_bf16_f32 v{A1+i}, v{A1+2*i}, v{A1+2*i+1}")
        S.e(f"""
        v_mov_b32 v{A1+8}, 0x3f80
        v_cndmask_b32_e64 v{A1+6}, v{A1+6}, v{A1+8}, {HHM}
        ds_write_b128 v9, {vr(A1)}
        ds_write_b128 v10, {vr(A1+4)}
        """)
        softmax14(S, A0, E, TT)
        for k in range(4): S.e(f"ds_write_b128 v{W+k}, {vr(E+4*k)}")
        S.wait_lgkm(); S.e("s_barrier")
        st(S, "B2")
        geglu(S, ACC + 32, GT, S_U0, 0)
        geglu(S, ACC + 48, GT2, S_U12, 0)
        geglu(S, ACC + 64, GT, S_U12, 1)
    V_WD, V_WOo, V_WOM, V_B0, V_B1, V_A0, V_A1, V_O = 4, 5, 6, 7, 8, 9, 10, 11
    TP = 56
    p2_a_voffsets(S, V_WD, V_WOo, V_WOM, TP)
    S.e(f"""
    s_and_b32 {t3}, s3, 1
    s_bfe_u32 {t4}, s3, 0x10001
    s_lshr_b32 {t5}, s3, 2
    s_lshl_b32 {t0}, s{S_M64}, 1
    s_add_u32 {t0}, {t0}, {t3}
    s_mul_i32 {t1}, {t0}, {NKS*1024}
    v_add_u32 v{V_B0}, {t1}, v{V_L16}
    s_xor_b32 {t1}, {t0}, 1
    s_mul_i32 {t1}, {t1}, {NKS*1024}
    v_add_u32 v{V_B1}, {t1}, v{V_L16}
    v_bfe_u32 v{TP}, v{V_L}, 2, 2
    v_lshrrev_b32 v{TP+1}, 5, v{V_L}
    v_lshl_add_u32 v{TP+2}, v{TP+1}, 2, v{TP}
    v_lshlrev_b32 v{TP+2}, 7, v{TP+2}
    v_lshrrev_b32 v{TP}, 1, v{TP}
    v_xor_b32 v{TP}, {t4}, v{TP}
    v_lshl_add_u32 v{TP+2}, v{TP}, 6, v{TP+2}
    v_and_b32 v{TP}, 1, v{V_L}
    v_lshl_add_u32 v{TP+2}, v{TP}, 5, v{TP+2}
    v_bfe_u32 v{TP}, v{V_L}, 1, 1
    v_bfe_u32 v{TP+3}, v{V_L}, 4, 1
    v_xor_b32 v{TP+3}, {t5}, v{TP+3}
    v_lshl_add_u32 v{TP}, v{TP+3}, 1, v{TP}
    v_lshl_add_u32 v{TP+2}, v{TP}, 3, v{TP+2}
    v_add_u32 v{V_A0}, s{S_AREA}, v{TP+2}
    v_xor_b32 v{V_A1}, 64, v{V_A0}
    v_and_b32 v{TP}, 31, v{V_L}
    s_lshl_b32 {t0}, {t0}, 5
    v_add_u32 v{TP}, {t0}, v{TP}
    v_mul_u32_u24 v{TP}, 896, v{TP}
    v_lshlrev_b32 v{TP+1}, 5, v{TP+1}
    s_lshl_b32 {t0}, s{S_N64}, 7
    s_lshl_b32 {t1}, {t4}, 6
    s_add_u32 {t0}, {t0}, {t1}
    s_lshl_b32 {t1}, {t5}, 4
    s_add_u32 {t0}, {t0}, {t1}
    v_add3_u32 v{V_O}, v{TP}, v{TP+1}, {t0}
    s_mul_i32 s{S_XROW}, s3, {14*16*896}
    s_mul_i32 s{S_D0L}, s3, {2*28*896}
    s_mul_i32 s{S_U0}, s3, {14*1024}
    s_lshl_b32 s{S_U12}, s3, 12
    s_add_u32 s{S_U12}, s{S_U12}, {112*1024 - 14*1024}
    """)
    st(S, "p1end")
    S.extend(signal("hst", 8, "h", f"K_{typ}_nosigh", TP, TP + 1, TP + 2, 7))
    S.e("s_barrier")
    st(S, "B3")
    if not q: S.e(f"s_cmp_ge_u32 s2, 224\ns_cbranch_scc1 K_{typ}_fin")
    AC2 = 104
    blocks = [16 + 8*i for i in range(11)]
    bfree = [32, 40, 48, 24]
    ablk = {i: b for i, b in enumerate([16, 56, 64, 72, 80, 88, 96])}
    def a_tr(i, blk):
        sl = i if i < 9 else (i - 9 if i < 16 else i - 9)
        for ni in range(2):
            for e in range(2):
                S.e(f"ds_read_b64_tr_b16 {vr(blk + 4*ni + 2*e, 2)}, v{V_A0+ni} offset:{sl*2048 + e*1024}", tag=f"ar{i}")
    def a_dma(i):
        sl = i - 9
        for u in range(2):
            S.e(f"s_add_u32 m0, s{S_AREA}, {sl*2048 + u*1024}")
            if i < 14:
                S.e(f"s_add_u32 {tm}, s{S_XROW}, {(16*i + 8*u)*896}")
                S.e(f"buffer_load_dwordx4 v{V_WD}, {sq(S_WD)}, {tm} offen lds", tag=f"a{i}")
            else:
                hd, t = (i - 14) >> 1, (i - 14) & 1
                S.e(f"s_add_u32 {tm}, s{S_D0L}, {(28*hd + 8*t + 4*u)*896}")
                S.e(f"buffer_load_dwordx4 v{V_WOM if (t and u) else V_WOo}, {sq(S_WO)}, {tm} offen lds", tag=f"a{i}")
    for i in range(7): a_tr(i, ablk[i])
    S.wait_lgkm()
    for i in range(9, 16): a_dma(i)
    if q:
        S.e(f"v_add_u32 v{V_TMP}, {KVF}, v{V_L16}")
        st(S, "w4")
        S.e("s_barrier")
        st(S, "B4")
        KF = AC2; O = AC2 + 16; G2 = AC2 + 32
        for k in range(4): S.e(f"ds_read_b128 {vr(KF + 4*k)}, v{V_TMP} offset:{k*1024}")
        for k in range(4): S.e(f"{MF} {vr(O,16)}, {vr(KF + 4*k)}, {vr(E + 4*k)}, {'0' if k == 0 else vr(O,16)}")
        bf16r(S, G2, f"v{O+14}")
        S.e(f"v_add_f32 v{G2}, {f32(1e-6)}, v{G2}")
        bf16r(S, G2, f"v{G2}")
        S.e(f"v_rcp_f32 v{G2}, v{G2}")
        for i in range(7): S.e(f"v_cvt_pk_bf16_f32 v{G2+1+i}, v{O+2*i}, v{O+2*i+1}")
        for i in range(7): S.e(f"v_lshlrev_b32 v{O+2*i}, 16, v{G2+1+i}\nv_and_b32 v{O+2*i+1}, 0xffff0000, v{G2+1+i}")
        for i in range(14): S.e(f"v_mul_f32 v{O+i}, v{O+i}, v{G2}")
        for i in range(7): S.e(f"v_cvt_pk_bf16_f32 v{KF+i}, v{O+2*i}, v{O+2*i+1}")
        S.e(f"""
        v_mov_b32 v{KF+7}, 0
        s_lshl_b32 {t0}, s{S_HEAD}, 11
        s_add_u32 {t0}, {t0}, s{S_HFB}
        s_add_u32 {t0}, {t0}, {112*1024}
        """)
        S.e(f"buffer_store_dwordx4 {vr(KF)}, v{V_L16}, {sq(S_WS)}, {t0} offen sc1\nbuffer_store_dwordx4 {vr(KF+4)}, v{V_L16}, {sq(S_WS)}, {t0} offen offset:1024 sc1", tag="ost")
        S.extend(signal("ost", 12, "o", "K_q_nosigo", G2, G2 + 1, G2 + 2, 7))
    st(S, "w5")
    S.e("s_barrier")
    st(S, "B5")
    bblk = {}
    nextb = [0]
    def b_load():
        i = nextb[0]
        if i >= 18 or not bfree: return False
        if i == 14:
            S.e("s_barrier")
        blk = bfree.pop(0); bblk[i] = blk
        S.e(f"s_add_u32 {tm}, s{S_U0 if i < 14 else S_U12}, {i*1024}")
        for mi in range(2):
            S.e(f"buffer_load_dwordx4 {vr(blk + 4*mi)}, v{V_B0+mi}, {sq(S_WS)}, {tm} offen sc1")
        nextb[0] += 1
        return True
    OLAG = int(OPT.get("olag", 4))
    while b_load(): pass
    for i in range(18):
        if i + 1 < 18 and (i + 1) not in ablk:
            ablk[i + 1] = afree.pop(0)
            if i + 1 >= 9: S.wait_vm(f"a{i+1}")
            a_tr(i + 1, ablk[i + 1])
        for lq in range(4):
            ni, mi = lq >> 1, lq & 1
            S.e(f"{MF} {vr(AC2 + 16*lq, 16)}, {vr(ablk[i] + 4*ni)}, {vr(bblk[i] + 4*mi)}, {'0' if i == 0 else vr(AC2 + 16*lq, 16)}")
        if i == 0: afree = []
        bfree.append(bblk[i])
        if i in (4, 5) or i >= 7: afree.append(ablk[i])
        else: bfree.append(ablk[i])
        if i in (8, 9): a_dma(i + 8)
        while nextb[0] < 18 and (nextb[0] < 14 or nextb[0] <= i + OLAG) and b_load(): pass
        if i == 13: S.e(f"buffer_load_dwordx4 {vr(12)}, v{V_O}, {sq(S_X)}, 0 offen")
    st(S, "mm")
    S.e(f"v_add_u32 v{V_WD}, s{S_AREA}, v{V_L16}")
    def piece(pp): lq = (pp & 1) | (((pp >> 1) & 1) << 1); return AC2 + 16*lq + 8*(pp >> 2)
    for pp in range(1, 8):
        for j in range(2): S.e(f"ds_write_b128 v{V_WD}, {vr(piece(pp) + 4*j)} offset:{(pp-1)*2048 + j*1024}")
    for pp in range(1, 8):
        S.e(f"s_xor_b32 {t0}, s3, {pp}\ns_mul_i32 {t0}, {t0}, {REG2}\nv_add_u32 v{16+pp}, {t0}, v{V_L16}")
    for j in range(4): S.e(f"v_lshlrev_b32 v{24+2*j}, 16, v{12+j}\nv_and_b32 v{25+2*j}, 0xffff0000, v{12+j}")
    for j in range(8): S.e(f"v_add_f32 v{AC2+j}, v{AC2+j}, v{24+j}")
    S.wait_lgkm(); S.e("s_barrier")
    R = 32
    for pp in range(1, 8):
        for j in range(2): S.e(f"ds_read_b128 {vr(R + 8*(pp-1) + 4*j)}, v{16+pp} offset:{(pp-1)*2048 + j*1024}")
    for j in range(8): S.e(f"v_add_f32 v{AC2+j}, v{AC2+j}, v{R+j}")
    for j in range(8): S.e(f"v_add_f32 v{R+8+j}, v{R+8+j}, v{R+16+j}")
    for j in range(8): S.e(f"v_add_f32 v{R+24+j}, v{R+24+j}, v{R+32+j}")
    for j in range(8): S.e(f"v_add_f32 v{R+40+j}, v{R+40+j}, v{R+48+j}")
    for j in range(8): S.e(f"v_add_f32 v{AC2+j}, v{AC2+j}, v{R+8+j}")
    for j in range(8): S.e(f"v_add_f32 v{R+24+j}, v{R+24+j}, v{R+40+j}")
    for j in range(8): S.e(f"v_add_f32 v{AC2+j}, v{AC2+j}, v{R+24+j}")
    for j in range(4): S.e(f"v_cvt_pk_bf16_f32 v{24+j}, v{AC2+2*j}, v{AC2+2*j+1}")
    S.e(f"buffer_store_dwordx4 {vr(24)}, v{V_O}, {sq(S_OUT)}, 0 offen")
    S.e(f"K_{typ}_fin:")
    st(S, "end")
    st.flush(S, sq(S_WS), ST_OFF, 104, 12)
    S.e("s_endpgm")
    return S

def gen_all():
    pro = list(prologue()); ch = list(compute_head()); hh = list(helper_head())
    out = []
    def part(prefix, body, label):
        full = finalize(prefix + list(body))
        idx = next(i for i, x in enumerate(full) if x.text == label) if label else 0
        return full[idx:]
    out += part(pro + ch, compute("q"), None)
    out += part(pro + ch, compute("kv"), "K_kv:")
    out += part(pro + hh, helper("q"), "K_helper:")
    out += part(pro + hh, helper("kv"), "K_hkv:")
    out.append(I("K_END:")); out.append(I("s_endpgm"))
    return out

def build(path):
    k = gen_all()
    print("K", stats(k), file=sys.stderr)
    ref = open(f"cdna_kernels/{NAME}.s.ref").read().split("\n")
    hdr = [l for l in ref if l.startswith(";") and "@launch" not in l and "Override" not in l and "grid=ceil" not in l]
    txt = "\n".join(hdr) + "\n"
    txt += f"; @launch grid=(256,1,1) block=(768,1,1) lds=163840\n"
    txt += '.amdgcn_target "amdgcn-amd-amdhsa--gfx950"\n.text\n'
    txt += f".globl {K1}\n.p2align 8\n.type {K1},@function\n{K1}:\n" + render(k)
    txt += f""".section .rodata,"a"
.p2align 6
.amdhsa_kernel {K1}
  .amdhsa_next_free_vgpr {NVG1}
  .amdhsa_next_free_sgpr 102
  .amdhsa_accum_offset {NVG1}
  .amdhsa_group_segment_fixed_size 0
  .amdhsa_kernarg_size 88
  .amdhsa_user_sgpr_count 2
  .amdhsa_user_sgpr_kernarg_segment_ptr 1
  .amdhsa_system_sgpr_workgroup_id_x 1
.end_amdhsa_kernel
"""
    open(path, "w").write(txt)

if __name__ == "__main__":
    for a in sys.argv[2:]:
        k, v = a.split("=")
        OPT[k] = {"True": True, "False": False}.get(v, v.replace("_", " ") if k.endswith("flags") else v)
    build(sys.argv[1] if len(sys.argv) > 1 else f"cdna_kernels/{NAME}.s")
```

```python
import sys, os, struct
sys.path.insert(0, os.path.dirname(os.path.abspath(__file__)))
from dsl import *

NAME = "parallel_sum__linear_kernel_hedgehog__geglu_ffn__prompt"
K1 = NAME + "_kernel"
K2 = "k2_kernel"

HF_OFF = 0
KVP_OFF = 0xB00000
PHF_OFF = 0x1000000
WS_SIZE = 0x1400000
NKS = 144

OPT = dict(mimic_ffn=False, hf_flags=" sc1", k2d="8", prefetch=True)

def f32(x): return "0x%08x" % struct.unpack("<I", struct.pack("<f", x))[0]
def vr(a, n=4): return f"v[{a}:{a+n-1}]"
def ar(a, n=4): return f"a[{a}:{a+n-1}]"
MF = "v_mfma_f32_32x32x16_bf16"
MF16 = "v_mfma_f32_16x16x32_bf16"

def srd(S, d, lo, nbytes):
    S.e(f"s_mov_b32 s{d}, s{lo}\ns_mov_b32 s{d+1}, s{lo+1}\ns_mov_b32 s{d+2}, {nbytes}\ns_mov_b32 s{d+3}, 0x20000")

STAMP_REGS = [92, 94, 96, 98, 100, 28, 30, 4, 6, 8, 10, 12, 14, 16, 18, 20]
ST_OFF = 0xD00000
class Stamper:
    def __init__(self, regs=STAMP_REGS): self.n = 0; self.names = []; self.regs = regs
    def __call__(self, S, name, fine=False):
        if not OPT.get("stamps"): return
        if (OPT.get("stamps") == "fine") != fine and name != "end": return
        r = self.regs[self.n]; self.n += 1; self.names.append(name)
        S.e(f"{'s_memtime' if fine else 's_memrealtime'} s[{r}:{r+1}]")
    def flush(self, S, srd_s, base, vtmp, nwaves):
        if not OPT.get("stamps"): return
        S.e("s_waitcnt lgkmcnt(0)")
        for i in range(self.n): S.e(f"v_mov_b32 v{vtmp+i}, s{self.regs[i]}")
        S.e(f"s_mul_i32 s88, s2, {nwaves*64}\ns_lshl_b32 s89, s3, 6\ns_add_u32 s88, s88, s89\ns_add_u32 s88, s88, {base}\nv_mov_b32 v0, 0\ns_mov_b64 exec, 1")
        for i in range(0, 16, 4): S.e(f"buffer_store_dwordx4 v[{vtmp+i}:{vtmp+i+3}], v0, {srd_s}, s88 offen offset:{i*4}")
        if OPT.get("dbgst"):
            Stamper.uid = getattr(Stamper, "uid", 0) + 1
            S.e(f"s_lshl_b32 s88, s2, 4\ns_add_u32 s88, s88, s3\ns_cmp_lg_u32 s88, {OPT['dbgst']}\ns_cbranch_scc1 DBGST{Stamper.uid}")
            for i in range(1, self.n): S.e(f"v_sub_u32 v{vtmp+i}, v{vtmp+i}, v{vtmp}", opt=True)
            for i in range(0, 16, 4): S.e(f"buffer_store_dwordx4 v[{vtmp+i}:{vtmp+i+3}], v0, s[44:47], 0 offen offset:{i*4}", opt=True)
            S.e(f"DBGST{Stamper.uid}:")
        print("stamps", self.names, file=sys.stderr)

AREA = 12288
W0 = 98304; WS_ = 20480
MISC = 159744
WPHI = MISC
CNT = MISC + 2048
STATS_OFF = 0xC00000
REG2 = 18432
CSP = 147456; KVF = 147456 + 5120
PKO = 12288; VVO = 16384
NVG1 = 168

V_L = 1; V_L16 = 2; V_Z = 3
V_AX = 4; V_AT = 8
V_CSA = 13; V_PHA = 14; V_TMP = 15
V_RINV, V_SD = 16, 17
V_C0, V_C1, V_S2 = 18, 19, 20
BP = 24
XB = 28; AB = 36; ACC = 56; SC = 136
PT = 136; STV = 152
S_PF, S_X, S_OUT, S_WG, S_WU, S_WS, S_DBG, S_WQ, S_D1, S_WD, S_WO = 12, 24, 28, 32, 36, 40, 44, 48, 52, 56, 60
S_MT, S_C4, S_HL, S_HEAD, S_TYPE, S_XROW, S_AREA, S_D0L, S_H = 64, 65, 66, 67, 68, 69, 70, 71, 72
S_ODD = 73
S_T = 74
S_HH = 80
S_HFB = 82
S_U0, S_U12 = 83, 84
S_M = 85
S_SROW = 86
S_G = 87
M1 = "s[88:89]"; M2 = "s[90:91]"
HHM = f"s[{S_HH}:{S_HH+1}]"
t0, t1, t2, t3, t4, t5 = [f"s{S_T+i}" for i in range(6)]
tm = f"s{S_M}"
S_M64, S_N64, S_MT2 = 65, 66, 73
def sq(d): return f"s[{d}:{d+3}]"
STAMPR = [92, 94, 96, 98, 100, 4, 6, 8, 10, 16, 18, 20, 22]
B_OWNMT = f"s_lshl_b32 {t2}, s{S_MT}, 5"
B_MT2 = f"s_lshl_b32 {t2}, s{S_MT2}, 5"
B_KV = f"s_lshl_b32 {t2}, s{S_HEAD}, 1\ns_add_u32 {t2}, {t2}, 1"

def bf16r(S, d, src):
    S.e(f"v_cvt_pk_bf16_f32 v{d}, {src}, {src}\nv_lshlrev_b32 v{d}, 16, v{d}")

def xhalf(S, op, x, t):
    S.e(f"v_mov_b32 v{t}, v{x}\nv_permlane32_swap_b32 v{t}, v{x}\n{op} v{x}, v{x}, v{t}")

def wave_sum(S, x, t):
    for m in ("quad_perm:[1,0,3,2]", "quad_perm:[2,3,0,1]", "row_half_mirror", "row_mirror"):
        S.e(f"v_add_f32_dpp v{x}, v{x}, v{x} {m} row_mask:0xf bank_mask:0xf")
    S.e(f"v_mov_b32 v{t}, v{x}\nv_permlane16_swap_b32 v{t}, v{x}\nv_add_f32 v{x}, v{x}, v{t}")
    xhalf(S, "v_add_f32", x, t)


MB_OFF = 0xE00000; MB_STRIDE = 4096 + 256
def signal(tag, cnt_off, kind, lab, A, B, Cc, last):
    G = Stream()
    if tag: G.wait_vm(*tag.split(","))
    G.e(f"""
    v_mov_b32 v{A}, {CNT + cnt_off}
    v_mov_b32 v{B}, 1
    s_mov_b64 exec, 1
    ds_add_rtn_u32 v{Cc}, v{A}, v{B}
    s_mov_b64 exec, -1
    v_readfirstlane_b32 {t1}, v{Cc}
    s_cmp_lg_u32 {t1}, {last}
    s_cbranch_scc1 {lab}
    """)
    if kind == "init":
        G.e(f"s_lshr_b32 {t2}, s{S_SROW}, 3\ns_mov_b64 exec, 1", opt=True)
        G.e(f"buffer_store_byte v{B}, v{V_Z}, {sq(S_DBG)}, {t2} offen sc1", opt=True)
    elif kind in ("h", "o"):
        G.e(f"""
        s_and_b32 {t1}, s{S_MT}, 3
        s_lshl_b32 {t1}, {t1}, 1
        s_lshr_b32 {t2}, s{S_MT}, 2
        s_add_u32 {t1}, {t1}, {t2}
        s_mul_i32 {t1}, {t1}, {MB_STRIDE}
        {f's_bfe_u32 {t2}, s{S_SROW}, 0x50003' if kind == 'h' else f's_add_u32 {t2}, s{S_HEAD}, 32'}
        s_add_u32 {t1}, {t1}, {t2}
        s_add_u32 {t1}, {t1}, {MB_OFF}
        v_mul_u32_u24 v{Cc}, {8*MB_STRIDE}, v{V_L}
        s_mov_b64 exec, 0xfffffff
        """, opt=True)
        G.e(f"buffer_store_byte v{B}, v{Cc}, {sq(S_WS)}, {t1} offen sc1", opt=True)
    else:
        G.e(f"""
        s_lshr_b32 {t1}, s{S_HEAD}, 2
        s_lshl_b32 {t1}, {t1}, 1
        s_and_b32 {t2}, s{S_HEAD}, 3
        s_lshl_b32 {t2}, {t2}, 6
        s_add_u32 {t1}, {t1}, {t2}
        s_mul_i32 {t1}, {t1}, {MB_STRIDE}
        s_add_u32 {t1}, {t1}, s{S_MT}
        s_add_u32 {t1}, {t1}, {MB_OFF + 48}
        v_and_b32 v{Cc}, 3, v{V_L}
        v_lshlrev_b32 v{Cc}, 3, v{Cc}
        v_lshrrev_b32 v{A}, 2, v{V_L}
        v_add_u32 v{Cc}, v{Cc}, v{A}
        v_mul_u32_u24 v{Cc}, {MB_STRIDE}, v{Cc}
        v_mov_b32 v{A}, {CNT + cnt_off}
        s_mov_b64 exec, 0xff
        """, opt=True)
        G.e(f"buffer_store_byte v{B}, v{Cc}, {sq(S_WS)}, {t1} offen sc1", opt=True)
    G.e(f"s_mov_b64 exec, -1", opt=True)
    G.e(f"{lab}:")
    return G
def poll(lab, kind, D, A, who=None):
    G = Stream()
    if who is not None: G.e(f"s_cmp_lg_u32 s3, {who}\ns_cbranch_scc1 {lab}_ok")
    if kind == "init":
        setup = f"v_lshlrev_b32 v{A}, 2, v{V_L}\ns_mov_b32 {t2}, 0\ns_mov_b32 {t4}, 0x01010101"
        ld = f"buffer_load_dword v{D}, v{A}, {sq(S_DBG)}, {t2} offen sc1"
        cmp = f"v_cmp_ne_u32_e64 {M1}, {t4}, v{D}"
    else:
        base, mask = {"h": (0, 7), "o": (32, 3), "kv": (48, 1)}[kind]
        setup = f"v_and_b32 v{A}, {mask}, v{V_L}\nv_lshlrev_b32 v{A}, 2, v{A}\ns_mul_i32 {t2}, s2, {MB_STRIDE}\ns_add_u32 {t2}, {t2}, {MB_OFF + base}\ns_mov_b32 {t4}, 0x01010101"
        ld = f"buffer_load_dword v{D}, v{A}, {sq(S_WS)}, {t2} offen sc1"
        cmp = f"v_cmp_ne_u32_e64 {M1}, {t4}, v{D}"
    G.e(f"""
    {setup}
    s_mov_b32 {t3}, 0
    {lab}_loop:
    {ld}
    s_waitcnt vmcnt(0)
    {cmp}
    s_add_u32 {t3}, {t3}, 1
    s_cmp_eq_u64 {M1}, 0
    s_cbranch_scc1 {lab}_ok
    s_sleep {OPT.get('sleep', 4) if kind != 'init' else 16}
    s_cmp_lt_u32 {t3}, 0x8000
    s_cbranch_scc1 {lab}_loop
    """, opt=True)
    G.e(f"{lab}_ok:")
    return G

def tile_addrs(S, typ, AT, T):
    R, C, HH, NH = T + 1, T + 2, T + 3, T + 4
    S.e(f"""
    v_lshrrev_b32 v{HH}, 5, v{V_L}
    v_bfe_u32 v{NH}, v{V_L}, 4, 1
    v_bfe_u32 v{R}, v{V_L}, 2, 2
    v_and_b32 v{C}, 3, v{V_L}
    v_lshl_add_u32 v{T+5}, v{HH}, 3, v{R}
    v_lshlrev_b32 v{T+6}, 6, v{T+5}
    v_lshl_add_u32 v{T+8}, v{NH}, 2, v{C}
    v_add_u32 v{T+8}, s{S_ODD}, v{T+8}
    v_and_b32 v{T+8}, 7, v{T+8}
    v_lshl_add_u32 v{T+8}, v{T+8}, 3, v{T+6}
    """)
    if typ == "q":
        S.e(f"""
        v_add_u32 v{AT}, {W0 + 16384}, v{T+8}
        v_lshrrev_b32 v{T+6}, 1, v{C}
        v_and_b32 v{T+7}, 2, v{R}
        v_xor_b32 v{T+6}, v{T+6}, v{T+7}
        v_lshl_add_u32 v{T+6}, v{NH}, 2, v{T+6}
        v_lshlrev_b32 v{T+7}, 7, v{T+5}
        v_lshl_add_u32 v{T+7}, v{T+6}, 4, v{T+7}
        v_and_b32 v{T+6}, 1, v{C}
        v_lshl_add_u32 v{T+7}, v{T+6}, 3, v{T+7}
        v_lshl_add_u32 v{T+7}, v{NH}, 13, v{T+7}
        v_add_u32 v{AT+1}, {W0}, v{T+7}
        v_xor_b32 v{AT+2}, 32, v{AT+1}
        v_xor_b32 v{AT+3}, 64, v{AT+1}
        v_xor_b32 v{AT+4}, 0x60, v{AT+1}
        """)
    else:
        S.e(f"""
        v_add_u32 v{AT}, {W0}, v{T+8}
        v_lshl_add_u32 v{T+7}, v{C}, 3, v{T+6}
        v_mul_u32_u24 v{T+8}, 1056, v{NH}
        v_add_u32 v{AT+1}, v{T+7}, v{T+8}
        v_add_u32 v{AT+1}, {W0 + 2048}, v{AT+1}
        v_xor_b32 v{AT+2}, 32, v{AT+1}
        v_lshlrev_b32 v{T+6}, 5, v{T+5}
        v_lshl_add_u32 v{T+6}, v{C}, 3, v{T+6}
        v_mul_u32_u24 v{T+7}, 2176, v{NH}
        v_add_u32 v{AT+3}, v{T+6}, v{T+7}
        v_add_u32 v{AT+3}, {W0 + 16384}, v{AT+3}
        v_xor_b32 v{AT+4}, 0x80, v{AT+3}
        """)

def tile_read_args(typ, t, s, e):
    if typ == "q":
        return (0, s*1024 + e*256) if t == 0 else (t, s*2048 + e*512)
    if t == 0: return (0, s*4096 + e*256)
    if t == 1: return (0, s*4096 + 1024 + e*256)
    if t == 2: return (3 + e, s*512)
    return (t - 2, s*4096 + e*256)

def geglu(S, a, T, unit_sgpr, unit_add):
    for i in range(8): S.e(f"v_mul_f32 v{T+i}, v{a+i}, v{a+i}")
    for i in range(8): S.e(f"v_fma_f32 v{T+i}, v{T+i}, v{V_C1}, v{V_C0}")
    for i in range(8): S.e(f"v_mul_f32 v{T+i}, v{T+i}, v{a+i}")
    for i in range(8): S.e(f"v_exp_f32 v{T+i}, v{T+i}")
    for i in range(8): S.e(f"v_mul_f32 v{a+i}, v{a+i}, v{a+8+i}")
    for i in range(8): S.e(f"v_fma_f32 v{T+i}, v{T+i}, v{V_S2}, v{V_S2}")
    for i in range(8): S.e(f"v_rcp_f32 v{T+i}, v{T+i}")
    for i in range(8): S.e(f"v_mul_f32 v{a+i}, v{a+i}, v{T+i}")
    for i in range(4): S.e(f"v_cvt_pk_bf16_f32 v{T+8+i}, v{a+2*i}, v{a+2*i+1}")
    S.e(f"s_add_u32 s{S_G}, s{unit_sgpr}, {unit_add * 1024}")
    S.e(f"buffer_store_dwordx4 {vr(T+8)}, v{V_L16}, {sq(S_WS)}, s{S_G} offen{OPT['hf_flags']}", tag="hst")


def softmax14(S, P, E, T):
    N = 14
    for i in range(7): S.e(f"v_cvt_pk_bf16_f32 v{E+i}, v{P+2*i}, v{P+2*i+1}")
    for i in range(7): S.e(f"v_lshlrev_b32 v{P+2*i}, 16, v{E+i}\nv_and_b32 v{P+2*i+1}, 0xffff0000, v{E+i}")
    L = T + 4
    S.e(f"v_mov_b32 v{L}, {f32(1.4426950408889634)}")
    MX, MN = T, T + 1
    S.e(f"v_max3_f32 v{MX}, v{P}, v{P+1}, v{P+2}\nv_min3_f32 v{MN}, v{P}, v{P+1}, v{P+2}")
    for i in range(3, 13, 2):
        S.e(f"v_max3_f32 v{MX}, v{MX}, v{P+i}, v{P+i+1}\nv_min3_f32 v{MN}, v{MN}, v{P+i}, v{P+i+1}")
    S.e(f"v_max_f32 v{MX}, v{MX}, v{P+13}\nv_min_f32 v{MN}, v{MN}, v{P+13}")
    S.e(f"v_mov_b32 v{T+2}, v{MX}\nv_mov_b32 v{T+3}, v{MN}\nv_permlane32_swap_b32 v{T+2}, v{MX}\nv_permlane32_swap_b32 v{T+3}, v{MN}")
    S.e(f"v_max_f32 v{MX}, v{MX}, v{T+2}\nv_min_f32 v{MN}, v{MN}, v{T+3}")
    S.e(f"v_mul_f32 v{MX}, v{MX}, v{L}\nv_mul_f32 v{MN}, v{MN}, v{L}")
    for i in range(N): S.e(f"v_fma_f32 v{E+i}, v{P+i}, v{L}, -v{MX}")
    for i in range(N): S.e(f"v_fma_f32 v{P+i}, -v{P+i}, v{L}, v{MN}")
    for i in range(N): S.e(f"v_exp_f32 v{E+i}, v{E+i}")
    for i in range(N): S.e(f"v_exp_f32 v{P+i}, v{P+i}")
    SP, SM = T, T + 1
    S.e(f"v_add_f32 v{SP}, v{E}, v{E+1}\nv_add_f32 v{T+2}, v{E+2}, v{E+3}\nv_add_f32 v{SM}, v{P}, v{P+1}\nv_add_f32 v{T+3}, v{P+2}, v{P+3}")
    for i in range(4, N, 2):
        S.e(f"v_add_f32 v{SP}, v{SP}, v{E+i}\nv_add_f32 v{T+2}, v{T+2}, v{E+i+1}\nv_add_f32 v{SM}, v{SM}, v{P+i}\nv_add_f32 v{T+3}, v{T+3}, v{P+i+1}")
    S.e(f"v_add_f32 v{SP}, v{SP}, v{T+2}\nv_add_f32 v{SM}, v{SM}, v{T+3}")
    S.e(f"v_mov_b32 v{T+2}, v{SP}\nv_mov_b32 v{T+3}, v{SM}\nv_permlane32_swap_b32 v{T+2}, v{SP}\nv_permlane32_swap_b32 v{T+3}, v{SM}")
    S.e(f"v_add_f32 v{SP}, v{SP}, v{T+2}\nv_add_f32 v{SM}, v{SM}, v{T+3}")
    S.e(f"v_rcp_f32 v{SP}, v{SP}\nv_rcp_f32 v{SM}, v{SM}")
    for i in range(N): S.e(f"v_mul_f32 v{E+i}, v{E+i}, v{SP}")
    for i in range(N): S.e(f"v_mul_f32 v{P+i}, v{P+i}, v{SM}")
    for i in range(7): S.e(f"v_cvt_pk_bf16_f32 v{E+i}, v{E+2*i}, v{E+2*i+1}")
    for i in range(7): S.e(f"v_cvt_pk_bf16_f32 v{E+8+i}, v{P+2*i}, v{P+2*i+1}")
    S.e(f"v_mov_b32 v{E+7}, 0\nv_mov_b32 v{E+15}, 0")


def stats_consts(S):
    S.e(f"""
    v_mov_b32 v{BP}, v{V_RINV}
    v_mov_b32 v{BP+1}, v{V_RINV}
    v_mov_b32 v{BP+2}, v{V_RINV}
    v_mov_b32 v{BP+3}, v{V_RINV}
    v_rcp_f32 v{V_RINV}, v{V_SD}
    v_mul_f32 v{V_S2}, v{V_SD}, v{V_SD}
    v_mul_f32 v{V_C0}, {f32(-2.302208198)}, v{V_RINV}
    v_mul_f32 v{V_C1}, v{V_RINV}, v{V_RINV}
    v_mul_f32 v{V_C1}, v{V_C1}, v{V_C0}
    v_mul_f32 v{V_C1}, {f32(0.044715)}, v{V_C1}
    """)


def prologue():
    S = Stream()
    S.e(f"""
    s_cmp_ge_u32 s2, 256
    s_cbranch_scc1 K_END
    {'s_memrealtime s[92:93]' if OPT.get('stamps') else ''}
    s_load_dwordx16 s[4:19], s[0:1], 0
    s_load_dwordx4 s[20:23], s[0:1], 72
    s_load_dwordx2 s[{S_OUT}:{S_OUT+1}], s[0:1], 64
    v_lshrrev_b32 v{PT}, 6, v0
    v_and_b32 v{V_L}, 63, v0
    v_readfirstlane_b32 s3, v{PT}
    v_lshlrev_b32 v{V_L16}, 4, v{V_L}
    v_mov_b32 v{V_Z}, 0
    s_and_b32 {t0}, s2, 7
    s_lshr_b32 {t1}, s2, 3
    s_and_b32 s{S_MT}, {t0}, 1
    s_lshl_b32 s{S_MT}, s{S_MT}, 2
    s_and_b32 {t2}, {t1}, 3
    s_add_u32 s{S_MT}, s{S_MT}, {t2}
    s_lshr_b32 s{S_C4}, {t0}, 1
    s_lshr_b32 {t1}, {t1}, 2
    s_and_b32 s{S_TYPE}, {t1}, 1
    s_lshr_b32 s{S_HL}, {t1}, 1
    s_lshl_b32 s{S_HEAD}, s{S_C4}, 2
    s_add_u32 s{S_HEAD}, s{S_HEAD}, s{S_HL}
    s_and_b32 s{S_ODD}, s{S_HEAD}, 1
    s_lshl_b32 {t2}, s{S_MT}, 2
    s_add_u32 {t2}, {t2}, s{S_C4}
    s_lshl_b32 {t2}, {t2}, 3
    s_add_u32 {t2}, {t2}, {t1}
    s_lshl_b32 {t2}, {t2}, 3
    s_and_b32 {t3}, s3, 7
    s_add_u32 s{S_SROW}, {t2}, {t3}
    s_mov_b32 s{S_HH}, 0
    s_mov_b32 s{S_HH+1}, -1
    s_mul_i32 {t0}, s{S_C4}, 896
    s_lshl_b32 {tm}, s{S_HL}, 7
    s_add_u32 {t3}, {t0}, {tm}
    s_add_u32 {t0}, {t0}, 512
    s_mul_i32 {t1}, s{S_HL}, 3
    s_and_b32 {t2}, s{S_HL}, 1
    s_add_u32 {t5}, {t1}, {t2}
    s_lshl_b32 {t2}, {t2}, 1
    s_add_u32 {t1}, {t1}, 2
    s_sub_u32 {t1}, {t1}, {t2}
    s_lshl_b32 {t1}, {t1}, 5
    s_add_u32 {t1}, {t1}, {t0}
    s_lshl_b32 {t5}, {t5}, 5
    s_add_u32 {t0}, {t0}, {t5}
    s_cmp_eq_u32 s{S_TYPE}, 1
    s_cselect_b32 s{S_U0}, {t1}, {t3}
    s_cselect_b32 s{S_U12}, {t0}, {t3}
    s_cmp_ge_u32 s3, 8
    s_cbranch_scc1 K_helper
    """)
    return S

def p2_ids(S):
    S.e(f"""
    s_and_b32 {t0}, s2, 7
    s_lshr_b32 {t1}, s2, 3
    s_and_b32 {t2}, {t0}, 1
    s_lshl_b32 {t2}, {t2}, 2
    s_lshr_b32 {t0}, {t0}, 1
    s_add_u32 s{S_MT2}, {t0}, {t2}
    s_lshl_b32 s{S_M64}, s{S_MT2}, 2
    s_and_b32 {t2}, {t1}, 3
    s_add_u32 s{S_M64}, s{S_M64}, {t2}
    s_lshr_b32 s{S_N64}, {t1}, 2
    """)
def p2_a_voffsets(S, VD, VO, VOM, T):
    S.e(f"""
    v_lshrrev_b32 v{T}, 3, v{V_L}
    v_and_b32 v{T+1}, 7, v{V_L}
    v_bfe_u32 v{T+2}, v{V_L}, 4, 1
    v_lshlrev_b32 v{T+2}, 2, v{T+2}
    v_xor_b32 v{T+1}, v{T+1}, v{T+2}
    s_lshl_b32 {t0}, s{S_N64}, 7
    v_lshlrev_b32 v{T+1}, 4, v{T+1}
    v_add_u32 v{T+1}, {t0}, v{T+1}
    v_mul_u32_u24 v{VD}, 896, v{T}
    v_add_u32 v{VD}, v{VD}, v{T+1}
    """)
    if VO is not None:
        S.e(f"""
        v_lshrrev_b32 v{T+2}, 2, v{T}
        v_and_b32 v{T+3}, 3, v{T}
        v_mad_u32_u24 v{T+2}, v{T+2}, 14, v{T+3}
        v_mul_u32_u24 v{VO}, 896, v{T+2}
        v_add_u32 v{VO}, v{VO}, v{T+1}
        v_cmp_lt_u32_e64 {M1}, 1, v{T+3}
        v_mov_b32 v{T+2}, 0x7f000000
        v_cndmask_b32_e64 v{VOM}, v{VO}, v{T+2}, {M1}
        """)

def helper_head():
    S = Stream(); T = PT
    S.e("K_helper:")
    S.e(f"s_setprio {OPT.get('hprio', 3)}")
    S.e(f"""
    s_sub_u32 s{S_H}, s3, 8
    s_lshl_b32 {t0}, s{S_MT}, 2
    s_add_u32 {t0}, {t0}, s{S_H}
    s_mul_i32 s{S_XROW}, {t0}, {64*896}
    s_mul_i32 s{S_AREA}, s{S_H}, {2*AREA}
    v_lshrrev_b32 v{T+7}, 3, v{V_L}
    v_mul_u32_u24 v{T}, 896, v{T+7}
    v_and_b32 v{T+8}, 7, v{V_L}
    v_lshrrev_b32 v{T+2}, 4, v{V_L}
    v_xor_b32 v{T+1}, v{T+8}, v{T+2}
    v_lshl_add_u32 v4, v{T+1}, 4, v{T}
    v_xor_b32 v5, 64, v4
    s_mul_i32 {t1}, s{S_HEAD}, 56
    s_lshl_b32 {t2}, s{S_ODD}, 3
    s_sub_u32 {t1}, {t1}, {t2}
    v_lshrrev_b32 v{T}, 2, v{V_L}
    v_and_b32 v{T+1}, 3, v{V_L}
    v_mul_u32_u24 v{T+4}, 2688, v{T}
    v_lshl_add_u32 v{T+4}, v{T+1}, 4, v{T+4}
    s_mul_i32 {tm}, s{S_H}, {16*2688}
    s_add_u32 {t1}, {t1}, {tm}
    v_add_u32 v6, {t1}, v{T+4}
    s_waitcnt lgkmcnt(0)
    """)
    srd(S, S_X, 4, 2048 * 896); srd(S, S_WQ, 6, 448 * 2688); srd(S, S_WG, 14, 448 * 3584); srd(S, S_WU, 16, 448 * 3584)
    S.e(f"s_cmp_eq_u32 s{S_TYPE}, 1\ns_cbranch_scc1 K_hkv")
    return S

def helper(typ):
    q = typ == "q"
    S = Stream(); T = PT
    S.e(f"K_h{typ}:")
    st = Stamper(STAMPR); st.n = 1; st.names = ["start"]
    V_XE, V_XO, V_DQ, V_DG, V_DU, V_DS = 4, 5, 6, 7, 8, 9
    V_AC = 10; V_PF = 16; V_WD = 18
    CT = 20; CA = 40; CU = 46
    if q:
        S.e(f"""
        v_bfe_u32 v{T+2}, v{V_L}, 4, 1
        v_lshlrev_b32 v{T+2}, 1, v{T+2}
        v_xor_b32 v{T+2}, v{T+2}, v{T+8}
        v_mul_u32_u24 v{T+3}, 3584, v{T+7}
        v_lshl_add_u32 v{T+2}, v{T+2}, 4, v{T+3}
        s_mul_i32 {tm}, s{S_H}, {16*3584}
        s_add_u32 {tm}, {tm}, s{S_U0}
        v_add_u32 v{V_DG}, {tm}, v{T+2}
        v_xor_b32 v{V_DU}, 64, v{V_DG}
        """)
    else:
        S.e(f"""
        v_mul_u32_u24 v{T+3}, 3584, v{T}
        v_lshl_add_u32 v{V_DG}, v{T+1}, 4, v{T+3}
        s_mul_i32 {tm}, s{S_H}, {16*3584}
        s_add_u32 {tm}, {tm}, s{S_U12}
        v_add_u32 v{V_DG}, {tm}, v{V_DG}
        v_xor_b32 v{V_DU}, 32, v{V_DG}
        s_lshr_b32 {t2}, s{S_H}, 1
        s_cmp_eq_u32 {t2}, 0
        s_cselect_b32 s{S_D1}, s14, s16
        s_cselect_b32 s{S_D1+1}, s15, s17
        s_mov_b32 s{S_D1+2}, {448*3584}
        s_mov_b32 s{S_D1+3}, 0x20000
        s_lshl_b32 {t2}, {t2}, 2
        v_lshrrev_b32 v{T+5}, 1, v{V_L}
        v_xor_b32 v{T+5}, {t2}, v{T+5}
        v_mul_u32_u24 v{T+5}, 3584, v{T+5}
        v_and_b32 v{T+6}, 1, v{V_L}
        v_lshl_add_u32 v{T+5}, v{T+6}, 4, v{T+5}
        s_and_b32 {t2}, s{S_H}, 1
        s_mul_i32 {t2}, {t2}, {32*3584}
        s_add_u32 {t2}, {t2}, s{S_U0}
        v_add_u32 v{V_DS}, {t2}, v{T+5}
        """)
    S.e(f"s_lshl_b32 s{S_D0L}, s{S_H}, 10\ns_add_u32 s{S_D0L}, s{S_D0L}, {W0}\ns_lshl_b32 s{S_G}, s{S_H}, {11 if q else 12}\ns_add_u32 s{S_G}, s{S_G}, {W0}")
    def dma(c, part=None):
        sb = (c % 3) * WS_
        def one(m0expr, soff, v, srdreg):
            S.e(f"s_add_u32 m0, {m0expr}\n{soff}")
            S.e(f"buffer_load_dwordx4 v{v}, {sq(srdreg)}, {tm} offen lds", tag=f"d{c}")
        def xs(lo, hi):
            for i in range(lo, hi):
                wv, qq = i >> 2, i & 3
                one(f"s{S_AREA}, {wv*AREA + (c % 3)*4096 + qq*1024}", f"s_add_u32 {tm}, s{S_XROW}, {(wv*32 + qq*8)*896 + c*128}", V_XO if qq & 1 else V_XE, S_X)
        if part == 1: pass
        elif q:
            one(f"s{S_D0L}, {sb + 16384}", f"s_mov_b32 {tm}, {c*172032}", V_DQ, S_WQ)
            for rg in range(2):
                one(f"s{S_G}, {sb + rg*1024}", f"s_mov_b32 {tm}, {c*229376 + rg*8*3584}", V_DG, S_WG)
                one(f"s{S_G}, {sb + 8192 + rg*1024}", f"s_mov_b32 {tm}, {c*229376 + rg*8*3584}", V_DU, S_WU)
        else:
            one(f"s{S_G}, {sb}", f"s_mov_b32 {tm}, {c*172032 + 896}", V_DQ, S_WQ)
            one(f"s{S_G}, {sb + 1024}", f"s_mov_b32 {tm}, {c*172032 + 1792}", V_DQ, S_WQ)
            one(f"s{S_G}, {sb + 2048}", f"s_mov_b32 {tm}, {c*229376}", V_DG, S_WG)
            one(f"s{S_G}, {sb + 3072}", f"s_mov_b32 {tm}, {c*229376}", V_DU, S_WU)
            one(f"s{S_D0L}, {sb + 16384}", f"s_mov_b32 {tm}, {c*229376}", V_DS, S_D1)
        k = int(OPT.get('split1', 1))
        if part == 0: xs(0, k)
        elif part == 1: xs(k, 8)
        else: xs(0, 8)
    dma(0)
    tile_addrs(S, typ, V_AC, 60)
    for t in range(5):
        stride = (1024 if t == 0 else 2048) if q else (512 if t >= 3 else 4096)
        S.e(f"s_mul_i32 {t0}, s{S_H}, {stride}\nv_add_u32 v{V_AC+t}, {t0}, v{V_AC+t}")
    for i in range(5): S.e(f"v_mov_b32 v{CA+i}, 0")
    dma(1, 0)
    S.wait_vm("d0"); S.e("s_barrier")
    st(S, "bar0")
    dma(1, 1)
    def colsum_rd(c):
        for t in range(5):
            for e in range(2):
                a, imm = tile_read_args(typ, t, 0, e)
                S.e(f"ds_read_b64_tr_b16 {vr(CT + 4*t + 2*e, 2)}, v{V_AC+a} offset:{(c % 3)*WS_ + imm}")
    def colsum_add():
        for j in range(4):
            for t in range(5): S.e(f"v_lshlrev_b32 v{CU+t}, 16, v{CT + 4*t + j}")
            for t in range(5): S.e(f"v_and_b32 v{CU+5+t}, 0xffff0000, v{CT + 4*t + j}")
            for t in range(5): S.e(f"v_add_f32 v{CA+t}, v{CA+t}, v{CU+t}")
            for t in range(5): S.e(f"v_add_f32 v{CA+t}, v{CA+t}, v{CU+5+t}")
    colsum_rd(0)
    dma(2)
    S.wait_lgkm(); S.wait_vm("d1"); S.e("s_barrier")
    dma(3)
    colsum_add()
    srd(S, S_WS, 22, WS_SIZE); srd(S, S_DBG, 20, 256); srd(S, S_WO, 8, 16 * 1568); srd(S, S_WD, 18, 1792 * 896)
    for i in range(2):
        S.e(f"""
        v_lshrrev_b32 v{T+9}, 4, v{V_L}
        s_lshl_b32 {t0}, s{S_H}, 3
        s_add_u32 {t0}, {t0}, {4*i}
        v_add_u32 v{T+9}, {t0}, v{T+9}
        v_bfe_u32 v{T+10}, v{V_L}, 3, 1
        v_and_b32 v{T+11}, 7, v{V_L}
        v_mad_u32_u24 v{T+10}, v{T+10}, 7, v{T+11}
        v_mad_u32_u24 v{T+10}, v{T+9}, 14, v{T+10}
        v_lshlrev_b32 v{T+10}, 2, v{T+10}
        v_cmp_eq_u32_e64 {M1}, 7, v{T+11}
        s_cmp_eq_u32 {t0}, 28
        s_cselect_b64 {M1}, -1, {M1}
        v_mov_b32 v{T+11}, 0x7fffff00
        v_cndmask_b32_e64 v{T+10}, v{T+10}, v{T+11}, {M1}
        s_mul_i32 {t1}, s{S_HEAD}, 1568
        s_lshl_b32 {t0}, {t0}, 6
        s_add_u32 m0, {t0}, {WPHI}
        """)
        S.e(f"buffer_load_dword v{T+10}, {sq(S_WO)}, {t1} offen lds", tag="phi")
    if OPT["prefetch"]:
        S.e(f"""
        s_lshr_b32 {t0}, s2, 3
        s_lshl_b32 {t0}, {t0}, 2
        s_add_u32 {t0}, {t0}, s{S_H}
        s_lshl_b32 {t0}, {t0}, 14
        s_mov_b32 {t3}, {1792*896}
        s_cmp_lt_u32 {t0}, {t3}
        s_cselect_b32 s{S_PF}, s18, s10
        s_cselect_b32 s{S_PF+1}, s19, s11
        s_cselect_b32 s{S_PF+2}, {t3}, {448*896}
        s_mov_b32 s{S_PF+3}, 0x20000
        s_cselect_b32 {t3}, 0, {t3}
        s_sub_u32 {t0}, {t0}, {t3}
        v_lshlrev_b32 v{V_PF}, 7, v{V_L}
        v_add_u32 v{V_PF}, {t0}, v{V_PF}
        v_add_u32 v{V_PF+1}, 0x2000, v{V_PF}
        """)
    p2_ids(S)
    p2_a_voffsets(S, V_WD, None, None, 60)
    colsum_rd(1)
    for c in range(2, 7):
        if c == 6: S.extend(poll(f"K_h{typ}_pst", "init", V_TMP, 19, who=8))
        S.wait_lgkm(); S.wait_vm(f"d{c}"); S.e("s_barrier")
        if c in (4,): st(S, f"bar{c}")
        if c + 2 <= 6: dma(c + 2)
        if c == int(OPT.get("pfc", 4)) and OPT["prefetch"]:
            S.e(f"buffer_load_dword v{V_PF}, v{V_PF}, {sq(S_PF)}, 0 offen\nbuffer_load_dword v{V_PF+1}, v{V_PF+1}, {sq(S_PF)}, 0 offen", tag="pf")
        colsum_add()
        colsum_rd(c)
    colsum_add()
    S.e(f"s_lshl_b32 {t0}, s{S_H}, 2\ns_add_u32 {t0}, {t0}, {CSP}\nv_add_u32 v{T}, {t0}, v{V_L16}")
    for t in range(5): S.e(f"v_cvt_pk_bf16_f32 v{T+1+t}, v{CA+t}, v{CA+t}")
    for t in range(5): S.e(f"v_lshlrev_b32 v{T+1+t}, 16, v{T+1+t}")
    for t in range(5): S.e(f"v_sub_f32 v{T+1+t}, v{CA+t}, v{T+1+t}")
    for t in range(5): S.e(f"v_cvt_pk_bf16_f32 v{T+1+t}, v{CA+t}, v{T+1+t}")
    for t in range(5): S.e(f"ds_write_b32 v{T}, v{T+1+t} offset:{t*1024}")
    S.e(f"""
    s_mul_i32 s{S_AREA}, s{S_H}, {2*REG2}
    s_mul_i32 s{S_XROW}, s{S_H}, {2*14*16*896}
    s_cmp_ge_u32 s2, 224
    s_cselect_b32 {t0}, 0x40000000, 0
    s_add_u32 s{S_XROW}, s{S_XROW}, {t0}
    """)
    S.wait_vm("phi"); S.wait_lgkm(); S.e("s_barrier")
    st(S, "B1")
    def adma(lo, hi):
        for i in range(lo, hi):
            for wv in range(2):
                for u in range(2):
                    S.e(f"s_add_u32 m0, s{S_AREA}, {wv*REG2 + i*2048 + u*1024}\ns_add_u32 {tm}, s{S_XROW}, {((wv*14 + i)*16 + 8*u)*896}")
                    S.e(f"buffer_load_dwordx4 v{V_WD}, {sq(S_WD)}, {tm} offen lds", tag="a1")
    if q:
        adma(0, 9)
        KO = 4; U = 5
        S.e(f"""
        v_and_b32 v{U}, 31, v{V_L}
        v_lshrrev_b32 v{U+1}, 3, v{U}
        v_and_b32 v{U+2}, 3, v{U}
        v_lshl_add_u32 v{U+1}, v{U+1}, 2, v{U+2}
        v_bfe_u32 v{U+2}, v{U}, 2, 1
        v_mad_u32_u24 v{U+2}, v{U+2}, 14, v{U+1}
        v_cmp_lt_u32_e64 {M1}, 13, v{U+1}
        v_cndmask_b32_e64 v{U+2}, v{U+2}, 28, {M1}
        v_bfe_u32 v{U+3}, v{U+2}, 2, 1
        v_lshrrev_b32 v{U+4}, 3, v{U+2}
        v_and_b32 v{U+5}, 3, v{U+2}
        v_lshl_add_u32 v{U+4}, v{U+4}, 2, v{U+5}
        v_lshrrev_b32 v{U+5}, 5, v{V_L}
        v_lshl_add_u32 v{U+3}, v{U+5}, 1, v{U+3}
        v_lshlrev_b32 v{U+3}, 10, v{U+3}
        v_lshl_add_u32 v{U+3}, v{U+4}, 4, v{U+3}
        s_lshr_b32 {t0}, s{S_H}, 1
        s_lshl_b32 {t0}, {t0}, 12
        s_and_b32 {t1}, s{S_H}, 1
        s_lshl_b32 {t1}, {t1}, 9
        s_add_u32 {t0}, {t0}, {t1}
        v_add_u32 v{KO}, {t0}, v{U+3}
        s_lshl_b32 {t0}, s{S_H}, 10
        s_add_u32 {t0}, {t0}, {KVF}
        v_add_u32 v{U}, {t0}, v{V_L16}
        """)
        S.wait_vm("a1"); S.e("s_barrier")
        st(S, "B3")
        S.extend(poll("K_hq_pkv", "kv", V_TMP, 19, who=8))
        S.e(f"""
        v_mov_b32 v{U+1}, {CNT}
        v_mov_b32 v{U+2}, 1
        s_cmp_lg_u32 s3, 8
        s_cbranch_scc1 K_hq_spin
        """)
        S.e(f"ds_write_b32 v{U+1}, v{U+2}\ns_branch K_hq_go", opt=True)
        S.e(f"""
        K_hq_spin:
        s_sleep 1
        ds_read_b32 v{U+2}, v{U+1}
        s_waitcnt lgkmcnt(0)
        v_readfirstlane_b32 {t1}, v{U+2}
        s_cmp_eq_u32 {t1}, 0
        s_cbranch_scc1 K_hq_spin
        """, opt=True)
        S.e("K_hq_go:")
        st(S, "kvrdy")
        S.e(f"s_lshl_b32 {t0}, s{S_HEAD}, 16\ns_add_u32 {t0}, {t0}, {KVP_OFF}")
        KL = 20
        for i in range(8):
            for e in range(2):
                S.e(f"buffer_load_dwordx4 {vr(KL + 8*i + 4*e)}, v{KO}, {sq(S_WS)}, {t0} offen offset:{e*256} sc1")
            if i < 7: S.e(f"s_add_u32 {t0}, {t0}, 8192")
        for step in (1, 2, 4):
            for i in range(0, 8, 2*step):
                for j in range(8): S.e(f"v_add_f32 v{KL+8*i+j}, v{KL+8*i+j}, v{KL+8*(i+step)+j}")
        for j in range(4): S.e(f"v_cvt_pk_bf16_f32 v{KL+8+j}, v{KL+2*j}, v{KL+2*j+1}")
        S.e(f"ds_write_b128 v{U}, {vr(KL+8)}")
        S.wait_lgkm(); S.e("s_barrier")
        st(S, "B4")
    else:
        adma(0, 6)
        X = 20; KA = 4; KB = 10
        S.e(f"""
        v_lshrrev_b32 v{X}, 4, v{V_L}
        v_bfe_u32 v{X+1}, v{V_L}, 2, 2
        v_lshl_add_u32 v{X}, v{X}, 3, v{X+1}
        v_bfe_u32 v{X+2}, v{V_L}, 1, 1
        s_lshl_b32 {t0}, s{S_H}, 1
        v_add_u32 v{X+4}, {t0}, v{X+2}
        v_xor_b32 v{X+4}, v{X+4}, v{X+1}
        v_lshlrev_b32 v{X+3}, 7, v{X}
        v_lshl_add_u32 v{X+3}, v{X+4}, 4, v{X+3}
        v_and_b32 v{X+5}, 1, v{V_L}
        v_lshl_add_u32 v{KA}, v{X+5}, 3, v{X+3}
        v_add_u32 v{KA}, {PKO}, v{KA}
        v_xor_b32 v{KA+1}, 64, v{KA}
        v_lshrrev_b32 v{X+4}, 1, v{X+1}
        v_xor_b32 v{X+4}, v{X+4}, v{X+2}
        v_lshlrev_b32 v{X+3}, 6, v{X}
        v_lshl_add_u32 v{X+3}, v{X+4}, 4, v{X+3}
        v_lshl_add_u32 v{KB}, v{X+5}, 3, v{X+3}
        v_add_u32 v{KB}, {VVO}, v{KB}
        v_xor_b32 v{KB+1}, 32, v{KB}
        """)
        for rg in (1, 2):
            for k in range(2):
                S.e(f"v_add_u32 v{KA+2*rg+k}, {rg*3*REG2}, v{KA+k}\nv_add_u32 v{KB+2*rg+k}, {rg*3*REG2}, v{KB+k}")
        S.e(f"""
        s_lshl_b32 {t4}, s{S_HEAD}, 3
        s_add_u32 {t4}, {t4}, s{S_MT}
        s_lshl_b32 {t4}, {t4}, 2
        s_add_u32 {t4}, {t4}, s{S_H}
        s_lshl_b32 {t4}, {t4}, 11
        s_add_u32 {t4}, {t4}, {KVP_OFF}
        """)
        S.e("s_barrier")
        st(S, "B2")
        FB = 32; KD = 24
        for kk in range(8):
            b = FB + 12 * kk; rg = kk // 3; ro = (kk % 3) * REG2
            for e in range(2):
                S.e(f"ds_read_b64_tr_b16 {vr(b + 2*e, 2)}, v{KA + 2*rg + e} offset:{ro + e*512}")
                for dh in range(2):
                    S.e(f"ds_read_b64_tr_b16 {vr(b + 4 + 4*dh + 2*e, 2)}, v{KB + 2*rg + (e ^ dh)} offset:{ro + e*256}")
        for kk in range(8):
            b = FB + 12 * kk
            for dh in range(2):
                S.e(f"{MF16} {vr(KD + 4*dh)}, {vr(b)}, {vr(b + 4 + 4*dh)}, {'0' if kk == 0 else vr(KD + 4*dh)}")
        for dh in range(2):
            S.e(f"buffer_store_dwordx4 {vr(KD + 4*dh)}, v{V_L16}, {sq(S_WS)}, {t4} offen offset:{dh*1024} sc1", tag="kvst")
        st(S, "kvst")
        S.extend(signal("kvst", 0, "kv", "K_hkv_nosig", 4, 5, 6, 3))
        S.e(f"""
        K_hkv_spin:
        s_sleep 1
        ds_read_b32 v6, v4
        s_waitcnt lgkmcnt(0)
        v_readfirstlane_b32 {t1}, v6
        s_cmp_lt_u32 {t1}, 4
        s_cbranch_scc1 K_hkv_spin
        """)
        adma(6, 9)
        S.wait_vm("a1"); S.e("s_barrier")
        st(S, "B3")
        S.e(f"s_cmp_ge_u32 s2, 224\ns_cbranch_scc1 K_h{typ}_fin")
    S.extend(poll(f"K_h{typ}_ph", "h", V_TMP, 19, who=8))
    S.e("s_barrier")
    st(S, "B5")
    S.extend(poll(f"K_h{typ}_po", "o", V_TMP, 19, who=8))
    S.e("s_barrier")
    st(S, "B6")
    S.e("s_barrier")
    S.e(f"K_h{typ}_fin:")
    st(S, "end")
    st.flush(S, sq(S_WS), ST_OFF, 24, 12)
    S.e("s_endpgm")
    return S
def compute_head():
    S = Stream(); T = PT
    S.e(f"""
    s_lshl_b32 {t0}, s{S_MT}, 3
    s_add_u32 {t0}, {t0}, s3
    s_mul_i32 s{S_HFB}, {t0}, {NKS*1024}
    s_mul_i32 s{S_AREA}, s3, {AREA}
    s_mul_i32 {t2}, s{S_SROW}, 896
    v_cmp_gt_u32_e64 {M2}, 56, v{V_L}
    v_mov_b32 v{T+2}, 0x7f000000
    v_cndmask_b32_e64 v{T+2}, v{T+2}, v{V_L16}, {M2}
    s_waitcnt lgkmcnt(0)
    """)
    srd(S, S_X, 4, 2048 * 896)
    S.e(f"buffer_load_dwordx4 {vr(STV)}, v{T+2}, {sq(S_X)}, {t2} offen", tag="strow")
    srd(S, S_WS, 22, WS_SIZE); srd(S, S_DBG, 20, 256); srd(S, S_WD, 18, 1792 * 896); srd(S, S_WO, 10, 448 * 896)
    S.e(f"s_mov_b32 s{S_OUT+2}, {2048*896}\ns_mov_b32 s{S_OUT+3}, 0x20000")
    S.e(f"""
    s_lshl_b32 s{S_U0}, s{S_U0}, 5
    s_add_u32 s{S_U0}, s{S_U0}, s{S_HFB}
    s_lshl_b32 s{S_U12}, s{S_U12}, 5
    s_add_u32 s{S_U12}, s{S_U12}, s{S_HFB}
    v_lshrrev_b32 v{T+3}, 5, v{V_L}
    v_and_b32 v{T+5}, 31, v{V_L}
    v_bfe_u32 v{T+6}, v{V_L}, 1, 3
    v_xor_b32 v{T+6}, v{T+6}, v{T+3}
    v_lshlrev_b32 v{T+5}, 7, v{T+5}
    v_lshl_add_u32 v{T+5}, v{T+6}, 4, v{T+5}
    v_add_u32 v{V_AX}, s{S_AREA}, v{T+5}
    v_xor_b32 v{V_AX+1}, 32, v{V_AX}
    v_xor_b32 v{V_AX+2}, 64, v{V_AX}
    v_xor_b32 v{V_AX+3}, 0x60, v{V_AX}
    v_add_u32 v{V_CSA}, {CSP}, v{V_L16}
    v_bfe_u32 v{T+1}, v{V_L}, 2, 2
    v_lshl_add_u32 v{T+9}, v{T+3}, 2, v{T+1}
    v_lshlrev_b32 v{T+9}, 6, v{T+9}
    v_and_b32 v{T+10}, 1, v{V_L}
    v_lshl_add_u32 v{T+9}, v{T+10}, 5, v{T+9}
    v_bfe_u32 v{T+10}, v{V_L}, 1, 1
    v_bfe_u32 v{T+4}, v{V_L}, 4, 1
    v_lshl_add_u32 v{T+10}, v{T+4}, 1, v{T+10}
    v_lshl_add_u32 v{T+9}, v{T+10}, 3, v{T+9}
    v_add_u32 v{V_PHA}, {WPHI}, v{T+9}
    v_mov_b32 v{T+9}, {CNT}
    ds_write_b32 v{T+9}, v{V_Z}
    ds_write_b32 v{T+9}, v{V_Z} offset:4
    ds_write_b32 v{T+9}, v{V_Z} offset:8
    ds_write_b32 v{T+9}, v{V_Z} offset:12
    """)
    U = PT
    for j in range(4): S.e(f"v_lshlrev_b32 v{U+2*j}, 16, v{STV+j}\nv_and_b32 v{U+2*j+1}, 0xffff0000, v{STV+j}")
    S.e(f"""
    v_add_f32 v{U+8}, v{U}, v{U+1}
    v_add_f32 v{U+9}, v{U+2}, v{U+3}
    v_add_f32 v{U+10}, v{U+4}, v{U+5}
    v_add_f32 v{U+11}, v{U+6}, v{U+7}
    v_add_f32 v{U+8}, v{U+8}, v{U+9}
    v_add_f32 v{U+10}, v{U+10}, v{U+11}
    v_add_f32 v{U+8}, v{U+8}, v{U+10}
    """)
    wave_sum(S, U + 8, U + 9)
    S.e(f"v_mul_f32 v{U+8}, {f32(1/448)}, v{U+8}")
    for j in range(8): S.e(f"v_sub_f32 v{U+j}, v{U+j}, v{U+8}")
    S.e(f"v_mul_f32 v{U+9}, v{U}, v{U}\nv_mul_f32 v{U+10}, v{U+1}, v{U+1}")
    for j in range(2, 8): S.e(f"v_fmac_f32 v{U+9+(j&1)}, v{U+j}, v{U+j}")
    S.e(f"v_add_f32 v{U+9}, v{U+9}, v{U+10}\nv_cndmask_b32_e64 v{U+9}, 0, v{U+9}, {M2}")
    wave_sum(S, U + 9, U + 10)
    S.e(f"v_mul_f32 v{U+9}, {f32(1/448)}, v{U+9}")
    bf16r(S, U + 9, f"v{U+9}")
    S.e(f"v_add_f32 v{U+9}, {f32(1e-5)}, v{U+9}")
    bf16r(S, U + 9, f"v{U+9}")
    S.e(f"v_sqrt_f32 v{U+9}, v{U+9}")
    bf16r(S, STV + 1, f"v{U+9}")
    S.e(f"""
    v_cvt_pk_bf16_f32 v{STV}, -v{U+8}, -v{U+8}
    s_lshl_b32 {t0}, s{S_SROW}, 3
    s_add_u32 {t0}, {t0}, {STATS_OFF}
    s_mov_b64 exec, 1
    """)
    S.e(f"buffer_store_dwordx2 {vr(STV, 2)}, v{V_Z}, {sq(S_WS)}, {t0} offen sc1", tag="stst")
    S.e(f"s_mul_i32 {t0}, s2, {MB_STRIDE}\ns_lshl_b32 {t1}, s3, 3\ns_add_u32 {t0}, {t0}, {t1}\ns_add_u32 {t0}, {t0}, {MB_OFF}\nv_mov_b32 v{STV+2}, 0\nv_mov_b32 v{STV+3}, 0")
    S.e(f"buffer_store_dwordx2 {vr(STV+2, 2)}, v{V_Z}, {sq(S_WS)}, {t0} offen sc1", tag="stst")
    S.e("s_mov_b64 exec, -1")
    S.e(f"s_cmp_eq_u32 s{S_TYPE}, 1\ns_cbranch_scc1 K_kv")
    return S


def compute(typ):
    q = typ == "q"
    S = Stream(); T = PT
    S.e(f"K_{typ}:")
    st = Stamper(STAMPR); st.n = 1; st.names = ["start"]
    tile_addrs(S, typ, V_AT, T)
    p2_ids(S)
    pend = []
    def ABn(n): return AB if n % 2 == 1 else SC + 8
    def a_read(n, t):
        c, s = n >> 2, n & 3
        for e in range(2):
            a, imm = tile_read_args(typ, t, s, e)
            S.e(f"ds_read_b64_tr_b16 {vr(ABn(n) + 4*t + 2*e, 2)}, v{V_AT+a} offset:{(c % 3)*WS_ + imm}")
    def x_read(n):
        c, s = n >> 2, n & 3
        S.e(f"ds_read_b128 {vr(XB + 4*(n & 1))}, v{V_AX+s} offset:{(c % 3) * 4096}")
    def kstep(n):
        if n + 1 < 28:
            x_read(n + 1); a_read(n + 1, 0); a_read(n + 1, 1)
        for t in range(5):
            S.e(f"{MF} {vr(ACC + 16*t, 16)}, {vr(ABn(n) + 4*t)}, {vr(XB + 4*(n & 1))}, {'0' if n == 0 else vr(ACC + 16*t, 16)}")
            if n + 1 < 28 and t + 2 < 5: a_read(n + 1, t + 2)
            if pend: S.extend(pend.pop(0))
    S.wait_lgkm(); S.e("s_barrier")
    st(S, "bar0")
    x_read(0)
    for t in range(5): a_read(0, t)
    for c in range(7):
        S.comment(f"chunk {c}")
        if c in (4,): st(S, f"chunk{c}")
        n = 4 * c
        if c == 1: pend.append(signal("stst", 4, "init", f"K_{typ}_nosigst", SC + 4, SC + 5, SC + 6, 7))
        kstep(n); kstep(n + 1); kstep(n + 2)
        S.wait_lgkm(); S.e("s_barrier")
        if c == 5:
            G = Stream()
            G.e(f"""
            v_and_b32 v{V_TMP}, 31, v{V_L}
            v_lshlrev_b32 v{V_TMP}, 3, v{V_TMP}
            s_lshl_b32 {t0}, s{S_MT}, 3
            s_add_u32 {t0}, {t0}, s3
            s_lshl_b32 {t0}, {t0}, 8
            s_add_u32 {t0}, {t0}, {STATS_OFF}
            buffer_load_dwordx2 {vr(V_RINV, 2)}, v{V_TMP}, {sq(S_WS)}, {t0} offen sc1
            """)
            pend.append(G)
        if c == 6:
            CR = SC + 8
            for t in range(5): S.e(f"ds_read_b128 {vr(CR + 4*t)}, v{V_CSA} offset:{t*1024}")
            stats_consts(S)
        kstep(n + 3)
    st(S, "S1")
    WPF = XB; E = AB; QB = E + 8; TT = 4; GT = SC; GT2 = SC + 12
    A0 = ACC
    S.e(f"{MF} {vr(ACC,16)}, {vr(CR)}, {vr(BP)}, {vr(ACC,16)}")
    for te in range(4): S.e(f"ds_read_b64_tr_b16 {vr(WPF + 2*te, 2)}, v{V_PHA} offset:{te * 512}")
    for t in range(1, 5): S.e(f"{MF} {vr(ACC + 16*t,16)}, {vr(CR + 4*t)}, {vr(BP)}, {vr(ACC + 16*t,16)}")
    S.e(f"s_mul_i32 s{S_AREA}, s3, {REG2}")
    if not q:
        W = SC + 28; X = 4
        S.e(f"""
        v_and_b32 v{X}, 31, v{V_L}
        v_lshrrev_b32 v{X+1}, 5, v{V_L}
        v_lshlrev_b32 v{X+1}, 1, v{X+1}
        v_bfe_u32 v{X+2}, v{V_L}, 1, 2
        v_xor_b32 v{X+2}, v{X+2}, v{X+1}
        v_lshlrev_b32 v{X+3}, 6, v{X}
        v_lshl_add_u32 v{X+3}, v{X+2}, 4, v{X+3}
        s_add_u32 {t0}, s{S_AREA}, {VVO}
        v_add_u32 v9, {t0}, v{X+3}
        v_xor_b32 v10, 16, v9
        v_and_b32 v{X+3}, 7, v{V_L}
        v_xor_b32 v{X+1}, v{X+1}, v{X+3}
        v_lshlrev_b32 v{X}, 7, v{X}
        v_lshl_add_u32 v{X}, v{X+1}, 4, v{X}
        s_add_u32 {t0}, s{S_AREA}, {PKO}
        v_add_u32 v{W}, {t0}, v{X}
        v_xor_b32 v{W+1}, 16, v{W}
        v_xor_b32 v{W+2}, 64, v{W}
        v_xor_b32 v{W+3}, 0x50, v{W}
        """)
    for i in range(16): S.e(f"v_mul_f32 v{A0+i}, v{A0+i}, v{V_RINV}")
    for i in range(8): S.e(f"v_cvt_pk_bf16_f32 v{QB+i}, v{A0+2*i}, v{A0+2*i+1}")
    S.e(f"{MF} {vr(A0,16)}, {vr(WPF)}, {vr(QB)}, 0\n{MF} {vr(A0,16)}, {vr(WPF+4)}, {vr(QB+4)}, {vr(A0,16)}")
    if q:
        geglu(S, ACC + 16, GT, S_U0, 0)
        geglu(S, ACC + 32, GT2, S_U0, 1)
        geglu(S, ACC + 48, GT, S_U0, 2)
        geglu(S, ACC + 64, GT2, S_U0, 3)
        st(S, "ffn")
        softmax14(S, A0, E, TT)
    else:
        A1 = ACC + 16
        for i in range(16): S.e(f"v_mul_f32 v{A1+i}, v{A1+i}, v{V_RINV}")
        for i in range(8): S.e(f"v_cvt_pk_bf16_f32 v{A1+i}, v{A1+2*i}, v{A1+2*i+1}")
        S.e(f"""
        v_mov_b32 v{A1+8}, 0x3f80
        v_cndmask_b32_e64 v{A1+6}, v{A1+6}, v{A1+8}, {HHM}
        ds_write_b128 v9, {vr(A1)}
        ds_write_b128 v10, {vr(A1+4)}
        """)
        softmax14(S, A0, E, TT)
        for k in range(4): S.e(f"ds_write_b128 v{W+k}, {vr(E+4*k)}")
        S.wait_lgkm(); S.e("s_barrier")
        st(S, "B2")
        geglu(S, ACC + 32, GT, S_U0, 0)
        geglu(S, ACC + 48, GT2, S_U12, 0)
        geglu(S, ACC + 64, GT, S_U12, 1)
    V_WD, V_WOo, V_WOM, V_B0, V_B1, V_A0, V_A1, V_O = 4, 5, 6, 7, 8, 9, 10, 11
    TP = 56
    p2_a_voffsets(S, V_WD, V_WOo, V_WOM, TP)
    S.e(f"""
    s_and_b32 {t3}, s3, 1
    s_bfe_u32 {t4}, s3, 0x10001
    s_lshr_b32 {t5}, s3, 2
    s_lshl_b32 {t0}, s{S_M64}, 1
    s_add_u32 {t0}, {t0}, {t3}
    s_mul_i32 {t1}, {t0}, {NKS*1024}
    v_add_u32 v{V_B0}, {t1}, v{V_L16}
    s_xor_b32 {t1}, {t0}, 1
    s_mul_i32 {t1}, {t1}, {NKS*1024}
    v_add_u32 v{V_B1}, {t1}, v{V_L16}
    v_bfe_u32 v{TP}, v{V_L}, 2, 2
    v_lshrrev_b32 v{TP+1}, 5, v{V_L}
    v_lshl_add_u32 v{TP+2}, v{TP+1}, 2, v{TP}
    v_lshlrev_b32 v{TP+2}, 7, v{TP+2}
    v_lshrrev_b32 v{TP}, 1, v{TP}
    v_xor_b32 v{TP}, {t4}, v{TP}
    v_lshl_add_u32 v{TP+2}, v{TP}, 6, v{TP+2}
    v_and_b32 v{TP}, 1, v{V_L}
    v_lshl_add_u32 v{TP+2}, v{TP}, 5, v{TP+2}
    v_bfe_u32 v{TP}, v{V_L}, 1, 1
    v_bfe_u32 v{TP+3}, v{V_L}, 4, 1
    v_xor_b32 v{TP+3}, {t5}, v{TP+3}
    v_lshl_add_u32 v{TP}, v{TP+3}, 1, v{TP}
    v_lshl_add_u32 v{TP+2}, v{TP}, 3, v{TP+2}
    v_add_u32 v{V_A0}, s{S_AREA}, v{TP+2}
    v_xor_b32 v{V_A1}, 64, v{V_A0}
    v_and_b32 v{TP}, 31, v{V_L}
    s_lshl_b32 {t0}, {t0}, 5
    v_add_u32 v{TP}, {t0}, v{TP}
    v_mul_u32_u24 v{TP}, 896, v{TP}
    v_lshlrev_b32 v{TP+1}, 5, v{TP+1}
    s_lshl_b32 {t0}, s{S_N64}, 7
    s_lshl_b32 {t1}, {t4}, 6
    s_add_u32 {t0}, {t0}, {t1}
    s_lshl_b32 {t1}, {t5}, 4
    s_add_u32 {t0}, {t0}, {t1}
    v_add3_u32 v{V_O}, v{TP}, v{TP+1}, {t0}
    s_mul_i32 s{S_XROW}, s3, {14*16*896}
    s_mul_i32 s{S_D0L}, s3, {2*28*896}
    s_mul_i32 s{S_U0}, s3, {14*1024}
    s_lshl_b32 s{S_U12}, s3, 12
    s_add_u32 s{S_U12}, s{S_U12}, {112*1024 - 14*1024}
    """)
    st(S, "p1end")
    S.extend(signal("hst", 8, "h", f"K_{typ}_nosigh", TP, TP + 1, TP + 2, 7))
    S.e("s_barrier")
    st(S, "B3")
    if not q: S.e(f"s_cmp_ge_u32 s2, 224\ns_cbranch_scc1 K_{typ}_fin")
    AC2 = 104
    blocks = [16 + 8*i for i in range(11)]
    bfree = [32, 40, 48, 24]
    ablk = {i: b for i, b in enumerate([16, 56, 64, 72, 80, 88, 96])}
    def a_tr(i, blk):
        sl = i if i < 9 else (i - 9 if i < 16 else i - 9)
        for ni in range(2):
            for e in range(2):
                S.e(f"ds_read_b64_tr_b16 {vr(blk + 4*ni + 2*e, 2)}, v{V_A0+ni} offset:{sl*2048 + e*1024}", tag=f"ar{i}")
    def a_dma(i):
        sl = i - 9
        for u in range(2):
            S.e(f"s_add_u32 m0, s{S_AREA}, {sl*2048 + u*1024}")
            if i < 14:
                S.e(f"s_add_u32 {tm}, s{S_XROW}, {(16*i + 8*u)*896}")
                S.e(f"buffer_load_dwordx4 v{V_WD}, {sq(S_WD)}, {tm} offen lds", tag=f"a{i}")
            else:
                hd, t = (i - 14) >> 1, (i - 14) & 1
                S.e(f"s_add_u32 {tm}, s{S_D0L}, {(28*hd + 8*t + 4*u)*896}")
                S.e(f"buffer_load_dwordx4 v{V_WOM if (t and u) else V_WOo}, {sq(S_WO)}, {tm} offen lds", tag=f"a{i}")
    for i in range(7): a_tr(i, ablk[i])
    S.wait_lgkm()
    for i in range(9, 16): a_dma(i)
    if q:
        S.e(f"v_add_u32 v{V_TMP}, {KVF}, v{V_L16}")
        st(S, "w4")
        S.e("s_barrier")
        st(S, "B4")
        KF = AC2; O = AC2 + 16; G2 = AC2 + 32
        for k in range(4): S.e(f"ds_read_b128 {vr(KF + 4*k)}, v{V_TMP} offset:{k*1024}")
        for k in range(4): S.e(f"{MF} {vr(O,16)}, {vr(KF + 4*k)}, {vr(E + 4*k)}, {'0' if k == 0 else vr(O,16)}")
        bf16r(S, G2, f"v{O+14}")
        S.e(f"v_add_f32 v{G2}, {f32(1e-6)}, v{G2}")
        bf16r(S, G2, f"v{G2}")
        S.e(f"v_rcp_f32 v{G2}, v{G2}")
        for i in range(7): S.e(f"v_cvt_pk_bf16_f32 v{G2+1+i}, v{O+2*i}, v{O+2*i+1}")
        for i in range(7): S.e(f"v_lshlrev_b32 v{O+2*i}, 16, v{G2+1+i}\nv_and_b32 v{O+2*i+1}, 0xffff0000, v{G2+1+i}")
        for i in range(14): S.e(f"v_mul_f32 v{O+i}, v{O+i}, v{G2}")
        for i in range(7): S.e(f"v_cvt_pk_bf16_f32 v{KF+i}, v{O+2*i}, v{O+2*i+1}")
        S.e(f"""
        v_mov_b32 v{KF+7}, 0
        s_lshl_b32 {t0}, s{S_HEAD}, 11
        s_add_u32 {t0}, {t0}, s{S_HFB}
        s_add_u32 {t0}, {t0}, {112*1024}
        """)
        S.e(f"buffer_store_dwordx4 {vr(KF)}, v{V_L16}, {sq(S_WS)}, {t0} offen sc1\nbuffer_store_dwordx4 {vr(KF+4)}, v{V_L16}, {sq(S_WS)}, {t0} offen offset:1024 sc1", tag="ost")
        S.extend(signal("ost", 12, "o", "K_q_nosigo", G2, G2 + 1, G2 + 2, 7))
    st(S, "w5")
    S.e("s_barrier")
    st(S, "B5")
    bblk = {}
    nextb = [0]
    def b_load():
        i = nextb[0]
        if i >= 18 or not bfree: return False
        if i == 14:
            S.e("s_barrier")
        blk = bfree.pop(0); bblk[i] = blk
        S.e(f"s_add_u32 {tm}, s{S_U0 if i < 14 else S_U12}, {i*1024}")
        for mi in range(2):
            S.e(f"buffer_load_dwordx4 {vr(blk + 4*mi)}, v{V_B0+mi}, {sq(S_WS)}, {tm} offen sc1")
        nextb[0] += 1
        return True
    OLAG = int(OPT.get("olag", 4))
    while b_load(): pass
    for i in range(18):
        if i + 1 < 18 and (i + 1) not in ablk:
            ablk[i + 1] = afree.pop(0)
            if i + 1 >= 9: S.wait_vm(f"a{i+1}")
            a_tr(i + 1, ablk[i + 1])
        for lq in range(4):
            ni, mi = lq >> 1, lq & 1
            S.e(f"{MF} {vr(AC2 + 16*lq, 16)}, {vr(ablk[i] + 4*ni)}, {vr(bblk[i] + 4*mi)}, {'0' if i == 0 else vr(AC2 + 16*lq, 16)}")
        if i == 0: afree = []
        bfree.append(bblk[i])
        if i in (4, 5) or i >= 7: afree.append(ablk[i])
        else: bfree.append(ablk[i])
        if i in (8, 9): a_dma(i + 8)
        while nextb[0] < 18 and (nextb[0] < 14 or nextb[0] <= i + OLAG) and b_load(): pass
        if i == 13: S.e(f"buffer_load_dwordx4 {vr(12)}, v{V_O}, {sq(S_X)}, 0 offen")
    st(S, "mm")
    S.e(f"v_add_u32 v{V_WD}, s{S_AREA}, v{V_L16}")
    def piece(pp): lq = (pp & 1) | (((pp >> 1) & 1) << 1); return AC2 + 16*lq + 8*(pp >> 2)
    for pp in range(1, 8):
        for j in range(2): S.e(f"ds_write_b128 v{V_WD}, {vr(piece(pp) + 4*j)} offset:{(pp-1)*2048 + j*1024}")
    for pp in range(1, 8):
        S.e(f"s_xor_b32 {t0}, s3, {pp}\ns_mul_i32 {t0}, {t0}, {REG2}\nv_add_u32 v{16+pp}, {t0}, v{V_L16}")
    for j in range(4): S.e(f"v_lshlrev_b32 v{24+2*j}, 16, v{12+j}\nv_and_b32 v{25+2*j}, 0xffff0000, v{12+j}")
    for j in range(8): S.e(f"v_add_f32 v{AC2+j}, v{AC2+j}, v{24+j}")
    S.wait_lgkm(); S.e("s_barrier")
    R = 32
    for pp in range(1, 8):
        for j in range(2): S.e(f"ds_read_b128 {vr(R + 8*(pp-1) + 4*j)}, v{16+pp} offset:{(pp-1)*2048 + j*1024}")
    for j in range(8): S.e(f"v_add_f32 v{AC2+j}, v{AC2+j}, v{R+j}")
    for j in range(8): S.e(f"v_add_f32 v{R+8+j}, v{R+8+j}, v{R+16+j}")
    for j in range(8): S.e(f"v_add_f32 v{R+24+j}, v{R+24+j}, v{R+32+j}")
    for j in range(8): S.e(f"v_add_f32 v{R+40+j}, v{R+40+j}, v{R+48+j}")
    for j in range(8): S.e(f"v_add_f32 v{AC2+j}, v{AC2+j}, v{R+8+j}")
    for j in range(8): S.e(f"v_add_f32 v{R+24+j}, v{R+24+j}, v{R+40+j}")
    for j in range(8): S.e(f"v_add_f32 v{AC2+j}, v{AC2+j}, v{R+24+j}")
    for j in range(4): S.e(f"v_cvt_pk_bf16_f32 v{24+j}, v{AC2+2*j}, v{AC2+2*j+1}")
    S.e(f"buffer_store_dwordx4 {vr(24)}, v{V_O}, {sq(S_OUT)}, 0 offen")
    S.e(f"K_{typ}_fin:")
    st(S, "end")
    st.flush(S, sq(S_WS), ST_OFF, 104, 12)
    S.e("s_endpgm")
    return S

def gen_all():
    pro = list(prologue()); ch = list(compute_head()); hh = list(helper_head())
    out = []
    def part(prefix, body, label):
        full = finalize(prefix + list(body))
        idx = next(i for i, x in enumerate(full) if x.text == label) if label else 0
        return full[idx:]
    out += part(pro + ch, compute("q"), None)
    out += part(pro + ch, compute("kv"), "K_kv:")
    out += part(pro + hh, helper("q"), "K_helper:")
    out += part(pro + hh, helper("kv"), "K_hkv:")
    out.append(I("K_END:")); out.append(I("s_endpgm"))
    return out

def build(path):
    k = gen_all()
    print("K", stats(k), file=sys.stderr)
    ref = open(f"cdna_kernels/{NAME}.s.ref").read().split("\n")
    hdr = [l for l in ref if l.startswith(";") and "@launch" not in l and "Override" not in l and "grid=ceil" not in l]
    txt = "\n".join(hdr) + "\n"
    txt += f"; @launch grid=(256,1,1) block=(768,1,1) lds=163840\n"
    txt += '.amdgcn_target "amdgcn-amd-amdhsa--gfx950"\n.text\n'
    txt += f".globl {K1}\n.p2align 8\n.type {K1},@function\n{K1}:\n" + render(k)
    txt += f""".section .rodata,"a"
.p2align 6
.amdhsa_kernel {K1}
  .amdhsa_next_free_vgpr {NVG1}
  .amdhsa_next_free_sgpr 102
  .amdhsa_accum_offset {NVG1}
  .amdhsa_group_segment_fixed_size 0
  .amdhsa_kernarg_size 88
  .amdhsa_user_sgpr_count 2
  .amdhsa_user_sgpr_kernarg_segment_ptr 1
  .amdhsa_system_sgpr_workgroup_id_x 1
.end_amdhsa_kernel
"""
    open(path, "w").write(txt)

if __name__ == "__main__":
    for a in sys.argv[2:]:
        k, v = a.split("=")
        OPT[k] = {"True": True, "False": False}.get(v, v.replace("_", " ") if k.endswith("flags") else v)
    build(sys.argv[1] if len(sys.argv) > 1 else f"cdna_kernels/{NAME}.s")
```

```python
import sys, os, struct
sys.path.insert(0, os.path.dirname(os.path.abspath(__file__)))
from dsl import *

NAME = "parallel_sum__linear_kernel_hedgehog__geglu_ffn__prompt"
K1 = NAME + "_kernel"
K2 = "k2_kernel"

HF_OFF = 0
KVP_OFF = 0xB00000
PHF_OFF = 0x1000000
WS_SIZE = 0x1400000
NKS = 144

OPT = dict(mimic_ffn=False, hf_flags=" sc1", k2d="8", prefetch=True)

def f32(x): return "0x%08x" % struct.unpack("<I", struct.pack("<f", x))[0]
def vr(a, n=4): return f"v[{a}:{a+n-1}]"
def ar(a, n=4): return f"a[{a}:{a+n-1}]"
MF = "v_mfma_f32_32x32x16_bf16"
MF16 = "v_mfma_f32_16x16x32_bf16"

def srd(S, d, lo, nbytes):
    S.e(f"s_mov_b32 s{d}, s{lo}\ns_mov_b32 s{d+1}, s{lo+1}\ns_mov_b32 s{d+2}, {nbytes}\ns_mov_b32 s{d+3}, 0x20000")

STAMP_REGS = [92, 94, 96, 98, 100, 28, 30, 4, 6, 8, 10, 12, 14, 16, 18, 20]
ST_OFF = 0xD00000
class Stamper:
    def __init__(self, regs=STAMP_REGS): self.n = 0; self.names = []; self.regs = regs
    def __call__(self, S, name, fine=False):
        if not OPT.get("stamps"): return
        if (OPT.get("stamps") == "fine") != fine and name != "end": return
        r = self.regs[self.n]; self.n += 1; self.names.append(name)
        S.e(f"{'s_memtime' if fine else 's_memrealtime'} s[{r}:{r+1}]")
    def flush(self, S, srd_s, base, vtmp, nwaves):
        if not OPT.get("stamps"): return
        S.e("s_waitcnt lgkmcnt(0)")
        for i in range(self.n): S.e(f"v_mov_b32 v{vtmp+i}, s{self.regs[i]}")
        S.e(f"s_mul_i32 s88, s2, {nwaves*64}\ns_lshl_b32 s89, s3, 6\ns_add_u32 s88, s88, s89\ns_add_u32 s88, s88, {base}\nv_mov_b32 v0, 0\ns_mov_b64 exec, 1")
        for i in range(0, 16, 4): S.e(f"buffer_store_dwordx4 v[{vtmp+i}:{vtmp+i+3}], v0, {srd_s}, s88 offen offset:{i*4}")
        if OPT.get("dbgst"):
            Stamper.uid = getattr(Stamper, "uid", 0) + 1
            S.e(f"s_lshl_b32 s88, s2, 4\ns_add_u32 s88, s88, s3\ns_cmp_lg_u32 s88, {OPT['dbgst']}\ns_cbranch_scc1 DBGST{Stamper.uid}")
            for i in range(1, self.n): S.e(f"v_sub_u32 v{vtmp+i}, v{vtmp+i}, v{vtmp}", opt=True)
            for i in range(0, 16, 4): S.e(f"buffer_store_dwordx4 v[{vtmp+i}:{vtmp+i+3}], v0, s[44:47], 0 offen offset:{i*4}", opt=True)
            S.e(f"DBGST{Stamper.uid}:")
        print("stamps", self.names, file=sys.stderr)

AREA = 12288
W0 = 98304; WS_ = 20480
MISC = 159744
WPHI = MISC
CNT = MISC + 2048
STATS_OFF = 0xC00000
REG2 = 18432
CSP = 147456; KVF = 147456 + 5120
PKO = 12288; VVO = 16384
NVG1 = 168

V_L = 1; V_L16 = 2; V_Z = 3
V_AX = 4; V_AT = 8
V_CSA = 13; V_PHA = 14; V_TMP = 15
V_RINV, V_SD = 16, 17
V_C0, V_C1, V_S2 = 18, 19, 20
BP = 24
XB = 28; AB = 36; ACC = 56; SC = 136
PT = 136; STV = 152
S_PF, S_X, S_OUT, S_WG, S_WU, S_WS, S_DBG, S_WQ, S_D1, S_WD, S_WO = 12, 24, 28, 32, 36, 40, 44, 48, 52, 56, 60
S_MT, S_C4, S_HL, S_HEAD, S_TYPE, S_XROW, S_AREA, S_D0L, S_H = 64, 65, 66, 67, 68, 69, 70, 71, 72
S_ODD = 73
S_T = 74
S_HH = 80
S_HFB = 82
S_U0, S_U12 = 83, 84
S_M = 85
S_SROW = 86
S_G = 87
M1 = "s[88:89]"; M2 = "s[90:91]"
HHM = f"s[{S_HH}:{S_HH+1}]"
t0, t1, t2, t3, t4, t5 = [f"s{S_T+i}" for i in range(6)]
tm = f"s{S_M}"
S_M64, S_N64, S_MT2 = 65, 66, 73
def sq(d): return f"s[{d}:{d+3}]"
STAMPR = [92, 94, 96, 98, 100, 4, 6, 8, 10, 16, 18, 20, 22]
B_OWNMT = f"s_lshl_b32 {t2}, s{S_MT}, 5"
B_MT2 = f"s_lshl_b32 {t2}, s{S_MT2}, 5"
B_KV = f"s_lshl_b32 {t2}, s{S_HEAD}, 1\ns_add_u32 {t2}, {t2}, 1"

def bf16r(S, d, src):
    S.e(f"v_cvt_pk_bf16_f32 v{d}, {src}, {src}\nv_lshlrev_b32 v{d}, 16, v{d}")

def xhalf(S, op, x, t):
    S.e(f"v_mov_b32 v{t}, v{x}\nv_permlane32_swap_b32 v{t}, v{x}\n{op} v{x}, v{x}, v{t}")

def wave_sum(S, x, t):
    for m in ("quad_perm:[1,0,3,2]", "quad_perm:[2,3,0,1]", "row_half_mirror", "row_mirror"):
        S.e(f"v_add_f32_dpp v{x}, v{x}, v{x} {m} row_mask:0xf bank_mask:0xf")
    S.e(f"v_mov_b32 v{t}, v{x}\nv_permlane16_swap_b32 v{t}, v{x}\nv_add_f32 v{x}, v{x}, v{t}")
    xhalf(S, "v_add_f32", x, t)


MB_OFF = 0xE00000; MB_STRIDE = 4096 + 256
def signal(tag, cnt_off, kind, lab, A, B, Cc, last):
    G = Stream()
    if tag: G.wait_vm(*tag.split(","))
    G.e(f"""
    v_mov_b32 v{A}, {CNT + cnt_off}
    v_mov_b32 v{B}, 1
    s_mov_b64 exec, 1
    ds_add_rtn_u32 v{Cc}, v{A}, v{B}
    s_mov_b64 exec, -1
    v_readfirstlane_b32 {t1}, v{Cc}
    s_cmp_lg_u32 {t1}, {last}
    s_cbranch_scc1 {lab}
    """)
    if kind == "init":
        G.e(f"s_lshr_b32 {t2}, s{S_SROW}, 3\ns_mov_b64 exec, 1", opt=True)
        G.e(f"buffer_store_byte v{B}, v{V_Z}, {sq(S_DBG)}, {t2} offen sc1", opt=True)
    elif kind in ("h", "o"):
        G.e(f"""
        s_and_b32 {t1}, s{S_MT}, 3
        s_lshl_b32 {t1}, {t1}, 1
        s_lshr_b32 {t2}, s{S_MT}, 2
        s_add_u32 {t1}, {t1}, {t2}
        s_mul_i32 {t1}, {t1}, {MB_STRIDE}
        {f's_bfe_u32 {t2}, s{S_SROW}, 0x50003' if kind == 'h' else f's_add_u32 {t2}, s{S_HEAD}, 32'}
        s_add_u32 {t1}, {t1}, {t2}
        s_add_u32 {t1}, {t1}, {MB_OFF}
        v_mul_u32_u24 v{Cc}, {8*MB_STRIDE}, v{V_L}
        s_mov_b64 exec, 0xfffffff
        """, opt=True)
        G.e(f"buffer_store_byte v{B}, v{Cc}, {sq(S_WS)}, {t1} offen sc1", opt=True)
    else:
        G.e(f"""
        s_lshr_b32 {t1}, s{S_HEAD}, 2
        s_lshl_b32 {t1}, {t1}, 1
        s_and_b32 {t2}, s{S_HEAD}, 3
        s_lshl_b32 {t2}, {t2}, 6
        s_add_u32 {t1}, {t1}, {t2}
        s_mul_i32 {t1}, {t1}, {MB_STRIDE}
        s_add_u32 {t1}, {t1}, s{S_MT}
        s_add_u32 {t1}, {t1}, {MB_OFF + 48}
        v_and_b32 v{Cc}, 3, v{V_L}
        v_lshlrev_b32 v{Cc}, 3, v{Cc}
        v_lshrrev_b32 v{A}, 2, v{V_L}
        v_add_u32 v{Cc}, v{Cc}, v{A}
        v_mul_u32_u24 v{Cc}, {MB_STRIDE}, v{Cc}
        v_mov_b32 v{A}, {CNT + cnt_off}
        s_mov_b64 exec, 0xff
        """, opt=True)
        G.e(f"buffer_store_byte v{B}, v{Cc}, {sq(S_WS)}, {t1} offen sc1", opt=True)
    G.e(f"s_mov_b64 exec, -1", opt=True)
    G.e(f"{lab}:")
    return G
def poll(lab, kind, D, A, who=None):
    G = Stream()
    if who is not None: G.e(f"s_cmp_lg_u32 s3, {who}\ns_cbranch_scc1 {lab}_ok")
    if kind == "init":
        setup = f"v_lshlrev_b32 v{A}, 2, v{V_L}\ns_mov_b32 {t2}, 0\ns_mov_b32 {t4}, 0x01010101"
        ld = f"buffer_load_dword v{D}, v{A}, {sq(S_DBG)}, {t2} offen sc1"
        cmp = f"v_cmp_ne_u32_e64 {M1}, {t4}, v{D}"
    else:
        base, mask = {"h": (0, 7), "o": (32, 3), "kv": (48, 1)}[kind]
        setup = f"v_and_b32 v{A}, {mask}, v{V_L}\nv_lshlrev_b32 v{A}, 2, v{A}\ns_mul_i32 {t2}, s2, {MB_STRIDE}\ns_add_u32 {t2}, {t2}, {MB_OFF + base}\ns_mov_b32 {t4}, 0x01010101"
        ld = f"buffer_load_dword v{D}, v{A}, {sq(S_WS)}, {t2} offen sc1"
        cmp = f"v_cmp_ne_u32_e64 {M1}, {t4}, v{D}"
    G.e(f"""
    {setup}
    s_mov_b32 {t3}, 0
    {lab}_loop:
    {ld}
    s_waitcnt vmcnt(0)
    {cmp}
    s_add_u32 {t3}, {t3}, 1
    s_cmp_eq_u64 {M1}, 0
    s_cbranch_scc1 {lab}_ok
    s_sleep {OPT.get('sleep', 4) if kind != 'init' else 16}
    s_cmp_lt_u32 {t3}, 0x8000
    s_cbranch_scc1 {lab}_loop
    """, opt=True)
    G.e(f"{lab}_ok:")
    return G

def tile_addrs(S, typ, AT, T):
    R, C, HH, NH = T + 1, T + 2, T + 3, T + 4
    S.e(f"""
    v_lshrrev_b32 v{HH}, 5, v{V_L}
    v_bfe_u32 v{NH}, v{V_L}, 4, 1
    v_bfe_u32 v{R}, v{V_L}, 2, 2
    v_and_b32 v{C}, 3, v{V_L}
    v_lshl_add_u32 v{T+5}, v{HH}, 3, v{R}
    v_lshlrev_b32 v{T+6}, 6, v{T+5}
    v_lshl_add_u32 v{T+8}, v{NH}, 2, v{C}
    v_add_u32 v{T+8}, s{S_ODD}, v{T+8}
    v_and_b32 v{T+8}, 7, v{T+8}
    v_lshl_add_u32 v{T+8}, v{T+8}, 3, v{T+6}
    """)
    if typ == "q":
        S.e(f"""
        v_add_u32 v{AT}, {W0 + 16384}, v{T+8}
        v_lshrrev_b32 v{T+6}, 1, v{C}
        v_and_b32 v{T+7}, 2, v{R}
        v_xor_b32 v{T+6}, v{T+6}, v{T+7}
        v_lshl_add_u32 v{T+6}, v{NH}, 2, v{T+6}
        v_lshlrev_b32 v{T+7}, 7, v{T+5}
        v_lshl_add_u32 v{T+7}, v{T+6}, 4, v{T+7}
        v_and_b32 v{T+6}, 1, v{C}
        v_lshl_add_u32 v{T+7}, v{T+6}, 3, v{T+7}
        v_lshl_add_u32 v{T+7}, v{NH}, 13, v{T+7}
        v_add_u32 v{AT+1}, {W0}, v{T+7}
        v_xor_b32 v{AT+2}, 32, v{AT+1}
        v_xor_b32 v{AT+3}, 64, v{AT+1}
        v_xor_b32 v{AT+4}, 0x60, v{AT+1}
        """)
    else:
        S.e(f"""
        v_add_u32 v{AT}, {W0}, v{T+8}
        v_lshl_add_u32 v{T+7}, v{C}, 3, v{T+6}
        v_mul_u32_u24 v{T+8}, 1056, v{NH}
        v_add_u32 v{AT+1}, v{T+7}, v{T+8}
        v_add_u32 v{AT+1}, {W0 + 2048}, v{AT+1}
        v_xor_b32 v{AT+2}, 32, v{AT+1}
        v_lshlrev_b32 v{T+6}, 5, v{T+5}
        v_lshl_add_u32 v{T+6}, v{C}, 3, v{T+6}
        v_mul_u32_u24 v{T+7}, 2176, v{NH}
        v_add_u32 v{AT+3}, v{T+6}, v{T+7}
        v_add_u32 v{AT+3}, {W0 + 16384}, v{AT+3}
        v_xor_b32 v{AT+4}, 0x80, v{AT+3}
        """)

def tile_read_args(typ, t, s, e):
    if typ == "q":
        return (0, s*1024 + e*256) if t == 0 else (t, s*2048 + e*512)
    if t == 0: return (0, s*4096 + e*256)
    if t == 1: return (0, s*4096 + 1024 + e*256)
    if t == 2: return (3 + e, s*512)
    return (t - 2, s*4096 + e*256)

def geglu(S, a, T, unit_sgpr, unit_add):
    for i in range(8): S.e(f"v_mul_f32 v{T+i}, v{a+i}, v{a+i}")
    for i in range(8): S.e(f"v_fma_f32 v{T+i}, v{T+i}, v{V_C1}, v{V_C0}")
    for i in range(8): S.e(f"v_mul_f32 v{T+i}, v{T+i}, v{a+i}")
    for i in range(8): S.e(f"v_exp_f32 v{T+i}, v{T+i}")
    for i in range(8): S.e(f"v_mul_f32 v{a+i}, v{a+i}, v{a+8+i}")
    for i in range(8): S.e(f"v_fma_f32 v{T+i}, v{T+i}, v{V_S2}, v{V_S2}")
    for i in range(8): S.e(f"v_rcp_f32 v{T+i}, v{T+i}")
    for i in range(8): S.e(f"v_mul_f32 v{a+i}, v{a+i}, v{T+i}")
    for i in range(4): S.e(f"v_cvt_pk_bf16_f32 v{T+8+i}, v{a+2*i}, v{a+2*i+1}")
    S.e(f"s_add_u32 s{S_G}, s{unit_sgpr}, {unit_add * 1024}")
    S.e(f"buffer_store_dwordx4 {vr(T+8)}, v{V_L16}, {sq(S_WS)}, s{S_G} offen{OPT['hf_flags']}", tag="hst")


def softmax14(S, P, E, T):
    N = 14
    for i in range(7): S.e(f"v_cvt_pk_bf16_f32 v{E+i}, v{P+2*i}, v{P+2*i+1}")
    for i in range(7): S.e(f"v_lshlrev_b32 v{P+2*i}, 16, v{E+i}\nv_and_b32 v{P+2*i+1}, 0xffff0000, v{E+i}")
    L = T + 4
    S.e(f"v_mov_b32 v{L}, {f32(1.4426950408889634)}")
    MX, MN = T, T + 1
    S.e(f"v_max3_f32 v{MX}, v{P}, v{P+1}, v{P+2}\nv_min3_f32 v{MN}, v{P}, v{P+1}, v{P+2}")
    for i in range(3, 13, 2):
        S.e(f"v_max3_f32 v{MX}, v{MX}, v{P+i}, v{P+i+1}\nv_min3_f32 v{MN}, v{MN}, v{P+i}, v{P+i+1}")
    S.e(f"v_max_f32 v{MX}, v{MX}, v{P+13}\nv_min_f32 v{MN}, v{MN}, v{P+13}")
    S.e(f"v_mov_b32 v{T+2}, v{MX}\nv_mov_b32 v{T+3}, v{MN}\nv_permlane32_swap_b32 v{T+2}, v{MX}\nv_permlane32_swap_b32 v{T+3}, v{MN}")
    S.e(f"v_max_f32 v{MX}, v{MX}, v{T+2}\nv_min_f32 v{MN}, v{MN}, v{T+3}")
    S.e(f"v_mul_f32 v{MX}, v{MX}, v{L}\nv_mul_f32 v{MN}, v{MN}, v{L}")
    for i in range(N): S.e(f"v_fma_f32 v{E+i}, v{P+i}, v{L}, -v{MX}")
    for i in range(N): S.e(f"v_fma_f32 v{P+i}, -v{P+i}, v{L}, v{MN}")
    for i in range(N): S.e(f"v_exp_f32 v{E+i}, v{E+i}")
    for i in range(N): S.e(f"v_exp_f32 v{P+i}, v{P+i}")
    SP, SM = T, T + 1
    S.e(f"v_add_f32 v{SP}, v{E}, v{E+1}\nv_add_f32 v{T+2}, v{E+2}, v{E+3}\nv_add_f32 v{SM}, v{P}, v{P+1}\nv_add_f32 v{T+3}, v{P+2}, v{P+3}")
    for i in range(4, N, 2):
        S.e(f"v_add_f32 v{SP}, v{SP}, v{E+i}\nv_add_f32 v{T+2}, v{T+2}, v{E+i+1}\nv_add_f32 v{SM}, v{SM}, v{P+i}\nv_add_f32 v{T+3}, v{T+3}, v{P+i+1}")
    S.e(f"v_add_f32 v{SP}, v{SP}, v{T+2}\nv_add_f32 v{SM}, v{SM}, v{T+3}")
    S.e(f"v_mov_b32 v{T+2}, v{SP}\nv_mov_b32 v{T+3}, v{SM}\nv_permlane32_swap_b32 v{T+2}, v{SP}\nv_permlane32_swap_b32 v{T+3}, v{SM}")
    S.e(f"v_add_f32 v{SP}, v{SP}, v{T+2}\nv_add_f32 v{SM}, v{SM}, v{T+3}")
    S.e(f"v_rcp_f32 v{SP}, v{SP}\nv_rcp_f32 v{SM}, v{SM}")
    for i in range(N): S.e(f"v_mul_f32 v{E+i}, v{E+i}, v{SP}")
    for i in range(N): S.e(f"v_mul_f32 v{P+i}, v{P+i}, v{SM}")
    for i in range(7): S.e(f"v_cvt_pk_bf16_f32 v{E+i}, v{E+2*i}, v{E+2*i+1}")
    for i in range(7): S.e(f"v_cvt_pk_bf16_f32 v{E+8+i}, v{P+2*i}, v{P+2*i+1}")
    S.e(f"v_mov_b32 v{E+7}, 0\nv_mov_b32 v{E+15}, 0")


def stats_consts(S):
    S.e(f"""
    v_mov_b32 v{BP}, v{V_RINV}
    v_mov_b32 v{BP+1}, v{V_RINV}
    v_mov_b32 v{BP+2}, v{V_RINV}
    v_mov_b32 v{BP+3}, v{V_RINV}
    v_rcp_f32 v{V_RINV}, v{V_SD}
    v_mul_f32 v{V_S2}, v{V_SD}, v{V_SD}
    v_mul_f32 v{V_C0}, {f32(-2.302208198)}, v{V_RINV}
    v_mul_f32 v{V_C1}, v{V_RINV}, v{V_RINV}
    v_mul_f32 v{V_C1}, v{V_C1}, v{V_C0}
    v_mul_f32 v{V_C1}, {f32(0.044715)}, v{V_C1}
    """)


def tagpoll(G, lab, A, D, soff, opt=False, first_issued=False, sleep=None):
    if first_issued:
        G.e(f"v_cmp_eq_u32_e64 {M1}, -1, v{D}\ns_mov_b32 {t3}, 0\ns_cmp_eq_u64 {M1}, 0\ns_cbranch_scc1 {lab}_ok")
        opt = True
    else:
        G.e(f"s_mov_b32 {t3}, 0")
    G.e(f"""
    {lab}_loop:
    buffer_load_dword v{D}, v{A}, {sq(S_WS)}, {soff} offen sc1
    s_waitcnt vmcnt(0)
    v_cmp_eq_u32_e64 {M1}, -1, v{D}
    s_add_u32 {t3}, {t3}, 1
    s_cmp_eq_u64 {M1}, 0
    s_cbranch_scc1 {lab}_ok
    s_sleep {sleep if sleep else OPT.get('sleep', 4)}
    s_cmp_lt_u32 {t3}, 0x8000
    s_cbranch_scc1 {lab}_loop
    """, opt=opt)
    G.e(f"{lab}_ok:")

def umax_tree(G, regs, T, opt=False):
    G.e(f"v_max3_u32 v{T}, v{regs[0]}, v{regs[1]}, v{regs[2]}", opt=opt)
    i = 3
    while i + 1 < len(regs):
        G.e(f"v_max3_u32 v{T}, v{T}, v{regs[i]}, v{regs[i+1]}", opt=opt); i += 2
    if i < len(regs): G.e(f"v_max_u32 v{T}, v{T}, v{regs[i]}", opt=opt)

def prologue():
    S = Stream()
    S.e(f"""
    s_cmp_ge_u32 s2, 256
    s_cbranch_scc1 K_END
    {'s_memrealtime s[92:93]' if OPT.get('stamps') else ''}
    s_load_dwordx16 s[4:19], s[0:1], 0
    s_load_dwordx4 s[20:23], s[0:1], 72
    s_load_dwordx2 s[{S_OUT}:{S_OUT+1}], s[0:1], 64
    v_lshrrev_b32 v{PT}, 6, v0
    v_and_b32 v{V_L}, 63, v0
    v_readfirstlane_b32 s3, v{PT}
    v_lshlrev_b32 v{V_L16}, 4, v{V_L}
    v_mov_b32 v{V_Z}, 0
    s_and_b32 {t0}, s2, 7
    s_lshr_b32 {t1}, s2, 3
    s_and_b32 s{S_MT}, {t0}, 1
    s_lshl_b32 s{S_MT}, s{S_MT}, 2
    s_and_b32 {t2}, {t1}, 3
    s_add_u32 s{S_MT}, s{S_MT}, {t2}
    s_lshr_b32 s{S_C4}, {t0}, 1
    s_lshr_b32 {t1}, {t1}, 2
    s_and_b32 s{S_TYPE}, {t1}, 1
    s_lshr_b32 s{S_HL}, {t1}, 1
    s_lshl_b32 s{S_HEAD}, s{S_C4}, 2
    s_add_u32 s{S_HEAD}, s{S_HEAD}, s{S_HL}
    s_and_b32 s{S_ODD}, s{S_HEAD}, 1
    s_lshl_b32 {t2}, s{S_MT}, 2
    s_add_u32 {t2}, {t2}, s{S_C4}
    s_lshl_b32 {t2}, {t2}, 3
    s_add_u32 {t2}, {t2}, {t1}
    s_lshl_b32 {t2}, {t2}, 3
    s_and_b32 {t3}, s3, 7
    s_add_u32 s{S_SROW}, {t2}, {t3}
    s_mov_b32 s{S_HH}, 0
    s_mov_b32 s{S_HH+1}, -1
    s_mul_i32 {t0}, s{S_C4}, 896
    s_lshl_b32 {tm}, s{S_HL}, 7
    s_add_u32 {t3}, {t0}, {tm}
    s_add_u32 {t0}, {t0}, 512
    s_mul_i32 {t1}, s{S_HL}, 3
    s_and_b32 {t2}, s{S_HL}, 1
    s_add_u32 {t5}, {t1}, {t2}
    s_lshl_b32 {t2}, {t2}, 1
    s_add_u32 {t1}, {t1}, 2
    s_sub_u32 {t1}, {t1}, {t2}
    s_lshl_b32 {t1}, {t1}, 5
    s_add_u32 {t1}, {t1}, {t0}
    s_lshl_b32 {t5}, {t5}, 5
    s_add_u32 {t0}, {t0}, {t5}
    s_cmp_eq_u32 s{S_TYPE}, 1
    s_cselect_b32 s{S_U0}, {t1}, {t3}
    s_cselect_b32 s{S_U12}, {t0}, {t3}
    s_cmp_ge_u32 s3, 8
    s_cbranch_scc1 K_helper
    """)
    return S

def p2_ids(S):
    S.e(f"""
    s_and_b32 {t0}, s2, 7
    s_lshr_b32 {t1}, s2, 3
    s_and_b32 {t2}, {t0}, 1
    s_lshl_b32 {t2}, {t2}, 2
    s_lshr_b32 {t0}, {t0}, 1
    s_add_u32 s{S_MT2}, {t0}, {t2}
    s_lshl_b32 s{S_M64}, s{S_MT2}, 2
    s_and_b32 {t2}, {t1}, 3
    s_add_u32 s{S_M64}, s{S_M64}, {t2}
    s_lshr_b32 s{S_N64}, {t1}, 2
    """)
def p2_a_voffsets(S, VD, VO, VOM, T):
    S.e(f"""
    v_lshrrev_b32 v{T}, 3, v{V_L}
    v_and_b32 v{T+1}, 7, v{V_L}
    v_bfe_u32 v{T+2}, v{V_L}, 4, 1
    v_lshlrev_b32 v{T+2}, 2, v{T+2}
    v_xor_b32 v{T+1}, v{T+1}, v{T+2}
    s_lshl_b32 {t0}, s{S_N64}, 7
    v_lshlrev_b32 v{T+1}, 4, v{T+1}
    v_add_u32 v{T+1}, {t0}, v{T+1}
    v_mul_u32_u24 v{VD}, 896, v{T}
    v_add_u32 v{VD}, v{VD}, v{T+1}
    """)
    if VO is not None:
        S.e(f"""
        v_lshrrev_b32 v{T+2}, 2, v{T}
        v_and_b32 v{T+3}, 3, v{T}
        v_mad_u32_u24 v{T+2}, v{T+2}, 14, v{T+3}
        v_mul_u32_u24 v{VO}, 896, v{T+2}
        v_add_u32 v{VO}, v{VO}, v{T+1}
        v_cmp_lt_u32_e64 {M1}, 1, v{T+3}
        v_mov_b32 v{T+2}, 0x7f000000
        v_cndmask_b32_e64 v{VOM}, v{VO}, v{T+2}, {M1}
        """)

def hsync(S, lab, cnt_off, target, A, B):
    S.wait_lgkm()
    S.e(f"""
    v_mov_b32 v{A}, {CNT + cnt_off}
    v_mov_b32 v{B}, 1
    s_mov_b64 exec, 1
    ds_add_u32 v{A}, v{B}
    s_mov_b64 exec, -1
    {lab}:
    ds_read_b32 v{B}, v{A}
    s_waitcnt lgkmcnt(0)
    v_readfirstlane_b32 {t1}, v{B}
    s_cmp_lt_u32 {t1}, {target}
    s_cbranch_scc1 {lab}
    """)

def helper_head():
    S = Stream(); T = PT
    S.e("K_helper:")
    S.e(f"s_setprio {OPT.get('hprio', 3)}")
    S.e(f"""
    s_sub_u32 s{S_H}, s3, 8
    s_lshl_b32 {t0}, s{S_MT}, 2
    s_add_u32 {t0}, {t0}, s{S_H}
    s_mul_i32 s{S_XROW}, {t0}, {64*896}
    s_mul_i32 s{S_AREA}, s{S_H}, {2*AREA}
    v_lshrrev_b32 v{T+7}, 3, v{V_L}
    v_mul_u32_u24 v{T}, 896, v{T+7}
    v_and_b32 v{T+8}, 7, v{V_L}
    v_lshrrev_b32 v{T+2}, 4, v{V_L}
    v_xor_b32 v{T+1}, v{T+8}, v{T+2}
    v_lshl_add_u32 v4, v{T+1}, 4, v{T}
    v_xor_b32 v5, 64, v4
    s_mul_i32 {t1}, s{S_HEAD}, 56
    s_lshl_b32 {t2}, s{S_ODD}, 3
    s_sub_u32 {t1}, {t1}, {t2}
    v_lshrrev_b32 v{T}, 2, v{V_L}
    v_and_b32 v{T+1}, 3, v{V_L}
    v_mul_u32_u24 v{T+4}, 2688, v{T}
    v_lshl_add_u32 v{T+4}, v{T+1}, 4, v{T+4}
    s_mul_i32 {tm}, s{S_H}, {16*2688}
    s_add_u32 {t1}, {t1}, {tm}
    v_add_u32 v6, {t1}, v{T+4}
    s_waitcnt lgkmcnt(0)
    """)
    srd(S, S_X, 4, 2048 * 896); srd(S, S_WQ, 6, 448 * 2688); srd(S, S_WG, 14, 448 * 3584); srd(S, S_WU, 16, 448 * 3584)
    S.e(f"s_cmp_eq_u32 s{S_TYPE}, 1\ns_cbranch_scc1 K_hkv")
    return S

def helper(typ):
    q = typ == "q"
    S = Stream(); T = PT
    S.e(f"K_h{typ}:")
    V_XE, V_XO, V_DQ, V_DG, V_DU, V_DS = 4, 5, 6, 7, 8, 9
    V_AC = 10; V_PF = 16
    CA = 18; CU = 23; CT = 34
    if q:
        S.e(f"""
        v_bfe_u32 v{T+2}, v{V_L}, 4, 1
        v_lshlrev_b32 v{T+2}, 1, v{T+2}
        v_xor_b32 v{T+2}, v{T+2}, v{T+8}
        v_mul_u32_u24 v{T+3}, 3584, v{T+7}
        v_lshl_add_u32 v{T+2}, v{T+2}, 4, v{T+3}
        s_mul_i32 {tm}, s{S_H}, {16*3584}
        s_add_u32 {tm}, {tm}, s{S_U0}
        v_add_u32 v{V_DG}, {tm}, v{T+2}
        v_xor_b32 v{V_DU}, 64, v{V_DG}
        """)
    else:
        S.e(f"""
        v_mul_u32_u24 v{T+3}, 3584, v{T}
        v_lshl_add_u32 v{V_DG}, v{T+1}, 4, v{T+3}
        s_mul_i32 {tm}, s{S_H}, {16*3584}
        s_add_u32 {tm}, {tm}, s{S_U12}
        v_add_u32 v{V_DG}, {tm}, v{V_DG}
        v_xor_b32 v{V_DU}, 32, v{V_DG}
        s_lshr_b32 {t2}, s{S_H}, 1
        s_cmp_eq_u32 {t2}, 0
        s_cselect_b32 s{S_D1}, s14, s16
        s_cselect_b32 s{S_D1+1}, s15, s17
        s_mov_b32 s{S_D1+2}, {448*3584}
        s_mov_b32 s{S_D1+3}, 0x20000
        s_lshl_b32 {t2}, {t2}, 2
        v_lshrrev_b32 v{T+5}, 1, v{V_L}
        v_xor_b32 v{T+5}, {t2}, v{T+5}
        v_mul_u32_u24 v{T+5}, 3584, v{T+5}
        v_and_b32 v{T+6}, 1, v{V_L}
        v_lshl_add_u32 v{T+5}, v{T+6}, 4, v{T+5}
        s_and_b32 {t2}, s{S_H}, 1
        s_mul_i32 {t2}, {t2}, {32*3584}
        s_add_u32 {t2}, {t2}, s{S_U0}
        v_add_u32 v{V_DS}, {t2}, v{T+5}
        """)
    S.e(f"s_lshl_b32 s{S_D0L}, s{S_H}, 10\ns_add_u32 s{S_D0L}, s{S_D0L}, {W0}\ns_lshl_b32 s{S_G}, s{S_H}, {11 if q else 12}\ns_add_u32 s{S_G}, s{S_G}, {W0}")
    def dma(c, lo=0, hi=13):
        sb = (c % 3) * WS_
        L = []
        def one(m0expr, soff, v, srdreg): L.append((m0expr, soff, v, srdreg))
        if q:
            one(f"s{S_D0L}, {sb + 16384}", f"s_mov_b32 {tm}, {c*172032}", V_DQ, S_WQ)
            for rg in range(2):
                one(f"s{S_G}, {sb + rg*1024}", f"s_mov_b32 {tm}, {c*229376 + rg*8*3584}", V_DG, S_WG)
                one(f"s{S_G}, {sb + 8192 + rg*1024}", f"s_mov_b32 {tm}, {c*229376 + rg*8*3584}", V_DU, S_WU)
        else:
            one(f"s{S_G}, {sb}", f"s_mov_b32 {tm}, {c*172032 + 896}", V_DQ, S_WQ)
            one(f"s{S_G}, {sb + 1024}", f"s_mov_b32 {tm}, {c*172032 + 1792}", V_DQ, S_WQ)
            one(f"s{S_G}, {sb + 2048}", f"s_mov_b32 {tm}, {c*229376}", V_DG, S_WG)
            one(f"s{S_G}, {sb + 3072}", f"s_mov_b32 {tm}, {c*229376}", V_DU, S_WU)
            one(f"s{S_D0L}, {sb + 16384}", f"s_mov_b32 {tm}, {c*229376}", V_DS, S_D1)
        for i in range(8):
            wv, qq = i >> 2, i & 3
            one(f"s{S_AREA}, {wv*AREA + (c % 3)*4096 + qq*1024}", f"s_add_u32 {tm}, s{S_XROW}, {(wv*32 + qq*8)*896 + c*128}", V_XO if qq & 1 else V_XE, S_X)
        for (m0expr, soff, v, srdreg) in L[lo:hi]:
            S.e(f"s_add_u32 m0, {m0expr}\n{soff}")
            S.e(f"buffer_load_dwordx4 v{v}, {sq(srdreg)}, {tm} offen lds", tag=f"d{c}")
    k1 = int(OPT.get("split1", 6))
    dma(0)
    tile_addrs(S, typ, V_AC, 60)
    for t in range(5):
        stride = (1024 if t == 0 else 2048) if q else (512 if t >= 3 else 4096)
        S.e(f"s_mul_i32 {t0}, s{S_H}, {stride}\nv_add_u32 v{V_AC+t}, {t0}, v{V_AC+t}")
    for i in range(5): S.e(f"v_mov_b32 v{CA+i}, 0")
    dma(1, 0, k1)
    def colsum_rd(c):
        for t in range(5):
            for e in range(2):
                a, imm = tile_read_args(typ, t, 0, e)
                S.e(f"ds_read_b64_tr_b16 {vr(CT + 20*(c % 5) + 4*t + 2*e, 2)}, v{V_AC+a} offset:{(c % 3)*WS_ + imm}")
    hb = [0]
    def colsum_add(nhalf):
        for _ in range(nhalf):
            c, hf = hb[0] >> 1, hb[0] & 1; hb[0] += 1
            for j in (2*hf, 2*hf + 1):
                src = CT + 20*(c % 5) + j
                for t in range(5): S.e(f"v_lshlrev_b32 v{CU+t}, 16, v{src + 4*t}")
                for t in range(5): S.e(f"v_and_b32 v{CU+5+t}, 0xffff0000, v{src + 4*t}")
                for t in range(5): S.e(f"v_add_f32 v{CA+t}, v{CA+t}, v{CU+t}")
                for t in range(5): S.e(f"v_add_f32 v{CA+t}, v{CA+t}, v{CU+5+t}")
    S.wait_vm("d0"); S.e("s_barrier")
    dma(1, k1, 13); colsum_rd(0); dma(2)
    S.wait_lgkm(); S.wait_vm("d1"); S.e("s_barrier")
    dma(3); colsum_rd(1)
    srd(S, S_WS, 22, WS_SIZE); srd(S, S_DBG, 20, 256); srd(S, S_WO, 8, 16 * 1568); srd(S, S_WD, 18, 1792 * 896)
    sched = dict(zip(range(2, 7), [int(x) for x in OPT.get('sched', '2,2,3,4,3').split(',')]))
    for c in range(2, 7):
        if c == 6: S.extend(poll(f"K_h{typ}_pst", "init", V_TMP, 17, who=8))
        S.wait_lgkm(); S.wait_vm(f"d{c}"); S.e("s_barrier")
        if c + 2 <= 6: dma(c + 2)
        if c == 2:
            for i in range(2):
                S.e(f"""
                v_lshrrev_b32 v{T+9}, 4, v{V_L}
                s_lshl_b32 {t0}, s{S_H}, 3
                s_add_u32 {t0}, {t0}, {4*i}
                v_add_u32 v{T+9}, {t0}, v{T+9}
                v_bfe_u32 v{T+10}, v{V_L}, 3, 1
                v_and_b32 v{T+11}, 7, v{V_L}
                v_mad_u32_u24 v{T+10}, v{T+10}, 7, v{T+11}
                v_mad_u32_u24 v{T+10}, v{T+9}, 14, v{T+10}
                v_lshlrev_b32 v{T+10}, 2, v{T+10}
                v_cmp_eq_u32_e64 {M1}, 7, v{T+11}
                s_cmp_eq_u32 {t0}, 28
                s_cselect_b64 {M1}, -1, {M1}
                v_mov_b32 v{T+11}, 0x7fffff00
                v_cndmask_b32_e64 v{T+10}, v{T+10}, v{T+11}, {M1}
                s_mul_i32 {t1}, s{S_HEAD}, 1568
                s_lshl_b32 {t0}, {t0}, 6
                s_add_u32 m0, {t0}, {WPHI}
                """)
                S.e(f"buffer_load_dword v{T+10}, {sq(S_WO)}, {t1} offen lds", tag="phi")
        if c == int(OPT.get("pfc", 3)) and OPT["prefetch"]:
            S.e(f"""
            s_lshr_b32 {t0}, s2, 3
            s_lshl_b32 {t0}, {t0}, 2
            s_add_u32 {t0}, {t0}, s{S_H}
            s_lshl_b32 {t0}, {t0}, 14
            s_mov_b32 {t3}, {1792*896}
            s_cmp_lt_u32 {t0}, {t3}
            s_cselect_b32 s{S_PF}, s18, s10
            s_cselect_b32 s{S_PF+1}, s19, s11
            s_cselect_b32 s{S_PF+2}, {t3}, {448*896}
            s_mov_b32 s{S_PF+3}, 0x20000
            s_cselect_b32 {t3}, 0, {t3}
            s_sub_u32 {t0}, {t0}, {t3}
            v_lshlrev_b32 v{V_PF}, 7, v{V_L}
            s_add_u32 {t1}, {t0}, 0x2000
            """)
            S.e(f"buffer_load_dword v{T+12}, v{V_PF}, {sq(S_PF)}, {t0} offen\nbuffer_load_dword v{T+13}, v{V_PF}, {sq(S_PF)}, {t1} offen", tag="pf")
        if c >= 5:
            colsum_rd(c); colsum_add(sched[c])
        else:
            colsum_rd(c); colsum_add(sched[c])
    assert hb[0] == 14
    S.e(f"s_lshl_b32 {t0}, s{S_H}, 2\ns_add_u32 {t0}, {t0}, {CSP}\nv_add_u32 v{T}, {t0}, v{V_L16}")
    for t in range(5): S.e(f"v_cvt_pk_bf16_f32 v{T+1+t}, v{CA+t}, v{CA+t}")
    for t in range(5): S.e(f"v_lshlrev_b32 v{T+1+t}, 16, v{T+1+t}")
    for t in range(5): S.e(f"v_sub_f32 v{T+1+t}, v{CA+t}, v{T+1+t}")
    for t in range(5): S.e(f"v_cvt_pk_bf16_f32 v{T+1+t}, v{CA+t}, v{T+1+t}")
    for t in range(5): S.e(f"ds_write_b32 v{T}, v{T+1+t} offset:{t*1024}")
    S.wait_vm("phi"); S.wait_lgkm()
    return S

def hpost(typ):
    q = typ == "q"
    S = Stream(); T = PT
    S.e(f"K_hpost_{typ}:")
    st = Stamper(STAMPR); st.n = 1; st.names = ["start"]
    V_WD = 18
    p2_ids(S)
    p2_a_voffsets(S, V_WD, None, None, 60)
    S.e(f"""
    s_mul_i32 s{S_AREA}, s{S_H}, {2*REG2}
    s_and_b32 {t0}, s{S_H}, 1
    s_lshl_b32 {t0}, {t0}, 2
    s_lshr_b32 {t1}, s{S_H}, 1
    s_add_u32 {t0}, {t0}, {t1}
    s_mul_i32 s{S_XROW}, {t0}, {14*16*896}
    s_cmp_ge_u32 s2, 224
    s_cselect_b32 {t0}, 0x40000000, 0
    s_add_u32 s{S_XROW}, s{S_XROW}, {t0}
    s_barrier
    s_setprio {OPT.get('hprio2', 0)}
    """)
    st(S, "B1")
    def adma(lo, hi):
        for i in range(lo, hi):
            for wv in range(2):
                for u in range(2):
                    S.e(f"s_add_u32 m0, s{S_AREA}, {wv*REG2 + i*2048 + u*1024}\ns_add_u32 {tm}, s{S_XROW}, {((wv*28 + i)*16 + 8*u)*896}")
                    S.e(f"buffer_load_dwordx4 v{V_WD}, {sq(S_WD)}, {tm} offen lds", tag="a1")
    adma(0, 6)
    if q:
        KO = 4; U = 5; PH = 100
        S.e(f"""
        s_lshl_b32 {t0}, s{S_H}, 11
        v_add_u32 v{KO}, {t0}, v{V_L16}
        v_and_b32 v{U+3}, 7, v{V_L}
        v_lshlrev_b32 v{U+3}, 13, v{U+3}
        v_add_u32 v{U+3}, 0x1e80, v{U+3}
        s_lshl_b32 {t0}, s{S_H}, 10
        s_add_u32 {t0}, {t0}, {KVF}
        v_add_u32 v{U}, {t0}, v{V_L16}
        v_add_u32 v{U+1}, {KVF}, v{V_L16}
        v_add_u32 v{U+2}, s{S_AREA}, v{V_L16}
        s_lshl_b32 {t0}, s{S_MT}, 2
        s_add_u32 {t0}, {t0}, s{S_H}
        s_mul_i32 s{S_HFB}, {t0}, {2*NKS*1024}
        s_lshl_b32 {t0}, s{S_HEAD}, 11
        s_add_u32 s{S_HFB}, s{S_HFB}, {t0}
        s_add_u32 s{S_HFB}, s{S_HFB}, {112*1024}
        s_lshl_b32 s{S_G}, s{S_HEAD}, 16
        s_add_u32 s{S_G}, s{S_G}, {KVP_OFF}
        """)
        S.wait_vm("a1"); S.e("s_barrier")
        st(S, "B2")
        for wv in range(2):
            for k in range(4): S.e(f"ds_read_b128 {vr(PH + 16*wv + 4*k)}, v{U+2} offset:{wv*REG2 + PKO + k*1024}")
        S.wait_lgkm()
        S.e(f"v_mov_b32 v12, {CNT + 12}\nv_mov_b32 v13, 1\ns_mov_b64 exec, 1\nds_add_u32 v12, v13\ns_mov_b64 exec, -1\ns_setprio 3")
        S.e(f"v_mov_b32 v14, {CNT + 16}\ns_cmp_lg_u32 s3, 8\ns_cbranch_scc1 K_hq_spin")
        G = Stream(); tagpoll(G, "K_hq_pkv", U + 3, V_TMP, f"s{S_G}", opt=True, sleep=int(OPT.get("sleepkv", 8)))
        for x in G: x.opt = True
        S.extend(G)
        S.e(f"ds_write_b32 v14, v13\ns_branch K_hq_go", opt=True)
        S.e(f"""
        K_hq_spin:
        s_sleep 2
        ds_read_b32 v13, v14
        s_waitcnt lgkmcnt(0)
        v_readfirstlane_b32 {t1}, v13
        s_cmp_eq_u32 {t1}, 0
        s_cbranch_scc1 K_hq_spin
        """, opt=True)
        S.e("K_hq_go:")
        st(S, "kvrdy")
        KL = 20
        S.e(f"s_mov_b32 {t4}, 0\nK_hq_gather:\ns_mov_b32 {t0}, s{S_G}")
        for i in range(8):
            for e in range(2):
                S.e(f"buffer_load_dwordx4 {vr(KL + 8*i + 4*e)}, v{KO}, {sq(S_WS)}, {t0} offen offset:{e*1024} sc1")
            if i < 7: S.e(f"s_add_u32 {t0}, {t0}, 8192")
        umax_tree(S, list(range(KL, KL + 64)), V_TMP)
        S.e(f"""
        v_cmp_eq_u32_e64 {M1}, -1, v{V_TMP}
        s_add_u32 {t4}, {t4}, 1
        s_cmp_eq_u64 {M1}, 0
        s_cbranch_scc1 K_hq_gok
        s_cmp_lt_u32 {t4}, 0x1000
        s_cbranch_scc1 K_hq_gather
        K_hq_gok:
        """)
        for step in (1, 2, 4):
            for i in range(0, 8, 2*step):
                for j in range(8): S.e(f"v_add_f32 v{KL+8*i+j}, v{KL+8*i+j}, v{KL+8*(i+step)+j}")
        for j in range(4): S.e(f"v_cvt_pk_bf16_f32 v{KL+8+j}, v{KL+2*j}, v{KL+2*j+1}")
        S.e(f"ds_write_b128 v{U}, {vr(KL+8)}")
        hsync(S, "K_hq_sync", 0, 4, 12, 13)
        st(S, "kvf")
        KF = 20; OO = [36, 52]; G2 = 68; RR = [84, 92]
        for k in range(4): S.e(f"ds_read_b128 {vr(KF + 4*k)}, v{U+1} offset:{k*1024}")
        for wv in range(2):
            for k in range(4): S.e(f"{MF} {vr(OO[wv],16)}, {vr(KF + 4*k)}, {vr(PH + 16*wv + 4*k)}, {'0' if k == 0 else vr(OO[wv],16)}")
        for wv in range(2):
            O = OO[wv]; R = RR[wv]
            bf16r(S, G2, f"v{O+14}")
            S.e(f"v_add_f32 v{G2}, {f32(1e-6)}, v{G2}")
            bf16r(S, G2, f"v{G2}")
            S.e(f"v_rcp_f32 v{G2}, v{G2}")
            for i in range(7): S.e(f"v_cvt_pk_bf16_f32 v{G2+1+i}, v{O+2*i}, v{O+2*i+1}")
            for i in range(7): S.e(f"v_lshlrev_b32 v{O+2*i}, 16, v{G2+1+i}\nv_and_b32 v{O+2*i+1}, 0xffff0000, v{G2+1+i}")
            for i in range(14): S.e(f"v_mul_f32 v{O+i}, v{O+i}, v{G2}")
            for i in range(7): S.e(f"v_cvt_pk_bf16_f32 v{R+i}, v{O+2*i}, v{O+2*i+1}")
            S.e(f"v_mov_b32 v{R+7}, 0\ns_add_u32 {t0}, s{S_HFB}, {wv*NKS*1024}")
            S.e(f"buffer_store_dwordx4 {vr(R)}, v{V_L16}, {sq(S_WS)}, {t0} offen sc1\nbuffer_store_dwordx4 {vr(R+4)}, v{V_L16}, {sq(S_WS)}, {t0} offen offset:1024 sc1", tag="ost")
    else:
        X = 20; KA = 4; KB = 10
        S.e(f"""
        v_lshrrev_b32 v{X}, 4, v{V_L}
        v_bfe_u32 v{X+1}, v{V_L}, 2, 2
        v_lshl_add_u32 v{X}, v{X}, 3, v{X+1}
        v_bfe_u32 v{X+2}, v{V_L}, 1, 1
        s_lshl_b32 {t0}, s{S_H}, 1
        v_add_u32 v{X+4}, {t0}, v{X+2}
        v_xor_b32 v{X+4}, v{X+4}, v{X+1}
        v_lshlrev_b32 v{X+3}, 7, v{X}
        v_lshl_add_u32 v{X+3}, v{X+4}, 4, v{X+3}
        v_and_b32 v{X+5}, 1, v{V_L}
        v_lshl_add_u32 v{KA}, v{X+5}, 3, v{X+3}
        v_add_u32 v{KA}, {PKO}, v{KA}
        v_xor_b32 v{KA+1}, 64, v{KA}
        v_lshrrev_b32 v{X+4}, 1, v{X+1}
        v_xor_b32 v{X+4}, v{X+4}, v{X+2}
        v_lshlrev_b32 v{X+3}, 6, v{X}
        v_lshl_add_u32 v{X+3}, v{X+4}, 4, v{X+3}
        v_lshl_add_u32 v{KB}, v{X+5}, 3, v{X+3}
        v_add_u32 v{KB}, {VVO}, v{KB}
        v_xor_b32 v{KB+1}, 32, v{KB}
        """)
        for rg in (1, 2):
            for k in range(2):
                S.e(f"v_add_u32 v{KA+2*rg+k}, {rg*3*REG2}, v{KA+k}\nv_add_u32 v{KB+2*rg+k}, {rg*3*REG2}, v{KB+k}")
        S.e(f"""
        s_lshl_b32 {t4}, s{S_HEAD}, 3
        s_add_u32 {t4}, {t4}, s{S_MT}
        s_lshl_b32 {t4}, {t4}, 13
        s_lshr_b32 {t0}, s{S_H}, 1
        s_lshl_b32 {t0}, {t0}, 12
        s_add_u32 {t4}, {t4}, {t0}
        s_and_b32 {t0}, s{S_H}, 1
        s_lshl_b32 {t0}, {t0}, 9
        s_add_u32 {t4}, {t4}, {t0}
        s_add_u32 {t4}, {t4}, {KVP_OFF}
        """)
        for dh in range(2):
            D = 130 + dh
            S.e(f"""
            v_bfe_u32 v{X}, v{V_L}, 2, 2
            v_and_b32 v{X+1}, 3, v{V_L}
            v_lshl_add_u32 v{X}, v{X}, 3, v{X+1}
            v_add_u32 v{X}, {4*dh}, v{X}
            v_cmp_lt_u32_e64 {M1}, 13, v{X}
            v_subrev_u32 v{X+1}, 14, v{X}
            v_cndmask_b32_e64 v{X+1}, v{X}, v{X+1}, {M1}
            v_cndmask_b32_e64 v{X+2}, 0, 4, {M1}
            v_cmp_lt_u32_e64 {M2}, 27, v{X}
            v_and_b32 v{X+3}, 1, v{X}
            v_lshlrev_b32 v{X+3}, 2, v{X+3}
            v_bfe_u32 v{X+4}, v{X}, 1, 1
            v_add_u32 v{X+4}, 14, v{X+4}
            v_cndmask_b32_e64 v{X+1}, v{X+1}, v{X+4}, {M2}
            v_cndmask_b32_e64 v{X+2}, v{X+2}, v{X+3}, {M2}
            v_lshrrev_b32 v{X+3}, 2, v{X+1}
            v_and_b32 v{X+1}, 3, v{X+1}
            v_lshl_add_u32 v{X+1}, v{X+3}, 3, v{X+1}
            v_add_u32 v{X+1}, v{X+1}, v{X+2}
            v_lshrrev_b32 v{X+2}, 4, v{V_L}
            v_lshlrev_b32 v{X+2}, 10, v{X+2}
            v_lshl_add_u32 v{D}, v{X+1}, 4, v{X+2}
            """)
        S.wait_vm("a1")
        S.e(f"""
        s_barrier
        s_setprio 3
        """)
        st(S, "B2")
        FB = 32; KD = 24
        for kk in range(8):
            b = FB + 12 * kk; rg = kk // 3; ro = (kk % 3) * REG2
            for e in range(2):
                S.e(f"ds_read_b64_tr_b16 {vr(b + 2*e, 2)}, v{KA + 2*rg + e} offset:{ro + e*512}")
                for dh in range(2):
                    S.e(f"ds_read_b64_tr_b16 {vr(b + 4 + 4*dh + 2*e, 2)}, v{KB + 2*rg + (e ^ dh)} offset:{ro + e*256}")
        for kk in range(8):
            b = FB + 12 * kk
            for dh in range(2):
                S.e(f"{MF16} {vr(KD + 4*dh)}, {vr(b)}, {vr(b + 4 + 4*dh)}, {'0' if kk == 0 else vr(KD + 4*dh)}")
        for dh in range(2):
            S.e(f"buffer_store_dwordx4 {vr(KD + 4*dh)}, v{130+dh}, {sq(S_WS)}, {t4} offen sc1", tag="kvst")
        st(S, "kvst")
        S.e(f"v_mov_b32 v12, {CNT + 12}\nv_mov_b32 v13, 1\ns_mov_b64 exec, 1\nds_add_u32 v12, v13\ns_mov_b64 exec, -1")
    st(S, "end")
    st.flush(S, sq(S_WS), ST_OFF, 24, 12)
    S.e("s_endpgm")
    return S
def compute_head():
    S = Stream(); T = PT
    S.e(f"""
    s_lshl_b32 {t0}, s{S_MT}, 3
    s_add_u32 {t0}, {t0}, s3
    s_mul_i32 s{S_HFB}, {t0}, {NKS*1024}
    s_mul_i32 s{S_AREA}, s3, {AREA}
    s_mul_i32 {t2}, s{S_SROW}, 896
    v_cmp_gt_u32_e64 {M2}, 56, v{V_L}
    v_mov_b32 v{T+2}, 0x7f000000
    v_cndmask_b32_e64 v{T+2}, v{T+2}, v{V_L16}, {M2}
    s_waitcnt lgkmcnt(0)
    """)
    srd(S, S_X, 4, 2048 * 896)
    S.e(f"buffer_load_dwordx4 {vr(STV)}, v{T+2}, {sq(S_X)}, {t2} offen", tag="strow")
    if OPT.get("touch"):
        S.e(f"""
        s_lshr_b32 {t0}, s2, 3
        v_mul_u32_u24 v{T+3}, 0x2493, v{V_L}
        v_lshrrev_b32 v{T+3}, 16, v{T+3}
        v_mul_u32_u24 v{T+4}, 7, v{T+3}
        v_sub_u32 v{T+4}, v{V_L}, v{T+4}
        v_lshlrev_b32 v{T+4}, 7, v{T+4}
        s_cmp_ge_u32 s3, 6
        s_cselect_b32 s{S_D1}, s16, s14
        s_cselect_b32 s{S_D1+1}, s17, s15
        s_mov_b32 s{S_D1+2}, {448*3584}
        s_mov_b32 s{S_D1+3}, 0x20000
        s_lshl_b32 {t1}, {t0}, 1
        s_and_b32 {t3}, s3, 1
        s_add_u32 {t1}, {t1}, {t3}
        s_mul_i32 {t1}, {t1}, {7*3584}
        s_mul_i32 {t3}, s{S_C4}, 896
        s_add_u32 s{S_D0L}, {t1}, {t3}
        s_and_b32 {t1}, s2, 1
        s_lshl_b32 {t1}, {t1}, 5
        s_add_u32 {t1}, {t1}, {t0}
        s_lshl_b32 {t1}, {t1}, 2
        s_add_u32 {t1}, {t1}, s3
        s_mul_i32 {t1}, {t1}, {8*896}
        s_movk_i32 {t3}, 0xe00
        s_movk_i32 {t4}, 49
        s_cmp_lt_u32 s3, 4
        s_cselect_b32 s{S_D1}, s4, s{S_D1}
        s_cselect_b32 s{S_D1+1}, s5, s{S_D1+1}
        s_cselect_b32 s{S_D1+2}, {2048*896}, s{S_D1+2}
        s_cselect_b32 s{S_D0L}, {t1}, s{S_D0L}
        s_cselect_b32 {t3}, 896, {t3}
        s_cselect_b32 {t4}, 56, {t4}
        v_mul_u32_u24 v{T+5}, {t3}, v{T+3}
        v_add_u32 v{T+5}, v{T+5}, v{T+4}
        v_cmp_gt_u32_e64 {M1}, {t4}, v{V_L}
        v_mov_b32 v{T+6}, 0x7f000000
        v_cndmask_b32_e64 v21, v{T+6}, v{T+5}, {M1}
        s_mov_b32 s{S_WQ}, s6
        s_mov_b32 s{S_WQ+1}, s7
        s_mov_b32 s{S_WQ+2}, {448*2688}
        s_mov_b32 s{S_WQ+3}, 0x20000
        v_mul_u32_u24 v{T+5}, 0x5556, v{V_L}
        v_lshrrev_b32 v{T+5}, 16, v{T+5}
        v_mul_u32_u24 v{T+7}, 3, v{T+5}
        v_sub_u32 v{T+7}, v{V_L}, v{T+7}
        v_mul_u32_u24 v{T+5}, 2688, v{T+5}
        v_lshl_add_u32 v{T+5}, v{T+7}, 7, v{T+5}
        v_cmp_gt_u32_e64 {M1}, 42, v{V_L}
        v_cndmask_b32_e64 v22, v{T+6}, v{T+5}, {M1}
        s_mul_i32 {t1}, {t0}, {14*2688}
        s_mul_i32 {t3}, s3, 896
        s_add_u32 {t1}, {t1}, {t3}
        s_mul_i32 {t3}, s{S_C4}, 224
        s_and_b32 {t3}, {t3}, 0xffffff80
        s_add_u32 {t1}, {t1}, {t3}
        s_cmp_ge_u32 s3, 3
        s_cselect_b32 s{S_G}, 0x40000000, {t1}
        """)
    srd(S, S_WS, 22, WS_SIZE); srd(S, S_DBG, 20, 256); srd(S, S_WD, 18, 1792 * 896); srd(S, S_WO, 10, 448 * 896)
    S.e(f"s_mov_b32 s{S_OUT+2}, {2048*896}\ns_mov_b32 s{S_OUT+3}, 0x20000")
    S.e(f"""
    s_lshl_b32 s{S_U0}, s{S_U0}, 5
    s_add_u32 s{S_U0}, s{S_U0}, s{S_HFB}
    s_lshl_b32 s{S_U12}, s{S_U12}, 5
    s_add_u32 s{S_U12}, s{S_U12}, s{S_HFB}
    v_lshrrev_b32 v{T+3}, 5, v{V_L}
    v_and_b32 v{T+5}, 31, v{V_L}
    v_bfe_u32 v{T+6}, v{V_L}, 1, 3
    v_xor_b32 v{T+6}, v{T+6}, v{T+3}
    v_lshlrev_b32 v{T+5}, 7, v{T+5}
    v_lshl_add_u32 v{T+5}, v{T+6}, 4, v{T+5}
    v_add_u32 v{V_AX}, s{S_AREA}, v{T+5}
    v_xor_b32 v{V_AX+1}, 32, v{V_AX}
    v_xor_b32 v{V_AX+2}, 64, v{V_AX}
    v_xor_b32 v{V_AX+3}, 0x60, v{V_AX}
    v_add_u32 v{V_CSA}, {CSP}, v{V_L16}
    v_bfe_u32 v{T+1}, v{V_L}, 2, 2
    v_lshl_add_u32 v{T+9}, v{T+3}, 2, v{T+1}
    v_lshlrev_b32 v{T+9}, 6, v{T+9}
    v_and_b32 v{T+10}, 1, v{V_L}
    v_lshl_add_u32 v{T+9}, v{T+10}, 5, v{T+9}
    v_bfe_u32 v{T+10}, v{V_L}, 1, 1
    v_bfe_u32 v{T+4}, v{V_L}, 4, 1
    v_lshl_add_u32 v{T+10}, v{T+4}, 1, v{T+10}
    v_lshl_add_u32 v{T+9}, v{T+10}, 3, v{T+9}
    v_add_u32 v{V_PHA}, {WPHI}, v{T+9}
    v_mov_b32 v{T+9}, {CNT}
    ds_write_b32 v{T+9}, v{V_Z}
    ds_write_b32 v{T+9}, v{V_Z} offset:4
    ds_write_b32 v{T+9}, v{V_Z} offset:8
    ds_write_b32 v{T+9}, v{V_Z} offset:12
    ds_write_b32 v{T+9}, v{V_Z} offset:16
    """)
    U = PT
    for j in range(4): S.e(f"v_lshlrev_b32 v{U+2*j}, 16, v{STV+j}\nv_and_b32 v{U+2*j+1}, 0xffff0000, v{STV+j}")
    S.e(f"""
    v_add_f32 v{U+8}, v{U}, v{U+1}
    v_add_f32 v{U+9}, v{U+2}, v{U+3}
    v_add_f32 v{U+10}, v{U+4}, v{U+5}
    v_add_f32 v{U+11}, v{U+6}, v{U+7}
    v_add_f32 v{U+8}, v{U+8}, v{U+9}
    v_add_f32 v{U+10}, v{U+10}, v{U+11}
    v_add_f32 v{U+8}, v{U+8}, v{U+10}
    """)
    wave_sum(S, U + 8, U + 9)
    S.e(f"v_mul_f32 v{U+8}, {f32(1/448)}, v{U+8}")
    for j in range(8): S.e(f"v_sub_f32 v{U+j}, v{U+j}, v{U+8}")
    S.e(f"v_mul_f32 v{U+9}, v{U}, v{U}\nv_mul_f32 v{U+10}, v{U+1}, v{U+1}")
    for j in range(2, 8): S.e(f"v_fmac_f32 v{U+9+(j&1)}, v{U+j}, v{U+j}")
    S.e(f"v_add_f32 v{U+9}, v{U+9}, v{U+10}\nv_cndmask_b32_e64 v{U+9}, 0, v{U+9}, {M2}")
    wave_sum(S, U + 9, U + 10)
    S.e(f"v_mul_f32 v{U+9}, {f32(1/448)}, v{U+9}")
    bf16r(S, U + 9, f"v{U+9}")
    S.e(f"v_add_f32 v{U+9}, {f32(1e-5)}, v{U+9}")
    bf16r(S, U + 9, f"v{U+9}")
    S.e(f"v_sqrt_f32 v{U+9}, v{U+9}")
    bf16r(S, STV + 1, f"v{U+9}")
    S.e(f"""
    v_cvt_pk_bf16_f32 v{STV}, -v{U+8}, -v{U+8}
    s_lshl_b32 {t0}, s{S_SROW}, 3
    s_add_u32 {t0}, {t0}, {STATS_OFF}
    s_mov_b64 exec, 1
    """)
    S.e(f"buffer_store_dwordx2 {vr(STV, 2)}, v{V_Z}, {sq(S_WS)}, {t0} offen sc1", tag="stst")
    S.e(f"s_mul_i32 {t0}, s2, {MB_STRIDE}\ns_lshl_b32 {t1}, s3, 2\ns_add_u32 {t0}, {t0}, {t1}\ns_add_u32 {t0}, {t0}, {MB_OFF}")
    S.e(f"buffer_store_dword v{V_Z}, v{V_Z}, {sq(S_WS)}, {t0} offen sc1", tag="stst")
    S.e("s_mov_b64 exec, -1")
    S.e(f"s_cmp_eq_u32 s{S_TYPE}, 1\ns_cbranch_scc1 K_kv")
    return S


def compute(typ):
    q = typ == "q"
    S = Stream(); T = PT
    S.e(f"K_{typ}:")
    st = Stamper(STAMPR); st.n = 1; st.names = ["start"]
    tile_addrs(S, typ, V_AT, T)
    p2_ids(S)
    pend = []
    def ABn(n): return AB if n % 2 == 1 else SC + 8
    def a_read(n, t):
        c, s = n >> 2, n & 3
        for e in range(2):
            a, imm = tile_read_args(typ, t, s, e)
            S.e(f"ds_read_b64_tr_b16 {vr(ABn(n) + 4*t + 2*e, 2)}, v{V_AT+a} offset:{(c % 3)*WS_ + imm}")
    def x_read(n):
        c, s = n >> 2, n & 3
        S.e(f"ds_read_b128 {vr(XB + 4*(n & 1))}, v{V_AX+s} offset:{(c % 3) * 4096}")
    def kstep(n):
        if n + 1 < 28:
            x_read(n + 1); a_read(n + 1, 0); a_read(n + 1, 1)
        for t in range(5):
            S.e(f"{MF} {vr(ACC + 16*t, 16)}, {vr(ABn(n) + 4*t)}, {vr(XB + 4*(n & 1))}, {'0' if n == 0 else vr(ACC + 16*t, 16)}")
            if n + 1 < 28 and t + 2 < 5: a_read(n + 1, t + 2)
            if pend: S.extend(pend.pop(0))
    S.wait_lgkm(); S.e("s_barrier")
    st(S, "bar0")
    x_read(0)
    for t in range(5): a_read(0, t)
    for c in range(7):
        S.comment(f"chunk {c}")
        if c in (4,): st(S, f"chunk{c}")
        n = 4 * c
        if OPT.get("touch") and c == int(OPT["touch"]):
            G = Stream(); G.e(f"buffer_load_dword v21, v21, {sq(S_D1)}, s{S_D0L} offen"); pend.append(G)
            G = Stream(); G.e(f"buffer_load_dword v22, v22, {sq(S_WQ)}, s{S_G} offen"); pend.append(G)
        if c == int(OPT.get("poic", 0)):
            G = Stream(); G.e(f"v_mov_b32 v{SC}, -1\nv_mov_b32 v{SC+1}, -1\nv_mov_b32 v{SC+2}, -1\nv_mov_b32 v{SC+3}, -1"); pend.append(G)
            if q:
                offs = [f"s_lshl_b32 {t0}, s{S_HEAD}, 11\ns_add_u32 {t0}, {t0}, s{S_HFB}\ns_add_u32 {t0}, {t0}, {(112+u)*1024}" for u in range(2)]
            else:
                offs = [f"s_lshl_b32 {t0}, s{S_HEAD}, 3\ns_add_u32 {t0}, {t0}, s{S_MT}\ns_lshl_b32 {t0}, {t0}, 3\ns_add_u32 {t0}, {t0}, s3\ns_lshl_b32 {t0}, {t0}, 10\ns_add_u32 {t0}, {t0}, {KVP_OFF}"]
            for o in offs:
                G = Stream(); G.e(o); G.e(f"buffer_store_dwordx4 {vr(SC)}, v{V_L16}, {sq(S_WS)}, {t0} offen sc1", tag="stst"); pend.append(G); pend.append(Stream())
        if c == int(OPT.get("poic", 0)) + 1: pend.append(signal("stst", 4, "init", f"K_{typ}_nosigst", SC + 4, SC + 5, SC + 6, 7))
        kstep(n); kstep(n + 1); kstep(n + 2)
        S.wait_lgkm(); S.e("s_barrier")
        if c == 5:
            G = Stream()
            G.e(f"""
            v_and_b32 v{V_TMP}, 31, v{V_L}
            v_lshlrev_b32 v{V_TMP}, 3, v{V_TMP}
            s_lshl_b32 {t0}, s{S_MT}, 3
            s_add_u32 {t0}, {t0}, s3
            s_lshl_b32 {t0}, {t0}, 8
            s_add_u32 {t0}, {t0}, {STATS_OFF}
            buffer_load_dwordx2 {vr(V_RINV, 2)}, v{V_TMP}, {sq(S_WS)}, {t0} offen sc1
            """)
            pend.append(G)
        if c == 6:
            CR = SC + 8
            for t in range(5): S.e(f"ds_read_b128 {vr(CR + 4*t)}, v{V_CSA} offset:{t*1024}")
            stats_consts(S)
        kstep(n + 3)
    st(S, "S1")
    WPF = XB; E = AB; QB = E + 8; TT = 4; GT = SC; GT2 = SC + 12
    A0 = ACC
    S.e(f"{MF} {vr(ACC,16)}, {vr(CR)}, {vr(BP)}, {vr(ACC,16)}")
    for te in range(4): S.e(f"ds_read_b64_tr_b16 {vr(WPF + 2*te, 2)}, v{V_PHA} offset:{te * 512}")
    for t in range(1, 5): S.e(f"{MF} {vr(ACC + 16*t,16)}, {vr(CR + 4*t)}, {vr(BP)}, {vr(ACC + 16*t,16)}")
    S.e(f"s_mul_i32 s{S_AREA}, s3, {REG2}")
    if not q:
        W = SC + 28; X = 4
        S.e(f"""
        v_and_b32 v{X}, 31, v{V_L}
        v_lshrrev_b32 v{X+1}, 5, v{V_L}
        v_lshlrev_b32 v{X+1}, 1, v{X+1}
        v_bfe_u32 v{X+2}, v{V_L}, 1, 2
        v_xor_b32 v{X+2}, v{X+2}, v{X+1}
        v_lshlrev_b32 v{X+3}, 6, v{X}
        v_lshl_add_u32 v{X+3}, v{X+2}, 4, v{X+3}
        s_add_u32 {t0}, s{S_AREA}, {VVO}
        v_add_u32 v9, {t0}, v{X+3}
        v_xor_b32 v10, 16, v9
        v_and_b32 v{X+3}, 7, v{V_L}
        v_xor_b32 v{X+1}, v{X+1}, v{X+3}
        v_lshlrev_b32 v{X}, 7, v{X}
        v_lshl_add_u32 v{X}, v{X+1}, 4, v{X}
        s_add_u32 {t0}, s{S_AREA}, {PKO}
        v_add_u32 v{W}, {t0}, v{X}
        v_xor_b32 v{W+1}, 16, v{W}
        v_xor_b32 v{W+2}, 64, v{W}
        v_xor_b32 v{W+3}, 0x50, v{W}
        """)
    for i in range(16): S.e(f"v_mul_f32 v{A0+i}, v{A0+i}, v{V_RINV}")
    for i in range(8): S.e(f"v_cvt_pk_bf16_f32 v{QB+i}, v{A0+2*i}, v{A0+2*i+1}")
    S.e(f"{MF} {vr(A0,16)}, {vr(WPF)}, {vr(QB)}, 0\n{MF} {vr(A0,16)}, {vr(WPF+4)}, {vr(QB+4)}, {vr(A0,16)}")
    if q:
        geglu(S, ACC + 16, GT, S_U0, 0)
        geglu(S, ACC + 32, GT2, S_U0, 1)
        geglu(S, ACC + 48, GT, S_U0, 2)
        geglu(S, ACC + 64, GT2, S_U0, 3)
        st(S, "ffn")
        softmax14(S, A0, E, TT)
        S.e(f"s_add_u32 {t0}, s{S_AREA}, {PKO}\nv_add_u32 v9, {t0}, v{V_L16}")
        for kk in range(4): S.e(f"ds_write_b128 v9, {vr(E + 4*kk)} offset:{kk*1024}")
        S.extend(signal("hst", 8, "h", f"K_{typ}_nosigh", 56, 57, 58, 7))
        S.wait_lgkm(); S.e("s_barrier")
    else:
        A1 = ACC + 16
        def ffn():
            geglu(S, ACC + 32, GT, S_U0, 0)
            geglu(S, ACC + 48, GT2, S_U12, 0)
            geglu(S, ACC + 64, GT, S_U12, 1)
        FF = OPT.get("kvffn", "first")
        if FF == "first": ffn()
        for i in range(16): S.e(f"v_mul_f32 v{A1+i}, v{A1+i}, v{V_RINV}")
        for i in range(8): S.e(f"v_cvt_pk_bf16_f32 v{A1+i}, v{A1+2*i}, v{A1+2*i+1}")
        S.e(f"""
        v_mov_b32 v{A1+8}, 0x3f803f80
        v_cndmask_b32_e64 v{A1+6}, v{A1+6}, v{A1+8}, {HHM}
        ds_write_b128 v9, {vr(A1)}
        ds_write_b128 v10, {vr(A1+4)}
        """)
        softmax14(S, A0, E, TT)
        for k in range(4): S.e(f"ds_write_b128 v{W+k}, {vr(E+4*k)}")
        if FF == "first": S.extend(signal("hst", 8, "h", f"K_{typ}_nosigh", 56, 57, 58, 7))
        S.wait_lgkm(); S.e("s_barrier")
        st(S, "B2")
        if FF != "first": ffn()
    V_WD, V_WOo, V_WOM, V_B0, V_B1, V_A0, V_A1, V_O = 4, 5, 6, 7, 8, 9, 10, 11
    TP = 56
    p2_a_voffsets(S, V_WD, V_WOo, V_WOM, TP)
    S.e(f"""
    s_and_b32 {t3}, s3, 1
    s_bfe_u32 {t4}, s3, 0x10001
    s_lshr_b32 {t5}, s3, 2
    s_lshl_b32 {t0}, s{S_M64}, 1
    s_add_u32 {t0}, {t0}, {t3}
    s_mul_i32 {t1}, {t0}, {NKS*1024}
    v_add_u32 v{V_B0}, {t1}, v{V_L16}
    s_xor_b32 {t1}, {t0}, 1
    s_mul_i32 {t1}, {t1}, {NKS*1024}
    v_add_u32 v{V_B1}, {t1}, v{V_L16}
    v_bfe_u32 v{TP}, v{V_L}, 2, 2
    v_lshrrev_b32 v{TP+1}, 5, v{V_L}
    v_lshl_add_u32 v{TP+2}, v{TP+1}, 2, v{TP}
    v_lshlrev_b32 v{TP+2}, 7, v{TP+2}
    v_lshrrev_b32 v{TP}, 1, v{TP}
    v_xor_b32 v{TP}, {t4}, v{TP}
    v_lshl_add_u32 v{TP+2}, v{TP}, 6, v{TP+2}
    v_and_b32 v{TP}, 1, v{V_L}
    v_lshl_add_u32 v{TP+2}, v{TP}, 5, v{TP+2}
    v_bfe_u32 v{TP}, v{V_L}, 1, 1
    v_bfe_u32 v{TP+3}, v{V_L}, 4, 1
    v_xor_b32 v{TP+3}, {t5}, v{TP+3}
    v_lshl_add_u32 v{TP}, v{TP+3}, 1, v{TP}
    v_lshl_add_u32 v{TP+2}, v{TP}, 3, v{TP+2}
    v_add_u32 v{V_A0}, s{S_AREA}, v{TP+2}
    v_xor_b32 v{V_A1}, 64, v{V_A0}
    v_and_b32 v{TP}, 31, v{V_L}
    s_lshl_b32 {t0}, {t0}, 5
    v_add_u32 v{TP}, {t0}, v{TP}
    v_mul_u32_u24 v{TP}, 896, v{TP}
    v_lshlrev_b32 v{TP+1}, 5, v{TP+1}
    s_lshl_b32 {t0}, s{S_N64}, 7
    s_lshl_b32 {t1}, {t4}, 6
    s_add_u32 {t0}, {t0}, {t1}
    s_lshl_b32 {t1}, {t5}, 4
    s_add_u32 {t0}, {t0}, {t1}
    v_add3_u32 v{V_O}, v{TP}, v{TP+1}, {t0}
    s_and_b32 {t0}, s3, 3
    s_lshl_b32 {t0}, {t0}, 1
    s_add_u32 s{S_H}, {t0}, {t5}
    s_mul_i32 s{S_XROW}, s{S_H}, {14*16*896}
    s_mul_i32 s{S_D0L}, s{S_H}, {2*28*896}
    s_mul_i32 s{S_U0}, s{S_H}, {14*1024}
    s_lshl_b32 s{S_U12}, s{S_H}, 12
    s_add_u32 s{S_U12}, s{S_U12}, {112*1024 - 14*1024}
    """)
    st(S, "p1end")
    if not q and FF != "first": S.extend(signal("hst", 8, "h", f"K_{typ}_nosigh", TP, TP + 1, TP + 2, 7))
    if not q: S.e(f"s_cmp_ge_u32 s2, 224\ns_cbranch_scc1 K_{typ}_fin")
    AC2 = 104
    bfree = [16, 24, 32, 40, 48]
    ablk = {i: b for i, b in enumerate([56, 64, 72, 80, 88, 96])}
    slot_of = {i: i for i in range(6)}
    def a_tr(i, blk):
        for ni in range(2):
            for e in range(2):
                S.e(f"ds_read_b64_tr_b16 {vr(blk + 4*ni + 2*e, 2)}, v{V_A0+ni} offset:{slot_of[i]*2048 + e*1024}", tag=f"ar{i}")
    def a_dma(i, sl):
        slot_of[i] = sl
        for u in range(2):
            S.e(f"s_add_u32 m0, s{S_AREA}, {sl*2048 + u*1024}")
            if i < 14:
                S.e(f"s_add_u32 {tm}, s{S_XROW}, {(16*i + 8*u)*896}")
                S.e(f"buffer_load_dwordx4 v{V_WD}, {sq(S_WD)}, {tm} offen lds", tag=f"a{i}")
            else:
                hd, t = (i - 14) >> 1, (i - 14) & 1
                S.e(f"s_add_u32 {tm}, s{S_D0L}, {(28*hd + 8*t + 4*u)*896}")
                S.e(f"buffer_load_dwordx4 v{V_WOM if (t and u) else V_WOo}, {sq(S_WO)}, {tm} offen lds", tag=f"a{i}")
    for i in range(6): a_tr(i, ablk[i])
    S.e(f"""
    v_and_b32 v14, 15, v{V_L}
    v_min_u32 v14, 13, v14
    v_lshlrev_b32 v14, 10, v14
    v_cmp_lt_u32_e64 {M1}, 15, v{V_L}
    v_readlane_b32 {t0}, v{V_B0}, 63
    v_readlane_b32 {t1}, v{V_B1}, 63
    v_mov_b32 v12, {t0}
    v_mov_b32 v13, {t1}
    v_cndmask_b32_e64 v15, v12, v13, {M1}
    v_add_u32 v12, v15, v14
    v_and_b32 v14, 3, v{V_L}
    v_lshlrev_b32 v14, 10, v14
    v_add_u32 v13, v15, v14
    s_add_u32 s{S_G}, s{S_U12}, {14*1024}
    """)
    S.wait_lgkm()
    S.e(f"""
    s_mul_i32 {t2}, s2, {MB_STRIDE}
    s_lshr_b32 {t0}, s{S_H}, 1
    s_lshl_b32 {t0}, {t0}, 3
    s_add_u32 {t2}, {t2}, {t0}
    s_add_u32 {t2}, {t2}, {MB_OFF}
    s_cmp_lt_u32 s3, 4
    s_mov_b32 {t4}, 0x01010101
    s_cselect_b32 {t4}, 0x00010001, {t4}
    buffer_load_dwordx2 v[14:15], v{V_Z}, {sq(S_WS)}, {t2} offen sc1
    """)
    for i in range(6, 6 + int(OPT.get("apre", 6))): a_dma(i, i - 6)
    def zone():
        S.e(f"""
        v_mov_b32 v16, {CNT + 12}
        K_{typ}_zone:
        ds_read_b32 v17, v16
        s_waitcnt lgkmcnt(0)
        v_readfirstlane_b32 {t1}, v17
        s_cmp_lt_u32 {t1}, 4
        s_cbranch_scc1 K_{typ}_zone
        """)
        for i in range(12, 15): a_dma(i, i - 6)

    if OPT.get("zpre", True): zone()
    st(S, "w5")
    S.e(f"""
    v_and_b32 v14, v14, v15
    v_and_b32 v14, {t4}, v14
    v_readfirstlane_b32 {t1}, v14
    s_mov_b32 {t3}, 0
    s_cmp_eq_u32 {t1}, {t4}
    s_cbranch_scc1 K_{typ}_phok
    """)
    S.e(f"""
    K_{typ}_ph:
    buffer_load_dwordx2 v[14:15], v{V_Z}, {sq(S_WS)}, {t2} offen sc1
    s_waitcnt vmcnt(0)
    v_and_b32 v14, v14, v15
    v_and_b32 v14, {t4}, v14
    v_readfirstlane_b32 {t1}, v14
    s_add_u32 {t3}, {t3}, 1
    s_cmp_eq_u32 {t1}, {t4}
    s_cbranch_scc1 K_{typ}_phok
    s_sleep {OPT.get('sleep', 4)}
    s_cmp_lt_u32 {t3}, 0x8000
    s_cbranch_scc1 K_{typ}_ph
    """, opt=True)
    S.e(f"K_{typ}_phok:")
    S.append(pseudo("forget_opt"))
    st(S, "B5")
    bblk = {}
    nextb = [0]
    def b_issue(i, opt=False):
        S.e(f"s_add_u32 {tm}, s{S_U0 if i < 14 else S_U12}, {i*1024}", opt=opt)
        for mi in range(2):
            S.e(f"buffer_load_dwordx4 {vr(bblk[i] + 4*mi)}, v{V_B0+mi}, {sq(S_WS)}, {tm} offen sc1", opt=opt)
    def b_load():
        i = nextb[0]
        if i >= 18 or not bfree: return False
        if i == 14:
            tagpoll(S, f"K_{typ}_po", 13, 14, f"s{S_G}", first_issued=True)
            st(S, "B6")
        bblk[i] = bfree.pop(0)
        b_issue(i)
        nextb[0] += 1
        return True
    OLAG = int(OPT.get("olag", 4))
    while b_load(): pass
    if not OPT.get("zpre", True): zone()
    afree = []
    for i in range(18):
        if i + 1 < 18 and (i + 1) not in ablk:
            ablk[i + 1] = afree.pop(0)
            S.wait_vm(f"a{i+1}")
            a_tr(i + 1, ablk[i + 1])
        if i >= 14:
            regs = list(range(bblk[i], bblk[i] + 8))
            umax_tree(S, regs, 15)
            S.e(f"v_cmp_eq_u32_e64 {M1}, -1, v15\ns_cmp_eq_u64 {M1}, 0\ns_cbranch_scc1 K_{typ}_bok{i}")
            S.e(f"s_mov_b32 {t3}, 0\nK_{typ}_bre{i}:", opt=True)
            b_issue(i, opt=True)
            S.e("s_waitcnt vmcnt(0)", opt=True)
            umax_tree(S, regs, 15, opt=True)
            S.e(f"v_cmp_eq_u32_e64 {M1}, -1, v15\ns_add_u32 {t3}, {t3}, 1\ns_cmp_eq_u64 {M1}, 0\ns_cbranch_scc1 K_{typ}_bok{i}\ns_cmp_lt_u32 {t3}, 0x4000\ns_cbranch_scc1 K_{typ}_bre{i}", opt=True)
            S.e(f"K_{typ}_bok{i}:")
            S.append(pseudo("forget_opt"))
        for lq in range(4):
            ni, mi = lq >> 1, lq & 1
            S.e(f"{MF} {vr(AC2 + 16*lq, 16)}, {vr(ablk[i] + 4*ni)}, {vr(bblk[i] + 4*mi)}, {'0' if i == 0 else vr(AC2 + 16*lq, 16)}")
        bfree.append(bblk[i])
        if i in (3, 4) or i >= 6: afree.append(ablk[i])
        else: bfree.append(ablk[i])
        if i in (7, 8, 9): a_dma(i + 8, i - 7)
        if i == 14 - OLAG - 2: S.e(f"buffer_load_dword v14, v13, {sq(S_WS)}, s{S_G} offen sc1")
        while nextb[0] < 18 and (nextb[0] < 14 or nextb[0] <= i + OLAG) and b_load(): pass
        if i == 17: S.e(f"buffer_load_dwordx4 {vr(12)}, v{V_O}, {sq(S_X)}, 0 offen")
    st(S, "mm")
    S.e(f"v_add_u32 v{V_WD}, s{S_AREA}, v{V_L16}")
    def piece(pp): lq = (pp & 1) | (((pp >> 1) & 1) << 1); return AC2 + 16*lq + 8*(pp >> 2)
    for pp in range(1, 8):
        for j in range(2): S.e(f"ds_write_b128 v{V_WD}, {vr(piece(pp) + 4*j)} offset:{(pp-1)*2048 + j*1024}")
    for pp in range(1, 8):
        S.e(f"s_xor_b32 {t0}, s3, {pp}\ns_mul_i32 {t0}, {t0}, {REG2}\nv_add_u32 v{16+pp}, {t0}, v{V_L16}")
    S.wait_lgkm(); S.e("s_barrier")
    R = 32
    for pp in range(1, 8):
        for j in range(2): S.e(f"ds_read_b128 {vr(R + 8*(pp-1) + 4*j)}, v{16+pp} offset:{(pp-1)*2048 + j*1024}")
    for j in range(4): S.e(f"v_lshlrev_b32 v{24+2*j}, 16, v{12+j}\nv_and_b32 v{25+2*j}, 0xffff0000, v{12+j}")
    for j in range(8): S.e(f"v_add_f32 v{AC2+j}, v{AC2+j}, v{24+j}")
    for j in range(8): S.e(f"v_add_f32 v{AC2+j}, v{AC2+j}, v{R+j}")
    for j in range(8): S.e(f"v_add_f32 v{R+8+j}, v{R+8+j}, v{R+16+j}")
    for j in range(8): S.e(f"v_add_f32 v{R+24+j}, v{R+24+j}, v{R+32+j}")
    for j in range(8): S.e(f"v_add_f32 v{R+40+j}, v{R+40+j}, v{R+48+j}")
    for j in range(8): S.e(f"v_add_f32 v{AC2+j}, v{AC2+j}, v{R+8+j}")
    for j in range(8): S.e(f"v_add_f32 v{R+24+j}, v{R+24+j}, v{R+40+j}")
    for j in range(8): S.e(f"v_add_f32 v{AC2+j}, v{AC2+j}, v{R+24+j}")
    for j in range(4): S.e(f"v_cvt_pk_bf16_f32 v{24+j}, v{AC2+2*j}, v{AC2+2*j+1}")
    S.e(f"buffer_store_dwordx4 {vr(24)}, v{V_O}, {sq(S_OUT)}, 0 offen")
    S.e(f"K_{typ}_fin:")
    st(S, "end")
    st.flush(S, sq(S_WS), ST_OFF, 104, 12)
    S.e("s_endpgm")
    return S

def gen_all():
    pro = list(prologue()); ch = list(compute_head()); hh = list(helper_head())
    out = []
    def part(prefix, body, label):
        full = finalize(prefix + list(body))
        idx = next(i for i, x in enumerate(full) if x.text == label) if label else 0
        return full[idx:]
    out += part(pro + ch, compute("q"), None)
    out += part(pro + ch, compute("kv"), "K_kv:")
    out += part(pro + hh, list(helper("q")) + list(hpost("q")), "K_helper:")
    out += part(pro + hh, list(helper("kv")) + list(hpost("kv")), "K_hkv:")
    out.append(I("K_END:")); out.append(I("s_endpgm"))
    return out

def build(path):
    k = gen_all()
    print("K", stats(k), file=sys.stderr)
    ref = open(f"cdna_kernels/{NAME}.s.ref").read().split("\n")
    hdr = [l for l in ref if l.startswith(";") and "@launch" not in l and "Override" not in l and "grid=ceil" not in l]
    txt = "\n".join(hdr) + "\n"
    txt += f"; @launch grid=(256,1,1) block=(768,1,1) lds=163840\n"
    txt += '.amdgcn_target "amdgcn-amd-amdhsa--gfx950"\n.text\n'
    txt += f".globl {K1}\n.p2align 8\n.type {K1},@function\n{K1}:\n" + render(k)
    txt += f""".section .rodata,"a"
.p2align 6
.amdhsa_kernel {K1}
  .amdhsa_next_free_vgpr {NVG1}
  .amdhsa_next_free_sgpr 102
  .amdhsa_accum_offset {NVG1}
  .amdhsa_group_segment_fixed_size 0
  .amdhsa_kernarg_size 88
  .amdhsa_user_sgpr_count 2
  .amdhsa_user_sgpr_kernarg_segment_ptr 1
  .amdhsa_system_sgpr_workgroup_id_x 1
.end_amdhsa_kernel
"""
    open(path, "w").write(txt)

if __name__ == "__main__":
    for a in sys.argv[2:]:
        k, v = a.split("=")
        OPT[k] = {"True": True, "False": False}.get(v, v.replace("_", " ") if k.endswith("flags") else v)
    build(sys.argv[1] if len(sys.argv) > 1 else f"cdna_kernels/{NAME}.s")
```

```python
import sys, os, struct
sys.path.insert(0, os.path.dirname(os.path.abspath(__file__)))
from dsl import *

NAME = "parallel_sum__linear_kernel_hedgehog__geglu_ffn__prompt"
K1 = NAME + "_kernel"
K2 = "k2_kernel"

HF_OFF = 0
KVP_OFF = 0xB00000
PHF_OFF = 0x1000000
WS_SIZE = 0x1400000
NKS = 144

OPT = dict(mimic_ffn=False, hf_flags=" sc1", k2d="8", prefetch=True)

def f32(x): return "0x%08x" % struct.unpack("<I", struct.pack("<f", x))[0]
def vr(a, n=4): return f"v[{a}:{a+n-1}]"
def ar(a, n=4): return f"a[{a}:{a+n-1}]"
MF = "v_mfma_f32_32x32x16_bf16"
MF16 = "v_mfma_f32_16x16x32_bf16"

def srd(S, d, lo, nbytes):
    S.e(f"s_mov_b32 s{d}, s{lo}\ns_mov_b32 s{d+1}, s{lo+1}\ns_mov_b32 s{d+2}, {nbytes}\ns_mov_b32 s{d+3}, 0x20000")

STAMP_REGS = [92, 94, 96, 98, 100, 28, 30, 4, 6, 8, 10, 12, 14, 16, 18, 20]
ST_OFF = 0xD00000
class Stamper:
    def __init__(self, regs=STAMP_REGS): self.n = 0; self.names = []; self.regs = regs
    def __call__(self, S, name, fine=False):
        if not OPT.get("stamps"): return
        if (OPT.get("stamps") == "fine") != fine and name != "end": return
        r = self.regs[self.n]; self.n += 1; self.names.append(name)
        S.e(f"{'s_memtime' if fine else 's_memrealtime'} s[{r}:{r+1}]")
    def flush(self, S, srd_s, base, vtmp, nwaves):
        if not OPT.get("stamps"): return
        S.e("s_waitcnt lgkmcnt(0)")
        for i in range(self.n): S.e(f"v_mov_b32 v{vtmp+i}, s{self.regs[i]}")
        S.e(f"s_mul_i32 s88, s2, {nwaves*64}\ns_lshl_b32 s89, s3, 6\ns_add_u32 s88, s88, s89\ns_add_u32 s88, s88, {base}\nv_mov_b32 v0, 0\ns_mov_b64 exec, 1")
        for i in range(0, 16, 4): S.e(f"buffer_store_dwordx4 v[{vtmp+i}:{vtmp+i+3}], v0, {srd_s}, s88 offen offset:{i*4}")
        if OPT.get("dbgst"):
            Stamper.uid = getattr(Stamper, "uid", 0) + 1
            S.e(f"s_lshl_b32 s88, s2, 4\ns_add_u32 s88, s88, s3\ns_cmp_lg_u32 s88, {OPT['dbgst']}\ns_cbranch_scc1 DBGST{Stamper.uid}")
            for i in range(1, self.n): S.e(f"v_sub_u32 v{vtmp+i}, v{vtmp+i}, v{vtmp}", opt=True)
            for i in range(0, 16, 4): S.e(f"buffer_store_dwordx4 v[{vtmp+i}:{vtmp+i+3}], v0, s[44:47], 0 offen offset:{i*4}", opt=True)
            S.e(f"DBGST{Stamper.uid}:")
        print("stamps", self.names, file=sys.stderr)

AREA = 12288
W0 = 98304; WS_ = 20480
MISC = 159744
WPHI = MISC
CNT = MISC + 2048
STATS_OFF = 0xC00000
REG2 = 18432
CSP = 147456; KVF = 147456 + 5120
PKO = 12288; VVO = 16384
NVG1 = 168

V_L = 1; V_L16 = 2; V_Z = 3
V_AX = 4; V_AT = 8
V_CSA = 13; V_PHA = 14; V_TMP = 15
V_RINV, V_SD = 16, 17
V_C0, V_C1, V_S2 = 18, 19, 20
BP = 24
XB = 28; AB = 36; ACC = 56; SC = 136
PT = 136; STV = 152
S_PF, S_X, S_OUT, S_WG, S_WU, S_WS, S_DBG, S_WQ, S_D1, S_WD, S_WO = 12, 24, 28, 32, 36, 40, 44, 48, 52, 56, 60
S_MT, S_C4, S_HL, S_HEAD, S_TYPE, S_XROW, S_AREA, S_D0L, S_H = 64, 65, 66, 67, 68, 69, 70, 71, 72
S_ODD = 73
S_T = 74
S_HH = 80
S_HFB = 82
S_U0, S_U12 = 83, 84
S_M = 85
S_SROW = 86
S_G = 87
M1 = "s[88:89]"; M2 = "s[90:91]"
HHM = f"s[{S_HH}:{S_HH+1}]"
t0, t1, t2, t3, t4, t5 = [f"s{S_T+i}" for i in range(6)]
tm = f"s{S_M}"
S_M64, S_N64, S_MT2 = 65, 66, 73
def sq(d): return f"s[{d}:{d+3}]"
STAMPR = [92, 94, 96, 98, 100, 4, 6, 8, 10, 16, 18, 20, 22]
B_OWNMT = f"s_lshl_b32 {t2}, s{S_MT}, 5"
B_MT2 = f"s_lshl_b32 {t2}, s{S_MT2}, 5"
B_KV = f"s_lshl_b32 {t2}, s{S_HEAD}, 1\ns_add_u32 {t2}, {t2}, 1"

def bf16r(S, d, src):
    S.e(f"v_cvt_pk_bf16_f32 v{d}, {src}, {src}\nv_lshlrev_b32 v{d}, 16, v{d}")

def xhalf(S, op, x, t):
    S.e(f"v_mov_b32 v{t}, v{x}\nv_permlane32_swap_b32 v{t}, v{x}\n{op} v{x}, v{x}, v{t}")

def wave_sum(S, x, t):
    for m in ("quad_perm:[1,0,3,2]", "quad_perm:[2,3,0,1]", "row_half_mirror", "row_mirror"):
        S.e(f"v_add_f32_dpp v{x}, v{x}, v{x} {m} row_mask:0xf bank_mask:0xf")
    S.e(f"v_mov_b32 v{t}, v{x}\nv_permlane16_swap_b32 v{t}, v{x}\nv_add_f32 v{x}, v{x}, v{t}")
    xhalf(S, "v_add_f32", x, t)


MB_OFF = 0xE00000; MB_STRIDE = 4096 + 256
def signal(tag, cnt_off, kind, lab, A, B, Cc, last):
    G = Stream()
    if tag: G.wait_vm(*tag.split(","))
    G.e(f"""
    v_mov_b32 v{A}, {CNT + cnt_off}
    v_mov_b32 v{B}, 1
    s_mov_b64 exec, 1
    ds_add_rtn_u32 v{Cc}, v{A}, v{B}
    s_mov_b64 exec, -1
    v_readfirstlane_b32 {t1}, v{Cc}
    s_cmp_lg_u32 {t1}, {last}
    s_cbranch_scc1 {lab}
    """)
    if kind == "init":
        G.e(f"s_lshr_b32 {t2}, s{S_SROW}, 3\ns_mov_b64 exec, 1", opt=True)
        G.e(f"buffer_store_byte v{B}, v{V_Z}, {sq(S_DBG)}, {t2} offen sc1", opt=True)
    elif kind in ("h", "o"):
        G.e(f"""
        s_and_b32 {t1}, s{S_MT}, 3
        s_lshl_b32 {t1}, {t1}, 1
        s_lshr_b32 {t2}, s{S_MT}, 2
        s_add_u32 {t1}, {t1}, {t2}
        s_mul_i32 {t1}, {t1}, {MB_STRIDE}
        {f's_bfe_u32 {t2}, s{S_SROW}, 0x50003' if kind == 'h' else f's_add_u32 {t2}, s{S_HEAD}, 32'}
        s_add_u32 {t1}, {t1}, {t2}
        s_add_u32 {t1}, {t1}, {MB_OFF}
        v_mul_u32_u24 v{Cc}, {8*MB_STRIDE}, v{V_L}
        s_mov_b64 exec, 0xfffffff
        """, opt=True)
        G.e(f"buffer_store_byte v{B}, v{Cc}, {sq(S_WS)}, {t1} offen sc1", opt=True)
    else:
        G.e(f"""
        s_lshr_b32 {t1}, s{S_HEAD}, 2
        s_lshl_b32 {t1}, {t1}, 1
        s_and_b32 {t2}, s{S_HEAD}, 3
        s_lshl_b32 {t2}, {t2}, 6
        s_add_u32 {t1}, {t1}, {t2}
        s_mul_i32 {t1}, {t1}, {MB_STRIDE}
        s_add_u32 {t1}, {t1}, s{S_MT}
        s_add_u32 {t1}, {t1}, {MB_OFF + 48}
        v_and_b32 v{Cc}, 3, v{V_L}
        v_lshlrev_b32 v{Cc}, 3, v{Cc}
        v_lshrrev_b32 v{A}, 2, v{V_L}
        v_add_u32 v{Cc}, v{Cc}, v{A}
        v_mul_u32_u24 v{Cc}, {MB_STRIDE}, v{Cc}
        v_mov_b32 v{A}, {CNT + cnt_off}
        s_mov_b64 exec, 0xff
        """, opt=True)
        G.e(f"buffer_store_byte v{B}, v{Cc}, {sq(S_WS)}, {t1} offen sc1", opt=True)
    G.e(f"s_mov_b64 exec, -1", opt=True)
    G.e(f"{lab}:")
    return G
def poll(lab, kind, D, A, who=None):
    G = Stream()
    if who is not None: G.e(f"s_cmp_lg_u32 s3, {who}\ns_cbranch_scc1 {lab}_ok")
    if kind == "init":
        setup = f"v_lshlrev_b32 v{A}, 2, v{V_L}\ns_mov_b32 {t2}, 0\ns_mov_b32 {t4}, 0x01010101"
        ld = f"buffer_load_dword v{D}, v{A}, {sq(S_DBG)}, {t2} offen sc1"
        cmp = f"v_cmp_ne_u32_e64 {M1}, {t4}, v{D}"
    else:
        base, mask = {"h": (0, 7), "o": (32, 3), "kv": (48, 1)}[kind]
        setup = f"v_and_b32 v{A}, {mask}, v{V_L}\nv_lshlrev_b32 v{A}, 2, v{A}\ns_mul_i32 {t2}, s2, {MB_STRIDE}\ns_add_u32 {t2}, {t2}, {MB_OFF + base}\ns_mov_b32 {t4}, 0x01010101"
        ld = f"buffer_load_dword v{D}, v{A}, {sq(S_WS)}, {t2} offen sc1"
        cmp = f"v_cmp_ne_u32_e64 {M1}, {t4}, v{D}"
    G.e(f"""
    {setup}
    s_mov_b32 {t3}, 0
    {lab}_loop:
    {ld}
    s_waitcnt vmcnt(0)
    {cmp}
    s_add_u32 {t3}, {t3}, 1
    s_cmp_eq_u64 {M1}, 0
    s_cbranch_scc1 {lab}_ok
    s_sleep {OPT.get('sleep', 4) if kind != 'init' else 16}
    s_cmp_lt_u32 {t3}, 0x8000
    s_cbranch_scc1 {lab}_loop
    """, opt=True)
    G.e(f"{lab}_ok:")
    return G

def tile_addrs(S, typ, AT, T):
    R, C, HH, NH = T + 1, T + 2, T + 3, T + 4
    S.e(f"""
    v_lshrrev_b32 v{HH}, 5, v{V_L}
    v_bfe_u32 v{NH}, v{V_L}, 4, 1
    v_bfe_u32 v{R}, v{V_L}, 2, 2
    v_and_b32 v{C}, 3, v{V_L}
    v_lshl_add_u32 v{T+5}, v{HH}, 3, v{R}
    v_lshlrev_b32 v{T+6}, 6, v{T+5}
    v_lshl_add_u32 v{T+8}, v{NH}, 2, v{C}
    v_add_u32 v{T+8}, s{S_ODD}, v{T+8}
    v_and_b32 v{T+8}, 7, v{T+8}
    v_lshl_add_u32 v{T+8}, v{T+8}, 3, v{T+6}
    """)
    if typ == "q":
        S.e(f"""
        v_add_u32 v{AT}, {W0 + 16384}, v{T+8}
        v_lshrrev_b32 v{T+6}, 1, v{C}
        v_and_b32 v{T+7}, 2, v{R}
        v_xor_b32 v{T+6}, v{T+6}, v{T+7}
        v_lshl_add_u32 v{T+6}, v{NH}, 2, v{T+6}
        v_lshlrev_b32 v{T+7}, 7, v{T+5}
        v_lshl_add_u32 v{T+7}, v{T+6}, 4, v{T+7}
        v_and_b32 v{T+6}, 1, v{C}
        v_lshl_add_u32 v{T+7}, v{T+6}, 3, v{T+7}
        v_lshl_add_u32 v{T+7}, v{NH}, 13, v{T+7}
        v_add_u32 v{AT+1}, {W0}, v{T+7}
        v_xor_b32 v{AT+2}, 32, v{AT+1}
        v_xor_b32 v{AT+3}, 64, v{AT+1}
        v_xor_b32 v{AT+4}, 0x60, v{AT+1}
        """)
    else:
        S.e(f"""
        v_add_u32 v{AT}, {W0}, v{T+8}
        v_lshl_add_u32 v{T+7}, v{C}, 3, v{T+6}
        v_mul_u32_u24 v{T+8}, 1056, v{NH}
        v_add_u32 v{AT+1}, v{T+7}, v{T+8}
        v_add_u32 v{AT+1}, {W0 + 2048}, v{AT+1}
        v_xor_b32 v{AT+2}, 32, v{AT+1}
        v_lshlrev_b32 v{T+6}, 5, v{T+5}
        v_lshl_add_u32 v{T+6}, v{C}, 3, v{T+6}
        v_mul_u32_u24 v{T+7}, 2176, v{NH}
        v_add_u32 v{AT+3}, v{T+6}, v{T+7}
        v_add_u32 v{AT+3}, {W0 + 16384}, v{AT+3}
        v_xor_b32 v{AT+4}, 0x80, v{AT+3}
        """)

def tile_read_args(typ, t, s, e):
    if typ == "q":
        return (0, s*1024 + e*256) if t == 0 else (t, s*2048 + e*512)
    if t == 0: return (0, s*4096 + e*256)
    if t == 1: return (0, s*4096 + 1024 + e*256)
    if t == 2: return (3 + e, s*512)
    return (t - 2, s*4096 + e*256)

def geglu(S, a, T, unit_sgpr, unit_add):
    for i in range(8): S.e(f"v_mul_f32 v{T+i}, v{a+i}, v{a+i}")
    for i in range(8): S.e(f"v_fma_f32 v{T+i}, v{T+i}, v{V_C1}, v{V_C0}")
    for i in range(8): S.e(f"v_mul_f32 v{T+i}, v{T+i}, v{a+i}")
    for i in range(8): S.e(f"v_exp_f32 v{T+i}, v{T+i}")
    for i in range(8): S.e(f"v_mul_f32 v{a+i}, v{a+i}, v{a+8+i}")
    for i in range(8): S.e(f"v_fma_f32 v{T+i}, v{T+i}, v{V_S2}, v{V_S2}")
    for i in range(8): S.e(f"v_rcp_f32 v{T+i}, v{T+i}")
    for i in range(8): S.e(f"v_mul_f32 v{a+i}, v{a+i}, v{T+i}")
    for i in range(4): S.e(f"v_cvt_pk_bf16_f32 v{T+8+i}, v{a+2*i}, v{a+2*i+1}")
    S.e(f"s_add_u32 s{S_G}, s{unit_sgpr}, {unit_add * 1024}")
    S.e(f"buffer_store_dwordx4 {vr(T+8)}, v{V_L16}, {sq(S_WS)}, s{S_G} offen{OPT['hf_flags']}", tag="hst")


def softmax14(S, P, E, T):
    N = 14
    for i in range(7): S.e(f"v_cvt_pk_bf16_f32 v{E+i}, v{P+2*i}, v{P+2*i+1}")
    for i in range(7): S.e(f"v_lshlrev_b32 v{P+2*i}, 16, v{E+i}\nv_and_b32 v{P+2*i+1}, 0xffff0000, v{E+i}")
    L = T + 4
    S.e(f"v_mov_b32 v{L}, {f32(1.4426950408889634)}")
    MX, MN = T, T + 1
    S.e(f"v_max3_f32 v{MX}, v{P}, v{P+1}, v{P+2}\nv_min3_f32 v{MN}, v{P}, v{P+1}, v{P+2}")
    for i in range(3, 13, 2):
        S.e(f"v_max3_f32 v{MX}, v{MX}, v{P+i}, v{P+i+1}\nv_min3_f32 v{MN}, v{MN}, v{P+i}, v{P+i+1}")
    S.e(f"v_max_f32 v{MX}, v{MX}, v{P+13}\nv_min_f32 v{MN}, v{MN}, v{P+13}")
    S.e(f"v_mov_b32 v{T+2}, v{MX}\nv_mov_b32 v{T+3}, v{MN}\nv_permlane32_swap_b32 v{T+2}, v{MX}\nv_permlane32_swap_b32 v{T+3}, v{MN}")
    S.e(f"v_max_f32 v{MX}, v{MX}, v{T+2}\nv_min_f32 v{MN}, v{MN}, v{T+3}")
    S.e(f"v_mul_f32 v{MX}, v{MX}, v{L}\nv_mul_f32 v{MN}, v{MN}, v{L}")
    for i in range(N): S.e(f"v_fma_f32 v{E+i}, v{P+i}, v{L}, -v{MX}")
    for i in range(N): S.e(f"v_fma_f32 v{P+i}, -v{P+i}, v{L}, v{MN}")
    for i in range(N): S.e(f"v_exp_f32 v{E+i}, v{E+i}")
    for i in range(N): S.e(f"v_exp_f32 v{P+i}, v{P+i}")
    SP, SM = T, T + 1
    S.e(f"v_add_f32 v{SP}, v{E}, v{E+1}\nv_add_f32 v{T+2}, v{E+2}, v{E+3}\nv_add_f32 v{SM}, v{P}, v{P+1}\nv_add_f32 v{T+3}, v{P+2}, v{P+3}")
    for i in range(4, N, 2):
        S.e(f"v_add_f32 v{SP}, v{SP}, v{E+i}\nv_add_f32 v{T+2}, v{T+2}, v{E+i+1}\nv_add_f32 v{SM}, v{SM}, v{P+i}\nv_add_f32 v{T+3}, v{T+3}, v{P+i+1}")
    S.e(f"v_add_f32 v{SP}, v{SP}, v{T+2}\nv_add_f32 v{SM}, v{SM}, v{T+3}")
    S.e(f"v_mov_b32 v{T+2}, v{SP}\nv_mov_b32 v{T+3}, v{SM}\nv_permlane32_swap_b32 v{T+2}, v{SP}\nv_permlane32_swap_b32 v{T+3}, v{SM}")
    S.e(f"v_add_f32 v{SP}, v{SP}, v{T+2}\nv_add_f32 v{SM}, v{SM}, v{T+3}")
    S.e(f"v_rcp_f32 v{SP}, v{SP}\nv_rcp_f32 v{SM}, v{SM}")
    for i in range(N): S.e(f"v_mul_f32 v{E+i}, v{E+i}, v{SP}")
    for i in range(N): S.e(f"v_mul_f32 v{P+i}, v{P+i}, v{SM}")
    for i in range(7): S.e(f"v_cvt_pk_bf16_f32 v{E+i}, v{E+2*i}, v{E+2*i+1}")
    for i in range(7): S.e(f"v_cvt_pk_bf16_f32 v{E+8+i}, v{P+2*i}, v{P+2*i+1}")
    S.e(f"v_mov_b32 v{E+7}, 0\nv_mov_b32 v{E+15}, 0")


def stats_consts(S):
    S.e(f"""
    v_mov_b32 v{BP}, v{V_RINV}
    v_mov_b32 v{BP+1}, v{V_RINV}
    v_mov_b32 v{BP+2}, v{V_RINV}
    v_mov_b32 v{BP+3}, v{V_RINV}
    v_rcp_f32 v{V_RINV}, v{V_SD}
    v_mul_f32 v{V_S2}, v{V_SD}, v{V_SD}
    v_mul_f32 v{V_C0}, {f32(-2.302208198)}, v{V_RINV}
    v_mul_f32 v{V_C1}, v{V_RINV}, v{V_RINV}
    v_mul_f32 v{V_C1}, v{V_C1}, v{V_C0}
    v_mul_f32 v{V_C1}, {f32(0.044715)}, v{V_C1}
    """)


def tagpoll(G, lab, A, D, soff, opt=False, first_issued=False, sleep=None):
    if first_issued:
        G.e(f"v_cmp_eq_u32_e64 {M1}, -1, v{D}\ns_mov_b32 {t3}, 0\ns_cmp_eq_u64 {M1}, 0\ns_cbranch_scc1 {lab}_ok")
        opt = True
    else:
        G.e(f"s_mov_b32 {t3}, 0")
    G.e(f"""
    {lab}_loop:
    buffer_load_dword v{D}, v{A}, {sq(S_WS)}, {soff} offen sc1
    s_waitcnt vmcnt(0)
    v_cmp_eq_u32_e64 {M1}, -1, v{D}
    s_add_u32 {t3}, {t3}, 1
    s_cmp_eq_u64 {M1}, 0
    s_cbranch_scc1 {lab}_ok
    s_sleep {sleep if sleep else OPT.get('sleep', 4)}
    s_cmp_lt_u32 {t3}, 0x8000
    s_cbranch_scc1 {lab}_loop
    """, opt=opt)
    G.e(f"{lab}_ok:")

def umax_tree(G, regs, T, opt=False):
    G.e(f"v_max3_u32 v{T}, v{regs[0]}, v{regs[1]}, v{regs[2]}", opt=opt)
    i = 3
    while i + 1 < len(regs):
        G.e(f"v_max3_u32 v{T}, v{T}, v{regs[i]}, v{regs[i+1]}", opt=opt); i += 2
    if i < len(regs): G.e(f"v_max_u32 v{T}, v{T}, v{regs[i]}", opt=opt)

def prologue():
    S = Stream()
    S.e(f"""
    s_cmp_ge_u32 s2, 256
    s_cbranch_scc1 K_END
    {'s_memrealtime s[92:93]' if OPT.get('stamps') else ''}
    s_load_dwordx16 s[4:19], s[0:1], 0
    s_load_dwordx4 s[20:23], s[0:1], 72
    s_load_dwordx2 s[{S_OUT}:{S_OUT+1}], s[0:1], 64
    v_lshrrev_b32 v{PT}, 6, v0
    v_and_b32 v{V_L}, 63, v0
    v_readfirstlane_b32 s3, v{PT}
    v_lshlrev_b32 v{V_L16}, 4, v{V_L}
    v_mov_b32 v{V_Z}, 0
    s_and_b32 {t0}, s2, 7
    s_lshr_b32 {t1}, s2, 3
    s_and_b32 s{S_MT}, {t0}, 1
    s_lshl_b32 s{S_MT}, s{S_MT}, 2
    s_and_b32 {t2}, {t1}, 3
    s_add_u32 s{S_MT}, s{S_MT}, {t2}
    s_lshr_b32 s{S_C4}, {t0}, 1
    s_lshr_b32 {t1}, {t1}, 2
    s_and_b32 s{S_TYPE}, {t1}, 1
    s_lshr_b32 s{S_HL}, {t1}, 1
    s_lshl_b32 s{S_HEAD}, s{S_C4}, 2
    s_add_u32 s{S_HEAD}, s{S_HEAD}, s{S_HL}
    s_and_b32 s{S_ODD}, s{S_HEAD}, 1
    s_lshl_b32 {t2}, s{S_MT}, 2
    s_add_u32 {t2}, {t2}, s{S_C4}
    s_lshl_b32 {t2}, {t2}, 3
    s_add_u32 {t2}, {t2}, {t1}
    s_lshl_b32 {t2}, {t2}, 3
    s_and_b32 {t3}, s3, 7
    s_add_u32 s{S_SROW}, {t2}, {t3}
    s_mov_b32 s{S_HH}, 0
    s_mov_b32 s{S_HH+1}, -1
    s_mul_i32 {t0}, s{S_C4}, 896
    s_lshl_b32 {tm}, s{S_HL}, 7
    s_add_u32 {t3}, {t0}, {tm}
    s_add_u32 {t0}, {t0}, 512
    s_mul_i32 {t1}, s{S_HL}, 3
    s_and_b32 {t2}, s{S_HL}, 1
    s_add_u32 {t5}, {t1}, {t2}
    s_lshl_b32 {t2}, {t2}, 1
    s_add_u32 {t1}, {t1}, 2
    s_sub_u32 {t1}, {t1}, {t2}
    s_lshl_b32 {t1}, {t1}, 5
    s_add_u32 {t1}, {t1}, {t0}
    s_lshl_b32 {t5}, {t5}, 5
    s_add_u32 {t0}, {t0}, {t5}
    s_cmp_eq_u32 s{S_TYPE}, 1
    s_cselect_b32 s{S_U0}, {t1}, {t3}
    s_cselect_b32 s{S_U12}, {t0}, {t3}
    s_cmp_lt_u32 s3, 8
    s_cbranch_scc1 K_comp
    """)
    return S

def p2_ids(S):
    S.e(f"""
    s_and_b32 {t0}, s2, 7
    s_lshr_b32 {t1}, s2, 3
    s_and_b32 {t2}, {t0}, 1
    s_lshl_b32 {t2}, {t2}, 2
    s_lshr_b32 {t0}, {t0}, 1
    s_add_u32 s{S_MT2}, {t0}, {t2}
    s_lshl_b32 s{S_M64}, s{S_MT2}, 2
    s_and_b32 {t2}, {t1}, 3
    s_add_u32 s{S_M64}, s{S_M64}, {t2}
    s_lshr_b32 s{S_N64}, {t1}, 2
    """)
def p2_a_voffsets(S, VD, VO, VOM, T):
    S.e(f"""
    v_lshrrev_b32 v{T}, 3, v{V_L}
    v_and_b32 v{T+1}, 7, v{V_L}
    v_bfe_u32 v{T+2}, v{V_L}, 4, 1
    v_lshlrev_b32 v{T+2}, 2, v{T+2}
    v_xor_b32 v{T+1}, v{T+1}, v{T+2}
    s_lshl_b32 {t0}, s{S_N64}, 7
    v_lshlrev_b32 v{T+1}, 4, v{T+1}
    v_add_u32 v{T+1}, {t0}, v{T+1}
    v_mul_u32_u24 v{VD}, 896, v{T}
    v_add_u32 v{VD}, v{VD}, v{T+1}
    """)
    if VO is not None:
        S.e(f"""
        v_lshrrev_b32 v{T+2}, 2, v{T}
        v_and_b32 v{T+3}, 3, v{T}
        v_mad_u32_u24 v{T+2}, v{T+2}, 14, v{T+3}
        v_mul_u32_u24 v{VO}, 896, v{T+2}
        v_add_u32 v{VO}, v{VO}, v{T+1}
        v_cmp_lt_u32_e64 {M1}, 1, v{T+3}
        v_mov_b32 v{T+2}, 0x7f000000
        v_cndmask_b32_e64 v{VOM}, v{VO}, v{T+2}, {M1}
        """)

def hsync(S, lab, cnt_off, target, A, B):
    S.wait_lgkm()
    S.e(f"""
    v_mov_b32 v{A}, {CNT + cnt_off}
    v_mov_b32 v{B}, 1
    s_mov_b64 exec, 1
    ds_add_u32 v{A}, v{B}
    s_mov_b64 exec, -1
    {lab}:
    ds_read_b32 v{B}, v{A}
    s_waitcnt lgkmcnt(0)
    v_readfirstlane_b32 {t1}, v{B}
    s_cmp_lt_u32 {t1}, {target}
    s_cbranch_scc1 {lab}
    """)

def helper_head():
    S = Stream(); T = PT
    S.e("K_helper:")
    S.e(f"s_setprio {OPT.get('hprio', 3)}")
    S.e(f"""
    s_sub_u32 s{S_H}, s3, 8
    s_lshl_b32 {t0}, s{S_MT}, 2
    s_add_u32 {t0}, {t0}, s{S_H}
    s_mul_i32 s{S_XROW}, {t0}, {64*896}
    s_mul_i32 s{S_AREA}, s{S_H}, {2*AREA}
    v_lshrrev_b32 v{T+7}, 3, v{V_L}
    v_mul_u32_u24 v{T}, 896, v{T+7}
    v_and_b32 v{T+8}, 7, v{V_L}
    v_lshrrev_b32 v{T+2}, 4, v{V_L}
    v_xor_b32 v{T+1}, v{T+8}, v{T+2}
    v_lshl_add_u32 v4, v{T+1}, 4, v{T}
    v_xor_b32 v5, 64, v4
    s_mul_i32 {t1}, s{S_HEAD}, 56
    s_lshl_b32 {t2}, s{S_ODD}, 3
    s_sub_u32 {t1}, {t1}, {t2}
    v_lshrrev_b32 v{T}, 2, v{V_L}
    v_and_b32 v{T+1}, 3, v{V_L}
    v_mul_u32_u24 v{T+4}, 2688, v{T}
    v_lshl_add_u32 v{T+4}, v{T+1}, 4, v{T+4}
    s_mul_i32 {tm}, s{S_H}, {16*2688}
    s_add_u32 {t1}, {t1}, {tm}
    v_add_u32 v6, {t1}, v{T+4}
    s_waitcnt lgkmcnt(0)
    """)
    srd(S, S_X, 4, 2048 * 896); srd(S, S_WQ, 6, 448 * 2688); srd(S, S_WG, 14, 448 * 3584); srd(S, S_WU, 16, 448 * 3584)
    S.e(f"s_cmp_eq_u32 s{S_TYPE}, 1\ns_cbranch_scc1 K_hkv")
    return S

def helper(typ):
    q = typ == "q"
    S = Stream(); T = PT
    S.e(f"K_h{typ}:")
    global HST
    HST = Stamper(STAMPR); HST.n = 1; HST.names = ["start"]
    V_XE, V_XO, V_DQ, V_DG, V_DU, V_DS = 4, 5, 6, 7, 8, 9
    V_AC = 10; V_PF = 16
    CA = 18; CU = 23; CT = 34
    if q:
        S.e(f"""
        v_bfe_u32 v{T+2}, v{V_L}, 4, 1
        v_lshlrev_b32 v{T+2}, 1, v{T+2}
        v_xor_b32 v{T+2}, v{T+2}, v{T+8}
        v_mul_u32_u24 v{T+3}, 3584, v{T+7}
        v_lshl_add_u32 v{T+2}, v{T+2}, 4, v{T+3}
        s_mul_i32 {tm}, s{S_H}, {16*3584}
        s_add_u32 {tm}, {tm}, s{S_U0}
        v_add_u32 v{V_DG}, {tm}, v{T+2}
        v_xor_b32 v{V_DU}, 64, v{V_DG}
        """)
    else:
        S.e(f"""
        v_mul_u32_u24 v{T+3}, 3584, v{T}
        v_lshl_add_u32 v{V_DG}, v{T+1}, 4, v{T+3}
        s_mul_i32 {tm}, s{S_H}, {16*3584}
        s_add_u32 {tm}, {tm}, s{S_U12}
        v_add_u32 v{V_DG}, {tm}, v{V_DG}
        v_xor_b32 v{V_DU}, 32, v{V_DG}
        s_lshr_b32 {t2}, s{S_H}, 1
        s_cmp_eq_u32 {t2}, 0
        s_cselect_b32 s{S_D1}, s14, s16
        s_cselect_b32 s{S_D1+1}, s15, s17
        s_mov_b32 s{S_D1+2}, {448*3584}
        s_mov_b32 s{S_D1+3}, 0x20000
        s_lshl_b32 {t2}, {t2}, 2
        v_lshrrev_b32 v{T+5}, 1, v{V_L}
        v_xor_b32 v{T+5}, {t2}, v{T+5}
        v_mul_u32_u24 v{T+5}, 3584, v{T+5}
        v_and_b32 v{T+6}, 1, v{V_L}
        v_lshl_add_u32 v{T+5}, v{T+6}, 4, v{T+5}
        s_and_b32 {t2}, s{S_H}, 1
        s_mul_i32 {t2}, {t2}, {32*3584}
        s_add_u32 {t2}, {t2}, s{S_U0}
        v_add_u32 v{V_DS}, {t2}, v{T+5}
        """)
    S.e(f"s_lshl_b32 s{S_D0L}, s{S_H}, 10\ns_add_u32 s{S_D0L}, s{S_D0L}, {W0}\ns_lshl_b32 s{S_G}, s{S_H}, {11 if q else 12}\ns_add_u32 s{S_G}, s{S_G}, {W0}")
    def dma(c, lo=0, hi=13):
        sb = (c % 3) * WS_
        L = []
        def one(m0expr, soff, v, srdreg): L.append((m0expr, soff, v, srdreg))
        if q:
            one(f"s{S_D0L}, {sb + 16384}", f"s_mov_b32 {tm}, {c*172032}", V_DQ, S_WQ)
            for rg in range(2):
                one(f"s{S_G}, {sb + rg*1024}", f"s_mov_b32 {tm}, {c*229376 + rg*8*3584}", V_DG, S_WG)
                one(f"s{S_G}, {sb + 8192 + rg*1024}", f"s_mov_b32 {tm}, {c*229376 + rg*8*3584}", V_DU, S_WU)
        else:
            one(f"s{S_G}, {sb}", f"s_mov_b32 {tm}, {c*172032 + 896}", V_DQ, S_WQ)
            one(f"s{S_G}, {sb + 1024}", f"s_mov_b32 {tm}, {c*172032 + 1792}", V_DQ, S_WQ)
            one(f"s{S_G}, {sb + 2048}", f"s_mov_b32 {tm}, {c*229376}", V_DG, S_WG)
            one(f"s{S_G}, {sb + 3072}", f"s_mov_b32 {tm}, {c*229376}", V_DU, S_WU)
            one(f"s{S_D0L}, {sb + 16384}", f"s_mov_b32 {tm}, {c*229376}", V_DS, S_D1)
        for i in range(8):
            wv, qq = i >> 2, i & 3
            one(f"s{S_AREA}, {wv*AREA + (c % 3)*4096 + qq*1024}", f"s_add_u32 {tm}, s{S_XROW}, {(wv*32 + qq*8)*896 + c*128}", V_XO if qq & 1 else V_XE, S_X)
        for (m0expr, soff, v, srdreg) in L[lo:hi]:
            S.e(f"s_add_u32 m0, {m0expr}\n{soff}")
            fl = OPT.get("x_flags", "") if srdreg == S_X else OPT.get("w_flags", "")
            S.e(f"buffer_load_dwordx4 v{v}, {sq(srdreg)}, {tm} offen{fl} lds", tag=f"d{c}")
    k1 = int(OPT.get("split1", 6))
    dma(0)
    tile_addrs(S, typ, V_AC, 60)
    for t in range(5):
        stride = (1024 if t == 0 else 2048) if q else (512 if t >= 3 else 4096)
        S.e(f"s_mul_i32 {t0}, s{S_H}, {stride}\nv_add_u32 v{V_AC+t}, {t0}, v{V_AC+t}")
    for i in range(5): S.e(f"v_mov_b32 v{CA+i}, 0")
    dma(1, 0, k1)
    def colsum_rd(c):
        for t in range(5):
            for e in range(2):
                a, imm = tile_read_args(typ, t, 0, e)
                S.e(f"ds_read_b64_tr_b16 {vr(CT + 20*(c % 5) + 4*t + 2*e, 2)}, v{V_AC+a} offset:{(c % 3)*WS_ + imm}")
    hb = [0]
    CM = OPT.get("csmode", "mfma")
    if CM == "mfma":
        for i in range(20): S.e(f"v_mov_b32 v{140+i}, 0")
        S.e("v_mov_b32 v134, 0x3f803f80\nv_mov_b32 v135, 0x3f803f80")
    def colsum_add(nhalf):
        if CM != "valu":
            for _ in range(nhalf):
                c, hf = hb[0] >> 1, hb[0] & 1; hb[0] += 1
                for t in range(5):
                    src = CT + 20*(c % 5) + 4*t + 2*hf
                    if CM == "mfma": S.e(f"v_mfma_f32_4x4x4_16b_bf16 {vr(140+4*t)}, v[134:135], {vr(src, 2)}, {vr(140+4*t)}")
                    else: S.e(f"v_dot2c_f32_bf16 v{CA+t}, 0x3f803f80, v{src}")
                if CM == "dot":
                    for t in range(5): S.e(f"v_dot2c_f32_bf16 v{CA+t}, 0x3f803f80, v{CT + 20*(c % 5) + 4*t + 2*hf + 1}")
            return
        for _ in range(nhalf):
            c, hf = hb[0] >> 1, hb[0] & 1; hb[0] += 1
            for j in (2*hf, 2*hf + 1):
                src = CT + 20*(c % 5) + j
                for t in range(5): S.e(f"v_lshlrev_b32 v{CU+t}, 16, v{src + 4*t}")
                for t in range(5): S.e(f"v_and_b32 v{CU+5+t}, 0xffff0000, v{src + 4*t}")
                for t in range(5): S.e(f"v_add_f32 v{CA+t}, v{CA+t}, v{CU+t}")
                for t in range(5): S.e(f"v_add_f32 v{CA+t}, v{CA+t}, v{CU+5+t}")
    S.wait_vm("d0"); S.e("s_barrier")
    dma(1, k1, 13); colsum_rd(0); dma(2)
    S.wait_lgkm(); S.wait_vm("d1"); S.e("s_barrier")
    dma(3); colsum_rd(1)
    srd(S, S_WS, 22, WS_SIZE); srd(S, S_DBG, 20, 256); srd(S, S_WO, 8, 16 * 1568); srd(S, S_WD, 18, 1792 * 896)
    sched = dict(zip(range(2, 7), [int(x) for x in OPT.get('sched', '4,2,2,2,4').split(',')]))
    for c in range(2, 7):
        if c == 6: S.extend(poll(f"K_h{typ}_pst", "init", V_TMP, 17, who=8))
        F = (lambda n: HST(S, n, fine=True)) if c in (3, 4) else (lambda n: None)
        F("pre")
        S.wait_lgkm(); S.wait_vm(f"d{c}")
        F("landed")
        S.e("s_barrier")
        F("bar")
        if c + 2 <= 6: dma(c + 2)
        F("dma")
        if c == 2:
            for i in range(2):
                S.e(f"""
                v_lshrrev_b32 v{T+24}, 4, v{V_L}
                s_lshl_b32 {t0}, s{S_H}, 3
                s_add_u32 {t0}, {t0}, {4*i}
                v_add_u32 v{T+24}, {t0}, v{T+24}
                v_bfe_u32 v{T+25}, v{V_L}, 3, 1
                v_and_b32 v{T+26}, 7, v{V_L}
                v_mad_u32_u24 v{T+25}, v{T+25}, 7, v{T+26}
                v_mad_u32_u24 v{T+25}, v{T+24}, 14, v{T+25}
                v_lshlrev_b32 v{T+25}, 2, v{T+25}
                v_cmp_eq_u32_e64 {M1}, 7, v{T+26}
                s_cmp_eq_u32 {t0}, 28
                s_cselect_b64 {M1}, -1, {M1}
                v_mov_b32 v{T+26}, 0x7fffff00
                v_cndmask_b32_e64 v{T+25}, v{T+25}, v{T+26}, {M1}
                s_mul_i32 {t1}, s{S_HEAD}, 1568
                s_lshl_b32 {t0}, {t0}, 6
                s_add_u32 m0, {t0}, {WPHI}
                """)
                S.e(f"buffer_load_dword v{T+25}, {sq(S_WO)}, {t1} offen lds", tag="phi")
        if c == int(OPT.get("pfc", 6)) and OPT["prefetch"]:
            S.e(f"""
            s_lshr_b32 {t0}, s2, 3
            s_lshl_b32 {t0}, {t0}, 2
            s_add_u32 {t0}, {t0}, s{S_H}
            s_lshl_b32 {t0}, {t0}, 14
            s_mov_b32 {t3}, {1792*896}
            s_cmp_lt_u32 {t0}, {t3}
            s_cselect_b32 s{S_PF}, s18, s10
            s_cselect_b32 s{S_PF+1}, s19, s11
            s_cselect_b32 s{S_PF+2}, {t3}, {448*896}
            s_mov_b32 s{S_PF+3}, 0x20000
            s_cselect_b32 {t3}, 0, {t3}
            s_sub_u32 {t0}, {t0}, {t3}
            v_lshlrev_b32 v{V_PF}, 7, v{V_L}
            s_add_u32 {t1}, {t0}, 0x2000
            """)
            S.e(f"buffer_load_dword v{T+27}, v{V_PF}, {sq(S_PF)}, {t0} offen\nbuffer_load_dword v{T+28}, v{V_PF}, {sq(S_PF)}, {t1} offen", tag="pf")
        if c >= 5:
            colsum_rd(c); colsum_add(sched[c])
        else:
            colsum_rd(c); colsum_add(sched[c])
    assert hb[0] == 14
    if CM == "mfma":
        for t in range(5): S.e(f"v_mov_b32 v{CA+t}, v{140+4*t}")
    S.e(f"s_lshl_b32 {t0}, s{S_H}, 2\ns_add_u32 {t0}, {t0}, {CSP}\nv_add_u32 v{T}, {t0}, v{V_L16}")
    for t in range(5): S.e(f"v_cvt_pk_bf16_f32 v{T+1+t}, v{CA+t}, v{CA+t}")
    for t in range(5): S.e(f"v_lshlrev_b32 v{T+1+t}, 16, v{T+1+t}")
    for t in range(5): S.e(f"v_sub_f32 v{T+1+t}, v{CA+t}, v{T+1+t}")
    for t in range(5): S.e(f"v_cvt_pk_bf16_f32 v{T+1+t}, v{CA+t}, v{T+1+t}")
    for t in range(5): S.e(f"ds_write_b32 v{T}, v{T+1+t} offset:{t*1024}")
    S.wait_vm("phi"); S.wait_lgkm()
    return S

def hpost(typ):
    q = typ == "q"
    S = Stream(); T = PT
    S.e(f"K_hpost_{typ}:")
    st = HST
    V_WD = 18
    p2_ids(S)
    p2_a_voffsets(S, V_WD, None, None, 60)
    S.e(f"""
    s_mul_i32 s{S_AREA}, s{S_H}, {2*REG2}
    s_and_b32 {t0}, s{S_H}, 1
    s_lshl_b32 {t0}, {t0}, 2
    s_lshr_b32 {t1}, s{S_H}, 1
    s_add_u32 {t0}, {t0}, {t1}
    s_mul_i32 s{S_XROW}, {t0}, {14*16*896}
    s_cmp_ge_u32 s2, 224
    s_cselect_b32 {t0}, 0x40000000, 0
    s_add_u32 s{S_XROW}, s{S_XROW}, {t0}
    s_barrier
    s_setprio {OPT.get('hprio2', 0)}
    """)
    st(S, "B1")
    def adma(lo, hi):
        for i in range(lo, hi):
            for wv in range(2):
                for u in range(2):
                    S.e(f"s_add_u32 m0, s{S_AREA}, {wv*REG2 + i*2048 + u*1024}\ns_add_u32 {tm}, s{S_XROW}, {((wv*28 + i)*16 + 8*u)*896}")
                    S.e(f"buffer_load_dwordx4 v{V_WD}, {sq(S_WD)}, {tm} offen lds", tag="a1")
    adma(0, 6)
    if q:
        KO = 4; U = 5; PH = 100
        S.e(f"""
        s_lshl_b32 {t0}, s{S_H}, 11
        v_add_u32 v{KO}, {t0}, v{V_L16}
        v_and_b32 v{U+3}, 7, v{V_L}
        v_lshlrev_b32 v{U+3}, 13, v{U+3}
        v_add_u32 v{U+3}, 0x1e80, v{U+3}
        s_lshl_b32 {t0}, s{S_H}, 10
        s_add_u32 {t0}, {t0}, {KVF}
        v_add_u32 v{U}, {t0}, v{V_L16}
        v_add_u32 v{U+1}, {KVF}, v{V_L16}
        v_add_u32 v{U+2}, s{S_AREA}, v{V_L16}
        s_lshl_b32 {t0}, s{S_MT}, 2
        s_add_u32 {t0}, {t0}, s{S_H}
        s_mul_i32 s{S_HFB}, {t0}, {2*NKS*1024}
        s_lshl_b32 {t0}, s{S_HEAD}, 11
        s_add_u32 s{S_HFB}, s{S_HFB}, {t0}
        s_add_u32 s{S_HFB}, s{S_HFB}, {112*1024}
        s_lshl_b32 s{S_G}, s{S_HEAD}, 16
        s_add_u32 s{S_G}, s{S_G}, {KVP_OFF}
        """)
        S.wait_vm("a1")
        S.e(f"v_mov_b32 v12, {CNT + 20}\nv_mov_b32 v13, 1\ns_mov_b64 exec, 1\nds_add_u32 v12, v13\ns_mov_b64 exec, -1")
        S.e("s_barrier")
        st(S, "B2")
        for wv in range(2):
            for k in range(4): S.e(f"ds_read_b128 {vr(PH + 16*wv + 4*k)}, v{U+2} offset:{wv*REG2 + PKO + k*1024}")
        S.wait_lgkm()
        S.e(f"v_mov_b32 v12, {CNT + 12}\nv_mov_b32 v13, 1\ns_mov_b64 exec, 1\nds_add_u32 v12, v13\ns_mov_b64 exec, -1\ns_setprio 3")
        S.e(f"v_mov_b32 v14, {CNT + 16}\ns_cmp_lg_u32 s3, 8\ns_cbranch_scc1 K_hq_spin")
        G = Stream(); tagpoll(G, "K_hq_pkv", U + 3, V_TMP, f"s{S_G}", opt=True, sleep=int(OPT.get("sleepkv", 8)))
        for x in G: x.opt = True
        S.extend(G)
        S.e(f"ds_write_b32 v14, v13\ns_branch K_hq_go", opt=True)
        S.e(f"""
        K_hq_spin:
        s_sleep 2
        ds_read_b32 v13, v14
        s_waitcnt lgkmcnt(0)
        v_readfirstlane_b32 {t1}, v13
        s_cmp_eq_u32 {t1}, 0
        s_cbranch_scc1 K_hq_spin
        """, opt=True)
        S.e("K_hq_go:")
        st(S, "kvrdy")
        KL = 20
        S.e(f"s_mov_b32 {t4}, 0\nK_hq_gather:\ns_mov_b32 {t0}, s{S_G}")
        for i in range(8):
            for e in range(2):
                S.e(f"buffer_load_dwordx4 {vr(KL + 8*i + 4*e)}, v{KO}, {sq(S_WS)}, {t0} offen offset:{e*1024} sc1")
            if i < 7: S.e(f"s_add_u32 {t0}, {t0}, 8192")
        umax_tree(S, list(range(KL, KL + 64)), V_TMP)
        S.e(f"""
        v_cmp_eq_u32_e64 {M1}, -1, v{V_TMP}
        s_add_u32 {t4}, {t4}, 1
        s_cmp_eq_u64 {M1}, 0
        s_cbranch_scc1 K_hq_gok
        s_cmp_lt_u32 {t4}, 0x1000
        s_cbranch_scc1 K_hq_gather
        K_hq_gok:
        """)
        for step in (1, 2, 4):
            for i in range(0, 8, 2*step):
                for j in range(8): S.e(f"v_add_f32 v{KL+8*i+j}, v{KL+8*i+j}, v{KL+8*(i+step)+j}")
        for j in range(4): S.e(f"v_cvt_pk_bf16_f32 v{KL+8+j}, v{KL+2*j}, v{KL+2*j+1}")
        S.e(f"ds_write_b128 v{U}, {vr(KL+8)}")
        hsync(S, "K_hq_sync", 0, 4, 12, 13)
        st(S, "kvf")
        KF = 20; OO = [36, 52]; G2 = 68; RR = [84, 92]
        for k in range(4): S.e(f"ds_read_b128 {vr(KF + 4*k)}, v{U+1} offset:{k*1024}")
        for wv in range(2):
            for k in range(4): S.e(f"{MF} {vr(OO[wv],16)}, {vr(KF + 4*k)}, {vr(PH + 16*wv + 4*k)}, {'0' if k == 0 else vr(OO[wv],16)}")
        for wv in range(2):
            O = OO[wv]; R = RR[wv]
            bf16r(S, G2, f"v{O+14}")
            S.e(f"v_add_f32 v{G2}, {f32(1e-6)}, v{G2}")
            bf16r(S, G2, f"v{G2}")
            S.e(f"v_rcp_f32 v{G2}, v{G2}")
            for i in range(7): S.e(f"v_cvt_pk_bf16_f32 v{G2+1+i}, v{O+2*i}, v{O+2*i+1}")
            for i in range(7): S.e(f"v_lshlrev_b32 v{O+2*i}, 16, v{G2+1+i}\nv_and_b32 v{O+2*i+1}, 0xffff0000, v{G2+1+i}")
            for i in range(14): S.e(f"v_mul_f32 v{O+i}, v{O+i}, v{G2}")
            for i in range(7): S.e(f"v_cvt_pk_bf16_f32 v{R+i}, v{O+2*i}, v{O+2*i+1}")
            S.e(f"v_mov_b32 v{R+7}, 0\ns_add_u32 {t0}, s{S_HFB}, {wv*NKS*1024}")
            S.e(f"buffer_store_dwordx4 {vr(R)}, v{V_L16}, {sq(S_WS)}, {t0} offen sc1\nbuffer_store_dwordx4 {vr(R+4)}, v{V_L16}, {sq(S_WS)}, {t0} offen offset:1024 sc1", tag="ost")
    else:
        X = 20; KA = 4; KB = 10
        S.e(f"""
        v_lshrrev_b32 v{X}, 4, v{V_L}
        v_bfe_u32 v{X+1}, v{V_L}, 2, 2
        v_lshl_add_u32 v{X}, v{X}, 3, v{X+1}
        v_bfe_u32 v{X+2}, v{V_L}, 1, 1
        s_lshl_b32 {t0}, s{S_H}, 1
        v_add_u32 v{X+4}, {t0}, v{X+2}
        v_xor_b32 v{X+4}, v{X+4}, v{X+1}
        v_lshlrev_b32 v{X+3}, 7, v{X}
        v_lshl_add_u32 v{X+3}, v{X+4}, 4, v{X+3}
        v_and_b32 v{X+5}, 1, v{V_L}
        v_lshl_add_u32 v{KA}, v{X+5}, 3, v{X+3}
        v_add_u32 v{KA}, {PKO}, v{KA}
        v_xor_b32 v{KA+1}, 64, v{KA}
        v_lshrrev_b32 v{X+4}, 1, v{X+1}
        v_xor_b32 v{X+4}, v{X+4}, v{X+2}
        v_lshlrev_b32 v{X+3}, 6, v{X}
        v_lshl_add_u32 v{X+3}, v{X+4}, 4, v{X+3}
        v_lshl_add_u32 v{KB}, v{X+5}, 3, v{X+3}
        v_add_u32 v{KB}, {VVO}, v{KB}
        v_xor_b32 v{KB+1}, 32, v{KB}
        """)
        for rg in (1, 2):
            for k in range(2):
                S.e(f"v_add_u32 v{KA+2*rg+k}, {rg*3*REG2}, v{KA+k}\nv_add_u32 v{KB+2*rg+k}, {rg*3*REG2}, v{KB+k}")
        S.e(f"""
        s_lshl_b32 {t4}, s{S_HEAD}, 3
        s_add_u32 {t4}, {t4}, s{S_MT}
        s_lshl_b32 {t4}, {t4}, 13
        s_lshr_b32 {t0}, s{S_H}, 1
        s_lshl_b32 {t0}, {t0}, 12
        s_add_u32 {t4}, {t4}, {t0}
        s_and_b32 {t0}, s{S_H}, 1
        s_lshl_b32 {t0}, {t0}, 9
        s_add_u32 {t4}, {t4}, {t0}
        s_add_u32 {t4}, {t4}, {KVP_OFF}
        """)
        for dh in range(2):
            D = 130 + dh
            S.e(f"""
            v_bfe_u32 v{X}, v{V_L}, 2, 2
            v_and_b32 v{X+1}, 3, v{V_L}
            v_lshl_add_u32 v{X}, v{X}, 3, v{X+1}
            v_add_u32 v{X}, {4*dh}, v{X}
            v_cmp_lt_u32_e64 {M1}, 13, v{X}
            v_subrev_u32 v{X+1}, 14, v{X}
            v_cndmask_b32_e64 v{X+1}, v{X}, v{X+1}, {M1}
            v_cndmask_b32_e64 v{X+2}, 0, 4, {M1}
            v_cmp_lt_u32_e64 {M2}, 27, v{X}
            v_and_b32 v{X+3}, 1, v{X}
            v_lshlrev_b32 v{X+3}, 2, v{X+3}
            v_bfe_u32 v{X+4}, v{X}, 1, 1
            v_add_u32 v{X+4}, 14, v{X+4}
            v_cndmask_b32_e64 v{X+1}, v{X+1}, v{X+4}, {M2}
            v_cndmask_b32_e64 v{X+2}, v{X+2}, v{X+3}, {M2}
            v_lshrrev_b32 v{X+3}, 2, v{X+1}
            v_and_b32 v{X+1}, 3, v{X+1}
            v_lshl_add_u32 v{X+1}, v{X+3}, 3, v{X+1}
            v_add_u32 v{X+1}, v{X+1}, v{X+2}
            v_lshrrev_b32 v{X+2}, 4, v{V_L}
            v_lshlrev_b32 v{X+2}, 10, v{X+2}
            v_lshl_add_u32 v{D}, v{X+1}, 4, v{X+2}
            """)
        def a1flag():
            S.wait_vm("a1")
            S.e(f"v_mov_b32 v16, {CNT + 20}\nv_mov_b32 v17, 1\ns_mov_b64 exec, 1\nds_add_u32 v16, v17\ns_mov_b64 exec, -1")
        if OPT.get("kvffn", "last") == "first": a1flag()
        S.e(f"""
        s_barrier
        s_setprio 3
        """)
        st(S, "B2")
        FB = 32; KD = 24
        for kk in range(8):
            b = FB + 12 * kk; rg = kk // 3; ro = (kk % 3) * REG2
            for e in range(2):
                S.e(f"ds_read_b64_tr_b16 {vr(b + 2*e, 2)}, v{KA + 2*rg + e} offset:{ro + e*512}")
                for dh in range(2):
                    S.e(f"ds_read_b64_tr_b16 {vr(b + 4 + 4*dh + 2*e, 2)}, v{KB + 2*rg + (e ^ dh)} offset:{ro + e*256}")
        for kk in range(8):
            b = FB + 12 * kk
            for dh in range(2):
                S.e(f"{MF16} {vr(KD + 4*dh)}, {vr(b)}, {vr(b + 4 + 4*dh)}, {'0' if kk == 0 else vr(KD + 4*dh)}")
        for dh in range(2):
            S.e(f"buffer_store_dwordx4 {vr(KD + 4*dh)}, v{130+dh}, {sq(S_WS)}, {t4} offen sc1", tag="kvst")
        st(S, "kvst")
        if OPT.get("kvffn", "last") != "first": a1flag()
        S.e(f"v_mov_b32 v12, {CNT + 12}\nv_mov_b32 v13, 1\ns_mov_b64 exec, 1\nds_add_u32 v12, v13\ns_mov_b64 exec, -1")
    st(S, "end")
    st.flush(S, sq(S_WS), ST_OFF, 24, 12)
    S.e("s_endpgm")
    return S
def compute_head():
    S = Stream(); T = PT
    S.e("K_comp:")
    S.e(f"""
    s_lshl_b32 {t0}, s{S_MT}, 3
    s_add_u32 {t0}, {t0}, s3
    s_mul_i32 s{S_HFB}, {t0}, {NKS*1024}
    s_mul_i32 s{S_AREA}, s3, {AREA}
    s_mul_i32 {t2}, s{S_SROW}, 896
    v_cmp_gt_u32_e64 {M2}, 56, v{V_L}
    v_mov_b32 v{T+2}, 0x7f000000
    v_cndmask_b32_e64 v{T+2}, v{T+2}, v{V_L16}, {M2}
    s_waitcnt lgkmcnt(0)
    """)
    srd(S, S_X, 4, 2048 * 896)
    S.e(f"buffer_load_dwordx4 {vr(STV)}, v{T+2}, {sq(S_X)}, {t2} offen", tag="strow")
    if OPT.get("touch2"):
        S.e(f"""
        s_mov_b32 s{S_D1}, s6
        s_mov_b32 s{S_D1+1}, s7
        s_mov_b32 s{S_D1+2}, {448*2688}
        s_mov_b32 s{S_D1+3}, 0x20000
        s_cmp_eq_u32 s3, 1
        s_cselect_b32 s{S_D1}, s14, s{S_D1}
        s_cselect_b32 s{S_D1+1}, s15, s{S_D1+1}
        s_cmp_eq_u32 s3, 2
        s_cselect_b32 s{S_D1}, s16, s{S_D1}
        s_cselect_b32 s{S_D1+1}, s17, s{S_D1+1}
        s_cmp_eq_u32 s3, 3
        s_cselect_b32 s{S_D1}, s18, s{S_D1}
        s_cselect_b32 s{S_D1+1}, s19, s{S_D1+1}
        s_cmp_lg_u32 s3, 0
        s_cselect_b32 s{S_D1+2}, {448*3584}, s{S_D1+2}
        s_cmp_eq_u32 s3, 4
        s_cselect_b32 s{S_D1}, s10, s{S_D1}
        s_cselect_b32 s{S_D1+1}, s11, s{S_D1+1}
        s_cselect_b32 s{S_D1+2}, {448*896}, s{S_D1+2}
        s_mul_i32 {t1}, s2, {49*128}
        s_cmp_ge_u32 s3, {OPT['touch2']}
        s_cselect_b32 {t1}, 0x40000000, {t1}
        v_lshlrev_b32 v{T+5}, 7, v{V_L}
        v_cmp_gt_u32_e64 {M1}, 49, v{V_L}
        v_mov_b32 v{T+6}, 0x7f000000
        v_cndmask_b32_e64 v{T+5}, v{T+6}, v{T+5}, {M1}
        buffer_load_dword v23, v{T+5}, {sq(S_D1)}, {t1} offen
        """)
    srd(S, S_WS, 22, WS_SIZE); srd(S, S_DBG, 20, 256); srd(S, S_WD, 18, 1792 * 896); srd(S, S_WO, 10, 448 * 896)
    S.e(f"s_mov_b32 s{S_OUT+2}, {2048*896}\ns_mov_b32 s{S_OUT+3}, 0x20000")
    S.e(f"""
    s_lshl_b32 s{S_U0}, s{S_U0}, 5
    s_add_u32 s{S_U0}, s{S_U0}, s{S_HFB}
    s_lshl_b32 s{S_U12}, s{S_U12}, 5
    s_add_u32 s{S_U12}, s{S_U12}, s{S_HFB}
    v_lshrrev_b32 v{T+3}, 5, v{V_L}
    v_and_b32 v{T+5}, 31, v{V_L}
    v_bfe_u32 v{T+6}, v{V_L}, 1, 3
    v_xor_b32 v{T+6}, v{T+6}, v{T+3}
    v_lshlrev_b32 v{T+5}, 7, v{T+5}
    v_lshl_add_u32 v{T+5}, v{T+6}, 4, v{T+5}
    v_add_u32 v{V_AX}, s{S_AREA}, v{T+5}
    v_xor_b32 v{V_AX+1}, 32, v{V_AX}
    v_xor_b32 v{V_AX+2}, 64, v{V_AX}
    v_xor_b32 v{V_AX+3}, 0x60, v{V_AX}
    v_add_u32 v{V_CSA}, {CSP}, v{V_L16}
    v_bfe_u32 v{T+1}, v{V_L}, 2, 2
    v_lshl_add_u32 v{T+9}, v{T+3}, 2, v{T+1}
    v_lshlrev_b32 v{T+9}, 6, v{T+9}
    v_and_b32 v{T+10}, 1, v{V_L}
    v_lshl_add_u32 v{T+9}, v{T+10}, 5, v{T+9}
    v_bfe_u32 v{T+10}, v{V_L}, 1, 1
    v_bfe_u32 v{T+4}, v{V_L}, 4, 1
    v_lshl_add_u32 v{T+10}, v{T+4}, 1, v{T+10}
    v_lshl_add_u32 v{T+9}, v{T+10}, 3, v{T+9}
    v_add_u32 v{V_PHA}, {WPHI}, v{T+9}
    v_mov_b32 v{T+9}, {CNT}
    ds_write_b32 v{T+9}, v{V_Z}
    ds_write_b32 v{T+9}, v{V_Z} offset:4
    ds_write_b32 v{T+9}, v{V_Z} offset:8
    ds_write_b32 v{T+9}, v{V_Z} offset:12
    ds_write_b32 v{T+9}, v{V_Z} offset:16
    ds_write_b32 v{T+9}, v{V_Z} offset:20
    v_and_b32 v{T+10}, 60, v{V_L}
    v_add_u32 v{T+10}, {CNT + 64}, v{T+10}
    ds_write_b32 v{T+10}, v{V_Z}
    """)
    U = PT
    for j in range(4): S.e(f"v_lshlrev_b32 v{U+2*j}, 16, v{STV+j}\nv_and_b32 v{U+2*j+1}, 0xffff0000, v{STV+j}")
    S.e(f"""
    v_add_f32 v{U+8}, v{U}, v{U+1}
    v_add_f32 v{U+9}, v{U+2}, v{U+3}
    v_add_f32 v{U+10}, v{U+4}, v{U+5}
    v_add_f32 v{U+11}, v{U+6}, v{U+7}
    v_add_f32 v{U+8}, v{U+8}, v{U+9}
    v_add_f32 v{U+10}, v{U+10}, v{U+11}
    v_add_f32 v{U+8}, v{U+8}, v{U+10}
    """)
    wave_sum(S, U + 8, U + 9)
    S.e(f"v_mul_f32 v{U+8}, {f32(1/448)}, v{U+8}")
    for j in range(8): S.e(f"v_sub_f32 v{U+j}, v{U+j}, v{U+8}")
    S.e(f"v_mul_f32 v{U+9}, v{U}, v{U}\nv_mul_f32 v{U+10}, v{U+1}, v{U+1}")
    for j in range(2, 8): S.e(f"v_fmac_f32 v{U+9+(j&1)}, v{U+j}, v{U+j}")
    S.e(f"v_add_f32 v{U+9}, v{U+9}, v{U+10}\nv_cndmask_b32_e64 v{U+9}, 0, v{U+9}, {M2}")
    wave_sum(S, U + 9, U + 10)
    S.e(f"v_mul_f32 v{U+9}, {f32(1/448)}, v{U+9}")
    bf16r(S, U + 9, f"v{U+9}")
    S.e(f"v_add_f32 v{U+9}, {f32(1e-5)}, v{U+9}")
    bf16r(S, U + 9, f"v{U+9}")
    S.e(f"v_sqrt_f32 v{U+9}, v{U+9}")
    bf16r(S, STV + 1, f"v{U+9}")
    S.e(f"""
    v_cvt_pk_bf16_f32 v{STV}, -v{U+8}, -v{U+8}
    s_lshl_b32 {t0}, s{S_SROW}, 3
    s_add_u32 {t0}, {t0}, {STATS_OFF}
    s_mov_b64 exec, 1
    """)
    S.e(f"buffer_store_dwordx2 {vr(STV, 2)}, v{V_Z}, {sq(S_WS)}, {t0} offen sc1", tag="stst")
    S.e(f"s_mul_i32 {t0}, s2, {MB_STRIDE}\ns_lshl_b32 {t1}, s3, 2\ns_add_u32 {t0}, {t0}, {t1}\ns_add_u32 {t0}, {t0}, {MB_OFF}")
    S.e(f"buffer_store_dword v{V_Z}, v{V_Z}, {sq(S_WS)}, {t0} offen sc1", tag="stst")
    S.e("s_mov_b64 exec, -1")
    S.e(f"s_cmp_eq_u32 s{S_TYPE}, 1\ns_cbranch_scc1 K_kv")
    return S


def compute(typ):
    q = typ == "q"
    S = Stream(); T = PT
    S.e(f"K_{typ}:")
    st = Stamper(STAMPR); st.n = 1; st.names = ["start"]
    tile_addrs(S, typ, V_AT, T)
    p2_ids(S)
    EARLY = Stream()
    T = SC; p2_a_voffsets(EARLY, 21, None, None, T)
    EARLY.e(f"""
    s_bfe_u32 {t4}, s3, 0x10001
    s_lshr_b32 {t5}, s3, 2
    v_bfe_u32 v{T}, v{V_L}, 2, 2
    v_lshrrev_b32 v{T+1}, 5, v{V_L}
    v_lshl_add_u32 v{T+2}, v{T+1}, 2, v{T}
    v_lshlrev_b32 v{T+2}, 7, v{T+2}
    v_lshrrev_b32 v{T}, 1, v{T}
    v_xor_b32 v{T}, {t4}, v{T}
    v_lshl_add_u32 v{T+2}, v{T}, 6, v{T+2}
    v_and_b32 v{T}, 1, v{V_L}
    v_lshl_add_u32 v{T+2}, v{T}, 5, v{T+2}
    v_bfe_u32 v{T}, v{V_L}, 1, 1
    v_bfe_u32 v{T+3}, v{V_L}, 4, 1
    v_xor_b32 v{T+3}, {t5}, v{T+3}
    v_lshl_add_u32 v{T}, v{T+3}, 1, v{T}
    v_lshl_add_u32 v{T+2}, v{T}, 3, v{T+2}
    s_mul_i32 {t0}, s3, {REG2}
    v_add_u32 v22, {t0}, v{T+2}
    s_and_b32 {t0}, s3, 3
    s_lshl_b32 {t0}, {t0}, 1
    s_add_u32 s{S_H}, {t0}, {t5}
    s_mul_i32 s{S_XROW}, s{S_H}, {14*16*896}
    s_cmp_ge_u32 s2, 224
    s_cselect_b32 {t0}, 0x40000000, 0
    s_add_u32 s{S_XROW}, s{S_XROW}, {t0}
    """)
    T = PT
    pend = []
    def ABn(n): return AB if n % 2 == 1 else SC + 8
    def a_read(n, t):
        c, s = n >> 2, n & 3
        for e in range(2):
            a, imm = tile_read_args(typ, t, s, e)
            S.e(f"ds_read_b64_tr_b16 {vr(ABn(n) + 4*t + 2*e, 2)}, v{V_AT+a} offset:{(c % 3)*WS_ + imm}")
    def x_read(n):
        c, s = n >> 2, n & 3
        S.e(f"ds_read_b128 {vr(XB + 4*(n & 1))}, v{V_AX+s} offset:{(c % 3) * 4096}")
    def kstep(n):
        if n + 1 < 28:
            x_read(n + 1); a_read(n + 1, 0); a_read(n + 1, 1)
        for t in range(5):
            S.e(f"{MF} {vr(ACC + 16*t, 16)}, {vr(ABn(n) + 4*t)}, {vr(XB + 4*(n & 1))}, {'0' if n == 0 else vr(ACC + 16*t, 16)}")
            if n + 1 < 28 and t + 2 < 5: a_read(n + 1, t + 2)
            if pend: S.extend(pend.pop(0))
    S.wait_lgkm(); S.e("s_barrier")
    st(S, "bar0")
    x_read(0)
    for t in range(5): a_read(0, t)
    for c in range(7):
        S.comment(f"chunk {c}")
        if c in (4,): st(S, f"chunk{c}")
        n = 4 * c
        if c == int(OPT.get("poic", 0)):
            G = Stream(); G.e(f"v_mov_b32 v{SC}, -1\nv_mov_b32 v{SC+1}, -1\nv_mov_b32 v{SC+2}, -1\nv_mov_b32 v{SC+3}, -1"); pend.append(G)
            if q:
                offs = [f"s_lshl_b32 {t0}, s{S_HEAD}, 11\ns_add_u32 {t0}, {t0}, s{S_HFB}\ns_add_u32 {t0}, {t0}, {(112+u)*1024}" for u in range(2)]
            else:
                offs = [f"s_lshl_b32 {t0}, s{S_HEAD}, 3\ns_add_u32 {t0}, {t0}, s{S_MT}\ns_lshl_b32 {t0}, {t0}, 3\ns_add_u32 {t0}, {t0}, s3\ns_lshl_b32 {t0}, {t0}, 10\ns_add_u32 {t0}, {t0}, {KVP_OFF}"]
            for o in offs:
                G = Stream(); G.e(o); G.e(f"buffer_store_dwordx4 {vr(SC)}, v{V_L16}, {sq(S_WS)}, {t0} offen sc1", tag="stst"); pend.append(G); pend.append(Stream())
        if c == int(OPT.get("poic", 0)) + 1: pend.append(signal("stst", 4, "init", f"K_{typ}_nosigst", SC + 4, SC + 5, SC + 6, 7))
        if c == 3:
            for ii in range(0, len(EARLY), 5):
                G = Stream(); G.extend(EARLY[ii:ii+5]); pend.append(G)
        kstep(n); kstep(n + 1); kstep(n + 2)
        S.wait_lgkm(); S.e("s_barrier")
        if c == 5:
            G = Stream()
            G.e(f"""
            v_and_b32 v{V_TMP}, 31, v{V_L}
            v_lshlrev_b32 v{V_TMP}, 3, v{V_TMP}
            s_lshl_b32 {t0}, s{S_MT}, 3
            s_add_u32 {t0}, {t0}, s3
            s_lshl_b32 {t0}, {t0}, 8
            s_add_u32 {t0}, {t0}, {STATS_OFF}
            buffer_load_dwordx2 {vr(V_RINV, 2)}, v{V_TMP}, {sq(S_WS)}, {t0} offen sc1
            """)
            pend.append(G)
        if c == 6:
            CR = SC + 8
            for t in range(5): S.e(f"ds_read_b128 {vr(CR + 4*t)}, v{V_CSA} offset:{t*1024}")
            stats_consts(S)
        kstep(n + 3)
    st(S, "S1")
    WPF = XB; E = AB; QB = E + 8; TT = 4; GT = SC; GT2 = SC + 12
    A0 = ACC
    V_WD, V_A0, V_A1 = 11, 12, 13
    V_WOo, V_WOM, V_B0, V_B1, V_O = 4, 5, 6, 7, 8
    S.e(f"{MF} {vr(ACC,16)}, {vr(CR)}, {vr(BP)}, {vr(ACC,16)}")
    for te in range(4): S.e(f"ds_read_b64_tr_b16 {vr(WPF + 2*te, 2)}, v{V_PHA} offset:{te * 512}")
    for t in range(1, 5): S.e(f"{MF} {vr(ACC + 16*t,16)}, {vr(CR + 4*t)}, {vr(BP)}, {vr(ACC + 16*t,16)}")
    S.e(f"s_mul_i32 s{S_AREA}, s3, {REG2}\nv_mov_b32 v{V_WD}, v21\nv_mov_b32 v{V_A0}, v22\nv_xor_b32 v{V_A1}, 64, v22")
    W = SC + 28; X = 4
    if not q:
        S.e(f"""
        v_and_b32 v{X}, 31, v{V_L}
        v_lshrrev_b32 v{X+1}, 5, v{V_L}
        v_lshlrev_b32 v{X+1}, 1, v{X+1}
        v_bfe_u32 v{X+2}, v{V_L}, 1, 2
        v_xor_b32 v{X+2}, v{X+2}, v{X+1}
        v_lshlrev_b32 v{X+3}, 6, v{X}
        v_lshl_add_u32 v{X+3}, v{X+2}, 4, v{X+3}
        s_add_u32 {t0}, s{S_AREA}, {VVO}
        v_add_u32 v9, {t0}, v{X+3}
        v_xor_b32 v10, 16, v9
        v_and_b32 v{X+3}, 7, v{V_L}
        v_xor_b32 v{X+1}, v{X+1}, v{X+3}
        v_lshlrev_b32 v{X}, 7, v{X}
        v_lshl_add_u32 v{X}, v{X+1}, 4, v{X}
        s_add_u32 {t0}, s{S_AREA}, {PKO}
        v_add_u32 v{W}, {t0}, v{X}
        v_xor_b32 v{W+1}, 16, v{W}
        v_xor_b32 v{W+2}, 64, v{W}
        v_xor_b32 v{W+3}, 0x50, v{W}
        """)
    for i in range(16): S.e(f"v_mul_f32 v{A0+i}, v{A0+i}, v{V_RINV}")
    for i in range(8): S.e(f"v_cvt_pk_bf16_f32 v{QB+i}, v{A0+2*i}, v{A0+2*i+1}")
    S.e(f"{MF} {vr(A0,16)}, {vr(WPF)}, {vr(QB)}, 0\n{MF} {vr(A0,16)}, {vr(WPF+4)}, {vr(QB+4)}, {vr(A0,16)}")
    A1 = ACC + 16
    AC2 = 104
    bfree = [16, 24, 32, 40, 48]
    ablk = {i: b for i, b in enumerate([72, 80, 88, 96, 56, 64] if (q or OPT.get('kvffn', 'last') == 'first') else [56, 64, 72, 80, 88, 96])}
    slot_of = {i: i for i in range(6)}
    def a_tr(i, blk):
        for ni in range(2):
            for e in range(2):
                S.e(f"ds_read_b64_tr_b16 {vr(blk + 4*ni + 2*e, 2)}, v{V_A0+ni} offset:{slot_of[i]*2048 + e*1024}", tag=f"ar{i}")
    def a_dma(i, sl):
        slot_of[i] = sl; out = []
        for u in range(2):
            G = Stream()
            G.e(f"s_add_u32 m0, s{S_AREA}, {sl*2048 + u*1024}")
            if i < 14:
                G.e(f"s_add_u32 {tm}, s{S_XROW}, {(16*i + 8*u)*896}")
                G.e(f"buffer_load_dwordx4 v{V_WD}, {sq(S_WD)}, {tm} offen lds", tag=f"a{i}")
            else:
                hd, t = (i - 14) >> 1, (i - 14) & 1
                G.e(f"s_add_u32 {tm}, s{S_D0L}, {(28*hd + 8*t + 4*u)*896}")
                G.e(f"buffer_load_dwordx4 v{V_WOM if (t and u) else V_WOo}, {sq(S_WO)}, {tm} offen lds", tag=f"a{i}")
            out.append(G)
        return out
    def sprinkle(V, parts, start, every):
        n = 0
        for ins in V:
            S.append(ins); n += 1
            if n >= start and (n - start) % every == 0 and parts: S.extend(parts.pop(0))
        for p in parts: S.extend(p)
    late = []
    KF1 = q or OPT.get("kvffn", "last") == "first"
    def vpart():
        for i in range(16): S.e(f"v_mul_f32 v{A1+i}, v{A1+i}, v{V_RINV}")
        for i in range(8): S.e(f"v_cvt_pk_bf16_f32 v{A1+i}, v{A1+2*i}, v{A1+2*i+1}")
        S.e(f"""
        v_mov_b32 v{A1+8}, 0x3f803f80
        v_cndmask_b32_e64 v{A1+6}, v{A1+6}, v{A1+8}, {HHM}
        ds_write_b128 v9, {vr(A1)}
        ds_write_b128 v10, {vr(A1+4)}
        """)
    if KF1:
        if q:
            geglu(S, A1, GT, S_U0, 0); geglu(S, ACC + 32, GT2, S_U0, 1); geglu(S, ACC + 48, GT, S_U0, 2); geglu(S, ACC + 64, GT2, S_U0, 3)
        else:
            geglu(S, ACC + 32, GT2, S_U0, 0); geglu(S, ACC + 48, GT, S_U12, 0); geglu(S, ACC + 64, GT2, S_U12, 1)
            vpart()
        st(S, "ffn")
        S.e(f"""
        v_mov_b32 v14, {CNT + 20}
        K_{typ}_a1:
        ds_read_b32 v15, v14
        s_waitcnt lgkmcnt(0)
        v_readfirstlane_b32 {t1}, v15
        s_cmp_lt_u32 {t1}, 4
        s_cbranch_scc1 K_{typ}_a1
        """)
        for i in range(4): a_tr(i, ablk[i])
        V = Stream(); softmax14(V, A0, E, TT)
        w = Stream(); w.wait_lgkm()
        sg = signal("hst", 8, "h", f"K_{typ}_nosigh", 104, 105, 106, 7)
        pos = int(OPT.get("sgpos", 4))
        parts = [w] + a_dma(6, 0) + a_dma(7, 1) + a_dma(8, 2) + a_dma(9, 3)
        parts.insert(pos + 1, sg)
        if q or OPT.get('kvspr', False): sprinkle(V, parts, 12, 14)
        else:
            sprinkle(V, [sg], 60, 14); parts.remove(sg); pre_late = parts
        if q:
            S.e(f"s_add_u32 {t0}, s{S_AREA}, {PKO}\nv_add_u32 v9, {t0}, v{V_L16}")
            for kk in range(4): S.e(f"ds_write_b128 v9, {vr(E + 4*kk)} offset:{kk*1024}")
        else:
            for k in range(4): S.e(f"ds_write_b128 v{W+k}, {vr(E+4*k)}")
        a_tr(4, ablk[4]); a_tr(5, ablk[5])
        S.wait_lgkm(); S.e("s_barrier")
        st(S, "B2")
        late = ([] if (q or OPT.get('kvspr', False)) else pre_late) + a_dma(10, 4) + a_dma(11, 5)
    else:
        vpart()
        softmax14(S, A0, E, TT)
        for k in range(4): S.e(f"ds_write_b128 v{W+k}, {vr(E+4*k)}")
        S.wait_lgkm(); S.e("s_barrier")
        st(S, "B2")
        geglu(S, ACC + 32, GT2, S_U0, 0); geglu(S, ACC + 48, GT, S_U12, 0); geglu(S, ACC + 64, GT2, S_U12, 1)
        st(S, "ffn")
        S.e(f"""
        v_mov_b32 v14, {CNT + 20}
        K_{typ}_a1:
        ds_read_b32 v15, v14
        s_waitcnt lgkmcnt(0)
        v_readfirstlane_b32 {t1}, v15
        s_cmp_lt_u32 {t1}, 4
        s_cbranch_scc1 K_{typ}_a1
        """)
        for i in range(6): a_tr(i, ablk[i])
        S.wait_lgkm()
        for i in range(6, 12): late += a_dma(i, i - 6)
    TP = 16
    S.e(f"""
    v_lshrrev_b32 v{TP}, 3, v{V_L}
    v_mul_u32_u24 v{TP+1}, 896, v{TP}
    v_sub_u32 v{TP+1}, v{V_WD}, v{TP+1}
    v_lshrrev_b32 v{TP+2}, 2, v{TP}
    v_and_b32 v{TP+3}, 3, v{TP}
    v_mad_u32_u24 v{TP+2}, v{TP+2}, 14, v{TP+3}
    v_mul_u32_u24 v{V_WOo}, 896, v{TP+2}
    v_add_u32 v{V_WOo}, v{V_WOo}, v{TP+1}
    v_cmp_lt_u32_e64 {M1}, 1, v{TP+3}
    v_mov_b32 v{TP+2}, 0x7f000000
    v_cndmask_b32_e64 v{V_WOM}, v{V_WOo}, v{TP+2}, {M1}
    s_and_b32 {t3}, s3, 1
    s_bfe_u32 {t4}, s3, 0x10001
    s_lshr_b32 {t5}, s3, 2
    s_lshl_b32 {t0}, s{S_M64}, 1
    s_add_u32 {t0}, {t0}, {t3}
    s_mul_i32 {t1}, {t0}, {NKS*1024}
    v_add_u32 v{V_B0}, {t1}, v{V_L16}
    s_xor_b32 {t2}, {t0}, 1
    s_mul_i32 {t2}, {t2}, {NKS*1024}
    v_add_u32 v{V_B1}, {t2}, v{V_L16}
    v_mov_b32 v9, {t1}
    v_mov_b32 v10, {t2}
    v_cmp_lt_u32_e64 {M1}, 15, v{V_L}
    v_cndmask_b32_e64 v9, v9, v10, {M1}
    v_and_b32 v10, 3, v{V_L}
    v_lshl_add_u32 v9, v10, 10, v9
    v_lshrrev_b32 v{TP+1}, 5, v{V_L}
    v_and_b32 v{TP}, 31, v{V_L}
    s_lshl_b32 {t0}, {t0}, 5
    v_add_u32 v{TP}, {t0}, v{TP}
    v_mul_u32_u24 v{TP}, 896, v{TP}
    v_lshlrev_b32 v{TP+1}, 5, v{TP+1}
    s_lshl_b32 {t0}, s{S_N64}, 7
    s_lshl_b32 {t1}, {t4}, 6
    s_add_u32 {t0}, {t0}, {t1}
    s_lshl_b32 {t1}, {t5}, 4
    s_add_u32 {t0}, {t0}, {t1}
    v_add3_u32 v{V_O}, v{TP}, v{TP+1}, {t0}
    s_mul_i32 s{S_D0L}, s{S_H}, {2*28*896}
    s_mul_i32 s{S_U0}, s{S_H}, {14*1024}
    s_lshl_b32 s{S_U12}, s{S_H}, 12
    s_add_u32 s{S_U12}, s{S_U12}, {112*1024 - 14*1024}
    s_add_u32 s{S_G}, s{S_U12}, {14*1024 + 1008}
    v_mov_b32 v{TP}, {CNT + 12}
    K_{typ}_zone:
    ds_read_b32 v{TP+1}, v{TP}
    s_waitcnt lgkmcnt(0)
    v_readfirstlane_b32 {t1}, v{TP+1}
    s_cmp_lt_u32 {t1}, 4
    s_cbranch_scc1 K_{typ}_zone
    """)
    for g in late[:int(OPT.get("latepre", 4))]: S.extend(g)
    st(S, "p1end")
    if not KF1: S.extend(signal("hst", 8, "h", f"K_{typ}_nosigh", TP, TP + 1, TP + 2, 7))
    if not q: S.e(f"s_cmp_ge_u32 s2, 224\ns_cbranch_scc1 K_{typ}_fin")
    for g in late[int(OPT.get("latepre", 4)):]: S.extend(g)
    for i in range(12, 15):
        for g in a_dma(i, i - 6): S.extend(g)
    MIR = CNT + 64
    S.e(f"""
    s_mul_i32 {t2}, s2, {MB_STRIDE}
    s_add_u32 {t2}, {t2}, {MB_OFF}
    s_lshr_b32 {t0}, s{S_H}, 1
    s_lshl_b32 {t5}, {t0}, 1
    s_cmp_lt_u32 s3, 4
    s_mov_b32 {t4}, 0x01010101
    s_cselect_b32 {t4}, 0x00010001, {t4}
    s_mov_b32 {t3}, 0
    v_and_b32 v{TP}, 15, v{V_L}
    v_lshlrev_b32 v{TP}, 2, v{TP}
    v_add_u32 v{TP+1}, {MIR}, v{TP}
    v_and_b32 v{TP}, 28, v{TP}
    s_add_u32 {t0}, {t5}, 1
    """)
    st(S, "w5")
    S.e(f"""
    s_cmp_eq_u32 s3, 7
    s_cbranch_scc1 K_{typ}_phg
    K_{typ}_phl:
    ds_read_b32 v14, v{TP+1}
    s_waitcnt lgkmcnt(0)
    v_readlane_b32 {t1}, v14, {t5}
    v_readlane_b32 {tm}, v14, {t0}
    s_and_b32 {t1}, {t1}, {tm}
    s_and_b32 {t1}, {t1}, {t4}
    s_cmp_eq_u32 {t1}, {t4}
    s_cbranch_scc1 K_{typ}_phok
    v_readlane_b32 {t1}, v14, 8
    s_sleep 2
    s_cmp_eq_u32 {t1}, 0
    s_cbranch_scc1 K_{typ}_phl
    K_{typ}_phg:
    buffer_load_dword v14, v{TP}, {sq(S_WS)}, {t2} offen sc1
    s_waitcnt vmcnt(0)
    s_mov_b64 exec, 0xff
    ds_write_b32 v{TP+1}, v14
    s_mov_b64 exec, -1
    v_readlane_b32 {t1}, v14, {t5}
    v_readlane_b32 {tm}, v14, {t0}
    s_add_u32 {t3}, {t3}, 1
    s_and_b32 {t1}, {t1}, {tm}
    s_and_b32 {t1}, {t1}, {t4}
    s_cmp_eq_u32 {t1}, {t4}
    s_cbranch_scc1 K_{typ}_phd
    s_sleep {OPT.get('sleep', 4)}
    s_cmp_lt_u32 {t3}, 0x8000
    s_cbranch_scc1 K_{typ}_phg
    K_{typ}_phd:
    v_mov_b32 v14, {MIR + 32}
    v_mov_b32 v15, 1
    ds_write_b32 v14, v15
    K_{typ}_phok:
    """, opt=True)
    S.append(pseudo("forget_opt"))
    st(S, "B5")
    bblk = {}
    nextb = [0]
    def b_issue(i, opt=False):
        S.e(f"s_add_u32 {tm}, s{S_U0 if i < 14 else S_U12}, {i*1024}", opt=opt)
        for mi in range(2):
            S.e(f"buffer_load_dwordx4 {vr(bblk[i] + 4*mi)}, v{V_B0+mi}, {sq(S_WS)}, {tm} offen sc1", opt=opt)
    def b_load():
        i = nextb[0]
        if i >= 18 or not bfree: return False
        if i == 14:
            tagpoll(S, f"K_{typ}_po", 9, 14, f"s{S_G}", first_issued=True)
            S.append(pseudo("forget_opt"))
            st(S, "B6")
        bblk[i] = bfree.pop(0)
        b_issue(i)
        nextb[0] += 1
        return True
    OLAG = int(OPT.get("olag", 4))
    while b_load(): pass
    afree = []
    for i in range(18):
        if i + 1 < 18 and (i + 1) not in ablk:
            ablk[i + 1] = afree.pop(0)
            S.wait_vm(f"a{i+1}")
            a_tr(i + 1, ablk[i + 1])
        if i >= 14:
            regs = list(range(bblk[i], bblk[i] + 8))
            umax_tree(S, regs, 15)
            S.e(f"v_cmp_eq_u32_e64 {M1}, -1, v15\ns_cmp_eq_u64 {M1}, 0\ns_cbranch_scc1 K_{typ}_bok{i}")
            S.e(f"s_mov_b32 {t3}, 0\nK_{typ}_bre{i}:", opt=True)
            b_issue(i, opt=True)
            S.e("s_waitcnt vmcnt(0)", opt=True)
            umax_tree(S, regs, 15, opt=True)
            S.e(f"v_cmp_eq_u32_e64 {M1}, -1, v15\ns_add_u32 {t3}, {t3}, 1\ns_cmp_eq_u64 {M1}, 0\ns_cbranch_scc1 K_{typ}_bok{i}\ns_cmp_lt_u32 {t3}, 0x4000\ns_cbranch_scc1 K_{typ}_bre{i}", opt=True)
            S.e(f"K_{typ}_bok{i}:")
            S.append(pseudo("forget_opt"))
        for lq in range(4):
            ni, mi = lq >> 1, lq & 1
            S.e(f"{MF} {vr(AC2 + 16*lq, 16)}, {vr(ablk[i] + 4*ni)}, {vr(bblk[i] + 4*mi)}, {'0' if i == 0 else vr(AC2 + 16*lq, 16)}")
        bfree.append(bblk[i])
        if i in (3, 4) or i >= 6: afree.append(ablk[i])
        else: bfree.append(ablk[i])
        if i in (7, 8, 9):
            for g in a_dma(i + 8, i - 7): S.extend(g)
        if i == 14 - OLAG - 2: S.e(f"buffer_load_dword v14, v9, {sq(S_WS)}, s{S_G} offen sc1")
        while nextb[0] < 18 and (nextb[0] < 14 or nextb[0] <= i + OLAG) and b_load(): pass
        if i == 15:
            XRG = [b for b in bfree if b >= 88][0]; bfree.remove(XRG)
            S.e(f"buffer_load_dwordx4 {vr(XRG)}, v{V_O}, {sq(S_X)}, 0 offen")
    st(S, "mm")
    S.e(f"v_add_u32 v4, s{S_AREA}, v{V_L16}")
    def piece(pp): lq = (pp & 1) | (((pp >> 1) & 1) << 1); return AC2 + 16*lq + 8*(pp >> 2)
    for pp in range(1, 8):
        for j in range(2): S.e(f"ds_write_b128 v4, {vr(piece(pp) + 4*j)} offset:{(pp-1)*2048 + j*1024}")
    for pp in range(1, 8):
        S.e(f"s_xor_b32 {t0}, s3, {pp}\ns_mul_i32 {t0}, {t0}, {REG2}\nv_add_u32 v{16+pp}, {t0}, v{V_L16}")
    for j in range(4): S.e(f"v_lshlrev_b32 v{24+2*j}, 16, v{XRG+j}\nv_and_b32 v{25+2*j}, 0xffff0000, v{XRG+j}")
    for j in range(8): S.e(f"v_add_f32 v{AC2+j}, v{AC2+j}, v{24+j}")
    S.wait_lgkm(); S.e("s_barrier")
    R = 32
    for pp in range(1, 8):
        for j in range(2): S.e(f"ds_read_b128 {vr(R + 8*(pp-1) + 4*j)}, v{16+pp} offset:{(pp-1)*2048 + j*1024}")
    for j in range(8): S.e(f"v_add_f32 v{AC2+j}, v{AC2+j}, v{R+j}")
    for j in range(8): S.e(f"v_add_f32 v{R+8+j}, v{R+8+j}, v{R+16+j}")
    for j in range(8): S.e(f"v_add_f32 v{R+24+j}, v{R+24+j}, v{R+32+j}")
    for j in range(8): S.e(f"v_add_f32 v{R+40+j}, v{R+40+j}, v{R+48+j}")
    for j in range(8): S.e(f"v_add_f32 v{AC2+j}, v{AC2+j}, v{R+8+j}")
    for j in range(8): S.e(f"v_add_f32 v{R+24+j}, v{R+24+j}, v{R+40+j}")
    for j in range(8): S.e(f"v_add_f32 v{AC2+j}, v{AC2+j}, v{R+24+j}")
    for j in range(4): S.e(f"v_cvt_pk_bf16_f32 v{24+j}, v{AC2+2*j}, v{AC2+2*j+1}")
    S.e(f"buffer_store_dwordx4 {vr(24)}, v{V_O}, {sq(S_OUT)}, 0 offen")
    S.e(f"K_{typ}_fin:")
    st(S, "end")
    st.flush(S, sq(S_WS), ST_OFF, 104, 12)
    S.e("s_endpgm")
    return S

def gen_all():
    pro = list(prologue()); ch = list(compute_head()); hh = list(helper_head())
    out = []
    def part(prefix, body, label):
        full = finalize(prefix + list(body))
        idx = next(i for i, x in enumerate(full) if x.text == label) if label else 0
        return full[idx:]
    hq = part(pro + hh, list(helper("q")) + list(hpost("q")), None)
    hk = part(pro + hh, list(helper("kv")) + list(hpost("kv")), "K_hkv:")
    def cut(p):
        n = 0
        for i, x in enumerate(p):
            if x.op == "s_barrier":
                n += 1
                if n == 1: return p[:i], p[i:]
    if OPT.get("layout", True):
        a, b = cut(hq); c, d = cut(hk)
        out += a + [I("s_branch K_hq_rest")] + c + [I("s_branch K_hkv_rest")]
        out += part(pro + ch, compute("q"), "K_comp:")
        out += part(pro + ch, compute("kv"), "K_kv:")
        out += [I("K_hq_rest:")] + b + [I("K_hkv_rest:")] + d
    else:
        out += hq + hk
        out += part(pro + ch, compute("q"), "K_comp:")
        out += part(pro + ch, compute("kv"), "K_kv:")
    out.append(I("K_END:")); out.append(I("s_endpgm"))
    return out

def build(path):
    k = gen_all()
    print("K", stats(k), file=sys.stderr)
    ref = open(f"cdna_kernels/{NAME}.s.ref").read().split("\n")
    hdr = [l for l in ref if l.startswith(";") and "@launch" not in l and "Override" not in l and "grid=ceil" not in l]
    txt = "\n".join(hdr) + "\n"
    txt += f"; @launch grid=(256,1,1) block=(768,1,1) lds=163840\n"
    txt += '.amdgcn_target "amdgcn-amd-amdhsa--gfx950"\n.text\n'
    txt += f".globl {K1}\n.p2align 8\n.type {K1},@function\n{K1}:\n" + render(k)
    txt += f""".section .rodata,"a"
.p2align 6
.amdhsa_kernel {K1}
  .amdhsa_next_free_vgpr {NVG1}
  .amdhsa_next_free_sgpr 102
  .amdhsa_accum_offset {NVG1}
  .amdhsa_group_segment_fixed_size 0
  .amdhsa_kernarg_size 88
  .amdhsa_user_sgpr_count 2
  .amdhsa_user_sgpr_kernarg_segment_ptr 1
  .amdhsa_system_sgpr_workgroup_id_x 1
.end_amdhsa_kernel
"""
    open(path, "w").write(txt)

if __name__ == "__main__":
    for a in sys.argv[2:]:
        k, v = a.split("=")
        OPT[k] = {"True": True, "False": False}.get(v, v.replace("_", " ") if k.endswith("flags") else v)
    build(sys.argv[1] if len(sys.argv) > 1 else f"cdna_kernels/{NAME}.s")
```

```python
import sys, os, struct
sys.path.insert(0, os.path.dirname(os.path.abspath(__file__)))
from dsl import *

NAME = "parallel_sum__linear_kernel_hedgehog__geglu_ffn__prompt"
K1 = NAME + "_kernel"
K2 = "k2_kernel"

HF_OFF = 0
KVP_OFF = 0xB00000
PHF_OFF = 0x1000000
WS_SIZE = 0x1400000
NKS = 144

OPT = dict(mimic_ffn=False, hf_flags=" sc1", k2d="8", prefetch=True)

def f32(x): return "0x%08x" % struct.unpack("<I", struct.pack("<f", x))[0]
def vr(a, n=4): return f"v[{a}:{a+n-1}]"
def ar(a, n=4): return f"a[{a}:{a+n-1}]"
MF = "v_mfma_f32_32x32x16_bf16"
MF16 = "v_mfma_f32_16x16x32_bf16"

def srd(S, d, lo, nbytes):
    S.e(f"s_mov_b32 s{d}, s{lo}\ns_mov_b32 s{d+1}, s{lo+1}\ns_mov_b32 s{d+2}, {nbytes}\ns_mov_b32 s{d+3}, 0x20000")

STAMP_REGS = [92, 94, 96, 98, 100, 28, 30, 4, 6, 8, 10, 12, 14, 16, 18, 20]
ST_OFF = 0xD00000
class Stamper:
    def __init__(self, regs=STAMP_REGS): self.n = 0; self.names = []; self.regs = regs
    def __call__(self, S, name, fine=False):
        if not OPT.get("stamps"): return
        if (OPT.get("stamps") == "fine") != fine and name != "end": return
        r = self.regs[self.n]; self.n += 1; self.names.append(name)
        S.e(f"{'s_memtime' if fine else 's_memrealtime'} s[{r}:{r+1}]")
    def flush(self, S, srd_s, base, vtmp, nwaves):
        if not OPT.get("stamps"): return
        S.e("s_waitcnt lgkmcnt(0)")
        for i in range(self.n): S.e(f"v_mov_b32 v{vtmp+i}, s{self.regs[i]}")
        S.e(f"s_mul_i32 s88, s2, {nwaves*64}\ns_lshl_b32 s89, s3, 6\ns_add_u32 s88, s88, s89\ns_add_u32 s88, s88, {base}\nv_mov_b32 v0, 0\ns_mov_b64 exec, 1")
        for i in range(0, 16, 4): S.e(f"buffer_store_dwordx4 v[{vtmp+i}:{vtmp+i+3}], v0, {srd_s}, s88 offen offset:{i*4}")
        if OPT.get("dbgst"):
            Stamper.uid = getattr(Stamper, "uid", 0) + 1
            S.e(f"s_lshl_b32 s88, s2, 4\ns_add_u32 s88, s88, s3\ns_cmp_lg_u32 s88, {OPT['dbgst']}\ns_cbranch_scc1 DBGST{Stamper.uid}")
            for i in range(1, self.n): S.e(f"v_sub_u32 v{vtmp+i}, v{vtmp+i}, v{vtmp}", opt=True)
            for i in range(0, 16, 4): S.e(f"buffer_store_dwordx4 v[{vtmp+i}:{vtmp+i+3}], v0, s[44:47], 0 offen offset:{i*4}", opt=True)
            S.e(f"DBGST{Stamper.uid}:")
        print("stamps", self.names, file=sys.stderr)

AREA = 12288
W0 = 98304; WS_ = 20480
MISC = 159744
WPHI = MISC
CNT = MISC + 2048
STATS_OFF = 0xC00000
REG2 = 18432
CSP = 147456; KVF = 147456 + 5120
PKO = 12288; VVO = 16384
NVG1 = 168

V_L = 1; V_L16 = 2; V_Z = 3
V_AX = 4; V_AT = 8
V_CSA = 13; V_PHA = 14; V_TMP = 15
V_RINV, V_SD = 16, 17
V_C0, V_C1, V_S2 = 18, 19, 20
BP = 24
XB = 28; AB = 36; ACC = 56; SC = 136
PT = 136; STV = 152
S_PF, S_X, S_OUT, S_WG, S_WU, S_WS, S_DBG, S_WQ, S_D1, S_WD, S_WO = 12, 24, 28, 32, 36, 40, 44, 48, 52, 56, 60
S_MT, S_C4, S_HL, S_HEAD, S_TYPE, S_XROW, S_AREA, S_D0L, S_H = 64, 65, 66, 67, 68, 69, 70, 71, 72
S_ODD = 73
S_T = 74
S_HH = 80
S_HFB = 82
S_U0, S_U12 = 83, 84
S_M = 85
S_SROW = 86
S_G = 87
M1 = "s[88:89]"; M2 = "s[90:91]"
HHM = f"s[{S_HH}:{S_HH+1}]"
t0, t1, t2, t3, t4, t5 = [f"s{S_T+i}" for i in range(6)]
tm = f"s{S_M}"
S_M64, S_N64, S_MT2 = 65, 66, 73
def sq(d): return f"s[{d}:{d+3}]"
STAMPR = [92, 94, 96, 98, 100, 4, 6, 8, 10, 16, 18, 20, 22]
B_OWNMT = f"s_lshl_b32 {t2}, s{S_MT}, 5"
B_MT2 = f"s_lshl_b32 {t2}, s{S_MT2}, 5"
B_KV = f"s_lshl_b32 {t2}, s{S_HEAD}, 1\ns_add_u32 {t2}, {t2}, 1"

def bf16r(S, d, src):
    S.e(f"v_cvt_pk_bf16_f32 v{d}, {src}, {src}\nv_lshlrev_b32 v{d}, 16, v{d}")

def xhalf(S, op, x, t):
    S.e(f"v_mov_b32 v{t}, v{x}\nv_permlane32_swap_b32 v{t}, v{x}\n{op} v{x}, v{x}, v{t}")

def wave_sum(S, x, t):
    for m in ("quad_perm:[1,0,3,2]", "quad_perm:[2,3,0,1]", "row_half_mirror", "row_mirror"):
        S.e(f"v_add_f32_dpp v{x}, v{x}, v{x} {m} row_mask:0xf bank_mask:0xf")
    S.e(f"v_mov_b32 v{t}, v{x}\nv_permlane16_swap_b32 v{t}, v{x}\nv_add_f32 v{x}, v{x}, v{t}")
    xhalf(S, "v_add_f32", x, t)


MB_OFF = 0xE00000; MB_STRIDE = 4096 + 256
def signal(tag, cnt_off, kind, lab, A, B, Cc, last):
    G = Stream()
    if tag: G.wait_vm(*tag.split(","))
    G.e(f"""
    v_mov_b32 v{A}, {CNT + cnt_off}
    v_mov_b32 v{B}, 1
    s_mov_b64 exec, 1
    ds_add_rtn_u32 v{Cc}, v{A}, v{B}
    s_mov_b64 exec, -1
    v_readfirstlane_b32 {t1}, v{Cc}
    s_cmp_lg_u32 {t1}, {last}
    s_cbranch_scc1 {lab}
    """)
    if kind == "init":
        G.e(f"s_lshr_b32 {t2}, s{S_SROW}, 3\ns_mov_b64 exec, 1", opt=True)
        G.e(f"buffer_store_byte v{B}, v{V_Z}, {sq(S_DBG)}, {t2} offen sc1", opt=True)
    elif kind in ("h", "o"):
        G.e(f"""
        s_and_b32 {t1}, s{S_MT}, 3
        s_lshl_b32 {t1}, {t1}, 1
        s_lshr_b32 {t2}, s{S_MT}, 2
        s_add_u32 {t1}, {t1}, {t2}
        s_mul_i32 {t1}, {t1}, {MB_STRIDE}
        {f's_bfe_u32 {t2}, s{S_SROW}, 0x50003' if kind == 'h' else f's_add_u32 {t2}, s{S_HEAD}, 32'}
        s_add_u32 {t1}, {t1}, {t2}
        s_add_u32 {t1}, {t1}, {MB_OFF}
        v_mul_u32_u24 v{Cc}, {8*MB_STRIDE}, v{V_L}
        s_mov_b64 exec, 0xfffffff
        """, opt=True)
        G.e(f"buffer_store_byte v{B}, v{Cc}, {sq(S_WS)}, {t1} offen sc1", opt=True)
    else:
        G.e(f"""
        s_lshr_b32 {t1}, s{S_HEAD}, 2
        s_lshl_b32 {t1}, {t1}, 1
        s_and_b32 {t2}, s{S_HEAD}, 3
        s_lshl_b32 {t2}, {t2}, 6
        s_add_u32 {t1}, {t1}, {t2}
        s_mul_i32 {t1}, {t1}, {MB_STRIDE}
        s_add_u32 {t1}, {t1}, s{S_MT}
        s_add_u32 {t1}, {t1}, {MB_OFF + 48}
        v_and_b32 v{Cc}, 3, v{V_L}
        v_lshlrev_b32 v{Cc}, 3, v{Cc}
        v_lshrrev_b32 v{A}, 2, v{V_L}
        v_add_u32 v{Cc}, v{Cc}, v{A}
        v_mul_u32_u24 v{Cc}, {MB_STRIDE}, v{Cc}
        v_mov_b32 v{A}, {CNT + cnt_off}
        s_mov_b64 exec, 0xff
        """, opt=True)
        G.e(f"buffer_store_byte v{B}, v{Cc}, {sq(S_WS)}, {t1} offen sc1", opt=True)
    G.e(f"s_mov_b64 exec, -1", opt=True)
    G.e(f"{lab}:")
    return G
def poll(lab, kind, D, A, who=None):
    G = Stream()
    if who is not None: G.e(f"s_cmp_lg_u32 s3, {who}\ns_cbranch_scc1 {lab}_ok")
    if kind == "init":
        setup = f"v_lshlrev_b32 v{A}, 2, v{V_L}\ns_mov_b32 {t2}, 0\ns_mov_b32 {t4}, 0x01010101"
        ld = f"buffer_load_dword v{D}, v{A}, {sq(S_DBG)}, {t2} offen sc1"
        cmp = f"v_cmp_ne_u32_e64 {M1}, {t4}, v{D}"
    else:
        base, mask = {"h": (0, 7), "o": (32, 3), "kv": (48, 1)}[kind]
        setup = f"v_and_b32 v{A}, {mask}, v{V_L}\nv_lshlrev_b32 v{A}, 2, v{A}\ns_mul_i32 {t2}, s2, {MB_STRIDE}\ns_add_u32 {t2}, {t2}, {MB_OFF + base}\ns_mov_b32 {t4}, 0x01010101"
        ld = f"buffer_load_dword v{D}, v{A}, {sq(S_WS)}, {t2} offen sc1"
        cmp = f"v_cmp_ne_u32_e64 {M1}, {t4}, v{D}"
    G.e(f"""
    {setup}
    s_mov_b32 {t3}, 0
    {lab}_loop:
    {ld}
    s_waitcnt vmcnt(0)
    {cmp}
    s_add_u32 {t3}, {t3}, 1
    s_cmp_eq_u64 {M1}, 0
    s_cbranch_scc1 {lab}_ok
    s_sleep {OPT.get('sleep', 4) if kind != 'init' else 16}
    s_cmp_lt_u32 {t3}, 0x8000
    s_cbranch_scc1 {lab}_loop
    """, opt=True)
    G.e(f"{lab}_ok:")
    return G

def tile_addrs(S, typ, AT, T):
    R, C, HH, NH = T + 1, T + 2, T + 3, T + 4
    S.e(f"""
    v_lshrrev_b32 v{HH}, 5, v{V_L}
    v_bfe_u32 v{NH}, v{V_L}, 4, 1
    v_bfe_u32 v{R}, v{V_L}, 2, 2
    v_and_b32 v{C}, 3, v{V_L}
    v_lshl_add_u32 v{T+5}, v{HH}, 3, v{R}
    v_lshlrev_b32 v{T+6}, 6, v{T+5}
    v_lshl_add_u32 v{T+8}, v{NH}, 2, v{C}
    v_add_u32 v{T+8}, s{S_ODD}, v{T+8}
    v_and_b32 v{T+8}, 7, v{T+8}
    v_lshl_add_u32 v{T+8}, v{T+8}, 3, v{T+6}
    """)
    if typ == "q":
        S.e(f"""
        v_add_u32 v{AT}, {W0 + 16384}, v{T+8}
        v_lshrrev_b32 v{T+6}, 1, v{C}
        v_and_b32 v{T+7}, 2, v{R}
        v_xor_b32 v{T+6}, v{T+6}, v{T+7}
        v_lshl_add_u32 v{T+6}, v{NH}, 2, v{T+6}
        v_lshlrev_b32 v{T+7}, 7, v{T+5}
        v_lshl_add_u32 v{T+7}, v{T+6}, 4, v{T+7}
        v_and_b32 v{T+6}, 1, v{C}
        v_lshl_add_u32 v{T+7}, v{T+6}, 3, v{T+7}
        v_lshl_add_u32 v{T+7}, v{NH}, 13, v{T+7}
        v_add_u32 v{AT+1}, {W0}, v{T+7}
        v_xor_b32 v{AT+2}, 32, v{AT+1}
        v_xor_b32 v{AT+3}, 64, v{AT+1}
        v_xor_b32 v{AT+4}, 0x60, v{AT+1}
        """)
    else:
        S.e(f"""
        v_add_u32 v{AT}, {W0}, v{T+8}
        v_lshl_add_u32 v{T+7}, v{C}, 3, v{T+6}
        v_mul_u32_u24 v{T+8}, 1056, v{NH}
        v_add_u32 v{AT+1}, v{T+7}, v{T+8}
        v_add_u32 v{AT+1}, {W0 + 2048}, v{AT+1}
        v_xor_b32 v{AT+2}, 32, v{AT+1}
        v_lshlrev_b32 v{T+6}, 5, v{T+5}
        v_lshl_add_u32 v{T+6}, v{C}, 3, v{T+6}
        v_mul_u32_u24 v{T+7}, 2176, v{NH}
        v_add_u32 v{AT+3}, v{T+6}, v{T+7}
        v_add_u32 v{AT+3}, {W0 + 16384}, v{AT+3}
        v_xor_b32 v{AT+4}, 0x80, v{AT+3}
        """)

def tile_read_args(typ, t, s, e):
    if typ == "q":
        return (0, s*1024 + e*256) if t == 0 else (t, s*2048 + e*512)
    if t == 0: return (0, s*4096 + e*256)
    if t == 1: return (0, s*4096 + 1024 + e*256)
    if t == 2: return (3 + e, s*512)
    return (t - 2, s*4096 + e*256)

def geglu(S, a, T, unit_sgpr, unit_add):
    for i in range(8): S.e(f"v_mul_f32 v{T+i}, v{a+i}, v{a+i}")
    for i in range(8): S.e(f"v_fma_f32 v{T+i}, v{T+i}, v{V_C1}, v{V_C0}")
    for i in range(8): S.e(f"v_mul_f32 v{T+i}, v{T+i}, v{a+i}")
    for i in range(8): S.e(f"v_exp_f32 v{T+i}, v{T+i}")
    for i in range(8): S.e(f"v_mul_f32 v{a+i}, v{a+i}, v{a+8+i}")
    for i in range(8): S.e(f"v_fma_f32 v{T+i}, v{T+i}, v{V_S2}, v{V_S2}")
    for i in range(8): S.e(f"v_rcp_f32 v{T+i}, v{T+i}")
    for i in range(8): S.e(f"v_mul_f32 v{a+i}, v{a+i}, v{T+i}")
    for i in range(4): S.e(f"v_cvt_pk_bf16_f32 v{T+8+i}, v{a+2*i}, v{a+2*i+1}")
    S.e(f"s_add_u32 s{S_G}, s{unit_sgpr}, {unit_add * 1024}")
    S.e(f"buffer_store_dwordx4 {vr(T+8)}, v{V_L16}, {sq(S_WS)}, s{S_G} offen{OPT['hf_flags']}", tag="hst")


def softmax14(S, P, E, T):
    N = 14
    for i in range(7): S.e(f"v_cvt_pk_bf16_f32 v{E+i}, v{P+2*i}, v{P+2*i+1}")
    for i in range(7): S.e(f"v_lshlrev_b32 v{P+2*i}, 16, v{E+i}\nv_and_b32 v{P+2*i+1}, 0xffff0000, v{E+i}")
    L = T + 4
    S.e(f"v_mov_b32 v{L}, {f32(1.4426950408889634)}")
    MX, MN = T, T + 1
    S.e(f"v_max3_f32 v{MX}, v{P}, v{P+1}, v{P+2}\nv_min3_f32 v{MN}, v{P}, v{P+1}, v{P+2}")
    for i in range(3, 13, 2):
        S.e(f"v_max3_f32 v{MX}, v{MX}, v{P+i}, v{P+i+1}\nv_min3_f32 v{MN}, v{MN}, v{P+i}, v{P+i+1}")
    S.e(f"v_max_f32 v{MX}, v{MX}, v{P+13}\nv_min_f32 v{MN}, v{MN}, v{P+13}")
    S.e(f"v_mov_b32 v{T+2}, v{MX}\nv_mov_b32 v{T+3}, v{MN}\nv_permlane32_swap_b32 v{T+2}, v{MX}\nv_permlane32_swap_b32 v{T+3}, v{MN}")
    S.e(f"v_max_f32 v{MX}, v{MX}, v{T+2}\nv_min_f32 v{MN}, v{MN}, v{T+3}")
    S.e(f"v_mul_f32 v{MX}, v{MX}, v{L}\nv_mul_f32 v{MN}, v{MN}, v{L}")
    for i in range(N): S.e(f"v_fma_f32 v{E+i}, v{P+i}, v{L}, -v{MX}")
    for i in range(N): S.e(f"v_fma_f32 v{P+i}, -v{P+i}, v{L}, v{MN}")
    for i in range(N): S.e(f"v_exp_f32 v{E+i}, v{E+i}")
    for i in range(N): S.e(f"v_exp_f32 v{P+i}, v{P+i}")
    SP, SM = T, T + 1
    S.e(f"v_add_f32 v{SP}, v{E}, v{E+1}\nv_add_f32 v{T+2}, v{E+2}, v{E+3}\nv_add_f32 v{SM}, v{P}, v{P+1}\nv_add_f32 v{T+3}, v{P+2}, v{P+3}")
    for i in range(4, N, 2):
        S.e(f"v_add_f32 v{SP}, v{SP}, v{E+i}\nv_add_f32 v{T+2}, v{T+2}, v{E+i+1}\nv_add_f32 v{SM}, v{SM}, v{P+i}\nv_add_f32 v{T+3}, v{T+3}, v{P+i+1}")
    S.e(f"v_add_f32 v{SP}, v{SP}, v{T+2}\nv_add_f32 v{SM}, v{SM}, v{T+3}")
    S.e(f"v_mov_b32 v{T+2}, v{SP}\nv_mov_b32 v{T+3}, v{SM}\nv_permlane32_swap_b32 v{T+2}, v{SP}\nv_permlane32_swap_b32 v{T+3}, v{SM}")
    S.e(f"v_add_f32 v{SP}, v{SP}, v{T+2}\nv_add_f32 v{SM}, v{SM}, v{T+3}")
    S.e(f"v_rcp_f32 v{SP}, v{SP}\nv_rcp_f32 v{SM}, v{SM}")
    for i in range(N): S.e(f"v_mul_f32 v{E+i}, v{E+i}, v{SP}")
    for i in range(N): S.e(f"v_mul_f32 v{P+i}, v{P+i}, v{SM}")
    for i in range(7): S.e(f"v_cvt_pk_bf16_f32 v{E+i}, v{E+2*i}, v{E+2*i+1}")
    for i in range(7): S.e(f"v_cvt_pk_bf16_f32 v{E+8+i}, v{P+2*i}, v{P+2*i+1}")
    S.e(f"v_mov_b32 v{E+7}, 0\nv_mov_b32 v{E+15}, 0")


def stats_consts(S):
    S.e(f"""
    v_mov_b32 v{BP}, v{V_RINV}
    v_mov_b32 v{BP+1}, v{V_RINV}
    v_mov_b32 v{BP+2}, v{V_RINV}
    v_mov_b32 v{BP+3}, v{V_RINV}
    v_rcp_f32 v{V_RINV}, v{V_SD}
    v_mul_f32 v{V_S2}, v{V_SD}, v{V_SD}
    v_mul_f32 v{V_C0}, {f32(-2.302208198)}, v{V_RINV}
    v_mul_f32 v{V_C1}, v{V_RINV}, v{V_RINV}
    v_mul_f32 v{V_C1}, v{V_C1}, v{V_C0}
    v_mul_f32 v{V_C1}, {f32(0.044715)}, v{V_C1}
    """)


def tagpoll(G, lab, A, D, soff, opt=False, first_issued=False, sleep=None):
    if first_issued:
        G.e(f"v_cmp_eq_u32_e64 {M1}, -1, v{D}\ns_mov_b32 {t3}, 0\ns_cmp_eq_u64 {M1}, 0\ns_cbranch_scc1 {lab}_ok")
        opt = True
    else:
        G.e(f"s_mov_b32 {t3}, 0")
    G.e(f"""
    {lab}_loop:
    buffer_load_dword v{D}, v{A}, {sq(S_WS)}, {soff} offen sc1
    s_waitcnt vmcnt(0)
    v_cmp_eq_u32_e64 {M1}, -1, v{D}
    s_add_u32 {t3}, {t3}, 1
    s_cmp_eq_u64 {M1}, 0
    s_cbranch_scc1 {lab}_ok
    s_sleep {sleep if sleep else OPT.get('sleep', 4)}
    s_cmp_lt_u32 {t3}, 0x8000
    s_cbranch_scc1 {lab}_loop
    """, opt=opt)
    G.e(f"{lab}_ok:")

def umax_tree(G, regs, T, opt=False):
    G.e(f"v_max3_u32 v{T}, v{regs[0]}, v{regs[1]}, v{regs[2]}", opt=opt)
    i = 3
    while i + 1 < len(regs):
        G.e(f"v_max3_u32 v{T}, v{T}, v{regs[i]}, v{regs[i+1]}", opt=opt); i += 2
    if i < len(regs): G.e(f"v_max_u32 v{T}, v{T}, v{regs[i]}", opt=opt)

def prologue():
    S = Stream()
    S.e(f"""
    s_cmp_ge_u32 s2, 256
    s_cbranch_scc1 K_END
    {'s_memrealtime s[92:93]' if OPT.get('stamps') else ''}
    s_load_dwordx16 s[4:19], s[0:1], 0
    s_load_dwordx4 s[20:23], s[0:1], 72
    s_load_dwordx2 s[{S_OUT}:{S_OUT+1}], s[0:1], 64
    v_lshrrev_b32 v{PT}, 6, v0
    v_and_b32 v{V_L}, 63, v0
    v_readfirstlane_b32 s3, v{PT}
    v_lshlrev_b32 v{V_L16}, 4, v{V_L}
    v_mov_b32 v{V_Z}, 0
    s_and_b32 {t0}, s2, 7
    s_lshr_b32 {t1}, s2, 3
    s_and_b32 s{S_MT}, {t0}, 1
    s_lshl_b32 s{S_MT}, s{S_MT}, 2
    s_and_b32 {t2}, {t1}, 3
    s_add_u32 s{S_MT}, s{S_MT}, {t2}
    s_lshr_b32 s{S_C4}, {t0}, 1
    s_lshr_b32 {t1}, {t1}, 2
    s_and_b32 s{S_TYPE}, {t1}, 1
    s_lshr_b32 s{S_HL}, {t1}, 1
    s_lshl_b32 s{S_HEAD}, s{S_C4}, 2
    s_add_u32 s{S_HEAD}, s{S_HEAD}, s{S_HL}
    s_and_b32 s{S_ODD}, s{S_HEAD}, 1
    s_lshl_b32 {t2}, s{S_MT}, 2
    s_add_u32 {t2}, {t2}, s{S_C4}
    s_lshl_b32 {t2}, {t2}, 3
    s_add_u32 {t2}, {t2}, {t1}
    s_lshl_b32 {t2}, {t2}, 3
    s_and_b32 {t3}, s3, 7
    s_add_u32 s{S_SROW}, {t2}, {t3}
    s_mov_b32 s{S_HH}, 0
    s_mov_b32 s{S_HH+1}, -1
    s_mul_i32 {t0}, s{S_C4}, 896
    s_lshl_b32 {tm}, s{S_HL}, 7
    s_add_u32 {t3}, {t0}, {tm}
    s_add_u32 {t0}, {t0}, 512
    s_mul_i32 {t1}, s{S_HL}, 3
    s_and_b32 {t2}, s{S_HL}, 1
    s_add_u32 {t5}, {t1}, {t2}
    s_lshl_b32 {t2}, {t2}, 1
    s_add_u32 {t1}, {t1}, 2
    s_sub_u32 {t1}, {t1}, {t2}
    s_lshl_b32 {t1}, {t1}, 5
    s_add_u32 {t1}, {t1}, {t0}
    s_lshl_b32 {t5}, {t5}, 5
    s_add_u32 {t0}, {t0}, {t5}
    s_cmp_eq_u32 s{S_TYPE}, 1
    s_cselect_b32 s{S_U0}, {t1}, {t3}
    s_cselect_b32 s{S_U12}, {t0}, {t3}
    s_cmp_lt_u32 s3, 8
    s_cbranch_scc1 K_comp
    """)
    return S

def p2_ids(S):
    S.e(f"""
    s_and_b32 {t0}, s2, 7
    s_lshr_b32 {t1}, s2, 3
    s_and_b32 {t2}, {t0}, 1
    s_lshl_b32 {t2}, {t2}, 2
    s_lshr_b32 {t0}, {t0}, 1
    s_add_u32 s{S_MT2}, {t0}, {t2}
    s_lshl_b32 s{S_M64}, s{S_MT2}, 2
    s_and_b32 {t2}, {t1}, 3
    s_add_u32 s{S_M64}, s{S_M64}, {t2}
    s_lshr_b32 s{S_N64}, {t1}, 2
    """)
def p2_a_voffsets(S, VD, VO, VOM, T):
    S.e(f"""
    v_lshrrev_b32 v{T}, 3, v{V_L}
    v_and_b32 v{T+1}, 7, v{V_L}
    v_bfe_u32 v{T+2}, v{V_L}, 4, 1
    v_lshlrev_b32 v{T+2}, 2, v{T+2}
    v_xor_b32 v{T+1}, v{T+1}, v{T+2}
    s_lshl_b32 {t0}, s{S_N64}, 7
    v_lshlrev_b32 v{T+1}, 4, v{T+1}
    v_add_u32 v{T+1}, {t0}, v{T+1}
    v_mul_u32_u24 v{VD}, 896, v{T}
    v_add_u32 v{VD}, v{VD}, v{T+1}
    """)
    if VO is not None:
        S.e(f"""
        v_lshrrev_b32 v{T+2}, 2, v{T}
        v_and_b32 v{T+3}, 3, v{T}
        v_mad_u32_u24 v{T+2}, v{T+2}, 14, v{T+3}
        v_mul_u32_u24 v{VO}, 896, v{T+2}
        v_add_u32 v{VO}, v{VO}, v{T+1}
        v_cmp_lt_u32_e64 {M1}, 1, v{T+3}
        v_mov_b32 v{T+2}, 0x7f000000
        v_cndmask_b32_e64 v{VOM}, v{VO}, v{T+2}, {M1}
        """)

def hsync(S, lab, cnt_off, target, A, B):
    S.wait_lgkm()
    S.e(f"""
    v_mov_b32 v{A}, {CNT + cnt_off}
    v_mov_b32 v{B}, 1
    s_mov_b64 exec, 1
    ds_add_u32 v{A}, v{B}
    s_mov_b64 exec, -1
    {lab}:
    ds_read_b32 v{B}, v{A}
    s_waitcnt lgkmcnt(0)
    v_readfirstlane_b32 {t1}, v{B}
    s_cmp_lt_u32 {t1}, {target}
    s_cbranch_scc1 {lab}
    """)

def helper_head():
    S = Stream(); T = PT
    S.e("K_helper:")
    S.e(f"s_setprio {OPT.get('hprio', 3)}")
    S.e(f"""
    s_sub_u32 s{S_H}, s3, 8
    s_lshl_b32 {t0}, s{S_MT}, 2
    s_add_u32 {t0}, {t0}, s{S_H}
    s_mul_i32 s{S_XROW}, {t0}, {64*896}
    s_mul_i32 s{S_AREA}, s{S_H}, {2*AREA}
    v_lshrrev_b32 v{T+7}, 3, v{V_L}
    v_mul_u32_u24 v{T}, 896, v{T+7}
    v_and_b32 v{T+8}, 7, v{V_L}
    v_lshrrev_b32 v{T+2}, 4, v{V_L}
    v_xor_b32 v{T+1}, v{T+8}, v{T+2}
    v_lshl_add_u32 v4, v{T+1}, 4, v{T}
    v_xor_b32 v5, 64, v4
    s_mul_i32 {t1}, s{S_HEAD}, 56
    s_lshl_b32 {t2}, s{S_ODD}, 3
    s_sub_u32 {t1}, {t1}, {t2}
    v_lshrrev_b32 v{T}, 2, v{V_L}
    v_and_b32 v{T+1}, 3, v{V_L}
    v_mul_u32_u24 v{T+4}, 2688, v{T}
    v_lshl_add_u32 v{T+4}, v{T+1}, 4, v{T+4}
    s_mul_i32 {tm}, s{S_H}, {16*2688}
    s_add_u32 {t1}, {t1}, {tm}
    v_add_u32 v6, {t1}, v{T+4}
    s_waitcnt lgkmcnt(0)
    """)
    srd(S, S_X, 4, 2048 * 896); srd(S, S_WQ, 6, 448 * 2688); srd(S, S_WG, 14, 448 * 3584); srd(S, S_WU, 16, 448 * 3584)
    S.e(f"s_cmp_eq_u32 s{S_TYPE}, 1\ns_cbranch_scc1 K_hkv")
    return S

def helper(typ):
    q = typ == "q"
    S = Stream(); T = PT
    S.e(f"K_h{typ}:")
    global HST
    HST = Stamper(STAMPR); HST.n = 1; HST.names = ["start"]
    V_XE, V_XO, V_DQ, V_DG, V_DU, V_DS = 4, 5, 6, 7, 8, 9
    V_AC = 10; V_PF = 16
    CA = 18; CU = 23; CT = 34
    if q:
        S.e(f"""
        v_bfe_u32 v{T+2}, v{V_L}, 4, 1
        v_lshlrev_b32 v{T+2}, 1, v{T+2}
        v_xor_b32 v{T+2}, v{T+2}, v{T+8}
        v_mul_u32_u24 v{T+3}, 3584, v{T+7}
        v_lshl_add_u32 v{T+2}, v{T+2}, 4, v{T+3}
        s_mul_i32 {tm}, s{S_H}, {16*3584}
        s_add_u32 {tm}, {tm}, s{S_U0}
        v_add_u32 v{V_DG}, {tm}, v{T+2}
        v_xor_b32 v{V_DU}, 64, v{V_DG}
        """)
    else:
        S.e(f"""
        v_mul_u32_u24 v{T+3}, 3584, v{T}
        v_lshl_add_u32 v{V_DG}, v{T+1}, 4, v{T+3}
        s_mul_i32 {tm}, s{S_H}, {16*3584}
        s_add_u32 {tm}, {tm}, s{S_U12}
        v_add_u32 v{V_DG}, {tm}, v{V_DG}
        v_xor_b32 v{V_DU}, 32, v{V_DG}
        s_lshr_b32 {t2}, s{S_H}, 1
        s_cmp_eq_u32 {t2}, 0
        s_cselect_b32 s{S_D1}, s14, s16
        s_cselect_b32 s{S_D1+1}, s15, s17
        s_mov_b32 s{S_D1+2}, {448*3584}
        s_mov_b32 s{S_D1+3}, 0x20000
        s_lshl_b32 {t2}, {t2}, 2
        v_lshrrev_b32 v{T+5}, 1, v{V_L}
        v_xor_b32 v{T+5}, {t2}, v{T+5}
        v_mul_u32_u24 v{T+5}, 3584, v{T+5}
        v_and_b32 v{T+6}, 1, v{V_L}
        v_lshl_add_u32 v{T+5}, v{T+6}, 4, v{T+5}
        s_and_b32 {t2}, s{S_H}, 1
        s_mul_i32 {t2}, {t2}, {32*3584}
        s_add_u32 {t2}, {t2}, s{S_U0}
        v_add_u32 v{V_DS}, {t2}, v{T+5}
        """)
    S.e(f"s_lshl_b32 s{S_D0L}, s{S_H}, 10\ns_add_u32 s{S_D0L}, s{S_D0L}, {W0}\ns_lshl_b32 s{S_G}, s{S_H}, {11 if q else 12}\ns_add_u32 s{S_G}, s{S_G}, {W0}")
    def dma(c, lo=0, hi=13):
        sb = (c % 3) * WS_
        L = []
        def one(m0expr, soff, v, srdreg): L.append((m0expr, soff, v, srdreg))
        if q:
            one(f"s{S_D0L}, {sb + 16384}", f"s_mov_b32 {tm}, {c*172032}", V_DQ, S_WQ)
            for rg in range(2):
                one(f"s{S_G}, {sb + rg*1024}", f"s_mov_b32 {tm}, {c*229376 + rg*8*3584}", V_DG, S_WG)
                one(f"s{S_G}, {sb + 8192 + rg*1024}", f"s_mov_b32 {tm}, {c*229376 + rg*8*3584}", V_DU, S_WU)
        else:
            one(f"s{S_G}, {sb}", f"s_mov_b32 {tm}, {c*172032 + 896}", V_DQ, S_WQ)
            one(f"s{S_G}, {sb + 1024}", f"s_mov_b32 {tm}, {c*172032 + 1792}", V_DQ, S_WQ)
            one(f"s{S_G}, {sb + 2048}", f"s_mov_b32 {tm}, {c*229376}", V_DG, S_WG)
            one(f"s{S_G}, {sb + 3072}", f"s_mov_b32 {tm}, {c*229376}", V_DU, S_WU)
            one(f"s{S_D0L}, {sb + 16384}", f"s_mov_b32 {tm}, {c*229376}", V_DS, S_D1)
        for i in range(8):
            wv, qq = i >> 2, i & 3
            one(f"s{S_AREA}, {wv*AREA + (c % 3)*4096 + qq*1024}", f"s_add_u32 {tm}, s{S_XROW}, {(wv*32 + qq*8)*896 + c*128}", V_XO if qq & 1 else V_XE, S_X)
        for (m0expr, soff, v, srdreg) in L[lo:hi]:
            S.e(f"s_add_u32 m0, {m0expr}\n{soff}")
            fl = OPT.get("x_flags", "") if srdreg == S_X else OPT.get("w_flags", "")
            S.e(f"buffer_load_dwordx4 v{v}, {sq(srdreg)}, {tm} offen{fl} lds", tag=f"d{c}")
    plan = [int(x) for x in OPT.get("dplan", "16,14,14,16,16,16").split(",")]
    pos = [0]
    def issue(n, limit_chunk):
        while n > 0 and pos[0] < 91 and pos[0] // 13 <= limit_chunk:
            c, i = divmod(pos[0], 13)
            dma(c, i, i + 1); pos[0] += 1; n -= 1
    issue(13, 2)
    tile_addrs(S, typ, V_AC, 60)
    for t in range(5):
        stride = (1024 if t == 0 else 2048) if q else (512 if t >= 3 else 4096)
        S.e(f"s_mul_i32 {t0}, s{S_H}, {stride}\nv_add_u32 v{V_AC+t}, {t0}, v{V_AC+t}")
    for i in range(5): S.e(f"v_mov_b32 v{CA+i}, 0")
    issue(plan[0] - 13, 2)
    def colsum_rd(c):
        for t in range(5):
            for e in range(2):
                a, imm = tile_read_args(typ, t, 0, e)
                S.e(f"ds_read_b64_tr_b16 {vr(CT + 20*(c % 5) + 4*t + 2*e, 2)}, v{V_AC+a} offset:{(c % 3)*WS_ + imm}")
    hb = [0]
    CM = OPT.get("csmode", "mfma")
    if CM == "mfma":
        for i in range(20): S.e(f"v_mov_b32 v{140+i}, 0")
        S.e("v_mov_b32 v134, 0x3f803f80\nv_mov_b32 v135, 0x3f803f80")
    def colsum_add(nhalf):
        if CM != "valu":
            for _ in range(nhalf):
                c, hf = hb[0] >> 1, hb[0] & 1; hb[0] += 1
                for t in range(5):
                    src = CT + 20*(c % 5) + 4*t + 2*hf
                    if CM == "mfma": S.e(f"v_mfma_f32_4x4x4_16b_bf16 {vr(140+4*t)}, v[134:135], {vr(src, 2)}, {vr(140+4*t)}")
                    else: S.e(f"v_dot2c_f32_bf16 v{CA+t}, 0x3f803f80, v{src}")
                if CM == "dot":
                    for t in range(5): S.e(f"v_dot2c_f32_bf16 v{CA+t}, 0x3f803f80, v{CT + 20*(c % 5) + 4*t + 2*hf + 1}")
            return
        for _ in range(nhalf):
            c, hf = hb[0] >> 1, hb[0] & 1; hb[0] += 1
            for j in (2*hf, 2*hf + 1):
                src = CT + 20*(c % 5) + j
                for t in range(5): S.e(f"v_lshlrev_b32 v{CU+t}, 16, v{src + 4*t}")
                for t in range(5): S.e(f"v_and_b32 v{CU+5+t}, 0xffff0000, v{src + 4*t}")
                for t in range(5): S.e(f"v_add_f32 v{CA+t}, v{CA+t}, v{CU+t}")
                for t in range(5): S.e(f"v_add_f32 v{CA+t}, v{CA+t}, v{CU+5+t}")
    S.wait_vm("d0"); S.e("s_barrier")
    colsum_rd(0); issue(plan[1], 2)
    S.wait_lgkm(); S.wait_vm("d1"); S.e("s_barrier")
    colsum_rd(1); issue(plan[2], 3)
    srd(S, S_WS, 22, WS_SIZE); srd(S, S_DBG, 20, 256); srd(S, S_WO, 8, 16 * 1568); srd(S, S_WD, 18, 1792 * 896)
    sched = dict(zip(range(2, 7), [int(x) for x in OPT.get('sched', '4,2,2,2,4').split(',')]))
    for c in range(2, 7):
        if c == 6: S.extend(poll(f"K_h{typ}_pst", "init", V_TMP, 17, who=8))
        F = (lambda n: HST(S, n, fine=True)) if (c in (3, 4) and OPT.get('hfine')) else (lambda n: None)
        F("pre")
        S.wait_lgkm(); S.wait_vm(f"d{c}")
        F("landed")
        S.e("s_barrier")
        F("bar")
        issue(plan[c + 1] if c + 1 < len(plan) else 99, c + 2)
        assert pos[0] >= min(91, 13 * (c + 2)), (c, pos[0])
        F("dma")
        if c == 2:
            for i in range(2):
                S.e(f"""
                v_lshrrev_b32 v{T+24}, 4, v{V_L}
                s_lshl_b32 {t0}, s{S_H}, 3
                s_add_u32 {t0}, {t0}, {4*i}
                v_add_u32 v{T+24}, {t0}, v{T+24}
                v_bfe_u32 v{T+25}, v{V_L}, 3, 1
                v_and_b32 v{T+26}, 7, v{V_L}
                v_mad_u32_u24 v{T+25}, v{T+25}, 7, v{T+26}
                v_mad_u32_u24 v{T+25}, v{T+24}, 14, v{T+25}
                v_lshlrev_b32 v{T+25}, 2, v{T+25}
                v_cmp_eq_u32_e64 {M1}, 7, v{T+26}
                s_cmp_eq_u32 {t0}, 28
                s_cselect_b64 {M1}, -1, {M1}
                v_mov_b32 v{T+26}, 0x7fffff00
                v_cndmask_b32_e64 v{T+25}, v{T+25}, v{T+26}, {M1}
                s_mul_i32 {t1}, s{S_HEAD}, 1568
                s_lshl_b32 {t0}, {t0}, 6
                s_add_u32 m0, {t0}, {WPHI}
                """)
                S.e(f"buffer_load_dword v{T+25}, {sq(S_WO)}, {t1} offen lds", tag="phi")
        if c == int(OPT.get("pfc", 6)) and OPT["prefetch"]:
            S.e(f"""
            s_lshr_b32 {t0}, s2, 3
            s_lshl_b32 {t0}, {t0}, 2
            s_add_u32 {t0}, {t0}, s{S_H}
            s_lshl_b32 {t0}, {t0}, 14
            s_mov_b32 {t3}, {1792*896}
            s_cmp_lt_u32 {t0}, {t3}
            s_cselect_b32 s{S_PF}, s18, s10
            s_cselect_b32 s{S_PF+1}, s19, s11
            s_cselect_b32 s{S_PF+2}, {t3}, {448*896}
            s_mov_b32 s{S_PF+3}, 0x20000
            s_cselect_b32 {t3}, 0, {t3}
            s_sub_u32 {t0}, {t0}, {t3}
            v_lshlrev_b32 v{V_PF}, 7, v{V_L}
            s_add_u32 {t1}, {t0}, 0x2000
            """)
            S.e(f"buffer_load_dword v{T+27}, v{V_PF}, {sq(S_PF)}, {t0} offen\nbuffer_load_dword v{T+28}, v{V_PF}, {sq(S_PF)}, {t1} offen", tag="pf")
        if c >= 5:
            colsum_rd(c); colsum_add(sched[c])
        else:
            colsum_rd(c); colsum_add(sched[c])
    assert hb[0] == 14
    if CM == "mfma":
        for t in range(5): S.e(f"v_mov_b32 v{CA+t}, v{140+4*t}")
    S.e(f"s_lshl_b32 {t0}, s{S_H}, 2\ns_add_u32 {t0}, {t0}, {CSP}\nv_add_u32 v{T}, {t0}, v{V_L16}")
    for t in range(5): S.e(f"v_cvt_pk_bf16_f32 v{T+1+t}, v{CA+t}, v{CA+t}")
    for t in range(5): S.e(f"v_lshlrev_b32 v{T+1+t}, 16, v{T+1+t}")
    for t in range(5): S.e(f"v_sub_f32 v{T+1+t}, v{CA+t}, v{T+1+t}")
    for t in range(5): S.e(f"v_cvt_pk_bf16_f32 v{T+1+t}, v{CA+t}, v{T+1+t}")
    for t in range(5): S.e(f"ds_write_b32 v{T}, v{T+1+t} offset:{t*1024}")
    S.wait_vm("phi"); S.wait_lgkm()
    return S

def hpost(typ):
    q = typ == "q"
    S = Stream(); T = PT
    S.e(f"K_hpost_{typ}:")
    st = HST
    V_WD = 18
    p2_ids(S)
    p2_a_voffsets(S, V_WD, None, None, 60)
    S.e(f"""
    s_mul_i32 s{S_AREA}, s{S_H}, {2*REG2}
    s_and_b32 {t0}, s{S_H}, 1
    s_lshl_b32 {t0}, {t0}, 2
    s_lshr_b32 {t1}, s{S_H}, 1
    s_add_u32 {t0}, {t0}, {t1}
    s_mul_i32 s{S_XROW}, {t0}, {14*16*896}
    s_cmp_ge_u32 s2, 224
    s_cselect_b32 {t0}, 0x40000000, 0
    s_add_u32 s{S_XROW}, s{S_XROW}, {t0}
    s_barrier
    s_setprio {OPT.get('hprio2', 0)}
    """)
    st(S, "B1")
    def adma(lo, hi):
        for i in range(lo, hi):
            for wv in range(2):
                for u in range(2):
                    S.e(f"s_add_u32 m0, s{S_AREA}, {wv*REG2 + i*2048 + u*1024}\ns_add_u32 {tm}, s{S_XROW}, {((wv*28 + i)*16 + 8*u)*896}")
                    S.e(f"buffer_load_dwordx4 v{V_WD}, {sq(S_WD)}, {tm} offen lds", tag="a1")
    adma(0, 6)
    if q:
        KO = 4; U = 5; PH = 100
        S.e(f"""
        s_lshl_b32 {t0}, s{S_H}, 11
        v_add_u32 v{KO}, {t0}, v{V_L16}
        v_and_b32 v{U+3}, 7, v{V_L}
        v_lshlrev_b32 v{U+3}, 13, v{U+3}
        v_add_u32 v{U+3}, 0x1e80, v{U+3}
        s_lshl_b32 {t0}, s{S_H}, 10
        s_add_u32 {t0}, {t0}, {KVF}
        v_add_u32 v{U}, {t0}, v{V_L16}
        v_add_u32 v{U+1}, {KVF}, v{V_L16}
        v_add_u32 v{U+2}, s{S_AREA}, v{V_L16}
        s_lshl_b32 {t0}, s{S_MT}, 2
        s_add_u32 {t0}, {t0}, s{S_H}
        s_mul_i32 s{S_HFB}, {t0}, {2*NKS*1024}
        s_lshl_b32 {t0}, s{S_HEAD}, 11
        s_add_u32 s{S_HFB}, s{S_HFB}, {t0}
        s_add_u32 s{S_HFB}, s{S_HFB}, {112*1024}
        s_lshl_b32 s{S_G}, s{S_HEAD}, 16
        s_add_u32 s{S_G}, s{S_G}, {KVP_OFF}
        """)
        S.wait_vm("a1")
        S.e(f"v_mov_b32 v12, {CNT + 20}\nv_mov_b32 v13, 1\ns_mov_b64 exec, 1\nds_add_u32 v12, v13\ns_mov_b64 exec, -1")
        S.e("s_barrier")
        st(S, "B2")
        for wv in range(2):
            for k in range(4): S.e(f"ds_read_b128 {vr(PH + 16*wv + 4*k)}, v{U+2} offset:{wv*REG2 + PKO + k*1024}")
        S.wait_lgkm()
        S.e(f"v_mov_b32 v12, {CNT + 12}\nv_mov_b32 v13, 1\ns_mov_b64 exec, 1\nds_add_u32 v12, v13\ns_mov_b64 exec, -1\ns_setprio 3")
        S.e(f"v_mov_b32 v14, {CNT + 16}\ns_cmp_lg_u32 s3, 8\ns_cbranch_scc1 K_hq_spin")
        G = Stream(); tagpoll(G, "K_hq_pkv", U + 3, V_TMP, f"s{S_G}", opt=True, sleep=int(OPT.get("sleepkv", 8)))
        for x in G: x.opt = True
        S.extend(G)
        S.e(f"ds_write_b32 v14, v13\ns_branch K_hq_go", opt=True)
        S.e(f"""
        K_hq_spin:
        s_sleep 2
        ds_read_b32 v13, v14
        s_waitcnt lgkmcnt(0)
        v_readfirstlane_b32 {t1}, v13
        s_cmp_eq_u32 {t1}, 0
        s_cbranch_scc1 K_hq_spin
        """, opt=True)
        S.e("K_hq_go:")
        st(S, "kvrdy")
        KL = 20
        S.e(f"s_mov_b32 {t4}, 0\nK_hq_gather:\ns_mov_b32 {t0}, s{S_G}")
        for i in range(8):
            for e in range(2):
                S.e(f"buffer_load_dwordx4 {vr(KL + 8*i + 4*e)}, v{KO}, {sq(S_WS)}, {t0} offen offset:{e*1024} sc1")
            if i < 7: S.e(f"s_add_u32 {t0}, {t0}, 8192")
        umax_tree(S, list(range(KL, KL + 64)), V_TMP)
        S.e(f"""
        v_cmp_eq_u32_e64 {M1}, -1, v{V_TMP}
        s_add_u32 {t4}, {t4}, 1
        s_cmp_eq_u64 {M1}, 0
        s_cbranch_scc1 K_hq_gok
        s_cmp_lt_u32 {t4}, 0x1000
        s_cbranch_scc1 K_hq_gather
        K_hq_gok:
        """)
        for step in (1, 2, 4):
            for i in range(0, 8, 2*step):
                for j in range(8): S.e(f"v_add_f32 v{KL+8*i+j}, v{KL+8*i+j}, v{KL+8*(i+step)+j}")
        for j in range(4): S.e(f"v_cvt_pk_bf16_f32 v{KL+8+j}, v{KL+2*j}, v{KL+2*j+1}")
        S.e(f"ds_write_b128 v{U}, {vr(KL+8)}")
        hsync(S, "K_hq_sync", 0, 4, 12, 13)
        st(S, "kvf")
        KF = 20; OO = [36, 52]; G2 = 68; RR = [84, 92]
        for k in range(4): S.e(f"ds_read_b128 {vr(KF + 4*k)}, v{U+1} offset:{k*1024}")
        for wv in range(2):
            for k in range(4): S.e(f"{MF} {vr(OO[wv],16)}, {vr(KF + 4*k)}, {vr(PH + 16*wv + 4*k)}, {'0' if k == 0 else vr(OO[wv],16)}")
        for wv in range(2):
            O = OO[wv]; R = RR[wv]
            bf16r(S, G2, f"v{O+14}")
            S.e(f"v_add_f32 v{G2}, {f32(1e-6)}, v{G2}")
            bf16r(S, G2, f"v{G2}")
            S.e(f"v_rcp_f32 v{G2}, v{G2}")
            for i in range(7): S.e(f"v_cvt_pk_bf16_f32 v{G2+1+i}, v{O+2*i}, v{O+2*i+1}")
            for i in range(7): S.e(f"v_lshlrev_b32 v{O+2*i}, 16, v{G2+1+i}\nv_and_b32 v{O+2*i+1}, 0xffff0000, v{G2+1+i}")
            for i in range(14): S.e(f"v_mul_f32 v{O+i}, v{O+i}, v{G2}")
            for i in range(7): S.e(f"v_cvt_pk_bf16_f32 v{R+i}, v{O+2*i}, v{O+2*i+1}")
            S.e(f"v_mov_b32 v{R+7}, 0\ns_add_u32 {t0}, s{S_HFB}, {wv*NKS*1024}")
            S.e(f"buffer_store_dwordx4 {vr(R)}, v{V_L16}, {sq(S_WS)}, {t0} offen sc1\nbuffer_store_dwordx4 {vr(R+4)}, v{V_L16}, {sq(S_WS)}, {t0} offen offset:1024 sc1", tag="ost")
    else:
        X = 20; KA = 4; KB = 10
        S.e(f"""
        v_lshrrev_b32 v{X}, 4, v{V_L}
        v_bfe_u32 v{X+1}, v{V_L}, 2, 2
        v_lshl_add_u32 v{X}, v{X}, 3, v{X+1}
        v_bfe_u32 v{X+2}, v{V_L}, 1, 1
        s_lshl_b32 {t0}, s{S_H}, 1
        v_add_u32 v{X+4}, {t0}, v{X+2}
        v_xor_b32 v{X+4}, v{X+4}, v{X+1}
        v_lshlrev_b32 v{X+3}, 7, v{X}
        v_lshl_add_u32 v{X+3}, v{X+4}, 4, v{X+3}
        v_and_b32 v{X+5}, 1, v{V_L}
        v_lshl_add_u32 v{KA}, v{X+5}, 3, v{X+3}
        v_add_u32 v{KA}, {PKO}, v{KA}
        v_xor_b32 v{KA+1}, 64, v{KA}
        v_lshrrev_b32 v{X+4}, 1, v{X+1}
        v_xor_b32 v{X+4}, v{X+4}, v{X+2}
        v_lshlrev_b32 v{X+3}, 6, v{X}
        v_lshl_add_u32 v{X+3}, v{X+4}, 4, v{X+3}
        v_lshl_add_u32 v{KB}, v{X+5}, 3, v{X+3}
        v_add_u32 v{KB}, {VVO}, v{KB}
        v_xor_b32 v{KB+1}, 32, v{KB}
        """)
        for rg in (1, 2):
            for k in range(2):
                S.e(f"v_add_u32 v{KA+2*rg+k}, {rg*3*REG2}, v{KA+k}\nv_add_u32 v{KB+2*rg+k}, {rg*3*REG2}, v{KB+k}")
        S.e(f"""
        s_lshl_b32 {t4}, s{S_HEAD}, 3
        s_add_u32 {t4}, {t4}, s{S_MT}
        s_lshl_b32 {t4}, {t4}, 13
        s_lshr_b32 {t0}, s{S_H}, 1
        s_lshl_b32 {t0}, {t0}, 12
        s_add_u32 {t4}, {t4}, {t0}
        s_and_b32 {t0}, s{S_H}, 1
        s_lshl_b32 {t0}, {t0}, 9
        s_add_u32 {t4}, {t4}, {t0}
        s_add_u32 {t4}, {t4}, {KVP_OFF}
        """)
        for dh in range(2):
            D = 130 + dh
            S.e(f"""
            v_bfe_u32 v{X}, v{V_L}, 2, 2
            v_and_b32 v{X+1}, 3, v{V_L}
            v_lshl_add_u32 v{X}, v{X}, 3, v{X+1}
            v_add_u32 v{X}, {4*dh}, v{X}
            v_cmp_lt_u32_e64 {M1}, 13, v{X}
            v_subrev_u32 v{X+1}, 14, v{X}
            v_cndmask_b32_e64 v{X+1}, v{X}, v{X+1}, {M1}
            v_cndmask_b32_e64 v{X+2}, 0, 4, {M1}
            v_cmp_lt_u32_e64 {M2}, 27, v{X}
            v_and_b32 v{X+3}, 1, v{X}
            v_lshlrev_b32 v{X+3}, 2, v{X+3}
            v_bfe_u32 v{X+4}, v{X}, 1, 1
            v_add_u32 v{X+4}, 14, v{X+4}
            v_cndmask_b32_e64 v{X+1}, v{X+1}, v{X+4}, {M2}
            v_cndmask_b32_e64 v{X+2}, v{X+2}, v{X+3}, {M2}
            v_lshrrev_b32 v{X+3}, 2, v{X+1}
            v_and_b32 v{X+1}, 3, v{X+1}
            v_lshl_add_u32 v{X+1}, v{X+3}, 3, v{X+1}
            v_add_u32 v{X+1}, v{X+1}, v{X+2}
            v_lshrrev_b32 v{X+2}, 4, v{V_L}
            v_lshlrev_b32 v{X+2}, 10, v{X+2}
            v_lshl_add_u32 v{D}, v{X+1}, 4, v{X+2}
            """)
        def a1flag():
            S.wait_vm("a1")
            S.e(f"v_mov_b32 v16, {CNT + 20}\nv_mov_b32 v17, 1\ns_mov_b64 exec, 1\nds_add_u32 v16, v17\ns_mov_b64 exec, -1")
        if OPT.get("kvffn", "last") == "first": a1flag()
        S.e(f"""
        s_barrier
        s_setprio 3
        """)
        st(S, "B2")
        FB = 32; KD = 24
        for kk in range(8):
            b = FB + 12 * kk; rg = kk // 3; ro = (kk % 3) * REG2
            for e in range(2):
                S.e(f"ds_read_b64_tr_b16 {vr(b + 2*e, 2)}, v{KA + 2*rg + e} offset:{ro + e*512}")
                for dh in range(2):
                    S.e(f"ds_read_b64_tr_b16 {vr(b + 4 + 4*dh + 2*e, 2)}, v{KB + 2*rg + (e ^ dh)} offset:{ro + e*256}")
        for kk in range(8):
            b = FB + 12 * kk
            for dh in range(2):
                S.e(f"{MF16} {vr(KD + 4*dh)}, {vr(b)}, {vr(b + 4 + 4*dh)}, {'0' if kk == 0 else vr(KD + 4*dh)}")
        for dh in range(2):
            S.e(f"buffer_store_dwordx4 {vr(KD + 4*dh)}, v{130+dh}, {sq(S_WS)}, {t4} offen sc1", tag="kvst")
        st(S, "kvst")
        if OPT.get("kvffn", "last") != "first": a1flag()
        S.e(f"v_mov_b32 v12, {CNT + 12}\nv_mov_b32 v13, 1\ns_mov_b64 exec, 1\nds_add_u32 v12, v13\ns_mov_b64 exec, -1")
    st(S, "end")
    st.flush(S, sq(S_WS), ST_OFF, 24, 12)
    S.e("s_endpgm")
    return S
def compute_head():
    S = Stream(); T = PT
    S.e("K_comp:")
    S.e(f"""
    s_lshl_b32 {t0}, s{S_MT}, 3
    s_add_u32 {t0}, {t0}, s3
    s_mul_i32 s{S_HFB}, {t0}, {NKS*1024}
    s_mul_i32 s{S_AREA}, s3, {AREA}
    s_mul_i32 {t2}, s{S_SROW}, 896
    v_cmp_gt_u32_e64 {M2}, 56, v{V_L}
    v_mov_b32 v{T+2}, 0x7f000000
    v_cndmask_b32_e64 v{T+2}, v{T+2}, v{V_L16}, {M2}
    s_waitcnt lgkmcnt(0)
    """)
    srd(S, S_X, 4, 2048 * 896)
    S.e(f"buffer_load_dwordx4 {vr(STV)}, v{T+2}, {sq(S_X)}, {t2} offen", tag="strow")
    if OPT.get("touch2"):
        S.e(f"""
        s_mov_b32 s{S_D1}, s6
        s_mov_b32 s{S_D1+1}, s7
        s_mov_b32 s{S_D1+2}, {448*2688}
        s_mov_b32 s{S_D1+3}, 0x20000
        s_cmp_eq_u32 s3, 1
        s_cselect_b32 s{S_D1}, s14, s{S_D1}
        s_cselect_b32 s{S_D1+1}, s15, s{S_D1+1}
        s_cmp_eq_u32 s3, 2
        s_cselect_b32 s{S_D1}, s16, s{S_D1}
        s_cselect_b32 s{S_D1+1}, s17, s{S_D1+1}
        s_cmp_eq_u32 s3, 3
        s_cselect_b32 s{S_D1}, s18, s{S_D1}
        s_cselect_b32 s{S_D1+1}, s19, s{S_D1+1}
        s_cmp_lg_u32 s3, 0
        s_cselect_b32 s{S_D1+2}, {448*3584}, s{S_D1+2}
        s_cmp_eq_u32 s3, 4
        s_cselect_b32 s{S_D1}, s10, s{S_D1}
        s_cselect_b32 s{S_D1+1}, s11, s{S_D1+1}
        s_cselect_b32 s{S_D1+2}, {448*896}, s{S_D1+2}
        s_mul_i32 {t1}, s2, {49*128}
        s_cmp_ge_u32 s3, {OPT['touch2']}
        s_cselect_b32 {t1}, 0x40000000, {t1}
        v_lshlrev_b32 v{T+5}, 7, v{V_L}
        v_cmp_gt_u32_e64 {M1}, 49, v{V_L}
        v_mov_b32 v{T+6}, 0x7f000000
        v_cndmask_b32_e64 v{T+5}, v{T+6}, v{T+5}, {M1}
        buffer_load_dword v23, v{T+5}, {sq(S_D1)}, {t1} offen
        """)
    srd(S, S_WS, 22, WS_SIZE); srd(S, S_DBG, 20, 256); srd(S, S_WD, 18, 1792 * 896); srd(S, S_WO, 10, 448 * 896)
    S.e(f"s_mov_b32 s{S_OUT+2}, {2048*896}\ns_mov_b32 s{S_OUT+3}, 0x20000")
    S.e(f"""
    s_lshl_b32 s{S_U0}, s{S_U0}, 5
    s_add_u32 s{S_U0}, s{S_U0}, s{S_HFB}
    s_lshl_b32 s{S_U12}, s{S_U12}, 5
    s_add_u32 s{S_U12}, s{S_U12}, s{S_HFB}
    v_lshrrev_b32 v{T+3}, 5, v{V_L}
    v_and_b32 v{T+5}, 31, v{V_L}
    v_bfe_u32 v{T+6}, v{V_L}, 1, 3
    v_xor_b32 v{T+6}, v{T+6}, v{T+3}
    v_lshlrev_b32 v{T+5}, 7, v{T+5}
    v_lshl_add_u32 v{T+5}, v{T+6}, 4, v{T+5}
    v_add_u32 v{V_AX}, s{S_AREA}, v{T+5}
    v_xor_b32 v{V_AX+1}, 32, v{V_AX}
    v_xor_b32 v{V_AX+2}, 64, v{V_AX}
    v_xor_b32 v{V_AX+3}, 0x60, v{V_AX}
    v_add_u32 v{V_CSA}, {CSP}, v{V_L16}
    v_bfe_u32 v{T+1}, v{V_L}, 2, 2
    v_lshl_add_u32 v{T+9}, v{T+3}, 2, v{T+1}
    v_lshlrev_b32 v{T+9}, 6, v{T+9}
    v_and_b32 v{T+10}, 1, v{V_L}
    v_lshl_add_u32 v{T+9}, v{T+10}, 5, v{T+9}
    v_bfe_u32 v{T+10}, v{V_L}, 1, 1
    v_bfe_u32 v{T+4}, v{V_L}, 4, 1
    v_lshl_add_u32 v{T+10}, v{T+4}, 1, v{T+10}
    v_lshl_add_u32 v{T+9}, v{T+10}, 3, v{T+9}
    v_add_u32 v{V_PHA}, {WPHI}, v{T+9}
    v_mov_b32 v{T+9}, {CNT}
    ds_write_b32 v{T+9}, v{V_Z}
    ds_write_b32 v{T+9}, v{V_Z} offset:4
    ds_write_b32 v{T+9}, v{V_Z} offset:8
    ds_write_b32 v{T+9}, v{V_Z} offset:12
    ds_write_b32 v{T+9}, v{V_Z} offset:16
    ds_write_b32 v{T+9}, v{V_Z} offset:20
    v_and_b32 v{T+10}, 60, v{V_L}
    v_add_u32 v{T+10}, {CNT + 64}, v{T+10}
    ds_write_b32 v{T+10}, v{V_Z}
    """)
    U = PT
    for j in range(4): S.e(f"v_lshlrev_b32 v{U+2*j}, 16, v{STV+j}\nv_and_b32 v{U+2*j+1}, 0xffff0000, v{STV+j}")
    S.e(f"""
    v_add_f32 v{U+8}, v{U}, v{U+1}
    v_add_f32 v{U+9}, v{U+2}, v{U+3}
    v_add_f32 v{U+10}, v{U+4}, v{U+5}
    v_add_f32 v{U+11}, v{U+6}, v{U+7}
    v_add_f32 v{U+8}, v{U+8}, v{U+9}
    v_add_f32 v{U+10}, v{U+10}, v{U+11}
    v_add_f32 v{U+8}, v{U+8}, v{U+10}
    """)
    wave_sum(S, U + 8, U + 9)
    S.e(f"v_mul_f32 v{U+8}, {f32(1/448)}, v{U+8}")
    for j in range(8): S.e(f"v_sub_f32 v{U+j}, v{U+j}, v{U+8}")
    S.e(f"v_mul_f32 v{U+9}, v{U}, v{U}\nv_mul_f32 v{U+10}, v{U+1}, v{U+1}")
    for j in range(2, 8): S.e(f"v_fmac_f32 v{U+9+(j&1)}, v{U+j}, v{U+j}")
    S.e(f"v_add_f32 v{U+9}, v{U+9}, v{U+10}\nv_cndmask_b32_e64 v{U+9}, 0, v{U+9}, {M2}")
    wave_sum(S, U + 9, U + 10)
    S.e(f"v_mul_f32 v{U+9}, {f32(1/448)}, v{U+9}")
    bf16r(S, U + 9, f"v{U+9}")
    S.e(f"v_add_f32 v{U+9}, {f32(1e-5)}, v{U+9}")
    bf16r(S, U + 9, f"v{U+9}")
    S.e(f"v_sqrt_f32 v{U+9}, v{U+9}")
    bf16r(S, STV + 1, f"v{U+9}")
    S.e(f"""
    v_cvt_pk_bf16_f32 v{STV}, -v{U+8}, -v{U+8}
    s_lshl_b32 {t0}, s{S_SROW}, 3
    s_add_u32 {t0}, {t0}, {STATS_OFF}
    s_mov_b64 exec, 1
    """)
    S.e(f"buffer_store_dwordx2 {vr(STV, 2)}, v{V_Z}, {sq(S_WS)}, {t0} offen sc1", tag="stst")
    S.e(f"s_mul_i32 {t0}, s2, {MB_STRIDE}\ns_lshl_b32 {t1}, s3, 2\ns_add_u32 {t0}, {t0}, {t1}\ns_add_u32 {t0}, {t0}, {MB_OFF}")
    S.e(f"buffer_store_dword v{V_Z}, v{V_Z}, {sq(S_WS)}, {t0} offen sc1", tag="stst")
    S.e("s_mov_b64 exec, -1")
    S.e(f"s_cmp_eq_u32 s{S_TYPE}, 1\ns_cbranch_scc1 K_kv")
    return S


def compute(typ):
    q = typ == "q"
    S = Stream(); T = PT
    S.e(f"K_{typ}:")
    st = Stamper(STAMPR); st.n = 1; st.names = ["start"]
    tile_addrs(S, typ, V_AT, T)
    p2_ids(S)
    EARLY = Stream()
    T = SC; p2_a_voffsets(EARLY, 21, None, None, T)
    EARLY.e(f"""
    s_bfe_u32 {t4}, s3, 0x10001
    s_lshr_b32 {t5}, s3, 2
    v_bfe_u32 v{T}, v{V_L}, 2, 2
    v_lshrrev_b32 v{T+1}, 5, v{V_L}
    v_lshl_add_u32 v{T+2}, v{T+1}, 2, v{T}
    v_lshlrev_b32 v{T+2}, 7, v{T+2}
    v_lshrrev_b32 v{T}, 1, v{T}
    v_xor_b32 v{T}, {t4}, v{T}
    v_lshl_add_u32 v{T+2}, v{T}, 6, v{T+2}
    v_and_b32 v{T}, 1, v{V_L}
    v_lshl_add_u32 v{T+2}, v{T}, 5, v{T+2}
    v_bfe_u32 v{T}, v{V_L}, 1, 1
    v_bfe_u32 v{T+3}, v{V_L}, 4, 1
    v_xor_b32 v{T+3}, {t5}, v{T+3}
    v_lshl_add_u32 v{T}, v{T+3}, 1, v{T}
    v_lshl_add_u32 v{T+2}, v{T}, 3, v{T+2}
    s_mul_i32 {t0}, s3, {REG2}
    v_add_u32 v22, {t0}, v{T+2}
    s_and_b32 {t0}, s3, 3
    s_lshl_b32 {t0}, {t0}, 1
    s_add_u32 s{S_H}, {t0}, {t5}
    s_mul_i32 s{S_XROW}, s{S_H}, {14*16*896}
    s_cmp_ge_u32 s2, 224
    s_cselect_b32 {t0}, 0x40000000, 0
    s_add_u32 s{S_XROW}, s{S_XROW}, {t0}
    """)
    T = PT
    pend = []
    def ABn(n): return AB if n % 2 == 1 else SC + 8
    def a_read(n, t):
        c, s = n >> 2, n & 3
        for e in range(2):
            a, imm = tile_read_args(typ, t, s, e)
            S.e(f"ds_read_b64_tr_b16 {vr(ABn(n) + 4*t + 2*e, 2)}, v{V_AT+a} offset:{(c % 3)*WS_ + imm}")
    def x_read(n):
        c, s = n >> 2, n & 3
        S.e(f"ds_read_b128 {vr(XB + 4*(n & 1))}, v{V_AX+s} offset:{(c % 3) * 4096}")
    def kstep(n):
        if n + 1 < 28:
            x_read(n + 1); a_read(n + 1, 0); a_read(n + 1, 1)
        for t in range(5):
            S.e(f"{MF} {vr(ACC + 16*t, 16)}, {vr(ABn(n) + 4*t)}, {vr(XB + 4*(n & 1))}, {'0' if n == 0 else vr(ACC + 16*t, 16)}")
            if n + 1 < 28 and t + 2 < 5: a_read(n + 1, t + 2)
            if pend: S.extend(pend.pop(0))
    S.wait_lgkm(); S.e("s_barrier")
    st(S, "bar0")
    x_read(0)
    for t in range(5): a_read(0, t)
    for c in range(7):
        S.comment(f"chunk {c}")
        if c in (4,): st(S, f"chunk{c}")
        n = 4 * c
        if c == int(OPT.get("poic", 0)):
            G = Stream(); G.e(f"v_mov_b32 v{SC}, -1\nv_mov_b32 v{SC+1}, -1\nv_mov_b32 v{SC+2}, -1\nv_mov_b32 v{SC+3}, -1"); pend.append(G)
            if q:
                offs = [f"s_lshl_b32 {t0}, s{S_HEAD}, 11\ns_add_u32 {t0}, {t0}, s{S_HFB}\ns_add_u32 {t0}, {t0}, {(112+u)*1024}" for u in range(2)]
            else:
                offs = [f"s_lshl_b32 {t0}, s{S_HEAD}, 3\ns_add_u32 {t0}, {t0}, s{S_MT}\ns_lshl_b32 {t0}, {t0}, 3\ns_add_u32 {t0}, {t0}, s3\ns_lshl_b32 {t0}, {t0}, 10\ns_add_u32 {t0}, {t0}, {KVP_OFF}"]
            for o in offs:
                G = Stream(); G.e(o); G.e(f"buffer_store_dwordx4 {vr(SC)}, v{V_L16}, {sq(S_WS)}, {t0} offen sc1", tag="stst"); pend.append(G); pend.append(Stream())
        if c == int(OPT.get("poic", 0)) + 1: pend.append(signal("stst", 4, "init", f"K_{typ}_nosigst", SC + 4, SC + 5, SC + 6, 7))
        if OPT.get("tlb") and c == int(OPT["tlb"]):
            G = Stream()
            G.e(f"""
            v_lshlrev_b32 v23, 18, v{V_L}
            s_lshl_b32 {t0}, s3, 15
            buffer_load_dword v23, v23, {sq(S_WS)}, {t0} offen
            """); pend.append(G)
            G = Stream()
            G.e(f"""
            v_lshlrev_b32 v26, 15, v{V_L}
            s_lshl_b32 {t0}, s3, 12
            buffer_load_dword v27, v26, {sq(S_OUT)}, {t0} offen
            """); pend.append(G)
        if c == 3:
            for ii in range(0, len(EARLY), 5):
                G = Stream(); G.extend(EARLY[ii:ii+5]); pend.append(G)
        kstep(n); kstep(n + 1); kstep(n + 2)
        S.wait_lgkm(); S.e("s_barrier")
        if c == 5:
            G = Stream()
            G.e(f"""
            v_and_b32 v{V_TMP}, 31, v{V_L}
            v_lshlrev_b32 v{V_TMP}, 3, v{V_TMP}
            s_lshl_b32 {t0}, s{S_MT}, 3
            s_add_u32 {t0}, {t0}, s3
            s_lshl_b32 {t0}, {t0}, 8
            s_add_u32 {t0}, {t0}, {STATS_OFF}
            buffer_load_dwordx2 {vr(V_RINV, 2)}, v{V_TMP}, {sq(S_WS)}, {t0} offen sc1
            """)
            pend.append(G)
        if c == 6:
            CR = SC + 8
            for t in range(5): S.e(f"ds_read_b128 {vr(CR + 4*t)}, v{V_CSA} offset:{t*1024}")
            stats_consts(S)
        kstep(n + 3)
    st(S, "S1")
    WPF = XB; E = AB; QB = E + 8; TT = 4; GT = SC; GT2 = SC + 12
    A0 = ACC
    V_WD, V_A0, V_A1 = 11, 12, 13
    V_WOo, V_WOM, V_B0, V_B1, V_O = 4, 5, 6, 7, 8
    S.e(f"{MF} {vr(ACC,16)}, {vr(CR)}, {vr(BP)}, {vr(ACC,16)}")
    for te in range(4): S.e(f"ds_read_b64_tr_b16 {vr(WPF + 2*te, 2)}, v{V_PHA} offset:{te * 512}")
    for t in range(1, 5): S.e(f"{MF} {vr(ACC + 16*t,16)}, {vr(CR + 4*t)}, {vr(BP)}, {vr(ACC + 16*t,16)}")
    S.e(f"s_mul_i32 s{S_AREA}, s3, {REG2}\nv_mov_b32 v{V_WD}, v21\nv_mov_b32 v{V_A0}, v22\nv_xor_b32 v{V_A1}, 64, v22")
    W = SC + 28; X = 4
    if not q:
        S.e(f"""
        v_and_b32 v{X}, 31, v{V_L}
        v_lshrrev_b32 v{X+1}, 5, v{V_L}
        v_lshlrev_b32 v{X+1}, 1, v{X+1}
        v_bfe_u32 v{X+2}, v{V_L}, 1, 2
        v_xor_b32 v{X+2}, v{X+2}, v{X+1}
        v_lshlrev_b32 v{X+3}, 6, v{X}
        v_lshl_add_u32 v{X+3}, v{X+2}, 4, v{X+3}
        s_add_u32 {t0}, s{S_AREA}, {VVO}
        v_add_u32 v9, {t0}, v{X+3}
        v_xor_b32 v10, 16, v9
        v_and_b32 v{X+3}, 7, v{V_L}
        v_xor_b32 v{X+1}, v{X+1}, v{X+3}
        v_lshlrev_b32 v{X}, 7, v{X}
        v_lshl_add_u32 v{X}, v{X+1}, 4, v{X}
        s_add_u32 {t0}, s{S_AREA}, {PKO}
        v_add_u32 v{W}, {t0}, v{X}
        v_xor_b32 v{W+1}, 16, v{W}
        v_xor_b32 v{W+2}, 64, v{W}
        v_xor_b32 v{W+3}, 0x50, v{W}
        """)
    for i in range(16): S.e(f"v_mul_f32 v{A0+i}, v{A0+i}, v{V_RINV}")
    for i in range(8): S.e(f"v_cvt_pk_bf16_f32 v{QB+i}, v{A0+2*i}, v{A0+2*i+1}")
    S.e(f"{MF} {vr(A0,16)}, {vr(WPF)}, {vr(QB)}, 0\n{MF} {vr(A0,16)}, {vr(WPF+4)}, {vr(QB+4)}, {vr(A0,16)}")
    A1 = ACC + 16
    AC2 = 104
    bfree = [16, 24, 32, 40, 48]
    ablk = {i: b for i, b in enumerate([72, 80, 88, 96, 56, 64] if (q or OPT.get('kvffn', 'last') == 'first') else [56, 64, 72, 80, 88, 96])}
    slot_of = {i: i for i in range(6)}
    def a_tr(i, blk):
        for ni in range(2):
            for e in range(2):
                S.e(f"ds_read_b64_tr_b16 {vr(blk + 4*ni + 2*e, 2)}, v{V_A0+ni} offset:{slot_of[i]*2048 + e*1024}", tag=f"ar{i}")
    def a_dma(i, sl):
        slot_of[i] = sl; out = []
        for u in range(2):
            G = Stream()
            G.e(f"s_add_u32 m0, s{S_AREA}, {sl*2048 + u*1024}")
            if i < 14:
                G.e(f"s_add_u32 {tm}, s{S_XROW}, {(16*i + 8*u)*896}")
                G.e(f"buffer_load_dwordx4 v{V_WD}, {sq(S_WD)}, {tm} offen lds", tag=f"a{i}")
            else:
                hd, t = (i - 14) >> 1, (i - 14) & 1
                G.e(f"s_add_u32 {tm}, s{S_D0L}, {(28*hd + 8*t + 4*u)*896}")
                G.e(f"buffer_load_dwordx4 v{V_WOM if (t and u) else V_WOo}, {sq(S_WO)}, {tm} offen lds", tag=f"a{i}")
            out.append(G)
        return out
    def sprinkle(V, parts, start, every):
        n = 0
        for ins in V:
            S.append(ins); n += 1
            if n >= start and (n - start) % every == 0 and parts: S.extend(parts.pop(0))
        for p in parts: S.extend(p)
    late = []
    KF1 = q or OPT.get("kvffn", "last") == "first"
    def vpart():
        for i in range(16): S.e(f"v_mul_f32 v{A1+i}, v{A1+i}, v{V_RINV}")
        for i in range(8): S.e(f"v_cvt_pk_bf16_f32 v{A1+i}, v{A1+2*i}, v{A1+2*i+1}")
        S.e(f"""
        v_mov_b32 v{A1+8}, 0x3f803f80
        v_cndmask_b32_e64 v{A1+6}, v{A1+6}, v{A1+8}, {HHM}
        ds_write_b128 v9, {vr(A1)}
        ds_write_b128 v10, {vr(A1+4)}
        """)
    if KF1:
        if q:
            geglu(S, A1, GT, S_U0, 0); geglu(S, ACC + 32, GT2, S_U0, 1); geglu(S, ACC + 48, GT, S_U0, 2); geglu(S, ACC + 64, GT2, S_U0, 3)
        else:
            geglu(S, ACC + 32, GT2, S_U0, 0); geglu(S, ACC + 48, GT, S_U12, 0); geglu(S, ACC + 64, GT2, S_U12, 1)
            vpart()
        st(S, "ffn")
        S.e(f"""
        v_mov_b32 v14, {CNT + 20}
        K_{typ}_a1:
        ds_read_b32 v15, v14
        s_waitcnt lgkmcnt(0)
        v_readfirstlane_b32 {t1}, v15
        s_cmp_lt_u32 {t1}, 4
        s_cbranch_scc1 K_{typ}_a1
        """)
        for i in range(4): a_tr(i, ablk[i])
        V = Stream(); softmax14(V, A0, E, TT)
        w = Stream(); w.wait_lgkm()
        sg = signal("hst", 8, "h", f"K_{typ}_nosigh", 104, 105, 106, 7)
        pos = int(OPT.get("sgpos", 4))
        parts = [w] + a_dma(6, 0) + a_dma(7, 1) + a_dma(8, 2) + a_dma(9, 3)
        parts.insert(pos + 1, sg)
        if q or OPT.get('kvspr', False): sprinkle(V, parts, 12, 14)
        else:
            sprinkle(V, [sg], 60, 14); parts.remove(sg); pre_late = parts
        if q:
            S.e(f"s_add_u32 {t0}, s{S_AREA}, {PKO}\nv_add_u32 v9, {t0}, v{V_L16}")
            for kk in range(4): S.e(f"ds_write_b128 v9, {vr(E + 4*kk)} offset:{kk*1024}")
        else:
            for k in range(4): S.e(f"ds_write_b128 v{W+k}, {vr(E+4*k)}")
        a_tr(4, ablk[4]); a_tr(5, ablk[5])
        S.wait_lgkm(); S.e("s_barrier")
        st(S, "B2")
        late = ([] if (q or OPT.get('kvspr', False)) else pre_late) + a_dma(10, 4) + a_dma(11, 5)
    else:
        vpart()
        softmax14(S, A0, E, TT)
        for k in range(4): S.e(f"ds_write_b128 v{W+k}, {vr(E+4*k)}")
        S.wait_lgkm(); S.e("s_barrier")
        st(S, "B2")
        geglu(S, ACC + 32, GT2, S_U0, 0); geglu(S, ACC + 48, GT, S_U12, 0); geglu(S, ACC + 64, GT2, S_U12, 1)
        st(S, "ffn")
        S.e(f"""
        v_mov_b32 v14, {CNT + 20}
        K_{typ}_a1:
        ds_read_b32 v15, v14
        s_waitcnt lgkmcnt(0)
        v_readfirstlane_b32 {t1}, v15
        s_cmp_lt_u32 {t1}, 4
        s_cbranch_scc1 K_{typ}_a1
        """)
        for i in range(6): a_tr(i, ablk[i])
        S.wait_lgkm()
        for i in range(6, 12): late += a_dma(i, i - 6)
    TP = 16
    S.e(f"""
    v_lshrrev_b32 v{TP}, 3, v{V_L}
    v_mul_u32_u24 v{TP+1}, 896, v{TP}
    v_sub_u32 v{TP+1}, v{V_WD}, v{TP+1}
    v_lshrrev_b32 v{TP+2}, 2, v{TP}
    v_and_b32 v{TP+3}, 3, v{TP}
    v_mad_u32_u24 v{TP+2}, v{TP+2}, 14, v{TP+3}
    v_mul_u32_u24 v{V_WOo}, 896, v{TP+2}
    v_add_u32 v{V_WOo}, v{V_WOo}, v{TP+1}
    v_cmp_lt_u32_e64 {M1}, 1, v{TP+3}
    v_mov_b32 v{TP+2}, 0x7f000000
    v_cndmask_b32_e64 v{V_WOM}, v{V_WOo}, v{TP+2}, {M1}
    s_and_b32 {t3}, s3, 1
    s_bfe_u32 {t4}, s3, 0x10001
    s_lshr_b32 {t5}, s3, 2
    s_lshl_b32 {t0}, s{S_M64}, 1
    s_add_u32 {t0}, {t0}, {t3}
    s_mul_i32 {t1}, {t0}, {NKS*1024}
    v_add_u32 v{V_B0}, {t1}, v{V_L16}
    s_xor_b32 {t2}, {t0}, 1
    s_mul_i32 {t2}, {t2}, {NKS*1024}
    v_add_u32 v{V_B1}, {t2}, v{V_L16}
    v_mov_b32 v9, {t1}
    v_mov_b32 v10, {t2}
    v_cmp_lt_u32_e64 {M1}, 15, v{V_L}
    v_cndmask_b32_e64 v9, v9, v10, {M1}
    v_and_b32 v10, 3, v{V_L}
    v_lshl_add_u32 v9, v10, 10, v9
    v_lshrrev_b32 v{TP+1}, 5, v{V_L}
    v_and_b32 v{TP}, 31, v{V_L}
    s_lshl_b32 {t0}, {t0}, 5
    v_add_u32 v{TP}, {t0}, v{TP}
    v_mul_u32_u24 v{TP}, 896, v{TP}
    v_lshlrev_b32 v{TP+1}, 5, v{TP+1}
    s_lshl_b32 {t0}, s{S_N64}, 7
    s_lshl_b32 {t1}, {t4}, 6
    s_add_u32 {t0}, {t0}, {t1}
    s_lshl_b32 {t1}, {t5}, 4
    s_add_u32 {t0}, {t0}, {t1}
    v_add3_u32 v{V_O}, v{TP}, v{TP+1}, {t0}
    s_mul_i32 s{S_D0L}, s{S_H}, {2*28*896}
    s_mul_i32 s{S_U0}, s{S_H}, {14*1024}
    s_lshl_b32 s{S_U12}, s{S_H}, 12
    s_add_u32 s{S_U12}, s{S_U12}, {112*1024 - 14*1024}
    s_add_u32 s{S_G}, s{S_U12}, {14*1024 + 1008}
    v_mov_b32 v{TP}, {CNT + 12}
    K_{typ}_zone:
    ds_read_b32 v{TP+1}, v{TP}
    s_waitcnt lgkmcnt(0)
    v_readfirstlane_b32 {t1}, v{TP+1}
    s_cmp_lt_u32 {t1}, 4
    s_cbranch_scc1 K_{typ}_zone
    """)
    for g in late[:int(OPT.get("latepre", 4))]: S.extend(g)
    st(S, "p1end")
    if not KF1: S.extend(signal("hst", 8, "h", f"K_{typ}_nosigh", TP, TP + 1, TP + 2, 7))
    if not q: S.e(f"s_cmp_ge_u32 s2, 224\ns_cbranch_scc1 K_{typ}_fin")
    for g in late[int(OPT.get("latepre", 4)):]: S.extend(g)
    for i in range(12, 15):
        for g in a_dma(i, i - 6): S.extend(g)
    MIR = CNT + 64
    S.e(f"""
    s_mul_i32 {t2}, s2, {MB_STRIDE}
    s_add_u32 {t2}, {t2}, {MB_OFF}
    s_lshr_b32 {t0}, s{S_H}, 1
    s_lshl_b32 {t5}, {t0}, 1
    s_cmp_lt_u32 s3, 4
    s_mov_b32 {t4}, 0x01010101
    s_cselect_b32 {t4}, 0x00010001, {t4}
    s_mov_b32 {t3}, 0
    v_and_b32 v{TP}, 15, v{V_L}
    v_lshlrev_b32 v{TP}, 2, v{TP}
    v_add_u32 v{TP+1}, {MIR}, v{TP}
    v_and_b32 v{TP}, 28, v{TP}
    s_add_u32 {t0}, {t5}, 1
    """)
    st(S, "w5")
    S.e(f"""
    s_cmp_eq_u32 s3, 7
    s_cbranch_scc1 K_{typ}_phg
    K_{typ}_phl:
    ds_read_b32 v14, v{TP+1}
    s_waitcnt lgkmcnt(0)
    v_readlane_b32 {t1}, v14, {t5}
    v_readlane_b32 {tm}, v14, {t0}
    s_and_b32 {t1}, {t1}, {tm}
    s_and_b32 {t1}, {t1}, {t4}
    s_cmp_eq_u32 {t1}, {t4}
    s_cbranch_scc1 K_{typ}_phok
    v_readlane_b32 {t1}, v14, 8
    s_sleep 2
    s_cmp_eq_u32 {t1}, 0
    s_cbranch_scc1 K_{typ}_phl
    K_{typ}_phg:
    buffer_load_dword v14, v{TP}, {sq(S_WS)}, {t2} offen sc1
    s_waitcnt vmcnt(0)
    s_mov_b64 exec, 0xff
    ds_write_b32 v{TP+1}, v14
    s_mov_b64 exec, -1
    v_readlane_b32 {t1}, v14, {t5}
    v_readlane_b32 {tm}, v14, {t0}
    s_add_u32 {t3}, {t3}, 1
    s_and_b32 {t1}, {t1}, {tm}
    s_and_b32 {t1}, {t1}, {t4}
    s_cmp_eq_u32 {t1}, {t4}
    s_cbranch_scc1 K_{typ}_phd
    s_sleep {OPT.get('sleep', 4)}
    s_cmp_lt_u32 {t3}, 0x8000
    s_cbranch_scc1 K_{typ}_phg
    K_{typ}_phd:
    v_mov_b32 v14, {MIR + 32}
    v_mov_b32 v15, 1
    ds_write_b32 v14, v15
    K_{typ}_phok:
    """, opt=True)
    S.append(pseudo("forget_opt"))
    st(S, "B5")
    st(S, "B5f", fine=True)
    bblk = {}
    nextb = [0]
    def b_issue(i, opt=False):
        S.e(f"s_add_u32 {tm}, s{S_U0 if i < 14 else S_U12}, {i*1024}", opt=opt)
        for mi in range(2):
            S.e(f"buffer_load_dwordx4 {vr(bblk[i] + 4*mi)}, v{V_B0+mi}, {sq(S_WS)}, {tm} offen sc1", opt=opt)
    def b_load():
        i = nextb[0]
        if i >= 18 or not bfree: return False
        if i == 14:
            tagpoll(S, f"K_{typ}_po", 9, 14, f"s{S_G}", first_issued=True)
            S.append(pseudo("forget_opt"))
            st(S, "B6")
        bblk[i] = bfree.pop(0)
        b_issue(i)
        nextb[0] += 1
        return True
    OLAG = int(OPT.get("olag", 4))
    while b_load(): pass
    afree = []
    for i in range(18):
        if i + 1 < 18 and (i + 1) not in ablk:
            ablk[i + 1] = afree.pop(0)
            S.wait_vm(f"a{i+1}")
            a_tr(i + 1, ablk[i + 1])
        if i >= 14:
            regs = list(range(bblk[i], bblk[i] + 8))
            umax_tree(S, regs, 15)
            S.e(f"v_cmp_eq_u32_e64 {M1}, -1, v15\ns_cmp_eq_u64 {M1}, 0\ns_cbranch_scc1 K_{typ}_bok{i}")
            S.e(f"s_mov_b32 {t3}, 0\nK_{typ}_bre{i}:", opt=True)
            b_issue(i, opt=True)
            S.e("s_waitcnt vmcnt(0)", opt=True)
            umax_tree(S, regs, 15, opt=True)
            S.e(f"v_cmp_eq_u32_e64 {M1}, -1, v15\ns_add_u32 {t3}, {t3}, 1\ns_cmp_eq_u64 {M1}, 0\ns_cbranch_scc1 K_{typ}_bok{i}\ns_cmp_lt_u32 {t3}, 0x4000\ns_cbranch_scc1 K_{typ}_bre{i}", opt=True)
            S.e(f"K_{typ}_bok{i}:")
            S.append(pseudo("forget_opt"))
        for lq in range(4):
            ni, mi = lq >> 1, lq & 1
            S.e(f"{MF} {vr(AC2 + 16*lq, 16)}, {vr(ablk[i] + 4*ni)}, {vr(bblk[i] + 4*mi)}, {'0' if i == 0 else vr(AC2 + 16*lq, 16)}")
        if i in (0, 1, 2, 4, 6, 8, 10, 12, 14, 17): st(S, f"k{i}", fine=True)
        bfree.append(bblk[i])
        if i in (3, 4) or i >= 6: afree.append(ablk[i])
        else: bfree.append(ablk[i])
        if i in (7, 8, 9):
            for g in a_dma(i + 8, i - 7): S.extend(g)
        if i == 14 - OLAG - 2: S.e(f"buffer_load_dword v14, v9, {sq(S_WS)}, s{S_G} offen sc1")
        while nextb[0] < 18 and (nextb[0] < 14 or nextb[0] <= i + OLAG) and b_load(): pass
        if i == 15:
            XRG = [b for b in bfree if b >= 88][0]; bfree.remove(XRG)
            S.e(f"buffer_load_dwordx4 {vr(XRG)}, v{V_O}, {sq(S_X)}, 0 offen")
    st(S, "mm")
    S.e(f"v_add_u32 v4, s{S_AREA}, v{V_L16}")
    def piece(pp): lq = (pp & 1) | (((pp >> 1) & 1) << 1); return AC2 + 16*lq + 8*(pp >> 2)
    for pp in range(1, 8):
        for j in range(2): S.e(f"ds_write_b128 v4, {vr(piece(pp) + 4*j)} offset:{(pp-1)*2048 + j*1024}")
    for pp in range(1, 8):
        S.e(f"s_xor_b32 {t0}, s3, {pp}\ns_mul_i32 {t0}, {t0}, {REG2}\nv_add_u32 v{16+pp}, {t0}, v{V_L16}")
    for j in range(4): S.e(f"v_lshlrev_b32 v{24+2*j}, 16, v{XRG+j}\nv_and_b32 v{25+2*j}, 0xffff0000, v{XRG+j}")
    for j in range(8): S.e(f"v_add_f32 v{AC2+j}, v{AC2+j}, v{24+j}")
    S.wait_lgkm(); S.e("s_barrier")
    R = 32
    for pp in range(1, 8):
        for j in range(2): S.e(f"ds_read_b128 {vr(R + 8*(pp-1) + 4*j)}, v{16+pp} offset:{(pp-1)*2048 + j*1024}")
    for j in range(8): S.e(f"v_add_f32 v{AC2+j}, v{AC2+j}, v{R+j}")
    for j in range(8): S.e(f"v_add_f32 v{R+8+j}, v{R+8+j}, v{R+16+j}")
    for j in range(8): S.e(f"v_add_f32 v{R+24+j}, v{R+24+j}, v{R+32+j}")
    for j in range(8): S.e(f"v_add_f32 v{R+40+j}, v{R+40+j}, v{R+48+j}")
    for j in range(8): S.e(f"v_add_f32 v{AC2+j}, v{AC2+j}, v{R+8+j}")
    for j in range(8): S.e(f"v_add_f32 v{R+24+j}, v{R+24+j}, v{R+40+j}")
    for j in range(8): S.e(f"v_add_f32 v{AC2+j}, v{AC2+j}, v{R+24+j}")
    if OPT.get("eps"):
        for j in range(8): S.e(f"v_mul_f32 v{AC2+j}, {f32(1.0 + float(OPT['eps']))}, v{AC2+j}")
    for j in range(4): S.e(f"v_cvt_pk_bf16_f32 v{24+j}, v{AC2+2*j}, v{AC2+2*j+1}")
    S.e(f"buffer_store_dwordx4 {vr(24)}, v{V_O}, {sq(S_OUT)}, 0 offen")
    S.e(f"K_{typ}_fin:")
    st(S, "end")
    st.flush(S, sq(S_WS), ST_OFF, 104, 12)
    S.e("s_endpgm")
    return S

def gen_all():
    pro = list(prologue()); ch = list(compute_head()); hh = list(helper_head())
    out = []
    def part(prefix, body, label):
        full = finalize(prefix + list(body))
        idx = next(i for i, x in enumerate(full) if x.text == label) if label else 0
        return full[idx:]
    hq = part(pro + hh, list(helper("q")) + list(hpost("q")), None)
    hk = part(pro + hh, list(helper("kv")) + list(hpost("kv")), "K_hkv:")
    def cut(p):
        n = 0
        for i, x in enumerate(p):
            if x.op == "s_barrier":
                n += 1
                if n == 1: return p[:i], p[i:]
    if OPT.get("layout", False):
        a, b = cut(hq); c, d = cut(hk)
        out += a + [I("s_branch K_hq_rest")] + c + [I("s_branch K_hkv_rest")]
        out += part(pro + ch, compute("q"), "K_comp:")
        out += part(pro + ch, compute("kv"), "K_kv:")
        out += [I("K_hq_rest:")] + b + [I("K_hkv_rest:")] + d
    else:
        out += hq + hk
        out += part(pro + ch, compute("q"), "K_comp:")
        out += part(pro + ch, compute("kv"), "K_kv:")
    out.append(I("K_END:")); out.append(I("s_endpgm"))
    return out

def build(path):
    k = gen_all()
    print("K", stats(k), file=sys.stderr)
    ref = open(f"cdna_kernels/{NAME}.s.ref").read().split("\n")
    hdr = [l for l in ref if l.startswith(";") and "@launch" not in l and "Override" not in l and "grid=ceil" not in l]
    txt = "\n".join(hdr) + "\n"
    txt += f"; @launch grid=(256,1,1) block=(768,1,1) lds=163840\n"
    txt += '.amdgcn_target "amdgcn-amd-amdhsa--gfx950"\n.text\n'
    txt += f".globl {K1}\n.p2align 8\n.type {K1},@function\n{K1}:\n" + render(k)
    txt += f""".section .rodata,"a"
.p2align 6
.amdhsa_kernel {K1}
  .amdhsa_next_free_vgpr {NVG1}
  .amdhsa_next_free_sgpr 102
  .amdhsa_accum_offset {NVG1}
  .amdhsa_group_segment_fixed_size 0
  .amdhsa_kernarg_size 88
  .amdhsa_user_sgpr_count 2
  .amdhsa_user_sgpr_kernarg_segment_ptr 1
  .amdhsa_system_sgpr_workgroup_id_x 1
.end_amdhsa_kernel
"""
    open(path, "w").write(txt)

if __name__ == "__main__":
    for a in sys.argv[2:]:
        k, v = a.split("=")
        OPT[k] = {"True": True, "False": False}.get(v, v.replace("_", " ") if k.endswith("flags") else v)
    build(sys.argv[1] if len(sys.argv) > 1 else f"cdna_kernels/{NAME}.s")
```

```python
import sys, os, struct
sys.path.insert(0, os.path.dirname(os.path.abspath(__file__)))
from dsl import *

NAME = "parallel_sum__linear_kernel_hedgehog__geglu_ffn__prompt"
K1 = NAME + "_kernel"
K2 = "k2_kernel"

HF_OFF = 0
KVP_OFF = 0xB00000
PHF_OFF = 0x1000000
WS_SIZE = 0x1400000
NKS = 144

OPT = dict(mimic_ffn=False, hf_flags=" sc1", k2d="8", prefetch=True)

def f32(x): return "0x%08x" % struct.unpack("<I", struct.pack("<f", x))[0]
def vr(a, n=4): return f"v[{a}:{a+n-1}]"
def ar(a, n=4): return f"a[{a}:{a+n-1}]"
MF = "v_mfma_f32_32x32x16_bf16"
MF16 = "v_mfma_f32_16x16x32_bf16"

def srd(S, d, lo, nbytes):
    S.e(f"s_mov_b32 s{d}, s{lo}\ns_mov_b32 s{d+1}, s{lo+1}\ns_mov_b32 s{d+2}, {nbytes}\ns_mov_b32 s{d+3}, 0x20000")

STAMP_REGS = [92, 94, 96, 98, 100, 28, 30, 4, 6, 8, 10, 12, 14, 16, 18, 20]
ST_OFF = 0xD00000
class Stamper:
    def __init__(self, regs=STAMP_REGS): self.n = 0; self.names = []; self.regs = regs
    def __call__(self, S, name, fine=False):
        if not OPT.get("stamps"): return
        if (OPT.get("stamps") == "fine") != fine and name != "end": return
        r = self.regs[self.n]; self.n += 1; self.names.append(name)
        S.e(f"{'s_memtime' if fine else 's_memrealtime'} s[{r}:{r+1}]")
    def flush(self, S, srd_s, base, vtmp, nwaves):
        if not OPT.get("stamps"): return
        S.e("s_waitcnt lgkmcnt(0)")
        for i in range(self.n): S.e(f"v_mov_b32 v{vtmp+i}, s{self.regs[i]}")
        S.e(f"s_mul_i32 s88, s2, {nwaves*64}\ns_lshl_b32 s89, s3, 6\ns_add_u32 s88, s88, s89\ns_add_u32 s88, s88, {base}\nv_mov_b32 v0, 0\ns_mov_b64 exec, 1")
        for i in range(0, 16, 4): S.e(f"buffer_store_dwordx4 v[{vtmp+i}:{vtmp+i+3}], v0, {srd_s}, s88 offen offset:{i*4}")
        if OPT.get("dbgst"):
            Stamper.uid = getattr(Stamper, "uid", 0) + 1
            S.e(f"s_lshl_b32 s88, s2, 4\ns_add_u32 s88, s88, s3\ns_cmp_lg_u32 s88, {OPT['dbgst']}\ns_cbranch_scc1 DBGST{Stamper.uid}")
            for i in range(1, self.n): S.e(f"v_sub_u32 v{vtmp+i}, v{vtmp+i}, v{vtmp}", opt=True)
            for i in range(0, 16, 4): S.e(f"buffer_store_dwordx4 v[{vtmp+i}:{vtmp+i+3}], v0, s[44:47], 0 offen offset:{i*4}", opt=True)
            S.e(f"DBGST{Stamper.uid}:")
        print("stamps", self.names, file=sys.stderr)

AREA = 12288
W0 = 98304; WS_ = 20480
MISC = 159744
WPHI = MISC
CNT = MISC + 2048
STATS_OFF = 0xC00000
REG2 = 18432
CSP = 147456; KVF = 147456 + 5120
PKO = 12288; VVO = 16384
NVG1 = 168

V_L = 1; V_L16 = 2; V_Z = 3
V_AX = 4; V_AT = 8
V_CSA = 13; V_PHA = 14; V_TMP = 15
V_RINV, V_SD = 16, 17
V_C0, V_C1, V_S2 = 18, 19, 20
BP = 24
XB = 28; AB = 36; ACC = 56; SC = 136
PT = 136; STV = 152
S_PF, S_X, S_OUT, S_WG, S_WU, S_WS, S_DBG, S_WQ, S_D1, S_WD, S_WO = 12, 24, 28, 32, 36, 40, 44, 48, 52, 56, 60
S_MT, S_C4, S_HL, S_HEAD, S_TYPE, S_XROW, S_AREA, S_D0L, S_H = 64, 65, 66, 67, 68, 69, 70, 71, 72
S_ODD = 73
S_T = 74
S_HH = 80
S_HFB = 82
S_U0, S_U12 = 83, 84
S_M = 85
S_SROW = 86
S_G = 87
M1 = "s[88:89]"; M2 = "s[90:91]"
HHM = f"s[{S_HH}:{S_HH+1}]"
t0, t1, t2, t3, t4, t5 = [f"s{S_T+i}" for i in range(6)]
tm = f"s{S_M}"
S_M64, S_N64, S_MT2 = 65, 66, 73
def sq(d): return f"s[{d}:{d+3}]"
STAMPR = [92, 94, 96, 98, 100, 4, 6, 8, 10, 16, 18, 20, 22]
B_OWNMT = f"s_lshl_b32 {t2}, s{S_MT}, 5"
B_MT2 = f"s_lshl_b32 {t2}, s{S_MT2}, 5"
B_KV = f"s_lshl_b32 {t2}, s{S_HEAD}, 1\ns_add_u32 {t2}, {t2}, 1"

def bf16r(S, d, src):
    S.e(f"v_cvt_pk_bf16_f32 v{d}, {src}, {src}\nv_lshlrev_b32 v{d}, 16, v{d}")

def xhalf(S, op, x, t):
    S.e(f"v_mov_b32 v{t}, v{x}\nv_permlane32_swap_b32 v{t}, v{x}\n{op} v{x}, v{x}, v{t}")

def wave_sum(S, x, t):
    for m in ("quad_perm:[1,0,3,2]", "quad_perm:[2,3,0,1]", "row_half_mirror", "row_mirror"):
        S.e(f"v_add_f32_dpp v{x}, v{x}, v{x} {m} row_mask:0xf bank_mask:0xf")
    S.e(f"v_mov_b32 v{t}, v{x}\nv_permlane16_swap_b32 v{t}, v{x}\nv_add_f32 v{x}, v{x}, v{t}")
    xhalf(S, "v_add_f32", x, t)


MB_OFF = 0xE00000; MB_STRIDE = 4096 + 256
def signal(tag, cnt_off, kind, lab, A, B, Cc, last):
    G = Stream()
    if tag: G.wait_vm(*tag.split(","))
    G.e(f"""
    v_mov_b32 v{A}, {CNT + cnt_off}
    v_mov_b32 v{B}, 1
    s_mov_b64 exec, 1
    ds_add_rtn_u32 v{Cc}, v{A}, v{B}
    s_mov_b64 exec, -1
    v_readfirstlane_b32 {t1}, v{Cc}
    s_cmp_lg_u32 {t1}, {last}
    s_cbranch_scc1 {lab}
    """)
    if kind == "init":
        G.e(f"s_lshr_b32 {t2}, s{S_SROW}, 3\ns_mov_b64 exec, 1", opt=True)
        G.e(f"buffer_store_byte v{B}, v{V_Z}, {sq(S_DBG)}, {t2} offen sc1", opt=True)
    elif kind in ("h", "o"):
        G.e(f"""
        s_and_b32 {t1}, s{S_MT}, 3
        s_lshl_b32 {t1}, {t1}, 1
        s_lshr_b32 {t2}, s{S_MT}, 2
        s_add_u32 {t1}, {t1}, {t2}
        s_mul_i32 {t1}, {t1}, {MB_STRIDE}
        {f's_bfe_u32 {t2}, s{S_SROW}, 0x50003' if kind == 'h' else f's_add_u32 {t2}, s{S_HEAD}, 32'}
        s_add_u32 {t1}, {t1}, {t2}
        s_add_u32 {t1}, {t1}, {MB_OFF}
        v_mul_u32_u24 v{Cc}, {8*MB_STRIDE}, v{V_L}
        s_mov_b64 exec, 0xfffffff
        """, opt=True)
        G.e(f"buffer_store_byte v{B}, v{Cc}, {sq(S_WS)}, {t1} offen sc1", opt=True)
    else:
        G.e(f"""
        s_lshr_b32 {t1}, s{S_HEAD}, 2
        s_lshl_b32 {t1}, {t1}, 1
        s_and_b32 {t2}, s{S_HEAD}, 3
        s_lshl_b32 {t2}, {t2}, 6
        s_add_u32 {t1}, {t1}, {t2}
        s_mul_i32 {t1}, {t1}, {MB_STRIDE}
        s_add_u32 {t1}, {t1}, s{S_MT}
        s_add_u32 {t1}, {t1}, {MB_OFF + 48}
        v_and_b32 v{Cc}, 3, v{V_L}
        v_lshlrev_b32 v{Cc}, 3, v{Cc}
        v_lshrrev_b32 v{A}, 2, v{V_L}
        v_add_u32 v{Cc}, v{Cc}, v{A}
        v_mul_u32_u24 v{Cc}, {MB_STRIDE}, v{Cc}
        v_mov_b32 v{A}, {CNT + cnt_off}
        s_mov_b64 exec, 0xff
        """, opt=True)
        G.e(f"buffer_store_byte v{B}, v{Cc}, {sq(S_WS)}, {t1} offen sc1", opt=True)
    G.e(f"s_mov_b64 exec, -1", opt=True)
    G.e(f"{lab}:")
    return G
def poll(lab, kind, D, A, who=None):
    G = Stream()
    if who is not None: G.e(f"s_cmp_lg_u32 s3, {who}\ns_cbranch_scc1 {lab}_ok")
    if kind == "init":
        setup = f"v_lshlrev_b32 v{A}, 2, v{V_L}\ns_mov_b32 {t2}, 0\ns_mov_b32 {t4}, 0x01010101"
        ld = f"buffer_load_dword v{D}, v{A}, {sq(S_DBG)}, {t2} offen sc1"
        cmp = f"v_cmp_ne_u32_e64 {M1}, {t4}, v{D}"
    else:
        base, mask = {"h": (0, 7), "o": (32, 3), "kv": (48, 1)}[kind]
        setup = f"v_and_b32 v{A}, {mask}, v{V_L}\nv_lshlrev_b32 v{A}, 2, v{A}\ns_mul_i32 {t2}, s2, {MB_STRIDE}\ns_add_u32 {t2}, {t2}, {MB_OFF + base}\ns_mov_b32 {t4}, 0x01010101"
        ld = f"buffer_load_dword v{D}, v{A}, {sq(S_WS)}, {t2} offen sc1"
        cmp = f"v_cmp_ne_u32_e64 {M1}, {t4}, v{D}"
    G.e(f"""
    {setup}
    s_mov_b32 {t3}, 0
    {lab}_loop:
    {ld}
    s_waitcnt vmcnt(0)
    {cmp}
    s_add_u32 {t3}, {t3}, 1
    s_cmp_eq_u64 {M1}, 0
    s_cbranch_scc1 {lab}_ok
    s_sleep {OPT.get('sleep', 4) if kind != 'init' else 16}
    s_cmp_lt_u32 {t3}, 0x8000
    s_cbranch_scc1 {lab}_loop
    """, opt=True)
    G.e(f"{lab}_ok:")
    return G

def tile_addrs(S, typ, AT, T):
    R, C, HH, NH = T + 1, T + 2, T + 3, T + 4
    S.e(f"""
    v_lshrrev_b32 v{HH}, 5, v{V_L}
    v_bfe_u32 v{NH}, v{V_L}, 4, 1
    v_bfe_u32 v{R}, v{V_L}, 2, 2
    v_and_b32 v{C}, 3, v{V_L}
    v_lshl_add_u32 v{T+5}, v{HH}, 3, v{R}
    v_lshlrev_b32 v{T+6}, 6, v{T+5}
    v_lshl_add_u32 v{T+8}, v{NH}, 2, v{C}
    v_add_u32 v{T+8}, s{S_ODD}, v{T+8}
    v_and_b32 v{T+8}, 7, v{T+8}
    v_lshl_add_u32 v{T+8}, v{T+8}, 3, v{T+6}
    """)
    if typ == "q":
        S.e(f"""
        v_add_u32 v{AT}, {W0 + 16384}, v{T+8}
        v_lshrrev_b32 v{T+6}, 1, v{C}
        v_and_b32 v{T+7}, 2, v{R}
        v_xor_b32 v{T+6}, v{T+6}, v{T+7}
        v_lshl_add_u32 v{T+6}, v{NH}, 2, v{T+6}
        v_lshlrev_b32 v{T+7}, 7, v{T+5}
        v_lshl_add_u32 v{T+7}, v{T+6}, 4, v{T+7}
        v_and_b32 v{T+6}, 1, v{C}
        v_lshl_add_u32 v{T+7}, v{T+6}, 3, v{T+7}
        v_lshl_add_u32 v{T+7}, v{NH}, 13, v{T+7}
        v_add_u32 v{AT+1}, {W0}, v{T+7}
        v_xor_b32 v{AT+2}, 32, v{AT+1}
        v_xor_b32 v{AT+3}, 64, v{AT+1}
        v_xor_b32 v{AT+4}, 0x60, v{AT+1}
        """)
    else:
        S.e(f"""
        v_add_u32 v{AT}, {W0}, v{T+8}
        v_lshl_add_u32 v{T+7}, v{C}, 3, v{T+6}
        v_mul_u32_u24 v{T+8}, 1056, v{NH}
        v_add_u32 v{AT+1}, v{T+7}, v{T+8}
        v_add_u32 v{AT+1}, {W0 + 2048}, v{AT+1}
        v_xor_b32 v{AT+2}, 32, v{AT+1}
        v_lshlrev_b32 v{T+6}, 5, v{T+5}
        v_lshl_add_u32 v{T+6}, v{C}, 3, v{T+6}
        v_mul_u32_u24 v{T+7}, 2176, v{NH}
        v_add_u32 v{AT+3}, v{T+6}, v{T+7}
        v_add_u32 v{AT+3}, {W0 + 16384}, v{AT+3}
        v_xor_b32 v{AT+4}, 0x80, v{AT+3}
        """)

def tile_read_args(typ, t, s, e):
    if typ == "q":
        return (0, s*1024 + e*256) if t == 0 else (t, s*2048 + e*512)
    if t == 0: return (0, s*4096 + e*256)
    if t == 1: return (0, s*4096 + 1024 + e*256)
    if t == 2: return (3 + e, s*512)
    return (t - 2, s*4096 + e*256)

def pk(S, op, d, srcs, neg=None):
    ops = []; lo = []; hi = []
    for kind, r in srcs:
        if kind == "p": assert r % 2 == 0; ops.append(vr(r, 2)); lo.append(0); hi.append(1)
        else: ops.append(vr(r & ~1, 2)); lo.append(r & 1); hi.append(r & 1)
    assert d % 2 == 0
    txt = f"v_pk_{op}_f32 {vr(d, 2)}, " + ", ".join(ops)
    if any(lo): txt += " op_sel:[" + ",".join(map(str, lo)) + "]"
    if not all(hi): txt += " op_sel_hi:[" + ",".join(map(str, hi)) + "]"
    if neg: txt += f" neg_lo:[{','.join(map(str, neg))}] neg_hi:[{','.join(map(str, neg))}]"
    S.e(txt)
    S[-1].opsel = False

def scale16(S, a):
    for i in range(0, 16, 2): pk(S, "mul", a + i, [("p", a + i), ("b", V_RINV)])

def geglu(S, a, T, unit_sgpr, unit_add):
    R = range(0, 8, 2)
    for i in R: pk(S, "mul", T + i, [("p", a + i), ("p", a + i)])
    for i in R: pk(S, "fma", T + i, [("p", T + i), ("b", V_C1), ("b", V_C0)])
    for i in R: pk(S, "mul", T + i, [("p", T + i), ("p", a + i)])
    for i in range(8): S.e(f"v_exp_f32 v{T+i}, v{T+i}")
    for i in R: pk(S, "mul", a + i, [("p", a + i), ("p", a + 8 + i)])
    for i in R: pk(S, "fma", T + i, [("p", T + i), ("b", V_S2), ("b", V_S2)])
    for i in range(8): S.e(f"v_rcp_f32 v{T+i}, v{T+i}")
    for i in R: pk(S, "mul", a + i, [("p", a + i), ("p", T + i)])
    for i in range(4): S.e(f"v_cvt_pk_bf16_f32 v{T+8+i}, v{a+2*i}, v{a+2*i+1}")
    S.e(f"s_add_u32 s{S_G}, s{unit_sgpr}, {unit_add * 1024}")
    S.e(f"buffer_store_dwordx4 {vr(T+8)}, v{V_L16}, {sq(S_WS)}, s{S_G} offen{OPT['hf_flags']}", tag="hst")

def softmax14(S, P, E, T):
    N = 14; R = range(0, N, 2)
    for i in range(7): S.e(f"v_cvt_pk_bf16_f32 v{E+i}, v{P+2*i}, v{P+2*i+1}")
    for i in range(7): S.e(f"v_lshlrev_b32 v{P+2*i}, 16, v{E+i}\nv_and_b32 v{P+2*i+1}, 0xffff0000, v{E+i}")
    L = T + 4
    S.e(f"v_mov_b32 v{L}, {f32(1.4426950408889634)}")
    MX, MN = T, T + 1
    S.e(f"v_max3_f32 v{MX}, v{P}, v{P+1}, v{P+2}\nv_min3_f32 v{MN}, v{P}, v{P+1}, v{P+2}")
    for i in range(3, 13, 2):
        S.e(f"v_max3_f32 v{MX}, v{MX}, v{P+i}, v{P+i+1}\nv_min3_f32 v{MN}, v{MN}, v{P+i}, v{P+i+1}")
    S.e(f"v_max_f32 v{MX}, v{MX}, v{P+13}\nv_min_f32 v{MN}, v{MN}, v{P+13}")
    S.e(f"v_mov_b32 v{T+2}, v{MX}\nv_mov_b32 v{T+3}, v{MN}\nv_permlane32_swap_b32 v{T+2}, v{MX}\nv_permlane32_swap_b32 v{T+3}, v{MN}")
    S.e(f"v_max_f32 v{MX}, v{MX}, v{T+2}\nv_min_f32 v{MN}, v{MN}, v{T+3}")
    pk(S, "mul", T, [("p", T), ("b", L)])
    for i in R: pk(S, "fma", E + i, [("p", P + i), ("b", L), ("b", MX)], neg=[0, 0, 1])
    for i in R: pk(S, "fma", P + i, [("p", P + i), ("b", L), ("b", MN)], neg=[1, 0, 0])
    for i in range(N): S.e(f"v_exp_f32 v{E+i}, v{E+i}")
    for i in range(N): S.e(f"v_exp_f32 v{P+i}, v{P+i}")
    pk(S, "add", T, [("p", E), ("p", E + 2)]); pk(S, "add", T + 2, [("p", P), ("p", P + 2)])
    for i in range(4, N, 2):
        pk(S, "add", T, [("p", T), ("p", E + i)]); pk(S, "add", T + 2, [("p", T + 2), ("p", P + i)])
    SP, SM = T, T + 1
    S.e(f"v_add_f32 v{SP}, v{T}, v{T+1}\nv_add_f32 v{SM}, v{T+2}, v{T+3}")
    S.e(f"v_mov_b32 v{T+2}, v{SP}\nv_mov_b32 v{T+3}, v{SM}\nv_permlane32_swap_b32 v{T+2}, v{SP}\nv_permlane32_swap_b32 v{T+3}, v{SM}")
    pk(S, "add", T, [("p", T), ("p", T + 2)])
    S.e(f"v_rcp_f32 v{SP}, v{SP}\nv_rcp_f32 v{SM}, v{SM}")
    for i in R: pk(S, "mul", E + i, [("p", E + i), ("b", SP)])
    for i in R: pk(S, "mul", P + i, [("p", P + i), ("b", SM)])
    for i in range(7): S.e(f"v_cvt_pk_bf16_f32 v{E+i}, v{E+2*i}, v{E+2*i+1}")
    for i in range(7): S.e(f"v_cvt_pk_bf16_f32 v{E+8+i}, v{P+2*i}, v{P+2*i+1}")
    S.e(f"v_mov_b32 v{E+7}, 0\nv_mov_b32 v{E+15}, 0")

def stats_consts(S):
    S.e(f"""
    v_mov_b32 v{BP}, v{V_RINV}
    v_mov_b32 v{BP+1}, v{V_RINV}
    v_mov_b32 v{BP+2}, v{V_RINV}
    v_mov_b32 v{BP+3}, v{V_RINV}
    v_rcp_f32 v{V_RINV}, v{V_SD}
    v_mul_f32 v{V_S2}, v{V_SD}, v{V_SD}
    v_mul_f32 v{V_C0}, {f32(-2.302208198)}, v{V_RINV}
    v_mul_f32 v{V_C1}, v{V_RINV}, v{V_RINV}
    v_mul_f32 v{V_C1}, v{V_C1}, v{V_C0}
    v_mul_f32 v{V_C1}, {f32(0.044715)}, v{V_C1}
    """)


def tagpoll(G, lab, A, D, soff, opt=False, first_issued=False, sleep=None):
    if first_issued:
        G.e(f"v_cmp_eq_u32_e64 {M1}, -1, v{D}\ns_mov_b32 {t3}, 0\ns_cmp_eq_u64 {M1}, 0\ns_cbranch_scc1 {lab}_ok")
        opt = True
    else:
        G.e(f"s_mov_b32 {t3}, 0")
    G.e(f"""
    {lab}_loop:
    buffer_load_dword v{D}, v{A}, {sq(S_WS)}, {soff} offen sc1
    s_waitcnt vmcnt(0)
    v_cmp_eq_u32_e64 {M1}, -1, v{D}
    s_add_u32 {t3}, {t3}, 1
    s_cmp_eq_u64 {M1}, 0
    s_cbranch_scc1 {lab}_ok
    s_sleep {sleep if sleep else OPT.get('sleep', 4)}
    s_cmp_lt_u32 {t3}, 0x8000
    s_cbranch_scc1 {lab}_loop
    """, opt=opt)
    G.e(f"{lab}_ok:")

def umax_tree(G, regs, T, opt=False):
    G.e(f"v_max3_u32 v{T}, v{regs[0]}, v{regs[1]}, v{regs[2]}", opt=opt)
    i = 3
    while i + 1 < len(regs):
        G.e(f"v_max3_u32 v{T}, v{T}, v{regs[i]}, v{regs[i+1]}", opt=opt); i += 2
    if i < len(regs): G.e(f"v_max_u32 v{T}, v{T}, v{regs[i]}", opt=opt)

def prologue():
    S = Stream()
    S.e(f"""
    s_cmp_ge_u32 s2, 256
    s_cbranch_scc1 K_END
    {'s_memrealtime s[92:93]' if OPT.get('stamps') else ''}
    s_load_dwordx16 s[4:19], s[0:1], 0
    s_load_dwordx4 s[20:23], s[0:1], 72
    s_load_dwordx2 s[{S_OUT}:{S_OUT+1}], s[0:1], 64
    v_lshrrev_b32 v{PT}, 6, v0
    v_and_b32 v{V_L}, 63, v0
    v_readfirstlane_b32 s3, v{PT}
    v_lshlrev_b32 v{V_L16}, 4, v{V_L}
    v_mov_b32 v{V_Z}, 0
    s_and_b32 {t0}, s2, 7
    s_lshr_b32 {t1}, s2, 3
    s_and_b32 s{S_MT}, {t0}, 1
    s_lshl_b32 s{S_MT}, s{S_MT}, 2
    s_and_b32 {t2}, {t1}, 3
    s_add_u32 s{S_MT}, s{S_MT}, {t2}
    s_lshr_b32 s{S_C4}, {t0}, 1
    s_lshr_b32 {t1}, {t1}, 2
    s_and_b32 s{S_TYPE}, {t1}, 1
    s_lshr_b32 s{S_HL}, {t1}, 1
    s_lshl_b32 s{S_HEAD}, s{S_C4}, 2
    s_add_u32 s{S_HEAD}, s{S_HEAD}, s{S_HL}
    s_and_b32 s{S_ODD}, s{S_HEAD}, 1
    s_lshl_b32 {t2}, s{S_MT}, 2
    s_add_u32 {t2}, {t2}, s{S_C4}
    s_lshl_b32 {t2}, {t2}, 3
    s_add_u32 {t2}, {t2}, {t1}
    s_lshl_b32 {t2}, {t2}, 3
    s_and_b32 {t3}, s3, 7
    s_add_u32 s{S_SROW}, {t2}, {t3}
    s_mov_b32 s{S_HH}, 0
    s_mov_b32 s{S_HH+1}, -1
    s_mul_i32 {t0}, s{S_C4}, 896
    s_lshl_b32 {tm}, s{S_HL}, 7
    s_add_u32 {t3}, {t0}, {tm}
    s_add_u32 {t0}, {t0}, 512
    s_mul_i32 {t1}, s{S_HL}, 3
    s_and_b32 {t2}, s{S_HL}, 1
    s_add_u32 {t5}, {t1}, {t2}
    s_lshl_b32 {t2}, {t2}, 1
    s_add_u32 {t1}, {t1}, 2
    s_sub_u32 {t1}, {t1}, {t2}
    s_lshl_b32 {t1}, {t1}, 5
    s_add_u32 {t1}, {t1}, {t0}
    s_lshl_b32 {t5}, {t5}, 5
    s_add_u32 {t0}, {t0}, {t5}
    s_cmp_eq_u32 s{S_TYPE}, 1
    s_cselect_b32 s{S_U0}, {t1}, {t3}
    s_cselect_b32 s{S_U12}, {t0}, {t3}
    s_cmp_lt_u32 s3, 8
    s_cbranch_scc1 K_comp
    """)
    return S

def p2_ids(S):
    S.e(f"""
    s_and_b32 {t0}, s2, 7
    s_lshr_b32 {t1}, s2, 3
    s_and_b32 {t2}, {t0}, 1
    s_lshl_b32 {t2}, {t2}, 2
    s_lshr_b32 {t0}, {t0}, 1
    s_add_u32 s{S_MT2}, {t0}, {t2}
    s_lshl_b32 s{S_M64}, s{S_MT2}, 2
    s_and_b32 {t2}, {t1}, 3
    s_add_u32 s{S_M64}, s{S_M64}, {t2}
    s_lshr_b32 s{S_N64}, {t1}, 2
    """)
def p2_a_voffsets(S, VD, VO, VOM, T):
    S.e(f"""
    v_lshrrev_b32 v{T}, 3, v{V_L}
    v_and_b32 v{T+1}, 7, v{V_L}
    v_bfe_u32 v{T+2}, v{V_L}, 4, 1
    v_lshlrev_b32 v{T+2}, 2, v{T+2}
    v_xor_b32 v{T+1}, v{T+1}, v{T+2}
    s_lshl_b32 {t0}, s{S_N64}, 7
    v_lshlrev_b32 v{T+1}, 4, v{T+1}
    v_add_u32 v{T+1}, {t0}, v{T+1}
    v_mul_u32_u24 v{VD}, 896, v{T}
    v_add_u32 v{VD}, v{VD}, v{T+1}
    """)
    if VO is not None:
        S.e(f"""
        v_lshrrev_b32 v{T+2}, 2, v{T}
        v_and_b32 v{T+3}, 3, v{T}
        v_mad_u32_u24 v{T+2}, v{T+2}, 14, v{T+3}
        v_mul_u32_u24 v{VO}, 896, v{T+2}
        v_add_u32 v{VO}, v{VO}, v{T+1}
        v_cmp_lt_u32_e64 {M1}, 1, v{T+3}
        v_mov_b32 v{T+2}, 0x7f000000
        v_cndmask_b32_e64 v{VOM}, v{VO}, v{T+2}, {M1}
        """)

def hsync(S, lab, cnt_off, target, A, B):
    S.wait_lgkm()
    S.e(f"""
    v_mov_b32 v{A}, {CNT + cnt_off}
    v_mov_b32 v{B}, 1
    s_mov_b64 exec, 1
    ds_add_u32 v{A}, v{B}
    s_mov_b64 exec, -1
    {lab}:
    ds_read_b32 v{B}, v{A}
    s_waitcnt lgkmcnt(0)
    v_readfirstlane_b32 {t1}, v{B}
    s_cmp_lt_u32 {t1}, {target}
    s_cbranch_scc1 {lab}
    """)

def helper_head():
    S = Stream(); T = PT
    S.e("K_helper:")
    S.e(f"s_setprio {OPT.get('hprio', 3)}")
    S.e(f"""
    s_sub_u32 s{S_H}, s3, 8
    s_lshl_b32 {t0}, s{S_MT}, 2
    s_add_u32 {t0}, {t0}, s{S_H}
    s_mul_i32 s{S_XROW}, {t0}, {64*896}
    s_mul_i32 s{S_AREA}, s{S_H}, {2*AREA}
    v_lshrrev_b32 v{T+7}, 3, v{V_L}
    v_mul_u32_u24 v{T}, 896, v{T+7}
    v_and_b32 v{T+8}, 7, v{V_L}
    v_lshrrev_b32 v{T+2}, 4, v{V_L}
    v_xor_b32 v{T+1}, v{T+8}, v{T+2}
    v_lshl_add_u32 v4, v{T+1}, 4, v{T}
    v_xor_b32 v5, 64, v4
    s_mul_i32 {t1}, s{S_HEAD}, 56
    s_lshl_b32 {t2}, s{S_ODD}, 3
    s_sub_u32 {t1}, {t1}, {t2}
    v_lshrrev_b32 v{T}, 2, v{V_L}
    v_and_b32 v{T+1}, 3, v{V_L}
    v_mul_u32_u24 v{T+4}, 2688, v{T}
    v_lshl_add_u32 v{T+4}, v{T+1}, 4, v{T+4}
    s_mul_i32 {tm}, s{S_H}, {16*2688}
    s_add_u32 {t1}, {t1}, {tm}
    v_add_u32 v6, {t1}, v{T+4}
    s_waitcnt lgkmcnt(0)
    """)
    srd(S, S_X, 4, 2048 * 896); srd(S, S_WQ, 6, 448 * 2688); srd(S, S_WG, 14, 448 * 3584); srd(S, S_WU, 16, 448 * 3584)
    S.e(f"s_cmp_eq_u32 s{S_TYPE}, 1\ns_cbranch_scc1 K_hkv")
    return S

def helper(typ):
    q = typ == "q"
    S = Stream(); T = PT
    S.e(f"K_h{typ}:")
    global HST
    HST = Stamper(STAMPR); HST.n = 1; HST.names = ["start"]
    V_XE, V_XO, V_DQ, V_DG, V_DU, V_DS = 4, 5, 6, 7, 8, 9
    V_AC = 10; V_PF = 16
    CA = 18; CU = 23; CT = 34
    if q:
        S.e(f"""
        v_bfe_u32 v{T+2}, v{V_L}, 4, 1
        v_lshlrev_b32 v{T+2}, 1, v{T+2}
        v_xor_b32 v{T+2}, v{T+2}, v{T+8}
        v_mul_u32_u24 v{T+3}, 3584, v{T+7}
        v_lshl_add_u32 v{T+2}, v{T+2}, 4, v{T+3}
        s_mul_i32 {tm}, s{S_H}, {16*3584}
        s_add_u32 {tm}, {tm}, s{S_U0}
        v_add_u32 v{V_DG}, {tm}, v{T+2}
        v_xor_b32 v{V_DU}, 64, v{V_DG}
        """)
    else:
        S.e(f"""
        v_mul_u32_u24 v{T+3}, 3584, v{T}
        v_lshl_add_u32 v{V_DG}, v{T+1}, 4, v{T+3}
        s_mul_i32 {tm}, s{S_H}, {16*3584}
        s_add_u32 {tm}, {tm}, s{S_U12}
        v_add_u32 v{V_DG}, {tm}, v{V_DG}
        v_xor_b32 v{V_DU}, 32, v{V_DG}
        s_lshr_b32 {t2}, s{S_H}, 1
        s_cmp_eq_u32 {t2}, 0
        s_cselect_b32 s{S_D1}, s14, s16
        s_cselect_b32 s{S_D1+1}, s15, s17
        s_mov_b32 s{S_D1+2}, {448*3584}
        s_mov_b32 s{S_D1+3}, 0x20000
        s_lshl_b32 {t2}, {t2}, 2
        v_lshrrev_b32 v{T+5}, 1, v{V_L}
        v_xor_b32 v{T+5}, {t2}, v{T+5}
        v_mul_u32_u24 v{T+5}, 3584, v{T+5}
        v_and_b32 v{T+6}, 1, v{V_L}
        v_lshl_add_u32 v{T+5}, v{T+6}, 4, v{T+5}
        s_and_b32 {t2}, s{S_H}, 1
        s_mul_i32 {t2}, {t2}, {32*3584}
        s_add_u32 {t2}, {t2}, s{S_U0}
        v_add_u32 v{V_DS}, {t2}, v{T+5}
        """)
    S.e(f"s_lshl_b32 s{S_D0L}, s{S_H}, 10\ns_add_u32 s{S_D0L}, s{S_D0L}, {W0}\ns_lshl_b32 s{S_G}, s{S_H}, {11 if q else 12}\ns_add_u32 s{S_G}, s{S_G}, {W0}")
    def dma(c, lo=0, hi=13):
        sb = (c % 3) * WS_
        L = []
        def one(m0expr, soff, v, srdreg): L.append((m0expr, soff, v, srdreg))
        if q:
            one(f"s{S_D0L}, {sb + 16384}", f"s_mov_b32 {tm}, {c*172032}", V_DQ, S_WQ)
            for rg in range(2):
                one(f"s{S_G}, {sb + rg*1024}", f"s_mov_b32 {tm}, {c*229376 + rg*8*3584}", V_DG, S_WG)
                one(f"s{S_G}, {sb + 8192 + rg*1024}", f"s_mov_b32 {tm}, {c*229376 + rg*8*3584}", V_DU, S_WU)
        else:
            one(f"s{S_G}, {sb}", f"s_mov_b32 {tm}, {c*172032 + 896}", V_DQ, S_WQ)
            one(f"s{S_G}, {sb + 1024}", f"s_mov_b32 {tm}, {c*172032 + 1792}", V_DQ, S_WQ)
            one(f"s{S_G}, {sb + 2048}", f"s_mov_b32 {tm}, {c*229376}", V_DG, S_WG)
            one(f"s{S_G}, {sb + 3072}", f"s_mov_b32 {tm}, {c*229376}", V_DU, S_WU)
            one(f"s{S_D0L}, {sb + 16384}", f"s_mov_b32 {tm}, {c*229376}", V_DS, S_D1)
        for i in range(8):
            wv, qq = i >> 2, i & 3
            one(f"s{S_AREA}, {wv*AREA + (c % 3)*4096 + qq*1024}", f"s_add_u32 {tm}, s{S_XROW}, {(wv*32 + qq*8)*896 + c*128}", V_XO if qq & 1 else V_XE, S_X)
        for (m0expr, soff, v, srdreg) in L[lo:hi]:
            S.e(f"s_add_u32 m0, {m0expr}\n{soff}")
            fl = OPT.get("x_flags", "") if srdreg == S_X else OPT.get("w_flags", "")
            S.e(f"buffer_load_dwordx4 v{v}, {sq(srdreg)}, {tm} offen{fl} lds", tag=f"d{c}")
    plan = [int(x) for x in OPT.get("dplan", "16,14,14,16,16,16").split(",")]
    pos = [0]
    def issue(n, limit_chunk):
        while n > 0 and pos[0] < 91 and pos[0] // 13 <= limit_chunk:
            c, i = divmod(pos[0], 13)
            dma(c, i, i + 1); pos[0] += 1; n -= 1
    issue(13, 2)
    tile_addrs(S, typ, V_AC, 60)
    for t in range(5):
        stride = (1024 if t == 0 else 2048) if q else (512 if t >= 3 else 4096)
        S.e(f"s_mul_i32 {t0}, s{S_H}, {stride}\nv_add_u32 v{V_AC+t}, {t0}, v{V_AC+t}")
    for i in range(5): S.e(f"v_mov_b32 v{CA+i}, 0")
    issue(plan[0] - 13, 2)
    def colsum_rd(c):
        for t in range(5):
            for e in range(2):
                a, imm = tile_read_args(typ, t, 0, e)
                S.e(f"ds_read_b64_tr_b16 {vr(CT + 20*(c % 5) + 4*t + 2*e, 2)}, v{V_AC+a} offset:{(c % 3)*WS_ + imm}")
    hb = [0]
    CM = OPT.get("csmode", "mfma")
    if CM == "mfma":
        for i in range(20): S.e(f"v_mov_b32 v{140+i}, 0")
        S.e("v_mov_b32 v134, 0x3f803f80\nv_mov_b32 v135, 0x3f803f80")
    def colsum_add(nhalf):
        if CM != "valu":
            for _ in range(nhalf):
                c, hf = hb[0] >> 1, hb[0] & 1; hb[0] += 1
                for t in range(5):
                    src = CT + 20*(c % 5) + 4*t + 2*hf
                    if CM == "mfma": S.e(f"v_mfma_f32_4x4x4_16b_bf16 {vr(140+4*t)}, v[134:135], {vr(src, 2)}, {vr(140+4*t)}")
                    else: S.e(f"v_dot2c_f32_bf16 v{CA+t}, 0x3f803f80, v{src}")
                if CM == "dot":
                    for t in range(5): S.e(f"v_dot2c_f32_bf16 v{CA+t}, 0x3f803f80, v{CT + 20*(c % 5) + 4*t + 2*hf + 1}")
            return
        for _ in range(nhalf):
            c, hf = hb[0] >> 1, hb[0] & 1; hb[0] += 1
            for j in (2*hf, 2*hf + 1):
                src = CT + 20*(c % 5) + j
                for t in range(5): S.e(f"v_lshlrev_b32 v{CU+t}, 16, v{src + 4*t}")
                for t in range(5): S.e(f"v_and_b32 v{CU+5+t}, 0xffff0000, v{src + 4*t}")
                for t in range(5): S.e(f"v_add_f32 v{CA+t}, v{CA+t}, v{CU+t}")
                for t in range(5): S.e(f"v_add_f32 v{CA+t}, v{CA+t}, v{CU+5+t}")
    S.wait_vm("d0"); S.e("s_barrier")
    colsum_rd(0); issue(plan[1], 2)
    S.wait_lgkm(); S.wait_vm("d1"); S.e("s_barrier")
    colsum_rd(1); issue(plan[2], 3)
    srd(S, S_WS, 22, WS_SIZE); srd(S, S_DBG, 20, 256); srd(S, S_WO, 8, 16 * 1568); srd(S, S_WD, 18, 1792 * 896)
    sched = dict(zip(range(2, 7), [int(x) for x in OPT.get('sched', '4,2,2,2,4').split(',')]))
    for c in range(2, 7):
        if c == 6: S.extend(poll(f"K_h{typ}_pst", "init", V_TMP, 17, who=8))
        F = (lambda n: HST(S, n, fine=True)) if (c in (3, 4) and OPT.get('hfine')) else (lambda n: None)
        F("pre")
        S.wait_lgkm(); S.wait_vm(f"d{c}")
        F("landed")
        S.e("s_barrier")
        F("bar")
        issue(plan[c + 1] if c + 1 < len(plan) else 99, c + 2)
        assert pos[0] >= min(91, 13 * (c + 2)), (c, pos[0])
        F("dma")
        if c == 2:
            for i in range(2):
                S.e(f"""
                v_lshrrev_b32 v{T+24}, 4, v{V_L}
                s_lshl_b32 {t0}, s{S_H}, 3
                s_add_u32 {t0}, {t0}, {4*i}
                v_add_u32 v{T+24}, {t0}, v{T+24}
                v_bfe_u32 v{T+25}, v{V_L}, 3, 1
                v_and_b32 v{T+26}, 7, v{V_L}
                v_mad_u32_u24 v{T+25}, v{T+25}, 7, v{T+26}
                v_mad_u32_u24 v{T+25}, v{T+24}, 14, v{T+25}
                v_lshlrev_b32 v{T+25}, 2, v{T+25}
                v_cmp_eq_u32_e64 {M1}, 7, v{T+26}
                s_cmp_eq_u32 {t0}, 28
                s_cselect_b64 {M1}, -1, {M1}
                v_mov_b32 v{T+26}, 0x7fffff00
                v_cndmask_b32_e64 v{T+25}, v{T+25}, v{T+26}, {M1}
                s_mul_i32 {t1}, s{S_HEAD}, 1568
                s_lshl_b32 {t0}, {t0}, 6
                s_add_u32 m0, {t0}, {WPHI}
                """)
                S.e(f"buffer_load_dword v{T+25}, {sq(S_WO)}, {t1} offen lds", tag="phi")
        if c == int(OPT.get("pfc", 6)) and OPT["prefetch"]:
            S.e(f"""
            s_lshr_b32 {t0}, s2, 3
            s_lshl_b32 {t0}, {t0}, 2
            s_add_u32 {t0}, {t0}, s{S_H}
            s_lshl_b32 {t0}, {t0}, 14
            s_mov_b32 {t3}, {1792*896}
            s_cmp_lt_u32 {t0}, {t3}
            s_cselect_b32 s{S_PF}, s18, s10
            s_cselect_b32 s{S_PF+1}, s19, s11
            s_cselect_b32 s{S_PF+2}, {t3}, {448*896}
            s_mov_b32 s{S_PF+3}, 0x20000
            s_cselect_b32 {t3}, 0, {t3}
            s_sub_u32 {t0}, {t0}, {t3}
            v_lshlrev_b32 v{V_PF}, 7, v{V_L}
            s_add_u32 {t1}, {t0}, 0x2000
            """)
            S.e(f"buffer_load_dword v{T+27}, v{V_PF}, {sq(S_PF)}, {t0} offen\nbuffer_load_dword v{T+28}, v{V_PF}, {sq(S_PF)}, {t1} offen", tag="pf")
        if c >= 5:
            colsum_rd(c); colsum_add(sched[c])
        else:
            colsum_rd(c); colsum_add(sched[c])
    assert hb[0] == 14
    if CM == "mfma":
        for t in range(5): S.e(f"v_mov_b32 v{CA+t}, v{140+4*t}")
    S.e(f"s_lshl_b32 {t0}, s{S_H}, 2\ns_add_u32 {t0}, {t0}, {CSP}\nv_add_u32 v{T}, {t0}, v{V_L16}")
    for t in range(5): S.e(f"v_cvt_pk_bf16_f32 v{T+1+t}, v{CA+t}, v{CA+t}")
    for t in range(5): S.e(f"v_lshlrev_b32 v{T+1+t}, 16, v{T+1+t}")
    for t in range(5): S.e(f"v_sub_f32 v{T+1+t}, v{CA+t}, v{T+1+t}")
    for t in range(5): S.e(f"v_cvt_pk_bf16_f32 v{T+1+t}, v{CA+t}, v{T+1+t}")
    for t in range(5): S.e(f"ds_write_b32 v{T}, v{T+1+t} offset:{t*1024}")
    S.wait_vm("phi"); S.wait_lgkm()
    return S

def hpost(typ):
    q = typ == "q"
    S = Stream(); T = PT
    S.e(f"K_hpost_{typ}:")
    st = HST
    V_WD = 18
    p2_ids(S)
    p2_a_voffsets(S, V_WD, None, None, 60)
    S.e(f"""
    s_mul_i32 s{S_AREA}, s{S_H}, {2*REG2}
    s_and_b32 {t0}, s{S_H}, 1
    s_lshl_b32 {t0}, {t0}, 2
    s_lshr_b32 {t1}, s{S_H}, 1
    s_add_u32 {t0}, {t0}, {t1}
    s_mul_i32 s{S_XROW}, {t0}, {14*16*896}
    s_cmp_ge_u32 s2, 224
    s_cselect_b32 {t0}, 0x40000000, 0
    s_add_u32 s{S_XROW}, s{S_XROW}, {t0}
    """)
    def B1():
        S.e(f"s_barrier\ns_setprio {OPT.get('hprio2', 0)}")
        st(S, "B1")
    def adma(lo, hi):
        for i in range(lo, hi):
            for wv in range(2):
                for u in range(2):
                    S.e(f"s_add_u32 m0, s{S_AREA}, {wv*REG2 + i*2048 + u*1024}\ns_add_u32 {tm}, s{S_XROW}, {((wv*28 + i)*16 + 8*u)*896}")
                    S.e(f"buffer_load_dwordx4 v{V_WD}, {sq(S_WD)}, {tm} offen lds", tag="a1")
    if q:
        KO = 4; U = 5; PH = 100
        S.e(f"""
        s_lshl_b32 {t0}, s{S_H}, 11
        v_add_u32 v{KO}, {t0}, v{V_L16}
        v_and_b32 v{U+3}, 7, v{V_L}
        v_lshlrev_b32 v{U+3}, 13, v{U+3}
        v_add_u32 v{U+3}, 0x1e80, v{U+3}
        s_lshl_b32 {t0}, s{S_H}, 10
        s_add_u32 {t0}, {t0}, {KVF}
        v_add_u32 v{U}, {t0}, v{V_L16}
        v_add_u32 v{U+1}, {KVF}, v{V_L16}
        v_add_u32 v{U+2}, s{S_AREA}, v{V_L16}
        s_lshl_b32 {t0}, s{S_MT}, 2
        s_add_u32 {t0}, {t0}, s{S_H}
        s_mul_i32 s{S_HFB}, {t0}, {2*NKS*1024}
        s_lshl_b32 {t0}, s{S_HEAD}, 11
        s_add_u32 s{S_HFB}, s{S_HFB}, {t0}
        s_add_u32 s{S_HFB}, s{S_HFB}, {112*1024}
        s_lshl_b32 s{S_G}, s{S_HEAD}, 16
        s_add_u32 s{S_G}, s{S_G}, {KVP_OFF}
        """)
        B1(); adma(0, 6)
        S.wait_vm("a1")
        S.e(f"v_mov_b32 v12, {CNT + 20}\nv_mov_b32 v13, 1\ns_mov_b64 exec, 1\nds_add_u32 v12, v13\ns_mov_b64 exec, -1")
        S.e("s_barrier")
        st(S, "B2")
        for wv in range(2):
            for k in range(4): S.e(f"ds_read_b128 {vr(PH + 16*wv + 4*k)}, v{U+2} offset:{wv*REG2 + PKO + k*1024}")
        S.wait_lgkm()
        S.e(f"v_mov_b32 v12, {CNT + 12}\nv_mov_b32 v13, 1\ns_mov_b64 exec, 1\nds_add_u32 v12, v13\ns_mov_b64 exec, -1\ns_setprio 3")
        S.e(f"v_mov_b32 v14, {CNT + 16}\ns_cmp_lg_u32 s3, 8\ns_cbranch_scc1 K_hq_spin")
        G = Stream(); tagpoll(G, "K_hq_pkv", U + 3, V_TMP, f"s{S_G}", opt=True, sleep=int(OPT.get("sleepkv", 8)))
        for x in G: x.opt = True
        S.extend(G)
        S.e(f"ds_write_b32 v14, v13\ns_branch K_hq_go", opt=True)
        S.e(f"""
        K_hq_spin:
        s_sleep 2
        ds_read_b32 v13, v14
        s_waitcnt lgkmcnt(0)
        v_readfirstlane_b32 {t1}, v13
        s_cmp_eq_u32 {t1}, 0
        s_cbranch_scc1 K_hq_spin
        """, opt=True)
        S.e("K_hq_go:")
        st(S, "kvrdy")
        KL = 20
        S.e(f"s_mov_b32 {t4}, 0\nK_hq_gather:\ns_mov_b32 {t0}, s{S_G}")
        for i in range(8):
            for e in range(2):
                S.e(f"buffer_load_dwordx4 {vr(KL + 8*i + 4*e)}, v{KO}, {sq(S_WS)}, {t0} offen offset:{e*1024} sc1")
            if i < 7: S.e(f"s_add_u32 {t0}, {t0}, 8192")
        umax_tree(S, list(range(KL, KL + 64)), V_TMP)
        S.e(f"""
        v_cmp_eq_u32_e64 {M1}, -1, v{V_TMP}
        s_add_u32 {t4}, {t4}, 1
        s_cmp_eq_u64 {M1}, 0
        s_cbranch_scc1 K_hq_gok
        s_cmp_lt_u32 {t4}, 0x1000
        s_cbranch_scc1 K_hq_gather
        K_hq_gok:
        """)
        for step in (1, 2, 4):
            for i in range(0, 8, 2*step):
                for j in range(0, 8, 2): pk(S, "add", KL+8*i+j, [("p", KL+8*i+j), ("p", KL+8*(i+step)+j)])
        for j in range(4): S.e(f"v_cvt_pk_bf16_f32 v{KL+8+j}, v{KL+2*j}, v{KL+2*j+1}")
        S.e(f"ds_write_b128 v{U}, {vr(KL+8)}")
        hsync(S, "K_hq_sync", 0, 4, 12, 13)
        st(S, "kvf")
        KF = 20; OO = [36, 52]; G2 = 68; RR = [84, 92]
        for k in range(4): S.e(f"ds_read_b128 {vr(KF + 4*k)}, v{U+1} offset:{k*1024}")
        for wv in range(2):
            for k in range(4): S.e(f"{MF} {vr(OO[wv],16)}, {vr(KF + 4*k)}, {vr(PH + 16*wv + 4*k)}, {'0' if k == 0 else vr(OO[wv],16)}")
        for wv in range(2):
            O = OO[wv]; R = RR[wv]
            bf16r(S, G2, f"v{O+14}")
            S.e(f"v_add_f32 v{G2}, {f32(1e-6)}, v{G2}")
            bf16r(S, G2, f"v{G2}")
            S.e(f"v_rcp_f32 v{G2}, v{G2}")
            for i in range(7): S.e(f"v_cvt_pk_bf16_f32 v{G2+1+i}, v{O+2*i}, v{O+2*i+1}")
            for i in range(7): S.e(f"v_lshlrev_b32 v{O+2*i}, 16, v{G2+1+i}\nv_and_b32 v{O+2*i+1}, 0xffff0000, v{G2+1+i}")
            for i in range(0, 14, 2): pk(S, "mul", O + i, [("p", O + i), ("b", G2)])
            for i in range(7): S.e(f"v_cvt_pk_bf16_f32 v{R+i}, v{O+2*i}, v{O+2*i+1}")
            S.e(f"v_mov_b32 v{R+7}, 0\ns_add_u32 {t0}, s{S_HFB}, {wv*NKS*1024}")
            S.e(f"buffer_store_dwordx4 {vr(R)}, v{V_L16}, {sq(S_WS)}, {t0} offen sc1\nbuffer_store_dwordx4 {vr(R+4)}, v{V_L16}, {sq(S_WS)}, {t0} offen offset:1024 sc1", tag="ost")
    else:
        X = 20; KA = 4; KB = 10
        S.e(f"""
        v_lshrrev_b32 v{X}, 4, v{V_L}
        v_bfe_u32 v{X+1}, v{V_L}, 2, 2
        v_lshl_add_u32 v{X}, v{X}, 3, v{X+1}
        v_bfe_u32 v{X+2}, v{V_L}, 1, 1
        s_lshl_b32 {t0}, s{S_H}, 1
        v_add_u32 v{X+4}, {t0}, v{X+2}
        v_xor_b32 v{X+4}, v{X+4}, v{X+1}
        v_lshlrev_b32 v{X+3}, 7, v{X}
        v_lshl_add_u32 v{X+3}, v{X+4}, 4, v{X+3}
        v_and_b32 v{X+5}, 1, v{V_L}
        v_lshl_add_u32 v{KA}, v{X+5}, 3, v{X+3}
        v_add_u32 v{KA}, {PKO}, v{KA}
        v_xor_b32 v{KA+1}, 64, v{KA}
        v_lshrrev_b32 v{X+4}, 1, v{X+1}
        v_xor_b32 v{X+4}, v{X+4}, v{X+2}
        v_lshlrev_b32 v{X+3}, 6, v{X}
        v_lshl_add_u32 v{X+3}, v{X+4}, 4, v{X+3}
        v_lshl_add_u32 v{KB}, v{X+5}, 3, v{X+3}
        v_add_u32 v{KB}, {VVO}, v{KB}
        v_xor_b32 v{KB+1}, 32, v{KB}
        """)
        for rg in (1, 2):
            for k in range(2):
                S.e(f"v_add_u32 v{KA+2*rg+k}, {rg*3*REG2}, v{KA+k}\nv_add_u32 v{KB+2*rg+k}, {rg*3*REG2}, v{KB+k}")
        S.e(f"""
        s_lshl_b32 {t4}, s{S_HEAD}, 3
        s_add_u32 {t4}, {t4}, s{S_MT}
        s_lshl_b32 {t4}, {t4}, 13
        s_lshr_b32 {t0}, s{S_H}, 1
        s_lshl_b32 {t0}, {t0}, 12
        s_add_u32 {t4}, {t4}, {t0}
        s_and_b32 {t0}, s{S_H}, 1
        s_lshl_b32 {t0}, {t0}, 9
        s_add_u32 {t4}, {t4}, {t0}
        s_add_u32 {t4}, {t4}, {KVP_OFF}
        """)
        for dh in range(2):
            D = 130 + dh
            S.e(f"""
            v_bfe_u32 v{X}, v{V_L}, 2, 2
            v_and_b32 v{X+1}, 3, v{V_L}
            v_lshl_add_u32 v{X}, v{X}, 3, v{X+1}
            v_add_u32 v{X}, {4*dh}, v{X}
            v_cmp_lt_u32_e64 {M1}, 13, v{X}
            v_subrev_u32 v{X+1}, 14, v{X}
            v_cndmask_b32_e64 v{X+1}, v{X}, v{X+1}, {M1}
            v_cndmask_b32_e64 v{X+2}, 0, 4, {M1}
            v_cmp_lt_u32_e64 {M2}, 27, v{X}
            v_and_b32 v{X+3}, 1, v{X}
            v_lshlrev_b32 v{X+3}, 2, v{X+3}
            v_bfe_u32 v{X+4}, v{X}, 1, 1
            v_add_u32 v{X+4}, 14, v{X+4}
            v_cndmask_b32_e64 v{X+1}, v{X+1}, v{X+4}, {M2}
            v_cndmask_b32_e64 v{X+2}, v{X+2}, v{X+3}, {M2}
            v_lshrrev_b32 v{X+3}, 2, v{X+1}
            v_and_b32 v{X+1}, 3, v{X+1}
            v_lshl_add_u32 v{X+1}, v{X+3}, 3, v{X+1}
            v_add_u32 v{X+1}, v{X+1}, v{X+2}
            v_lshrrev_b32 v{X+2}, 4, v{V_L}
            v_lshlrev_b32 v{X+2}, 10, v{X+2}
            v_lshl_add_u32 v{D}, v{X+1}, 4, v{X+2}
            """)
        KA1 = 6 if OPT.get("kvffn", "last") == "first" else int(OPT.get("ka1", 6))
        B1(); adma(0, KA1)
        def a1flag():
            S.wait_vm("a1")
            S.e(f"v_mov_b32 v16, {CNT + 20}\nv_mov_b32 v17, 1\ns_mov_b64 exec, 1\nds_add_u32 v16, v17\ns_mov_b64 exec, -1")
        if OPT.get("kvffn", "last") == "first": a1flag()
        S.e(f"""
        s_barrier
        s_setprio 3
        """)
        st(S, "B2")
        FB = 32; KD = 24
        for kk in range(8):
            b = FB + 12 * kk; rg = kk // 3; ro = (kk % 3) * REG2
            for e in range(2):
                S.e(f"ds_read_b64_tr_b16 {vr(b + 2*e, 2)}, v{KA + 2*rg + e} offset:{ro + e*512}")
                for dh in range(2):
                    S.e(f"ds_read_b64_tr_b16 {vr(b + 4 + 4*dh + 2*e, 2)}, v{KB + 2*rg + (e ^ dh)} offset:{ro + e*256}")
        for kk in range(8):
            b = FB + 12 * kk
            for dh in range(2):
                S.e(f"{MF16} {vr(KD + 4*dh)}, {vr(b)}, {vr(b + 4 + 4*dh)}, {'0' if kk == 0 else vr(KD + 4*dh)}")
        for dh in range(2):
            S.e(f"buffer_store_dwordx4 {vr(KD + 4*dh)}, v{130+dh}, {sq(S_WS)}, {t4} offen sc1", tag="kvst")
        st(S, "kvst")
        S.e(f"v_mov_b32 v12, {CNT + 12}\nv_mov_b32 v13, 1\ns_mov_b64 exec, 1\nds_add_u32 v12, v13\ns_mov_b64 exec, -1\ns_setprio {OPT.get('hprio2', 0)}")
        adma(KA1, 6)
        if OPT.get("kvffn", "last") != "first": a1flag()
    st(S, "end")
    st.flush(S, sq(S_WS), ST_OFF, 24, 12)
    S.e("s_endpgm")
    return S
def compute_head():
    S = Stream(); T = PT
    S.e("K_comp:")
    S.e(f"""
    s_lshl_b32 {t0}, s{S_MT}, 3
    s_add_u32 {t0}, {t0}, s3
    s_mul_i32 s{S_HFB}, {t0}, {NKS*1024}
    s_mul_i32 s{S_AREA}, s3, {AREA}
    s_mul_i32 {t2}, s{S_SROW}, 896
    v_cmp_gt_u32_e64 {M2}, 56, v{V_L}
    v_mov_b32 v{T+2}, 0x7f000000
    v_cndmask_b32_e64 v{T+2}, v{T+2}, v{V_L16}, {M2}
    s_waitcnt lgkmcnt(0)
    """)
    srd(S, S_X, 4, 2048 * 896)
    S.e(f"buffer_load_dwordx4 {vr(STV)}, v{T+2}, {sq(S_X)}, {t2} offen", tag="strow")
    if OPT.get("touch2"):
        S.e(f"""
        s_mov_b32 s{S_D1}, s6
        s_mov_b32 s{S_D1+1}, s7
        s_mov_b32 s{S_D1+2}, {448*2688}
        s_mov_b32 s{S_D1+3}, 0x20000
        s_cmp_eq_u32 s3, 1
        s_cselect_b32 s{S_D1}, s14, s{S_D1}
        s_cselect_b32 s{S_D1+1}, s15, s{S_D1+1}
        s_cmp_eq_u32 s3, 2
        s_cselect_b32 s{S_D1}, s16, s{S_D1}
        s_cselect_b32 s{S_D1+1}, s17, s{S_D1+1}
        s_cmp_eq_u32 s3, 3
        s_cselect_b32 s{S_D1}, s18, s{S_D1}
        s_cselect_b32 s{S_D1+1}, s19, s{S_D1+1}
        s_cmp_lg_u32 s3, 0
        s_cselect_b32 s{S_D1+2}, {448*3584}, s{S_D1+2}
        s_cmp_eq_u32 s3, 4
        s_cselect_b32 s{S_D1}, s10, s{S_D1}
        s_cselect_b32 s{S_D1+1}, s11, s{S_D1+1}
        s_cselect_b32 s{S_D1+2}, {448*896}, s{S_D1+2}
        s_mul_i32 {t1}, s2, {49*128}
        s_cmp_ge_u32 s3, {OPT['touch2']}
        s_cselect_b32 {t1}, 0x40000000, {t1}
        v_lshlrev_b32 v{T+5}, 7, v{V_L}
        v_cmp_gt_u32_e64 {M1}, 49, v{V_L}
        v_mov_b32 v{T+6}, 0x7f000000
        v_cndmask_b32_e64 v{T+5}, v{T+6}, v{T+5}, {M1}
        buffer_load_dword v23, v{T+5}, {sq(S_D1)}, {t1} offen
        """)
    srd(S, S_WS, 22, WS_SIZE); srd(S, S_DBG, 20, 256); srd(S, S_WD, 18, 1792 * 896); srd(S, S_WO, 10, 448 * 896)
    S.e(f"s_mov_b32 s{S_OUT+2}, {2048*896}\ns_mov_b32 s{S_OUT+3}, 0x20000")
    S.e(f"""
    s_lshl_b32 s{S_U0}, s{S_U0}, 5
    s_add_u32 s{S_U0}, s{S_U0}, s{S_HFB}
    s_lshl_b32 s{S_U12}, s{S_U12}, 5
    s_add_u32 s{S_U12}, s{S_U12}, s{S_HFB}
    v_lshrrev_b32 v{T+3}, 5, v{V_L}
    v_and_b32 v{T+5}, 31, v{V_L}
    v_bfe_u32 v{T+6}, v{V_L}, 1, 3
    v_xor_b32 v{T+6}, v{T+6}, v{T+3}
    v_lshlrev_b32 v{T+5}, 7, v{T+5}
    v_lshl_add_u32 v{T+5}, v{T+6}, 4, v{T+5}
    v_add_u32 v{V_AX}, s{S_AREA}, v{T+5}
    v_xor_b32 v{V_AX+1}, 32, v{V_AX}
    v_xor_b32 v{V_AX+2}, 64, v{V_AX}
    v_xor_b32 v{V_AX+3}, 0x60, v{V_AX}
    v_add_u32 v{V_CSA}, {CSP}, v{V_L16}
    v_bfe_u32 v{T+1}, v{V_L}, 2, 2
    v_lshl_add_u32 v{T+9}, v{T+3}, 2, v{T+1}
    v_lshlrev_b32 v{T+9}, 6, v{T+9}
    v_and_b32 v{T+10}, 1, v{V_L}
    v_lshl_add_u32 v{T+9}, v{T+10}, 5, v{T+9}
    v_bfe_u32 v{T+10}, v{V_L}, 1, 1
    v_bfe_u32 v{T+4}, v{V_L}, 4, 1
    v_lshl_add_u32 v{T+10}, v{T+4}, 1, v{T+10}
    v_lshl_add_u32 v{T+9}, v{T+10}, 3, v{T+9}
    v_add_u32 v{V_PHA}, {WPHI}, v{T+9}
    v_mov_b32 v{T+9}, {CNT}
    ds_write_b32 v{T+9}, v{V_Z}
    ds_write_b32 v{T+9}, v{V_Z} offset:4
    ds_write_b32 v{T+9}, v{V_Z} offset:8
    ds_write_b32 v{T+9}, v{V_Z} offset:12
    ds_write_b32 v{T+9}, v{V_Z} offset:16
    ds_write_b32 v{T+9}, v{V_Z} offset:20
    v_and_b32 v{T+10}, 60, v{V_L}
    v_add_u32 v{T+10}, {CNT + 64}, v{T+10}
    ds_write_b32 v{T+10}, v{V_Z}
    """)
    U = PT
    for j in range(4): S.e(f"v_lshlrev_b32 v{U+2*j}, 16, v{STV+j}\nv_and_b32 v{U+2*j+1}, 0xffff0000, v{STV+j}")
    S.e(f"""
    v_add_f32 v{U+8}, v{U}, v{U+1}
    v_add_f32 v{U+9}, v{U+2}, v{U+3}
    v_add_f32 v{U+10}, v{U+4}, v{U+5}
    v_add_f32 v{U+11}, v{U+6}, v{U+7}
    v_add_f32 v{U+8}, v{U+8}, v{U+9}
    v_add_f32 v{U+10}, v{U+10}, v{U+11}
    v_add_f32 v{U+8}, v{U+8}, v{U+10}
    """)
    wave_sum(S, U + 8, U + 9)
    S.e(f"v_mul_f32 v{U+8}, {f32(1/448)}, v{U+8}")
    for j in range(8): S.e(f"v_sub_f32 v{U+j}, v{U+j}, v{U+8}")
    S.e(f"v_mul_f32 v{U+9}, v{U}, v{U}\nv_mul_f32 v{U+10}, v{U+1}, v{U+1}")
    for j in range(2, 8): S.e(f"v_fmac_f32 v{U+9+(j&1)}, v{U+j}, v{U+j}")
    S.e(f"v_add_f32 v{U+9}, v{U+9}, v{U+10}\nv_cndmask_b32_e64 v{U+9}, 0, v{U+9}, {M2}")
    wave_sum(S, U + 9, U + 10)
    S.e(f"v_mul_f32 v{U+9}, {f32(1/448)}, v{U+9}")
    bf16r(S, U + 9, f"v{U+9}")
    S.e(f"v_add_f32 v{U+9}, {f32(1e-5)}, v{U+9}")
    bf16r(S, U + 9, f"v{U+9}")
    S.e(f"v_sqrt_f32 v{U+9}, v{U+9}")
    bf16r(S, STV + 1, f"v{U+9}")
    S.e(f"""
    v_cvt_pk_bf16_f32 v{STV}, -v{U+8}, -v{U+8}
    s_lshl_b32 {t0}, s{S_SROW}, 3
    s_add_u32 {t0}, {t0}, {STATS_OFF}
    s_mov_b64 exec, 1
    """)
    S.e(f"buffer_store_dwordx2 {vr(STV, 2)}, v{V_Z}, {sq(S_WS)}, {t0} offen sc1", tag="stst")
    S.e(f"s_mul_i32 {t0}, s2, {MB_STRIDE}\ns_lshl_b32 {t1}, s3, 2\ns_add_u32 {t0}, {t0}, {t1}\ns_add_u32 {t0}, {t0}, {MB_OFF}")
    S.e(f"buffer_store_dword v{V_Z}, v{V_Z}, {sq(S_WS)}, {t0} offen sc1", tag="stst")
    S.e("s_mov_b64 exec, -1")
    S.e(f"s_cmp_eq_u32 s{S_TYPE}, 1\ns_cbranch_scc1 K_kv")
    return S


def compute(typ):
    q = typ == "q"
    S = Stream(); T = PT
    S.e(f"K_{typ}:")
    st = Stamper(STAMPR); st.n = 1; st.names = ["start"]
    tile_addrs(S, typ, V_AT, T)
    p2_ids(S)
    EARLY = Stream()
    T = SC; p2_a_voffsets(EARLY, 21, None, None, T)
    EARLY.e(f"""
    s_bfe_u32 {t4}, s3, 0x10001
    s_lshr_b32 {t5}, s3, 2
    v_bfe_u32 v{T}, v{V_L}, 2, 2
    v_lshrrev_b32 v{T+1}, 5, v{V_L}
    v_lshl_add_u32 v{T+2}, v{T+1}, 2, v{T}
    v_lshlrev_b32 v{T+2}, 7, v{T+2}
    v_lshrrev_b32 v{T}, 1, v{T}
    v_xor_b32 v{T}, {t4}, v{T}
    v_lshl_add_u32 v{T+2}, v{T}, 6, v{T+2}
    v_and_b32 v{T}, 1, v{V_L}
    v_lshl_add_u32 v{T+2}, v{T}, 5, v{T+2}
    v_bfe_u32 v{T}, v{V_L}, 1, 1
    v_bfe_u32 v{T+3}, v{V_L}, 4, 1
    v_xor_b32 v{T+3}, {t5}, v{T+3}
    v_lshl_add_u32 v{T}, v{T+3}, 1, v{T}
    v_lshl_add_u32 v{T+2}, v{T}, 3, v{T+2}
    s_mul_i32 {t0}, s3, {REG2}
    v_add_u32 v22, {t0}, v{T+2}
    s_and_b32 {t0}, s3, 3
    s_lshl_b32 {t0}, {t0}, 1
    s_add_u32 s{S_H}, {t0}, {t5}
    s_mul_i32 s{S_XROW}, s{S_H}, {14*16*896}
    s_cmp_ge_u32 s2, 224
    s_cselect_b32 {t0}, 0x40000000, 0
    s_add_u32 s{S_XROW}, s{S_XROW}, {t0}
    """)
    T = PT
    pend = []
    def ABn(n): return AB if n % 2 == 1 else SC + 8
    def a_read(n, t):
        c, s = n >> 2, n & 3
        for e in range(2):
            a, imm = tile_read_args(typ, t, s, e)
            S.e(f"ds_read_b64_tr_b16 {vr(ABn(n) + 4*t + 2*e, 2)}, v{V_AT+a} offset:{(c % 3)*WS_ + imm}")
    def x_read(n):
        c, s = n >> 2, n & 3
        S.e(f"ds_read_b128 {vr(XB + 4*(n & 1))}, v{V_AX+s} offset:{(c % 3) * 4096}")
    def kstep(n):
        if n + 1 < 28:
            x_read(n + 1); a_read(n + 1, 0); a_read(n + 1, 1)
        for t in range(5):
            S.e(f"{MF} {vr(ACC + 16*t, 16)}, {vr(ABn(n) + 4*t)}, {vr(XB + 4*(n & 1))}, {'0' if n == 0 else vr(ACC + 16*t, 16)}")
            if n + 1 < 28 and t + 2 < 5: a_read(n + 1, t + 2)
            if pend: S.extend(pend.pop(0))
    S.wait_lgkm(); S.e("s_barrier")
    st(S, "bar0")
    x_read(0)
    for t in range(5): a_read(0, t)
    for c in range(7):
        S.comment(f"chunk {c}")
        if c in (4,): st(S, f"chunk{c}")
        n = 4 * c
        if c == int(OPT.get("poic", 0)):
            G = Stream(); G.e(f"v_mov_b32 v{SC}, -1\nv_mov_b32 v{SC+1}, -1\nv_mov_b32 v{SC+2}, -1\nv_mov_b32 v{SC+3}, -1"); pend.append(G)
            if q:
                offs = [f"s_lshl_b32 {t0}, s{S_HEAD}, 11\ns_add_u32 {t0}, {t0}, s{S_HFB}\ns_add_u32 {t0}, {t0}, {(112+u)*1024}" for u in range(2)]
            else:
                offs = [f"s_lshl_b32 {t0}, s{S_HEAD}, 3\ns_add_u32 {t0}, {t0}, s{S_MT}\ns_lshl_b32 {t0}, {t0}, 3\ns_add_u32 {t0}, {t0}, s3\ns_lshl_b32 {t0}, {t0}, 10\ns_add_u32 {t0}, {t0}, {KVP_OFF}"]
            for o in offs:
                G = Stream(); G.e(o); G.e(f"buffer_store_dwordx4 {vr(SC)}, v{V_L16}, {sq(S_WS)}, {t0} offen sc1", tag="stst"); pend.append(G); pend.append(Stream())
        if c == int(OPT.get("poic", 0)) + 1: pend.append(signal("stst", 4, "init", f"K_{typ}_nosigst", SC + 4, SC + 5, SC + 6, 7))
        if OPT.get("tlb") and c == int(OPT["tlb"]):
            G = Stream()
            G.e(f"""
            v_lshlrev_b32 v23, 18, v{V_L}
            s_lshl_b32 {t0}, s3, 15
            buffer_load_dword v23, v23, {sq(S_WS)}, {t0} offen
            """); pend.append(G)
            G = Stream()
            G.e(f"""
            v_lshlrev_b32 v26, 15, v{V_L}
            s_lshl_b32 {t0}, s3, 12
            buffer_load_dword v27, v26, {sq(S_OUT)}, {t0} offen
            """); pend.append(G)
        if c == 3:
            for ii in range(0, len(EARLY), 5):
                G = Stream(); G.extend(EARLY[ii:ii+5]); pend.append(G)
        kstep(n); kstep(n + 1); kstep(n + 2)
        S.wait_lgkm(); S.e("s_barrier")
        if c == 5:
            G = Stream()
            G.e(f"""
            v_and_b32 v{V_TMP}, 31, v{V_L}
            v_lshlrev_b32 v{V_TMP}, 3, v{V_TMP}
            s_lshl_b32 {t0}, s{S_MT}, 3
            s_add_u32 {t0}, {t0}, s3
            s_lshl_b32 {t0}, {t0}, 8
            s_add_u32 {t0}, {t0}, {STATS_OFF}
            buffer_load_dwordx2 {vr(V_RINV, 2)}, v{V_TMP}, {sq(S_WS)}, {t0} offen sc1
            """)
            pend.append(G)
        if c == 6:
            CR = SC + 8
            for t in range(5): S.e(f"ds_read_b128 {vr(CR + 4*t)}, v{V_CSA} offset:{t*1024}")
            stats_consts(S)
        kstep(n + 3)
    st(S, "S1")
    FT = (lambda n: st(S, n, fine=True)) if OPT.get('fw') == 'tail' else (lambda n: None)
    FT("s1")
    WPF = XB; E = AB; QB = E + 8; TT = 4; GT = SC; GT2 = SC + 12
    A0 = ACC
    V_WD, V_A0, V_A1 = 11, 12, 13
    V_WOo, V_WOM, V_B0, V_B1, V_O = 4, 5, 6, 7, 8
    S.e(f"{MF} {vr(ACC,16)}, {vr(CR)}, {vr(BP)}, {vr(ACC,16)}")
    for te in range(4): S.e(f"ds_read_b64_tr_b16 {vr(WPF + 2*te, 2)}, v{V_PHA} offset:{te * 512}")
    for t in range(1, 5): S.e(f"{MF} {vr(ACC + 16*t,16)}, {vr(CR + 4*t)}, {vr(BP)}, {vr(ACC + 16*t,16)}")
    S.e(f"s_mul_i32 s{S_AREA}, s3, {REG2}\nv_mov_b32 v{V_WD}, v21\nv_mov_b32 v{V_A0}, v22\nv_xor_b32 v{V_A1}, 64, v22")
    W = SC + 28; X = 4
    if not q:
        S.e(f"""
        v_and_b32 v{X}, 31, v{V_L}
        v_lshrrev_b32 v{X+1}, 5, v{V_L}
        v_lshlrev_b32 v{X+1}, 1, v{X+1}
        v_bfe_u32 v{X+2}, v{V_L}, 1, 2
        v_xor_b32 v{X+2}, v{X+2}, v{X+1}
        v_lshlrev_b32 v{X+3}, 6, v{X}
        v_lshl_add_u32 v{X+3}, v{X+2}, 4, v{X+3}
        s_add_u32 {t0}, s{S_AREA}, {VVO}
        v_add_u32 v9, {t0}, v{X+3}
        v_xor_b32 v10, 16, v9
        v_and_b32 v{X+3}, 7, v{V_L}
        v_xor_b32 v{X+1}, v{X+1}, v{X+3}
        v_lshlrev_b32 v{X}, 7, v{X}
        v_lshl_add_u32 v{X}, v{X+1}, 4, v{X}
        s_add_u32 {t0}, s{S_AREA}, {PKO}
        v_add_u32 v{W}, {t0}, v{X}
        v_xor_b32 v{W+1}, 16, v{W}
        v_xor_b32 v{W+2}, 64, v{W}
        v_xor_b32 v{W+3}, 0x50, v{W}
        """)
    FT("addr")
    scale16(S, A0)
    for i in range(8): S.e(f"v_cvt_pk_bf16_f32 v{QB+i}, v{A0+2*i}, v{A0+2*i+1}")
    S.e(f"{MF} {vr(A0,16)}, {vr(WPF)}, {vr(QB)}, 0\n{MF} {vr(A0,16)}, {vr(WPF+4)}, {vr(QB+4)}, {vr(A0,16)}")
    FT("pq")
    A1 = ACC + 16
    AC2 = 104
    bfree = [16, 24, 32, 40, 48]
    ablk = {i: b for i, b in enumerate([72, 80, 88, 96, 56, 64] if (q or OPT.get('kvffn', 'last') == 'first') else [56, 64, 72, 80, 88, 96])}
    slot_of = {i: i for i in range(6)}
    def a_tr(i, blk):
        nonlocal S
        for ni in range(2):
            for e in range(2):
                S.e(f"ds_read_b64_tr_b16 {vr(blk + 4*ni + 2*e, 2)}, v{V_A0+ni} offset:{slot_of[i]*2048 + e*1024}", tag=f"ar{i}")
    def a_dma(i, sl):
        slot_of[i] = sl; out = []
        for u in range(2):
            G = Stream()
            G.e(f"s_add_u32 m0, s{S_AREA}, {sl*2048 + u*1024}")
            if i < 14:
                G.e(f"s_add_u32 {tm}, s{S_XROW}, {(16*i + 8*u)*896}")
                G.e(f"buffer_load_dwordx4 v{V_WD}, {sq(S_WD)}, {tm} offen lds", tag=f"a{i}")
            else:
                hd, t = (i - 14) >> 1, (i - 14) & 1
                G.e(f"s_add_u32 {tm}, s{S_D0L}, {(28*hd + 8*t + 4*u)*896}")
                G.e(f"buffer_load_dwordx4 v{V_WOM if (t and u) else V_WOo}, {sq(S_WO)}, {tm} offen lds", tag=f"a{i}")
            out.append(G)
        return out
    def sprinkle(V, parts, start, every):
        n = 0
        for ins in V:
            S.append(ins); n += 1
            if n >= start and (n - start) % every == 0 and parts: S.extend(parts.pop(0))
        for p in parts: S.extend(p)
    late = []
    KF1 = q or OPT.get("kvffn", "last") == "first"
    def vwr(): S.e(f"ds_write_b128 v9, {vr(A1)}\nds_write_b128 v10, {vr(A1+4)}")
    def vpart():
        scale16(S, A1)
        for i in range(8): S.e(f"v_cvt_pk_bf16_f32 v{A1+i}, v{A1+2*i}, v{A1+2*i+1}")
        S.e(f"""
        v_mov_b32 v{A1+8}, 0x3f803f80
        v_cndmask_b32_e64 v{A1+6}, v{A1+6}, v{A1+8}, {HHM}
        """)
        if KF1: vwr()
    if KF1:
        if q:
            geglu(S, A1, GT, S_U0, 0); geglu(S, ACC + 32, GT2, S_U0, 1); geglu(S, ACC + 48, GT, S_U0, 2); geglu(S, ACC + 64, GT2, S_U0, 3)
        else:
            geglu(S, ACC + 32, GT2, S_U0, 0); geglu(S, ACC + 48, GT, S_U12, 0); geglu(S, ACC + 64, GT2, S_U12, 1)
            vpart()
        st(S, "ffn")
        S.e(f"""
        v_mov_b32 v14, {CNT + 20}
        K_{typ}_a1:
        ds_read_b32 v15, v14
        s_waitcnt lgkmcnt(0)
        v_readfirstlane_b32 {t1}, v15
        s_cmp_lt_u32 {t1}, 4
        s_cbranch_scc1 K_{typ}_a1
        """)
        for i in range(4): a_tr(i, ablk[i])
        V = Stream(); softmax14(V, A0, E, TT)
        w = Stream(); w.wait_lgkm()
        sg = signal("hst", 8, "h", f"K_{typ}_nosigh", 104, 105, 106, 7)
        pos = int(OPT.get("sgpos", 4))
        parts = [w] + a_dma(6, 0) + a_dma(7, 1) + a_dma(8, 2) + a_dma(9, 3)
        parts.insert(pos + 1, sg)
        if q or OPT.get('kvspr', False): sprinkle(V, parts, 12, 14)
        else:
            sprinkle(V, [sg], 60, 14); parts.remove(sg); pre_late = parts
        if q:
            S.e(f"s_add_u32 {t0}, s{S_AREA}, {PKO}\nv_add_u32 v9, {t0}, v{V_L16}")
            for kk in range(4): S.e(f"ds_write_b128 v9, {vr(E + 4*kk)} offset:{kk*1024}")
        else:
            for k in range(4): S.e(f"ds_write_b128 v{W+k}, {vr(E+4*k)}")
        a_tr(4, ablk[4]); a_tr(5, ablk[5])
        S.wait_lgkm(); S.e("s_barrier")
        st(S, "B2")
        late = ([] if (q or OPT.get('kvspr', False)) else pre_late) + a_dma(10, 4) + a_dma(11, 5)
    else:
        vpart()
        FT("v")
        softmax14(S, A0, E, TT)
        FT("sm")
        vwr()
        for k in range(4): S.e(f"ds_write_b128 v{W+k}, {vr(E+4*k)}")
        S.wait_lgkm()
        FT("wr")
        S.e("s_barrier")
        st(S, "B2")
        FT("b2")
        geglu(S, ACC + 32, GT2, S_U0, 0); FT("g1"); geglu(S, ACC + 48, GT, S_U12, 0); FT("g2"); geglu(S, ACC + 64, GT2, S_U12, 1); FT("g3")
        st(S, "ffn")
        G = Stream()
        G.e(f"""
        v_mov_b32 v14, {CNT + 20}
        K_{typ}_a1:
        ds_read_b32 v15, v14
        s_waitcnt lgkmcnt(0)
        v_readfirstlane_b32 {t1}, v15
        s_cmp_lt_u32 {t1}, 4
        s_cbranch_scc1 K_{typ}_a1
        """)
        S0 = S; S = G
        for i in range(6): a_tr(i, ablk[i])
        S = S0
        G.wait_lgkm()
        late = [G]
        for i in range(6, 12): late += a_dma(i, i - 6)
    TP = 16
    S.e(f"""
    v_lshrrev_b32 v{TP}, 3, v{V_L}
    v_mul_u32_u24 v{TP+1}, 896, v{TP}
    v_sub_u32 v{TP+1}, v{V_WD}, v{TP+1}
    v_lshrrev_b32 v{TP+2}, 2, v{TP}
    v_and_b32 v{TP+3}, 3, v{TP}
    v_mad_u32_u24 v{TP+2}, v{TP+2}, 14, v{TP+3}
    v_mul_u32_u24 v{V_WOo}, 896, v{TP+2}
    v_add_u32 v{V_WOo}, v{V_WOo}, v{TP+1}
    v_cmp_lt_u32_e64 {M1}, 1, v{TP+3}
    v_mov_b32 v{TP+2}, 0x7f000000
    v_cndmask_b32_e64 v{V_WOM}, v{V_WOo}, v{TP+2}, {M1}
    s_and_b32 {t3}, s3, 1
    s_bfe_u32 {t4}, s3, 0x10001
    s_lshr_b32 {t5}, s3, 2
    s_lshl_b32 {t0}, s{S_M64}, 1
    s_add_u32 {t0}, {t0}, {t3}
    s_mul_i32 {t1}, {t0}, {NKS*1024}
    v_add_u32 v{V_B0}, {t1}, v{V_L16}
    s_xor_b32 {t2}, {t0}, 1
    s_mul_i32 {t2}, {t2}, {NKS*1024}
    v_add_u32 v{V_B1}, {t2}, v{V_L16}
    v_mov_b32 v9, {t1}
    v_mov_b32 v10, {t2}
    v_cmp_lt_u32_e64 {M1}, 15, v{V_L}
    v_cndmask_b32_e64 v9, v9, v10, {M1}
    v_and_b32 v10, 3, v{V_L}
    v_lshl_add_u32 v9, v10, 10, v9
    v_lshrrev_b32 v{TP+1}, 5, v{V_L}
    v_and_b32 v{TP}, 31, v{V_L}
    s_lshl_b32 {t0}, {t0}, 5
    v_add_u32 v{TP}, {t0}, v{TP}
    v_mul_u32_u24 v{TP}, 896, v{TP}
    v_lshlrev_b32 v{TP+1}, 5, v{TP+1}
    s_lshl_b32 {t0}, s{S_N64}, 7
    s_lshl_b32 {t1}, {t4}, 6
    s_add_u32 {t0}, {t0}, {t1}
    s_lshl_b32 {t1}, {t5}, 4
    s_add_u32 {t0}, {t0}, {t1}
    v_add3_u32 v{V_O}, v{TP}, v{TP+1}, {t0}
    s_mul_i32 s{S_D0L}, s{S_H}, {2*28*896}
    s_mul_i32 s{S_U0}, s{S_H}, {14*1024}
    s_lshl_b32 s{S_U12}, s{S_H}, 12
    s_add_u32 s{S_U12}, s{S_U12}, {112*1024 - 14*1024}
    s_add_u32 s{S_G}, s{S_U12}, {14*1024 + 1008}
    v_mov_b32 v{TP}, {CNT + 12}
    K_{typ}_zone:
    ds_read_b32 v{TP+1}, v{TP}
    s_waitcnt lgkmcnt(0)
    v_readfirstlane_b32 {t1}, v{TP+1}
    s_cmp_lt_u32 {t1}, 4
    s_cbranch_scc1 K_{typ}_zone
    """)
    for g in late[:int((OPT.get("latepre", 4) if KF1 else OPT.get("latekv", 0)))]: S.extend(g)
    st(S, "p1end")
    if not KF1: S.extend(signal("hst", 8, "h", f"K_{typ}_nosigh", TP, TP + 1, TP + 2, 7))
    if not q: S.e(f"s_cmp_ge_u32 s2, 224\ns_cbranch_scc1 K_{typ}_fin")
    for g in late[int((OPT.get("latepre", 4) if KF1 else OPT.get("latekv", 0))):]: S.extend(g)
    for i in range(12, 15):
        for g in a_dma(i, i - 6): S.extend(g)
    MIR = CNT + 64
    S.e(f"""
    s_mul_i32 {t2}, s2, {MB_STRIDE}
    s_add_u32 {t2}, {t2}, {MB_OFF}
    s_lshr_b32 {t0}, s{S_H}, 1
    s_lshl_b32 {t5}, {t0}, 1
    s_cmp_lt_u32 s3, 4
    s_mov_b32 {t4}, 0x01010101
    s_cselect_b32 {t4}, 0x00010001, {t4}
    s_mov_b32 {t3}, 0
    v_and_b32 v{TP}, 15, v{V_L}
    v_lshlrev_b32 v{TP}, 2, v{TP}
    v_add_u32 v{TP+1}, {MIR}, v{TP}
    v_and_b32 v{TP}, 28, v{TP}
    s_add_u32 {t0}, {t5}, 1
    """)
    st(S, "w5")
    S.e(f"""
    s_cmp_eq_u32 s3, 7
    s_cbranch_scc1 K_{typ}_phg
    K_{typ}_phl:
    ds_read_b32 v14, v{TP+1}
    s_waitcnt lgkmcnt(0)
    v_readlane_b32 {t1}, v14, {t5}
    v_readlane_b32 {tm}, v14, {t0}
    s_and_b32 {t1}, {t1}, {tm}
    s_and_b32 {t1}, {t1}, {t4}
    s_cmp_eq_u32 {t1}, {t4}
    s_cbranch_scc1 K_{typ}_phok
    v_readlane_b32 {t1}, v14, 8
    s_sleep 2
    s_cmp_eq_u32 {t1}, 0
    s_cbranch_scc1 K_{typ}_phl
    K_{typ}_phg:
    buffer_load_dword v14, v{TP}, {sq(S_WS)}, {t2} offen sc1
    s_waitcnt vmcnt(0)
    s_mov_b64 exec, 0xff
    ds_write_b32 v{TP+1}, v14
    s_mov_b64 exec, -1
    v_readlane_b32 {t1}, v14, {t5}
    v_readlane_b32 {tm}, v14, {t0}
    s_add_u32 {t3}, {t3}, 1
    s_and_b32 {t1}, {t1}, {tm}
    s_and_b32 {t1}, {t1}, {t4}
    s_cmp_eq_u32 {t1}, {t4}
    s_cbranch_scc1 K_{typ}_phd
    s_sleep {OPT.get('sleep', 4)}
    s_cmp_lt_u32 {t3}, 0x8000
    s_cbranch_scc1 K_{typ}_phg
    K_{typ}_phd:
    v_mov_b32 v14, {MIR + 32}
    v_mov_b32 v15, 1
    ds_write_b32 v14, v15
    K_{typ}_phok:
    """, opt=True)
    S.append(pseudo("forget_opt"))
    st(S, "B5")
    if OPT.get('fw') == 'p2': st(S, "B5f", fine=True)
    bblk = {}
    nextb = [0]
    def b_issue(i, opt=False):
        S.e(f"s_add_u32 {tm}, s{S_U0 if i < 14 else S_U12}, {i*1024}", opt=opt)
        for mi in range(2):
            S.e(f"buffer_load_dwordx4 {vr(bblk[i] + 4*mi)}, v{V_B0+mi}, {sq(S_WS)}, {tm} offen sc1", opt=opt)
    def b_load():
        i = nextb[0]
        if i >= 18 or not bfree: return False
        if i == 14:
            tagpoll(S, f"K_{typ}_po", 9, 14, f"s{S_G}", first_issued=True)
            S.append(pseudo("forget_opt"))
            st(S, "B6")
        bblk[i] = bfree.pop(0)
        b_issue(i)
        nextb[0] += 1
        return True
    OLAG = int(OPT.get("olag", 4))
    while b_load(): pass
    afree = []
    for i in range(18):
        if i + 1 < 18 and (i + 1) not in ablk:
            ablk[i + 1] = afree.pop(0)
            S.wait_vm(f"a{i+1}")
            a_tr(i + 1, ablk[i + 1])
        if i >= 14:
            regs = list(range(bblk[i], bblk[i] + 8))
            umax_tree(S, regs, 15)
            S.e(f"v_cmp_eq_u32_e64 {M1}, -1, v15\ns_cmp_eq_u64 {M1}, 0\ns_cbranch_scc1 K_{typ}_bok{i}")
            S.e(f"s_mov_b32 {t3}, 0\nK_{typ}_bre{i}:", opt=True)
            b_issue(i, opt=True)
            S.e("s_waitcnt vmcnt(0)", opt=True)
            umax_tree(S, regs, 15, opt=True)
            S.e(f"v_cmp_eq_u32_e64 {M1}, -1, v15\ns_add_u32 {t3}, {t3}, 1\ns_cmp_eq_u64 {M1}, 0\ns_cbranch_scc1 K_{typ}_bok{i}\ns_cmp_lt_u32 {t3}, 0x4000\ns_cbranch_scc1 K_{typ}_bre{i}", opt=True)
            S.e(f"K_{typ}_bok{i}:")
            S.append(pseudo("forget_opt"))
        for lq in range(4):
            ni, mi = lq >> 1, lq & 1
            S.e(f"{MF} {vr(AC2 + 16*lq, 16)}, {vr(ablk[i] + 4*ni)}, {vr(bblk[i] + 4*mi)}, {'0' if i == 0 else vr(AC2 + 16*lq, 16)}")
        if OPT.get('fw') == 'p2' and i in (0, 1, 2, 4, 6, 8, 10, 12, 14, 17): st(S, f"k{i}", fine=True)
        bfree.append(bblk[i])
        if i in (3, 4) or i >= 6: afree.append(ablk[i])
        else: bfree.append(ablk[i])
        if i in (7, 8, 9):
            for g in a_dma(i + 8, i - 7): S.extend(g)
        if i == 14 - OLAG - 2: S.e(f"buffer_load_dword v14, v9, {sq(S_WS)}, s{S_G} offen sc1")
        while nextb[0] < 18 and (nextb[0] < 14 or nextb[0] <= i + OLAG) and b_load(): pass
        if i == 15:
            XRG = [b for b in bfree if b >= 88][0]; bfree.remove(XRG)
            S.e(f"buffer_load_dwordx4 {vr(XRG)}, v{V_O}, {sq(S_X)}, 0 offen")
    st(S, "mm")
    S.e(f"v_add_u32 v4, s{S_AREA}, v{V_L16}")
    def piece(pp): lq = (pp & 1) | (((pp >> 1) & 1) << 1); return AC2 + 16*lq + 8*(pp >> 2)
    for pp in range(1, 8):
        for j in range(2): S.e(f"ds_write_b128 v4, {vr(piece(pp) + 4*j)} offset:{(pp-1)*2048 + j*1024}")
    for pp in range(1, 8):
        S.e(f"s_xor_b32 {t0}, s3, {pp}\ns_mul_i32 {t0}, {t0}, {REG2}\nv_add_u32 v{16+pp}, {t0}, v{V_L16}")
    for j in range(4): S.e(f"v_lshlrev_b32 v{24+2*j}, 16, v{XRG+j}\nv_and_b32 v{25+2*j}, 0xffff0000, v{XRG+j}")
    for j in range(8): S.e(f"v_add_f32 v{AC2+j}, v{AC2+j}, v{24+j}")
    S.wait_lgkm(); S.e("s_barrier")
    R = 32
    for pp in range(1, 8):
        for j in range(2): S.e(f"ds_read_b128 {vr(R + 8*(pp-1) + 4*j)}, v{16+pp} offset:{(pp-1)*2048 + j*1024}")
    def padd(d, a, b):
        for j in range(0, 8, 2): pk(S, "add", d + j, [("p", a + j), ("p", b + j)])
    padd(AC2, AC2, R); padd(R + 8, R + 8, R + 16); padd(R + 24, R + 24, R + 32); padd(R + 40, R + 40, R + 48)
    padd(AC2, AC2, R + 8); padd(R + 24, R + 24, R + 40); padd(AC2, AC2, R + 24)
    if OPT.get("eps"):
        for j in range(8): S.e(f"v_mul_f32 v{AC2+j}, {f32(1.0 + float(OPT['eps']))}, v{AC2+j}")
    for j in range(4): S.e(f"v_cvt_pk_bf16_f32 v{24+j}, v{AC2+2*j}, v{AC2+2*j+1}")
    S.e(f"buffer_store_dwordx4 {vr(24)}, v{V_O}, {sq(S_OUT)}, 0 offen")
    S.e(f"K_{typ}_fin:")
    st(S, "end")
    st.flush(S, sq(S_WS), ST_OFF, 104, 12)
    S.e("s_endpgm")
    return S

def gen_all():
    pro = list(prologue()); ch = list(compute_head()); hh = list(helper_head())
    out = []
    def part(prefix, body, label):
        full = finalize(prefix + list(body))
        idx = next(i for i, x in enumerate(full) if x.text == label) if label else 0
        return full[idx:]
    hq = part(pro + hh, list(helper("q")) + list(hpost("q")), None)
    hk = part(pro + hh, list(helper("kv")) + list(hpost("kv")), "K_hkv:")
    def cut(p):
        n = 0
        for i, x in enumerate(p):
            if x.op == "s_barrier":
                n += 1
                if n == 1: return p[:i], p[i:]
    if OPT.get("layout", False):
        a, b = cut(hq); c, d = cut(hk)
        out += a + [I("s_branch K_hq_rest")] + c + [I("s_branch K_hkv_rest")]
        out += part(pro + ch, compute("q"), "K_comp:")
        out += part(pro + ch, compute("kv"), "K_kv:")
        out += [I("K_hq_rest:")] + b + [I("K_hkv_rest:")] + d
    else:
        out += hq + hk
        out += part(pro + ch, compute("q"), "K_comp:")
        out += part(pro + ch, compute("kv"), "K_kv:")
    out.append(I("K_END:")); out.append(I("s_endpgm"))
    return out

def build(path):
    k = gen_all()
    print("K", stats(k), file=sys.stderr)
    ref = open(f"cdna_kernels/{NAME}.s.ref").read().split("\n")
    hdr = [l for l in ref if l.startswith(";") and "@launch" not in l and "Override" not in l and "grid=ceil" not in l]
    txt = "\n".join(hdr) + "\n"
    txt += f"; @launch grid=(256,1,1) block=(768,1,1) lds=163840\n"
    txt += '.amdgcn_target "amdgcn-amd-amdhsa--gfx950"\n.text\n'
    txt += f".globl {K1}\n.p2align 8\n.type {K1},@function\n{K1}:\n" + render(k)
    txt += f""".section .rodata,"a"
.p2align 6
.amdhsa_kernel {K1}
  .amdhsa_next_free_vgpr {NVG1}
  .amdhsa_next_free_sgpr 102
  .amdhsa_accum_offset {NVG1}
  .amdhsa_group_segment_fixed_size 0
  .amdhsa_kernarg_size 88
  .amdhsa_user_sgpr_count 2
  .amdhsa_user_sgpr_kernarg_segment_ptr 1
  .amdhsa_system_sgpr_workgroup_id_x 1
.end_amdhsa_kernel
"""
    open(path, "w").write(txt)

if __name__ == "__main__":
    for a in sys.argv[2:]:
        k, v = a.split("=")
        OPT[k] = {"True": True, "False": False}.get(v, v.replace("_", " ") if k.endswith("flags") else v)
    build(sys.argv[1] if len(sys.argv) > 1 else f"cdna_kernels/{NAME}.s")
```

```python
import sys, os, struct
sys.path.insert(0, os.path.dirname(os.path.abspath(__file__)))
from dsl import *

NAME = "parallel_sum__linear_kernel_hedgehog__geglu_ffn__prompt"
K1 = NAME + "_kernel"
K2 = "k2_kernel"

HF_OFF = 0
KVP_OFF = 0xB00000
PHF_OFF = 0x1000000
WS_SIZE = 0x1400000
NKS = 144

OPT = dict(mimic_ffn=False, hf_flags=" sc1", k2d="8", prefetch=True)

def f32(x): return "0x%08x" % struct.unpack("<I", struct.pack("<f", x))[0]
def vr(a, n=4): return f"v[{a}:{a+n-1}]"
def ar(a, n=4): return f"a[{a}:{a+n-1}]"
MF = "v_mfma_f32_32x32x16_bf16"
MF16 = "v_mfma_f32_16x16x32_bf16"

def srd(S, d, lo, nbytes):
    S.e(f"s_mov_b32 s{d}, s{lo}\ns_mov_b32 s{d+1}, s{lo+1}\ns_mov_b32 s{d+2}, {nbytes}\ns_mov_b32 s{d+3}, 0x20000")

STAMP_REGS = [92, 94, 96, 98, 100, 28, 30, 4, 6, 8, 10, 12, 14, 16, 18, 20]
ST_OFF = 0xD00000
class Stamper:
    def __init__(self, regs=STAMP_REGS): self.n = 0; self.names = []; self.regs = regs
    def __call__(self, S, name, fine=False):
        if not OPT.get("stamps"): return
        if (OPT.get("stamps") == "fine") != fine and name != "end": return
        r = self.regs[self.n]; self.n += 1; self.names.append(name)
        S.e(f"{'s_memtime' if fine else 's_memrealtime'} s[{r}:{r+1}]")
    def flush(self, S, srd_s, base, vtmp, nwaves):
        if not OPT.get("stamps"): return
        S.e("s_waitcnt lgkmcnt(0)")
        for i in range(self.n): S.e(f"v_mov_b32 v{vtmp+i}, s{self.regs[i]}")
        S.e(f"s_mul_i32 s88, s2, {nwaves*64}\ns_lshl_b32 s89, s3, 6\ns_add_u32 s88, s88, s89\ns_add_u32 s88, s88, {base}\nv_mov_b32 v0, 0\ns_mov_b64 exec, 1")
        for i in range(0, 16, 4): S.e(f"buffer_store_dwordx4 v[{vtmp+i}:{vtmp+i+3}], v0, {srd_s}, s88 offen offset:{i*4}")
        if OPT.get("dbgst"):
            Stamper.uid = getattr(Stamper, "uid", 0) + 1
            S.e(f"s_lshl_b32 s88, s2, 4\ns_add_u32 s88, s88, s3\ns_cmp_lg_u32 s88, {OPT['dbgst']}\ns_cbranch_scc1 DBGST{Stamper.uid}")
            for i in range(1, self.n): S.e(f"v_sub_u32 v{vtmp+i}, v{vtmp+i}, v{vtmp}", opt=True)
            for i in range(0, 16, 4): S.e(f"buffer_store_dwordx4 v[{vtmp+i}:{vtmp+i+3}], v0, s[44:47], 0 offen offset:{i*4}", opt=True)
            S.e(f"DBGST{Stamper.uid}:")
        print("stamps", self.names, file=sys.stderr)

AREA = 12288
W0 = 98304; WS_ = 20480
MISC = 159744
WPHI = MISC
CNT = MISC + 2048
STATS_OFF = 0xC00000
REG2 = 18432
CSP = 147456; KVF = 147456 + 5120
PKO = 12288; VVO = 16384
NVG1 = 168

V_L = 1; V_L16 = 2; V_Z = 3
V_AX = 4; V_AT = 8
V_CSA = 13; V_PHA = 14; V_TMP = 15
V_RINV, V_SD = 16, 17
V_C0, V_C1, V_S2 = 18, 19, 20
BP = 24
XB = 28; AB = 36; ACC = 56; SC = 136
PT = 136; STV = 152
S_PF, S_X, S_OUT, S_WG, S_WU, S_WS, S_DBG, S_WQ, S_D1, S_WD, S_WO = 12, 24, 28, 32, 36, 40, 44, 48, 52, 56, 60
S_MT, S_C4, S_HL, S_HEAD, S_TYPE, S_XROW, S_AREA, S_D0L, S_H = 64, 65, 66, 67, 68, 69, 70, 71, 72
S_ODD = 73
S_T = 74
S_HH = 80
S_HFB = 82
S_U0, S_U12 = 83, 84
S_M = 85
S_SROW = 86
S_G = 87
M1 = "s[88:89]"; M2 = "s[90:91]"
HHM = f"s[{S_HH}:{S_HH+1}]"
t0, t1, t2, t3, t4, t5 = [f"s{S_T+i}" for i in range(6)]
tm = f"s{S_M}"
S_M64, S_N64, S_MT2 = 65, 66, 73
def sq(d): return f"s[{d}:{d+3}]"
STAMPR = [92, 94, 96, 98, 100, 4, 6, 8, 10, 16, 18, 20, 22]
B_OWNMT = f"s_lshl_b32 {t2}, s{S_MT}, 5"
B_MT2 = f"s_lshl_b32 {t2}, s{S_MT2}, 5"
B_KV = f"s_lshl_b32 {t2}, s{S_HEAD}, 1\ns_add_u32 {t2}, {t2}, 1"

def bf16r(S, d, src):
    S.e(f"v_cvt_pk_bf16_f32 v{d}, {src}, {src}\nv_lshlrev_b32 v{d}, 16, v{d}")

def xhalf(S, op, x, t):
    S.e(f"v_mov_b32 v{t}, v{x}\nv_permlane32_swap_b32 v{t}, v{x}\n{op} v{x}, v{x}, v{t}")

def wave_sum(S, x, t):
    for m in ("quad_perm:[1,0,3,2]", "quad_perm:[2,3,0,1]", "row_half_mirror", "row_mirror"):
        S.e(f"v_add_f32_dpp v{x}, v{x}, v{x} {m} row_mask:0xf bank_mask:0xf")
    S.e(f"v_mov_b32 v{t}, v{x}\nv_permlane16_swap_b32 v{t}, v{x}\nv_add_f32 v{x}, v{x}, v{t}")
    xhalf(S, "v_add_f32", x, t)


MB_OFF = 0xE00000; MB_STRIDE = 4096 + 256
def signal(tag, cnt_off, kind, lab, A, B, Cc, last):
    G = Stream()
    if tag: G.wait_vm(*tag.split(","))
    G.e(f"""
    v_mov_b32 v{A}, {CNT + cnt_off}
    v_mov_b32 v{B}, 1
    s_mov_b64 exec, 1
    ds_add_rtn_u32 v{Cc}, v{A}, v{B}
    s_mov_b64 exec, -1
    v_readfirstlane_b32 {t1}, v{Cc}
    s_cmp_lg_u32 {t1}, {last}
    s_cbranch_scc1 {lab}
    """)
    if kind == "init":
        G.e(f"s_lshr_b32 {t2}, s{S_SROW}, 3\ns_mov_b64 exec, 1", opt=True)
        G.e(f"buffer_store_byte v{B}, v{V_Z}, {sq(S_DBG)}, {t2} offen sc1", opt=True)
    elif kind in ("h", "o"):
        G.e(f"""
        s_and_b32 {t1}, s{S_MT}, 3
        s_lshl_b32 {t1}, {t1}, 1
        s_lshr_b32 {t2}, s{S_MT}, 2
        s_add_u32 {t1}, {t1}, {t2}
        s_mul_i32 {t1}, {t1}, {MB_STRIDE}
        {f's_bfe_u32 {t2}, s{S_SROW}, 0x50003' if kind == 'h' else f's_add_u32 {t2}, s{S_HEAD}, 32'}
        s_add_u32 {t1}, {t1}, {t2}
        s_add_u32 {t1}, {t1}, {MB_OFF}
        v_mul_u32_u24 v{Cc}, {8*MB_STRIDE}, v{V_L}
        s_mov_b64 exec, 0xfffffff
        """, opt=True)
        G.e(f"buffer_store_byte v{B}, v{Cc}, {sq(S_WS)}, {t1} offen sc1", opt=True)
    else:
        G.e(f"""
        s_lshr_b32 {t1}, s{S_HEAD}, 2
        s_lshl_b32 {t1}, {t1}, 1
        s_and_b32 {t2}, s{S_HEAD}, 3
        s_lshl_b32 {t2}, {t2}, 6
        s_add_u32 {t1}, {t1}, {t2}
        s_mul_i32 {t1}, {t1}, {MB_STRIDE}
        s_add_u32 {t1}, {t1}, s{S_MT}
        s_add_u32 {t1}, {t1}, {MB_OFF + 48}
        v_and_b32 v{Cc}, 3, v{V_L}
        v_lshlrev_b32 v{Cc}, 3, v{Cc}
        v_lshrrev_b32 v{A}, 2, v{V_L}
        v_add_u32 v{Cc}, v{Cc}, v{A}
        v_mul_u32_u24 v{Cc}, {MB_STRIDE}, v{Cc}
        v_mov_b32 v{A}, {CNT + cnt_off}
        s_mov_b64 exec, 0xff
        """, opt=True)
        G.e(f"buffer_store_byte v{B}, v{Cc}, {sq(S_WS)}, {t1} offen sc1", opt=True)
    G.e(f"s_mov_b64 exec, -1", opt=True)
    G.e(f"{lab}:")
    return G
def poll(lab, kind, D, A, who=None):
    G = Stream()
    if who is not None: G.e(f"s_cmp_lg_u32 s3, {who}\ns_cbranch_scc1 {lab}_ok")
    if kind == "init":
        setup = f"v_lshlrev_b32 v{A}, 2, v{V_L}\ns_mov_b32 {t2}, 0\ns_mov_b32 {t4}, 0x01010101"
        ld = f"buffer_load_dword v{D}, v{A}, {sq(S_DBG)}, {t2} offen sc1"
        cmp = f"v_cmp_ne_u32_e64 {M1}, {t4}, v{D}"
    else:
        base, mask = {"h": (0, 7), "o": (32, 3), "kv": (48, 1)}[kind]
        setup = f"v_and_b32 v{A}, {mask}, v{V_L}\nv_lshlrev_b32 v{A}, 2, v{A}\ns_mul_i32 {t2}, s2, {MB_STRIDE}\ns_add_u32 {t2}, {t2}, {MB_OFF + base}\ns_mov_b32 {t4}, 0x01010101"
        ld = f"buffer_load_dword v{D}, v{A}, {sq(S_WS)}, {t2} offen sc1"
        cmp = f"v_cmp_ne_u32_e64 {M1}, {t4}, v{D}"
    G.e(f"""
    {setup}
    s_mov_b32 {t3}, 0
    {lab}_loop:
    {ld}
    s_waitcnt vmcnt(0)
    {cmp}
    s_add_u32 {t3}, {t3}, 1
    s_cmp_eq_u64 {M1}, 0
    s_cbranch_scc1 {lab}_ok
    s_sleep {OPT.get('sleep', 4) if kind != 'init' else 16}
    s_cmp_lt_u32 {t3}, 0x8000
    s_cbranch_scc1 {lab}_loop
    """, opt=True)
    G.e(f"{lab}_ok:")
    return G

def tile_addrs(S, typ, AT, T):
    R, C, HH, NH = T + 1, T + 2, T + 3, T + 4
    S.e(f"""
    v_lshrrev_b32 v{HH}, 5, v{V_L}
    v_bfe_u32 v{NH}, v{V_L}, 4, 1
    v_bfe_u32 v{R}, v{V_L}, 2, 2
    v_and_b32 v{C}, 3, v{V_L}
    v_lshl_add_u32 v{T+5}, v{HH}, 3, v{R}
    v_lshlrev_b32 v{T+6}, 6, v{T+5}
    v_lshl_add_u32 v{T+8}, v{NH}, 2, v{C}
    v_add_u32 v{T+8}, s{S_ODD}, v{T+8}
    v_and_b32 v{T+8}, 7, v{T+8}
    v_lshl_add_u32 v{T+8}, v{T+8}, 3, v{T+6}
    """)
    if typ == "q":
        S.e(f"""
        v_add_u32 v{AT}, {W0 + 16384}, v{T+8}
        v_lshrrev_b32 v{T+6}, 1, v{C}
        v_and_b32 v{T+7}, 2, v{R}
        v_xor_b32 v{T+6}, v{T+6}, v{T+7}
        v_lshl_add_u32 v{T+6}, v{NH}, 2, v{T+6}
        v_lshlrev_b32 v{T+7}, 7, v{T+5}
        v_lshl_add_u32 v{T+7}, v{T+6}, 4, v{T+7}
        v_and_b32 v{T+6}, 1, v{C}
        v_lshl_add_u32 v{T+7}, v{T+6}, 3, v{T+7}
        v_lshl_add_u32 v{T+7}, v{NH}, 13, v{T+7}
        v_add_u32 v{AT+1}, {W0}, v{T+7}
        v_xor_b32 v{AT+2}, 32, v{AT+1}
        v_xor_b32 v{AT+3}, 64, v{AT+1}
        v_xor_b32 v{AT+4}, 0x60, v{AT+1}
        """)
    else:
        S.e(f"""
        v_add_u32 v{AT}, {W0}, v{T+8}
        v_lshl_add_u32 v{T+7}, v{C}, 3, v{T+6}
        v_mul_u32_u24 v{T+8}, 1056, v{NH}
        v_add_u32 v{AT+1}, v{T+7}, v{T+8}
        v_add_u32 v{AT+1}, {W0 + 2048}, v{AT+1}
        v_xor_b32 v{AT+2}, 32, v{AT+1}
        v_lshlrev_b32 v{T+6}, 5, v{T+5}
        v_lshl_add_u32 v{T+6}, v{C}, 3, v{T+6}
        v_mul_u32_u24 v{T+7}, 2176, v{NH}
        v_add_u32 v{AT+3}, v{T+6}, v{T+7}
        v_add_u32 v{AT+3}, {W0 + 16384}, v{AT+3}
        v_xor_b32 v{AT+4}, 0x80, v{AT+3}
        """)

def tile_read_args(typ, t, s, e):
    if typ == "q":
        return (0, s*1024 + e*256) if t == 0 else (t, s*2048 + e*512)
    if t == 0: return (0, s*4096 + e*256)
    if t == 1: return (0, s*4096 + 1024 + e*256)
    if t == 2: return (3 + e, s*512)
    return (t - 2, s*4096 + e*256)

def pk(S, op, d, srcs, neg=None):
    ops = []; lo = []; hi = []
    for kind, r in srcs:
        if kind == "p": assert r % 2 == 0; ops.append(vr(r, 2)); lo.append(0); hi.append(1)
        else: ops.append(vr(r & ~1, 2)); lo.append(r & 1); hi.append(r & 1)
    assert d % 2 == 0
    txt = f"v_pk_{op}_f32 {vr(d, 2)}, " + ", ".join(ops)
    if any(lo): txt += " op_sel:[" + ",".join(map(str, lo)) + "]"
    if not all(hi): txt += " op_sel_hi:[" + ",".join(map(str, hi)) + "]"
    if neg: txt += f" neg_lo:[{','.join(map(str, neg))}] neg_hi:[{','.join(map(str, neg))}]"
    S.e(txt)
    S[-1].opsel = False

def scale16(S, a):
    for i in range(0, 16, 2): pk(S, "mul", a + i, [("p", a + i), ("b", V_RINV)])

def geglu(S, a, T, unit_sgpr, unit_add):
    R = range(0, 8, 2)
    for i in R: pk(S, "mul", T + i, [("p", a + i), ("p", a + i)])
    for i in R: pk(S, "fma", T + i, [("p", T + i), ("b", V_C1), ("b", V_C0)])
    for i in R: pk(S, "mul", T + i, [("p", T + i), ("p", a + i)])
    for i in range(8): S.e(f"v_exp_f32 v{T+i}, v{T+i}")
    for i in R: pk(S, "mul", a + i, [("p", a + i), ("p", a + 8 + i)])
    for i in R: pk(S, "fma", T + i, [("p", T + i), ("b", V_S2), ("b", V_S2)])
    for i in range(8): S.e(f"v_rcp_f32 v{T+i}, v{T+i}")
    for i in R: pk(S, "mul", a + i, [("p", a + i), ("p", T + i)])
    for i in range(4): S.e(f"v_cvt_pk_bf16_f32 v{T+8+i}, v{a+2*i}, v{a+2*i+1}")
    S.e(f"s_add_u32 s{S_G}, s{unit_sgpr}, {unit_add * 1024}")
    S.e(f"buffer_store_dwordx4 {vr(T+8)}, v{V_L16}, {sq(S_WS)}, s{S_G} offen{OPT['hf_flags']}", tag="hst")

def softmax14(S, P, E, T):
    N = 14; R = range(0, N, 2)
    for i in range(7): S.e(f"v_cvt_pk_bf16_f32 v{E+i}, v{P+2*i}, v{P+2*i+1}")
    for i in range(7): S.e(f"v_lshlrev_b32 v{P+2*i}, 16, v{E+i}\nv_and_b32 v{P+2*i+1}, 0xffff0000, v{E+i}")
    L = T + 4
    S.e(f"v_mov_b32 v{L}, {f32(1.4426950408889634)}")
    MX, MN = T, T + 1
    S.e(f"v_max3_f32 v{MX}, v{P}, v{P+1}, v{P+2}\nv_min3_f32 v{MN}, v{P}, v{P+1}, v{P+2}")
    for i in range(3, 13, 2):
        S.e(f"v_max3_f32 v{MX}, v{MX}, v{P+i}, v{P+i+1}\nv_min3_f32 v{MN}, v{MN}, v{P+i}, v{P+i+1}")
    S.e(f"v_max_f32 v{MX}, v{MX}, v{P+13}\nv_min_f32 v{MN}, v{MN}, v{P+13}")
    S.e(f"v_mov_b32 v{T+2}, v{MX}\nv_mov_b32 v{T+3}, v{MN}\nv_permlane32_swap_b32 v{T+2}, v{MX}\nv_permlane32_swap_b32 v{T+3}, v{MN}")
    S.e(f"v_max_f32 v{MX}, v{MX}, v{T+2}\nv_min_f32 v{MN}, v{MN}, v{T+3}")
    pk(S, "mul", T, [("p", T), ("b", L)])
    for i in R: pk(S, "fma", E + i, [("p", P + i), ("b", L), ("b", MX)], neg=[0, 0, 1])
    for i in R: pk(S, "fma", P + i, [("p", P + i), ("b", L), ("b", MN)], neg=[1, 0, 0])
    for i in range(N): S.e(f"v_exp_f32 v{E+i}, v{E+i}")
    for i in range(N): S.e(f"v_exp_f32 v{P+i}, v{P+i}")
    pk(S, "add", T, [("p", E), ("p", E + 2)]); pk(S, "add", T + 2, [("p", P), ("p", P + 2)])
    for i in range(4, N, 2):
        pk(S, "add", T, [("p", T), ("p", E + i)]); pk(S, "add", T + 2, [("p", T + 2), ("p", P + i)])
    SP, SM = T, T + 1
    S.e(f"v_add_f32 v{SP}, v{T}, v{T+1}\nv_add_f32 v{SM}, v{T+2}, v{T+3}")
    S.e(f"v_mov_b32 v{T+2}, v{SP}\nv_mov_b32 v{T+3}, v{SM}\nv_permlane32_swap_b32 v{T+2}, v{SP}\nv_permlane32_swap_b32 v{T+3}, v{SM}")
    pk(S, "add", T, [("p", T), ("p", T + 2)])
    S.e(f"v_rcp_f32 v{SP}, v{SP}\nv_rcp_f32 v{SM}, v{SM}")
    for i in R: pk(S, "mul", E + i, [("p", E + i), ("b", SP)])
    for i in R: pk(S, "mul", P + i, [("p", P + i), ("b", SM)])
    for i in range(7): S.e(f"v_cvt_pk_bf16_f32 v{E+i}, v{E+2*i}, v{E+2*i+1}")
    for i in range(7): S.e(f"v_cvt_pk_bf16_f32 v{E+8+i}, v{P+2*i}, v{P+2*i+1}")
    S.e(f"v_mov_b32 v{E+7}, 0\nv_mov_b32 v{E+15}, 0")

def stats_consts(S):
    S.e(f"""
    v_mov_b32 v{BP}, v{V_RINV}
    v_mov_b32 v{BP+1}, v{V_RINV}
    v_mov_b32 v{BP+2}, v{V_RINV}
    v_mov_b32 v{BP+3}, v{V_RINV}
    v_rcp_f32 v{V_RINV}, v{V_SD}
    v_mul_f32 v{V_S2}, v{V_SD}, v{V_SD}
    v_mul_f32 v{V_C0}, {f32(-2.302208198)}, v{V_RINV}
    v_mul_f32 v{V_C1}, v{V_RINV}, v{V_RINV}
    v_mul_f32 v{V_C1}, v{V_C1}, v{V_C0}
    v_mul_f32 v{V_C1}, {f32(0.044715)}, v{V_C1}
    """)


def tagpoll(G, lab, A, D, soff, opt=False, first_issued=False, sleep=None):
    if first_issued:
        G.e(f"v_cmp_eq_u32_e64 {M1}, -1, v{D}\ns_mov_b32 {t3}, 0\ns_cmp_eq_u64 {M1}, 0\ns_cbranch_scc1 {lab}_ok")
        opt = True
    else:
        G.e(f"s_mov_b32 {t3}, 0")
    G.e(f"""
    {lab}_loop:
    buffer_load_dword v{D}, v{A}, {sq(S_WS)}, {soff} offen sc1
    s_waitcnt vmcnt(0)
    v_cmp_eq_u32_e64 {M1}, -1, v{D}
    s_add_u32 {t3}, {t3}, 1
    s_cmp_eq_u64 {M1}, 0
    s_cbranch_scc1 {lab}_ok
    s_sleep {sleep if sleep else OPT.get('sleep', 4)}
    s_cmp_lt_u32 {t3}, 0x8000
    s_cbranch_scc1 {lab}_loop
    """, opt=opt)
    G.e(f"{lab}_ok:")

def umax_tree(G, regs, T, opt=False):
    G.e(f"v_max3_u32 v{T}, v{regs[0]}, v{regs[1]}, v{regs[2]}", opt=opt)
    i = 3
    while i + 1 < len(regs):
        G.e(f"v_max3_u32 v{T}, v{T}, v{regs[i]}, v{regs[i+1]}", opt=opt); i += 2
    if i < len(regs): G.e(f"v_max_u32 v{T}, v{T}, v{regs[i]}", opt=opt)

def prologue():
    S = Stream()
    S.e(f"""
    s_cmp_ge_u32 s2, 256
    s_cbranch_scc1 K_END
    {'s_memrealtime s[92:93]' if OPT.get('stamps') else ''}
    s_load_dwordx16 s[4:19], s[0:1], 0
    s_load_dwordx4 s[20:23], s[0:1], 72
    s_load_dwordx2 s[{S_OUT}:{S_OUT+1}], s[0:1], 64
    v_lshrrev_b32 v{PT}, 6, v0
    v_and_b32 v{V_L}, 63, v0
    v_readfirstlane_b32 s3, v{PT}
    v_lshlrev_b32 v{V_L16}, 4, v{V_L}
    v_mov_b32 v{V_Z}, 0
    s_and_b32 {t0}, s2, 7
    s_lshr_b32 {t1}, s2, 3
    s_and_b32 s{S_MT}, {t0}, 1
    s_lshl_b32 s{S_MT}, s{S_MT}, 2
    s_and_b32 {t2}, {t1}, 3
    s_add_u32 s{S_MT}, s{S_MT}, {t2}
    s_lshr_b32 s{S_C4}, {t0}, 1
    s_lshr_b32 {t1}, {t1}, 2
    s_and_b32 s{S_TYPE}, {t1}, 1
    s_lshr_b32 s{S_HL}, {t1}, 1
    s_lshl_b32 s{S_HEAD}, s{S_C4}, 2
    s_add_u32 s{S_HEAD}, s{S_HEAD}, s{S_HL}
    s_and_b32 s{S_ODD}, s{S_HEAD}, 1
    s_lshl_b32 {t2}, s{S_MT}, 2
    s_add_u32 {t2}, {t2}, s{S_C4}
    s_lshl_b32 {t2}, {t2}, 3
    s_add_u32 {t2}, {t2}, {t1}
    s_lshl_b32 {t2}, {t2}, 3
    s_and_b32 {t3}, s3, 7
    s_add_u32 s{S_SROW}, {t2}, {t3}
    s_mov_b32 s{S_HH}, 0
    s_mov_b32 s{S_HH+1}, -1
    s_mul_i32 {t0}, s{S_C4}, 896
    s_lshl_b32 {tm}, s{S_HL}, 7
    s_add_u32 {t3}, {t0}, {tm}
    s_add_u32 {t0}, {t0}, 512
    s_mul_i32 {t1}, s{S_HL}, 3
    s_and_b32 {t2}, s{S_HL}, 1
    s_add_u32 {t5}, {t1}, {t2}
    s_lshl_b32 {t2}, {t2}, 1
    s_add_u32 {t1}, {t1}, 2
    s_sub_u32 {t1}, {t1}, {t2}
    s_lshl_b32 {t1}, {t1}, 5
    s_add_u32 {t1}, {t1}, {t0}
    s_lshl_b32 {t5}, {t5}, 5
    s_add_u32 {t0}, {t0}, {t5}
    s_cmp_eq_u32 s{S_TYPE}, 1
    s_cselect_b32 s{S_U0}, {t1}, {t3}
    s_cselect_b32 s{S_U12}, {t0}, {t3}
    s_cmp_lt_u32 s3, 8
    s_cbranch_scc1 K_comp
    """)
    return S

def p2_ids(S):
    S.e(f"""
    s_and_b32 {t0}, s2, 7
    s_lshr_b32 {t1}, s2, 3
    s_and_b32 {t2}, {t0}, 1
    s_lshl_b32 {t2}, {t2}, 2
    s_lshr_b32 {t0}, {t0}, 1
    s_add_u32 s{S_MT2}, {t0}, {t2}
    s_lshl_b32 s{S_M64}, s{S_MT2}, 2
    s_and_b32 {t2}, {t1}, 3
    s_add_u32 s{S_M64}, s{S_M64}, {t2}
    s_lshr_b32 s{S_N64}, {t1}, 2
    """)
def p2_a_voffsets(S, VD, VO, VOM, T):
    S.e(f"""
    v_lshrrev_b32 v{T}, 3, v{V_L}
    v_and_b32 v{T+1}, 7, v{V_L}
    v_bfe_u32 v{T+2}, v{V_L}, 4, 1
    v_lshlrev_b32 v{T+2}, 2, v{T+2}
    v_xor_b32 v{T+1}, v{T+1}, v{T+2}
    s_lshl_b32 {t0}, s{S_N64}, 7
    v_lshlrev_b32 v{T+1}, 4, v{T+1}
    v_add_u32 v{T+1}, {t0}, v{T+1}
    v_mul_u32_u24 v{VD}, 896, v{T}
    v_add_u32 v{VD}, v{VD}, v{T+1}
    """)
    if VO is not None:
        S.e(f"""
        v_lshrrev_b32 v{T+2}, 2, v{T}
        v_and_b32 v{T+3}, 3, v{T}
        v_mad_u32_u24 v{T+2}, v{T+2}, 14, v{T+3}
        v_mul_u32_u24 v{VO}, 896, v{T+2}
        v_add_u32 v{VO}, v{VO}, v{T+1}
        v_cmp_lt_u32_e64 {M1}, 1, v{T+3}
        v_mov_b32 v{T+2}, 0x7f000000
        v_cndmask_b32_e64 v{VOM}, v{VO}, v{T+2}, {M1}
        """)

def hsync(S, lab, cnt_off, target, A, B):
    S.wait_lgkm()
    S.e(f"""
    v_mov_b32 v{A}, {CNT + cnt_off}
    v_mov_b32 v{B}, 1
    s_mov_b64 exec, 1
    ds_add_u32 v{A}, v{B}
    s_mov_b64 exec, -1
    {lab}:
    ds_read_b32 v{B}, v{A}
    s_waitcnt lgkmcnt(0)
    v_readfirstlane_b32 {t1}, v{B}
    s_cmp_lt_u32 {t1}, {target}
    s_cbranch_scc1 {lab}
    """)

def helper_head():
    S = Stream(); T = PT
    S.e("K_helper:")
    S.e(f"s_setprio {OPT.get('hprio', 3)}")
    S.e(f"""
    s_sub_u32 s{S_H}, s3, 8
    s_lshl_b32 {t0}, s{S_MT}, 2
    s_add_u32 {t0}, {t0}, s{S_H}
    s_mul_i32 s{S_XROW}, {t0}, {64*896}
    s_mul_i32 s{S_AREA}, s{S_H}, {2*AREA}
    v_lshrrev_b32 v{T+7}, 3, v{V_L}
    v_mul_u32_u24 v{T}, 896, v{T+7}
    v_and_b32 v{T+8}, 7, v{V_L}
    v_lshrrev_b32 v{T+2}, 4, v{V_L}
    v_xor_b32 v{T+1}, v{T+8}, v{T+2}
    v_lshl_add_u32 v4, v{T+1}, 4, v{T}
    v_xor_b32 v5, 64, v4
    s_mul_i32 {t1}, s{S_HEAD}, 56
    s_lshl_b32 {t2}, s{S_ODD}, 3
    s_sub_u32 {t1}, {t1}, {t2}
    v_lshrrev_b32 v{T}, 2, v{V_L}
    v_and_b32 v{T+1}, 3, v{V_L}
    v_mul_u32_u24 v{T+4}, 2688, v{T}
    v_lshl_add_u32 v{T+4}, v{T+1}, 4, v{T+4}
    s_mul_i32 {tm}, s{S_H}, {16*2688}
    s_add_u32 {t1}, {t1}, {tm}
    v_add_u32 v6, {t1}, v{T+4}
    s_waitcnt lgkmcnt(0)
    """)
    srd(S, S_X, 4, 2048 * 896); srd(S, S_WQ, 6, 448 * 2688); srd(S, S_WG, 14, 448 * 3584); srd(S, S_WU, 16, 448 * 3584)
    S.e(f"s_cmp_eq_u32 s{S_TYPE}, 1\ns_cbranch_scc1 K_hkv")
    return S

def helper(typ):
    q = typ == "q"
    S = Stream(); T = PT
    S.e(f"K_h{typ}:")
    global HST
    HST = Stamper(STAMPR); HST.n = 1; HST.names = ["start"]
    V_XE, V_XO, V_DQ, V_DG, V_DU, V_DS = 4, 5, 6, 7, 8, 9
    V_AC = 10; V_PF = 16
    CA = 18; CU = 23; CT = 34
    if q:
        S.e(f"""
        v_bfe_u32 v{T+2}, v{V_L}, 4, 1
        v_lshlrev_b32 v{T+2}, 1, v{T+2}
        v_xor_b32 v{T+2}, v{T+2}, v{T+8}
        v_mul_u32_u24 v{T+3}, 3584, v{T+7}
        v_lshl_add_u32 v{T+2}, v{T+2}, 4, v{T+3}
        s_mul_i32 {tm}, s{S_H}, {16*3584}
        s_add_u32 {tm}, {tm}, s{S_U0}
        v_add_u32 v{V_DG}, {tm}, v{T+2}
        v_xor_b32 v{V_DU}, 64, v{V_DG}
        """)
    else:
        S.e(f"""
        v_mul_u32_u24 v{T+3}, 3584, v{T}
        v_lshl_add_u32 v{V_DG}, v{T+1}, 4, v{T+3}
        s_mul_i32 {tm}, s{S_H}, {16*3584}
        s_add_u32 {tm}, {tm}, s{S_U12}
        v_add_u32 v{V_DG}, {tm}, v{V_DG}
        v_xor_b32 v{V_DU}, 32, v{V_DG}
        s_lshr_b32 {t2}, s{S_H}, 1
        s_cmp_eq_u32 {t2}, 0
        s_cselect_b32 s{S_D1}, s14, s16
        s_cselect_b32 s{S_D1+1}, s15, s17
        s_mov_b32 s{S_D1+2}, {448*3584}
        s_mov_b32 s{S_D1+3}, 0x20000
        s_lshl_b32 {t2}, {t2}, 2
        v_lshrrev_b32 v{T+5}, 1, v{V_L}
        v_xor_b32 v{T+5}, {t2}, v{T+5}
        v_mul_u32_u24 v{T+5}, 3584, v{T+5}
        v_and_b32 v{T+6}, 1, v{V_L}
        v_lshl_add_u32 v{T+5}, v{T+6}, 4, v{T+5}
        s_and_b32 {t2}, s{S_H}, 1
        s_mul_i32 {t2}, {t2}, {32*3584}
        s_add_u32 {t2}, {t2}, s{S_U0}
        v_add_u32 v{V_DS}, {t2}, v{T+5}
        """)
    S.e(f"s_lshl_b32 s{S_D0L}, s{S_H}, 10\ns_add_u32 s{S_D0L}, s{S_D0L}, {W0}\ns_lshl_b32 s{S_G}, s{S_H}, {11 if q else 12}\ns_add_u32 s{S_G}, s{S_G}, {W0}")
    def dma(c, lo=0, hi=13):
        sb = (c % 3) * WS_
        L = []
        def one(m0expr, soff, v, srdreg): L.append((m0expr, soff, v, srdreg))
        if q:
            one(f"s{S_D0L}, {sb + 16384}", f"s_mov_b32 {tm}, {c*172032}", V_DQ, S_WQ)
            for rg in range(2):
                one(f"s{S_G}, {sb + rg*1024}", f"s_mov_b32 {tm}, {c*229376 + rg*8*3584}", V_DG, S_WG)
                one(f"s{S_G}, {sb + 8192 + rg*1024}", f"s_mov_b32 {tm}, {c*229376 + rg*8*3584}", V_DU, S_WU)
        else:
            one(f"s{S_G}, {sb}", f"s_mov_b32 {tm}, {c*172032 + 896}", V_DQ, S_WQ)
            one(f"s{S_G}, {sb + 1024}", f"s_mov_b32 {tm}, {c*172032 + 1792}", V_DQ, S_WQ)
            one(f"s{S_G}, {sb + 2048}", f"s_mov_b32 {tm}, {c*229376}", V_DG, S_WG)
            one(f"s{S_G}, {sb + 3072}", f"s_mov_b32 {tm}, {c*229376}", V_DU, S_WU)
            one(f"s{S_D0L}, {sb + 16384}", f"s_mov_b32 {tm}, {c*229376}", V_DS, S_D1)
        for i in range(8):
            wv, qq = i >> 2, i & 3
            one(f"s{S_AREA}, {wv*AREA + (c % 3)*4096 + qq*1024}", f"s_add_u32 {tm}, s{S_XROW}, {(wv*32 + qq*8)*896 + c*128}", V_XO if qq & 1 else V_XE, S_X)
        for (m0expr, soff, v, srdreg) in L[lo:hi]:
            S.e(f"s_add_u32 m0, {m0expr}\n{soff}")
            fl = OPT.get("x_flags", "") if srdreg == S_X else OPT.get("w_flags", "")
            S.e(f"buffer_load_dwordx4 v{v}, {sq(srdreg)}, {tm} offen{fl} lds", tag=f"d{c}")
    plan = [int(x) for x in OPT.get("dplan", "16,14,14,16,16,16").split(",")]
    pos = [0]
    def issue(n, limit_chunk):
        while n > 0 and pos[0] < 91 and pos[0] // 13 <= limit_chunk:
            c, i = divmod(pos[0], 13)
            dma(c, i, i + 1); pos[0] += 1; n -= 1
    issue(13, 2)
    tile_addrs(S, typ, V_AC, 60)
    for t in range(5):
        stride = (1024 if t == 0 else 2048) if q else (512 if t >= 3 else 4096)
        S.e(f"s_mul_i32 {t0}, s{S_H}, {stride}\nv_add_u32 v{V_AC+t}, {t0}, v{V_AC+t}")
    for i in range(5): S.e(f"v_mov_b32 v{CA+i}, 0")
    issue(plan[0] - 13, 2)
    def colsum_rd(c):
        for t in range(5):
            for e in range(2):
                a, imm = tile_read_args(typ, t, 0, e)
                S.e(f"ds_read_b64_tr_b16 {vr(CT + 20*(c % 5) + 4*t + 2*e, 2)}, v{V_AC+a} offset:{(c % 3)*WS_ + imm}")
    hb = [0]
    CM = OPT.get("csmode", "mfma")
    if CM == "mfma":
        for i in range(20): S.e(f"v_mov_b32 v{140+i}, 0")
        S.e("v_mov_b32 v134, 0x3f803f80\nv_mov_b32 v135, 0x3f803f80")
    def colsum_add(nhalf):
        if CM != "valu":
            for _ in range(nhalf):
                c, hf = hb[0] >> 1, hb[0] & 1; hb[0] += 1
                for t in range(5):
                    src = CT + 20*(c % 5) + 4*t + 2*hf
                    if CM == "mfma": S.e(f"v_mfma_f32_4x4x4_16b_bf16 {vr(140+4*t)}, v[134:135], {vr(src, 2)}, {vr(140+4*t)}")
                    else: S.e(f"v_dot2c_f32_bf16 v{CA+t}, 0x3f803f80, v{src}")
                if CM == "dot":
                    for t in range(5): S.e(f"v_dot2c_f32_bf16 v{CA+t}, 0x3f803f80, v{CT + 20*(c % 5) + 4*t + 2*hf + 1}")
            return
        for _ in range(nhalf):
            c, hf = hb[0] >> 1, hb[0] & 1; hb[0] += 1
            for j in (2*hf, 2*hf + 1):
                src = CT + 20*(c % 5) + j
                for t in range(5): S.e(f"v_lshlrev_b32 v{CU+t}, 16, v{src + 4*t}")
                for t in range(5): S.e(f"v_and_b32 v{CU+5+t}, 0xffff0000, v{src + 4*t}")
                for t in range(5): S.e(f"v_add_f32 v{CA+t}, v{CA+t}, v{CU+t}")
                for t in range(5): S.e(f"v_add_f32 v{CA+t}, v{CA+t}, v{CU+5+t}")
    S.wait_vm("d0"); S.e("s_barrier")
    colsum_rd(0); issue(plan[1], 2)
    S.wait_lgkm(); S.wait_vm("d1"); S.e("s_barrier")
    colsum_rd(1); issue(plan[2], 3)
    srd(S, S_WS, 22, WS_SIZE); srd(S, S_DBG, 20, 256); srd(S, S_WO, 8, 16 * 1568); srd(S, S_WD, 18, 1792 * 896)
    sched = dict(zip(range(2, 7), [int(x) for x in OPT.get('sched', '4,2,2,2,4').split(',')]))
    for c in range(2, 7):
        if c == 6: S.extend(poll(f"K_h{typ}_pst", "init", V_TMP, 17, who=8))
        F = (lambda n: HST(S, n, fine=True)) if (c in (3, 4) and OPT.get('hfine')) else (lambda n: None)
        F("pre")
        S.wait_lgkm(); S.wait_vm(f"d{c}")
        F("landed")
        S.e("s_barrier")
        F("bar")
        issue(plan[c + 1] if c + 1 < len(plan) else 99, c + 2)
        assert pos[0] >= min(91, 13 * (c + 2)), (c, pos[0])
        F("dma")
        if c == 2:
            for i in range(2):
                S.e(f"""
                v_lshrrev_b32 v{T+24}, 4, v{V_L}
                s_lshl_b32 {t0}, s{S_H}, 3
                s_add_u32 {t0}, {t0}, {4*i}
                v_add_u32 v{T+24}, {t0}, v{T+24}
                v_bfe_u32 v{T+25}, v{V_L}, 3, 1
                v_and_b32 v{T+26}, 7, v{V_L}
                v_mad_u32_u24 v{T+25}, v{T+25}, 7, v{T+26}
                v_mad_u32_u24 v{T+25}, v{T+24}, 14, v{T+25}
                v_lshlrev_b32 v{T+25}, 2, v{T+25}
                v_cmp_eq_u32_e64 {M1}, 7, v{T+26}
                s_cmp_eq_u32 {t0}, 28
                s_cselect_b64 {M1}, -1, {M1}
                v_mov_b32 v{T+26}, 0x7fffff00
                v_cndmask_b32_e64 v{T+25}, v{T+25}, v{T+26}, {M1}
                s_mul_i32 {t1}, s{S_HEAD}, 1568
                s_lshl_b32 {t0}, {t0}, 6
                s_add_u32 m0, {t0}, {WPHI}
                """)
                S.e(f"buffer_load_dword v{T+25}, {sq(S_WO)}, {t1} offen lds", tag="phi")
        if c == int(OPT.get("pfc", 6)) and OPT["prefetch"]:
            S.e(f"""
            s_lshr_b32 {t0}, s2, 3
            s_lshl_b32 {t0}, {t0}, 2
            s_add_u32 {t0}, {t0}, s{S_H}
            s_lshl_b32 {t0}, {t0}, 14
            s_mov_b32 {t3}, {1792*896}
            s_cmp_lt_u32 {t0}, {t3}
            s_cselect_b32 s{S_PF}, s18, s10
            s_cselect_b32 s{S_PF+1}, s19, s11
            s_cselect_b32 s{S_PF+2}, {t3}, {448*896}
            s_mov_b32 s{S_PF+3}, 0x20000
            s_cselect_b32 {t3}, 0, {t3}
            s_sub_u32 {t0}, {t0}, {t3}
            v_lshlrev_b32 v{V_PF}, 7, v{V_L}
            s_add_u32 {t1}, {t0}, 0x2000
            """)
            S.e(f"buffer_load_dword v{T+27}, v{V_PF}, {sq(S_PF)}, {t0} offen\nbuffer_load_dword v{T+28}, v{V_PF}, {sq(S_PF)}, {t1} offen", tag="pf")
        if c >= 5:
            colsum_rd(c); colsum_add(sched[c])
        else:
            colsum_rd(c); colsum_add(sched[c])
    assert hb[0] == 14
    if CM == "mfma":
        for t in range(5): S.e(f"v_mov_b32 v{CA+t}, v{140+4*t}")
    S.e(f"s_lshl_b32 {t0}, s{S_H}, 2\ns_add_u32 {t0}, {t0}, {CSP}\nv_add_u32 v{T}, {t0}, v{V_L16}")
    for t in range(5): S.e(f"v_cvt_pk_bf16_f32 v{T+1+t}, v{CA+t}, v{CA+t}")
    for t in range(5): S.e(f"v_lshlrev_b32 v{T+1+t}, 16, v{T+1+t}")
    for t in range(5): S.e(f"v_sub_f32 v{T+1+t}, v{CA+t}, v{T+1+t}")
    for t in range(5): S.e(f"v_cvt_pk_bf16_f32 v{T+1+t}, v{CA+t}, v{T+1+t}")
    for t in range(5): S.e(f"ds_write_b32 v{T}, v{T+1+t} offset:{t*1024}")
    S.wait_vm("phi"); S.wait_lgkm()
    return S

def hpost(typ):
    q = typ == "q"
    S = Stream(); T = PT
    S.e(f"K_hpost_{typ}:")
    st = HST
    V_WD = 18
    p2_ids(S)
    p2_a_voffsets(S, V_WD, None, None, 60)
    S.e(f"""
    s_mul_i32 s{S_AREA}, s{S_H}, {2*REG2}
    s_and_b32 {t0}, s{S_H}, 1
    s_lshl_b32 {t0}, {t0}, 2
    s_lshr_b32 {t1}, s{S_H}, 1
    s_add_u32 {t0}, {t0}, {t1}
    s_mul_i32 s{S_XROW}, {t0}, {14*16*896}
    s_cmp_ge_u32 s2, 224
    s_cselect_b32 {t0}, 0x40000000, 0
    s_add_u32 s{S_XROW}, s{S_XROW}, {t0}
    """)
    def B1():
        S.e(f"s_barrier\ns_setprio {OPT.get('hprio2', 0)}")
        st(S, "B1")
    def adma(lo, hi):
        for i in range(lo, hi):
            for wv in range(2):
                for u in range(2):
                    S.e(f"s_add_u32 m0, s{S_AREA}, {wv*REG2 + i*2048 + u*1024}\ns_add_u32 {tm}, s{S_XROW}, {((wv*28 + i)*16 + 8*u)*896}")
                    S.e(f"buffer_load_dwordx4 v{V_WD}, {sq(S_WD)}, {tm} offen lds", tag="a1")
    if q:
        KO = 4; U = 5; PH = 100
        S.e(f"""
        s_lshl_b32 {t0}, s{S_H}, 11
        v_add_u32 v{KO}, {t0}, v{V_L16}
        v_and_b32 v{U+3}, 7, v{V_L}
        v_lshlrev_b32 v{U+3}, 13, v{U+3}
        v_add_u32 v{U+3}, 0x1e80, v{U+3}
        s_lshl_b32 {t0}, s{S_H}, 10
        s_add_u32 {t0}, {t0}, {KVF}
        v_add_u32 v{U}, {t0}, v{V_L16}
        v_add_u32 v{U+1}, {KVF}, v{V_L16}
        v_add_u32 v{U+2}, s{S_AREA}, v{V_L16}
        s_lshl_b32 {t0}, s{S_MT}, 2
        s_add_u32 {t0}, {t0}, s{S_H}
        s_mul_i32 s{S_HFB}, {t0}, {2*NKS*1024}
        s_lshl_b32 {t0}, s{S_HEAD}, 11
        s_add_u32 s{S_HFB}, s{S_HFB}, {t0}
        s_add_u32 s{S_HFB}, s{S_HFB}, {112*1024}
        s_lshl_b32 s{S_G}, s{S_HEAD}, 16
        s_add_u32 s{S_G}, s{S_G}, {KVP_OFF}
        """)
        B1(); adma(0, 6)
        S.wait_vm("a1")
        S.e(f"v_mov_b32 v12, {CNT + 20}\nv_mov_b32 v13, 1\ns_mov_b64 exec, 1\nds_add_u32 v12, v13\ns_mov_b64 exec, -1")
        S.e("s_barrier")
        st(S, "B2")
        for wv in range(2):
            for k in range(4): S.e(f"ds_read_b128 {vr(PH + 16*wv + 4*k)}, v{U+2} offset:{wv*REG2 + PKO + k*1024}")
        S.wait_lgkm()
        S.e(f"v_mov_b32 v12, {CNT + 12}\nv_mov_b32 v13, 1\ns_mov_b64 exec, 1\nds_add_u32 v12, v13\ns_mov_b64 exec, -1\ns_setprio 3")
        S.e(f"v_mov_b32 v14, {CNT + 16}\ns_cmp_lg_u32 s3, 8\ns_cbranch_scc1 K_hq_spin")
        G = Stream(); tagpoll(G, "K_hq_pkv", U + 3, V_TMP, f"s{S_G}", opt=True, sleep=int(OPT.get("sleepkv", 8)))
        for x in G: x.opt = True
        S.extend(G)
        S.e(f"ds_write_b32 v14, v13\ns_branch K_hq_go", opt=True)
        S.e(f"""
        K_hq_spin:
        s_sleep 2
        ds_read_b32 v13, v14
        s_waitcnt lgkmcnt(0)
        v_readfirstlane_b32 {t1}, v13
        s_cmp_eq_u32 {t1}, 0
        s_cbranch_scc1 K_hq_spin
        """, opt=True)
        S.e("K_hq_go:")
        st(S, "kvrdy")
        KL = 20
        S.e(f"s_mov_b32 {t4}, 0\nK_hq_gather:\ns_mov_b32 {t0}, s{S_G}")
        for i in range(8):
            for e in range(2):
                S.e(f"buffer_load_dwordx4 {vr(KL + 8*i + 4*e)}, v{KO}, {sq(S_WS)}, {t0} offen offset:{e*1024} sc1")
            if i < 7: S.e(f"s_add_u32 {t0}, {t0}, 8192")
        umax_tree(S, list(range(KL, KL + 64)), V_TMP)
        S.e(f"""
        v_cmp_eq_u32_e64 {M1}, -1, v{V_TMP}
        s_add_u32 {t4}, {t4}, 1
        s_cmp_eq_u64 {M1}, 0
        s_cbranch_scc1 K_hq_gok
        s_cmp_lt_u32 {t4}, 0x1000
        s_cbranch_scc1 K_hq_gather
        K_hq_gok:
        """)
        for step in (1, 2, 4):
            for i in range(0, 8, 2*step):
                for j in range(0, 8, 2): pk(S, "add", KL+8*i+j, [("p", KL+8*i+j), ("p", KL+8*(i+step)+j)])
        for j in range(4): S.e(f"v_cvt_pk_bf16_f32 v{KL+8+j}, v{KL+2*j}, v{KL+2*j+1}")
        S.e(f"ds_write_b128 v{U}, {vr(KL+8)}")
        hsync(S, "K_hq_sync", 0, 4, 12, 13)
        st(S, "kvf")
        KF = 20; OO = [36, 52]; G2 = 68; RR = [84, 92]
        for k in range(4): S.e(f"ds_read_b128 {vr(KF + 4*k)}, v{U+1} offset:{k*1024}")
        for wv in range(2):
            for k in range(4): S.e(f"{MF} {vr(OO[wv],16)}, {vr(KF + 4*k)}, {vr(PH + 16*wv + 4*k)}, {'0' if k == 0 else vr(OO[wv],16)}")
        for wv in range(2):
            O = OO[wv]; R = RR[wv]
            bf16r(S, G2, f"v{O+14}")
            S.e(f"v_add_f32 v{G2}, {f32(1e-6)}, v{G2}")
            bf16r(S, G2, f"v{G2}")
            S.e(f"v_rcp_f32 v{G2}, v{G2}")
            for i in range(7): S.e(f"v_cvt_pk_bf16_f32 v{G2+1+i}, v{O+2*i}, v{O+2*i+1}")
            for i in range(7): S.e(f"v_lshlrev_b32 v{O+2*i}, 16, v{G2+1+i}\nv_and_b32 v{O+2*i+1}, 0xffff0000, v{G2+1+i}")
            for i in range(0, 14, 2): pk(S, "mul", O + i, [("p", O + i), ("b", G2)])
            for i in range(7): S.e(f"v_cvt_pk_bf16_f32 v{R+i}, v{O+2*i}, v{O+2*i+1}")
            S.e(f"v_mov_b32 v{R+7}, 0\ns_add_u32 {t0}, s{S_HFB}, {wv*NKS*1024}")
            S.e(f"buffer_store_dwordx4 {vr(R)}, v{V_L16}, {sq(S_WS)}, {t0} offen sc1\nbuffer_store_dwordx4 {vr(R+4)}, v{V_L16}, {sq(S_WS)}, {t0} offen offset:1024 sc1", tag="ost")
    else:
        X = 20; KA = 4; KB = 10
        S.e(f"""
        v_lshrrev_b32 v{X}, 4, v{V_L}
        v_bfe_u32 v{X+1}, v{V_L}, 2, 2
        v_lshl_add_u32 v{X}, v{X}, 3, v{X+1}
        v_bfe_u32 v{X+2}, v{V_L}, 1, 1
        s_lshl_b32 {t0}, s{S_H}, 1
        v_add_u32 v{X+4}, {t0}, v{X+2}
        v_xor_b32 v{X+4}, v{X+4}, v{X+1}
        v_lshlrev_b32 v{X+3}, 7, v{X}
        v_lshl_add_u32 v{X+3}, v{X+4}, 4, v{X+3}
        v_and_b32 v{X+5}, 1, v{V_L}
        v_lshl_add_u32 v{KA}, v{X+5}, 3, v{X+3}
        v_add_u32 v{KA}, {PKO}, v{KA}
        v_xor_b32 v{KA+1}, 64, v{KA}
        v_lshrrev_b32 v{X+4}, 1, v{X+1}
        v_xor_b32 v{X+4}, v{X+4}, v{X+2}
        v_lshlrev_b32 v{X+3}, 6, v{X}
        v_lshl_add_u32 v{X+3}, v{X+4}, 4, v{X+3}
        v_lshl_add_u32 v{KB}, v{X+5}, 3, v{X+3}
        v_add_u32 v{KB}, {VVO}, v{KB}
        v_xor_b32 v{KB+1}, 32, v{KB}
        """)
        for rg in (1, 2):
            for k in range(2):
                S.e(f"v_add_u32 v{KA+2*rg+k}, {rg*3*REG2}, v{KA+k}\nv_add_u32 v{KB+2*rg+k}, {rg*3*REG2}, v{KB+k}")
        S.e(f"""
        s_lshl_b32 {t4}, s{S_HEAD}, 3
        s_add_u32 {t4}, {t4}, s{S_MT}
        s_lshl_b32 {t4}, {t4}, 13
        s_lshr_b32 {t0}, s{S_H}, 1
        s_lshl_b32 {t0}, {t0}, 12
        s_add_u32 {t4}, {t4}, {t0}
        s_and_b32 {t0}, s{S_H}, 1
        s_lshl_b32 {t0}, {t0}, 9
        s_add_u32 {t4}, {t4}, {t0}
        s_add_u32 {t4}, {t4}, {KVP_OFF}
        """)
        for dh in range(2):
            D = 130 + dh
            S.e(f"""
            v_bfe_u32 v{X}, v{V_L}, 2, 2
            v_and_b32 v{X+1}, 3, v{V_L}
            v_lshl_add_u32 v{X}, v{X}, 3, v{X+1}
            v_add_u32 v{X}, {4*dh}, v{X}
            v_cmp_lt_u32_e64 {M1}, 13, v{X}
            v_subrev_u32 v{X+1}, 14, v{X}
            v_cndmask_b32_e64 v{X+1}, v{X}, v{X+1}, {M1}
            v_cndmask_b32_e64 v{X+2}, 0, 4, {M1}
            v_cmp_lt_u32_e64 {M2}, 27, v{X}
            v_and_b32 v{X+3}, 1, v{X}
            v_lshlrev_b32 v{X+3}, 2, v{X+3}
            v_bfe_u32 v{X+4}, v{X}, 1, 1
            v_add_u32 v{X+4}, 14, v{X+4}
            v_cndmask_b32_e64 v{X+1}, v{X+1}, v{X+4}, {M2}
            v_cndmask_b32_e64 v{X+2}, v{X+2}, v{X+3}, {M2}
            v_lshrrev_b32 v{X+3}, 2, v{X+1}
            v_and_b32 v{X+1}, 3, v{X+1}
            v_lshl_add_u32 v{X+1}, v{X+3}, 3, v{X+1}
            v_add_u32 v{X+1}, v{X+1}, v{X+2}
            v_lshrrev_b32 v{X+2}, 4, v{V_L}
            v_lshlrev_b32 v{X+2}, 10, v{X+2}
            v_lshl_add_u32 v{D}, v{X+1}, 4, v{X+2}
            """)
        KA1 = 6 if OPT.get("kvffn", "last") == "first" else int(OPT.get("ka1", 6))
        B1(); adma(0, KA1)
        def a1flag():
            S.wait_vm("a1")
            S.e(f"v_mov_b32 v16, {CNT + 20}\nv_mov_b32 v17, 1\ns_mov_b64 exec, 1\nds_add_u32 v16, v17\ns_mov_b64 exec, -1")
        if OPT.get("kvffn", "last") == "first": a1flag()
        S.e(f"""
        s_barrier
        s_setprio 3
        """)
        st(S, "B2")
        FB = 32; KD = 24
        for kk in range(8):
            b = FB + 12 * kk; rg = kk // 3; ro = (kk % 3) * REG2
            for e in range(2):
                S.e(f"ds_read_b64_tr_b16 {vr(b + 2*e, 2)}, v{KA + 2*rg + e} offset:{ro + e*512}")
                for dh in range(2):
                    S.e(f"ds_read_b64_tr_b16 {vr(b + 4 + 4*dh + 2*e, 2)}, v{KB + 2*rg + (e ^ dh)} offset:{ro + e*256}")
        for kk in range(8):
            b = FB + 12 * kk
            for dh in range(2):
                S.e(f"{MF16} {vr(KD + 4*dh)}, {vr(b)}, {vr(b + 4 + 4*dh)}, {'0' if kk == 0 else vr(KD + 4*dh)}")
        for dh in range(2):
            S.e(f"buffer_store_dwordx4 {vr(KD + 4*dh)}, v{130+dh}, {sq(S_WS)}, {t4} offen sc1", tag="kvst")
        st(S, "kvst")
        S.e(f"v_mov_b32 v12, {CNT + 12}\nv_mov_b32 v13, 1\ns_mov_b64 exec, 1\nds_add_u32 v12, v13\ns_mov_b64 exec, -1\ns_setprio {OPT.get('hprio2', 0)}")
        adma(KA1, 6)
        if OPT.get("kvffn", "last") != "first": a1flag()
    st(S, "end")
    st.flush(S, sq(S_WS), ST_OFF, 24, 12)
    S.e("s_endpgm")
    return S
def compute_head():
    S = Stream(); T = PT
    S.e("K_comp:")
    S.e(f"""
    s_lshl_b32 {t0}, s{S_MT}, 3
    s_add_u32 {t0}, {t0}, s3
    s_mul_i32 s{S_HFB}, {t0}, {NKS*1024}
    s_mul_i32 s{S_AREA}, s3, {AREA}
    s_mul_i32 {t2}, s{S_SROW}, 896
    v_cmp_gt_u32_e64 {M2}, 56, v{V_L}
    v_mov_b32 v{T+2}, 0x7f000000
    v_cndmask_b32_e64 v{T+2}, v{T+2}, v{V_L16}, {M2}
    s_waitcnt lgkmcnt(0)
    """)
    srd(S, S_X, 4, 2048 * 896)
    S.e(f"buffer_load_dwordx4 {vr(STV)}, v{T+2}, {sq(S_X)}, {t2} offen", tag="strow")
    if OPT.get("touch2"):
        S.e(f"""
        s_mov_b32 s{S_D1}, s6
        s_mov_b32 s{S_D1+1}, s7
        s_mov_b32 s{S_D1+2}, {448*2688}
        s_mov_b32 s{S_D1+3}, 0x20000
        s_cmp_eq_u32 s3, 1
        s_cselect_b32 s{S_D1}, s14, s{S_D1}
        s_cselect_b32 s{S_D1+1}, s15, s{S_D1+1}
        s_cmp_eq_u32 s3, 2
        s_cselect_b32 s{S_D1}, s16, s{S_D1}
        s_cselect_b32 s{S_D1+1}, s17, s{S_D1+1}
        s_cmp_eq_u32 s3, 3
        s_cselect_b32 s{S_D1}, s18, s{S_D1}
        s_cselect_b32 s{S_D1+1}, s19, s{S_D1+1}
        s_cmp_lg_u32 s3, 0
        s_cselect_b32 s{S_D1+2}, {448*3584}, s{S_D1+2}
        s_cmp_eq_u32 s3, 4
        s_cselect_b32 s{S_D1}, s10, s{S_D1}
        s_cselect_b32 s{S_D1+1}, s11, s{S_D1+1}
        s_cselect_b32 s{S_D1+2}, {448*896}, s{S_D1+2}
        s_mul_i32 {t1}, s2, {49*128}
        s_cmp_ge_u32 s3, {OPT['touch2']}
        s_cselect_b32 {t1}, 0x40000000, {t1}
        v_lshlrev_b32 v{T+5}, 7, v{V_L}
        v_cmp_gt_u32_e64 {M1}, 49, v{V_L}
        v_mov_b32 v{T+6}, 0x7f000000
        v_cndmask_b32_e64 v{T+5}, v{T+6}, v{T+5}, {M1}
        buffer_load_dword v23, v{T+5}, {sq(S_D1)}, {t1} offen
        """)
    srd(S, S_WS, 22, WS_SIZE); srd(S, S_DBG, 20, 256); srd(S, S_WD, 18, 1792 * 896); srd(S, S_WO, 10, 448 * 896)
    S.e(f"s_mov_b32 s{S_OUT+2}, {2048*896}\ns_mov_b32 s{S_OUT+3}, 0x20000")
    S.e(f"""
    s_lshl_b32 s{S_U0}, s{S_U0}, 5
    s_add_u32 s{S_U0}, s{S_U0}, s{S_HFB}
    s_lshl_b32 s{S_U12}, s{S_U12}, 5
    s_add_u32 s{S_U12}, s{S_U12}, s{S_HFB}
    v_lshrrev_b32 v{T+3}, 5, v{V_L}
    v_and_b32 v{T+5}, 31, v{V_L}
    v_bfe_u32 v{T+6}, v{V_L}, 1, 3
    v_xor_b32 v{T+6}, v{T+6}, v{T+3}
    v_lshlrev_b32 v{T+5}, 7, v{T+5}
    v_lshl_add_u32 v{T+5}, v{T+6}, 4, v{T+5}
    v_add_u32 v{V_AX}, s{S_AREA}, v{T+5}
    v_xor_b32 v{V_AX+1}, 32, v{V_AX}
    v_xor_b32 v{V_AX+2}, 64, v{V_AX}
    v_xor_b32 v{V_AX+3}, 0x60, v{V_AX}
    v_add_u32 v{V_CSA}, {CSP}, v{V_L16}
    v_bfe_u32 v{T+1}, v{V_L}, 2, 2
    v_lshl_add_u32 v{T+9}, v{T+3}, 2, v{T+1}
    v_lshlrev_b32 v{T+9}, 6, v{T+9}
    v_and_b32 v{T+10}, 1, v{V_L}
    v_lshl_add_u32 v{T+9}, v{T+10}, 5, v{T+9}
    v_bfe_u32 v{T+10}, v{V_L}, 1, 1
    v_bfe_u32 v{T+4}, v{V_L}, 4, 1
    v_lshl_add_u32 v{T+10}, v{T+4}, 1, v{T+10}
    v_lshl_add_u32 v{T+9}, v{T+10}, 3, v{T+9}
    v_add_u32 v{V_PHA}, {WPHI}, v{T+9}
    v_mov_b32 v{T+9}, {CNT}
    ds_write_b32 v{T+9}, v{V_Z}
    ds_write_b32 v{T+9}, v{V_Z} offset:4
    ds_write_b32 v{T+9}, v{V_Z} offset:8
    ds_write_b32 v{T+9}, v{V_Z} offset:12
    ds_write_b32 v{T+9}, v{V_Z} offset:16
    ds_write_b32 v{T+9}, v{V_Z} offset:20
    v_and_b32 v{T+10}, 60, v{V_L}
    v_add_u32 v{T+10}, {CNT + 64}, v{T+10}
    ds_write_b32 v{T+10}, v{V_Z}
    """)
    U = PT
    for j in range(4): S.e(f"v_lshlrev_b32 v{U+2*j}, 16, v{STV+j}\nv_and_b32 v{U+2*j+1}, 0xffff0000, v{STV+j}")
    S.e(f"""
    v_add_f32 v{U+8}, v{U}, v{U+1}
    v_add_f32 v{U+9}, v{U+2}, v{U+3}
    v_add_f32 v{U+10}, v{U+4}, v{U+5}
    v_add_f32 v{U+11}, v{U+6}, v{U+7}
    v_add_f32 v{U+8}, v{U+8}, v{U+9}
    v_add_f32 v{U+10}, v{U+10}, v{U+11}
    v_add_f32 v{U+8}, v{U+8}, v{U+10}
    """)
    wave_sum(S, U + 8, U + 9)
    S.e(f"v_mul_f32 v{U+8}, {f32(1/448)}, v{U+8}")
    for j in range(8): S.e(f"v_sub_f32 v{U+j}, v{U+j}, v{U+8}")
    S.e(f"v_mul_f32 v{U+9}, v{U}, v{U}\nv_mul_f32 v{U+10}, v{U+1}, v{U+1}")
    for j in range(2, 8): S.e(f"v_fmac_f32 v{U+9+(j&1)}, v{U+j}, v{U+j}")
    S.e(f"v_add_f32 v{U+9}, v{U+9}, v{U+10}\nv_cndmask_b32_e64 v{U+9}, 0, v{U+9}, {M2}")
    wave_sum(S, U + 9, U + 10)
    S.e(f"v_mul_f32 v{U+9}, {f32(1/448)}, v{U+9}")
    bf16r(S, U + 9, f"v{U+9}")
    S.e(f"v_add_f32 v{U+9}, {f32(1e-5)}, v{U+9}")
    bf16r(S, U + 9, f"v{U+9}")
    S.e(f"v_sqrt_f32 v{U+9}, v{U+9}")
    bf16r(S, STV + 1, f"v{U+9}")
    S.e(f"""
    v_cvt_pk_bf16_f32 v{STV}, -v{U+8}, -v{U+8}
    s_lshl_b32 {t0}, s{S_SROW}, 3
    s_add_u32 {t0}, {t0}, {STATS_OFF}
    s_mov_b64 exec, 1
    """)
    S.e(f"buffer_store_dwordx2 {vr(STV, 2)}, v{V_Z}, {sq(S_WS)}, {t0} offen sc1", tag="stst")
    S.e(f"s_mul_i32 {t0}, s2, {MB_STRIDE}\ns_lshl_b32 {t1}, s3, 2\ns_add_u32 {t0}, {t0}, {t1}\ns_add_u32 {t0}, {t0}, {MB_OFF}")
    S.e(f"buffer_store_dword v{V_Z}, v{V_Z}, {sq(S_WS)}, {t0} offen sc1", tag="stst")
    S.e("s_mov_b64 exec, -1")
    S.e(f"s_cmp_eq_u32 s{S_TYPE}, 1\ns_cbranch_scc1 K_kv")
    return S


def compute(typ):
    q = typ == "q"
    S = Stream(); T = PT
    S.e(f"K_{typ}:")
    st = Stamper(STAMPR); st.n = 1; st.names = ["start"]
    tile_addrs(S, typ, V_AT, T)
    p2_ids(S)
    EARLY = Stream()
    T = SC; p2_a_voffsets(EARLY, 21, None, None, T)
    EARLY.e(f"""
    s_bfe_u32 {t4}, s3, 0x10001
    s_lshr_b32 {t5}, s3, 2
    v_bfe_u32 v{T}, v{V_L}, 2, 2
    v_lshrrev_b32 v{T+1}, 5, v{V_L}
    v_lshl_add_u32 v{T+2}, v{T+1}, 2, v{T}
    v_lshlrev_b32 v{T+2}, 7, v{T+2}
    v_lshrrev_b32 v{T}, 1, v{T}
    v_xor_b32 v{T}, {t4}, v{T}
    v_lshl_add_u32 v{T+2}, v{T}, 6, v{T+2}
    v_and_b32 v{T}, 1, v{V_L}
    v_lshl_add_u32 v{T+2}, v{T}, 5, v{T+2}
    v_bfe_u32 v{T}, v{V_L}, 1, 1
    v_bfe_u32 v{T+3}, v{V_L}, 4, 1
    v_xor_b32 v{T+3}, {t5}, v{T+3}
    v_lshl_add_u32 v{T}, v{T+3}, 1, v{T}
    v_lshl_add_u32 v{T+2}, v{T}, 3, v{T+2}
    s_mul_i32 {t0}, s3, {REG2}
    v_add_u32 v22, {t0}, v{T+2}
    s_and_b32 {t0}, s3, 3
    s_lshl_b32 {t0}, {t0}, 1
    s_add_u32 s{S_H}, {t0}, {t5}
    s_mul_i32 s{S_XROW}, s{S_H}, {14*16*896}
    s_cmp_ge_u32 s2, 224
    s_cselect_b32 {t0}, 0x40000000, 0
    s_add_u32 s{S_XROW}, s{S_XROW}, {t0}
    """)
    T = PT
    pend = []
    def ABn(n): return AB if n % 2 == 1 else SC + 8
    def a_read(n, t):
        c, s = n >> 2, n & 3
        for e in range(2):
            a, imm = tile_read_args(typ, t, s, e)
            S.e(f"ds_read_b64_tr_b16 {vr(ABn(n) + 4*t + 2*e, 2)}, v{V_AT+a} offset:{(c % 3)*WS_ + imm}")
    def x_read(n):
        c, s = n >> 2, n & 3
        S.e(f"ds_read_b128 {vr(XB + 4*(n & 1))}, v{V_AX+s} offset:{(c % 3) * 4096}")
    def kstep(n):
        if n + 1 < 28:
            x_read(n + 1); a_read(n + 1, 0); a_read(n + 1, 1)
        for t in range(5):
            S.e(f"{MF} {vr(ACC + 16*t, 16)}, {vr(ABn(n) + 4*t)}, {vr(XB + 4*(n & 1))}, {'0' if n == 0 else vr(ACC + 16*t, 16)}")
            if n + 1 < 28 and t + 2 < 5: a_read(n + 1, t + 2)
            if pend: S.extend(pend.pop(0))
    S.wait_lgkm(); S.e("s_barrier")
    st(S, "bar0")
    x_read(0)
    for t in range(5): a_read(0, t)
    for c in range(7):
        S.comment(f"chunk {c}")
        if c in (4,): st(S, f"chunk{c}")
        n = 4 * c
        if c == int(OPT.get("poic", 0)):
            G = Stream(); G.e(f"v_mov_b32 v{SC}, -1\nv_mov_b32 v{SC+1}, -1\nv_mov_b32 v{SC+2}, -1\nv_mov_b32 v{SC+3}, -1"); pend.append(G)
            if q:
                offs = [f"s_lshl_b32 {t0}, s{S_HEAD}, 11\ns_add_u32 {t0}, {t0}, s{S_HFB}\ns_add_u32 {t0}, {t0}, {(112+u)*1024}" for u in range(2)]
            else:
                offs = [f"s_lshl_b32 {t0}, s{S_HEAD}, 3\ns_add_u32 {t0}, {t0}, s{S_MT}\ns_lshl_b32 {t0}, {t0}, 3\ns_add_u32 {t0}, {t0}, s3\ns_lshl_b32 {t0}, {t0}, 10\ns_add_u32 {t0}, {t0}, {KVP_OFF}"]
            for o in offs:
                G = Stream(); G.e(o); G.e(f"buffer_store_dwordx4 {vr(SC)}, v{V_L16}, {sq(S_WS)}, {t0} offen sc1", tag="stst"); pend.append(G); pend.append(Stream())
        if c == int(OPT.get("poic", 0)) + 1: pend.append(signal("stst", 4, "init", f"K_{typ}_nosigst", SC + 4, SC + 5, SC + 6, 7))
        if OPT.get("tlb") and c == int(OPT["tlb"]):
            G = Stream()
            G.e(f"""
            v_lshlrev_b32 v23, 18, v{V_L}
            s_lshl_b32 {t0}, s3, 15
            buffer_load_dword v23, v23, {sq(S_WS)}, {t0} offen
            """); pend.append(G)
            G = Stream()
            G.e(f"""
            v_lshlrev_b32 v26, 15, v{V_L}
            s_lshl_b32 {t0}, s3, 12
            buffer_load_dword v27, v26, {sq(S_OUT)}, {t0} offen
            """); pend.append(G)
        if c == 3:
            for ii in range(0, len(EARLY), 5):
                G = Stream(); G.extend(EARLY[ii:ii+5]); pend.append(G)
        kstep(n); kstep(n + 1); kstep(n + 2)
        S.wait_lgkm(); S.e("s_barrier")
        if c == 5:
            G = Stream()
            G.e(f"""
            v_and_b32 v{V_TMP}, 31, v{V_L}
            v_lshlrev_b32 v{V_TMP}, 3, v{V_TMP}
            s_lshl_b32 {t0}, s{S_MT}, 3
            s_add_u32 {t0}, {t0}, s3
            s_lshl_b32 {t0}, {t0}, 8
            s_add_u32 {t0}, {t0}, {STATS_OFF}
            buffer_load_dwordx2 {vr(V_RINV, 2)}, v{V_TMP}, {sq(S_WS)}, {t0} offen sc1
            """)
            pend.append(G)
        if c == 6:
            CR = SC + 8
            for t in range(5): S.e(f"ds_read_b128 {vr(CR + 4*t)}, v{V_CSA} offset:{t*1024}")
            stats_consts(S)
        kstep(n + 3)
    st(S, "S1")
    FT = (lambda n: st(S, n, fine=True)) if OPT.get('fw') == 'tail' else (lambda n: None)
    FT("s1")
    WPF = XB; E = AB; QB = E + 8; TT = 4; GT = SC; GT2 = SC + 12
    A0 = ACC
    V_WD, V_A0, V_A1 = 11, 12, 13
    V_WOo, V_WOM, V_B0, V_B1, V_O = 4, 5, 6, 7, 8
    S.e(f"{MF} {vr(ACC,16)}, {vr(CR)}, {vr(BP)}, {vr(ACC,16)}")
    for te in range(4): S.e(f"ds_read_b64_tr_b16 {vr(WPF + 2*te, 2)}, v{V_PHA} offset:{te * 512}")
    NC1 = 5 if (q or not OPT.get("corr2", True)) else 2
    for t in range(1, NC1): S.e(f"{MF} {vr(ACC + 16*t,16)}, {vr(CR + 4*t)}, {vr(BP)}, {vr(ACC + 16*t,16)}")
    S.e(f"s_mul_i32 s{S_AREA}, s3, {REG2}\nv_mov_b32 v{V_WD}, v21\nv_mov_b32 v{V_A0}, v22\nv_xor_b32 v{V_A1}, 64, v22")
    W = SC + 28; X = 4
    if not q:
        S.e(f"""
        v_and_b32 v{X}, 31, v{V_L}
        v_lshrrev_b32 v{X+1}, 5, v{V_L}
        v_lshlrev_b32 v{X+1}, 1, v{X+1}
        v_bfe_u32 v{X+2}, v{V_L}, 1, 2
        v_xor_b32 v{X+2}, v{X+2}, v{X+1}
        v_lshlrev_b32 v{X+3}, 6, v{X}
        v_lshl_add_u32 v{X+3}, v{X+2}, 4, v{X+3}
        s_add_u32 {t0}, s{S_AREA}, {VVO}
        v_add_u32 v9, {t0}, v{X+3}
        v_xor_b32 v10, 16, v9
        v_and_b32 v{X+3}, 7, v{V_L}
        v_xor_b32 v{X+1}, v{X+1}, v{X+3}
        v_lshlrev_b32 v{X}, 7, v{X}
        v_lshl_add_u32 v{X}, v{X+1}, 4, v{X}
        s_add_u32 {t0}, s{S_AREA}, {PKO}
        v_add_u32 v{W}, {t0}, v{X}
        v_xor_b32 v{W+1}, 16, v{W}
        v_xor_b32 v{W+2}, 64, v{W}
        v_xor_b32 v{W+3}, 0x50, v{W}
        """)
    FT("addr")
    scale16(S, A0)
    for i in range(8): S.e(f"v_cvt_pk_bf16_f32 v{QB+i}, v{A0+2*i}, v{A0+2*i+1}")
    S.e(f"{MF} {vr(A0,16)}, {vr(WPF)}, {vr(QB)}, 0\n{MF} {vr(A0,16)}, {vr(WPF+4)}, {vr(QB+4)}, {vr(A0,16)}")
    FT("pq")
    A1 = ACC + 16
    AC2 = 104
    bfree = [16, 24, 32, 40, 48]
    ablk = {i: b for i, b in enumerate([72, 80, 88, 96, 56, 64] if (q or OPT.get('kvffn', 'last') == 'first') else [56, 64, 72, 80, 88, 96])}
    slot_of = {i: i for i in range(6)}
    def a_tr(i, blk):
        nonlocal S
        for ni in range(2):
            for e in range(2):
                S.e(f"ds_read_b64_tr_b16 {vr(blk + 4*ni + 2*e, 2)}, v{V_A0+ni} offset:{slot_of[i]*2048 + e*1024}", tag=f"ar{i}")
    def a_dma(i, sl):
        slot_of[i] = sl; out = []
        for u in range(2):
            G = Stream()
            G.e(f"s_add_u32 m0, s{S_AREA}, {sl*2048 + u*1024}")
            if i < 14:
                G.e(f"s_add_u32 {tm}, s{S_XROW}, {(16*i + 8*u)*896}")
                G.e(f"buffer_load_dwordx4 v{V_WD}, {sq(S_WD)}, {tm} offen lds", tag=f"a{i}")
            else:
                hd, t = (i - 14) >> 1, (i - 14) & 1
                G.e(f"s_add_u32 {tm}, s{S_D0L}, {(28*hd + 8*t + 4*u)*896}")
                G.e(f"buffer_load_dwordx4 v{V_WOM if (t and u) else V_WOo}, {sq(S_WO)}, {tm} offen lds", tag=f"a{i}")
            out.append(G)
        return out
    def sprinkle(V, parts, start, every):
        n = 0
        for ins in V:
            S.append(ins); n += 1
            if n >= start and (n - start) % every == 0 and parts: S.extend(parts.pop(0))
        for p in parts: S.extend(p)
    late = []
    KF1 = q or OPT.get("kvffn", "last") == "first"
    def vwr(): S.e(f"ds_write_b128 v9, {vr(A1)}\nds_write_b128 v10, {vr(A1+4)}")
    def vpart():
        scale16(S, A1)
        for i in range(8): S.e(f"v_cvt_pk_bf16_f32 v{A1+i}, v{A1+2*i}, v{A1+2*i+1}")
        S.e(f"""
        v_mov_b32 v{A1+8}, 0x3f803f80
        v_cndmask_b32_e64 v{A1+6}, v{A1+6}, v{A1+8}, {HHM}
        """)
        if KF1: vwr()
    if KF1:
        if q:
            geglu(S, A1, GT, S_U0, 0); geglu(S, ACC + 32, GT2, S_U0, 1); geglu(S, ACC + 48, GT, S_U0, 2); geglu(S, ACC + 64, GT2, S_U0, 3)
        else:
            geglu(S, ACC + 32, GT2, S_U0, 0); geglu(S, ACC + 48, GT, S_U12, 0); geglu(S, ACC + 64, GT2, S_U12, 1)
            vpart()
        st(S, "ffn")
        S.e(f"""
        v_mov_b32 v14, {CNT + 20}
        K_{typ}_a1:
        ds_read_b32 v15, v14
        s_waitcnt lgkmcnt(0)
        v_readfirstlane_b32 {t1}, v15
        s_cmp_lt_u32 {t1}, 4
        s_cbranch_scc1 K_{typ}_a1
        """)
        for i in range(4): a_tr(i, ablk[i])
        V = Stream(); softmax14(V, A0, E, TT)
        w = Stream(); w.wait_lgkm()
        sg = signal("hst", 8, "h", f"K_{typ}_nosigh", 104, 105, 106, 7)
        pos = int(OPT.get("sgpos", 4))
        parts = [w] + a_dma(6, 0) + a_dma(7, 1) + a_dma(8, 2) + a_dma(9, 3)
        parts.insert(pos + 1, sg)
        if q or OPT.get('kvspr', False): sprinkle(V, parts, 12, 14)
        else:
            sprinkle(V, [sg], 60, 14); parts.remove(sg); pre_late = parts
        if q:
            S.e(f"s_add_u32 {t0}, s{S_AREA}, {PKO}\nv_add_u32 v9, {t0}, v{V_L16}")
            for kk in range(4): S.e(f"ds_write_b128 v9, {vr(E + 4*kk)} offset:{kk*1024}")
        else:
            for k in range(4): S.e(f"ds_write_b128 v{W+k}, {vr(E+4*k)}")
        a_tr(4, ablk[4]); a_tr(5, ablk[5])
        S.wait_lgkm(); S.e("s_barrier")
        st(S, "B2")
        late = ([] if (q or OPT.get('kvspr', False)) else pre_late) + a_dma(10, 4) + a_dma(11, 5)
    else:
        vpart()
        FT("v")
        softmax14(S, A0, E, TT)
        FT("sm")
        vwr()
        for k in range(4): S.e(f"ds_write_b128 v{W+k}, {vr(E+4*k)}")
        S.wait_lgkm()
        FT("wr")
        for t in range(NC1, 5): S.e(f"{MF} {vr(ACC + 16*t,16)}, {vr(CR + 4*t)}, {vr(BP)}, {vr(ACC + 16*t,16)}")
        S.e("s_barrier")
        st(S, "B2")
        FT("b2")
        geglu(S, ACC + 32, GT2, S_U0, 0); FT("g1"); geglu(S, ACC + 48, GT, S_U12, 0); FT("g2"); geglu(S, ACC + 64, GT2, S_U12, 1); FT("g3")
        st(S, "ffn")
        G = Stream()
        G.e(f"""
        v_mov_b32 v14, {CNT + 20}
        K_{typ}_a1:
        ds_read_b32 v15, v14
        s_waitcnt lgkmcnt(0)
        v_readfirstlane_b32 {t1}, v15
        s_cmp_lt_u32 {t1}, 4
        s_cbranch_scc1 K_{typ}_a1
        """)
        S0 = S; S = G
        for i in range(6): a_tr(i, ablk[i])
        S = S0
        G.wait_lgkm()
        late = [G]
        for i in range(6, 12): late += a_dma(i, i - 6)
    TP = 16
    S.e(f"""
    v_lshrrev_b32 v{TP}, 3, v{V_L}
    v_mul_u32_u24 v{TP+1}, 896, v{TP}
    v_sub_u32 v{TP+1}, v{V_WD}, v{TP+1}
    v_lshrrev_b32 v{TP+2}, 2, v{TP}
    v_and_b32 v{TP+3}, 3, v{TP}
    v_mad_u32_u24 v{TP+2}, v{TP+2}, 14, v{TP+3}
    v_mul_u32_u24 v{V_WOo}, 896, v{TP+2}
    v_add_u32 v{V_WOo}, v{V_WOo}, v{TP+1}
    v_cmp_lt_u32_e64 {M1}, 1, v{TP+3}
    v_mov_b32 v{TP+2}, 0x7f000000
    v_cndmask_b32_e64 v{V_WOM}, v{V_WOo}, v{TP+2}, {M1}
    s_and_b32 {t3}, s3, 1
    s_bfe_u32 {t4}, s3, 0x10001
    s_lshr_b32 {t5}, s3, 2
    s_lshl_b32 {t0}, s{S_M64}, 1
    s_add_u32 {t0}, {t0}, {t3}
    s_mul_i32 {t1}, {t0}, {NKS*1024}
    v_add_u32 v{V_B0}, {t1}, v{V_L16}
    s_xor_b32 {t2}, {t0}, 1
    s_mul_i32 {t2}, {t2}, {NKS*1024}
    v_add_u32 v{V_B1}, {t2}, v{V_L16}
    v_mov_b32 v9, {t1}
    v_mov_b32 v10, {t2}
    v_cmp_lt_u32_e64 {M1}, 15, v{V_L}
    v_cndmask_b32_e64 v9, v9, v10, {M1}
    v_and_b32 v10, 3, v{V_L}
    v_lshl_add_u32 v9, v10, 10, v9
    v_lshrrev_b32 v{TP+1}, 5, v{V_L}
    v_and_b32 v{TP}, 31, v{V_L}
    s_lshl_b32 {t0}, {t0}, 5
    v_add_u32 v{TP}, {t0}, v{TP}
    v_mul_u32_u24 v{TP}, 896, v{TP}
    v_lshlrev_b32 v{TP+1}, 5, v{TP+1}
    s_lshl_b32 {t0}, s{S_N64}, 7
    s_lshl_b32 {t1}, {t4}, 6
    s_add_u32 {t0}, {t0}, {t1}
    s_lshl_b32 {t1}, {t5}, 4
    s_add_u32 {t0}, {t0}, {t1}
    v_add3_u32 v{V_O}, v{TP}, v{TP+1}, {t0}
    s_mul_i32 s{S_D0L}, s{S_H}, {2*28*896}
    s_mul_i32 s{S_U0}, s{S_H}, {14*1024}
    s_lshl_b32 s{S_U12}, s{S_H}, 12
    s_add_u32 s{S_U12}, s{S_U12}, {112*1024 - 14*1024}
    s_add_u32 s{S_G}, s{S_U12}, {14*1024 + 1008}
    v_mov_b32 v{TP}, {CNT + 12}
    K_{typ}_zone:
    ds_read_b32 v{TP+1}, v{TP}
    s_waitcnt lgkmcnt(0)
    v_readfirstlane_b32 {t1}, v{TP+1}
    s_cmp_lt_u32 {t1}, 4
    s_cbranch_scc1 K_{typ}_zone
    """)
    for g in late[:int((OPT.get("latepre", 4) if KF1 else OPT.get("latekv", 0)))]: S.extend(g)
    st(S, "p1end")
    if not KF1: S.extend(signal("hst", 8, "h", f"K_{typ}_nosigh", TP, TP + 1, TP + 2, 7))
    if not q: S.e(f"s_cmp_ge_u32 s2, 224\ns_cbranch_scc1 K_{typ}_fin")
    for g in late[int((OPT.get("latepre", 4) if KF1 else OPT.get("latekv", 0))):]: S.extend(g)
    for i in range(12, 15):
        for g in a_dma(i, i - 6): S.extend(g)
    MIR = CNT + 64
    S.e(f"""
    s_mul_i32 {t2}, s2, {MB_STRIDE}
    s_add_u32 {t2}, {t2}, {MB_OFF}
    s_lshr_b32 {t0}, s{S_H}, 1
    s_lshl_b32 {t5}, {t0}, 1
    s_cmp_lt_u32 s3, 4
    s_mov_b32 {t4}, 0x01010101
    s_cselect_b32 {t4}, 0x00010001, {t4}
    s_mov_b32 {t3}, 0
    v_and_b32 v{TP}, 15, v{V_L}
    v_lshlrev_b32 v{TP}, 2, v{TP}
    v_add_u32 v{TP+1}, {MIR}, v{TP}
    v_and_b32 v{TP}, 28, v{TP}
    s_add_u32 {t0}, {t5}, 1
    """)
    st(S, "w5")
    S.e(f"""
    s_cmp_eq_u32 s3, 7
    s_cbranch_scc1 K_{typ}_phg
    K_{typ}_phl:
    ds_read_b32 v14, v{TP+1}
    s_waitcnt lgkmcnt(0)
    v_readlane_b32 {t1}, v14, {t5}
    v_readlane_b32 {tm}, v14, {t0}
    s_and_b32 {t1}, {t1}, {tm}
    s_and_b32 {t1}, {t1}, {t4}
    s_cmp_eq_u32 {t1}, {t4}
    s_cbranch_scc1 K_{typ}_phok
    v_readlane_b32 {t1}, v14, 8
    s_sleep 2
    s_cmp_eq_u32 {t1}, 0
    s_cbranch_scc1 K_{typ}_phl
    K_{typ}_phg:
    buffer_load_dword v14, v{TP}, {sq(S_WS)}, {t2} offen sc1
    s_waitcnt vmcnt(0)
    s_mov_b64 exec, 0xff
    ds_write_b32 v{TP+1}, v14
    s_mov_b64 exec, -1
    v_readlane_b32 {t1}, v14, {t5}
    v_readlane_b32 {tm}, v14, {t0}
    s_add_u32 {t3}, {t3}, 1
    s_and_b32 {t1}, {t1}, {tm}
    s_and_b32 {t1}, {t1}, {t4}
    s_cmp_eq_u32 {t1}, {t4}
    s_cbranch_scc1 K_{typ}_phd
    s_sleep {OPT.get('sleep', 4)}
    s_cmp_lt_u32 {t3}, 0x8000
    s_cbranch_scc1 K_{typ}_phg
    K_{typ}_phd:
    v_mov_b32 v14, {MIR + 32}
    v_mov_b32 v15, 1
    ds_write_b32 v14, v15
    K_{typ}_phok:
    """, opt=True)
    S.append(pseudo("forget_opt"))
    st(S, "B5")
    if OPT.get('fw') == 'p2': st(S, "B5f", fine=True)
    bblk = {}
    nextb = [0]
    def b_issue(i, opt=False):
        S.e(f"s_add_u32 {tm}, s{S_U0 if i < 14 else S_U12}, {i*1024}", opt=opt)
        for mi in range(2):
            S.e(f"buffer_load_dwordx4 {vr(bblk[i] + 4*mi)}, v{V_B0+mi}, {sq(S_WS)}, {tm} offen sc1", opt=opt)
    def b_load():
        i = nextb[0]
        if i >= 18 or not bfree: return False
        if i == 14:
            tagpoll(S, f"K_{typ}_po", 9, 14, f"s{S_G}", first_issued=True)
            S.append(pseudo("forget_opt"))
            st(S, "B6")
        bblk[i] = bfree.pop(0)
        b_issue(i)
        nextb[0] += 1
        return True
    OLAG = int(OPT.get("olag", 2))
    while b_load(): pass
    afree = []
    for i in range(18):
        if i + 1 < 18 and (i + 1) not in ablk:
            ablk[i + 1] = afree.pop(0)
            S.wait_vm(f"a{i+1}")
            a_tr(i + 1, ablk[i + 1])
        if i >= 14:
            regs = list(range(bblk[i], bblk[i] + 8))
            umax_tree(S, regs, 15)
            S.e(f"v_cmp_eq_u32_e64 {M1}, -1, v15\ns_cmp_eq_u64 {M1}, 0\ns_cbranch_scc1 K_{typ}_bok{i}")
            S.e(f"s_mov_b32 {t3}, 0\nK_{typ}_bre{i}:", opt=True)
            b_issue(i, opt=True)
            S.e("s_waitcnt vmcnt(0)", opt=True)
            umax_tree(S, regs, 15, opt=True)
            S.e(f"v_cmp_eq_u32_e64 {M1}, -1, v15\ns_add_u32 {t3}, {t3}, 1\ns_cmp_eq_u64 {M1}, 0\ns_cbranch_scc1 K_{typ}_bok{i}\ns_cmp_lt_u32 {t3}, 0x4000\ns_cbranch_scc1 K_{typ}_bre{i}", opt=True)
            S.e(f"K_{typ}_bok{i}:")
            S.append(pseudo("forget_opt"))
        for lq in range(4):
            ni, mi = lq >> 1, lq & 1
            S.e(f"{MF} {vr(AC2 + 16*lq, 16)}, {vr(ablk[i] + 4*ni)}, {vr(bblk[i] + 4*mi)}, {'0' if i == 0 else vr(AC2 + 16*lq, 16)}")
        if OPT.get('fw') == 'p2' and i in (0, 1, 2, 4, 6, 8, 10, 12, 14, 17): st(S, f"k{i}", fine=True)
        bfree.append(bblk[i])
        if i in (3, 4) or i >= 6: afree.append(ablk[i])
        else: bfree.append(ablk[i])
        if i in (7, 8, 9):
            for g in a_dma(i + 8, i - 7): S.extend(g)
        if i == 14 - OLAG - 2: S.e(f"buffer_load_dword v14, v9, {sq(S_WS)}, s{S_G} offen sc1")
        while nextb[0] < 18 and (nextb[0] != 14 or i >= 14 - OLAG) and b_load(): pass
        if i == 15:
            XRG = [b for b in bfree if b >= 88][0]; bfree.remove(XRG)
            S.e(f"buffer_load_dwordx4 {vr(XRG)}, v{V_O}, {sq(S_X)}, 0 offen")
    st(S, "mm")
    S.e(f"v_add_u32 v4, s{S_AREA}, v{V_L16}")
    def piece(pp): lq = (pp & 1) | (((pp >> 1) & 1) << 1); return AC2 + 16*lq + 8*(pp >> 2)
    for pp in range(1, 8):
        for j in range(2): S.e(f"ds_write_b128 v4, {vr(piece(pp) + 4*j)} offset:{(pp-1)*2048 + j*1024}")
    for pp in range(1, 8):
        S.e(f"s_xor_b32 {t0}, s3, {pp}\ns_mul_i32 {t0}, {t0}, {REG2}\nv_add_u32 v{16+pp}, {t0}, v{V_L16}")
    for j in range(4): S.e(f"v_lshlrev_b32 v{24+2*j}, 16, v{XRG+j}\nv_and_b32 v{25+2*j}, 0xffff0000, v{XRG+j}")
    for j in range(8): S.e(f"v_add_f32 v{AC2+j}, v{AC2+j}, v{24+j}")
    S.wait_lgkm(); S.e("s_barrier")
    R = 32
    for pp in range(1, 8):
        for j in range(2): S.e(f"ds_read_b128 {vr(R + 8*(pp-1) + 4*j)}, v{16+pp} offset:{(pp-1)*2048 + j*1024}")
    def padd(d, a, b):
        for j in range(0, 8, 2): pk(S, "add", d + j, [("p", a + j), ("p", b + j)])
    padd(AC2, AC2, R); padd(R + 8, R + 8, R + 16); padd(R + 24, R + 24, R + 32); padd(R + 40, R + 40, R + 48)
    padd(AC2, AC2, R + 8); padd(R + 24, R + 24, R + 40); padd(AC2, AC2, R + 24)
    if OPT.get("eps"):
        for j in range(8): S.e(f"v_mul_f32 v{AC2+j}, {f32(1.0 + float(OPT['eps']))}, v{AC2+j}")
    for j in range(4): S.e(f"v_cvt_pk_bf16_f32 v{24+j}, v{AC2+2*j}, v{AC2+2*j+1}")
    S.e(f"buffer_store_dwordx4 {vr(24)}, v{V_O}, {sq(S_OUT)}, 0 offen")
    S.e(f"K_{typ}_fin:")
    st(S, "end")
    st.flush(S, sq(S_WS), ST_OFF, 104, 12)
    S.e("s_endpgm")
    return S

def gen_all():
    pro = list(prologue()); ch = list(compute_head()); hh = list(helper_head())
    out = []
    def part(prefix, body, label):
        full = finalize(prefix + list(body))
        idx = next(i for i, x in enumerate(full) if x.text == label) if label else 0
        return full[idx:]
    hq = part(pro + hh, list(helper("q")) + list(hpost("q")), None)
    hk = part(pro + hh, list(helper("kv")) + list(hpost("kv")), "K_hkv:")
    def cut(p):
        n = 0
        for i, x in enumerate(p):
            if x.op == "s_barrier":
                n += 1
                if n == 1: return p[:i], p[i:]
    if OPT.get("layout", False):
        a, b = cut(hq); c, d = cut(hk)
        out += a + [I("s_branch K_hq_rest")] + c + [I("s_branch K_hkv_rest")]
        out += part(pro + ch, compute("q"), "K_comp:")
        out += part(pro + ch, compute("kv"), "K_kv:")
        out += [I("K_hq_rest:")] + b + [I("K_hkv_rest:")] + d
    else:
        out += hq + hk
        out += part(pro + ch, compute("q"), "K_comp:")
        out += part(pro + ch, compute("kv"), "K_kv:")
    out.append(I("K_END:")); out.append(I("s_endpgm"))
    return out

def build(path):
    k = gen_all()
    print("K", stats(k), file=sys.stderr)
    ref = open(f"cdna_kernels/{NAME}.s.ref").read().split("\n")
    hdr = [l for l in ref if l.startswith(";") and "@launch" not in l and "Override" not in l and "grid=ceil" not in l]
    txt = "\n".join(hdr) + "\n"
    txt += f"; @launch grid=(256,1,1) block=(768,1,1) lds=163840\n"
    txt += '.amdgcn_target "amdgcn-amd-amdhsa--gfx950"\n.text\n'
    txt += f".globl {K1}\n.p2align 8\n.type {K1},@function\n{K1}:\n" + render(k)
    txt += f""".section .rodata,"a"
.p2align 6
.amdhsa_kernel {K1}
  .amdhsa_next_free_vgpr {NVG1}
  .amdhsa_next_free_sgpr 102
  .amdhsa_accum_offset {NVG1}
  .amdhsa_group_segment_fixed_size 0
  .amdhsa_kernarg_size 88
  .amdhsa_user_sgpr_count 2
  .amdhsa_user_sgpr_kernarg_segment_ptr 1
  .amdhsa_system_sgpr_workgroup_id_x 1
.end_amdhsa_kernel
"""
    open(path, "w").write(txt)

if __name__ == "__main__":
    for a in sys.argv[2:]:
        k, v = a.split("=")
        OPT[k] = {"True": True, "False": False}.get(v, v.replace("_", " ") if k.endswith("flags") else v)
    build(sys.argv[1] if len(sys.argv) > 1 else f"cdna_kernels/{NAME}.s")
```

```python
import sys, os, struct
sys.path.insert(0, os.path.dirname(os.path.abspath(__file__)))
from dsl import *

NAME = "parallel_sum__linear_kernel_hedgehog__geglu_ffn__prompt"
K1 = NAME + "_kernel"
K2 = "k2_kernel"

HF_OFF = 0
KVP_OFF = 0xB00000
PHF_OFF = 0x1000000
WS_SIZE = 0x1400000
NKS = 144

OPT = dict(mimic_ffn=False, hf_flags=" sc1", k2d="8", prefetch=True)

def f32(x): return "0x%08x" % struct.unpack("<I", struct.pack("<f", x))[0]
def vr(a, n=4): return f"v[{a}:{a+n-1}]"
def ar(a, n=4): return f"a[{a}:{a+n-1}]"
MF = "v_mfma_f32_32x32x16_bf16"
MF16 = "v_mfma_f32_16x16x32_bf16"

def srd(S, d, lo, nbytes):
    S.e(f"s_mov_b32 s{d}, s{lo}\ns_mov_b32 s{d+1}, s{lo+1}\ns_mov_b32 s{d+2}, {nbytes}\ns_mov_b32 s{d+3}, 0x20000")

STAMP_REGS = [92, 94, 96, 98, 100, 28, 30, 4, 6, 8, 10, 12, 14, 16, 18, 20]
ST_OFF = 0xD00000
class Stamper:
    def __init__(self, regs=STAMP_REGS): self.n = 0; self.names = []; self.regs = regs
    def __call__(self, S, name, fine=False):
        if not OPT.get("stamps"): return
        if (OPT.get("stamps") == "fine") != fine and name != "end": return
        r = self.regs[self.n]; self.n += 1; self.names.append(name)
        S.e(f"{'s_memtime' if fine else 's_memrealtime'} s[{r}:{r+1}]")
    def flush(self, S, srd_s, base, vtmp, nwaves):
        if not OPT.get("stamps"): return
        S.e("s_waitcnt lgkmcnt(0)")
        for i in range(self.n): S.e(f"v_mov_b32 v{vtmp+i}, s{self.regs[i]}")
        S.e(f"s_mul_i32 s88, s2, {nwaves*64}\ns_lshl_b32 s89, s3, 6\ns_add_u32 s88, s88, s89\ns_add_u32 s88, s88, {base}\nv_mov_b32 v0, 0\ns_mov_b64 exec, 1")
        for i in range(0, 16, 4): S.e(f"buffer_store_dwordx4 v[{vtmp+i}:{vtmp+i+3}], v0, {srd_s}, s88 offen offset:{i*4}")
        if OPT.get("dbgst"):
            Stamper.uid = getattr(Stamper, "uid", 0) + 1
            S.e(f"s_lshl_b32 s88, s2, 4\ns_add_u32 s88, s88, s3\ns_cmp_lg_u32 s88, {OPT['dbgst']}\ns_cbranch_scc1 DBGST{Stamper.uid}")
            for i in range(1, self.n): S.e(f"v_sub_u32 v{vtmp+i}, v{vtmp+i}, v{vtmp}", opt=True)
            for i in range(0, 16, 4): S.e(f"buffer_store_dwordx4 v[{vtmp+i}:{vtmp+i+3}], v0, s[44:47], 0 offen offset:{i*4}", opt=True)
            S.e(f"DBGST{Stamper.uid}:")
        print("stamps", self.names, file=sys.stderr)

AREA = 12288
W0 = 98304; WS_ = 20480
MISC = 159744
WPHI = MISC
CNT = MISC + 2048
STATS_OFF = 0xC00000
REG2 = 18432
CSP = 147456; KVF = 147456 + 5120
PKO = 12288; VVO = 16384
NVG1 = 168

V_L = 1; V_L16 = 2; V_Z = 3
V_AX = 4; V_AT = 8
V_CSA = 13; V_PHA = 14; V_TMP = 15
V_RINV, V_SD = 16, 17
V_C0, V_C1, V_S2 = 18, 19, 20
BP = 24
XB = 28; AB = 36; ACC = 56; SC = 136
PT = 136; STV = 152
S_PF, S_X, S_OUT, S_WG, S_WU, S_WS, S_DBG, S_WQ, S_D1, S_WD, S_WO = 12, 24, 28, 32, 36, 40, 44, 48, 52, 56, 60
S_MT, S_C4, S_HL, S_HEAD, S_TYPE, S_XROW, S_AREA, S_D0L, S_H = 64, 65, 66, 67, 68, 69, 70, 71, 72
S_ODD = 73
S_T = 74
S_HH = 80
S_HFB = 82
S_U0, S_U12 = 83, 84
S_M = 85
S_SROW = 86
S_G = 87
M1 = "s[88:89]"; M2 = "s[90:91]"
HHM = f"s[{S_HH}:{S_HH+1}]"
t0, t1, t2, t3, t4, t5 = [f"s{S_T+i}" for i in range(6)]
tm = f"s{S_M}"
S_M64, S_N64, S_MT2 = 65, 66, 73
def sq(d): return f"s[{d}:{d+3}]"
STAMPR = [92, 94, 96, 98, 100, 4, 6, 8, 10, 16, 18, 20, 22]
B_OWNMT = f"s_lshl_b32 {t2}, s{S_MT}, 5"
B_MT2 = f"s_lshl_b32 {t2}, s{S_MT2}, 5"
B_KV = f"s_lshl_b32 {t2}, s{S_HEAD}, 1\ns_add_u32 {t2}, {t2}, 1"

def bf16r(S, d, src):
    S.e(f"v_cvt_pk_bf16_f32 v{d}, {src}, {src}\nv_lshlrev_b32 v{d}, 16, v{d}")

def xhalf(S, op, x, t):
    S.e(f"v_mov_b32 v{t}, v{x}\nv_permlane32_swap_b32 v{t}, v{x}\n{op} v{x}, v{x}, v{t}")

def wave_sum(S, x, t):
    for m in ("quad_perm:[1,0,3,2]", "quad_perm:[2,3,0,1]", "row_half_mirror", "row_mirror"):
        S.e(f"v_add_f32_dpp v{x}, v{x}, v{x} {m} row_mask:0xf bank_mask:0xf")
    S.e(f"v_mov_b32 v{t}, v{x}\nv_permlane16_swap_b32 v{t}, v{x}\nv_add_f32 v{x}, v{x}, v{t}")
    xhalf(S, "v_add_f32", x, t)


MB_OFF = 0xE00000; MB_STRIDE = 4096 + 256
def signal(tag, cnt_off, kind, lab, A, B, Cc, last):
    G = Stream()
    if tag: G.wait_vm(*tag.split(","))
    G.e(f"""
    v_mov_b32 v{A}, {CNT + cnt_off}
    v_mov_b32 v{B}, 1
    s_mov_b64 exec, 1
    ds_add_rtn_u32 v{Cc}, v{A}, v{B}
    s_mov_b64 exec, -1
    v_readfirstlane_b32 {t1}, v{Cc}
    s_cmp_lg_u32 {t1}, {last}
    s_cbranch_scc1 {lab}
    """)
    if kind == "init":
        G.e(f"s_lshr_b32 {t2}, s{S_SROW}, 3\ns_mov_b64 exec, 1", opt=True)
        G.e(f"buffer_store_byte v{B}, v{V_Z}, {sq(S_DBG)}, {t2} offen sc1", opt=True)
    elif kind in ("h", "o"):
        G.e(f"""
        s_and_b32 {t1}, s{S_MT}, 3
        s_lshl_b32 {t1}, {t1}, 1
        s_lshr_b32 {t2}, s{S_MT}, 2
        s_add_u32 {t1}, {t1}, {t2}
        s_mul_i32 {t1}, {t1}, {MB_STRIDE}
        {f's_bfe_u32 {t2}, s{S_SROW}, 0x50003' if kind == 'h' else f's_add_u32 {t2}, s{S_HEAD}, 32'}
        s_add_u32 {t1}, {t1}, {t2}
        s_add_u32 {t1}, {t1}, {MB_OFF}
        v_mul_u32_u24 v{Cc}, {8*MB_STRIDE}, v{V_L}
        s_mov_b64 exec, 0xfffffff
        """, opt=True)
        G.e(f"buffer_store_byte v{B}, v{Cc}, {sq(S_WS)}, {t1} offen sc1", opt=True)
    else:
        G.e(f"""
        s_lshr_b32 {t1}, s{S_HEAD}, 2
        s_lshl_b32 {t1}, {t1}, 1
        s_and_b32 {t2}, s{S_HEAD}, 3
        s_lshl_b32 {t2}, {t2}, 6
        s_add_u32 {t1}, {t1}, {t2}
        s_mul_i32 {t1}, {t1}, {MB_STRIDE}
        s_add_u32 {t1}, {t1}, s{S_MT}
        s_add_u32 {t1}, {t1}, {MB_OFF + 48}
        v_and_b32 v{Cc}, 3, v{V_L}
        v_lshlrev_b32 v{Cc}, 3, v{Cc}
        v_lshrrev_b32 v{A}, 2, v{V_L}
        v_add_u32 v{Cc}, v{Cc}, v{A}
        v_mul_u32_u24 v{Cc}, {MB_STRIDE}, v{Cc}
        v_mov_b32 v{A}, {CNT + cnt_off}
        s_mov_b64 exec, 0xff
        """, opt=True)
        G.e(f"buffer_store_byte v{B}, v{Cc}, {sq(S_WS)}, {t1} offen sc1", opt=True)
    G.e(f"s_mov_b64 exec, -1", opt=True)
    G.e(f"{lab}:")
    return G
def poll(lab, kind, D, A, who=None):
    G = Stream()
    if who is not None: G.e(f"s_cmp_lg_u32 s3, {who}\ns_cbranch_scc1 {lab}_ok")
    if kind == "init":
        setup = f"v_lshlrev_b32 v{A}, 2, v{V_L}\ns_mov_b32 {t2}, 0\ns_mov_b32 {t4}, 0x01010101"
        ld = f"buffer_load_dword v{D}, v{A}, {sq(S_DBG)}, {t2} offen sc1"
        cmp = f"v_cmp_ne_u32_e64 {M1}, {t4}, v{D}"
    else:
        base, mask = {"h": (0, 7), "o": (32, 3), "kv": (48, 1)}[kind]
        setup = f"v_and_b32 v{A}, {mask}, v{V_L}\nv_lshlrev_b32 v{A}, 2, v{A}\ns_mul_i32 {t2}, s2, {MB_STRIDE}\ns_add_u32 {t2}, {t2}, {MB_OFF + base}\ns_mov_b32 {t4}, 0x01010101"
        ld = f"buffer_load_dword v{D}, v{A}, {sq(S_WS)}, {t2} offen sc1"
        cmp = f"v_cmp_ne_u32_e64 {M1}, {t4}, v{D}"
    G.e(f"""
    {setup}
    s_mov_b32 {t3}, 0
    {lab}_loop:
    {ld}
    s_waitcnt vmcnt(0)
    {cmp}
    s_add_u32 {t3}, {t3}, 1
    s_cmp_eq_u64 {M1}, 0
    s_cbranch_scc1 {lab}_ok
    s_sleep {OPT.get('sleep', 4) if kind != 'init' else 16}
    s_cmp_lt_u32 {t3}, 0x8000
    s_cbranch_scc1 {lab}_loop
    """, opt=True)
    G.e(f"{lab}_ok:")
    return G

def tile_addrs(S, typ, AT, T):
    R, C, HH, NH = T + 1, T + 2, T + 3, T + 4
    S.e(f"""
    v_lshrrev_b32 v{HH}, 5, v{V_L}
    v_bfe_u32 v{NH}, v{V_L}, 4, 1
    v_bfe_u32 v{R}, v{V_L}, 2, 2
    v_and_b32 v{C}, 3, v{V_L}
    v_lshl_add_u32 v{T+5}, v{HH}, 3, v{R}
    v_lshlrev_b32 v{T+6}, 6, v{T+5}
    v_lshl_add_u32 v{T+8}, v{NH}, 2, v{C}
    v_add_u32 v{T+8}, s{S_ODD}, v{T+8}
    v_and_b32 v{T+8}, 7, v{T+8}
    v_lshl_add_u32 v{T+8}, v{T+8}, 3, v{T+6}
    """)
    if typ == "q":
        S.e(f"""
        v_add_u32 v{AT}, {W0 + 16384}, v{T+8}
        v_lshrrev_b32 v{T+6}, 1, v{C}
        v_and_b32 v{T+7}, 2, v{R}
        v_xor_b32 v{T+6}, v{T+6}, v{T+7}
        v_lshl_add_u32 v{T+6}, v{NH}, 2, v{T+6}
        v_lshlrev_b32 v{T+7}, 7, v{T+5}
        v_lshl_add_u32 v{T+7}, v{T+6}, 4, v{T+7}
        v_and_b32 v{T+6}, 1, v{C}
        v_lshl_add_u32 v{T+7}, v{T+6}, 3, v{T+7}
        v_lshl_add_u32 v{T+7}, v{NH}, 13, v{T+7}
        v_add_u32 v{AT+1}, {W0}, v{T+7}
        v_xor_b32 v{AT+2}, 32, v{AT+1}
        v_xor_b32 v{AT+3}, 64, v{AT+1}
        v_xor_b32 v{AT+4}, 0x60, v{AT+1}
        """)
    else:
        S.e(f"""
        v_add_u32 v{AT}, {W0}, v{T+8}
        v_lshl_add_u32 v{T+7}, v{C}, 3, v{T+6}
        v_mul_u32_u24 v{T+8}, 1056, v{NH}
        v_add_u32 v{AT+1}, v{T+7}, v{T+8}
        v_add_u32 v{AT+1}, {W0 + 2048}, v{AT+1}
        v_xor_b32 v{AT+2}, 32, v{AT+1}
        v_lshlrev_b32 v{T+6}, 5, v{T+5}
        v_lshl_add_u32 v{T+6}, v{C}, 3, v{T+6}
        v_mul_u32_u24 v{T+7}, 2176, v{NH}
        v_add_u32 v{AT+3}, v{T+6}, v{T+7}
        v_add_u32 v{AT+3}, {W0 + 16384}, v{AT+3}
        v_xor_b32 v{AT+4}, 0x80, v{AT+3}
        """)

def tile_read_args(typ, t, s, e):
    if typ == "q":
        return (0, s*1024 + e*256) if t == 0 else (t, s*2048 + e*512)
    if t == 0: return (0, s*4096 + e*256)
    if t == 1: return (0, s*4096 + 1024 + e*256)
    if t == 2: return (3 + e, s*512)
    return (t - 2, s*4096 + e*256)

def pk(S, op, d, srcs, neg=None):
    ops = []; lo = []; hi = []
    for kind, r in srcs:
        if kind == "p": assert r % 2 == 0; ops.append(vr(r, 2)); lo.append(0); hi.append(1)
        else: ops.append(vr(r & ~1, 2)); lo.append(r & 1); hi.append(r & 1)
    assert d % 2 == 0
    txt = f"v_pk_{op}_f32 {vr(d, 2)}, " + ", ".join(ops)
    if any(lo): txt += " op_sel:[" + ",".join(map(str, lo)) + "]"
    if not all(hi): txt += " op_sel_hi:[" + ",".join(map(str, hi)) + "]"
    if neg: txt += f" neg_lo:[{','.join(map(str, neg))}] neg_hi:[{','.join(map(str, neg))}]"
    S.e(txt)
    S[-1].opsel = False

def scale16(S, a):
    for i in range(0, 16, 2): pk(S, "mul", a + i, [("p", a + i), ("b", V_RINV)])

def geglu(S, a, T, unit_sgpr, unit_add):
    R = range(0, 8, 2)
    for i in R: pk(S, "mul", T + i, [("p", a + i), ("p", a + i)])
    for i in R: pk(S, "fma", T + i, [("p", T + i), ("b", V_C1), ("b", V_C0)])
    for i in R: pk(S, "mul", T + i, [("p", T + i), ("p", a + i)])
    for i in range(8): S.e(f"v_exp_f32 v{T+i}, v{T+i}")
    for i in R: pk(S, "mul", a + i, [("p", a + i), ("p", a + 8 + i)])
    for i in R: pk(S, "fma", T + i, [("p", T + i), ("b", V_S2), ("b", V_S2)])
    for i in range(8): S.e(f"v_rcp_f32 v{T+i}, v{T+i}")
    for i in R: pk(S, "mul", a + i, [("p", a + i), ("p", T + i)])
    for i in range(4): S.e(f"v_cvt_pk_bf16_f32 v{T+8+i}, v{a+2*i}, v{a+2*i+1}")
    S.e(f"s_add_u32 s{S_G}, s{unit_sgpr}, {unit_add * 1024}")
    S.e(f"buffer_store_dwordx4 {vr(T+8)}, v{V_L16}, {sq(S_WS)}, s{S_G} offen{OPT['hf_flags']}", tag="hst")

def softmax14(S, P, E, T):
    N = 14; R = range(0, N, 2)
    for i in range(7): S.e(f"v_cvt_pk_bf16_f32 v{E+i}, v{P+2*i}, v{P+2*i+1}")
    for i in range(7): S.e(f"v_lshlrev_b32 v{P+2*i}, 16, v{E+i}\nv_and_b32 v{P+2*i+1}, 0xffff0000, v{E+i}")
    L = T + 4
    S.e(f"v_mov_b32 v{L}, {f32(1.4426950408889634)}")
    MX, MN = T, T + 1
    S.e(f"v_max3_f32 v{MX}, v{P}, v{P+1}, v{P+2}\nv_min3_f32 v{MN}, v{P}, v{P+1}, v{P+2}")
    for i in range(3, 13, 2):
        S.e(f"v_max3_f32 v{MX}, v{MX}, v{P+i}, v{P+i+1}\nv_min3_f32 v{MN}, v{MN}, v{P+i}, v{P+i+1}")
    S.e(f"v_max_f32 v{MX}, v{MX}, v{P+13}\nv_min_f32 v{MN}, v{MN}, v{P+13}")
    S.e(f"v_mov_b32 v{T+2}, v{MX}\nv_mov_b32 v{T+3}, v{MN}\nv_permlane32_swap_b32 v{T+2}, v{MX}\nv_permlane32_swap_b32 v{T+3}, v{MN}")
    S.e(f"v_max_f32 v{MX}, v{MX}, v{T+2}\nv_min_f32 v{MN}, v{MN}, v{T+3}")
    pk(S, "mul", T, [("p", T), ("b", L)])
    for i in R: pk(S, "fma", E + i, [("p", P + i), ("b", L), ("b", MX)], neg=[0, 0, 1])
    for i in R: pk(S, "fma", P + i, [("p", P + i), ("b", L), ("b", MN)], neg=[1, 0, 0])
    for i in range(N): S.e(f"v_exp_f32 v{E+i}, v{E+i}")
    for i in range(N): S.e(f"v_exp_f32 v{P+i}, v{P+i}")
    pk(S, "add", T, [("p", E), ("p", E + 2)]); pk(S, "add", T + 2, [("p", P), ("p", P + 2)])
    for i in range(4, N, 2):
        pk(S, "add", T, [("p", T), ("p", E + i)]); pk(S, "add", T + 2, [("p", T + 2), ("p", P + i)])
    SP, SM = T, T + 1
    S.e(f"v_add_f32 v{SP}, v{T}, v{T+1}\nv_add_f32 v{SM}, v{T+2}, v{T+3}")
    S.e(f"v_mov_b32 v{T+2}, v{SP}\nv_mov_b32 v{T+3}, v{SM}\nv_permlane32_swap_b32 v{T+2}, v{SP}\nv_permlane32_swap_b32 v{T+3}, v{SM}")
    pk(S, "add", T, [("p", T), ("p", T + 2)])
    S.e(f"v_rcp_f32 v{SP}, v{SP}\nv_rcp_f32 v{SM}, v{SM}")
    for i in R: pk(S, "mul", E + i, [("p", E + i), ("b", SP)])
    for i in R: pk(S, "mul", P + i, [("p", P + i), ("b", SM)])
    for i in range(7): S.e(f"v_cvt_pk_bf16_f32 v{E+i}, v{E+2*i}, v{E+2*i+1}")
    for i in range(7): S.e(f"v_cvt_pk_bf16_f32 v{E+8+i}, v{P+2*i}, v{P+2*i+1}")
    S.e(f"v_mov_b32 v{E+7}, 0\nv_mov_b32 v{E+15}, 0")

def stats_consts(S):
    S.e(f"""
    v_mov_b32 v{BP}, v{V_RINV}
    v_mov_b32 v{BP+1}, v{V_RINV}
    v_mov_b32 v{BP+2}, v{V_RINV}
    v_mov_b32 v{BP+3}, v{V_RINV}
    v_rcp_f32 v{V_RINV}, v{V_SD}
    v_mul_f32 v{V_S2}, v{V_SD}, v{V_SD}
    v_mul_f32 v{V_C0}, {f32(-2.302208198)}, v{V_RINV}
    v_mul_f32 v{V_C1}, v{V_RINV}, v{V_RINV}
    v_mul_f32 v{V_C1}, v{V_C1}, v{V_C0}
    v_mul_f32 v{V_C1}, {f32(0.044715)}, v{V_C1}
    """)


def tagpoll(G, lab, A, D, soff, opt=False, first_issued=False, sleep=None):
    if first_issued:
        G.e(f"v_cmp_eq_u32_e64 {M1}, -1, v{D}\ns_mov_b32 {t3}, 0\ns_cmp_eq_u64 {M1}, 0\ns_cbranch_scc1 {lab}_ok")
        opt = True
    else:
        G.e(f"s_mov_b32 {t3}, 0")
    G.e(f"""
    {lab}_loop:
    buffer_load_dword v{D}, v{A}, {sq(S_WS)}, {soff} offen sc1
    s_waitcnt vmcnt(0)
    v_cmp_eq_u32_e64 {M1}, -1, v{D}
    s_add_u32 {t3}, {t3}, 1
    s_cmp_eq_u64 {M1}, 0
    s_cbranch_scc1 {lab}_ok
    s_sleep {sleep if sleep else OPT.get('sleep', 4)}
    s_cmp_lt_u32 {t3}, 0x8000
    s_cbranch_scc1 {lab}_loop
    """, opt=opt)
    G.e(f"{lab}_ok:")

def umax_tree(G, regs, T, opt=False):
    G.e(f"v_max3_u32 v{T}, v{regs[0]}, v{regs[1]}, v{regs[2]}", opt=opt)
    i = 3
    while i + 1 < len(regs):
        G.e(f"v_max3_u32 v{T}, v{T}, v{regs[i]}, v{regs[i+1]}", opt=opt); i += 2
    if i < len(regs): G.e(f"v_max_u32 v{T}, v{T}, v{regs[i]}", opt=opt)

def prologue():
    S = Stream()
    S.e(f"""
    s_cmp_ge_u32 s2, 256
    s_cbranch_scc1 K_END
    {'s_memrealtime s[92:93]' if OPT.get('stamps') else ''}
    s_load_dwordx16 s[4:19], s[0:1], 0
    s_load_dwordx4 s[20:23], s[0:1], 72
    s_load_dwordx2 s[{S_OUT}:{S_OUT+1}], s[0:1], 64
    v_lshrrev_b32 v{PT}, 6, v0
    v_and_b32 v{V_L}, 63, v0
    v_readfirstlane_b32 s3, v{PT}
    v_lshlrev_b32 v{V_L16}, 4, v{V_L}
    v_mov_b32 v{V_Z}, 0
    s_and_b32 {t0}, s2, 7
    s_lshr_b32 {t1}, s2, 3
    s_and_b32 s{S_MT}, {t0}, 1
    s_lshl_b32 s{S_MT}, s{S_MT}, 2
    s_and_b32 {t2}, {t1}, 3
    s_add_u32 s{S_MT}, s{S_MT}, {t2}
    s_lshr_b32 s{S_C4}, {t0}, 1
    s_lshr_b32 {t1}, {t1}, 2
    s_and_b32 s{S_TYPE}, {t1}, 1
    s_lshr_b32 s{S_HL}, {t1}, 1
    s_lshl_b32 s{S_HEAD}, s{S_C4}, 2
    s_add_u32 s{S_HEAD}, s{S_HEAD}, s{S_HL}
    s_and_b32 s{S_ODD}, s{S_HEAD}, 1
    s_lshl_b32 {t2}, s{S_MT}, 2
    s_add_u32 {t2}, {t2}, s{S_C4}
    s_lshl_b32 {t2}, {t2}, 3
    s_add_u32 {t2}, {t2}, {t1}
    s_lshl_b32 {t2}, {t2}, 3
    s_and_b32 {t3}, s3, 7
    s_add_u32 s{S_SROW}, {t2}, {t3}
    s_mov_b32 s{S_HH}, 0
    s_mov_b32 s{S_HH+1}, -1
    s_mul_i32 {t0}, s{S_C4}, 896
    s_lshl_b32 {tm}, s{S_HL}, 7
    s_add_u32 {t3}, {t0}, {tm}
    s_add_u32 {t0}, {t0}, 512
    s_mul_i32 {t1}, s{S_HL}, 3
    s_and_b32 {t2}, s{S_HL}, 1
    s_add_u32 {t5}, {t1}, {t2}
    s_lshl_b32 {t2}, {t2}, 1
    s_add_u32 {t1}, {t1}, 2
    s_sub_u32 {t1}, {t1}, {t2}
    s_lshl_b32 {t1}, {t1}, 5
    s_add_u32 {t1}, {t1}, {t0}
    s_lshl_b32 {t5}, {t5}, 5
    s_add_u32 {t0}, {t0}, {t5}
    s_cmp_eq_u32 s{S_TYPE}, 1
    s_cselect_b32 s{S_U0}, {t1}, {t3}
    s_cselect_b32 s{S_U12}, {t0}, {t3}
    s_cmp_lt_u32 s3, 8
    s_cbranch_scc1 K_comp
    """)
    return S

def p2_ids(S):
    S.e(f"""
    s_and_b32 {t0}, s2, 7
    s_lshr_b32 {t1}, s2, 3
    s_and_b32 {t2}, {t0}, 1
    s_lshl_b32 {t2}, {t2}, 2
    s_lshr_b32 {t0}, {t0}, 1
    s_add_u32 s{S_MT2}, {t0}, {t2}
    s_lshl_b32 s{S_M64}, s{S_MT2}, 2
    s_and_b32 {t2}, {t1}, 3
    s_add_u32 s{S_M64}, s{S_M64}, {t2}
    s_lshr_b32 s{S_N64}, {t1}, 2
    """)
def p2_a_voffsets(S, VD, VO, VOM, T):
    S.e(f"""
    v_lshrrev_b32 v{T}, 3, v{V_L}
    v_and_b32 v{T+1}, 7, v{V_L}
    v_bfe_u32 v{T+2}, v{V_L}, 4, 1
    v_lshlrev_b32 v{T+2}, 2, v{T+2}
    v_xor_b32 v{T+1}, v{T+1}, v{T+2}
    s_lshl_b32 {t0}, s{S_N64}, 7
    v_lshlrev_b32 v{T+1}, 4, v{T+1}
    v_add_u32 v{T+1}, {t0}, v{T+1}
    v_mul_u32_u24 v{VD}, 896, v{T}
    v_add_u32 v{VD}, v{VD}, v{T+1}
    """)
    if VO is not None:
        S.e(f"""
        v_lshrrev_b32 v{T+2}, 2, v{T}
        v_and_b32 v{T+3}, 3, v{T}
        v_mad_u32_u24 v{T+2}, v{T+2}, 14, v{T+3}
        v_mul_u32_u24 v{VO}, 896, v{T+2}
        v_add_u32 v{VO}, v{VO}, v{T+1}
        v_cmp_lt_u32_e64 {M1}, 1, v{T+3}
        v_mov_b32 v{T+2}, 0x7f000000
        v_cndmask_b32_e64 v{VOM}, v{VO}, v{T+2}, {M1}
        """)

def hsync(S, lab, cnt_off, target, A, B):
    S.wait_lgkm()
    S.e(f"""
    v_mov_b32 v{A}, {CNT + cnt_off}
    v_mov_b32 v{B}, 1
    s_mov_b64 exec, 1
    ds_add_u32 v{A}, v{B}
    s_mov_b64 exec, -1
    {lab}:
    ds_read_b32 v{B}, v{A}
    s_waitcnt lgkmcnt(0)
    v_readfirstlane_b32 {t1}, v{B}
    s_cmp_lt_u32 {t1}, {target}
    s_cbranch_scc1 {lab}
    """)

def helper_head():
    S = Stream(); T = PT
    S.e("K_helper:")
    S.e(f"s_setprio {OPT.get('hprio', 3)}")
    S.e(f"""
    s_sub_u32 s{S_H}, s3, 8
    s_lshl_b32 {t0}, s{S_MT}, 2
    s_add_u32 {t0}, {t0}, s{S_H}
    s_mul_i32 s{S_XROW}, {t0}, {64*896}
    s_mul_i32 s{S_AREA}, s{S_H}, {2*AREA}
    v_lshrrev_b32 v{T+7}, 3, v{V_L}
    v_mul_u32_u24 v{T}, 896, v{T+7}
    v_and_b32 v{T+8}, 7, v{V_L}
    v_lshrrev_b32 v{T+2}, 4, v{V_L}
    v_xor_b32 v{T+1}, v{T+8}, v{T+2}
    v_lshl_add_u32 v4, v{T+1}, 4, v{T}
    v_xor_b32 v5, 64, v4
    s_mul_i32 {t1}, s{S_HEAD}, 56
    s_lshl_b32 {t2}, s{S_ODD}, 3
    s_sub_u32 {t1}, {t1}, {t2}
    v_lshrrev_b32 v{T}, 2, v{V_L}
    v_and_b32 v{T+1}, 3, v{V_L}
    v_mul_u32_u24 v{T+4}, 2688, v{T}
    v_lshl_add_u32 v{T+4}, v{T+1}, 4, v{T+4}
    s_mul_i32 {tm}, s{S_H}, {16*2688}
    s_add_u32 {t1}, {t1}, {tm}
    v_add_u32 v6, {t1}, v{T+4}
    s_waitcnt lgkmcnt(0)
    """)
    srd(S, S_X, 4, 2048 * 896); srd(S, S_WQ, 6, 448 * 2688); srd(S, S_WG, 14, 448 * 3584); srd(S, S_WU, 16, 448 * 3584)
    S.e(f"s_cmp_eq_u32 s{S_TYPE}, 1\ns_cbranch_scc1 K_hkv")
    return S

def helper(typ):
    q = typ == "q"
    S = Stream(); T = PT
    S.e(f"K_h{typ}:")
    global HST
    HST = Stamper(STAMPR); HST.n = 1; HST.names = ["start"]
    V_XE, V_XO, V_DQ, V_DG, V_DU, V_DS = 4, 5, 6, 7, 8, 9
    V_AC = 10; V_PF = 16
    CA = 18; CU = 23; CT = 34
    if q:
        S.e(f"""
        v_bfe_u32 v{T+2}, v{V_L}, 4, 1
        v_lshlrev_b32 v{T+2}, 1, v{T+2}
        v_xor_b32 v{T+2}, v{T+2}, v{T+8}
        v_mul_u32_u24 v{T+3}, 3584, v{T+7}
        v_lshl_add_u32 v{T+2}, v{T+2}, 4, v{T+3}
        s_mul_i32 {tm}, s{S_H}, {16*3584}
        s_add_u32 {tm}, {tm}, s{S_U0}
        v_add_u32 v{V_DG}, {tm}, v{T+2}
        v_xor_b32 v{V_DU}, 64, v{V_DG}
        """)
    else:
        S.e(f"""
        v_mul_u32_u24 v{T+3}, 3584, v{T}
        v_lshl_add_u32 v{V_DG}, v{T+1}, 4, v{T+3}
        s_mul_i32 {tm}, s{S_H}, {16*3584}
        s_add_u32 {tm}, {tm}, s{S_U12}
        v_add_u32 v{V_DG}, {tm}, v{V_DG}
        v_xor_b32 v{V_DU}, 32, v{V_DG}
        s_lshr_b32 {t2}, s{S_H}, 1
        s_cmp_eq_u32 {t2}, 0
        s_cselect_b32 s{S_D1}, s14, s16
        s_cselect_b32 s{S_D1+1}, s15, s17
        s_mov_b32 s{S_D1+2}, {448*3584}
        s_mov_b32 s{S_D1+3}, 0x20000
        s_lshl_b32 {t2}, {t2}, 2
        v_lshrrev_b32 v{T+5}, 1, v{V_L}
        v_xor_b32 v{T+5}, {t2}, v{T+5}
        v_mul_u32_u24 v{T+5}, 3584, v{T+5}
        v_and_b32 v{T+6}, 1, v{V_L}
        v_lshl_add_u32 v{T+5}, v{T+6}, 4, v{T+5}
        s_and_b32 {t2}, s{S_H}, 1
        s_mul_i32 {t2}, {t2}, {32*3584}
        s_add_u32 {t2}, {t2}, s{S_U0}
        v_add_u32 v{V_DS}, {t2}, v{T+5}
        """)
    S.e(f"s_lshl_b32 s{S_D0L}, s{S_H}, 10\ns_add_u32 s{S_D0L}, s{S_D0L}, {W0}\ns_lshl_b32 s{S_G}, s{S_H}, {11 if q else 12}\ns_add_u32 s{S_G}, s{S_G}, {W0}")
    def dma(c, lo=0, hi=13):
        sb = (c % 3) * WS_
        L = []
        def one(m0expr, soff, v, srdreg): L.append((m0expr, soff, v, srdreg))
        if q:
            one(f"s{S_D0L}, {sb + 16384}", f"s_mov_b32 {tm}, {c*172032}", V_DQ, S_WQ)
            for rg in range(2):
                one(f"s{S_G}, {sb + rg*1024}", f"s_mov_b32 {tm}, {c*229376 + rg*8*3584}", V_DG, S_WG)
                one(f"s{S_G}, {sb + 8192 + rg*1024}", f"s_mov_b32 {tm}, {c*229376 + rg*8*3584}", V_DU, S_WU)
        else:
            one(f"s{S_G}, {sb}", f"s_mov_b32 {tm}, {c*172032 + 896}", V_DQ, S_WQ)
            one(f"s{S_G}, {sb + 1024}", f"s_mov_b32 {tm}, {c*172032 + 1792}", V_DQ, S_WQ)
            one(f"s{S_G}, {sb + 2048}", f"s_mov_b32 {tm}, {c*229376}", V_DG, S_WG)
            one(f"s{S_G}, {sb + 3072}", f"s_mov_b32 {tm}, {c*229376}", V_DU, S_WU)
            one(f"s{S_D0L}, {sb + 16384}", f"s_mov_b32 {tm}, {c*229376}", V_DS, S_D1)
        for i in range(8):
            wv, qq = i >> 2, i & 3
            one(f"s{S_AREA}, {wv*AREA + (c % 3)*4096 + qq*1024}", f"s_add_u32 {tm}, s{S_XROW}, {(wv*32 + qq*8)*896 + c*128}", V_XO if qq & 1 else V_XE, S_X)
        for (m0expr, soff, v, srdreg) in L[lo:hi]:
            S.e(f"s_add_u32 m0, {m0expr}\n{soff}")
            fl = OPT.get("x_flags", "") if srdreg == S_X else OPT.get("w_flags", "")
            S.e(f"buffer_load_dwordx4 v{v}, {sq(srdreg)}, {tm} offen{fl} lds", tag=f"d{c}")
    plan = [int(x) for x in OPT.get("dplan", "16,14,14,16,16,16").split(",")]
    pos = [0]
    def issue(n, limit_chunk):
        while n > 0 and pos[0] < 91 and pos[0] // 13 <= limit_chunk:
            c, i = divmod(pos[0], 13)
            dma(c, i, i + 1); pos[0] += 1; n -= 1
    issue(13, 2)
    tile_addrs(S, typ, V_AC, 60)
    for t in range(5):
        stride = (1024 if t == 0 else 2048) if q else (512 if t >= 3 else 4096)
        S.e(f"s_mul_i32 {t0}, s{S_H}, {stride}\nv_add_u32 v{V_AC+t}, {t0}, v{V_AC+t}")
    for i in range(5): S.e(f"v_mov_b32 v{CA+i}, 0")
    issue(plan[0] - 13, 2)
    def colsum_rd(c):
        for t in range(5):
            for e in range(2):
                a, imm = tile_read_args(typ, t, 0, e)
                S.e(f"ds_read_b64_tr_b16 {vr(CT + 20*(c % 5) + 4*t + 2*e, 2)}, v{V_AC+a} offset:{(c % 3)*WS_ + imm}")
    hb = [0]
    CM = OPT.get("csmode", "mfma")
    if CM == "mfma":
        for i in range(20): S.e(f"v_mov_b32 v{140+i}, 0")
        S.e("v_mov_b32 v134, 0x3f803f80\nv_mov_b32 v135, 0x3f803f80")
    def colsum_add(nhalf):
        if CM != "valu":
            for _ in range(nhalf):
                c, hf = hb[0] >> 1, hb[0] & 1; hb[0] += 1
                for t in range(5):
                    src = CT + 20*(c % 5) + 4*t + 2*hf
                    if CM == "mfma": S.e(f"v_mfma_f32_4x4x4_16b_bf16 {vr(140+4*t)}, v[134:135], {vr(src, 2)}, {vr(140+4*t)}")
                    else: S.e(f"v_dot2c_f32_bf16 v{CA+t}, 0x3f803f80, v{src}")
                if CM == "dot":
                    for t in range(5): S.e(f"v_dot2c_f32_bf16 v{CA+t}, 0x3f803f80, v{CT + 20*(c % 5) + 4*t + 2*hf + 1}")
            return
        for _ in range(nhalf):
            c, hf = hb[0] >> 1, hb[0] & 1; hb[0] += 1
            for j in (2*hf, 2*hf + 1):
                src = CT + 20*(c % 5) + j
                for t in range(5): S.e(f"v_lshlrev_b32 v{CU+t}, 16, v{src + 4*t}")
                for t in range(5): S.e(f"v_and_b32 v{CU+5+t}, 0xffff0000, v{src + 4*t}")
                for t in range(5): S.e(f"v_add_f32 v{CA+t}, v{CA+t}, v{CU+t}")
                for t in range(5): S.e(f"v_add_f32 v{CA+t}, v{CA+t}, v{CU+5+t}")
    S.wait_vm("d0"); S.e("s_barrier")
    colsum_rd(0); issue(plan[1], 2)
    S.wait_lgkm(); S.wait_vm("d1"); S.e("s_barrier")
    colsum_rd(1); issue(plan[2], 3)
    srd(S, S_WS, 22, WS_SIZE); srd(S, S_DBG, 20, 256); srd(S, S_WO, 8, 16 * 1568); srd(S, S_WD, 18, 1792 * 896)
    sched = dict(zip(range(2, 7), [int(x) for x in OPT.get('sched', '4,2,2,2,4').split(',')]))
    for c in range(2, 7):
        if c == 6: S.extend(poll(f"K_h{typ}_pst", "init", V_TMP, 17, who=8))
        F = (lambda n: HST(S, n, fine=True)) if (c in (3, 4) and OPT.get('hfine')) else (lambda n: None)
        F("pre")
        S.wait_lgkm(); S.wait_vm(f"d{c}")
        F("landed")
        S.e("s_barrier")
        F("bar")
        issue(plan[c + 1] if c + 1 < len(plan) else 99, c + 2)
        assert pos[0] >= min(91, 13 * (c + 2)), (c, pos[0])
        F("dma")
        if c == 2:
            for i in range(2):
                S.e(f"""
                v_lshrrev_b32 v{T+24}, 4, v{V_L}
                s_lshl_b32 {t0}, s{S_H}, 3
                s_add_u32 {t0}, {t0}, {4*i}
                v_add_u32 v{T+24}, {t0}, v{T+24}
                v_bfe_u32 v{T+25}, v{V_L}, 3, 1
                v_and_b32 v{T+26}, 7, v{V_L}
                v_mad_u32_u24 v{T+25}, v{T+25}, 7, v{T+26}
                v_mad_u32_u24 v{T+25}, v{T+24}, 14, v{T+25}
                v_lshlrev_b32 v{T+25}, 2, v{T+25}
                v_cmp_eq_u32_e64 {M1}, 7, v{T+26}
                s_cmp_eq_u32 {t0}, 28
                s_cselect_b64 {M1}, -1, {M1}
                v_mov_b32 v{T+26}, 0x7fffff00
                v_cndmask_b32_e64 v{T+25}, v{T+25}, v{T+26}, {M1}
                s_mul_i32 {t1}, s{S_HEAD}, 1568
                s_lshl_b32 {t0}, {t0}, 6
                s_add_u32 m0, {t0}, {WPHI}
                """)
                S.e(f"buffer_load_dword v{T+25}, {sq(S_WO)}, {t1} offen lds", tag="phi")
        if c == int(OPT.get("pfc", 6)) and OPT["prefetch"]:
            S.e(f"""
            s_lshr_b32 {t0}, s2, 3
            s_lshl_b32 {t0}, {t0}, 2
            s_add_u32 {t0}, {t0}, s{S_H}
            s_lshl_b32 {t0}, {t0}, 14
            s_mov_b32 {t3}, {1792*896}
            s_cmp_lt_u32 {t0}, {t3}
            s_cselect_b32 s{S_PF}, s18, s10
            s_cselect_b32 s{S_PF+1}, s19, s11
            s_cselect_b32 s{S_PF+2}, {t3}, {448*896}
            s_mov_b32 s{S_PF+3}, 0x20000
            s_cselect_b32 {t3}, 0, {t3}
            s_sub_u32 {t0}, {t0}, {t3}
            v_lshlrev_b32 v{V_PF}, 7, v{V_L}
            s_add_u32 {t1}, {t0}, 0x2000
            """)
            S.e(f"buffer_load_dword v{T+27}, v{V_PF}, {sq(S_PF)}, {t0} offen\nbuffer_load_dword v{T+28}, v{V_PF}, {sq(S_PF)}, {t1} offen", tag="pf")
        if c >= 5:
            colsum_rd(c); colsum_add(sched[c])
        else:
            colsum_rd(c); colsum_add(sched[c])
    assert hb[0] == 14
    if CM == "mfma":
        for t in range(5): S.e(f"v_mov_b32 v{CA+t}, v{140+4*t}")
    S.e(f"s_lshl_b32 {t0}, s{S_H}, 2\ns_add_u32 {t0}, {t0}, {CSP}\nv_add_u32 v{T}, {t0}, v{V_L16}")
    for t in range(5): S.e(f"v_cvt_pk_bf16_f32 v{T+1+t}, v{CA+t}, v{CA+t}")
    for t in range(5): S.e(f"v_lshlrev_b32 v{T+1+t}, 16, v{T+1+t}")
    for t in range(5): S.e(f"v_sub_f32 v{T+1+t}, v{CA+t}, v{T+1+t}")
    for t in range(5): S.e(f"v_cvt_pk_bf16_f32 v{T+1+t}, v{CA+t}, v{T+1+t}")
    for t in range(5): S.e(f"ds_write_b32 v{T}, v{T+1+t} offset:{t*1024}")
    S.wait_vm("phi"); S.wait_lgkm()
    return S

def hpost(typ):
    q = typ == "q"
    S = Stream(); T = PT
    S.e(f"K_hpost_{typ}:")
    st = HST
    V_WD = 18
    p2_ids(S)
    p2_a_voffsets(S, V_WD, None, None, 60)
    S.e(f"""
    s_mul_i32 s{S_AREA}, s{S_H}, {2*REG2}
    s_and_b32 {t0}, s{S_H}, 1
    s_lshl_b32 {t0}, {t0}, 2
    s_lshr_b32 {t1}, s{S_H}, 1
    s_add_u32 {t0}, {t0}, {t1}
    s_mul_i32 s{S_XROW}, {t0}, {14*16*896}
    s_cmp_ge_u32 s2, 224
    s_cselect_b32 {t0}, 0x40000000, 0
    s_add_u32 s{S_XROW}, s{S_XROW}, {t0}
    """)
    def B1():
        S.e(f"s_barrier\ns_setprio {OPT.get('hprio2', 0)}")
        st(S, "B1")
    def adma(lo, hi):
        for i in range(lo, hi):
            for wv in range(2):
                for u in range(2):
                    S.e(f"s_add_u32 m0, s{S_AREA}, {wv*REG2 + i*2048 + u*1024}\ns_add_u32 {tm}, s{S_XROW}, {((wv*28 + i)*16 + 8*u)*896}")
                    S.e(f"buffer_load_dwordx4 v{V_WD}, {sq(S_WD)}, {tm} offen lds", tag="a1")
    if q:
        KO = 4; U = 5; PH = 100
        S.e(f"""
        s_lshl_b32 {t0}, s{S_H}, 11
        v_add_u32 v{KO}, {t0}, v{V_L16}
        v_and_b32 v{U+3}, 7, v{V_L}
        v_lshlrev_b32 v{U+3}, 13, v{U+3}
        v_add_u32 v{U+3}, 0x1e80, v{U+3}
        s_lshl_b32 {t0}, s{S_H}, 10
        s_add_u32 {t0}, {t0}, {KVF}
        v_add_u32 v{U}, {t0}, v{V_L16}
        v_add_u32 v{U+1}, {KVF}, v{V_L16}
        v_add_u32 v{U+2}, s{S_AREA}, v{V_L16}
        s_lshl_b32 {t0}, s{S_MT}, 2
        s_add_u32 {t0}, {t0}, s{S_H}
        s_mul_i32 s{S_HFB}, {t0}, {2*NKS*1024}
        s_lshl_b32 {t0}, s{S_HEAD}, 11
        s_add_u32 s{S_HFB}, s{S_HFB}, {t0}
        s_add_u32 s{S_HFB}, s{S_HFB}, {112*1024}
        s_lshl_b32 s{S_G}, s{S_HEAD}, 16
        s_add_u32 s{S_G}, s{S_G}, {KVP_OFF}
        """)
        B1(); adma(0, 6)
        S.wait_vm("a1")
        S.e(f"v_mov_b32 v12, {CNT + 20}\nv_mov_b32 v13, 1\ns_mov_b64 exec, 1\nds_add_u32 v12, v13\ns_mov_b64 exec, -1")
        S.e("s_barrier")
        st(S, "B2")
        for wv in range(2):
            for k in range(4): S.e(f"ds_read_b128 {vr(PH + 16*wv + 4*k)}, v{U+2} offset:{wv*REG2 + PKO + k*1024}")
        S.wait_lgkm()
        S.e(f"v_mov_b32 v12, {CNT + 12}\nv_mov_b32 v13, 1\ns_mov_b64 exec, 1\nds_add_u32 v12, v13\ns_mov_b64 exec, -1\ns_setprio 3")
        S.e(f"v_mov_b32 v14, {CNT + 16}\ns_cmp_lg_u32 s3, 8\ns_cbranch_scc1 K_hq_spin")
        G = Stream(); tagpoll(G, "K_hq_pkv", U + 3, V_TMP, f"s{S_G}", opt=True, sleep=int(OPT.get("sleepkv", 8)))
        for x in G: x.opt = True
        S.extend(G)
        S.e(f"ds_write_b32 v14, v13\ns_branch K_hq_go", opt=True)
        S.e(f"""
        K_hq_spin:
        s_sleep 2
        ds_read_b32 v13, v14
        s_waitcnt lgkmcnt(0)
        v_readfirstlane_b32 {t1}, v13
        s_cmp_eq_u32 {t1}, 0
        s_cbranch_scc1 K_hq_spin
        """, opt=True)
        S.e("K_hq_go:")
        st(S, "kvrdy")
        KL = 20
        S.e(f"s_mov_b32 {t4}, 0\nK_hq_gather:\ns_mov_b32 {t0}, s{S_G}")
        for i in range(8):
            for e in range(2):
                S.e(f"buffer_load_dwordx4 {vr(KL + 8*i + 4*e)}, v{KO}, {sq(S_WS)}, {t0} offen offset:{e*1024} sc1")
            if i < 7: S.e(f"s_add_u32 {t0}, {t0}, 8192")
        umax_tree(S, list(range(KL, KL + 64)), V_TMP)
        S.e(f"""
        v_cmp_eq_u32_e64 {M1}, -1, v{V_TMP}
        s_add_u32 {t4}, {t4}, 1
        s_cmp_eq_u64 {M1}, 0
        s_cbranch_scc1 K_hq_gok
        s_cmp_lt_u32 {t4}, 0x1000
        s_cbranch_scc1 K_hq_gather
        K_hq_gok:
        """)
        for step in (1, 2, 4):
            for i in range(0, 8, 2*step):
                for j in range(0, 8, 2): pk(S, "add", KL+8*i+j, [("p", KL+8*i+j), ("p", KL+8*(i+step)+j)])
        for j in range(4): S.e(f"v_cvt_pk_bf16_f32 v{KL+8+j}, v{KL+2*j}, v{KL+2*j+1}")
        S.e(f"ds_write_b128 v{U}, {vr(KL+8)}")
        hsync(S, "K_hq_sync", 0, 4, 12, 13)
        st(S, "kvf")
        KF = 20; OO = [36, 52]; G2 = 68; RR = [84, 92]
        for k in range(4): S.e(f"ds_read_b128 {vr(KF + 4*k)}, v{U+1} offset:{k*1024}")
        for wv in range(2):
            for k in range(4): S.e(f"{MF} {vr(OO[wv],16)}, {vr(KF + 4*k)}, {vr(PH + 16*wv + 4*k)}, {'0' if k == 0 else vr(OO[wv],16)}")
        for wv in range(2):
            O = OO[wv]; R = RR[wv]
            bf16r(S, G2, f"v{O+14}")
            S.e(f"v_add_f32 v{G2}, {f32(1e-6)}, v{G2}")
            bf16r(S, G2, f"v{G2}")
            S.e(f"v_rcp_f32 v{G2}, v{G2}")
            for i in range(7): S.e(f"v_cvt_pk_bf16_f32 v{G2+1+i}, v{O+2*i}, v{O+2*i+1}")
            for i in range(7): S.e(f"v_lshlrev_b32 v{O+2*i}, 16, v{G2+1+i}\nv_and_b32 v{O+2*i+1}, 0xffff0000, v{G2+1+i}")
            for i in range(0, 14, 2): pk(S, "mul", O + i, [("p", O + i), ("b", G2)])
            for i in range(7): S.e(f"v_cvt_pk_bf16_f32 v{R+i}, v{O+2*i}, v{O+2*i+1}")
            S.e(f"v_mov_b32 v{R+7}, 0\ns_add_u32 {t0}, s{S_HFB}, {wv*NKS*1024}")
            S.e(f"buffer_store_dwordx4 {vr(R)}, v{V_L16}, {sq(S_WS)}, {t0} offen sc1\nbuffer_store_dwordx4 {vr(R+4)}, v{V_L16}, {sq(S_WS)}, {t0} offen offset:1024 sc1", tag="ost")
    else:
        X = 20; KA = 4; KB = 10
        S.e(f"""
        v_lshrrev_b32 v{X}, 4, v{V_L}
        v_bfe_u32 v{X+1}, v{V_L}, 2, 2
        v_lshl_add_u32 v{X}, v{X}, 3, v{X+1}
        v_bfe_u32 v{X+2}, v{V_L}, 1, 1
        s_lshl_b32 {t0}, s{S_H}, 1
        v_add_u32 v{X+4}, {t0}, v{X+2}
        v_xor_b32 v{X+4}, v{X+4}, v{X+1}
        v_lshlrev_b32 v{X+3}, 7, v{X}
        v_lshl_add_u32 v{X+3}, v{X+4}, 4, v{X+3}
        v_and_b32 v{X+5}, 1, v{V_L}
        v_lshl_add_u32 v{KA}, v{X+5}, 3, v{X+3}
        v_add_u32 v{KA}, {PKO}, v{KA}
        v_xor_b32 v{KA+1}, 64, v{KA}
        v_lshrrev_b32 v{X+4}, 1, v{X+1}
        v_xor_b32 v{X+4}, v{X+4}, v{X+2}
        v_lshlrev_b32 v{X+3}, 6, v{X}
        v_lshl_add_u32 v{X+3}, v{X+4}, 4, v{X+3}
        v_lshl_add_u32 v{KB}, v{X+5}, 3, v{X+3}
        v_add_u32 v{KB}, {VVO}, v{KB}
        v_xor_b32 v{KB+1}, 32, v{KB}
        """)
        for rg in (1, 2):
            for k in range(2):
                S.e(f"v_add_u32 v{KA+2*rg+k}, {rg*3*REG2}, v{KA+k}\nv_add_u32 v{KB+2*rg+k}, {rg*3*REG2}, v{KB+k}")
        S.e(f"""
        s_lshl_b32 {t4}, s{S_HEAD}, 3
        s_add_u32 {t4}, {t4}, s{S_MT}
        s_lshl_b32 {t4}, {t4}, 13
        s_lshr_b32 {t0}, s{S_H}, 1
        s_lshl_b32 {t0}, {t0}, 12
        s_add_u32 {t4}, {t4}, {t0}
        s_and_b32 {t0}, s{S_H}, 1
        s_lshl_b32 {t0}, {t0}, 9
        s_add_u32 {t4}, {t4}, {t0}
        s_add_u32 {t4}, {t4}, {KVP_OFF}
        """)
        for dh in range(2):
            D = 130 + dh
            S.e(f"""
            v_bfe_u32 v{X}, v{V_L}, 2, 2
            v_and_b32 v{X+1}, 3, v{V_L}
            v_lshl_add_u32 v{X}, v{X}, 3, v{X+1}
            v_add_u32 v{X}, {4*dh}, v{X}
            v_cmp_lt_u32_e64 {M1}, 13, v{X}
            v_subrev_u32 v{X+1}, 14, v{X}
            v_cndmask_b32_e64 v{X+1}, v{X}, v{X+1}, {M1}
            v_cndmask_b32_e64 v{X+2}, 0, 4, {M1}
            v_cmp_lt_u32_e64 {M2}, 27, v{X}
            v_and_b32 v{X+3}, 1, v{X}
            v_lshlrev_b32 v{X+3}, 2, v{X+3}
            v_bfe_u32 v{X+4}, v{X}, 1, 1
            v_add_u32 v{X+4}, 14, v{X+4}
            v_cndmask_b32_e64 v{X+1}, v{X+1}, v{X+4}, {M2}
            v_cndmask_b32_e64 v{X+2}, v{X+2}, v{X+3}, {M2}
            v_lshrrev_b32 v{X+3}, 2, v{X+1}
            v_and_b32 v{X+1}, 3, v{X+1}
            v_lshl_add_u32 v{X+1}, v{X+3}, 3, v{X+1}
            v_add_u32 v{X+1}, v{X+1}, v{X+2}
            v_lshrrev_b32 v{X+2}, 4, v{V_L}
            v_lshlrev_b32 v{X+2}, 10, v{X+2}
            v_lshl_add_u32 v{D}, v{X+1}, 4, v{X+2}
            """)
        KA1 = 6 if OPT.get("kvffn", "last") == "first" else int(OPT.get("ka1", 6))
        B1(); adma(0, KA1)
        def a1flag():
            S.wait_vm("a1")
            S.e(f"v_mov_b32 v16, {CNT + 20}\nv_mov_b32 v17, 1\ns_mov_b64 exec, 1\nds_add_u32 v16, v17\ns_mov_b64 exec, -1")
        if OPT.get("kvffn", "last") == "first": a1flag()
        S.e(f"""
        s_barrier
        s_setprio 3
        """)
        st(S, "B2")
        FB = 32; KD = 24
        for kk in range(8):
            b = FB + 12 * kk; rg = kk // 3; ro = (kk % 3) * REG2
            for e in range(2):
                S.e(f"ds_read_b64_tr_b16 {vr(b + 2*e, 2)}, v{KA + 2*rg + e} offset:{ro + e*512}")
                for dh in range(2):
                    S.e(f"ds_read_b64_tr_b16 {vr(b + 4 + 4*dh + 2*e, 2)}, v{KB + 2*rg + (e ^ dh)} offset:{ro + e*256}")
        for kk in range(8):
            b = FB + 12 * kk
            for dh in range(2):
                S.e(f"{MF16} {vr(KD + 4*dh)}, {vr(b)}, {vr(b + 4 + 4*dh)}, {'0' if kk == 0 else vr(KD + 4*dh)}")
        for dh in range(2):
            S.e(f"buffer_store_dwordx4 {vr(KD + 4*dh)}, v{130+dh}, {sq(S_WS)}, {t4} offen sc1", tag="kvst")
        st(S, "kvst")
        S.e(f"v_mov_b32 v12, {CNT + 12}\nv_mov_b32 v13, 1\ns_mov_b64 exec, 1\nds_add_u32 v12, v13\ns_mov_b64 exec, -1\ns_setprio {OPT.get('hprio2', 0)}")
        adma(KA1, 6)
        if OPT.get("kvffn", "last") != "first": a1flag()
    st(S, "end")
    st.flush(S, sq(S_WS), ST_OFF, 24, 12)
    S.e("s_endpgm")
    return S
def compute_head():
    S = Stream(); T = PT
    S.e("K_comp:")
    S.e(f"""
    s_lshl_b32 {t0}, s{S_MT}, 3
    s_add_u32 {t0}, {t0}, s3
    s_mul_i32 s{S_HFB}, {t0}, {NKS*1024}
    s_mul_i32 s{S_AREA}, s3, {AREA}
    s_mul_i32 {t2}, s{S_SROW}, 896
    v_cmp_gt_u32_e64 {M2}, 56, v{V_L}
    v_mov_b32 v{T+2}, 0x7f000000
    v_cndmask_b32_e64 v{T+2}, v{T+2}, v{V_L16}, {M2}
    s_waitcnt lgkmcnt(0)
    """)
    srd(S, S_X, 4, 2048 * 896)
    S.e(f"buffer_load_dwordx4 {vr(STV)}, v{T+2}, {sq(S_X)}, {t2} offen", tag="strow")
    if OPT.get("touch2"):
        S.e(f"""
        s_mov_b32 s{S_D1}, s6
        s_mov_b32 s{S_D1+1}, s7
        s_mov_b32 s{S_D1+2}, {448*2688}
        s_mov_b32 s{S_D1+3}, 0x20000
        s_cmp_eq_u32 s3, 1
        s_cselect_b32 s{S_D1}, s14, s{S_D1}
        s_cselect_b32 s{S_D1+1}, s15, s{S_D1+1}
        s_cmp_eq_u32 s3, 2
        s_cselect_b32 s{S_D1}, s16, s{S_D1}
        s_cselect_b32 s{S_D1+1}, s17, s{S_D1+1}
        s_cmp_eq_u32 s3, 3
        s_cselect_b32 s{S_D1}, s18, s{S_D1}
        s_cselect_b32 s{S_D1+1}, s19, s{S_D1+1}
        s_cmp_lg_u32 s3, 0
        s_cselect_b32 s{S_D1+2}, {448*3584}, s{S_D1+2}
        s_cmp_eq_u32 s3, 4
        s_cselect_b32 s{S_D1}, s10, s{S_D1}
        s_cselect_b32 s{S_D1+1}, s11, s{S_D1+1}
        s_cselect_b32 s{S_D1+2}, {448*896}, s{S_D1+2}
        s_mul_i32 {t1}, s2, {49*128}
        s_cmp_ge_u32 s3, {OPT['touch2']}
        s_cselect_b32 {t1}, 0x40000000, {t1}
        v_lshlrev_b32 v{T+5}, 7, v{V_L}
        v_cmp_gt_u32_e64 {M1}, 49, v{V_L}
        v_mov_b32 v{T+6}, 0x7f000000
        v_cndmask_b32_e64 v{T+5}, v{T+6}, v{T+5}, {M1}
        buffer_load_dword v23, v{T+5}, {sq(S_D1)}, {t1} offen
        """)
    srd(S, S_WS, 22, WS_SIZE); srd(S, S_DBG, 20, 256); srd(S, S_WD, 18, 1792 * 896); srd(S, S_WO, 10, 448 * 896)
    S.e(f"s_mov_b32 s{S_OUT+2}, {2048*896}\ns_mov_b32 s{S_OUT+3}, 0x20000")
    S.e(f"""
    s_lshl_b32 s{S_U0}, s{S_U0}, 5
    s_add_u32 s{S_U0}, s{S_U0}, s{S_HFB}
    s_lshl_b32 s{S_U12}, s{S_U12}, 5
    s_add_u32 s{S_U12}, s{S_U12}, s{S_HFB}
    v_lshrrev_b32 v{T+3}, 5, v{V_L}
    v_and_b32 v{T+5}, 31, v{V_L}
    v_bfe_u32 v{T+6}, v{V_L}, 1, 3
    v_xor_b32 v{T+6}, v{T+6}, v{T+3}
    v_lshlrev_b32 v{T+5}, 7, v{T+5}
    v_lshl_add_u32 v{T+5}, v{T+6}, 4, v{T+5}
    v_add_u32 v{V_AX}, s{S_AREA}, v{T+5}
    v_xor_b32 v{V_AX+1}, 32, v{V_AX}
    v_xor_b32 v{V_AX+2}, 64, v{V_AX}
    v_xor_b32 v{V_AX+3}, 0x60, v{V_AX}
    v_add_u32 v{V_CSA}, {CSP}, v{V_L16}
    v_bfe_u32 v{T+1}, v{V_L}, 2, 2
    v_lshl_add_u32 v{T+9}, v{T+3}, 2, v{T+1}
    v_lshlrev_b32 v{T+9}, 6, v{T+9}
    v_and_b32 v{T+10}, 1, v{V_L}
    v_lshl_add_u32 v{T+9}, v{T+10}, 5, v{T+9}
    v_bfe_u32 v{T+10}, v{V_L}, 1, 1
    v_bfe_u32 v{T+4}, v{V_L}, 4, 1
    v_lshl_add_u32 v{T+10}, v{T+4}, 1, v{T+10}
    v_lshl_add_u32 v{T+9}, v{T+10}, 3, v{T+9}
    v_add_u32 v{V_PHA}, {WPHI}, v{T+9}
    v_mov_b32 v{T+9}, {CNT}
    ds_write_b32 v{T+9}, v{V_Z}
    ds_write_b32 v{T+9}, v{V_Z} offset:4
    ds_write_b32 v{T+9}, v{V_Z} offset:8
    ds_write_b32 v{T+9}, v{V_Z} offset:12
    ds_write_b32 v{T+9}, v{V_Z} offset:16
    ds_write_b32 v{T+9}, v{V_Z} offset:20
    v_and_b32 v{T+10}, 60, v{V_L}
    v_add_u32 v{T+10}, {CNT + 64}, v{T+10}
    ds_write_b32 v{T+10}, v{V_Z}
    """)
    U = PT
    for j in range(4): S.e(f"v_lshlrev_b32 v{U+2*j}, 16, v{STV+j}\nv_and_b32 v{U+2*j+1}, 0xffff0000, v{STV+j}")
    S.e(f"""
    v_add_f32 v{U+8}, v{U}, v{U+1}
    v_add_f32 v{U+9}, v{U+2}, v{U+3}
    v_add_f32 v{U+10}, v{U+4}, v{U+5}
    v_add_f32 v{U+11}, v{U+6}, v{U+7}
    v_add_f32 v{U+8}, v{U+8}, v{U+9}
    v_add_f32 v{U+10}, v{U+10}, v{U+11}
    v_add_f32 v{U+8}, v{U+8}, v{U+10}
    """)
    wave_sum(S, U + 8, U + 9)
    S.e(f"v_mul_f32 v{U+8}, {f32(1/448)}, v{U+8}")
    for j in range(8): S.e(f"v_sub_f32 v{U+j}, v{U+j}, v{U+8}")
    S.e(f"v_mul_f32 v{U+9}, v{U}, v{U}\nv_mul_f32 v{U+10}, v{U+1}, v{U+1}")
    for j in range(2, 8): S.e(f"v_fmac_f32 v{U+9+(j&1)}, v{U+j}, v{U+j}")
    S.e(f"v_add_f32 v{U+9}, v{U+9}, v{U+10}\nv_cndmask_b32_e64 v{U+9}, 0, v{U+9}, {M2}")
    wave_sum(S, U + 9, U + 10)
    S.e(f"v_mul_f32 v{U+9}, {f32(1/448)}, v{U+9}")
    bf16r(S, U + 9, f"v{U+9}")
    S.e(f"v_add_f32 v{U+9}, {f32(1e-5)}, v{U+9}")
    bf16r(S, U + 9, f"v{U+9}")
    S.e(f"v_sqrt_f32 v{U+9}, v{U+9}")
    bf16r(S, STV + 1, f"v{U+9}")
    S.e(f"""
    v_cvt_pk_bf16_f32 v{STV}, -v{U+8}, -v{U+8}
    s_lshl_b32 {t0}, s{S_SROW}, 3
    s_add_u32 {t0}, {t0}, {STATS_OFF}
    s_mov_b64 exec, 1
    """)
    S.e(f"buffer_store_dwordx2 {vr(STV, 2)}, v{V_Z}, {sq(S_WS)}, {t0} offen sc1", tag="stst")
    S.e(f"s_mul_i32 {t0}, s2, {MB_STRIDE}\ns_lshl_b32 {t1}, s3, 2\ns_add_u32 {t0}, {t0}, {t1}\ns_add_u32 {t0}, {t0}, {MB_OFF}")
    S.e(f"buffer_store_dword v{V_Z}, v{V_Z}, {sq(S_WS)}, {t0} offen sc1", tag="stst")
    S.e("s_mov_b64 exec, -1")
    S.e(f"s_cmp_eq_u32 s{S_TYPE}, 1\ns_cbranch_scc1 K_kv")
    return S


def compute(typ):
    q = typ == "q"
    S = Stream(); T = PT
    S.e(f"K_{typ}:")
    st = Stamper(STAMPR); st.n = 1; st.names = ["start"]
    tile_addrs(S, typ, V_AT, T)
    p2_ids(S)
    EARLY = Stream()
    T = SC; p2_a_voffsets(EARLY, 21, None, None, T)
    EARLY.e(f"""
    s_bfe_u32 {t4}, s3, 0x10001
    s_lshr_b32 {t5}, s3, 2
    v_bfe_u32 v{T}, v{V_L}, 2, 2
    v_lshrrev_b32 v{T+1}, 5, v{V_L}
    v_lshl_add_u32 v{T+2}, v{T+1}, 2, v{T}
    v_lshlrev_b32 v{T+2}, 7, v{T+2}
    v_lshrrev_b32 v{T}, 1, v{T}
    v_xor_b32 v{T}, {t4}, v{T}
    v_lshl_add_u32 v{T+2}, v{T}, 6, v{T+2}
    v_and_b32 v{T}, 1, v{V_L}
    v_lshl_add_u32 v{T+2}, v{T}, 5, v{T+2}
    v_bfe_u32 v{T}, v{V_L}, 1, 1
    v_bfe_u32 v{T+3}, v{V_L}, 4, 1
    v_xor_b32 v{T+3}, {t5}, v{T+3}
    v_lshl_add_u32 v{T}, v{T+3}, 1, v{T}
    v_lshl_add_u32 v{T+2}, v{T}, 3, v{T+2}
    s_mul_i32 {t0}, s3, {REG2}
    v_add_u32 v22, {t0}, v{T+2}
    s_and_b32 {t0}, s3, 3
    s_lshl_b32 {t0}, {t0}, 1
    s_add_u32 s{S_H}, {t0}, {t5}
    s_mul_i32 s{S_XROW}, s{S_H}, {14*16*896}
    s_cmp_ge_u32 s2, 224
    s_cselect_b32 {t0}, 0x40000000, 0
    s_add_u32 s{S_XROW}, s{S_XROW}, {t0}
    """)
    T = PT
    pend = []
    def ABn(n): return AB if n % 2 == 1 else SC + 8
    def a_read(n, t):
        c, s = n >> 2, n & 3
        for e in range(2):
            a, imm = tile_read_args(typ, t, s, e)
            S.e(f"ds_read_b64_tr_b16 {vr(ABn(n) + 4*t + 2*e, 2)}, v{V_AT+a} offset:{(c % 3)*WS_ + imm}")
    def x_read(n):
        c, s = n >> 2, n & 3
        S.e(f"ds_read_b128 {vr(XB + 4*(n & 1))}, v{V_AX+s} offset:{(c % 3) * 4096}")
    def kstep(n):
        if n + 1 < 28:
            x_read(n + 1); a_read(n + 1, 0); a_read(n + 1, 1)
        for t in range(5):
            S.e(f"{MF} {vr(ACC + 16*t, 16)}, {vr(ABn(n) + 4*t)}, {vr(XB + 4*(n & 1))}, {'0' if n == 0 else vr(ACC + 16*t, 16)}")
            if n + 1 < 28 and t + 2 < 5: a_read(n + 1, t + 2)
            if pend: S.extend(pend.pop(0))
    S.wait_lgkm(); S.e("s_barrier")
    st(S, "bar0")
    x_read(0)
    for t in range(5): a_read(0, t)
    for c in range(7):
        S.comment(f"chunk {c}")
        if c in (4,): st(S, f"chunk{c}")
        n = 4 * c
        if c == int(OPT.get("poic", 0)):
            G = Stream(); G.e(f"v_mov_b32 v{SC}, -1\nv_mov_b32 v{SC+1}, -1\nv_mov_b32 v{SC+2}, -1\nv_mov_b32 v{SC+3}, -1"); pend.append(G)
            if q:
                offs = [f"s_lshl_b32 {t0}, s{S_HEAD}, 11\ns_add_u32 {t0}, {t0}, s{S_HFB}\ns_add_u32 {t0}, {t0}, {(112+u)*1024}" for u in range(2)]
            else:
                offs = [f"s_lshl_b32 {t0}, s{S_HEAD}, 3\ns_add_u32 {t0}, {t0}, s{S_MT}\ns_lshl_b32 {t0}, {t0}, 3\ns_add_u32 {t0}, {t0}, s3\ns_lshl_b32 {t0}, {t0}, 10\ns_add_u32 {t0}, {t0}, {KVP_OFF}"]
            for o in offs:
                G = Stream(); G.e(o); G.e(f"buffer_store_dwordx4 {vr(SC)}, v{V_L16}, {sq(S_WS)}, {t0} offen sc1", tag="stst"); pend.append(G); pend.append(Stream())
        if c == int(OPT.get("poic", 0)) + 1: pend.append(signal("stst", 4, "init", f"K_{typ}_nosigst", SC + 4, SC + 5, SC + 6, 7))
        if OPT.get("tlb") and c == int(OPT["tlb"]):
            G = Stream()
            G.e(f"""
            v_lshlrev_b32 v23, 18, v{V_L}
            s_lshl_b32 {t0}, s3, 15
            buffer_load_dword v23, v23, {sq(S_WS)}, {t0} offen
            """); pend.append(G)
            G = Stream()
            G.e(f"""
            v_lshlrev_b32 v26, 15, v{V_L}
            s_lshl_b32 {t0}, s3, 12
            buffer_load_dword v27, v26, {sq(S_OUT)}, {t0} offen
            """); pend.append(G)
        if c == 3:
            for ii in range(0, len(EARLY), 5):
                G = Stream(); G.extend(EARLY[ii:ii+5]); pend.append(G)
        kstep(n); kstep(n + 1); kstep(n + 2)
        S.wait_lgkm(); S.e("s_barrier")
        if c == 5:
            G = Stream()
            G.e(f"""
            v_and_b32 v{V_TMP}, 31, v{V_L}
            v_lshlrev_b32 v{V_TMP}, 3, v{V_TMP}
            s_lshl_b32 {t0}, s{S_MT}, 3
            s_add_u32 {t0}, {t0}, s3
            s_lshl_b32 {t0}, {t0}, 8
            s_add_u32 {t0}, {t0}, {STATS_OFF}
            buffer_load_dwordx2 {vr(V_RINV, 2)}, v{V_TMP}, {sq(S_WS)}, {t0} offen sc1
            """)
            pend.append(G)
        if c == 6:
            CR = SC + 8
            for t in range(5): S.e(f"ds_read_b128 {vr(CR + 4*t)}, v{V_CSA} offset:{t*1024}")
            stats_consts(S)
        kstep(n + 3)
    st(S, "S1")
    FT = (lambda n: st(S, n, fine=True)) if OPT.get('fw') == 'tail' else (lambda n: None)
    FT("s1")
    WPF = XB; E = AB; QB = E + 8; TT = 4; GT = SC; GT2 = SC + 12
    A0 = ACC
    V_WD, V_A0, V_A1 = 11, 12, 13
    V_WOo, V_WOM, V_B0, V_B1, V_O = 4, 5, 6, 7, 8
    S.e(f"{MF} {vr(ACC,16)}, {vr(CR)}, {vr(BP)}, {vr(ACC,16)}")
    for te in range(4): S.e(f"ds_read_b64_tr_b16 {vr(WPF + 2*te, 2)}, v{V_PHA} offset:{te * 512}")
    NC1 = 5 if (q or not OPT.get("corr2", True)) else 2
    for t in range(1, NC1): S.e(f"{MF} {vr(ACC + 16*t,16)}, {vr(CR + 4*t)}, {vr(BP)}, {vr(ACC + 16*t,16)}")
    S.e(f"s_mul_i32 s{S_AREA}, s3, {REG2}\nv_mov_b32 v{V_WD}, v21\nv_mov_b32 v{V_A0}, v22\nv_xor_b32 v{V_A1}, 64, v22")
    W = SC + 28; X = 4
    if not q:
        S.e(f"""
        v_and_b32 v{X}, 31, v{V_L}
        v_lshrrev_b32 v{X+1}, 5, v{V_L}
        v_lshlrev_b32 v{X+1}, 1, v{X+1}
        v_bfe_u32 v{X+2}, v{V_L}, 1, 2
        v_xor_b32 v{X+2}, v{X+2}, v{X+1}
        v_lshlrev_b32 v{X+3}, 6, v{X}
        v_lshl_add_u32 v{X+3}, v{X+2}, 4, v{X+3}
        s_add_u32 {t0}, s{S_AREA}, {VVO}
        v_add_u32 v9, {t0}, v{X+3}
        v_xor_b32 v10, 16, v9
        v_and_b32 v{X+3}, 7, v{V_L}
        v_xor_b32 v{X+1}, v{X+1}, v{X+3}
        v_lshlrev_b32 v{X}, 7, v{X}
        v_lshl_add_u32 v{X}, v{X+1}, 4, v{X}
        s_add_u32 {t0}, s{S_AREA}, {PKO}
        v_add_u32 v{W}, {t0}, v{X}
        v_xor_b32 v{W+1}, 16, v{W}
        v_xor_b32 v{W+2}, 64, v{W}
        v_xor_b32 v{W+3}, 0x50, v{W}
        """)
    FT("addr")
    scale16(S, A0)
    for i in range(8): S.e(f"v_cvt_pk_bf16_f32 v{QB+i}, v{A0+2*i}, v{A0+2*i+1}")
    S.e(f"{MF} {vr(A0,16)}, {vr(WPF)}, {vr(QB)}, 0\n{MF} {vr(A0,16)}, {vr(WPF+4)}, {vr(QB+4)}, {vr(A0,16)}")
    FT("pq")
    A1 = ACC + 16
    AC2 = 104
    bfree = [16, 24, 32, 40, 48]
    ablk = {i: b for i, b in enumerate([72, 80, 88, 96, 56, 64] if (q or OPT.get('kvffn', 'last') == 'first') else [56, 64, 72, 80, 88, 96])}
    slot_of = {i: i for i in range(6)}
    def a_tr(i, blk):
        nonlocal S
        for ni in range(2):
            for e in range(2):
                S.e(f"ds_read_b64_tr_b16 {vr(blk + 4*ni + 2*e, 2)}, v{V_A0+ni} offset:{slot_of[i]*2048 + e*1024}", tag=f"ar{i}")
    def a_dma(i, sl):
        slot_of[i] = sl; out = []
        for u in range(2):
            G = Stream()
            G.e(f"s_add_u32 m0, s{S_AREA}, {sl*2048 + u*1024}")
            if i < 14:
                G.e(f"s_add_u32 {tm}, s{S_XROW}, {(16*i + 8*u)*896}")
                G.e(f"buffer_load_dwordx4 v{V_WD}, {sq(S_WD)}, {tm} offen lds", tag=f"a{i}")
            else:
                hd, t = (i - 14) >> 1, (i - 14) & 1
                G.e(f"s_add_u32 {tm}, s{S_D0L}, {(28*hd + 8*t + 4*u)*896}")
                G.e(f"buffer_load_dwordx4 v{V_WOM if (t and u) else V_WOo}, {sq(S_WO)}, {tm} offen lds", tag=f"a{i}")
            out.append(G)
        return out
    def sprinkle(V, parts, start, every):
        n = 0
        for ins in V:
            S.append(ins); n += 1
            if n >= start and (n - start) % every == 0 and parts: S.extend(parts.pop(0))
        for p in parts: S.extend(p)
    late = []
    KF1 = q or OPT.get("kvffn", "last") == "first"
    def vwr(): S.e(f"ds_write_b128 v9, {vr(A1)}\nds_write_b128 v10, {vr(A1+4)}")
    def vpart():
        scale16(S, A1)
        for i in range(8): S.e(f"v_cvt_pk_bf16_f32 v{A1+i}, v{A1+2*i}, v{A1+2*i+1}")
        S.e(f"""
        v_mov_b32 v{A1+8}, 0x3f803f80
        v_cndmask_b32_e64 v{A1+6}, v{A1+6}, v{A1+8}, {HHM}
        """)
        if KF1: vwr()
    if KF1:
        if q:
            geglu(S, A1, GT, S_U0, 0); geglu(S, ACC + 32, GT2, S_U0, 1); geglu(S, ACC + 48, GT, S_U0, 2); geglu(S, ACC + 64, GT2, S_U0, 3)
        else:
            geglu(S, ACC + 32, GT2, S_U0, 0); geglu(S, ACC + 48, GT, S_U12, 0); geglu(S, ACC + 64, GT2, S_U12, 1)
            vpart()
        st(S, "ffn")
        S.e(f"""
        v_mov_b32 v14, {CNT + 20}
        K_{typ}_a1:
        ds_read_b32 v15, v14
        s_waitcnt lgkmcnt(0)
        v_readfirstlane_b32 {t1}, v15
        s_cmp_lt_u32 {t1}, 4
        s_cbranch_scc1 K_{typ}_a1
        """)
        for i in range(4): a_tr(i, ablk[i])
        V = Stream(); softmax14(V, A0, E, TT)
        w = Stream(); w.wait_lgkm()
        sg = signal("hst", 8, "h", f"K_{typ}_nosigh", 104, 105, 106, 7)
        pos = int(OPT.get("sgpos", 4))
        parts = [w] + a_dma(6, 0) + a_dma(7, 1) + a_dma(8, 2) + a_dma(9, 3)
        parts.insert(pos + 1, sg)
        if q or OPT.get('kvspr', False): sprinkle(V, parts, 12, 14)
        else:
            sprinkle(V, [sg], 60, 14); parts.remove(sg); pre_late = parts
        if q:
            S.e(f"s_add_u32 {t0}, s{S_AREA}, {PKO}\nv_add_u32 v9, {t0}, v{V_L16}")
            for kk in range(4): S.e(f"ds_write_b128 v9, {vr(E + 4*kk)} offset:{kk*1024}")
        else:
            for k in range(4): S.e(f"ds_write_b128 v{W+k}, {vr(E+4*k)}")
        a_tr(4, ablk[4]); a_tr(5, ablk[5])
        S.wait_lgkm(); S.e("s_barrier")
        st(S, "B2")
        late = ([] if (q or OPT.get('kvspr', False)) else pre_late) + a_dma(10, 4) + a_dma(11, 5)
    else:
        vpart()
        FT("v")
        softmax14(S, A0, E, TT)
        FT("sm")
        vwr()
        for k in range(4): S.e(f"ds_write_b128 v{W+k}, {vr(E+4*k)}")
        S.wait_lgkm()
        FT("wr")
        for t in range(NC1, 5): S.e(f"{MF} {vr(ACC + 16*t,16)}, {vr(CR + 4*t)}, {vr(BP)}, {vr(ACC + 16*t,16)}")
        S.e("s_barrier")
        st(S, "B2")
        FT("b2")
        geglu(S, ACC + 32, GT2, S_U0, 0); FT("g1"); geglu(S, ACC + 48, GT, S_U12, 0); FT("g2"); geglu(S, ACC + 64, GT2, S_U12, 1); FT("g3")
        st(S, "ffn")
        G = Stream()
        G.e(f"""
        v_mov_b32 v14, {CNT + 20}
        K_{typ}_a1:
        ds_read_b32 v15, v14
        s_waitcnt lgkmcnt(0)
        v_readfirstlane_b32 {t1}, v15
        s_cmp_lt_u32 {t1}, 4
        s_cbranch_scc1 K_{typ}_a1
        """)
        S0 = S; S = G
        for i in range(6): a_tr(i, ablk[i])
        S = S0
        G.wait_lgkm()
        late = [G]
        for i in range(6, 12): late += a_dma(i, i - 6)
    TP = 16
    S.e(f"""
    v_lshrrev_b32 v{TP}, 3, v{V_L}
    v_mul_u32_u24 v{TP+1}, 896, v{TP}
    v_sub_u32 v{TP+1}, v{V_WD}, v{TP+1}
    v_lshrrev_b32 v{TP+2}, 2, v{TP}
    v_and_b32 v{TP+3}, 3, v{TP}
    v_mad_u32_u24 v{TP+2}, v{TP+2}, 14, v{TP+3}
    v_mul_u32_u24 v{V_WOo}, 896, v{TP+2}
    v_add_u32 v{V_WOo}, v{V_WOo}, v{TP+1}
    v_cmp_lt_u32_e64 {M1}, 1, v{TP+3}
    v_mov_b32 v{TP+2}, 0x7f000000
    v_cndmask_b32_e64 v{V_WOM}, v{V_WOo}, v{TP+2}, {M1}
    s_and_b32 {t3}, s3, 1
    s_bfe_u32 {t4}, s3, 0x10001
    s_lshr_b32 {t5}, s3, 2
    s_lshl_b32 {t0}, s{S_M64}, 1
    s_add_u32 {t0}, {t0}, {t3}
    s_mul_i32 {t1}, {t0}, {NKS*1024}
    v_add_u32 v{V_B0}, {t1}, v{V_L16}
    s_xor_b32 {t2}, {t0}, 1
    s_mul_i32 {t2}, {t2}, {NKS*1024}
    v_add_u32 v{V_B1}, {t2}, v{V_L16}
    v_mov_b32 v9, {t1}
    v_mov_b32 v10, {t2}
    v_cmp_lt_u32_e64 {M1}, 15, v{V_L}
    v_cndmask_b32_e64 v9, v9, v10, {M1}
    v_and_b32 v10, 3, v{V_L}
    v_lshl_add_u32 v9, v10, 10, v9
    v_lshrrev_b32 v{TP+1}, 5, v{V_L}
    v_and_b32 v{TP}, 31, v{V_L}
    s_lshl_b32 {t0}, {t0}, 5
    v_add_u32 v{TP}, {t0}, v{TP}
    v_mul_u32_u24 v{TP}, 896, v{TP}
    v_lshlrev_b32 v{TP+1}, 5, v{TP+1}
    s_lshl_b32 {t0}, s{S_N64}, 7
    s_lshl_b32 {t1}, {t4}, 6
    s_add_u32 {t0}, {t0}, {t1}
    s_lshl_b32 {t1}, {t5}, 4
    s_add_u32 {t0}, {t0}, {t1}
    v_add3_u32 v{V_O}, v{TP}, v{TP+1}, {t0}
    s_mul_i32 s{S_D0L}, s{S_H}, {2*28*896}
    s_mul_i32 s{S_U0}, s{S_H}, {14*1024}
    s_lshl_b32 s{S_U12}, s{S_H}, 12
    s_add_u32 s{S_U12}, s{S_U12}, {112*1024 - 14*1024}
    s_add_u32 s{S_G}, s{S_U12}, {14*1024 + 1008}
    v_mov_b32 v{TP}, {CNT + 12}
    K_{typ}_zone:
    ds_read_b32 v{TP+1}, v{TP}
    s_waitcnt lgkmcnt(0)
    v_readfirstlane_b32 {t1}, v{TP+1}
    s_cmp_lt_u32 {t1}, 4
    s_cbranch_scc1 K_{typ}_zone
    """)
    for g in late[:int((OPT.get("latepre", 4) if KF1 else OPT.get("latekv", 0)))]: S.extend(g)
    st(S, "p1end")
    if not KF1: S.extend(signal("hst", 8, "h", f"K_{typ}_nosigh", TP, TP + 1, TP + 2, 7))
    if not q: S.e(f"s_cmp_ge_u32 s2, 224\ns_cbranch_scc1 K_{typ}_fin")
    for g in late[int((OPT.get("latepre", 4) if KF1 else OPT.get("latekv", 0))):]: S.extend(g)
    for i in range(12, 15):
        for g in a_dma(i, i - 6): S.extend(g)
    MIR = CNT + 64
    S.e(f"""
    s_mul_i32 {t2}, s2, {MB_STRIDE}
    s_add_u32 {t2}, {t2}, {MB_OFF}
    s_lshr_b32 {t0}, s{S_H}, 1
    s_lshl_b32 {t5}, {t0}, 1
    s_cmp_lt_u32 s3, 4
    s_mov_b32 {t4}, 0x01010101
    s_cselect_b32 {t4}, 0x00010001, {t4}
    s_mov_b32 {t3}, 0
    v_and_b32 v{TP}, 15, v{V_L}
    v_lshlrev_b32 v{TP}, 2, v{TP}
    v_add_u32 v{TP+1}, {MIR}, v{TP}
    v_and_b32 v{TP}, 28, v{TP}
    s_add_u32 {t0}, {t5}, 1
    """)
    st(S, "w5")
    S.e(f"""
    s_cmp_eq_u32 s3, 7
    s_cbranch_scc1 K_{typ}_phg
    K_{typ}_phl:
    ds_read_b32 v14, v{TP+1}
    s_waitcnt lgkmcnt(0)
    v_readlane_b32 {t1}, v14, {t5}
    v_readlane_b32 {tm}, v14, {t0}
    s_and_b32 {t1}, {t1}, {tm}
    s_and_b32 {t1}, {t1}, {t4}
    s_cmp_eq_u32 {t1}, {t4}
    s_cbranch_scc1 K_{typ}_phok
    v_readlane_b32 {t1}, v14, 8
    s_sleep 2
    s_cmp_eq_u32 {t1}, 0
    s_cbranch_scc1 K_{typ}_phl
    K_{typ}_phg:
    buffer_load_dword v14, v{TP}, {sq(S_WS)}, {t2} offen sc1
    s_waitcnt vmcnt(0)
    s_mov_b64 exec, 0xff
    ds_write_b32 v{TP+1}, v14
    s_mov_b64 exec, -1
    v_readlane_b32 {t1}, v14, {t5}
    v_readlane_b32 {tm}, v14, {t0}
    s_add_u32 {t3}, {t3}, 1
    s_and_b32 {t1}, {t1}, {tm}
    s_and_b32 {t1}, {t1}, {t4}
    s_cmp_eq_u32 {t1}, {t4}
    s_cbranch_scc1 K_{typ}_phd
    s_sleep {OPT.get('sleep', 4)}
    s_cmp_lt_u32 {t3}, 0x8000
    s_cbranch_scc1 K_{typ}_phg
    K_{typ}_phd:
    v_mov_b32 v14, {MIR + 32}
    v_mov_b32 v15, 1
    ds_write_b32 v14, v15
    K_{typ}_phok:
    """, opt=True)
    S.append(pseudo("forget_opt"))
    st(S, "B5")
    if OPT.get('fw') == 'p2': st(S, "B5f", fine=True)
    bblk = {}
    nextb = [0]
    def b_issue(i, opt=False):
        S.e(f"s_add_u32 {tm}, s{S_U0 if i < 14 else S_U12}, {i*1024}", opt=opt)
        for mi in range(2):
            S.e(f"buffer_load_dwordx4 {vr(bblk[i] + 4*mi)}, v{V_B0+mi}, {sq(S_WS)}, {tm} offen sc1", opt=opt)
    def b_load():
        i = nextb[0]
        if i >= 18 or not bfree: return False
        if i == 14:
            tagpoll(S, f"K_{typ}_po", 9, 14, f"s{S_G}", first_issued=True)
            S.append(pseudo("forget_opt"))
            st(S, "B6")
        bblk[i] = bfree.pop(0)
        b_issue(i)
        nextb[0] += 1
        return True
    OLAG = int(OPT.get("olag", 2))
    while b_load(): pass
    afree = []
    for i in range(18):
        if i + 1 < 18 and (i + 1) not in ablk:
            ablk[i + 1] = afree.pop(0)
            S.wait_vm(f"a{i+1}")
            a_tr(i + 1, ablk[i + 1])
        if i >= 14:
            regs = list(range(bblk[i], bblk[i] + 8))
            umax_tree(S, regs, 15)
            S.e(f"v_cmp_eq_u32_e64 {M1}, -1, v15\ns_cmp_eq_u64 {M1}, 0\ns_cbranch_scc1 K_{typ}_bok{i}")
            S.e(f"s_mov_b32 {t3}, 0\nK_{typ}_bre{i}:", opt=True)
            b_issue(i, opt=True)
            S.e("s_waitcnt vmcnt(0)", opt=True)
            umax_tree(S, regs, 15, opt=True)
            S.e(f"v_cmp_eq_u32_e64 {M1}, -1, v15\ns_add_u32 {t3}, {t3}, 1\ns_cmp_eq_u64 {M1}, 0\ns_cbranch_scc1 K_{typ}_bok{i}\ns_cmp_lt_u32 {t3}, 0x4000\ns_cbranch_scc1 K_{typ}_bre{i}", opt=True)
            S.e(f"K_{typ}_bok{i}:")
            S.append(pseudo("forget_opt"))
        for lq in range(4):
            ni, mi = lq >> 1, lq & 1
            S.e(f"{MF} {vr(AC2 + 16*lq, 16)}, {vr(ablk[i] + 4*ni)}, {vr(bblk[i] + 4*mi)}, {'0' if i == 0 else vr(AC2 + 16*lq, 16)}")
        if OPT.get('fw') == 'p2' and i in (0, 1, 2, 4, 6, 8, 10, 12, 14, 17): st(S, f"k{i}", fine=True)
        bfree.append(bblk[i])
        if i in (3, 4) or i >= 6: afree.append(ablk[i])
        else: bfree.append(ablk[i])
        if i in (7, 8, 9):
            for g in a_dma(i + 8, i - 7): S.extend(g)
        if i == 14 - OLAG - 2: S.e(f"buffer_load_dword v14, v9, {sq(S_WS)}, s{S_G} offen sc1")
        while nextb[0] < 18 and (nextb[0] != 14 or i >= 14 - OLAG) and b_load(): pass
        if i == 15:
            XRG = [b for b in bfree if b >= 88][0]; bfree.remove(XRG)
            S.e(f"buffer_load_dwordx4 {vr(XRG)}, v{V_O}, {sq(S_X)}, 0 offen")
    st(S, "mm")
    S.e(f"v_add_u32 v4, s{S_AREA}, v{V_L16}")
    def piece(pp): lq = (pp & 1) | (((pp >> 1) & 1) << 1); return AC2 + 16*lq + 8*(pp >> 2)
    for pp in range(1, 8):
        for j in range(2): S.e(f"ds_write_b128 v4, {vr(piece(pp) + 4*j)} offset:{(pp-1)*2048 + j*1024}")
    for pp in range(1, 8):
        S.e(f"s_xor_b32 {t0}, s3, {pp}\ns_mul_i32 {t0}, {t0}, {REG2}\nv_add_u32 v{16+pp}, {t0}, v{V_L16}")
    for j in range(4): S.e(f"v_lshlrev_b32 v{24+2*j}, 16, v{XRG+j}\nv_and_b32 v{25+2*j}, 0xffff0000, v{XRG+j}")
    for j in range(8): S.e(f"v_add_f32 v{AC2+j}, v{AC2+j}, v{24+j}")
    S.wait_lgkm(); S.e("s_barrier")
    R = 32
    for pp in range(1, 8):
        for j in range(2): S.e(f"ds_read_b128 {vr(R + 8*(pp-1) + 4*j)}, v{16+pp} offset:{(pp-1)*2048 + j*1024}")
    def padd(d, a, b):
        for j in range(0, 8, 2): pk(S, "add", d + j, [("p", a + j), ("p", b + j)])
    padd(AC2, AC2, R); padd(R + 8, R + 8, R + 16); padd(R + 24, R + 24, R + 32); padd(R + 40, R + 40, R + 48)
    padd(AC2, AC2, R + 8); padd(R + 24, R + 24, R + 40); padd(AC2, AC2, R + 24)
    if OPT.get("eps"):
        for j in range(8): S.e(f"v_mul_f32 v{AC2+j}, {f32(1.0 + float(OPT['eps']))}, v{AC2+j}")
    for j in range(4): S.e(f"v_cvt_pk_bf16_f32 v{24+j}, v{AC2+2*j}, v{AC2+2*j+1}")
    S.e(f"buffer_store_dwordx4 {vr(24)}, v{V_O}, {sq(S_OUT)}, 0 offen")
    if OPT.get("echo"):
        r = STAMPR[int(OPT["echo"])]
        S.e(f"""
        s_memrealtime s[88:89]
        s_waitcnt lgkmcnt(0)
        {f's_sub_u32 s90, s{r}, s92' if int(OPT["echo"]) < 11 else 's_sub_u32 s90, s88, s92'}
        s_add_u32 s90, s90, s88
        K_{typ}_echo:
        s_memrealtime s[88:89]
        s_waitcnt lgkmcnt(0)
        s_sub_u32 s91, s88, s90
        s_cmp_lt_i32 s91, 0
        s_cbranch_scc1 K_{typ}_echo
        """)
    S.e(f"K_{typ}_fin:")
    st(S, "end")
    st.flush(S, sq(S_WS), ST_OFF, 104, 12)
    S.e("s_endpgm")
    return S

def gen_all():
    pro = list(prologue()); ch = list(compute_head()); hh = list(helper_head())
    out = []
    def part(prefix, body, label):
        full = finalize(prefix + list(body))
        idx = next(i for i, x in enumerate(full) if x.text == label) if label else 0
        return full[idx:]
    hq = part(pro + hh, list(helper("q")) + list(hpost("q")), None)
    hk = part(pro + hh, list(helper("kv")) + list(hpost("kv")), "K_hkv:")
    def cut(p):
        n = 0
        for i, x in enumerate(p):
            if x.op == "s_barrier":
                n += 1
                if n == 1: return p[:i], p[i:]
    if OPT.get("layout", False):
        a, b = cut(hq); c, d = cut(hk)
        out += a + [I("s_branch K_hq_rest")] + c + [I("s_branch K_hkv_rest")]
        out += part(pro + ch, compute("q"), "K_comp:")
        out += part(pro + ch, compute("kv"), "K_kv:")
        out += [I("K_hq_rest:")] + b + [I("K_hkv_rest:")] + d
    else:
        out += hq + hk
        out += part(pro + ch, compute("q"), "K_comp:")
        out += part(pro + ch, compute("kv"), "K_kv:")
    out.append(I("K_END:")); out.append(I("s_endpgm"))
    return out

def build(path):
    k = gen_all()
    print("K", stats(k), file=sys.stderr)
    ref = open(f"cdna_kernels/{NAME}.s.ref").read().split("\n")
    hdr = [l for l in ref if l.startswith(";") and "@launch" not in l and "Override" not in l and "grid=ceil" not in l]
    txt = "\n".join(hdr) + "\n"
    txt += f"; @launch grid=(256,1,1) block=(768,1,1) lds=163840\n"
    txt += '.amdgcn_target "amdgcn-amd-amdhsa--gfx950"\n.text\n'
    txt += f".globl {K1}\n.p2align 8\n.type {K1},@function\n{K1}:\n" + render(k)
    txt += f""".section .rodata,"a"
.p2align 6
.amdhsa_kernel {K1}
  .amdhsa_next_free_vgpr {NVG1}
  .amdhsa_next_free_sgpr 102
  .amdhsa_accum_offset {NVG1}
  .amdhsa_group_segment_fixed_size 0
  .amdhsa_kernarg_size 88
  .amdhsa_user_sgpr_count 2
  .amdhsa_user_sgpr_kernarg_segment_ptr 1
  .amdhsa_system_sgpr_workgroup_id_x 1
.end_amdhsa_kernel
"""
    open(path, "w").write(txt)

if __name__ == "__main__":
    for a in sys.argv[2:]:
        k, v = a.split("=")
        OPT[k] = {"True": True, "False": False}.get(v, v.replace("_", " ") if k.endswith("flags") else v)
    build(sys.argv[1] if len(sys.argv) > 1 else f"cdna_kernels/{NAME}.s")
```

```python
import sys, os, struct
sys.path.insert(0, os.path.dirname(os.path.abspath(__file__)))
from dsl import *

NAME = "parallel_sum__linear_kernel_hedgehog__geglu_ffn__prompt"
K1 = NAME + "_kernel"
K2 = "k2_kernel"

HF_OFF = 0
KVP_OFF = 0xB00000
PHF_OFF = 0x1000000
WS_SIZE = 0x1400000
NKS = 144

OPT = dict(mimic_ffn=False, hf_flags=" sc1", k2d="8", prefetch=True)

def f32(x): return "0x%08x" % struct.unpack("<I", struct.pack("<f", x))[0]
def vr(a, n=4): return f"v[{a}:{a+n-1}]"
def ar(a, n=4): return f"a[{a}:{a+n-1}]"
MF = "v_mfma_f32_32x32x16_bf16"
MF16 = "v_mfma_f32_16x16x32_bf16"

def srd(S, d, lo, nbytes):
    S.e(f"s_mov_b32 s{d}, s{lo}\ns_mov_b32 s{d+1}, s{lo+1}\ns_mov_b32 s{d+2}, {nbytes}\ns_mov_b32 s{d+3}, 0x20000")

STAMP_REGS = [92, 94, 96, 98, 100, 28, 30, 4, 6, 8, 10, 12, 14, 16, 18, 20]
ST_OFF = 0xD00000
class Stamper:
    def __init__(self, regs=STAMP_REGS): self.n = 0; self.names = []; self.regs = regs
    def __call__(self, S, name, fine=False):
        if not OPT.get("stamps"): return
        if (OPT.get("stamps") == "fine") != fine and name != "end": return
        r = self.regs[self.n]; self.n += 1; self.names.append(name)
        S.e(f"{'s_memtime' if fine else 's_memrealtime'} s[{r}:{r+1}]")
    def flush(self, S, srd_s, base, vtmp, nwaves):
        if not OPT.get("stamps"): return
        S.e("s_waitcnt lgkmcnt(0)")
        for i in range(self.n): S.e(f"v_mov_b32 v{vtmp+i}, s{self.regs[i]}")
        S.e(f"s_mul_i32 s88, s2, {nwaves*64}\ns_lshl_b32 s89, s3, 6\ns_add_u32 s88, s88, s89\ns_add_u32 s88, s88, {base}\nv_mov_b32 v0, 0\ns_mov_b64 exec, 1")
        for i in range(0, 16, 4): S.e(f"buffer_store_dwordx4 v[{vtmp+i}:{vtmp+i+3}], v0, {srd_s}, s88 offen offset:{i*4}")
        if OPT.get("dbgst"):
            Stamper.uid = getattr(Stamper, "uid", 0) + 1
            S.e(f"s_lshl_b32 s88, s2, 4\ns_add_u32 s88, s88, s3\ns_cmp_lg_u32 s88, {OPT['dbgst']}\ns_cbranch_scc1 DBGST{Stamper.uid}")
            for i in range(1, self.n): S.e(f"v_sub_u32 v{vtmp+i}, v{vtmp+i}, v{vtmp}", opt=True)
            for i in range(0, 16, 4): S.e(f"buffer_store_dwordx4 v[{vtmp+i}:{vtmp+i+3}], v0, s[44:47], 0 offen offset:{i*4}", opt=True)
            S.e(f"DBGST{Stamper.uid}:")
        print("stamps", self.names, file=sys.stderr)

AREA = 12288
W0 = 98304; WS_ = 20480
MISC = 159744
WPHI = MISC
CNT = MISC + 2048
STATS_OFF = 0xC00000
REG2 = 18432
CSP = 147456; KVF = 147456 + 5120
PKO = 12288; VVO = 16384
NVG1 = 168

V_L = 1; V_L16 = 2; V_Z = 3
V_AX = 4; V_AT = 8
V_CSA = 13; V_PHA = 14; V_TMP = 15
V_RINV, V_SD = 16, 17
V_C0, V_C1, V_S2 = 18, 19, 20
BP = 24
XB = 28; AB = 36; ACC = 56; SC = 136
PT = 136; STV = 152
S_PF, S_X, S_OUT, S_WG, S_WU, S_WS, S_DBG, S_WQ, S_D1, S_WD, S_WO = 12, 24, 28, 32, 36, 40, 44, 48, 52, 56, 60
S_MT, S_C4, S_HL, S_HEAD, S_TYPE, S_XROW, S_AREA, S_D0L, S_H = 64, 65, 66, 67, 68, 69, 70, 71, 72
S_ODD = 73
S_T = 74
S_HH = 80
S_HFB = 82
S_U0, S_U12 = 83, 84
S_M = 85
S_SROW = 86
S_G = 87
M1 = "s[88:89]"; M2 = "s[90:91]"
HHM = f"s[{S_HH}:{S_HH+1}]"
t0, t1, t2, t3, t4, t5 = [f"s{S_T+i}" for i in range(6)]
tm = f"s{S_M}"
S_M64, S_N64, S_MT2 = 65, 66, 73
def sq(d): return f"s[{d}:{d+3}]"
STAMPR = [92, 94, 96, 100, 4, 6, 8, 10, 16, 18, 20, 22, 14]
B_OWNMT = f"s_lshl_b32 {t2}, s{S_MT}, 5"
B_MT2 = f"s_lshl_b32 {t2}, s{S_MT2}, 5"
B_KV = f"s_lshl_b32 {t2}, s{S_HEAD}, 1\ns_add_u32 {t2}, {t2}, 1"

def bf16r(S, d, src):
    S.e(f"v_cvt_pk_bf16_f32 v{d}, {src}, {src}\nv_lshlrev_b32 v{d}, 16, v{d}")

def xhalf(S, op, x, t):
    S.e(f"v_mov_b32 v{t}, v{x}\nv_permlane32_swap_b32 v{t}, v{x}\n{op} v{x}, v{x}, v{t}")

def wave_sum(S, x, t):
    for m in ("quad_perm:[1,0,3,2]", "quad_perm:[2,3,0,1]", "row_half_mirror", "row_mirror"):
        S.e(f"v_add_f32_dpp v{x}, v{x}, v{x} {m} row_mask:0xf bank_mask:0xf")
    S.e(f"v_mov_b32 v{t}, v{x}\nv_permlane16_swap_b32 v{t}, v{x}\nv_add_f32 v{x}, v{x}, v{t}")
    xhalf(S, "v_add_f32", x, t)


MB_OFF = 0xE00000; MB_STRIDE = 4096 + 256
TOK = CNT + 256
S_TOK = 98
def signal(tag, cnt_off, kind, lab, A, B, Cc, last):
    G = Stream()
    if tag: G.wait_vm(*tag.split(","))
    G.e(f"""
    v_mov_b32 v{A}, {CNT + cnt_off}
    v_mov_b32 v{B}, 1
    s_mov_b64 exec, 1
    ds_add_rtn_u32 v{Cc}, v{A}, v{B}
    s_mov_b64 exec, -1
    v_readfirstlane_b32 {t1}, v{Cc}
    s_cmp_lg_u32 {t1}, {last}
    s_cbranch_scc1 {lab}
    """)
    if kind == "h":
        G.e(f"""
        s_and_b32 {t1}, s{S_MT}, 3
        s_lshl_b32 {t1}, {t1}, 1
        s_lshr_b32 {t2}, s{S_MT}, 2
        s_add_u32 {t1}, {t1}, {t2}
        s_mul_i32 {t1}, {t1}, {MB_STRIDE}
        s_bfe_u32 {t2}, s{S_SROW}, 0x50003
        s_lshl_b32 {t2}, {t2}, 2
        s_add_u32 {t1}, {t1}, {t2}
        s_add_u32 {t1}, {t1}, {MB_OFF}
        v_mul_u32_u24 v{Cc}, {8*MB_STRIDE}, v{V_L}
        v_mov_b32 v{B}, s{S_TOK}
        s_mov_b64 exec, 0xfffffff
        """, opt=True)
    else:
        G.e(f"""
        s_lshr_b32 {t1}, s{S_HEAD}, 2
        s_lshl_b32 {t1}, {t1}, 1
        s_and_b32 {t2}, s{S_HEAD}, 3
        s_lshl_b32 {t2}, {t2}, 6
        s_add_u32 {t1}, {t1}, {t2}
        s_mul_i32 {t1}, {t1}, {MB_STRIDE}
        s_lshl_b32 {t2}, s{S_MT}, 2
        s_add_u32 {t1}, {t1}, {t2}
        s_add_u32 {t1}, {t1}, {MB_OFF + 128}
        v_and_b32 v{Cc}, 3, v{V_L}
        v_lshlrev_b32 v{Cc}, 3, v{Cc}
        v_lshrrev_b32 v{A}, 2, v{V_L}
        v_add_u32 v{Cc}, v{Cc}, v{A}
        v_mul_u32_u24 v{Cc}, {MB_STRIDE}, v{Cc}
        v_mov_b32 v{B}, s{S_TOK}
        s_mov_b64 exec, 0xff
        """, opt=True)
    G.e(f"buffer_store_dword v{B}, v{Cc}, {sq(S_WS)}, {t1} offen sc1", opt=True)
    G.e(f"s_mov_b64 exec, -1", opt=True)
    G.e(f"{lab}:")
    return G

def tok_issue(G, lab, A, D, who):
    G.e(f"v_and_b32 v{A}, 7, v{V_L}\nv_lshlrev_b32 v{A}, 5, v{A}\ns_cmp_lg_u32 s3, {who}\ns_cbranch_scc1 {lab}")
    G.e(f"buffer_load_dword v{D}, v{A}, {sq(S_DBG)}, 0 offen sc1", opt=True)
    G.e(f"{lab}:")
def tok_fetch(lab, need_all, A, D, who=0, issued=False):
    G = Stream()
    G.e(f"s_cmp_lg_u32 s3, {who}\ns_cbranch_scc1 {lab}_ok")
    chk = (f"v_cmp_eq_u32_e64 {M1}, 0, v{D}\ns_cmp_eq_u64 {M1}, 0" if need_all else f"s_and_b32 {t2}, s2, 7\nv_readlane_b32 {t1}, v{D}, {t2}\ns_cmp_lg_u32 {t1}, 0")
    G.e(f"""
    {'' if issued else f'v_and_b32 v{A}, 7, v{V_L}'}
    {'' if issued else f'v_lshlrev_b32 v{A}, 5, v{A}'}
    s_mov_b32 {t3}, 0
    {f's_branch {lab}_chk' if issued else ''}
    {lab}_loop:
    buffer_load_dword v{D}, v{A}, {sq(S_DBG)}, 0 offen sc1
    {lab}_chk:
    s_waitcnt vmcnt(0)
    s_add_u32 {t3}, {t3}, 1
    {chk}
    s_cbranch_scc1 {lab}_wr
    s_sleep 16
    s_cmp_lt_u32 {t3}, 0x4000
    s_cbranch_scc1 {lab}_loop
    {lab}_wr:
    v_lshrrev_b32 v{A}, 3, v{A}
    v_add_u32 v{A}, {TOK}, v{A}
    ds_write_b32 v{A}, v{D}
    """, opt=True)
    G.e(f"{lab}_ok:")
    G.append(pseudo("forget_opt"))
    return G
def tok_read(G, sdst, idx_expr, A):
    G.e(f"{idx_expr}\ns_lshl_b32 {t0}, {t0}, 2\ns_add_u32 {t0}, {t0}, {TOK}\nv_mov_b32 v{A}, {t0}\nds_read_b32 v{A}, v{A}\nv_readfirstlane_b32 {sdst}, v{A}")

def tile_addrs(S, typ, AT, T):
    R, C, HH, NH = T + 1, T + 2, T + 3, T + 4
    S.e(f"""
    v_lshrrev_b32 v{HH}, 5, v{V_L}
    v_bfe_u32 v{NH}, v{V_L}, 4, 1
    v_bfe_u32 v{R}, v{V_L}, 2, 2
    v_and_b32 v{C}, 3, v{V_L}
    v_lshl_add_u32 v{T+5}, v{HH}, 3, v{R}
    v_lshlrev_b32 v{T+6}, 6, v{T+5}
    v_lshl_add_u32 v{T+8}, v{NH}, 2, v{C}
    v_add_u32 v{T+8}, s{S_ODD}, v{T+8}
    v_and_b32 v{T+8}, 7, v{T+8}
    v_lshl_add_u32 v{T+8}, v{T+8}, 3, v{T+6}
    """)
    if typ == "q":
        S.e(f"""
        v_add_u32 v{AT}, {W0 + 16384}, v{T+8}
        v_lshrrev_b32 v{T+6}, 1, v{C}
        v_and_b32 v{T+7}, 2, v{R}
        v_xor_b32 v{T+6}, v{T+6}, v{T+7}
        v_lshl_add_u32 v{T+6}, v{NH}, 2, v{T+6}
        v_lshlrev_b32 v{T+7}, 7, v{T+5}
        v_lshl_add_u32 v{T+7}, v{T+6}, 4, v{T+7}
        v_and_b32 v{T+6}, 1, v{C}
        v_lshl_add_u32 v{T+7}, v{T+6}, 3, v{T+7}
        v_lshl_add_u32 v{T+7}, v{NH}, 13, v{T+7}
        v_add_u32 v{AT+1}, {W0}, v{T+7}
        v_xor_b32 v{AT+2}, 32, v{AT+1}
        v_xor_b32 v{AT+3}, 64, v{AT+1}
        v_xor_b32 v{AT+4}, 0x60, v{AT+1}
        """)
    else:
        S.e(f"""
        v_add_u32 v{AT}, {W0}, v{T+8}
        v_lshl_add_u32 v{T+7}, v{C}, 3, v{T+6}
        v_mul_u32_u24 v{T+8}, 1056, v{NH}
        v_add_u32 v{AT+1}, v{T+7}, v{T+8}
        v_add_u32 v{AT+1}, {W0 + 2048}, v{AT+1}
        v_xor_b32 v{AT+2}, 32, v{AT+1}
        v_lshlrev_b32 v{T+6}, 5, v{T+5}
        v_lshl_add_u32 v{T+6}, v{C}, 3, v{T+6}
        v_mul_u32_u24 v{T+7}, 2176, v{NH}
        v_add_u32 v{AT+3}, v{T+6}, v{T+7}
        v_add_u32 v{AT+3}, {W0 + 16384}, v{AT+3}
        v_xor_b32 v{AT+4}, 0x80, v{AT+3}
        """)

def tile_read_args(typ, t, s, e):
    if typ == "q":
        return (0, s*1024 + e*256) if t == 0 else (t, s*2048 + e*512)
    if t == 0: return (0, s*4096 + e*256)
    if t == 1: return (0, s*4096 + 1024 + e*256)
    if t == 2: return (3 + e, s*512)
    return (t - 2, s*4096 + e*256)

def pk(S, op, d, srcs, neg=None):
    ops = []; lo = []; hi = []
    for kind, r in srcs:
        if kind == "p": assert r % 2 == 0; ops.append(vr(r, 2)); lo.append(0); hi.append(1)
        else: ops.append(vr(r & ~1, 2)); lo.append(r & 1); hi.append(r & 1)
    assert d % 2 == 0
    txt = f"v_pk_{op}_f32 {vr(d, 2)}, " + ", ".join(ops)
    if any(lo): txt += " op_sel:[" + ",".join(map(str, lo)) + "]"
    if not all(hi): txt += " op_sel_hi:[" + ",".join(map(str, hi)) + "]"
    if neg: txt += f" neg_lo:[{','.join(map(str, neg))}] neg_hi:[{','.join(map(str, neg))}]"
    S.e(txt)
    S[-1].opsel = False

def scale16(S, a):
    for i in range(0, 16, 2): pk(S, "mul", a + i, [("p", a + i), ("b", V_RINV)])

def geglu(S, a, T, unit_sgpr, unit_add):
    R = range(0, 8, 2)
    for i in R: pk(S, "mul", T + i, [("p", a + i), ("p", a + i)])
    for i in R: pk(S, "fma", T + i, [("p", T + i), ("b", V_C1), ("b", V_C0)])
    for i in R: pk(S, "mul", T + i, [("p", T + i), ("p", a + i)])
    for i in range(8): S.e(f"v_exp_f32 v{T+i}, v{T+i}")
    for i in R: pk(S, "mul", a + i, [("p", a + i), ("p", a + 8 + i)])
    for i in R: pk(S, "fma", T + i, [("p", T + i), ("b", V_S2), ("b", V_S2)])
    for i in range(8): S.e(f"v_rcp_f32 v{T+i}, v{T+i}")
    for i in R: pk(S, "mul", a + i, [("p", a + i), ("p", T + i)])
    for i in range(4): S.e(f"v_cvt_pk_bf16_f32 v{T+8+i}, v{a+2*i}, v{a+2*i+1}")
    S.e(f"s_add_u32 s{S_G}, s{unit_sgpr}, {unit_add * 1024}")
    S.e(f"buffer_store_dwordx4 {vr(T+8)}, v{V_L16}, {sq(S_WS)}, s{S_G} offen{OPT['hf_flags']}", tag="hst")

def softmax14(S, P, E, T):
    N = 14; R = range(0, N, 2)
    for i in range(7): S.e(f"v_cvt_pk_bf16_f32 v{E+i}, v{P+2*i}, v{P+2*i+1}")
    for i in range(7): S.e(f"v_lshlrev_b32 v{P+2*i}, 16, v{E+i}\nv_and_b32 v{P+2*i+1}, 0xffff0000, v{E+i}")
    L = T + 4
    S.e(f"v_mov_b32 v{L}, {f32(1.4426950408889634)}")
    MX, MN = T, T + 1
    S.e(f"v_max3_f32 v{MX}, v{P}, v{P+1}, v{P+2}\nv_min3_f32 v{MN}, v{P}, v{P+1}, v{P+2}")
    for i in range(3, 13, 2):
        S.e(f"v_max3_f32 v{MX}, v{MX}, v{P+i}, v{P+i+1}\nv_min3_f32 v{MN}, v{MN}, v{P+i}, v{P+i+1}")
    S.e(f"v_max_f32 v{MX}, v{MX}, v{P+13}\nv_min_f32 v{MN}, v{MN}, v{P+13}")
    S.e(f"v_mov_b32 v{T+2}, v{MX}\nv_mov_b32 v{T+3}, v{MN}\nv_permlane32_swap_b32 v{T+2}, v{MX}\nv_permlane32_swap_b32 v{T+3}, v{MN}")
    S.e(f"v_max_f32 v{MX}, v{MX}, v{T+2}\nv_min_f32 v{MN}, v{MN}, v{T+3}")
    pk(S, "mul", T, [("p", T), ("b", L)])
    for i in R: pk(S, "fma", E + i, [("p", P + i), ("b", L), ("b", MX)], neg=[0, 0, 1])
    for i in R: pk(S, "fma", P + i, [("p", P + i), ("b", L), ("b", MN)], neg=[1, 0, 0])
    for i in range(N): S.e(f"v_exp_f32 v{E+i}, v{E+i}")
    for i in range(N): S.e(f"v_exp_f32 v{P+i}, v{P+i}")
    pk(S, "add", T, [("p", E), ("p", E + 2)]); pk(S, "add", T + 2, [("p", P), ("p", P + 2)])
    for i in range(4, N, 2):
        pk(S, "add", T, [("p", T), ("p", E + i)]); pk(S, "add", T + 2, [("p", T + 2), ("p", P + i)])
    SP, SM = T, T + 1
    S.e(f"v_add_f32 v{SP}, v{T}, v{T+1}\nv_add_f32 v{SM}, v{T+2}, v{T+3}")
    S.e(f"v_mov_b32 v{T+2}, v{SP}\nv_mov_b32 v{T+3}, v{SM}\nv_permlane32_swap_b32 v{T+2}, v{SP}\nv_permlane32_swap_b32 v{T+3}, v{SM}")
    pk(S, "add", T, [("p", T), ("p", T + 2)])
    S.e(f"v_rcp_f32 v{SP}, v{SP}\nv_rcp_f32 v{SM}, v{SM}")
    for i in R: pk(S, "mul", E + i, [("p", E + i), ("b", SP)])
    for i in R: pk(S, "mul", P + i, [("p", P + i), ("b", SM)])
    for i in range(7): S.e(f"v_cvt_pk_bf16_f32 v{E+i}, v{E+2*i}, v{E+2*i+1}")
    for i in range(7): S.e(f"v_cvt_pk_bf16_f32 v{E+8+i}, v{P+2*i}, v{P+2*i+1}")
    S.e(f"v_mov_b32 v{E+7}, 0\nv_mov_b32 v{E+15}, 0")

def stats_consts(S):
    S.e(f"""
    v_mov_b32 v{BP}, v{V_RINV}
    v_mov_b32 v{BP+1}, v{V_RINV}
    v_mov_b32 v{BP+2}, v{V_RINV}
    v_mov_b32 v{BP+3}, v{V_RINV}
    v_rcp_f32 v{V_RINV}, v{V_SD}
    v_mul_f32 v{V_S2}, v{V_SD}, v{V_SD}
    v_mul_f32 v{V_C0}, {f32(-2.302208198)}, v{V_RINV}
    v_mul_f32 v{V_C1}, v{V_RINV}, v{V_RINV}
    v_mul_f32 v{V_C1}, v{V_C1}, v{V_C0}
    v_mul_f32 v{V_C1}, {f32(0.044715)}, v{V_C1}
    """)


def tagpoll(G, lab, A, D, soff, opt=False, first_issued=False, sleep=None):
    if first_issued:
        G.e(f"v_cmp_eq_u32_e64 {M1}, -1, v{D}\ns_mov_b32 {t3}, 0\ns_cmp_eq_u64 {M1}, 0\ns_cbranch_scc1 {lab}_ok")
        opt = True
    else:
        G.e(f"s_mov_b32 {t3}, 0")
    G.e(f"""
    {lab}_loop:
    buffer_load_dword v{D}, v{A}, {sq(S_WS)}, {soff} offen sc1
    s_waitcnt vmcnt(0)
    v_cmp_eq_u32_e64 {M1}, -1, v{D}
    s_add_u32 {t3}, {t3}, 1
    s_cmp_eq_u64 {M1}, 0
    s_cbranch_scc1 {lab}_ok
    s_sleep {sleep if sleep else OPT.get('sleep', 4)}
    s_cmp_lt_u32 {t3}, 0x8000
    s_cbranch_scc1 {lab}_loop
    """, opt=opt)
    G.e(f"{lab}_ok:")

def umax_tree(G, regs, T, opt=False):
    G.e(f"v_max3_u32 v{T}, v{regs[0]}, v{regs[1]}, v{regs[2]}", opt=opt)
    i = 3
    while i + 1 < len(regs):
        G.e(f"v_max3_u32 v{T}, v{T}, v{regs[i]}, v{regs[i+1]}", opt=opt); i += 2
    if i < len(regs): G.e(f"v_max_u32 v{T}, v{T}, v{regs[i]}", opt=opt)

def prologue():
    S = Stream()
    S.e(f"""
    s_cmp_ge_u32 s2, 256
    s_cbranch_scc1 K_END
    {'s_memrealtime s[92:93]' if OPT.get('stamps') else ''}
    s_load_dwordx16 s[4:19], s[0:1], 0
    s_load_dwordx4 s[20:23], s[0:1], 72
    s_load_dwordx2 s[{S_OUT}:{S_OUT+1}], s[0:1], 64
    v_lshrrev_b32 v{PT}, 6, v0
    v_and_b32 v{V_L}, 63, v0
    v_readfirstlane_b32 s3, v{PT}
    v_lshlrev_b32 v{V_L16}, 4, v{V_L}
    v_mov_b32 v{V_Z}, 0
    s_and_b32 {t0}, s2, 7
    s_lshr_b32 {t1}, s2, 3
    s_and_b32 s{S_MT}, {t0}, 1
    s_lshl_b32 s{S_MT}, s{S_MT}, 2
    s_and_b32 {t2}, {t1}, 3
    s_add_u32 s{S_MT}, s{S_MT}, {t2}
    s_lshr_b32 s{S_C4}, {t0}, 1
    s_lshr_b32 {t1}, {t1}, 2
    s_and_b32 s{S_TYPE}, {t1}, 1
    s_lshr_b32 s{S_HL}, {t1}, 1
    s_lshl_b32 s{S_HEAD}, s{S_C4}, 2
    s_add_u32 s{S_HEAD}, s{S_HEAD}, s{S_HL}
    s_and_b32 s{S_ODD}, s{S_HEAD}, 1
    s_lshl_b32 {t2}, s{S_MT}, 2
    s_add_u32 {t2}, {t2}, s{S_C4}
    s_lshl_b32 {t2}, {t2}, 3
    s_add_u32 {t2}, {t2}, {t1}
    s_lshl_b32 {t2}, {t2}, 3
    s_and_b32 {t3}, s3, 7
    s_add_u32 s{S_SROW}, {t2}, {t3}
    s_mov_b32 s{S_HH}, 0
    s_mov_b32 s{S_HH+1}, -1
    s_mul_i32 {t0}, s{S_C4}, 896
    s_lshl_b32 {tm}, s{S_HL}, 7
    s_add_u32 {t3}, {t0}, {tm}
    s_add_u32 {t0}, {t0}, 512
    s_mul_i32 {t1}, s{S_HL}, 3
    s_and_b32 {t2}, s{S_HL}, 1
    s_add_u32 {t5}, {t1}, {t2}
    s_lshl_b32 {t2}, {t2}, 1
    s_add_u32 {t1}, {t1}, 2
    s_sub_u32 {t1}, {t1}, {t2}
    s_lshl_b32 {t1}, {t1}, 5
    s_add_u32 {t1}, {t1}, {t0}
    s_lshl_b32 {t5}, {t5}, 5
    s_add_u32 {t0}, {t0}, {t5}
    s_cmp_eq_u32 s{S_TYPE}, 1
    s_cselect_b32 s{S_U0}, {t1}, {t3}
    s_cselect_b32 s{S_U12}, {t0}, {t3}
    s_cmp_lt_u32 s3, 8
    s_cbranch_scc1 K_comp
    """)
    return S

def p2_ids(S):
    S.e(f"""
    s_and_b32 {t0}, s2, 7
    s_lshr_b32 {t1}, s2, 3
    s_and_b32 {t2}, {t0}, 1
    s_lshl_b32 {t2}, {t2}, 2
    s_lshr_b32 {t0}, {t0}, 1
    s_add_u32 s{S_MT2}, {t0}, {t2}
    s_lshl_b32 s{S_M64}, s{S_MT2}, 2
    s_and_b32 {t2}, {t1}, 3
    s_add_u32 s{S_M64}, s{S_M64}, {t2}
    s_lshr_b32 s{S_N64}, {t1}, 2
    """)
def p2_a_voffsets(S, VD, VO, VOM, T):
    S.e(f"""
    v_lshrrev_b32 v{T}, 3, v{V_L}
    v_and_b32 v{T+1}, 7, v{V_L}
    v_bfe_u32 v{T+2}, v{V_L}, 4, 1
    v_lshlrev_b32 v{T+2}, 2, v{T+2}
    v_xor_b32 v{T+1}, v{T+1}, v{T+2}
    s_lshl_b32 {t0}, s{S_N64}, 7
    v_lshlrev_b32 v{T+1}, 4, v{T+1}
    v_add_u32 v{T+1}, {t0}, v{T+1}
    v_mul_u32_u24 v{VD}, 896, v{T}
    v_add_u32 v{VD}, v{VD}, v{T+1}
    """)
    if VO is not None:
        S.e(f"""
        v_lshrrev_b32 v{T+2}, 2, v{T}
        v_and_b32 v{T+3}, 3, v{T}
        v_mad_u32_u24 v{T+2}, v{T+2}, 14, v{T+3}
        v_mul_u32_u24 v{VO}, 896, v{T+2}
        v_add_u32 v{VO}, v{VO}, v{T+1}
        v_cmp_lt_u32_e64 {M1}, 1, v{T+3}
        v_mov_b32 v{T+2}, 0x7f000000
        v_cndmask_b32_e64 v{VOM}, v{VO}, v{T+2}, {M1}
        """)

def hsync(S, lab, cnt_off, target, A, B):
    S.wait_lgkm()
    S.e(f"""
    v_mov_b32 v{A}, {CNT + cnt_off}
    v_mov_b32 v{B}, 1
    s_mov_b64 exec, 1
    ds_add_u32 v{A}, v{B}
    s_mov_b64 exec, -1
    {lab}:
    ds_read_b32 v{B}, v{A}
    s_waitcnt lgkmcnt(0)
    v_readfirstlane_b32 {t1}, v{B}
    s_cmp_lt_u32 {t1}, {target}
    s_cbranch_scc1 {lab}
    """)

def helper_head():
    S = Stream(); T = PT
    S.e("K_helper:")
    S.e(f"s_setprio {OPT.get('hprio', 3)}")
    S.e(f"""
    s_sub_u32 s{S_H}, s3, 8
    s_lshl_b32 {t0}, s{S_MT}, 2
    s_add_u32 {t0}, {t0}, s{S_H}
    s_mul_i32 s{S_XROW}, {t0}, {64*896}
    s_mul_i32 s{S_AREA}, s{S_H}, {2*AREA}
    v_lshrrev_b32 v{T+7}, 3, v{V_L}
    v_mul_u32_u24 v{T}, 896, v{T+7}
    v_and_b32 v{T+8}, 7, v{V_L}
    v_lshrrev_b32 v{T+2}, 4, v{V_L}
    v_xor_b32 v{T+1}, v{T+8}, v{T+2}
    v_lshl_add_u32 v4, v{T+1}, 4, v{T}
    v_xor_b32 v5, 64, v4
    s_mul_i32 {t1}, s{S_HEAD}, 56
    s_lshl_b32 {t2}, s{S_ODD}, 3
    s_sub_u32 {t1}, {t1}, {t2}
    v_lshrrev_b32 v{T}, 2, v{V_L}
    v_and_b32 v{T+1}, 3, v{V_L}
    v_mul_u32_u24 v{T+4}, 2688, v{T}
    v_lshl_add_u32 v{T+4}, v{T+1}, 4, v{T+4}
    s_mul_i32 {tm}, s{S_H}, {16*2688}
    s_add_u32 {t1}, {t1}, {tm}
    v_add_u32 v6, {t1}, v{T+4}
    s_waitcnt lgkmcnt(0)
    """)
    srd(S, S_X, 4, 2048 * 896); srd(S, S_WQ, 6, 448 * 2688); srd(S, S_WG, 14, 448 * 3584); srd(S, S_WU, 16, 448 * 3584)
    S.e(f"s_cmp_eq_u32 s{S_TYPE}, 1\ns_cbranch_scc1 K_hkv")
    return S

def helper(typ):
    q = typ == "q"
    S = Stream(); T = PT
    S.e(f"K_h{typ}:")
    global HST
    HST = Stamper(STAMPR); HST.n = 1; HST.names = ["start"]
    V_XE, V_XO, V_DQ, V_DG, V_DU, V_DS = 4, 5, 6, 7, 8, 9
    V_AC = 10; V_PF = 16
    CA = 18; CU = 23; CT = 34
    if q:
        S.e(f"""
        v_bfe_u32 v{T+2}, v{V_L}, 4, 1
        v_lshlrev_b32 v{T+2}, 1, v{T+2}
        v_xor_b32 v{T+2}, v{T+2}, v{T+8}
        v_mul_u32_u24 v{T+3}, 3584, v{T+7}
        v_lshl_add_u32 v{T+2}, v{T+2}, 4, v{T+3}
        s_mul_i32 {tm}, s{S_H}, {16*3584}
        s_add_u32 {tm}, {tm}, s{S_U0}
        v_add_u32 v{V_DG}, {tm}, v{T+2}
        v_xor_b32 v{V_DU}, 64, v{V_DG}
        """)
    else:
        S.e(f"""
        v_mul_u32_u24 v{T+3}, 3584, v{T}
        v_lshl_add_u32 v{V_DG}, v{T+1}, 4, v{T+3}
        s_mul_i32 {tm}, s{S_H}, {16*3584}
        s_add_u32 {tm}, {tm}, s{S_U12}
        v_add_u32 v{V_DG}, {tm}, v{V_DG}
        v_xor_b32 v{V_DU}, 32, v{V_DG}
        s_lshr_b32 {t2}, s{S_H}, 1
        s_cmp_eq_u32 {t2}, 0
        s_cselect_b32 s{S_D1}, s14, s16
        s_cselect_b32 s{S_D1+1}, s15, s17
        s_mov_b32 s{S_D1+2}, {448*3584}
        s_mov_b32 s{S_D1+3}, 0x20000
        s_lshl_b32 {t2}, {t2}, 2
        v_lshrrev_b32 v{T+5}, 1, v{V_L}
        v_xor_b32 v{T+5}, {t2}, v{T+5}
        v_mul_u32_u24 v{T+5}, 3584, v{T+5}
        v_and_b32 v{T+6}, 1, v{V_L}
        v_lshl_add_u32 v{T+5}, v{T+6}, 4, v{T+5}
        s_and_b32 {t2}, s{S_H}, 1
        s_mul_i32 {t2}, {t2}, {32*3584}
        s_add_u32 {t2}, {t2}, s{S_U0}
        v_add_u32 v{V_DS}, {t2}, v{T+5}
        """)
    S.e(f"s_lshl_b32 s{S_D0L}, s{S_H}, 10\ns_add_u32 s{S_D0L}, s{S_D0L}, {W0}\ns_lshl_b32 s{S_G}, s{S_H}, {11 if q else 12}\ns_add_u32 s{S_G}, s{S_G}, {W0}")
    def dma(c, lo=0, hi=13):
        sb = (c % 3) * WS_
        L = []
        def one(m0expr, soff, v, srdreg): L.append((m0expr, soff, v, srdreg))
        if q:
            one(f"s{S_D0L}, {sb + 16384}", f"s_mov_b32 {tm}, {c*172032}", V_DQ, S_WQ)
            for rg in range(2):
                one(f"s{S_G}, {sb + rg*1024}", f"s_mov_b32 {tm}, {c*229376 + rg*8*3584}", V_DG, S_WG)
                one(f"s{S_G}, {sb + 8192 + rg*1024}", f"s_mov_b32 {tm}, {c*229376 + rg*8*3584}", V_DU, S_WU)
        else:
            one(f"s{S_G}, {sb}", f"s_mov_b32 {tm}, {c*172032 + 896}", V_DQ, S_WQ)
            one(f"s{S_G}, {sb + 1024}", f"s_mov_b32 {tm}, {c*172032 + 1792}", V_DQ, S_WQ)
            one(f"s{S_G}, {sb + 2048}", f"s_mov_b32 {tm}, {c*229376}", V_DG, S_WG)
            one(f"s{S_G}, {sb + 3072}", f"s_mov_b32 {tm}, {c*229376}", V_DU, S_WU)
            one(f"s{S_D0L}, {sb + 16384}", f"s_mov_b32 {tm}, {c*229376}", V_DS, S_D1)
        for i in range(8):
            wv, qq = i >> 2, i & 3
            one(f"s{S_AREA}, {wv*AREA + (c % 3)*4096 + qq*1024}", f"s_add_u32 {tm}, s{S_XROW}, {(wv*32 + qq*8)*896 + c*128}", V_XO if qq & 1 else V_XE, S_X)
        if OPT.get('xfirst') and c == 0: L = L[5:] + L[:5]
        for (m0expr, soff, v, srdreg) in L[lo:hi]:
            S.e(f"s_add_u32 m0, {m0expr}\n{soff}")
            fl = OPT.get("x_flags", "") if srdreg == S_X else OPT.get("w_flags", "")
            S.e(f"buffer_load_dwordx4 v{v}, {sq(srdreg)}, {tm} offen{fl} lds", tag=f"d{c}")
    plan = [int(x) for x in OPT.get("dplan" + typ, OPT.get("dplan", "16,14,14,16,16,16")).split(",")]
    pos = [0]
    def issue(n, limit_chunk):
        while n > 0 and pos[0] < 91 and pos[0] // 13 <= limit_chunk:
            c, i = divmod(pos[0], 13)
            dma(c, i, i + 1); pos[0] += 1; n -= 1
    issue(13, 2)
    def setup2():
        tile_addrs(S, typ, V_AC, 60)
        for t in range(5):
            stride = (1024 if t == 0 else 2048) if q else (512 if t >= 3 else 4096)
            S.e(f"s_mul_i32 {t0}, s{S_H}, {stride}\nv_add_u32 v{V_AC+t}, {t0}, v{V_AC+t}")
        for i in range(5): S.e(f"v_mov_b32 v{CA+i}, 0")
    if not OPT.get('late2'): setup2()
    issue(plan[0] - 13, 2)
    def colsum_rd(c):
        for t in range(5):
            for e in range(2):
                a, imm = tile_read_args(typ, t, 0, e)
                S.e(f"ds_read_b64_tr_b16 {vr(CT + 20*(c % 5) + 4*t + 2*e, 2)}, v{V_AC+a} offset:{(c % 3)*WS_ + imm}")
    hb = [0]
    CM = OPT.get("csmode", "mfma")
    if CM == "mfma":
        for i in range(20): S.e(f"v_mov_b32 v{140+i}, 0")
        S.e("v_mov_b32 v134, 0x3f803f80\nv_mov_b32 v135, 0x3f803f80")
    def colsum_add(nhalf):
        if CM != "valu":
            for _ in range(nhalf):
                c, hf = hb[0] >> 1, hb[0] & 1; hb[0] += 1
                for t in range(5):
                    src = CT + 20*(c % 5) + 4*t + 2*hf
                    if CM == "mfma": S.e(f"v_mfma_f32_4x4x4_16b_bf16 {vr(140+4*t)}, v[134:135], {vr(src, 2)}, {vr(140+4*t)}")
                    else: S.e(f"v_dot2c_f32_bf16 v{CA+t}, 0x3f803f80, v{src}")
                if CM == "dot":
                    for t in range(5): S.e(f"v_dot2c_f32_bf16 v{CA+t}, 0x3f803f80, v{CT + 20*(c % 5) + 4*t + 2*hf + 1}")
            return
        for _ in range(nhalf):
            c, hf = hb[0] >> 1, hb[0] & 1; hb[0] += 1
            for j in (2*hf, 2*hf + 1):
                src = CT + 20*(c % 5) + j
                for t in range(5): S.e(f"v_lshlrev_b32 v{CU+t}, 16, v{src + 4*t}")
                for t in range(5): S.e(f"v_and_b32 v{CU+5+t}, 0xffff0000, v{src + 4*t}")
                for t in range(5): S.e(f"v_add_f32 v{CA+t}, v{CA+t}, v{CU+t}")
                for t in range(5): S.e(f"v_add_f32 v{CA+t}, v{CA+t}, v{CU+5+t}")
    S.wait_vm("d0"); S.e("s_barrier")
    if OPT.get('late2'):
        issue(6, 2); setup2(); colsum_rd(0); issue(plan[1] - 6, 2)
    else:
        colsum_rd(0); issue(plan[1], 2)
    S.wait_lgkm(); S.wait_vm("d1"); S.e("s_barrier")
    colsum_rd(1); issue(plan[2], 3)
    srd(S, S_WS, 22, WS_SIZE); srd(S, S_DBG, 20, 256); srd(S, S_WO, 8, 16 * 1568); srd(S, S_WD, 18, 1792 * 896)
    sched = dict(zip(range(2, 7), [int(x) for x in OPT.get('sched', '4,2,2,2,4').split(',')]))
    for c in range(2, 7):
        F = (lambda n: HST(S, n, fine=True)) if (c in (2, 3) and OPT.get('hfine')) else (lambda n: None)
        if c == 6: S.extend(tok_fetch(f"K_h{typ}_tk2", True, 16, 17, who=8))
        F("pre")
        S.wait_lgkm(); S.wait_vm(f"d{c}")
        F("landed")
        S.e("s_barrier")
        F("bar")
        issue(plan[c + 1] if c + 1 < len(plan) else 99, c + 2)
        assert pos[0] >= min(91, 13 * (c + 2)), (c, pos[0])
        F("dma")
        if c == 2:
            for i in range(2):
                S.e(f"""
                v_lshrrev_b32 v{T+24}, 4, v{V_L}
                s_lshl_b32 {t0}, s{S_H}, 3
                s_add_u32 {t0}, {t0}, {4*i}
                v_add_u32 v{T+24}, {t0}, v{T+24}
                v_bfe_u32 v{T+25}, v{V_L}, 3, 1
                v_and_b32 v{T+26}, 7, v{V_L}
                v_mad_u32_u24 v{T+25}, v{T+25}, 7, v{T+26}
                v_mad_u32_u24 v{T+25}, v{T+24}, 14, v{T+25}
                v_lshlrev_b32 v{T+25}, 2, v{T+25}
                v_cmp_eq_u32_e64 {M1}, 7, v{T+26}
                s_cmp_eq_u32 {t0}, 28
                s_cselect_b64 {M1}, -1, {M1}
                v_mov_b32 v{T+26}, 0x7fffff00
                v_cndmask_b32_e64 v{T+25}, v{T+25}, v{T+26}, {M1}
                s_mul_i32 {t1}, s{S_HEAD}, 1568
                s_lshl_b32 {t0}, {t0}, 6
                s_add_u32 m0, {t0}, {WPHI}
                """)
                S.e(f"buffer_load_dword v{T+25}, {sq(S_WO)}, {t1} offen lds", tag="phi")
        if c == int(OPT.get("pfc", 6)) and OPT["prefetch"]:
            S.e(f"""
            s_lshr_b32 {t0}, s2, 3
            s_lshl_b32 {t0}, {t0}, 2
            s_add_u32 {t0}, {t0}, s{S_H}
            s_lshl_b32 {t0}, {t0}, 14
            s_mov_b32 {t3}, {1792*896}
            s_cmp_lt_u32 {t0}, {t3}
            s_cselect_b32 s{S_PF}, s18, s10
            s_cselect_b32 s{S_PF+1}, s19, s11
            s_cselect_b32 s{S_PF+2}, {t3}, {448*896}
            s_mov_b32 s{S_PF+3}, 0x20000
            s_cselect_b32 {t3}, 0, {t3}
            s_sub_u32 {t0}, {t0}, {t3}
            v_lshlrev_b32 v{V_PF}, 7, v{V_L}
            s_add_u32 {t1}, {t0}, 0x2000
            """)
            S.e(f"buffer_load_dword v{T+27}, v{V_PF}, {sq(S_PF)}, {t0} offen\nbuffer_load_dword v{T+28}, v{V_PF}, {sq(S_PF)}, {t1} offen", tag="pf")
        if c >= 5:
            colsum_rd(c); colsum_add(sched[c])
        else:
            colsum_rd(c); colsum_add(sched[c])
    assert hb[0] == 14
    if CM == "mfma":
        for t in range(5): S.e(f"v_mov_b32 v{CA+t}, v{140+4*t}")
    S.e(f"s_lshl_b32 {t0}, s{S_H}, 2\ns_add_u32 {t0}, {t0}, {CSP}\nv_add_u32 v{T}, {t0}, v{V_L16}")
    for t in range(5): S.e(f"v_cvt_pk_bf16_f32 v{T+1+t}, v{CA+t}, v{CA+t}")
    for t in range(5): S.e(f"v_lshlrev_b32 v{T+1+t}, 16, v{T+1+t}")
    for t in range(5): S.e(f"v_sub_f32 v{T+1+t}, v{CA+t}, v{T+1+t}")
    for t in range(5): S.e(f"v_cvt_pk_bf16_f32 v{T+1+t}, v{CA+t}, v{T+1+t}")
    for t in range(5): S.e(f"ds_write_b32 v{T}, v{T+1+t} offset:{t*1024}")
    S.wait_vm("phi"); S.wait_lgkm()
    return S

def hpost(typ):
    q = typ == "q"
    S = Stream(); T = PT
    S.e(f"K_hpost_{typ}:")
    st = HST
    V_WD = 18
    p2_ids(S)
    p2_a_voffsets(S, V_WD, None, None, 60)
    S.e(f"""
    s_mul_i32 s{S_AREA}, s{S_H}, {2*REG2}
    s_and_b32 {t0}, s{S_H}, 1
    s_lshl_b32 {t0}, {t0}, 2
    s_lshr_b32 {t1}, s{S_H}, 1
    s_add_u32 {t0}, {t0}, {t1}
    s_mul_i32 s{S_XROW}, {t0}, {14*16*896}
    s_cmp_ge_u32 s2, 224
    s_cselect_b32 {t0}, 0x40000000, 0
    s_add_u32 s{S_XROW}, s{S_XROW}, {t0}
    """)
    def B1():
        S.e(f"s_barrier\ns_setprio {OPT.get('hprio2', 0)}")
        st(S, "B1")
    def adma(lo, hi):
        for i in range(lo, hi):
            for wv in range(2):
                for u in range(2):
                    S.e(f"s_add_u32 m0, s{S_AREA}, {wv*REG2 + i*2048 + u*1024}\ns_add_u32 {tm}, s{S_XROW}, {((wv*28 + i)*16 + 8*u)*896}")
                    S.e(f"buffer_load_dwordx4 v{V_WD}, {sq(S_WD)}, {tm} offen lds", tag="a1")
    if q:
        KO = 4; U = 5; PH = 100
        S.e(f"""
        s_lshl_b32 {t0}, s{S_H}, 11
        v_add_u32 v{KO}, {t0}, v{V_L16}
        v_and_b32 v{U+3}, 7, v{V_L}
        v_lshlrev_b32 v{U+3}, 13, v{U+3}
        v_add_u32 v{U+3}, 0x1e80, v{U+3}
        s_lshl_b32 {t0}, s{S_H}, 10
        s_add_u32 {t0}, {t0}, {KVF}
        v_add_u32 v{U}, {t0}, v{V_L16}
        v_add_u32 v{U+1}, {KVF}, v{V_L16}
        v_add_u32 v{U+2}, s{S_AREA}, v{V_L16}
        s_lshl_b32 {t0}, s{S_MT}, 2
        s_add_u32 {t0}, {t0}, s{S_H}
        s_mul_i32 s{S_HFB}, {t0}, {2*NKS*1024}
        s_lshl_b32 {t0}, s{S_HEAD}, 11
        s_add_u32 s{S_HFB}, s{S_HFB}, {t0}
        s_add_u32 s{S_HFB}, s{S_HFB}, {112*1024}
        s_lshl_b32 s{S_G}, s{S_HEAD}, 16
        s_add_u32 s{S_G}, s{S_G}, {KVP_OFF}
        """)
        B1(); adma(0, 6)
        S.wait_vm("a1")
        S.e(f"v_mov_b32 v12, {CNT + 20}\nv_mov_b32 v13, 1\ns_mov_b64 exec, 1\nds_add_u32 v12, v13\ns_mov_b64 exec, -1")
        S.e("s_barrier")
        st(S, "B2")
        for wv in range(2):
            for k in range(4): S.e(f"ds_read_b128 {vr(PH + 16*wv + 4*k)}, v{U+2} offset:{wv*REG2 + PKO + k*1024}")
        S.wait_lgkm()
        S.e(f"v_mov_b32 v12, {CNT + 12}\nv_mov_b32 v13, 1\ns_mov_b64 exec, 1\nds_add_u32 v12, v13\ns_mov_b64 exec, -1\ns_setprio 3")
        S.e(f"v_mov_b32 v14, {CNT + 16}\ns_cmp_lg_u32 s3, 8\ns_cbranch_scc1 K_hq_spin")
        G = Stream()
        G.e(f"""
        v_and_b32 v16, 7, v{V_L}
        v_lshrrev_b32 v17, 2, v16
        s_lshr_b32 {t0}, s{S_HEAD}, 2
        s_lshl_b32 {t0}, {t0}, 3
        s_add_u32 {t0}, {t0}, {TOK}
        v_lshlrev_b32 v17, 2, v17
        v_add_u32 v17, {t0}, v17
        ds_read_b32 v17, v17
        v_lshlrev_b32 v16, 2, v16
        s_mul_i32 {t2}, s2, {MB_STRIDE}
        s_add_u32 {t2}, {t2}, {MB_OFF + 128}
        s_mov_b32 {t3}, 0
        K_hq_kp:
        buffer_load_dword v{V_TMP}, v16, {sq(S_WS)}, {t2} offen sc1
        s_waitcnt vmcnt(0) lgkmcnt(0)
        v_cmp_ne_u32_e64 {M1}, v17, v{V_TMP}
        s_add_u32 {t3}, {t3}, 1
        s_cmp_eq_u64 {M1}, 0
        s_cbranch_scc1 K_hq_kpok
        s_sleep 8
        s_cmp_lt_u32 {t3}, 0x8000
        s_cbranch_scc1 K_hq_kp
        K_hq_kpok:
        """)
        tagpoll(G, "K_hq_pkv", U + 3, V_TMP, f"s{S_G}", opt=True, sleep=int(OPT.get("sleepkv", 8)))
        for x in G: x.opt = True
        S.extend(G)
        S.e(f"ds_write_b32 v14, v13\ns_branch K_hq_go", opt=True)
        S.e(f"""
        K_hq_spin:
        s_sleep 2
        ds_read_b32 v13, v14
        s_waitcnt lgkmcnt(0)
        v_readfirstlane_b32 {t1}, v13
        s_cmp_eq_u32 {t1}, 0
        s_cbranch_scc1 K_hq_spin
        """, opt=True)
        S.e("K_hq_go:")
        st(S, "kvrdy")
        KL = 20
        S.e(f"s_mov_b32 {t4}, 0\nK_hq_gather:\ns_mov_b32 {t0}, s{S_G}")
        for i in range(8):
            for e in range(2):
                S.e(f"buffer_load_dwordx4 {vr(KL + 8*i + 4*e)}, v{KO}, {sq(S_WS)}, {t0} offen offset:{e*1024} sc1")
            if i < 7: S.e(f"s_add_u32 {t0}, {t0}, 8192")
        umax_tree(S, list(range(KL, KL + 64)), V_TMP)
        S.e(f"""
        v_cmp_eq_u32_e64 {M1}, -1, v{V_TMP}
        s_add_u32 {t4}, {t4}, 1
        s_cmp_eq_u64 {M1}, 0
        s_cbranch_scc1 K_hq_gok
        s_cmp_lt_u32 {t4}, 0x1000
        s_cbranch_scc1 K_hq_gather
        K_hq_gok:
        """)
        for step in (1, 2, 4):
            for i in range(0, 8, 2*step):
                for j in range(0, 8, 2): pk(S, "add", KL+8*i+j, [("p", KL+8*i+j), ("p", KL+8*(i+step)+j)])
        for j in range(4): S.e(f"v_cvt_pk_bf16_f32 v{KL+8+j}, v{KL+2*j}, v{KL+2*j+1}")
        S.e(f"ds_write_b128 v{U}, {vr(KL+8)}")
        hsync(S, "K_hq_sync", 0, 4, 12, 13)
        st(S, "kvf")
        KF = 20; OO = [36, 52]; G2 = 68; RR = [84, 92]
        for k in range(4): S.e(f"ds_read_b128 {vr(KF + 4*k)}, v{U+1} offset:{k*1024}")
        for wv in range(2):
            for k in range(4): S.e(f"{MF} {vr(OO[wv],16)}, {vr(KF + 4*k)}, {vr(PH + 16*wv + 4*k)}, {'0' if k == 0 else vr(OO[wv],16)}")
        for wv in range(2):
            O = OO[wv]; R = RR[wv]
            bf16r(S, G2, f"v{O+14}")
            S.e(f"v_add_f32 v{G2}, {f32(1e-6)}, v{G2}")
            bf16r(S, G2, f"v{G2}")
            S.e(f"v_rcp_f32 v{G2}, v{G2}")
            for i in range(7): S.e(f"v_cvt_pk_bf16_f32 v{G2+1+i}, v{O+2*i}, v{O+2*i+1}")
            for i in range(7): S.e(f"v_lshlrev_b32 v{O+2*i}, 16, v{G2+1+i}\nv_and_b32 v{O+2*i+1}, 0xffff0000, v{G2+1+i}")
            for i in range(0, 14, 2): pk(S, "mul", O + i, [("p", O + i), ("b", G2)])
            for i in range(7): S.e(f"v_cvt_pk_bf16_f32 v{R+i}, v{O+2*i}, v{O+2*i+1}")
            S.e(f"v_mov_b32 v{R+7}, 0\ns_add_u32 {t0}, s{S_HFB}, {wv*NKS*1024}")
            S.e(f"buffer_store_dwordx4 {vr(R)}, v{V_L16}, {sq(S_WS)}, {t0} offen sc1\nbuffer_store_dwordx4 {vr(R+4)}, v{V_L16}, {sq(S_WS)}, {t0} offen offset:1024 sc1", tag="ost")
    else:
        X = 20; KA = 4; KB = 10
        S.e(f"""
        v_lshrrev_b32 v{X}, 4, v{V_L}
        v_bfe_u32 v{X+1}, v{V_L}, 2, 2
        v_lshl_add_u32 v{X}, v{X}, 3, v{X+1}
        v_bfe_u32 v{X+2}, v{V_L}, 1, 1
        s_lshl_b32 {t0}, s{S_H}, 1
        v_add_u32 v{X+4}, {t0}, v{X+2}
        v_xor_b32 v{X+4}, v{X+4}, v{X+1}
        v_lshlrev_b32 v{X+3}, 7, v{X}
        v_lshl_add_u32 v{X+3}, v{X+4}, 4, v{X+3}
        v_and_b32 v{X+5}, 1, v{V_L}
        v_lshl_add_u32 v{KA}, v{X+5}, 3, v{X+3}
        v_add_u32 v{KA}, {PKO}, v{KA}
        v_xor_b32 v{KA+1}, 64, v{KA}
        v_lshrrev_b32 v{X+4}, 1, v{X+1}
        v_xor_b32 v{X+4}, v{X+4}, v{X+2}
        v_lshlrev_b32 v{X+3}, 6, v{X}
        v_lshl_add_u32 v{X+3}, v{X+4}, 4, v{X+3}
        v_lshl_add_u32 v{KB}, v{X+5}, 3, v{X+3}
        v_add_u32 v{KB}, {VVO}, v{KB}
        v_xor_b32 v{KB+1}, 32, v{KB}
        """)
        for rg in (1, 2):
            for k in range(2):
                S.e(f"v_add_u32 v{KA+2*rg+k}, {rg*3*REG2}, v{KA+k}\nv_add_u32 v{KB+2*rg+k}, {rg*3*REG2}, v{KB+k}")
        S.e(f"""
        s_lshl_b32 {t4}, s{S_HEAD}, 3
        s_add_u32 {t4}, {t4}, s{S_MT}
        s_lshl_b32 {t4}, {t4}, 13
        s_lshr_b32 {t0}, s{S_H}, 1
        s_lshl_b32 {t0}, {t0}, 12
        s_add_u32 {t4}, {t4}, {t0}
        s_and_b32 {t0}, s{S_H}, 1
        s_lshl_b32 {t0}, {t0}, 9
        s_add_u32 {t4}, {t4}, {t0}
        s_add_u32 {t4}, {t4}, {KVP_OFF}
        """)
        for dh in range(2):
            D = 130 + dh
            S.e(f"""
            v_bfe_u32 v{X}, v{V_L}, 2, 2
            v_and_b32 v{X+1}, 3, v{V_L}
            v_lshl_add_u32 v{X}, v{X}, 3, v{X+1}
            v_add_u32 v{X}, {4*dh}, v{X}
            v_cmp_lt_u32_e64 {M1}, 13, v{X}
            v_subrev_u32 v{X+1}, 14, v{X}
            v_cndmask_b32_e64 v{X+1}, v{X}, v{X+1}, {M1}
            v_cndmask_b32_e64 v{X+2}, 0, 4, {M1}
            v_cmp_lt_u32_e64 {M2}, 27, v{X}
            v_and_b32 v{X+3}, 1, v{X}
            v_lshlrev_b32 v{X+3}, 2, v{X+3}
            v_bfe_u32 v{X+4}, v{X}, 1, 1
            v_add_u32 v{X+4}, 14, v{X+4}
            v_cndmask_b32_e64 v{X+1}, v{X+1}, v{X+4}, {M2}
            v_cndmask_b32_e64 v{X+2}, v{X+2}, v{X+3}, {M2}
            v_lshrrev_b32 v{X+3}, 2, v{X+1}
            v_and_b32 v{X+1}, 3, v{X+1}
            v_lshl_add_u32 v{X+1}, v{X+3}, 3, v{X+1}
            v_add_u32 v{X+1}, v{X+1}, v{X+2}
            v_lshrrev_b32 v{X+2}, 4, v{V_L}
            v_lshlrev_b32 v{X+2}, 10, v{X+2}
            v_lshl_add_u32 v{D}, v{X+1}, 4, v{X+2}
            """)
        KA1 = 6 if OPT.get("kvffn", "last") == "first" else int(OPT.get("ka1", 6))
        B1(); adma(0, KA1)
        def a1flag():
            S.wait_vm("a1")
            S.e(f"v_mov_b32 v16, {CNT + 20}\nv_mov_b32 v17, 1\ns_mov_b64 exec, 1\nds_add_u32 v16, v17\ns_mov_b64 exec, -1")
        if OPT.get("kvffn", "last") == "first": a1flag()
        S.e(f"""
        s_barrier
        s_setprio 3
        """)
        st(S, "B2")
        FB = 32; KD = 24
        for kk in range(8):
            b = FB + 12 * kk; rg = kk // 3; ro = (kk % 3) * REG2
            for e in range(2):
                S.e(f"ds_read_b64_tr_b16 {vr(b + 2*e, 2)}, v{KA + 2*rg + e} offset:{ro + e*512}")
                for dh in range(2):
                    S.e(f"ds_read_b64_tr_b16 {vr(b + 4 + 4*dh + 2*e, 2)}, v{KB + 2*rg + (e ^ dh)} offset:{ro + e*256}")
        for kk in range(8):
            b = FB + 12 * kk
            for dh in range(2):
                S.e(f"{MF16} {vr(KD + 4*dh)}, {vr(b)}, {vr(b + 4 + 4*dh)}, {'0' if kk == 0 else vr(KD + 4*dh)}")
        for dh in range(2):
            S.e(f"buffer_store_dwordx4 {vr(KD + 4*dh)}, v{130+dh}, {sq(S_WS)}, {t4} offen sc1", tag="kvst")
        st(S, "kvst")
        S.e(f"v_mov_b32 v12, {CNT + 12}\nv_mov_b32 v13, 1\ns_mov_b64 exec, 1\nds_add_u32 v12, v13\ns_mov_b64 exec, -1\ns_setprio {OPT.get('hprio2', 0)}")
        adma(KA1, 6)
        if OPT.get("kvffn", "last") != "first": a1flag()
    st(S, "end")
    st.flush(S, sq(S_WS), ST_OFF, 24, 12)
    S.e("s_endpgm")
    return S
def compute_head():
    S = Stream(); T = PT
    S.e("K_comp:")
    S.e(f"""
    s_lshl_b32 {t0}, s{S_MT}, 3
    s_add_u32 {t0}, {t0}, s3
    s_mul_i32 s{S_HFB}, {t0}, {NKS*1024}
    s_mul_i32 s{S_AREA}, s3, {AREA}
    s_mul_i32 {t2}, s{S_SROW}, 896
    v_cmp_gt_u32_e64 {M2}, 56, v{V_L}
    v_mov_b32 v{T+2}, 0x7f000000
    v_cndmask_b32_e64 v{T+2}, v{T+2}, v{V_L16}, {M2}
    s_waitcnt lgkmcnt(0)
    """)
    srd(S, S_X, 4, 2048 * 896)
    S.e(f"buffer_load_dwordx4 {vr(STV)}, v{T+2}, {sq(S_X)}, {t2} offen", tag="strow")
    if OPT.get("touch2"):
        S.e(f"""
        s_mov_b32 s{S_D1}, s6
        s_mov_b32 s{S_D1+1}, s7
        s_mov_b32 s{S_D1+2}, {448*2688}
        s_mov_b32 s{S_D1+3}, 0x20000
        s_cmp_eq_u32 s3, 1
        s_cselect_b32 s{S_D1}, s14, s{S_D1}
        s_cselect_b32 s{S_D1+1}, s15, s{S_D1+1}
        s_cmp_eq_u32 s3, 2
        s_cselect_b32 s{S_D1}, s16, s{S_D1}
        s_cselect_b32 s{S_D1+1}, s17, s{S_D1+1}
        s_cmp_eq_u32 s3, 3
        s_cselect_b32 s{S_D1}, s18, s{S_D1}
        s_cselect_b32 s{S_D1+1}, s19, s{S_D1+1}
        s_cmp_lg_u32 s3, 0
        s_cselect_b32 s{S_D1+2}, {448*3584}, s{S_D1+2}
        s_cmp_eq_u32 s3, 4
        s_cselect_b32 s{S_D1}, s10, s{S_D1}
        s_cselect_b32 s{S_D1+1}, s11, s{S_D1+1}
        s_cselect_b32 s{S_D1+2}, {448*896}, s{S_D1+2}
        s_mul_i32 {t1}, s2, {49*128}
        s_cmp_ge_u32 s3, {OPT['touch2']}
        s_cselect_b32 {t1}, 0x40000000, {t1}
        v_lshlrev_b32 v{T+5}, 7, v{V_L}
        v_cmp_gt_u32_e64 {M1}, 49, v{V_L}
        v_mov_b32 v{T+6}, 0x7f000000
        v_cndmask_b32_e64 v{T+5}, v{T+6}, v{T+5}, {M1}
        buffer_load_dword v23, v{T+5}, {sq(S_D1)}, {t1} offen
        """)
    srd(S, S_WS, 22, WS_SIZE); srd(S, S_DBG, 20, 256); srd(S, S_WD, 18, 1792 * 896); srd(S, S_WO, 10, 448 * 896)
    S.e(f"s_mov_b32 s{S_OUT+2}, {2048*896}\ns_mov_b32 s{S_OUT+3}, 0x20000")
    S.e(f"s_lshl_b32 {t0}, s3, 3\ns_add_u32 {t0}, {t0}, s2\ns_cmp_ge_u32 {t0}, 8\ns_cbranch_scc1 K_notok")
    S.e(f"""
    s_memrealtime s[{S_TOK}:{S_TOK+1}]
    s_waitcnt lgkmcnt(0)
    s_or_b32 s{S_TOK}, s{S_TOK}, 1
    v_mov_b32 v26, s{S_TOK}
    s_lshl_b32 {t0}, s2, 5
    s_mov_b64 exec, 1
    buffer_store_dword v26, v{V_Z}, {sq(S_DBG)}, {t0} offen sc1
    s_mov_b64 exec, -1
    """, opt=True)
    S.e("K_notok:")
    S.e(f"""
    s_lshl_b32 s{S_U0}, s{S_U0}, 5
    s_add_u32 s{S_U0}, s{S_U0}, s{S_HFB}
    s_lshl_b32 s{S_U12}, s{S_U12}, 5
    s_add_u32 s{S_U12}, s{S_U12}, s{S_HFB}
    v_lshrrev_b32 v{T+3}, 5, v{V_L}
    v_and_b32 v{T+5}, 31, v{V_L}
    v_bfe_u32 v{T+6}, v{V_L}, 1, 3
    v_xor_b32 v{T+6}, v{T+6}, v{T+3}
    v_lshlrev_b32 v{T+5}, 7, v{T+5}
    v_lshl_add_u32 v{T+5}, v{T+6}, 4, v{T+5}
    v_add_u32 v{V_AX}, s{S_AREA}, v{T+5}
    v_xor_b32 v{V_AX+1}, 32, v{V_AX}
    v_xor_b32 v{V_AX+2}, 64, v{V_AX}
    v_xor_b32 v{V_AX+3}, 0x60, v{V_AX}
    v_add_u32 v{V_CSA}, {CSP}, v{V_L16}
    v_bfe_u32 v{T+1}, v{V_L}, 2, 2
    v_lshl_add_u32 v{T+9}, v{T+3}, 2, v{T+1}
    v_lshlrev_b32 v{T+9}, 6, v{T+9}
    v_and_b32 v{T+10}, 1, v{V_L}
    v_lshl_add_u32 v{T+9}, v{T+10}, 5, v{T+9}
    v_bfe_u32 v{T+10}, v{V_L}, 1, 1
    v_bfe_u32 v{T+4}, v{V_L}, 4, 1
    v_lshl_add_u32 v{T+10}, v{T+4}, 1, v{T+10}
    v_lshl_add_u32 v{T+9}, v{T+10}, 3, v{T+9}
    v_add_u32 v{V_PHA}, {WPHI}, v{T+9}
    v_mov_b32 v{T+9}, {CNT}
    ds_write_b32 v{T+9}, v{V_Z}
    ds_write_b32 v{T+9}, v{V_Z} offset:4
    ds_write_b32 v{T+9}, v{V_Z} offset:8
    ds_write_b32 v{T+9}, v{V_Z} offset:12
    ds_write_b32 v{T+9}, v{V_Z} offset:16
    ds_write_b32 v{T+9}, v{V_Z} offset:20
    v_lshlrev_b32 v{T+10}, 2, v{V_L}
    v_add_u32 v{T+10}, {CNT + 64}, v{T+10}
    ds_write_b32 v{T+10}, v{V_Z}
    """)
    U = PT
    for j in range(4): S.e(f"v_lshlrev_b32 v{U+2*j}, 16, v{STV+j}\nv_and_b32 v{U+2*j+1}, 0xffff0000, v{STV+j}")
    S.e(f"""
    v_add_f32 v{U+8}, v{U}, v{U+1}
    v_add_f32 v{U+9}, v{U+2}, v{U+3}
    v_add_f32 v{U+10}, v{U+4}, v{U+5}
    v_add_f32 v{U+11}, v{U+6}, v{U+7}
    v_add_f32 v{U+8}, v{U+8}, v{U+9}
    v_add_f32 v{U+10}, v{U+10}, v{U+11}
    v_add_f32 v{U+8}, v{U+8}, v{U+10}
    """)
    wave_sum(S, U + 8, U + 9)
    S.e(f"v_mul_f32 v{U+8}, {f32(1/448)}, v{U+8}")
    for j in range(8): S.e(f"v_sub_f32 v{U+j}, v{U+j}, v{U+8}")
    S.e(f"v_mul_f32 v{U+9}, v{U}, v{U}\nv_mul_f32 v{U+10}, v{U+1}, v{U+1}")
    for j in range(2, 8): S.e(f"v_fmac_f32 v{U+9+(j&1)}, v{U+j}, v{U+j}")
    S.e(f"v_add_f32 v{U+9}, v{U+9}, v{U+10}\nv_cndmask_b32_e64 v{U+9}, 0, v{U+9}, {M2}")
    wave_sum(S, U + 9, U + 10)
    S.e(f"v_mul_f32 v{U+9}, {f32(1/448)}, v{U+9}")
    bf16r(S, U + 9, f"v{U+9}")
    S.e(f"v_add_f32 v{U+9}, {f32(1e-5)}, v{U+9}")
    bf16r(S, U + 9, f"v{U+9}")
    S.e(f"v_sqrt_f32 v{U+9}, v{U+9}")
    bf16r(S, 25, f"v{U+9}")
    S.e(f"v_cvt_pk_bf16_f32 v24, -v{U+8}, -v{U+8}\nv_mov_b32 v27, 0")
    S.e(f"s_cmp_eq_u32 s{S_TYPE}, 1\ns_cbranch_scc1 K_kv")
    return S


def compute(typ):
    q = typ == "q"
    S = Stream(); T = PT
    S.e(f"K_{typ}:")
    st = Stamper(STAMPR); st.n = 1; st.names = ["start"]
    tile_addrs(S, typ, V_AT, T)
    p2_ids(S)
    EARLY = Stream()
    T = SC; p2_a_voffsets(EARLY, 21, None, None, T)
    EARLY.e(f"""
    s_bfe_u32 {t4}, s3, 0x10001
    s_lshr_b32 {t5}, s3, 2
    v_bfe_u32 v{T}, v{V_L}, 2, 2
    v_lshrrev_b32 v{T+1}, 5, v{V_L}
    v_lshl_add_u32 v{T+2}, v{T+1}, 2, v{T}
    v_lshlrev_b32 v{T+2}, 7, v{T+2}
    v_lshrrev_b32 v{T}, 1, v{T}
    v_xor_b32 v{T}, {t4}, v{T}
    v_lshl_add_u32 v{T+2}, v{T}, 6, v{T+2}
    v_and_b32 v{T}, 1, v{V_L}
    v_lshl_add_u32 v{T+2}, v{T}, 5, v{T+2}
    v_bfe_u32 v{T}, v{V_L}, 1, 1
    v_bfe_u32 v{T+3}, v{V_L}, 4, 1
    v_xor_b32 v{T+3}, {t5}, v{T+3}
    v_lshl_add_u32 v{T}, v{T+3}, 1, v{T}
    v_lshl_add_u32 v{T+2}, v{T}, 3, v{T+2}
    s_mul_i32 {t0}, s3, {REG2}
    v_add_u32 v22, {t0}, v{T+2}
    s_and_b32 {t0}, s3, 3
    s_lshl_b32 {t0}, {t0}, 1
    s_add_u32 s{S_H}, {t0}, {t5}
    s_mul_i32 s{S_XROW}, s{S_H}, {14*16*896}
    s_cmp_ge_u32 s2, 224
    s_cselect_b32 {t0}, 0x40000000, 0
    s_add_u32 s{S_XROW}, s{S_XROW}, {t0}
    """)
    T = PT
    pend = []
    def ABn(n): return AB if n % 2 == 1 else SC + 8
    def a_read(n, t):
        c, s = n >> 2, n & 3
        for e in range(2):
            a, imm = tile_read_args(typ, t, s, e)
            S.e(f"ds_read_b64_tr_b16 {vr(ABn(n) + 4*t + 2*e, 2)}, v{V_AT+a} offset:{(c % 3)*WS_ + imm}")
    def x_read(n):
        c, s = n >> 2, n & 3
        S.e(f"ds_read_b128 {vr(XB + 4*(n & 1))}, v{V_AX+s} offset:{(c % 3) * 4096}")
    def kstep(n):
        if n + 1 < 28:
            x_read(n + 1); a_read(n + 1, 0); a_read(n + 1, 1)
        for t in range(5):
            S.e(f"{MF} {vr(ACC + 16*t, 16)}, {vr(ABn(n) + 4*t)}, {vr(XB + 4*(n & 1))}, {'0' if n == 0 else vr(ACC + 16*t, 16)}")
            if n + 1 < 28 and t + 2 < 5: a_read(n + 1, t + 2)
            if pend: S.extend(pend.pop(0))
    tok_issue(S, f"K_{typ}_tki", 21, 22, 0)
    S.wait_lgkm(); S.e("s_barrier")
    st(S, "bar0")
    x_read(0)
    for t in range(5): a_read(0, t)
    for c in range(7):
        S.comment(f"chunk {c}")
        if c in (4,): st(S, f"chunk{c}")
        n = 4 * c
        if c == int(OPT.get("poic", 0)):
            G = Stream(); G.e(f"v_mov_b32 v{SC}, -1\nv_mov_b32 v{SC+1}, -1\nv_mov_b32 v{SC+2}, -1\nv_mov_b32 v{SC+3}, -1"); pend.append(G)
            if q:
                offs = [f"s_lshl_b32 {t0}, s{S_HEAD}, 11\ns_add_u32 {t0}, {t0}, s{S_HFB}\ns_add_u32 {t0}, {t0}, {(112+u)*1024}" for u in range(2)]
            else:
                offs = [f"s_lshl_b32 {t0}, s{S_HEAD}, 3\ns_add_u32 {t0}, {t0}, s{S_MT}\ns_lshl_b32 {t0}, {t0}, 3\ns_add_u32 {t0}, {t0}, s3\ns_lshl_b32 {t0}, {t0}, 10\ns_add_u32 {t0}, {t0}, {KVP_OFF}"]
            for o in offs:
                G = Stream(); G.e(o); G.e(f"buffer_store_dwordx4 {vr(SC)}, v{V_L16}, {sq(S_WS)}, {t0} offen sc1", tag="stst"); pend.append(G); pend.append(Stream())
        if c == 0:
            pend[:0] = [Stream() for _ in range(8)] + [tok_fetch(f"K_{typ}_tk1", False, 21, 22, issued=True)]
        if c == 1:
            G = Stream(); tok_read(G, f"s{S_TOK}", f"s_and_b32 {t0}, s2, 7", SC + 4)
            G.e(f"v_mov_b32 v26, s{S_TOK}\ns_lshl_b32 {t0}, s{S_SROW}, 4\ns_add_u32 {t0}, {t0}, {STATS_OFF}\ns_mov_b64 exec, 1")
            G.e(f"buffer_store_dwordx4 v[24:27], v{V_Z}, {sq(S_WS)}, {t0} offen sc1\ns_mov_b64 exec, -1")
            pend.append(G)
        if c == 2 and not q: pend.append(signal("stst", 4, "kp", f"K_{typ}_nosigkp", SC + 4, SC + 5, SC + 6, 7))
        if OPT.get("tlb") and c == int(OPT["tlb"]):
            G = Stream()
            G.e(f"""
            v_lshlrev_b32 v23, 18, v{V_L}
            s_lshl_b32 {t0}, s3, 15
            buffer_load_dword v23, v23, {sq(S_WS)}, {t0} offen
            """); pend.append(G)
            G = Stream()
            G.e(f"""
            v_lshlrev_b32 v26, 15, v{V_L}
            s_lshl_b32 {t0}, s3, 12
            buffer_load_dword v27, v26, {sq(S_OUT)}, {t0} offen
            """); pend.append(G)
        if c == 3:
            for ii in range(0, len(EARLY), 5):
                G = Stream(); G.extend(EARLY[ii:ii+5]); pend.append(G)
        kstep(n); kstep(n + 1); kstep(n + 2)
        S.wait_lgkm(); S.e("s_barrier")
        if c == 4:
            G = Stream()
            G.e(f"""
            v_and_b32 v{V_TMP}, 31, v{V_L}
            v_lshlrev_b32 v{V_TMP}, 4, v{V_TMP}
            s_lshl_b32 s{S_TOK+1}, s{S_MT}, 3
            s_add_u32 s{S_TOK+1}, s{S_TOK+1}, s3
            s_lshl_b32 s{S_TOK+1}, s{S_TOK+1}, 9
            s_add_u32 s{S_TOK+1}, s{S_TOK+1}, {STATS_OFF}
            buffer_load_dwordx3 v[16:18], v{V_TMP}, {sq(S_WS)}, s{S_TOK+1} offen sc1
            """)
            pend.append(G)
        if c == 5:
            G = Stream()
            tok_read(G, t4, f"s_and_b32 {t0}, s3, 6\ns_lshr_b32 {t1}, s{S_MT}, 2\ns_add_u32 {t0}, {t0}, {t1}", SC + 4)
            G.e(f"v_cmp_ne_u32_e64 {M1}, {t4}, v18\ns_mov_b32 {t3}, 0\ns_cmp_eq_u64 {M1}, 0\ns_cbranch_scc1 K_{typ}_stok")
            G.e(f"""
            K_{typ}_st:
            s_sleep 8
            buffer_load_dwordx3 v[16:18], v{V_TMP}, {sq(S_WS)}, s{S_TOK+1} offen sc1
            s_waitcnt vmcnt(0)
            v_cmp_ne_u32_e64 {M1}, {t4}, v18
            s_add_u32 {t3}, {t3}, 1
            s_cmp_eq_u64 {M1}, 0
            s_cbranch_scc1 K_{typ}_stok
            s_cmp_lt_u32 {t3}, 0x8000
            s_cbranch_scc1 K_{typ}_st
            """, opt=True)
            G.e(f"K_{typ}_stok:")
            G.append(pseudo("forget_opt"))
            pend.append(G)
        if c == 6:
            CR = SC + 8
            for t in range(5): S.e(f"ds_read_b128 {vr(CR + 4*t)}, v{V_CSA} offset:{t*1024}")
            stats_consts(S)
        kstep(n + 3)
    st(S, "S1")
    FT = (lambda n: st(S, n, fine=True)) if OPT.get('fw') == 'tail' else (lambda n: None)
    FT("s1")
    WPF = XB; E = AB; QB = E + 8; TT = 4; GT = SC; GT2 = SC + 12
    A0 = ACC
    V_WD, V_A0, V_A1 = 11, 12, 13
    V_WOo, V_WOM, V_B0, V_B1, V_O = 4, 5, 6, 7, 8
    S.e(f"{MF} {vr(ACC,16)}, {vr(CR)}, {vr(BP)}, {vr(ACC,16)}")
    for te in range(4): S.e(f"ds_read_b64_tr_b16 {vr(WPF + 2*te, 2)}, v{V_PHA} offset:{te * 512}")
    NC1 = 5 if (q or not OPT.get("corr2", True)) else 2
    for t in range(1, NC1): S.e(f"{MF} {vr(ACC + 16*t,16)}, {vr(CR + 4*t)}, {vr(BP)}, {vr(ACC + 16*t,16)}")
    S.e(f"s_mul_i32 s{S_AREA}, s3, {REG2}\nv_mov_b32 v{V_WD}, v21\nv_mov_b32 v{V_A0}, v22\nv_xor_b32 v{V_A1}, 64, v22")
    W = SC + 28; X = 4
    if not q:
        S.e(f"""
        v_and_b32 v{X}, 31, v{V_L}
        v_lshrrev_b32 v{X+1}, 5, v{V_L}
        v_lshlrev_b32 v{X+1}, 1, v{X+1}
        v_bfe_u32 v{X+2}, v{V_L}, 1, 2
        v_xor_b32 v{X+2}, v{X+2}, v{X+1}
        v_lshlrev_b32 v{X+3}, 6, v{X}
        v_lshl_add_u32 v{X+3}, v{X+2}, 4, v{X+3}
        s_add_u32 {t0}, s{S_AREA}, {VVO}
        v_add_u32 v9, {t0}, v{X+3}
        v_xor_b32 v10, 16, v9
        v_and_b32 v{X+3}, 7, v{V_L}
        v_xor_b32 v{X+1}, v{X+1}, v{X+3}
        v_lshlrev_b32 v{X}, 7, v{X}
        v_lshl_add_u32 v{X}, v{X+1}, 4, v{X}
        s_add_u32 {t0}, s{S_AREA}, {PKO}
        v_add_u32 v{W}, {t0}, v{X}
        v_xor_b32 v{W+1}, 16, v{W}
        v_xor_b32 v{W+2}, 64, v{W}
        v_xor_b32 v{W+3}, 0x50, v{W}
        """)
    FT("addr")
    scale16(S, A0)
    for i in range(8): S.e(f"v_cvt_pk_bf16_f32 v{QB+i}, v{A0+2*i}, v{A0+2*i+1}")
    S.e(f"{MF} {vr(A0,16)}, {vr(WPF)}, {vr(QB)}, 0\n{MF} {vr(A0,16)}, {vr(WPF+4)}, {vr(QB+4)}, {vr(A0,16)}")
    FT("pq")
    A1 = ACC + 16
    AC2 = 104
    bfree = [16, 24, 32, 40, 48]
    ablk = {i: b for i, b in enumerate([72, 80, 88, 96, 56, 64] if (q or OPT.get('kvffn', 'last') == 'first') else [56, 64, 72, 80, 88, 96])}
    slot_of = {i: i for i in range(6)}
    def a_tr(i, blk):
        nonlocal S
        for ni in range(2):
            for e in range(2):
                S.e(f"ds_read_b64_tr_b16 {vr(blk + 4*ni + 2*e, 2)}, v{V_A0+ni} offset:{slot_of[i]*2048 + e*1024}", tag=f"ar{i}")
    def a_dma(i, sl):
        slot_of[i] = sl; out = []
        for u in range(2):
            G = Stream()
            G.e(f"s_add_u32 m0, s{S_AREA}, {sl*2048 + u*1024}")
            if i < 14:
                G.e(f"s_add_u32 {tm}, s{S_XROW}, {(16*i + 8*u)*896}")
                G.e(f"buffer_load_dwordx4 v{V_WD}, {sq(S_WD)}, {tm} offen lds", tag=f"a{i}")
            else:
                hd, t = (i - 14) >> 1, (i - 14) & 1
                G.e(f"s_add_u32 {tm}, s{S_D0L}, {(28*hd + 8*t + 4*u)*896}")
                G.e(f"buffer_load_dwordx4 v{V_WOM if (t and u) else V_WOo}, {sq(S_WO)}, {tm} offen lds", tag=f"a{i}")
            out.append(G)
        return out
    def sprinkle(V, parts, start, every):
        n = 0
        for ins in V:
            S.append(ins); n += 1
            if n >= start and (n - start) % every == 0 and parts: S.extend(parts.pop(0))
        for p in parts: S.extend(p)
    late = []
    KF1 = q or OPT.get("kvffn", "last") == "first"
    def vwr(): S.e(f"ds_write_b128 v9, {vr(A1)}\nds_write_b128 v10, {vr(A1+4)}")
    def vpart():
        scale16(S, A1)
        for i in range(8): S.e(f"v_cvt_pk_bf16_f32 v{A1+i}, v{A1+2*i}, v{A1+2*i+1}")
        S.e(f"""
        v_mov_b32 v{A1+8}, 0x3f803f80
        v_cndmask_b32_e64 v{A1+6}, v{A1+6}, v{A1+8}, {HHM}
        """)
        if KF1: vwr()
    if KF1:
        if q:
            geglu(S, A1, GT, S_U0, 0); geglu(S, ACC + 32, GT2, S_U0, 1); geglu(S, ACC + 48, GT, S_U0, 2); geglu(S, ACC + 64, GT2, S_U0, 3)
        else:
            geglu(S, ACC + 32, GT2, S_U0, 0); geglu(S, ACC + 48, GT, S_U12, 0); geglu(S, ACC + 64, GT2, S_U12, 1)
            vpart()
        st(S, "ffn")
        S.e(f"""
        v_mov_b32 v14, {CNT + 20}
        K_{typ}_a1:
        ds_read_b32 v15, v14
        s_waitcnt lgkmcnt(0)
        v_readfirstlane_b32 {t1}, v15
        s_cmp_lt_u32 {t1}, 4
        s_cbranch_scc1 K_{typ}_a1
        """)
        for i in range(4): a_tr(i, ablk[i])
        V = Stream(); softmax14(V, A0, E, TT)
        w = Stream(); w.wait_lgkm()
        sg = signal("hst", 8, "h", f"K_{typ}_nosigh", 104, 105, 106, 7)
        pos = int(OPT.get("sgpos", 4))
        parts = [w] + a_dma(6, 0) + a_dma(7, 1) + a_dma(8, 2) + a_dma(9, 3)
        parts.insert(pos + 1, sg)
        if q or OPT.get('kvspr', False): sprinkle(V, parts, 12, 14)
        else:
            sprinkle(V, [sg], 60, 14); parts.remove(sg); pre_late = parts
        if q:
            S.e(f"s_add_u32 {t0}, s{S_AREA}, {PKO}\nv_add_u32 v9, {t0}, v{V_L16}")
            for kk in range(4): S.e(f"ds_write_b128 v9, {vr(E + 4*kk)} offset:{kk*1024}")
        else:
            for k in range(4): S.e(f"ds_write_b128 v{W+k}, {vr(E+4*k)}")
        a_tr(4, ablk[4]); a_tr(5, ablk[5])
        S.wait_lgkm(); S.e("s_barrier")
        st(S, "B2")
        late = ([] if (q or OPT.get('kvspr', False)) else pre_late) + a_dma(10, 4) + a_dma(11, 5)
    else:
        vpart()
        FT("v")
        softmax14(S, A0, E, TT)
        FT("sm")
        vwr()
        for k in range(4): S.e(f"ds_write_b128 v{W+k}, {vr(E+4*k)}")
        S.wait_lgkm()
        FT("wr")
        for t in range(NC1, 5): S.e(f"{MF} {vr(ACC + 16*t,16)}, {vr(CR + 4*t)}, {vr(BP)}, {vr(ACC + 16*t,16)}")
        S.e("s_barrier")
        st(S, "B2")
        FT("b2")
        geglu(S, ACC + 32, GT2, S_U0, 0); FT("g1"); geglu(S, ACC + 48, GT, S_U12, 0); FT("g2"); geglu(S, ACC + 64, GT2, S_U12, 1); FT("g3")
        st(S, "ffn")
        G = Stream()
        G.e(f"""
        v_mov_b32 v14, {CNT + 20}
        K_{typ}_a1:
        ds_read_b32 v15, v14
        s_waitcnt lgkmcnt(0)
        v_readfirstlane_b32 {t1}, v15
        s_cmp_lt_u32 {t1}, 4
        s_cbranch_scc1 K_{typ}_a1
        """)
        S0 = S; S = G
        for i in range(6): a_tr(i, ablk[i])
        S = S0
        G.wait_lgkm()
        late = [G]
        for i in range(6, 12): late += a_dma(i, i - 6)
    TP = 16
    S.e(f"""
    v_lshrrev_b32 v{TP}, 3, v{V_L}
    v_mul_u32_u24 v{TP+1}, 896, v{TP}
    v_sub_u32 v{TP+1}, v{V_WD}, v{TP+1}
    v_lshrrev_b32 v{TP+2}, 2, v{TP}
    v_and_b32 v{TP+3}, 3, v{TP}
    v_mad_u32_u24 v{TP+2}, v{TP+2}, 14, v{TP+3}
    v_mul_u32_u24 v{V_WOo}, 896, v{TP+2}
    v_add_u32 v{V_WOo}, v{V_WOo}, v{TP+1}
    v_cmp_lt_u32_e64 {M1}, 1, v{TP+3}
    v_mov_b32 v{TP+2}, 0x7f000000
    v_cndmask_b32_e64 v{V_WOM}, v{V_WOo}, v{TP+2}, {M1}
    s_and_b32 {t3}, s3, 1
    s_bfe_u32 {t4}, s3, 0x10001
    s_lshr_b32 {t5}, s3, 2
    s_lshl_b32 {t0}, s{S_M64}, 1
    s_add_u32 {t0}, {t0}, {t3}
    s_mul_i32 {t1}, {t0}, {NKS*1024}
    v_add_u32 v{V_B0}, {t1}, v{V_L16}
    s_xor_b32 {t2}, {t0}, 1
    s_mul_i32 {t2}, {t2}, {NKS*1024}
    v_add_u32 v{V_B1}, {t2}, v{V_L16}
    v_mov_b32 v9, {t1}
    v_mov_b32 v10, {t2}
    v_cmp_lt_u32_e64 {M1}, 15, v{V_L}
    v_cndmask_b32_e64 v9, v9, v10, {M1}
    v_and_b32 v10, 3, v{V_L}
    v_lshl_add_u32 v9, v10, 10, v9
    v_lshrrev_b32 v{TP+1}, 5, v{V_L}
    v_and_b32 v{TP}, 31, v{V_L}
    s_lshl_b32 {t0}, {t0}, 5
    v_add_u32 v{TP}, {t0}, v{TP}
    v_mul_u32_u24 v{TP}, 896, v{TP}
    v_lshlrev_b32 v{TP+1}, 5, v{TP+1}
    s_lshl_b32 {t0}, s{S_N64}, 7
    s_lshl_b32 {t1}, {t4}, 6
    s_add_u32 {t0}, {t0}, {t1}
    s_lshl_b32 {t1}, {t5}, 4
    s_add_u32 {t0}, {t0}, {t1}
    v_add3_u32 v{V_O}, v{TP}, v{TP+1}, {t0}
    s_mul_i32 s{S_D0L}, s{S_H}, {2*28*896}
    s_mul_i32 s{S_U0}, s{S_H}, {14*1024}
    s_lshl_b32 s{S_U12}, s{S_H}, 12
    s_add_u32 s{S_U12}, s{S_U12}, {112*1024 - 14*1024}
    s_add_u32 s{S_G}, s{S_U12}, {14*1024 + 1008}
    v_mov_b32 v{TP}, {CNT + 12}
    K_{typ}_zone:
    ds_read_b32 v{TP+1}, v{TP}
    s_waitcnt lgkmcnt(0)
    v_readfirstlane_b32 {t1}, v{TP+1}
    s_cmp_lt_u32 {t1}, 4
    s_cbranch_scc1 K_{typ}_zone
    """)
    for g in late[:int((OPT.get("latepre", 4) if KF1 else OPT.get("latekv", 0)))]: S.extend(g)
    st(S, "p1end")
    if not KF1: S.extend(signal("hst", 8, "h", f"K_{typ}_nosigh", TP, TP + 1, TP + 2, 7))
    if not q: S.e(f"s_cmp_ge_u32 s2, 224\ns_cbranch_scc1 K_{typ}_fin")
    for g in late[int((OPT.get("latepre", 4) if KF1 else OPT.get("latekv", 0))):]: S.extend(g)
    for i in range(12, 15):
        for g in a_dma(i, i - 6): S.extend(g)
    MIR = CNT + 64
    tok_read(S, t4, f"s_and_b32 {t0}, s{S_H}, 6\ns_lshr_b32 {t1}, s{S_MT2}, 2\ns_add_u32 {t0}, {t0}, {t1}", TP)
    S.e(f"""
    s_mul_i32 {t2}, s2, {MB_STRIDE}
    s_add_u32 {t2}, {t2}, {MB_OFF}
    s_lshr_b32 {t0}, s{S_H}, 1
    s_lshl_b32 {t0}, {t0}, 3
    s_cmp_lt_u32 s3, 4
    s_movk_i32 {t5}, 0xff
    s_cselect_b32 {t5}, 0x55, {t5}
    s_lshl_b32 {t5}, {t5}, {t0}
    s_mov_b32 {t3}, 0
    v_min_u32 v{TP}, 32, v{V_L}
    v_lshlrev_b32 v{TP}, 2, v{TP}
    v_add_u32 v{TP+1}, {MIR}, v{TP}
    v_and_b32 v{TP}, 0x7c, v{TP}
    """)
    st(S, "w5")
    S.e(f"""
    s_cmp_eq_u32 s3, 7
    s_cbranch_scc1 K_{typ}_phg
    K_{typ}_phl:
    ds_read_b32 v14, v{TP+1}
    s_waitcnt lgkmcnt(0)
    v_cmp_ne_u32_e64 {M1}, {t4}, v14
    v_readlane_b32 {t1}, v14, 32
    s_and_b32 {tm}, s88, {t5}
    s_cbranch_scc0 K_{typ}_phok
    s_sleep 2
    s_cmp_eq_u32 {t1}, 0
    s_cbranch_scc1 K_{typ}_phl
    K_{typ}_phg:
    buffer_load_dword v14, v{TP}, {sq(S_WS)}, {t2} offen sc1
    s_waitcnt vmcnt(0)
    s_mov_b32 exec_hi, 0
    ds_write_b32 v{TP+1}, v14
    s_mov_b32 exec_hi, -1
    v_cmp_ne_u32_e64 {M1}, {t4}, v14
    s_add_u32 {t3}, {t3}, 1
    s_and_b32 {tm}, s88, {t5}
    s_cbranch_scc0 K_{typ}_phd
    s_sleep {OPT.get('sleep', 4)}
    s_cmp_lt_u32 {t3}, 0x8000
    s_cbranch_scc1 K_{typ}_phg
    K_{typ}_phd:
    v_mov_b32 v14, {MIR + 128}
    v_mov_b32 v15, 1
    ds_write_b32 v14, v15
    K_{typ}_phok:
    """, opt=True)
    S.append(pseudo("forget_opt"))
    st(S, "B5")
    if OPT.get('fw') == 'p2': st(S, "B5f", fine=True)
    bblk = {}
    nextb = [0]
    def b_issue(i, opt=False):
        S.e(f"s_add_u32 {tm}, s{S_U0 if i < 14 else S_U12}, {i*1024}", opt=opt)
        for mi in range(2):
            S.e(f"buffer_load_dwordx4 {vr(bblk[i] + 4*mi)}, v{V_B0+mi}, {sq(S_WS)}, {tm} offen sc1", opt=opt)
    def b_load():
        i = nextb[0]
        if i >= 18 or not bfree: return False
        if i == 14:
            tagpoll(S, f"K_{typ}_po", 9, 14, f"s{S_G}", first_issued=True)
            S.append(pseudo("forget_opt"))
            st(S, "B6")
        bblk[i] = bfree.pop(0)
        b_issue(i)
        nextb[0] += 1
        return True
    OLAG = int(OPT.get("olag", 2))
    while b_load(): pass
    afree = []
    for i in range(18):
        if i + 1 < 18 and (i + 1) not in ablk:
            ablk[i + 1] = afree.pop(0)
            S.wait_vm(f"a{i+1}")
            a_tr(i + 1, ablk[i + 1])
        if i >= 14:
            regs = list(range(bblk[i], bblk[i] + 8))
            umax_tree(S, regs, 15)
            S.e(f"v_cmp_eq_u32_e64 {M1}, -1, v15\ns_cmp_eq_u64 {M1}, 0\ns_cbranch_scc1 K_{typ}_bok{i}")
            S.e(f"s_mov_b32 {t3}, 0\nK_{typ}_bre{i}:", opt=True)
            b_issue(i, opt=True)
            S.e("s_waitcnt vmcnt(0)", opt=True)
            umax_tree(S, regs, 15, opt=True)
            S.e(f"v_cmp_eq_u32_e64 {M1}, -1, v15\ns_add_u32 {t3}, {t3}, 1\ns_cmp_eq_u64 {M1}, 0\ns_cbranch_scc1 K_{typ}_bok{i}\ns_cmp_lt_u32 {t3}, 0x4000\ns_cbranch_scc1 K_{typ}_bre{i}", opt=True)
            S.e(f"K_{typ}_bok{i}:")
            S.append(pseudo("forget_opt"))
        for lq in range(4):
            ni, mi = lq >> 1, lq & 1
            S.e(f"{MF} {vr(AC2 + 16*lq, 16)}, {vr(ablk[i] + 4*ni)}, {vr(bblk[i] + 4*mi)}, {'0' if i == 0 else vr(AC2 + 16*lq, 16)}")
        if OPT.get('fw') == 'p2' and i in (0, 1, 2, 4, 6, 8, 10, 12, 14, 17): st(S, f"k{i}", fine=True)
        bfree.append(bblk[i])
        if i in (3, 4) or i >= 6: afree.append(ablk[i])
        else: bfree.append(ablk[i])
        if i in (7, 8, 9):
            for g in a_dma(i + 8, i - 7): S.extend(g)
        if i == 14 - OLAG - 2: S.e(f"buffer_load_dword v14, v9, {sq(S_WS)}, s{S_G} offen sc1")
        while nextb[0] < 18 and (nextb[0] != 14 or i >= 14 - OLAG) and b_load(): pass
        if i == 15:
            XRG = [b for b in bfree if b >= 88][0]; bfree.remove(XRG)
            S.e(f"buffer_load_dwordx4 {vr(XRG)}, v{V_O}, {sq(S_X)}, 0 offen")
    st(S, "mm")
    S.e(f"v_add_u32 v4, s{S_AREA}, v{V_L16}")
    def piece(pp): lq = (pp & 1) | (((pp >> 1) & 1) << 1); return AC2 + 16*lq + 8*(pp >> 2)
    for pp in range(1, 8):
        for j in range(2): S.e(f"ds_write_b128 v4, {vr(piece(pp) + 4*j)} offset:{(pp-1)*2048 + j*1024}")
    for pp in range(1, 8):
        S.e(f"s_xor_b32 {t0}, s3, {pp}\ns_mul_i32 {t0}, {t0}, {REG2}\nv_add_u32 v{16+pp}, {t0}, v{V_L16}")
    for j in range(4): S.e(f"v_lshlrev_b32 v{24+2*j}, 16, v{XRG+j}\nv_and_b32 v{25+2*j}, 0xffff0000, v{XRG+j}")
    for j in range(8): S.e(f"v_add_f32 v{AC2+j}, v{AC2+j}, v{24+j}")
    S.wait_lgkm(); S.e("s_barrier")
    R = 32
    for pp in range(1, 8):
        for j in range(2): S.e(f"ds_read_b128 {vr(R + 8*(pp-1) + 4*j)}, v{16+pp} offset:{(pp-1)*2048 + j*1024}")
    def padd(d, a, b):
        for j in range(0, 8, 2): pk(S, "add", d + j, [("p", a + j), ("p", b + j)])
    padd(AC2, AC2, R); padd(R + 8, R + 8, R + 16); padd(R + 24, R + 24, R + 32); padd(R + 40, R + 40, R + 48)
    padd(AC2, AC2, R + 8); padd(R + 24, R + 24, R + 40); padd(AC2, AC2, R + 24)
    if OPT.get("eps"):
        for j in range(8): S.e(f"v_mul_f32 v{AC2+j}, {f32(1.0 + float(OPT['eps']))}, v{AC2+j}")
    for j in range(4): S.e(f"v_cvt_pk_bf16_f32 v{24+j}, v{AC2+2*j}, v{AC2+2*j+1}")
    S.e(f"buffer_store_dwordx4 {vr(24)}, v{V_O}, {sq(S_OUT)}, 0 offen")
    if OPT.get("echo"):
        r = STAMPR[int(OPT["echo"])]
        S.e(f"""
        s_memrealtime s[88:89]
        s_waitcnt lgkmcnt(0)
        {f's_sub_u32 s90, s{r}, s92' if int(OPT["echo"]) < 11 else 's_sub_u32 s90, s88, s92'}
        s_add_u32 s90, s90, s88
        K_{typ}_echo:
        s_memrealtime s[88:89]
        s_waitcnt lgkmcnt(0)
        s_sub_u32 s91, s88, s90
        s_cmp_lt_i32 s91, 0
        s_cbranch_scc1 K_{typ}_echo
        """)
    S.e(f"K_{typ}_fin:")
    st(S, "end")
    st.flush(S, sq(S_WS), ST_OFF, 104, 12)
    S.e("s_endpgm")
    return S

def gen_all():
    pro = list(prologue()); ch = list(compute_head()); hh = list(helper_head())
    out = []
    def part(prefix, body, label):
        full = finalize(prefix + list(body))
        idx = next(i for i, x in enumerate(full) if x.text == label) if label else 0
        return full[idx:]
    hq = part(pro + hh, list(helper("q")) + list(hpost("q")), None)
    hk = part(pro + hh, list(helper("kv")) + list(hpost("kv")), "K_hkv:")
    def cut(p):
        n = 0
        for i, x in enumerate(p):
            if x.op == "s_barrier":
                n += 1
                if n == 1: return p[:i], p[i:]
    if OPT.get("layout", False):
        a, b = cut(hq); c, d = cut(hk)
        out += a + [I("s_branch K_hq_rest")] + c + [I("s_branch K_hkv_rest")]
        out += part(pro + ch, compute("q"), "K_comp:")
        out += part(pro + ch, compute("kv"), "K_kv:")
        out += [I("K_hq_rest:")] + b + [I("K_hkv_rest:")] + d
    else:
        out += hq + hk
        out += part(pro + ch, compute("q"), "K_comp:")
        out += part(pro + ch, compute("kv"), "K_kv:")
    out.append(I("K_END:")); out.append(I("s_endpgm"))
    return out

def build(path):
    k = gen_all()
    print("K", stats(k), file=sys.stderr)
    ref = open(f"cdna_kernels/{NAME}.s.ref").read().split("\n")
    hdr = [l for l in ref if l.startswith(";") and "@launch" not in l and "Override" not in l and "grid=ceil" not in l]
    txt = "\n".join(hdr) + "\n"
    txt += f"; @launch grid=(256,1,1) block=(768,1,1) lds=163840\n"
    txt += '.amdgcn_target "amdgcn-amd-amdhsa--gfx950"\n.text\n'
    txt += f".globl {K1}\n.p2align 8\n.type {K1},@function\n{K1}:\n" + render(k)
    txt += f""".section .rodata,"a"
.p2align 6
.amdhsa_kernel {K1}
  .amdhsa_next_free_vgpr {NVG1}
  .amdhsa_next_free_sgpr 102
  .amdhsa_accum_offset {NVG1}
  .amdhsa_group_segment_fixed_size 0
  .amdhsa_kernarg_size 88
  .amdhsa_user_sgpr_count 2
  .amdhsa_user_sgpr_kernarg_segment_ptr 1
  .amdhsa_system_sgpr_workgroup_id_x 1
.end_amdhsa_kernel
"""
    open(path, "w").write(txt)

if __name__ == "__main__":
    for a in sys.argv[2:]:
        k, v = a.split("=")
        OPT[k] = {"True": True, "False": False}.get(v, v.replace("_", " ") if k.endswith("flags") else v)
    build(sys.argv[1] if len(sys.argv) > 1 else f"cdna_kernels/{NAME}.s")
```

```python
import sys, os, struct
sys.path.insert(0, os.path.dirname(os.path.abspath(__file__)))
from dsl import *

NAME = "parallel_sum__linear_kernel_hedgehog__geglu_ffn__prompt"
K1 = NAME + "_kernel"
K2 = "k2_kernel"

HF_OFF = 0
KVP_OFF = 0xB00000
PHF_OFF = 0x1000000
WS_SIZE = 0x1400000
NKS = 144

OPT = dict(mimic_ffn=False, hf_flags=" sc1", k2d="8", prefetch=True)

def f32(x): return "0x%08x" % struct.unpack("<I", struct.pack("<f", x))[0]
def vr(a, n=4): return f"v[{a}:{a+n-1}]"
def ar(a, n=4): return f"a[{a}:{a+n-1}]"
MF = "v_mfma_f32_32x32x16_bf16"
MF16 = "v_mfma_f32_16x16x32_bf16"

def srd(S, d, lo, nbytes):
    S.e(f"s_mov_b32 s{d}, s{lo}\ns_mov_b32 s{d+1}, s{lo+1}\ns_mov_b32 s{d+2}, {nbytes}\ns_mov_b32 s{d+3}, 0x20000")

STAMP_REGS = [92, 94, 96, 98, 100, 28, 30, 4, 6, 8, 10, 12, 14, 16, 18, 20]
ST_OFF = 0xD00000
class Stamper:
    def __init__(self, regs=STAMP_REGS): self.n = 0; self.names = []; self.regs = regs
    def __call__(self, S, name, fine=False):
        if not OPT.get("stamps"): return
        if (OPT.get("stamps") == "fine") != fine and name != "end": return
        r = self.regs[self.n]; self.n += 1; self.names.append(name)
        S.e(f"{'s_memtime' if fine else 's_memrealtime'} s[{r}:{r+1}]")
    def flush(self, S, srd_s, base, vtmp, nwaves):
        if not OPT.get("stamps"): return
        S.e("s_waitcnt lgkmcnt(0)")
        for i in range(self.n): S.e(f"v_mov_b32 v{vtmp+i}, s{self.regs[i]}")
        S.e(f"s_mul_i32 s88, s2, {nwaves*64}\ns_lshl_b32 s89, s3, 6\ns_add_u32 s88, s88, s89\ns_add_u32 s88, s88, {base}\nv_mov_b32 v0, 0\ns_mov_b64 exec, 1")
        for i in range(0, 16, 4): S.e(f"buffer_store_dwordx4 v[{vtmp+i}:{vtmp+i+3}], v0, {srd_s}, s88 offen offset:{i*4}")
        if OPT.get("dbgst"):
            Stamper.uid = getattr(Stamper, "uid", 0) + 1
            S.e(f"s_lshl_b32 s88, s2, 4\ns_add_u32 s88, s88, s3\ns_cmp_lg_u32 s88, {OPT['dbgst']}\ns_cbranch_scc1 DBGST{Stamper.uid}")
            for i in range(1, self.n): S.e(f"v_sub_u32 v{vtmp+i}, v{vtmp+i}, v{vtmp}", opt=True)
            for i in range(0, 16, 4): S.e(f"buffer_store_dwordx4 v[{vtmp+i}:{vtmp+i+3}], v0, s[44:47], 0 offen offset:{i*4}", opt=True)
            S.e(f"DBGST{Stamper.uid}:")
        print("stamps", self.names, file=sys.stderr)

AREA = 12288
W0 = 98304; WS_ = 20480
MISC = 159744
WPHI = MISC
CNT = MISC + 2048
STATS_OFF = 0xC00000
REG2 = 18432
CSP = 147456; KVF = 147456 + 5120
PKO = 12288; VVO = 16384
NVG1 = 168

V_L = 1; V_L16 = 2; V_Z = 3
V_AX = 4; V_AT = 8
V_CSA = 13; V_PHA = 14; V_TMP = 15
V_RINV, V_SD = 16, 17
V_C0, V_C1, V_S2 = 18, 19, 20
BP = 24
XB = 28; AB = 36; ACC = 56; SC = 136
PT = 136; STV = 152
S_PF, S_X, S_OUT, S_WG, S_WU, S_WS, S_DBG, S_WQ, S_D1, S_WD, S_WO = 12, 24, 28, 32, 36, 40, 44, 48, 52, 56, 60
S_MT, S_C4, S_HL, S_HEAD, S_TYPE, S_XROW, S_AREA, S_D0L, S_H = 64, 65, 66, 67, 68, 69, 70, 71, 72
S_ODD = 73
S_T = 74
S_HH = 80
S_HFB = 82
S_U0, S_U12 = 83, 84
S_M = 85
S_SROW = 86
S_G = 87
M1 = "s[88:89]"; M2 = "s[90:91]"
HHM = f"s[{S_HH}:{S_HH+1}]"
t0, t1, t2, t3, t4, t5 = [f"s{S_T+i}" for i in range(6)]
tm = f"s{S_M}"
S_M64, S_N64, S_MT2 = 65, 66, 73
def sq(d): return f"s[{d}:{d+3}]"
STAMPR = [92, 94, 96, 100, 4, 6, 8, 10, 16, 18, 20, 22, 14]
import sys
if any('hfine2' in a for a in sys.argv): STAMPR = [92, 94, 96, 100, 4, 6, 12, 14, 16, 20, 22, 8, 18]
B_OWNMT = f"s_lshl_b32 {t2}, s{S_MT}, 5"
B_MT2 = f"s_lshl_b32 {t2}, s{S_MT2}, 5"
B_KV = f"s_lshl_b32 {t2}, s{S_HEAD}, 1\ns_add_u32 {t2}, {t2}, 1"

def bf16r(S, d, src):
    S.e(f"v_cvt_pk_bf16_f32 v{d}, {src}, {src}\nv_lshlrev_b32 v{d}, 16, v{d}")

def xhalf(S, op, x, t):
    S.e(f"v_mov_b32 v{t}, v{x}\nv_permlane32_swap_b32 v{t}, v{x}\n{op} v{x}, v{x}, v{t}")

def wave_sum(S, x, t):
    for m in ("quad_perm:[1,0,3,2]", "quad_perm:[2,3,0,1]", "row_half_mirror", "row_mirror"):
        S.e(f"v_add_f32_dpp v{x}, v{x}, v{x} {m} row_mask:0xf bank_mask:0xf")
    S.e(f"v_mov_b32 v{t}, v{x}\nv_permlane16_swap_b32 v{t}, v{x}\nv_add_f32 v{x}, v{x}, v{t}")
    xhalf(S, "v_add_f32", x, t)


MB_OFF = 0xE00000; MB_STRIDE = 4096 + 256
OST = CNT + 320; STL = 156672
TOK = CNT + 256
S_TOK = 98
def signal(tag, cnt_off, kind, lab, A, B, Cc, last, direct=None):
    G = Stream()
    if tag: G.wait_vm(*tag.split(","))
    if direct is not None: G.e(f"s_cmp_lg_u32 s3, {direct}\ns_cbranch_scc1 {lab}")
    else: G.e(f"""
    v_mov_b32 v{A}, {CNT + cnt_off}
    v_mov_b32 v{B}, 1
    s_mov_b64 exec, 1
    ds_add_rtn_u32 v{Cc}, v{A}, v{B}
    s_mov_b64 exec, -1
    v_readfirstlane_b32 {t1}, v{Cc}
    s_cmp_lg_u32 {t1}, {last}
    s_cbranch_scc1 {lab}
    """)
    if kind == "h":
        G.e(f"""
        s_and_b32 {t1}, s{S_MT}, 3
        s_lshl_b32 {t1}, {t1}, 1
        s_lshr_b32 {t2}, s{S_MT}, 2
        s_add_u32 {t1}, {t1}, {t2}
        s_mul_i32 {t1}, {t1}, {MB_STRIDE}
        s_bfe_u32 {t2}, s{S_SROW}, 0x50003
        s_lshl_b32 {t2}, {t2}, 2
        s_add_u32 {t1}, {t1}, {t2}
        s_add_u32 {t1}, {t1}, {MB_OFF}
        v_mul_u32_u24 v{Cc}, {8*MB_STRIDE}, v{V_L}
        v_mov_b32 v{B}, s{S_TOK}
        s_mov_b64 exec, 0xfffffff
        """, opt=True)
    else:
        G.e(f"""
        s_lshr_b32 {t1}, s{S_HEAD}, 2
        s_lshl_b32 {t1}, {t1}, 1
        s_and_b32 {t2}, s{S_HEAD}, 3
        s_lshl_b32 {t2}, {t2}, 6
        s_add_u32 {t1}, {t1}, {t2}
        s_mul_i32 {t1}, {t1}, {MB_STRIDE}
        s_lshl_b32 {t2}, s{S_MT}, 2
        s_add_u32 {t1}, {t1}, {t2}
        s_add_u32 {t1}, {t1}, {MB_OFF + 128}
        v_and_b32 v{Cc}, 3, v{V_L}
        v_lshlrev_b32 v{Cc}, 3, v{Cc}
        v_lshrrev_b32 v{A}, 2, v{V_L}
        v_add_u32 v{Cc}, v{Cc}, v{A}
        v_mul_u32_u24 v{Cc}, {MB_STRIDE}, v{Cc}
        v_mov_b32 v{B}, s{S_TOK}
        s_mov_b64 exec, 0xff
        """, opt=True)
    G.e(f"buffer_store_dword v{B}, v{Cc}, {sq(S_WS)}, {t1} offen sc1", opt=True)
    G.e(f"s_mov_b64 exec, -1", opt=True)
    G.e(f"{lab}:")
    return G

def tok_issue(G, lab, A, D, who):
    G.e(f"v_and_b32 v{A}, 7, v{V_L}\nv_lshlrev_b32 v{A}, 5, v{A}\ns_cmp_lg_u32 s3, {who}\ns_cbranch_scc1 {lab}")
    G.e(f"buffer_load_dword v{D}, v{A}, {sq(S_DBG)}, 0 offen sc1", opt=True)
    G.e(f"{lab}:")
def tok_fetch(lab, need_all, A, D, who=0, issued=False):
    G = Stream()
    G.e(f"s_cmp_lg_u32 s3, {who}\ns_cbranch_scc1 {lab}_ok")
    chk = (f"v_cmp_eq_u32_e64 {M1}, 0, v{D}\ns_cmp_eq_u64 {M1}, 0" if need_all else f"s_and_b32 {t2}, s2, 7\nv_readlane_b32 {t1}, v{D}, {t2}\ns_cmp_lg_u32 {t1}, 0")
    G.e(f"""
    {'' if issued else f'v_and_b32 v{A}, 7, v{V_L}'}
    {'' if issued else f'v_lshlrev_b32 v{A}, 5, v{A}'}
    s_mov_b32 {t3}, 0
    {f's_branch {lab}_chk' if issued else ''}
    {lab}_loop:
    buffer_load_dword v{D}, v{A}, {sq(S_DBG)}, 0 offen sc1
    {lab}_chk:
    s_waitcnt vmcnt(0)
    s_add_u32 {t3}, {t3}, 1
    {chk}
    s_cbranch_scc1 {lab}_wr
    s_sleep 16
    s_cmp_lt_u32 {t3}, 0x4000
    s_cbranch_scc1 {lab}_loop
    {lab}_wr:
    v_lshrrev_b32 v{A}, 3, v{A}
    v_add_u32 v{A}, {TOK}, v{A}
    ds_write_b32 v{A}, v{D}
    """, opt=True)
    G.e(f"{lab}_ok:")
    G.append(pseudo("forget_opt"))
    return G
def tok_read(G, sdst, idx_expr, A):
    G.e(f"{idx_expr}\ns_lshl_b32 {t0}, {t0}, 2\ns_add_u32 {t0}, {t0}, {TOK}\nv_mov_b32 v{A}, {t0}\nds_read_b32 v{A}, v{A}\nv_readfirstlane_b32 {sdst}, v{A}")

def tile_addrs(S, typ, AT, T):
    R, C, HH, NH = T + 1, T + 2, T + 3, T + 4
    S.e(f"""
    v_lshrrev_b32 v{HH}, 5, v{V_L}
    v_bfe_u32 v{NH}, v{V_L}, 4, 1
    v_bfe_u32 v{R}, v{V_L}, 2, 2
    v_and_b32 v{C}, 3, v{V_L}
    v_lshl_add_u32 v{T+5}, v{HH}, 3, v{R}
    v_lshlrev_b32 v{T+6}, 6, v{T+5}
    v_lshl_add_u32 v{T+8}, v{NH}, 2, v{C}
    v_add_u32 v{T+8}, s{S_ODD}, v{T+8}
    v_and_b32 v{T+8}, 7, v{T+8}
    v_lshl_add_u32 v{T+8}, v{T+8}, 3, v{T+6}
    """)
    if typ == "q":
        S.e(f"""
        v_add_u32 v{AT}, {W0 + 16384}, v{T+8}
        v_lshrrev_b32 v{T+6}, 1, v{C}
        v_and_b32 v{T+7}, 2, v{R}
        v_xor_b32 v{T+6}, v{T+6}, v{T+7}
        v_lshl_add_u32 v{T+6}, v{NH}, 2, v{T+6}
        v_lshlrev_b32 v{T+7}, 7, v{T+5}
        v_lshl_add_u32 v{T+7}, v{T+6}, 4, v{T+7}
        v_and_b32 v{T+6}, 1, v{C}
        v_lshl_add_u32 v{T+7}, v{T+6}, 3, v{T+7}
        v_lshl_add_u32 v{T+7}, v{NH}, 13, v{T+7}
        v_add_u32 v{AT+1}, {W0}, v{T+7}
        v_xor_b32 v{AT+2}, 32, v{AT+1}
        v_xor_b32 v{AT+3}, 64, v{AT+1}
        v_xor_b32 v{AT+4}, 0x60, v{AT+1}
        """)
    else:
        S.e(f"""
        v_add_u32 v{AT}, {W0}, v{T+8}
        v_lshl_add_u32 v{T+7}, v{C}, 3, v{T+6}
        v_mul_u32_u24 v{T+8}, 1056, v{NH}
        v_add_u32 v{AT+1}, v{T+7}, v{T+8}
        v_add_u32 v{AT+1}, {W0 + 2048}, v{AT+1}
        v_xor_b32 v{AT+2}, 32, v{AT+1}
        v_lshlrev_b32 v{T+6}, 5, v{T+5}
        v_lshl_add_u32 v{T+6}, v{C}, 3, v{T+6}
        v_mul_u32_u24 v{T+7}, 2176, v{NH}
        v_add_u32 v{AT+3}, v{T+6}, v{T+7}
        v_add_u32 v{AT+3}, {W0 + 16384}, v{AT+3}
        v_xor_b32 v{AT+4}, 0x80, v{AT+3}
        """)

def tile_read_args(typ, t, s, e):
    if typ == "q":
        return (0, s*1024 + e*256) if t == 0 else (t, s*2048 + e*512)
    if t == 0: return (0, s*4096 + e*256)
    if t == 1: return (0, s*4096 + 1024 + e*256)
    if t == 2: return (3 + e, s*512)
    return (t - 2, s*4096 + e*256)

def pk(S, op, d, srcs, neg=None):
    ops = []; lo = []; hi = []
    for kind, r in srcs:
        if kind == "p": assert r % 2 == 0; ops.append(vr(r, 2)); lo.append(0); hi.append(1)
        else: ops.append(vr(r & ~1, 2)); lo.append(r & 1); hi.append(r & 1)
    assert d % 2 == 0
    txt = f"v_pk_{op}_f32 {vr(d, 2)}, " + ", ".join(ops)
    if any(lo): txt += " op_sel:[" + ",".join(map(str, lo)) + "]"
    if not all(hi): txt += " op_sel_hi:[" + ",".join(map(str, hi)) + "]"
    if neg: txt += f" neg_lo:[{','.join(map(str, neg))}] neg_hi:[{','.join(map(str, neg))}]"
    S.e(txt)
    S[-1].opsel = False

def scale16(S, a):
    for i in range(0, 16, 2): pk(S, "mul", a + i, [("p", a + i), ("b", V_RINV)])

def geglu(S, a, T, unit_sgpr, unit_add):
    R = range(0, 8, 2)
    for i in R: pk(S, "mul", T + i, [("p", a + i), ("p", a + i)])
    for i in R: pk(S, "fma", T + i, [("p", T + i), ("b", V_C1), ("b", V_C0)])
    for i in R: pk(S, "mul", T + i, [("p", T + i), ("p", a + i)])
    for i in range(8): S.e(f"v_exp_f32 v{T+i}, v{T+i}")
    for i in R: pk(S, "mul", a + i, [("p", a + i), ("p", a + 8 + i)])
    for i in R: pk(S, "fma", T + i, [("p", T + i), ("b", V_S2), ("b", V_S2)])
    for i in range(8): S.e(f"v_rcp_f32 v{T+i}, v{T+i}")
    for i in R: pk(S, "mul", a + i, [("p", a + i), ("p", T + i)])
    for i in range(4): S.e(f"v_cvt_pk_bf16_f32 v{T+8+i}, v{a+2*i}, v{a+2*i+1}")
    S.e(f"s_add_u32 s{S_G}, s{unit_sgpr}, {unit_add * 1024}")
    S.e(f"buffer_store_dwordx4 {vr(T+8)}, v{V_L16}, {sq(S_WS)}, s{S_G} offen{OPT['hf_flags']}", tag="hst")

def softmax14(S, P, E, T):
    N = 14; R = range(0, N, 2)
    for i in range(7): S.e(f"v_cvt_pk_bf16_f32 v{E+i}, v{P+2*i}, v{P+2*i+1}")
    for i in range(7): S.e(f"v_lshlrev_b32 v{P+2*i}, 16, v{E+i}\nv_and_b32 v{P+2*i+1}, 0xffff0000, v{E+i}")
    L = T + 4
    S.e(f"v_mov_b32 v{L}, {f32(1.4426950408889634)}")
    MX, MN = T, T + 1
    S.e(f"v_max3_f32 v{MX}, v{P}, v{P+1}, v{P+2}\nv_min3_f32 v{MN}, v{P}, v{P+1}, v{P+2}")
    for i in range(3, 13, 2):
        S.e(f"v_max3_f32 v{MX}, v{MX}, v{P+i}, v{P+i+1}\nv_min3_f32 v{MN}, v{MN}, v{P+i}, v{P+i+1}")
    S.e(f"v_max_f32 v{MX}, v{MX}, v{P+13}\nv_min_f32 v{MN}, v{MN}, v{P+13}")
    S.e(f"v_mov_b32 v{T+2}, v{MX}\nv_mov_b32 v{T+3}, v{MN}\nv_permlane32_swap_b32 v{T+2}, v{MX}\nv_permlane32_swap_b32 v{T+3}, v{MN}")
    S.e(f"v_max_f32 v{MX}, v{MX}, v{T+2}\nv_min_f32 v{MN}, v{MN}, v{T+3}")
    pk(S, "mul", T, [("p", T), ("b", L)])
    for i in R: pk(S, "fma", E + i, [("p", P + i), ("b", L), ("b", MX)], neg=[0, 0, 1])
    for i in R: pk(S, "fma", P + i, [("p", P + i), ("b", L), ("b", MN)], neg=[1, 0, 0])
    for i in range(N): S.e(f"v_exp_f32 v{E+i}, v{E+i}")
    for i in range(N): S.e(f"v_exp_f32 v{P+i}, v{P+i}")
    pk(S, "add", T, [("p", E), ("p", E + 2)]); pk(S, "add", T + 2, [("p", P), ("p", P + 2)])
    for i in range(4, N, 2):
        pk(S, "add", T, [("p", T), ("p", E + i)]); pk(S, "add", T + 2, [("p", T + 2), ("p", P + i)])
    SP, SM = T, T + 1
    S.e(f"v_add_f32 v{SP}, v{T}, v{T+1}\nv_add_f32 v{SM}, v{T+2}, v{T+3}")
    S.e(f"v_mov_b32 v{T+2}, v{SP}\nv_mov_b32 v{T+3}, v{SM}\nv_permlane32_swap_b32 v{T+2}, v{SP}\nv_permlane32_swap_b32 v{T+3}, v{SM}")
    pk(S, "add", T, [("p", T), ("p", T + 2)])
    S.e(f"v_rcp_f32 v{SP}, v{SP}\nv_rcp_f32 v{SM}, v{SM}")
    for i in R: pk(S, "mul", E + i, [("p", E + i), ("b", SP)])
    for i in R: pk(S, "mul", P + i, [("p", P + i), ("b", SM)])
    for i in range(7): S.e(f"v_cvt_pk_bf16_f32 v{E+i}, v{E+2*i}, v{E+2*i+1}")
    for i in range(7): S.e(f"v_cvt_pk_bf16_f32 v{E+8+i}, v{P+2*i}, v{P+2*i+1}")
    S.e(f"v_mov_b32 v{E+7}, 0\nv_mov_b32 v{E+15}, 0")

def stats_consts(S):
    S.e(f"""
    v_mov_b32 v{BP}, v{V_RINV}
    v_mov_b32 v{BP+1}, v{V_RINV}
    v_mov_b32 v{BP+2}, v{V_RINV}
    v_mov_b32 v{BP+3}, v{V_RINV}
    v_rcp_f32 v{V_RINV}, v{V_SD}
    v_mul_f32 v{V_S2}, v{V_SD}, v{V_SD}
    v_mul_f32 v{V_C0}, {f32(-2.302208198)}, v{V_RINV}
    v_mul_f32 v{V_C1}, v{V_RINV}, v{V_RINV}
    v_mul_f32 v{V_C1}, v{V_C1}, v{V_C0}
    v_mul_f32 v{V_C1}, {f32(0.044715)}, v{V_C1}
    """)


def tagpoll(G, lab, A, D, soff, opt=False, first_issued=False, sleep=None):
    if first_issued:
        G.e(f"v_cmp_eq_u32_e64 {M1}, -1, v{D}\ns_mov_b32 {t3}, 0\ns_cmp_eq_u64 {M1}, 0\ns_cbranch_scc1 {lab}_ok")
        opt = True
    else:
        G.e(f"s_mov_b32 {t3}, 0")
    G.e(f"""
    {lab}_loop:
    buffer_load_dword v{D}, v{A}, {sq(S_WS)}, {soff} offen sc1
    s_waitcnt vmcnt(0)
    v_cmp_eq_u32_e64 {M1}, -1, v{D}
    s_add_u32 {t3}, {t3}, 1
    s_cmp_eq_u64 {M1}, 0
    s_cbranch_scc1 {lab}_ok
    s_sleep {sleep if sleep else OPT.get('sleep', 4)}
    s_cmp_lt_u32 {t3}, 0x8000
    s_cbranch_scc1 {lab}_loop
    """, opt=opt)
    G.e(f"{lab}_ok:")

def umax_tree(G, regs, T, opt=False):
    G.e(f"v_max3_u32 v{T}, v{regs[0]}, v{regs[1]}, v{regs[2]}", opt=opt)
    i = 3
    while i + 1 < len(regs):
        G.e(f"v_max3_u32 v{T}, v{T}, v{regs[i]}, v{regs[i+1]}", opt=opt); i += 2
    if i < len(regs): G.e(f"v_max_u32 v{T}, v{T}, v{regs[i]}", opt=opt)

def prologue():
    S = Stream()
    S.e(f"""
    s_cmp_ge_u32 s2, 256
    s_cbranch_scc1 K_END
    {'s_memrealtime s[92:93]' if OPT.get('stamps') else ''}
    s_load_dwordx16 s[4:19], s[0:1], 0
    s_load_dwordx4 s[20:23], s[0:1], 72
    s_load_dwordx2 s[{S_OUT}:{S_OUT+1}], s[0:1], 64
    v_lshrrev_b32 v{PT}, 6, v0
    v_and_b32 v{V_L}, 63, v0
    v_readfirstlane_b32 s3, v{PT}
    v_lshlrev_b32 v{V_L16}, 4, v{V_L}
    v_mov_b32 v{V_Z}, 0
    s_and_b32 {t0}, s2, 7
    s_lshr_b32 {t1}, s2, 3
    s_and_b32 s{S_MT}, {t0}, 1
    s_lshl_b32 s{S_MT}, s{S_MT}, 2
    s_and_b32 {t2}, {t1}, 3
    s_add_u32 s{S_MT}, s{S_MT}, {t2}
    s_lshr_b32 s{S_C4}, {t0}, 1
    s_lshr_b32 {t1}, {t1}, 2
    s_and_b32 s{S_TYPE}, {t1}, 1
    s_lshr_b32 s{S_HL}, {t1}, 1
    s_lshl_b32 s{S_HEAD}, s{S_C4}, 2
    s_add_u32 s{S_HEAD}, s{S_HEAD}, s{S_HL}
    s_and_b32 s{S_ODD}, s{S_HEAD}, 1
    s_lshl_b32 {t2}, s{S_MT}, 2
    s_add_u32 {t2}, {t2}, s{S_C4}
    s_lshl_b32 {t2}, {t2}, 3
    s_add_u32 {t2}, {t2}, {t1}
    s_lshl_b32 {t2}, {t2}, 3
    s_and_b32 {t3}, s3, 7
    s_add_u32 s{S_SROW}, {t2}, {t3}
    s_mov_b32 s{S_HH}, 0
    s_mov_b32 s{S_HH+1}, -1
    s_mul_i32 {t0}, s{S_C4}, 896
    s_lshl_b32 {tm}, s{S_HL}, 7
    s_add_u32 {t3}, {t0}, {tm}
    s_add_u32 {t0}, {t0}, 512
    s_mul_i32 {t1}, s{S_HL}, 3
    s_and_b32 {t2}, s{S_HL}, 1
    s_add_u32 {t5}, {t1}, {t2}
    s_lshl_b32 {t2}, {t2}, 1
    s_add_u32 {t1}, {t1}, 2
    s_sub_u32 {t1}, {t1}, {t2}
    s_lshl_b32 {t1}, {t1}, 5
    s_add_u32 {t1}, {t1}, {t0}
    s_lshl_b32 {t5}, {t5}, 5
    s_add_u32 {t0}, {t0}, {t5}
    s_cmp_eq_u32 s{S_TYPE}, 1
    s_cselect_b32 s{S_U0}, {t1}, {t3}
    s_cselect_b32 s{S_U12}, {t0}, {t3}
    s_cmp_lt_u32 s3, 8
    s_cbranch_scc1 K_comp
    """)
    return S

def p2_ids(S):
    S.e(f"""
    s_and_b32 {t0}, s2, 7
    s_lshr_b32 {t1}, s2, 3
    s_and_b32 {t2}, {t0}, 1
    s_lshl_b32 {t2}, {t2}, 2
    s_lshr_b32 {t0}, {t0}, 1
    s_add_u32 s{S_MT2}, {t0}, {t2}
    s_lshl_b32 s{S_M64}, s{S_MT2}, 2
    s_and_b32 {t2}, {t1}, 3
    s_add_u32 s{S_M64}, s{S_M64}, {t2}
    s_lshr_b32 s{S_N64}, {t1}, 2
    """)
def p2_a_voffsets(S, VD, VO, VOM, T):
    S.e(f"""
    v_lshrrev_b32 v{T}, 3, v{V_L}
    v_and_b32 v{T+1}, 7, v{V_L}
    v_bfe_u32 v{T+2}, v{V_L}, 4, 1
    v_lshlrev_b32 v{T+2}, 2, v{T+2}
    v_xor_b32 v{T+1}, v{T+1}, v{T+2}
    s_lshl_b32 {t0}, s{S_N64}, 7
    v_lshlrev_b32 v{T+1}, 4, v{T+1}
    v_add_u32 v{T+1}, {t0}, v{T+1}
    v_mul_u32_u24 v{VD}, 896, v{T}
    v_add_u32 v{VD}, v{VD}, v{T+1}
    """)
    if VO is not None:
        S.e(f"""
        v_lshrrev_b32 v{T+2}, 2, v{T}
        v_and_b32 v{T+3}, 3, v{T}
        v_mad_u32_u24 v{T+2}, v{T+2}, 14, v{T+3}
        v_mul_u32_u24 v{VO}, 896, v{T+2}
        v_add_u32 v{VO}, v{VO}, v{T+1}
        v_cmp_lt_u32_e64 {M1}, 1, v{T+3}
        v_mov_b32 v{T+2}, 0x7f000000
        v_cndmask_b32_e64 v{VOM}, v{VO}, v{T+2}, {M1}
        """)

def hsync(S, lab, cnt_off, target, A, B):
    S.wait_lgkm()
    S.e(f"""
    v_mov_b32 v{A}, {CNT + cnt_off}
    v_mov_b32 v{B}, 1
    s_mov_b64 exec, 1
    ds_add_u32 v{A}, v{B}
    s_mov_b64 exec, -1
    {lab}:
    ds_read_b32 v{B}, v{A}
    s_waitcnt lgkmcnt(0)
    v_readfirstlane_b32 {t1}, v{B}
    s_cmp_lt_u32 {t1}, {target}
    s_cbranch_scc1 {lab}
    """)

def helper_head():
    S = Stream(); T = PT
    S.e("K_helper:")
    S.e(f"s_setprio {OPT.get('hprio', 3)}")
    S.e(f"""
    s_sub_u32 s{S_H}, s3, 8
    s_lshl_b32 {t0}, s{S_MT}, 2
    s_add_u32 {t0}, {t0}, s{S_H}
    s_mul_i32 s{S_XROW}, {t0}, {64*896}
    s_mul_i32 s{S_AREA}, s{S_H}, {2*AREA}
    v_lshrrev_b32 v{T+7}, 3, v{V_L}
    v_mul_u32_u24 v{T}, 896, v{T+7}
    v_and_b32 v{T+8}, 7, v{V_L}
    v_lshrrev_b32 v{T+2}, 4, v{V_L}
    v_xor_b32 v{T+1}, v{T+8}, v{T+2}
    v_lshl_add_u32 v4, v{T+1}, 4, v{T}
    v_xor_b32 v5, 64, v4
    s_mul_i32 {t1}, s{S_HEAD}, 56
    s_lshl_b32 {t2}, s{S_ODD}, 3
    s_sub_u32 {t1}, {t1}, {t2}
    v_lshrrev_b32 v{T}, 2, v{V_L}
    v_and_b32 v{T+1}, 3, v{V_L}
    v_mul_u32_u24 v{T+4}, 2688, v{T}
    v_lshl_add_u32 v{T+4}, v{T+1}, 4, v{T+4}
    s_mul_i32 {tm}, s{S_H}, {16*2688}
    s_add_u32 {t1}, {t1}, {tm}
    v_add_u32 v6, {t1}, v{T+4}
    s_waitcnt lgkmcnt(0)
    """)
    srd(S, S_X, 4, 2048 * 896); srd(S, S_WQ, 6, 448 * 2688); srd(S, S_WG, 14, 448 * 3584); srd(S, S_WU, 16, 448 * 3584)
    S.e(f"s_cmp_eq_u32 s{S_TYPE}, 1\ns_cbranch_scc1 K_hkv")
    return S

def helper(typ):
    q = typ == "q"
    S = Stream(); T = PT
    S.e(f"K_h{typ}:")
    global HST
    HST = Stamper(STAMPR); HST.n = 1; HST.names = ["start"]
    V_XE, V_XO, V_DQ, V_DG, V_DU, V_DS = 4, 5, 6, 7, 8, 9
    V_AC = 10; V_PF = 16
    CA = 18; CU = 23; CT = 34
    if q:
        S.e(f"""
        v_bfe_u32 v{T+2}, v{V_L}, 4, 1
        v_lshlrev_b32 v{T+2}, 1, v{T+2}
        v_xor_b32 v{T+2}, v{T+2}, v{T+8}
        v_mul_u32_u24 v{T+3}, 3584, v{T+7}
        v_lshl_add_u32 v{T+2}, v{T+2}, 4, v{T+3}
        s_mul_i32 {tm}, s{S_H}, {16*3584}
        s_add_u32 {tm}, {tm}, s{S_U0}
        v_add_u32 v{V_DG}, {tm}, v{T+2}
        v_xor_b32 v{V_DU}, 64, v{V_DG}
        """)
    else:
        S.e(f"""
        v_mul_u32_u24 v{T+3}, 3584, v{T}
        v_lshl_add_u32 v{V_DG}, v{T+1}, 4, v{T+3}
        s_mul_i32 {tm}, s{S_H}, {16*3584}
        s_add_u32 {tm}, {tm}, s{S_U12}
        v_add_u32 v{V_DG}, {tm}, v{V_DG}
        v_xor_b32 v{V_DU}, 32, v{V_DG}
        s_lshr_b32 {t2}, s{S_H}, 1
        s_cmp_eq_u32 {t2}, 0
        s_cselect_b32 s{S_D1}, s14, s16
        s_cselect_b32 s{S_D1+1}, s15, s17
        s_mov_b32 s{S_D1+2}, {448*3584}
        s_mov_b32 s{S_D1+3}, 0x20000
        s_lshl_b32 {t2}, {t2}, 2
        v_lshrrev_b32 v{T+5}, 1, v{V_L}
        v_xor_b32 v{T+5}, {t2}, v{T+5}
        v_mul_u32_u24 v{T+5}, 3584, v{T+5}
        v_and_b32 v{T+6}, 1, v{V_L}
        v_lshl_add_u32 v{T+5}, v{T+6}, 4, v{T+5}
        s_and_b32 {t2}, s{S_H}, 1
        s_mul_i32 {t2}, {t2}, {32*3584}
        s_add_u32 {t2}, {t2}, s{S_U0}
        v_add_u32 v{V_DS}, {t2}, v{T+5}
        """)
    S.e(f"s_lshl_b32 s{S_D0L}, s{S_H}, 10\ns_add_u32 s{S_D0L}, s{S_D0L}, {W0}\ns_lshl_b32 s{S_G}, s{S_H}, {11 if q else 12}\ns_add_u32 s{S_G}, s{S_G}, {W0}")
    def dma(c, lo=0, hi=13):
        sb = (c % 3) * WS_
        L = []
        def one(m0expr, soff, v, srdreg): L.append((m0expr, soff, v, srdreg))
        if q:
            one(f"s{S_D0L}, {sb + 16384}", f"s_mov_b32 {tm}, {c*172032}", V_DQ, S_WQ)
            for rg in range(2):
                one(f"s{S_G}, {sb + rg*1024}", f"s_mov_b32 {tm}, {c*229376 + rg*8*3584}", V_DG, S_WG)
                one(f"s{S_G}, {sb + 8192 + rg*1024}", f"s_mov_b32 {tm}, {c*229376 + rg*8*3584}", V_DU, S_WU)
        else:
            one(f"s{S_G}, {sb}", f"s_mov_b32 {tm}, {c*172032 + 896}", V_DQ, S_WQ)
            one(f"s{S_G}, {sb + 1024}", f"s_mov_b32 {tm}, {c*172032 + 1792}", V_DQ, S_WQ)
            one(f"s{S_G}, {sb + 2048}", f"s_mov_b32 {tm}, {c*229376}", V_DG, S_WG)
            one(f"s{S_G}, {sb + 3072}", f"s_mov_b32 {tm}, {c*229376}", V_DU, S_WU)
            one(f"s{S_D0L}, {sb + 16384}", f"s_mov_b32 {tm}, {c*229376}", V_DS, S_D1)
        for i in range(8):
            wv, qq = i >> 2, i & 3
            one(f"s{S_AREA}, {wv*AREA + (c % 3)*4096 + qq*1024}", f"s_add_u32 {tm}, s{S_XROW}, {(wv*32 + qq*8)*896 + c*128}", V_XO if qq & 1 else V_XE, S_X)
        if OPT.get('xfirst') and c == 0: L = L[5:] + L[:5]
        for (m0expr, soff, v, srdreg) in L[lo:hi]:
            S.e(f"s_add_u32 m0, {m0expr}\n{soff}")
            fl = OPT.get("x_flags", "") if srdreg == S_X else OPT.get("w_flags", "")
            S.e(f"buffer_load_dwordx4 v{v}, {sq(srdreg)}, {tm} offen{fl} lds", tag=f"d{c}")
    plan = [int(x) for x in OPT.get("dplan" + typ, OPT.get("dplan", "23,13,13,14,14,14")).split(",")]
    pos = [0]
    def issue(n, limit_chunk):
        while n > 0 and pos[0] < 91 and pos[0] // 13 <= limit_chunk:
            c, i = divmod(pos[0], 13)
            dma(c, i, i + 1); pos[0] += 1; n -= 1
    issue(13, 2)
    def setup2():
        tile_addrs(S, typ, V_AC, 60)
        for t in range(5):
            stride = (1024 if t == 0 else 2048) if q else (512 if t >= 3 else 4096)
            S.e(f"s_mul_i32 {t0}, s{S_H}, {stride}\nv_add_u32 v{V_AC+t}, {t0}, v{V_AC+t}")
        for i in range(5): S.e(f"v_mov_b32 v{CA+i}, 0")
    if not OPT.get('late2'): setup2()
    issue(plan[0] - 13, 2)
    def colsum_rd(c):
        for t in range(5):
            for e in range(2):
                a, imm = tile_read_args(typ, t, 0, e)
                S.e(f"ds_read_b64_tr_b16 {vr(CT + 20*(c % 5) + 4*t + 2*e, 2)}, v{V_AC+a} offset:{(c % 3)*WS_ + imm}")
    hb = [0]
    CM = OPT.get("csmode", "mfma")
    if CM == "mfma":
        for i in range(20): S.e(f"v_mov_b32 v{140+i}, 0")
        S.e("v_mov_b32 v134, 0x3f803f80\nv_mov_b32 v135, 0x3f803f80")
    def colsum_add(nhalf):
        if CM != "valu":
            for _ in range(nhalf):
                c, hf = hb[0] >> 1, hb[0] & 1; hb[0] += 1
                for t in range(5):
                    src = CT + 20*(c % 5) + 4*t + 2*hf
                    if CM == "mfma": S.e(f"v_mfma_f32_4x4x4_16b_bf16 {vr(140+4*t)}, v[134:135], {vr(src, 2)}, {vr(140+4*t)}")
                    else: S.e(f"v_dot2c_f32_bf16 v{CA+t}, 0x3f803f80, v{src}")
                if CM == "dot":
                    for t in range(5): S.e(f"v_dot2c_f32_bf16 v{CA+t}, 0x3f803f80, v{CT + 20*(c % 5) + 4*t + 2*hf + 1}")
            return
        for _ in range(nhalf):
            c, hf = hb[0] >> 1, hb[0] & 1; hb[0] += 1
            for j in (2*hf, 2*hf + 1):
                src = CT + 20*(c % 5) + j
                for t in range(5): S.e(f"v_lshlrev_b32 v{CU+t}, 16, v{src + 4*t}")
                for t in range(5): S.e(f"v_and_b32 v{CU+5+t}, 0xffff0000, v{src + 4*t}")
                for t in range(5): S.e(f"v_add_f32 v{CA+t}, v{CA+t}, v{CU+t}")
                for t in range(5): S.e(f"v_add_f32 v{CA+t}, v{CA+t}, v{CU+5+t}")
    F2 = (lambda n: HST(S, n, fine=True)) if OPT.get('hfine2') else (lambda n: None)
    S.wait_vm("d0"); S.e("s_barrier")
    F2("b0")
    srd(S, S_WS, 22, WS_SIZE); srd(S, S_DBG, 20, 256)
    S.e(f"v_and_b32 v16, 7, v{V_L}\nv_lshlrev_b32 v16, 5, v16")
    S.e(f"s_cmp_eq_u32 s3, 8\ns_cselect_b32 {t0}, 0, 0x40000000")
    S.e(f"buffer_load_dword v17, v16, {sq(S_DBG)}, {t0} offen sc1", tag="tok")
    if OPT.get('late2'):
        issue(6, 2); setup2(); colsum_rd(0); issue(plan[1] - 6, 2)
    else:
        colsum_rd(0); issue(plan[1], 2)
    F2("p1")
    S.wait_lgkm(); S.wait_vm("d1"); F2("l1"); S.e("s_barrier")
    colsum_rd(1); issue(plan[2], 3)
    srd(S, S_WO, 8, 16 * 1568); srd(S, S_WD, 18, 1792 * 896)
    PZ = 160
    def poison():
        for i in range(4): S.e(f"v_mov_b32 v{PZ+i}, -1")
        if q:
            S.e(f"s_lshl_b32 {t0}, s{S_MT}, 2\ns_add_u32 {t0}, {t0}, s{S_H}\ns_mul_i32 {t0}, {t0}, {2*NKS*1024}\ns_lshl_b32 {t1}, s{S_HEAD}, 11\ns_add_u32 {t0}, {t0}, {t1}\ns_add_u32 {t0}, {t0}, {112*1024}\ns_add_u32 {t1}, {t0}, {NKS*1024}")
            for so in (t0, t1):
                for u in range(2): S.e(f"buffer_store_dwordx4 {vr(PZ)}, v{V_L16}, {sq(S_WS)}, {so} offen offset:{u*1024} sc1", tag="poi")
        else:
            S.e(f"s_lshl_b32 {t0}, s{S_HEAD}, 3\ns_add_u32 {t0}, {t0}, s{S_MT}\ns_lshl_b32 {t0}, {t0}, 2\ns_add_u32 {t0}, {t0}, s{S_H}\ns_lshl_b32 {t0}, {t0}, 11\ns_add_u32 {t0}, {t0}, {KVP_OFF}")
            for u in range(2): S.e(f"buffer_store_dwordx4 {vr(PZ)}, v{V_L16}, {sq(S_WS)}, {t0} offen offset:{u*1024} sc1", tag="poi")
    S.e(f"""
    s_and_b32 {t2}, s2, 7
    v_readlane_b32 s{S_TOK}, v17, {t2}
    s_mov_b32 {t3}, 0
    s_cmp_eq_u32 s3, 8
    s_cselect_b32 s{S_TOK}, s{S_TOK}, 1
    s_cmp_lg_u32 s{S_TOK}, 0
    s_cbranch_scc1 K_h{typ}_tok
    """)
    S.e(f"""
    K_h{typ}_tokl:
    s_sleep 16
    buffer_load_dword v17, v16, {sq(S_DBG)}, 0 offen sc1
    s_waitcnt vmcnt(0)
    v_readlane_b32 s{S_TOK}, v17, {t2}
    s_add_u32 {t3}, {t3}, 1
    s_cmp_lg_u32 s{S_TOK}, 0
    s_cbranch_scc1 K_h{typ}_tok
    s_cmp_lt_u32 {t3}, 0x4000
    s_cbranch_scc1 K_h{typ}_tokl
    """, opt=True)
    S.e(f"K_h{typ}_tok:")
    S.append(pseudo("forget_opt"))
    S.e(f"""
    v_lshrrev_b32 v{PZ+4}, 2, v16
    v_add_u32 v{PZ+4}, {OST}, v{PZ+4}
    ds_read_b64 {vr(PZ+4, 2)}, v{PZ+4}
    v_mov_b32 v{PZ+6}, s{S_TOK}
    v_mov_b32 v{PZ+7}, 0
    s_and_b32 {t0}, s{S_SROW}, 0xfffffff8
    s_lshl_b32 {t0}, {t0}, 4
    s_add_u32 {t0}, {t0}, {STATS_OFF}
    s_cmp_eq_u32 s3, 8
    s_cselect_b32 {t0}, {t0}, 0x40000000
    s_mov_b64 exec, 0xff
    buffer_store_dwordx4 {vr(PZ+4)}, v{V_L16}, {sq(S_WS)}, {t0} offen sc1
    s_mov_b64 exec, -1
    """)
    sched = dict(zip(range(2, 7), [int(x) for x in OPT.get('sched', '2,2,2,4,4').split(',')]))
    for c in range(2, 7):
        F = (lambda n: HST(S, n, fine=True)) if (c in (2, 3) and OPT.get('hfine')) else (lambda n: None)
        if c == 6: S.extend(tok_fetch(f"K_h{typ}_tk2", True, 16, 17, who=8))
        F("pre")
        if c <= 4: F2(f"p{c}")
        S.wait_lgkm(); S.wait_vm(f"d{c}")
        if c <= 4: F2(f"l{c}")
        F("landed")
        S.e("s_barrier")
        F("bar")
        if c in (4, 5): F2(f"b{c}")
        issue(plan[c + 1] if c + 1 < len(plan) else 99, c + 2)
        if c == 4: poison()
        if c == 5: S.wait_vm("poi")
        if c == 6 and not q: S.extend(signal(None, 4, "kp", f"K_h{typ}_nosigkp", 164, 165, 166, 3, direct=8))
        if c == 5:
            S.e(f"s_lshl_b32 s{S_TOK+1}, s{S_MT}, 2\ns_add_u32 s{S_TOK+1}, s{S_TOK+1}, s{S_H}\ns_lshl_b32 s{S_TOK+1}, s{S_TOK+1}, 10\ns_add_u32 s{S_TOK+1}, s{S_TOK+1}, {STATS_OFF}")
            S.e(f"buffer_load_dwordx3 v[160:162], v{V_L16}, {sq(S_WS)}, s{S_TOK+1} offen sc1")
        if c == 6:
            tok_read(S, t4, f"s_lshl_b32 {t0}, s{S_H}, 1\ns_lshr_b32 {t1}, s{S_MT}, 2\ns_add_u32 {t0}, {t0}, {t1}", 163)
            S.e(f"v_cmp_ne_u32_e64 {M1}, {t4}, v162\ns_mov_b32 {t3}, 0\ns_cmp_eq_u64 {M1}, 0\ns_cbranch_scc1 K_h{typ}_stok")
            S.e(f"""
            K_h{typ}_st:
            s_sleep 8
            buffer_load_dwordx3 v[160:162], v{V_L16}, {sq(S_WS)}, s{S_TOK+1} offen sc1
            s_waitcnt vmcnt(0)
            v_cmp_ne_u32_e64 {M1}, {t4}, v162
            s_add_u32 {t3}, {t3}, 1
            s_cmp_eq_u64 {M1}, 0
            s_cbranch_scc1 K_h{typ}_stok
            s_cmp_lt_u32 {t3}, 0x8000
            s_cbranch_scc1 K_h{typ}_st
            """, opt=True)
            S.e(f"K_h{typ}_stok:")
            S.append(pseudo("forget_opt"))
            S.e(f"v_lshlrev_b32 v163, 3, v{V_L}\ns_lshl_b32 {t0}, s{S_H}, 9\ns_add_u32 {t0}, {t0}, {STL}\nv_add_u32 v163, {t0}, v163\nds_write_b64 v163, v[160:161]")
        assert pos[0] >= min(91, 13 * (c + 2)), (c, pos[0])
        F("dma")
        if c == int(OPT.get('phic', 5)):
            for i in range(2):
                S.e(f"""
                v_lshrrev_b32 v{T+28}, 4, v{V_L}
                s_lshl_b32 {t0}, s{S_H}, 3
                s_add_u32 {t0}, {t0}, {4*i}
                v_add_u32 v{T+28}, {t0}, v{T+28}
                v_bfe_u32 v{T+29}, v{V_L}, 3, 1
                v_and_b32 v{T+30}, 7, v{V_L}
                v_mad_u32_u24 v{T+29}, v{T+29}, 7, v{T+30}
                v_mad_u32_u24 v{T+29}, v{T+28}, 14, v{T+29}
                v_lshlrev_b32 v{T+29}, 2, v{T+29}
                v_cmp_eq_u32_e64 {M1}, 7, v{T+30}
                s_cmp_eq_u32 {t0}, 28
                s_cselect_b64 {M1}, -1, {M1}
                v_mov_b32 v{T+30}, 0x7fffff00
                v_cndmask_b32_e64 v{T+29}, v{T+29}, v{T+30}, {M1}
                s_mul_i32 {t1}, s{S_HEAD}, 1568
                s_lshl_b32 {t0}, {t0}, 6
                s_add_u32 m0, {t0}, {WPHI}
                """)
                S.e(f"buffer_load_dword v{T+29}, {sq(S_WO)}, {t1} offen lds", tag="phi")
        if c == int(OPT.get("pfc", 6)) and OPT["prefetch"]:
            S.e(f"""
            s_lshr_b32 {t0}, s2, 3
            s_lshl_b32 {t0}, {t0}, 2
            s_add_u32 {t0}, {t0}, s{S_H}
            s_lshl_b32 {t0}, {t0}, 14
            s_mov_b32 {t3}, {1792*896}
            s_cmp_lt_u32 {t0}, {t3}
            s_cselect_b32 s{S_PF}, s18, s10
            s_cselect_b32 s{S_PF+1}, s19, s11
            s_cselect_b32 s{S_PF+2}, {t3}, {448*896}
            s_mov_b32 s{S_PF+3}, 0x20000
            s_cselect_b32 {t3}, 0, {t3}
            s_sub_u32 {t0}, {t0}, {t3}
            v_lshlrev_b32 v{V_PF}, 7, v{V_L}
            s_add_u32 {t1}, {t0}, 0x2000
            """)
            S.e(f"buffer_load_dword v{T+27}, v{V_PF}, {sq(S_PF)}, {t0} offen\nbuffer_load_dword v{T+28}, v{V_PF}, {sq(S_PF)}, {t1} offen", tag="pf")
        if c >= 5:
            colsum_rd(c); colsum_add(sched[c])
        else:
            colsum_rd(c); colsum_add(sched[c])
    assert hb[0] == 14
    if CM == "mfma":
        for t in range(5): S.e(f"v_mov_b32 v{CA+t}, v{140+4*t}")
    S.e(f"s_lshl_b32 {t0}, s{S_H}, 2\ns_add_u32 {t0}, {t0}, {CSP}\nv_add_u32 v{T}, {t0}, v{V_L16}")
    for t in range(5): S.e(f"v_cvt_pk_bf16_f32 v{T+1+t}, v{CA+t}, v{CA+t}")
    for t in range(5): S.e(f"v_lshlrev_b32 v{T+1+t}, 16, v{T+1+t}")
    for t in range(5): S.e(f"v_sub_f32 v{T+1+t}, v{CA+t}, v{T+1+t}")
    for t in range(5): S.e(f"v_cvt_pk_bf16_f32 v{T+1+t}, v{CA+t}, v{T+1+t}")
    for t in range(5): S.e(f"ds_write_b32 v{T}, v{T+1+t} offset:{t*1024}")
    S.wait_vm("phi"); S.wait_lgkm()
    return S

def hpost(typ):
    q = typ == "q"
    S = Stream(); T = PT
    S.e(f"K_hpost_{typ}:")
    st = HST
    V_WD = 18
    p2_ids(S)
    p2_a_voffsets(S, V_WD, None, None, 60)
    S.e(f"""
    s_mul_i32 s{S_AREA}, s{S_H}, {2*REG2}
    s_and_b32 {t0}, s{S_H}, 1
    s_lshl_b32 {t0}, {t0}, 2
    s_lshr_b32 {t1}, s{S_H}, 1
    s_add_u32 {t0}, {t0}, {t1}
    s_mul_i32 s{S_XROW}, {t0}, {14*16*896}
    s_cmp_ge_u32 s2, 224
    s_cselect_b32 {t0}, 0x40000000, 0
    s_add_u32 s{S_XROW}, s{S_XROW}, {t0}
    """)
    def B1():
        S.e(f"s_barrier\ns_setprio {OPT.get('hprio2', 0)}")
        st(S, "B1")
    def adma(lo, hi):
        for i in range(lo, hi):
            for wv in range(2):
                for u in range(2):
                    S.e(f"s_add_u32 m0, s{S_AREA}, {wv*REG2 + i*2048 + u*1024}\ns_add_u32 {tm}, s{S_XROW}, {((wv*28 + i)*16 + 8*u)*896}")
                    S.e(f"buffer_load_dwordx4 v{V_WD}, {sq(S_WD)}, {tm} offen lds", tag="a1")
    if q:
        KO = 4; U = 5; PH = 100
        S.e(f"""
        s_lshl_b32 {t0}, s{S_H}, 11
        v_add_u32 v{KO}, {t0}, v{V_L16}
        v_and_b32 v{U+3}, 7, v{V_L}
        v_lshlrev_b32 v{U+3}, 13, v{U+3}
        v_add_u32 v{U+3}, 0x1e80, v{U+3}
        s_lshl_b32 {t0}, s{S_H}, 10
        s_add_u32 {t0}, {t0}, {KVF}
        v_add_u32 v{U}, {t0}, v{V_L16}
        v_add_u32 v{U+1}, {KVF}, v{V_L16}
        v_add_u32 v{U+2}, s{S_AREA}, v{V_L16}
        s_lshl_b32 {t0}, s{S_MT}, 2
        s_add_u32 {t0}, {t0}, s{S_H}
        s_mul_i32 s{S_HFB}, {t0}, {2*NKS*1024}
        s_lshl_b32 {t0}, s{S_HEAD}, 11
        s_add_u32 s{S_HFB}, s{S_HFB}, {t0}
        s_add_u32 s{S_HFB}, s{S_HFB}, {112*1024}
        s_lshl_b32 s{S_G}, s{S_HEAD}, 16
        s_add_u32 s{S_G}, s{S_G}, {KVP_OFF}
        """)
        B1(); adma(0, 6)
        S.wait_vm("a1")
        S.e(f"v_mov_b32 v12, {CNT + 20}\nv_mov_b32 v13, 1\ns_mov_b64 exec, 1\nds_add_u32 v12, v13\ns_mov_b64 exec, -1")
        S.e("s_barrier")
        st(S, "B2")
        for wv in range(2):
            for k in range(4): S.e(f"ds_read_b128 {vr(PH + 16*wv + 4*k)}, v{U+2} offset:{wv*REG2 + PKO + k*1024}")
        S.wait_lgkm()
        S.e(f"v_mov_b32 v12, {CNT + 12}\nv_mov_b32 v13, 1\ns_mov_b64 exec, 1\nds_add_u32 v12, v13\ns_mov_b64 exec, -1\ns_setprio 3")
        S.e(f"v_mov_b32 v14, {CNT + 16}\ns_cmp_lg_u32 s3, 8\ns_cbranch_scc1 K_hq_spin")
        G = Stream()
        G.e(f"""
        v_and_b32 v16, 7, v{V_L}
        v_lshrrev_b32 v17, 2, v16
        s_lshr_b32 {t0}, s{S_HEAD}, 2
        s_lshl_b32 {t0}, {t0}, 3
        s_add_u32 {t0}, {t0}, {TOK}
        v_lshlrev_b32 v17, 2, v17
        v_add_u32 v17, {t0}, v17
        ds_read_b32 v17, v17
        v_lshlrev_b32 v16, 2, v16
        s_mul_i32 {t2}, s2, {MB_STRIDE}
        s_add_u32 {t2}, {t2}, {MB_OFF + 128}
        s_mov_b32 {t3}, 0
        K_hq_kp:
        buffer_load_dword v{V_TMP}, v16, {sq(S_WS)}, {t2} offen sc1
        s_waitcnt vmcnt(0) lgkmcnt(0)
        v_cmp_ne_u32_e64 {M1}, v17, v{V_TMP}
        s_add_u32 {t3}, {t3}, 1
        s_cmp_eq_u64 {M1}, 0
        s_cbranch_scc1 K_hq_kpok
        s_sleep 8
        s_cmp_lt_u32 {t3}, 0x8000
        s_cbranch_scc1 K_hq_kp
        K_hq_kpok:
        """)
        tagpoll(G, "K_hq_pkv", U + 3, V_TMP, f"s{S_G}", opt=True, sleep=int(OPT.get("sleepkv", 8)))
        for x in G: x.opt = True
        S.extend(G)
        S.e(f"ds_write_b32 v14, v13\ns_branch K_hq_go", opt=True)
        S.e(f"""
        K_hq_spin:
        s_sleep 2
        ds_read_b32 v13, v14
        s_waitcnt lgkmcnt(0)
        v_readfirstlane_b32 {t1}, v13
        s_cmp_eq_u32 {t1}, 0
        s_cbranch_scc1 K_hq_spin
        """, opt=True)
        S.e("K_hq_go:")
        st(S, "kvrdy")
        KL = 20
        S.e(f"s_mov_b32 {t4}, 0\nK_hq_gather:\ns_mov_b32 {t0}, s{S_G}")
        for i in range(8):
            for e in range(2):
                S.e(f"buffer_load_dwordx4 {vr(KL + 8*i + 4*e)}, v{KO}, {sq(S_WS)}, {t0} offen offset:{e*1024} sc1")
            if i < 7: S.e(f"s_add_u32 {t0}, {t0}, 8192")
        umax_tree(S, list(range(KL, KL + 64)), V_TMP)
        S.e(f"""
        v_cmp_eq_u32_e64 {M1}, -1, v{V_TMP}
        s_add_u32 {t4}, {t4}, 1
        s_cmp_eq_u64 {M1}, 0
        s_cbranch_scc1 K_hq_gok
        s_cmp_lt_u32 {t4}, 0x1000
        s_cbranch_scc1 K_hq_gather
        K_hq_gok:
        """)
        for step in (1, 2, 4):
            for i in range(0, 8, 2*step):
                for j in range(0, 8, 2): pk(S, "add", KL+8*i+j, [("p", KL+8*i+j), ("p", KL+8*(i+step)+j)])
        for j in range(4): S.e(f"v_cvt_pk_bf16_f32 v{KL+8+j}, v{KL+2*j}, v{KL+2*j+1}")
        S.e(f"ds_write_b128 v{U}, {vr(KL+8)}")
        hsync(S, "K_hq_sync", 0, 4, 12, 13)
        st(S, "kvf")
        KF = 20; OO = [36, 52]; G2 = 68; RR = [84, 92]
        for k in range(4): S.e(f"ds_read_b128 {vr(KF + 4*k)}, v{U+1} offset:{k*1024}")
        for wv in range(2):
            for k in range(4): S.e(f"{MF} {vr(OO[wv],16)}, {vr(KF + 4*k)}, {vr(PH + 16*wv + 4*k)}, {'0' if k == 0 else vr(OO[wv],16)}")
        for wv in range(2):
            O = OO[wv]; R = RR[wv]
            bf16r(S, G2, f"v{O+14}")
            S.e(f"v_add_f32 v{G2}, {f32(1e-6)}, v{G2}")
            bf16r(S, G2, f"v{G2}")
            S.e(f"v_rcp_f32 v{G2}, v{G2}")
            for i in range(7): S.e(f"v_cvt_pk_bf16_f32 v{G2+1+i}, v{O+2*i}, v{O+2*i+1}")
            for i in range(7): S.e(f"v_lshlrev_b32 v{O+2*i}, 16, v{G2+1+i}\nv_and_b32 v{O+2*i+1}, 0xffff0000, v{G2+1+i}")
            for i in range(0, 14, 2): pk(S, "mul", O + i, [("p", O + i), ("b", G2)])
            for i in range(7): S.e(f"v_cvt_pk_bf16_f32 v{R+i}, v{O+2*i}, v{O+2*i+1}")
            S.e(f"v_mov_b32 v{R+7}, 0\ns_add_u32 {t0}, s{S_HFB}, {wv*NKS*1024}")
            S.e(f"buffer_store_dwordx4 {vr(R)}, v{V_L16}, {sq(S_WS)}, {t0} offen sc1\nbuffer_store_dwordx4 {vr(R+4)}, v{V_L16}, {sq(S_WS)}, {t0} offen offset:1024 sc1", tag="ost")
    else:
        X = 20; KA = 4; KB = 10
        S.e(f"""
        v_lshrrev_b32 v{X}, 4, v{V_L}
        v_bfe_u32 v{X+1}, v{V_L}, 2, 2
        v_lshl_add_u32 v{X}, v{X}, 3, v{X+1}
        v_bfe_u32 v{X+2}, v{V_L}, 1, 1
        s_lshl_b32 {t0}, s{S_H}, 1
        v_add_u32 v{X+4}, {t0}, v{X+2}
        v_xor_b32 v{X+4}, v{X+4}, v{X+1}
        v_lshlrev_b32 v{X+3}, 7, v{X}
        v_lshl_add_u32 v{X+3}, v{X+4}, 4, v{X+3}
        v_and_b32 v{X+5}, 1, v{V_L}
        v_lshl_add_u32 v{KA}, v{X+5}, 3, v{X+3}
        v_add_u32 v{KA}, {PKO}, v{KA}
        v_xor_b32 v{KA+1}, 64, v{KA}
        v_lshrrev_b32 v{X+4}, 1, v{X+1}
        v_xor_b32 v{X+4}, v{X+4}, v{X+2}
        v_lshlrev_b32 v{X+3}, 6, v{X}
        v_lshl_add_u32 v{X+3}, v{X+4}, 4, v{X+3}
        v_lshl_add_u32 v{KB}, v{X+5}, 3, v{X+3}
        v_add_u32 v{KB}, {VVO}, v{KB}
        v_xor_b32 v{KB+1}, 32, v{KB}
        """)
        for rg in (1, 2):
            for k in range(2):
                S.e(f"v_add_u32 v{KA+2*rg+k}, {rg*3*REG2}, v{KA+k}\nv_add_u32 v{KB+2*rg+k}, {rg*3*REG2}, v{KB+k}")
        S.e(f"""
        s_lshl_b32 {t4}, s{S_HEAD}, 3
        s_add_u32 {t4}, {t4}, s{S_MT}
        s_lshl_b32 {t4}, {t4}, 13
        s_lshr_b32 {t0}, s{S_H}, 1
        s_lshl_b32 {t0}, {t0}, 12
        s_add_u32 {t4}, {t4}, {t0}
        s_and_b32 {t0}, s{S_H}, 1
        s_lshl_b32 {t0}, {t0}, 9
        s_add_u32 {t4}, {t4}, {t0}
        s_add_u32 {t4}, {t4}, {KVP_OFF}
        """)
        for dh in range(2):
            D = 130 + dh
            S.e(f"""
            v_bfe_u32 v{X}, v{V_L}, 2, 2
            v_and_b32 v{X+1}, 3, v{V_L}
            v_lshl_add_u32 v{X}, v{X}, 3, v{X+1}
            v_add_u32 v{X}, {4*dh}, v{X}
            v_cmp_lt_u32_e64 {M1}, 13, v{X}
            v_subrev_u32 v{X+1}, 14, v{X}
            v_cndmask_b32_e64 v{X+1}, v{X}, v{X+1}, {M1}
            v_cndmask_b32_e64 v{X+2}, 0, 4, {M1}
            v_cmp_lt_u32_e64 {M2}, 27, v{X}
            v_and_b32 v{X+3}, 1, v{X}
            v_lshlrev_b32 v{X+3}, 2, v{X+3}
            v_bfe_u32 v{X+4}, v{X}, 1, 1
            v_add_u32 v{X+4}, 14, v{X+4}
            v_cndmask_b32_e64 v{X+1}, v{X+1}, v{X+4}, {M2}
            v_cndmask_b32_e64 v{X+2}, v{X+2}, v{X+3}, {M2}
            v_lshrrev_b32 v{X+3}, 2, v{X+1}
            v_and_b32 v{X+1}, 3, v{X+1}
            v_lshl_add_u32 v{X+1}, v{X+3}, 3, v{X+1}
            v_add_u32 v{X+1}, v{X+1}, v{X+2}
            v_lshrrev_b32 v{X+2}, 4, v{V_L}
            v_lshlrev_b32 v{X+2}, 10, v{X+2}
            v_lshl_add_u32 v{D}, v{X+1}, 4, v{X+2}
            """)
        KA1 = 6 if OPT.get("kvffn", "last") == "first" else int(OPT.get("ka1", 6))
        B1(); adma(0, KA1)
        def a1flag():
            S.wait_vm("a1")
            S.e(f"v_mov_b32 v16, {CNT + 20}\nv_mov_b32 v17, 1\ns_mov_b64 exec, 1\nds_add_u32 v16, v17\ns_mov_b64 exec, -1")
        if OPT.get("kvffn", "last") == "first": a1flag()
        S.e(f"""
        s_barrier
        s_setprio 3
        """)
        st(S, "B2")
        FB = 32; KD = 24
        for kk in range(8):
            b = FB + 12 * kk; rg = kk // 3; ro = (kk % 3) * REG2
            for e in range(2):
                S.e(f"ds_read_b64_tr_b16 {vr(b + 2*e, 2)}, v{KA + 2*rg + e} offset:{ro + e*512}")
                for dh in range(2):
                    S.e(f"ds_read_b64_tr_b16 {vr(b + 4 + 4*dh + 2*e, 2)}, v{KB + 2*rg + (e ^ dh)} offset:{ro + e*256}")
        for kk in range(8):
            b = FB + 12 * kk
            for dh in range(2):
                S.e(f"{MF16} {vr(KD + 4*dh)}, {vr(b)}, {vr(b + 4 + 4*dh)}, {'0' if kk == 0 else vr(KD + 4*dh)}")
        for dh in range(2):
            S.e(f"buffer_store_dwordx4 {vr(KD + 4*dh)}, v{130+dh}, {sq(S_WS)}, {t4} offen sc1", tag="kvst")
        st(S, "kvst")
        S.e(f"v_mov_b32 v12, {CNT + 12}\nv_mov_b32 v13, 1\ns_mov_b64 exec, 1\nds_add_u32 v12, v13\ns_mov_b64 exec, -1\ns_setprio {OPT.get('hprio2', 0)}")
        adma(KA1, 6)
        if OPT.get("kvffn", "last") != "first": a1flag()
    st(S, "end")
    st.flush(S, sq(S_WS), ST_OFF, 24, 12)
    S.e("s_endpgm")
    return S
def compute_head():
    S = Stream(); T = PT
    S.e("K_comp:")
    S.e(f"""
    s_lshl_b32 {t0}, s{S_MT}, 3
    s_add_u32 {t0}, {t0}, s3
    s_mul_i32 s{S_HFB}, {t0}, {NKS*1024}
    s_mul_i32 s{S_AREA}, s3, {AREA}
    s_mul_i32 {t2}, s{S_SROW}, 896
    v_cmp_gt_u32_e64 {M2}, 56, v{V_L}
    v_mov_b32 v{T+2}, 0x7f000000
    v_cndmask_b32_e64 v{T+2}, v{T+2}, v{V_L16}, {M2}
    s_waitcnt lgkmcnt(0)
    """)
    srd(S, S_X, 4, 2048 * 896)
    S.e(f"buffer_load_dwordx4 {vr(STV)}, v{T+2}, {sq(S_X)}, {t2} offen", tag="strow")
    if OPT.get("touch2"):
        S.e(f"""
        s_mov_b32 s{S_D1}, s6
        s_mov_b32 s{S_D1+1}, s7
        s_mov_b32 s{S_D1+2}, {448*2688}
        s_mov_b32 s{S_D1+3}, 0x20000
        s_cmp_eq_u32 s3, 1
        s_cselect_b32 s{S_D1}, s14, s{S_D1}
        s_cselect_b32 s{S_D1+1}, s15, s{S_D1+1}
        s_cmp_eq_u32 s3, 2
        s_cselect_b32 s{S_D1}, s16, s{S_D1}
        s_cselect_b32 s{S_D1+1}, s17, s{S_D1+1}
        s_cmp_eq_u32 s3, 3
        s_cselect_b32 s{S_D1}, s18, s{S_D1}
        s_cselect_b32 s{S_D1+1}, s19, s{S_D1+1}
        s_cmp_lg_u32 s3, 0
        s_cselect_b32 s{S_D1+2}, {448*3584}, s{S_D1+2}
        s_cmp_eq_u32 s3, 4
        s_cselect_b32 s{S_D1}, s10, s{S_D1}
        s_cselect_b32 s{S_D1+1}, s11, s{S_D1+1}
        s_cselect_b32 s{S_D1+2}, {448*896}, s{S_D1+2}
        s_mul_i32 {t1}, s2, {49*128}
        s_cmp_ge_u32 s3, {OPT['touch2']}
        s_cselect_b32 {t1}, 0x40000000, {t1}
        v_lshlrev_b32 v{T+5}, 7, v{V_L}
        v_cmp_gt_u32_e64 {M1}, 49, v{V_L}
        v_mov_b32 v{T+6}, 0x7f000000
        v_cndmask_b32_e64 v{T+5}, v{T+6}, v{T+5}, {M1}
        buffer_load_dword v23, v{T+5}, {sq(S_D1)}, {t1} offen
        """)
    srd(S, S_WS, 22, WS_SIZE); srd(S, S_DBG, 20, 256); srd(S, S_WD, 18, 1792 * 896); srd(S, S_WO, 10, 448 * 896)
    S.e(f"s_mov_b32 s{S_OUT+2}, {2048*896}\ns_mov_b32 s{S_OUT+3}, 0x20000")
    S.e(f"s_lshl_b32 {t0}, s3, 3\ns_add_u32 {t0}, {t0}, s2\ns_cmp_ge_u32 {t0}, 8\ns_cbranch_scc1 K_notok")
    S.e(f"""
    s_memrealtime s[{S_TOK}:{S_TOK+1}]
    s_waitcnt lgkmcnt(0)
    s_or_b32 s{S_TOK}, s{S_TOK}, 1
    v_mov_b32 v26, s{S_TOK}
    s_lshl_b32 {t0}, s2, 5
    s_mov_b64 exec, 1
    buffer_store_dword v26, v{V_Z}, {sq(S_DBG)}, {t0} offen sc1
    s_mov_b64 exec, -1
    """, opt=True)
    S.e("K_notok:")
    S.e(f"""
    s_lshl_b32 s{S_U0}, s{S_U0}, 5
    s_add_u32 s{S_U0}, s{S_U0}, s{S_HFB}
    s_lshl_b32 s{S_U12}, s{S_U12}, 5
    s_add_u32 s{S_U12}, s{S_U12}, s{S_HFB}
    v_lshrrev_b32 v{T+3}, 5, v{V_L}
    v_and_b32 v{T+5}, 31, v{V_L}
    v_bfe_u32 v{T+6}, v{V_L}, 1, 3
    v_xor_b32 v{T+6}, v{T+6}, v{T+3}
    v_lshlrev_b32 v{T+5}, 7, v{T+5}
    v_lshl_add_u32 v{T+5}, v{T+6}, 4, v{T+5}
    v_add_u32 v{V_AX}, s{S_AREA}, v{T+5}
    v_xor_b32 v{V_AX+1}, 32, v{V_AX}
    v_xor_b32 v{V_AX+2}, 64, v{V_AX}
    v_xor_b32 v{V_AX+3}, 0x60, v{V_AX}
    v_add_u32 v{V_CSA}, {CSP}, v{V_L16}
    v_bfe_u32 v{T+1}, v{V_L}, 2, 2
    v_lshl_add_u32 v{T+9}, v{T+3}, 2, v{T+1}
    v_lshlrev_b32 v{T+9}, 6, v{T+9}
    v_and_b32 v{T+10}, 1, v{V_L}
    v_lshl_add_u32 v{T+9}, v{T+10}, 5, v{T+9}
    v_bfe_u32 v{T+10}, v{V_L}, 1, 1
    v_bfe_u32 v{T+4}, v{V_L}, 4, 1
    v_lshl_add_u32 v{T+10}, v{T+4}, 1, v{T+10}
    v_lshl_add_u32 v{T+9}, v{T+10}, 3, v{T+9}
    v_add_u32 v{V_PHA}, {WPHI}, v{T+9}
    v_mov_b32 v{T+9}, {CNT}
    ds_write_b32 v{T+9}, v{V_Z}
    ds_write_b32 v{T+9}, v{V_Z} offset:4
    ds_write_b32 v{T+9}, v{V_Z} offset:8
    ds_write_b32 v{T+9}, v{V_Z} offset:12
    ds_write_b32 v{T+9}, v{V_Z} offset:16
    ds_write_b32 v{T+9}, v{V_Z} offset:20
    v_lshlrev_b32 v{T+10}, 2, v{V_L}
    v_add_u32 v{T+10}, {CNT + 64}, v{T+10}
    ds_write_b32 v{T+10}, v{V_Z}
    """)
    U = PT
    for j in range(4): S.e(f"v_lshlrev_b32 v{U+2*j}, 16, v{STV+j}\nv_and_b32 v{U+2*j+1}, 0xffff0000, v{STV+j}")
    S.e(f"""
    v_add_f32 v{U+8}, v{U}, v{U+1}
    v_add_f32 v{U+9}, v{U+2}, v{U+3}
    v_add_f32 v{U+10}, v{U+4}, v{U+5}
    v_add_f32 v{U+11}, v{U+6}, v{U+7}
    v_add_f32 v{U+8}, v{U+8}, v{U+9}
    v_add_f32 v{U+10}, v{U+10}, v{U+11}
    v_add_f32 v{U+8}, v{U+8}, v{U+10}
    """)
    wave_sum(S, U + 8, U + 9)
    S.e(f"v_mul_f32 v{U+8}, {f32(1/448)}, v{U+8}")
    for j in range(8): S.e(f"v_sub_f32 v{U+j}, v{U+j}, v{U+8}")
    S.e(f"v_mul_f32 v{U+9}, v{U}, v{U}\nv_mul_f32 v{U+10}, v{U+1}, v{U+1}")
    for j in range(2, 8): S.e(f"v_fmac_f32 v{U+9+(j&1)}, v{U+j}, v{U+j}")
    S.e(f"v_add_f32 v{U+9}, v{U+9}, v{U+10}\nv_cndmask_b32_e64 v{U+9}, 0, v{U+9}, {M2}")
    wave_sum(S, U + 9, U + 10)
    S.e(f"v_mul_f32 v{U+9}, {f32(1/448)}, v{U+9}")
    bf16r(S, U + 9, f"v{U+9}")
    S.e(f"v_add_f32 v{U+9}, {f32(1e-5)}, v{U+9}")
    bf16r(S, U + 9, f"v{U+9}")
    S.e(f"v_sqrt_f32 v{U+9}, v{U+9}")
    bf16r(S, 25, f"v{U+9}")
    S.e(f"v_cvt_pk_bf16_f32 v24, -v{U+8}, -v{U+8}\ns_lshl_b32 {t0}, s3, 3\ns_add_u32 {t0}, {t0}, {OST}\nv_mov_b32 v26, {t0}\nds_write_b64 v26, v[24:25]")
    S.e(f"s_cmp_eq_u32 s{S_TYPE}, 1\ns_cbranch_scc1 K_kv")
    return S


def compute(typ):
    q = typ == "q"
    S = Stream(); T = PT
    S.e(f"K_{typ}:")
    st = Stamper(STAMPR); st.n = 1; st.names = ["start"]
    tile_addrs(S, typ, V_AT, T)
    p2_ids(S)
    EARLY = Stream()
    T = SC; p2_a_voffsets(EARLY, 21, None, None, T)
    EARLY.e(f"""
    v_and_b32 v{V_TMP}, 31, v{V_L}
    v_lshlrev_b32 v{V_TMP}, 3, v{V_TMP}
    s_lshl_b32 {t0}, s3, 8
    s_add_u32 {t0}, {t0}, {STL}
    v_add_u32 v{V_TMP}, {t0}, v{V_TMP}
    s_bfe_u32 {t4}, s3, 0x10001
    s_lshr_b32 {t5}, s3, 2
    v_bfe_u32 v{T}, v{V_L}, 2, 2
    v_lshrrev_b32 v{T+1}, 5, v{V_L}
    v_lshl_add_u32 v{T+2}, v{T+1}, 2, v{T}
    v_lshlrev_b32 v{T+2}, 7, v{T+2}
    v_lshrrev_b32 v{T}, 1, v{T}
    v_xor_b32 v{T}, {t4}, v{T}
    v_lshl_add_u32 v{T+2}, v{T}, 6, v{T+2}
    v_and_b32 v{T}, 1, v{V_L}
    v_lshl_add_u32 v{T+2}, v{T}, 5, v{T+2}
    v_bfe_u32 v{T}, v{V_L}, 1, 1
    v_bfe_u32 v{T+3}, v{V_L}, 4, 1
    v_xor_b32 v{T+3}, {t5}, v{T+3}
    v_lshl_add_u32 v{T}, v{T+3}, 1, v{T}
    v_lshl_add_u32 v{T+2}, v{T}, 3, v{T+2}
    s_mul_i32 {t0}, s3, {REG2}
    v_add_u32 v22, {t0}, v{T+2}
    s_and_b32 {t0}, s3, 3
    s_lshl_b32 {t0}, {t0}, 1
    s_add_u32 s{S_H}, {t0}, {t5}
    s_mul_i32 s{S_XROW}, s{S_H}, {14*16*896}
    s_cmp_ge_u32 s2, 224
    s_cselect_b32 {t0}, 0x40000000, 0
    s_add_u32 s{S_XROW}, s{S_XROW}, {t0}
    """)
    T = PT
    pend = []
    def ABn(n): return AB if n % 2 == 1 else SC + 8
    def a_read(n, t):
        c, s = n >> 2, n & 3
        for e in range(2):
            a, imm = tile_read_args(typ, t, s, e)
            S.e(f"ds_read_b64_tr_b16 {vr(ABn(n) + 4*t + 2*e, 2)}, v{V_AT+a} offset:{(c % 3)*WS_ + imm}")
    def x_read(n):
        c, s = n >> 2, n & 3
        S.e(f"ds_read_b128 {vr(XB + 4*(n & 1))}, v{V_AX+s} offset:{(c % 3) * 4096}")
    def kstep(n):
        if n + 1 < 28:
            x_read(n + 1); a_read(n + 1, 0); a_read(n + 1, 1)
        for t in range(5):
            S.e(f"{MF} {vr(ACC + 16*t, 16)}, {vr(ABn(n) + 4*t)}, {vr(XB + 4*(n & 1))}, {'0' if n == 0 else vr(ACC + 16*t, 16)}")
            if n + 1 < 28 and t + 2 < 5: a_read(n + 1, t + 2)
            if pend: S.extend(pend.pop(0))
    S.wait_lgkm(); S.e("s_barrier")
    st(S, "bar0")
    x_read(0)
    for t in range(5): a_read(0, t)
    for c in range(7):
        S.comment(f"chunk {c}")
        if c in (4,): st(S, f"chunk{c}")
        n = 4 * c
        if OPT.get("tlb") and c == int(OPT["tlb"]):
            G = Stream()
            G.e(f"""
            v_lshlrev_b32 v23, 18, v{V_L}
            s_lshl_b32 {t0}, s3, 15
            buffer_load_dword v23, v23, {sq(S_WS)}, {t0} offen
            """); pend.append(G)
            G = Stream()
            G.e(f"""
            v_lshlrev_b32 v26, 15, v{V_L}
            s_lshl_b32 {t0}, s3, 12
            buffer_load_dword v27, v26, {sq(S_OUT)}, {t0} offen
            """); pend.append(G)
        if c == 3:
            for ii in range(0, len(EARLY), 5):
                G = Stream(); G.extend(EARLY[ii:ii+5]); pend.append(G)
        kstep(n); kstep(n + 1); kstep(n + 2)
        S.wait_lgkm(); S.e("s_barrier")
        if c == 6:
            CR = SC + 8
            S.e(f"ds_read_b64 {vr(V_RINV, 2)}, v{V_TMP}")
            for t in range(5): S.e(f"ds_read_b128 {vr(CR + 4*t)}, v{V_CSA} offset:{t*1024}")
            stats_consts(S)
        kstep(n + 3)
    st(S, "S1")
    FT = (lambda n: st(S, n, fine=True)) if OPT.get('fw') == 'tail' else (lambda n: None)
    FT("s1")
    WPF = XB; E = AB; QB = E + 8; TT = 4; GT = SC; GT2 = SC + 12
    A0 = ACC
    V_WD, V_A0, V_A1 = 11, 12, 13
    V_WOo, V_WOM, V_B0, V_B1, V_O = 4, 5, 6, 7, 8
    S.e(f"{MF} {vr(ACC,16)}, {vr(CR)}, {vr(BP)}, {vr(ACC,16)}")
    for te in range(4): S.e(f"ds_read_b64_tr_b16 {vr(WPF + 2*te, 2)}, v{V_PHA} offset:{te * 512}")
    NC1 = 5 if (q or not OPT.get("corr2", True)) else 2
    for t in range(1, NC1): S.e(f"{MF} {vr(ACC + 16*t,16)}, {vr(CR + 4*t)}, {vr(BP)}, {vr(ACC + 16*t,16)}")
    S.e(f"s_mul_i32 s{S_AREA}, s3, {REG2}\nv_mov_b32 v{V_WD}, v21\nv_mov_b32 v{V_A0}, v22\nv_xor_b32 v{V_A1}, 64, v22")
    W = SC + 28; X = 4
    if not q:
        S.e(f"""
        v_and_b32 v{X}, 31, v{V_L}
        v_lshrrev_b32 v{X+1}, 5, v{V_L}
        v_lshlrev_b32 v{X+1}, 1, v{X+1}
        v_bfe_u32 v{X+2}, v{V_L}, 1, 2
        v_xor_b32 v{X+2}, v{X+2}, v{X+1}
        v_lshlrev_b32 v{X+3}, 6, v{X}
        v_lshl_add_u32 v{X+3}, v{X+2}, 4, v{X+3}
        s_add_u32 {t0}, s{S_AREA}, {VVO}
        v_add_u32 v9, {t0}, v{X+3}
        v_xor_b32 v10, 16, v9
        v_and_b32 v{X+3}, 7, v{V_L}
        v_xor_b32 v{X+1}, v{X+1}, v{X+3}
        v_lshlrev_b32 v{X}, 7, v{X}
        v_lshl_add_u32 v{X}, v{X+1}, 4, v{X}
        s_add_u32 {t0}, s{S_AREA}, {PKO}
        v_add_u32 v{W}, {t0}, v{X}
        v_xor_b32 v{W+1}, 16, v{W}
        v_xor_b32 v{W+2}, 64, v{W}
        v_xor_b32 v{W+3}, 0x50, v{W}
        """)
    tok_read(S, f"s{S_TOK}", f"s_and_b32 {t0}, s2, 7", V_TMP)
    FT("addr")
    scale16(S, A0)
    for i in range(8): S.e(f"v_cvt_pk_bf16_f32 v{QB+i}, v{A0+2*i}, v{A0+2*i+1}")
    S.e(f"{MF} {vr(A0,16)}, {vr(WPF)}, {vr(QB)}, 0\n{MF} {vr(A0,16)}, {vr(WPF+4)}, {vr(QB+4)}, {vr(A0,16)}")
    FT("pq")
    A1 = ACC + 16
    AC2 = 104
    bfree = [16, 24, 32, 40, 48]
    ablk = {i: b for i, b in enumerate([72, 80, 88, 96, 56, 64] if (q or OPT.get('kvffn', 'last') == 'first') else [56, 64, 72, 80, 88, 96])}
    slot_of = {i: i for i in range(6)}
    def a_tr(i, blk):
        nonlocal S
        for ni in range(2):
            for e in range(2):
                S.e(f"ds_read_b64_tr_b16 {vr(blk + 4*ni + 2*e, 2)}, v{V_A0+ni} offset:{slot_of[i]*2048 + e*1024}", tag=f"ar{i}")
    def a_dma(i, sl):
        slot_of[i] = sl; out = []
        for u in range(2):
            G = Stream()
            G.e(f"s_add_u32 m0, s{S_AREA}, {sl*2048 + u*1024}")
            if i < 14:
                G.e(f"s_add_u32 {tm}, s{S_XROW}, {(16*i + 8*u)*896}")
                G.e(f"buffer_load_dwordx4 v{V_WD}, {sq(S_WD)}, {tm} offen lds", tag=f"a{i}")
            else:
                hd, t = (i - 14) >> 1, (i - 14) & 1
                G.e(f"s_add_u32 {tm}, s{S_D0L}, {(28*hd + 8*t + 4*u)*896}")
                G.e(f"buffer_load_dwordx4 v{V_WOM if (t and u) else V_WOo}, {sq(S_WO)}, {tm} offen lds", tag=f"a{i}")
            out.append(G)
        return out
    def sprinkle(V, parts, start, every):
        n = 0
        for ins in V:
            S.append(ins); n += 1
            if n >= start and (n - start) % every == 0 and parts: S.extend(parts.pop(0))
        for p in parts: S.extend(p)
    late = []
    KF1 = q or OPT.get("kvffn", "last") == "first"
    def vwr(): S.e(f"ds_write_b128 v9, {vr(A1)}\nds_write_b128 v10, {vr(A1+4)}")
    def vpart():
        scale16(S, A1)
        for i in range(8): S.e(f"v_cvt_pk_bf16_f32 v{A1+i}, v{A1+2*i}, v{A1+2*i+1}")
        S.e(f"""
        v_mov_b32 v{A1+8}, 0x3f803f80
        v_cndmask_b32_e64 v{A1+6}, v{A1+6}, v{A1+8}, {HHM}
        """)
        if KF1: vwr()
    if KF1:
        if q:
            geglu(S, A1, GT, S_U0, 0); geglu(S, ACC + 32, GT2, S_U0, 1); geglu(S, ACC + 48, GT, S_U0, 2); geglu(S, ACC + 64, GT2, S_U0, 3)
        else:
            geglu(S, ACC + 32, GT2, S_U0, 0); geglu(S, ACC + 48, GT, S_U12, 0); geglu(S, ACC + 64, GT2, S_U12, 1)
            vpart()
        st(S, "ffn")
        S.e(f"""
        v_mov_b32 v14, {CNT + 20}
        K_{typ}_a1:
        ds_read_b32 v15, v14
        s_waitcnt lgkmcnt(0)
        v_readfirstlane_b32 {t1}, v15
        s_cmp_lt_u32 {t1}, 4
        s_cbranch_scc1 K_{typ}_a1
        """)
        for i in range(4): a_tr(i, ablk[i])
        V = Stream(); softmax14(V, A0, E, TT)
        w = Stream(); w.wait_lgkm()
        sg = signal("hst", 8, "h", f"K_{typ}_nosigh", 104, 105, 106, 7)
        pos = int(OPT.get("sgpos", 4))
        parts = [w] + a_dma(6, 0) + a_dma(7, 1) + a_dma(8, 2) + a_dma(9, 3)
        parts.insert(pos + 1, sg)
        if q or OPT.get('kvspr', False): sprinkle(V, parts, 12, 14)
        else:
            sprinkle(V, [sg], 60, 14); parts.remove(sg); pre_late = parts
        if q:
            S.e(f"s_add_u32 {t0}, s{S_AREA}, {PKO}\nv_add_u32 v9, {t0}, v{V_L16}")
            for kk in range(4): S.e(f"ds_write_b128 v9, {vr(E + 4*kk)} offset:{kk*1024}")
        else:
            for k in range(4): S.e(f"ds_write_b128 v{W+k}, {vr(E+4*k)}")
        a_tr(4, ablk[4]); a_tr(5, ablk[5])
        S.wait_lgkm(); S.e("s_barrier")
        st(S, "B2")
        late = ([] if (q or OPT.get('kvspr', False)) else pre_late) + a_dma(10, 4) + a_dma(11, 5)
    else:
        vpart()
        FT("v")
        softmax14(S, A0, E, TT)
        FT("sm")
        vwr()
        for k in range(4): S.e(f"ds_write_b128 v{W+k}, {vr(E+4*k)}")
        S.wait_lgkm()
        FT("wr")
        for t in range(NC1, 5): S.e(f"{MF} {vr(ACC + 16*t,16)}, {vr(CR + 4*t)}, {vr(BP)}, {vr(ACC + 16*t,16)}")
        S.e("s_barrier")
        st(S, "B2")
        FT("b2")
        geglu(S, ACC + 32, GT2, S_U0, 0); FT("g1"); geglu(S, ACC + 48, GT, S_U12, 0); FT("g2"); geglu(S, ACC + 64, GT2, S_U12, 1); FT("g3")
        st(S, "ffn")
        G = Stream()
        G.e(f"""
        v_mov_b32 v14, {CNT + 20}
        K_{typ}_a1:
        ds_read_b32 v15, v14
        s_waitcnt lgkmcnt(0)
        v_readfirstlane_b32 {t1}, v15
        s_cmp_lt_u32 {t1}, 4
        s_cbranch_scc1 K_{typ}_a1
        """)
        S0 = S; S = G
        for i in range(6): a_tr(i, ablk[i])
        S = S0
        G.wait_lgkm()
        late = [G]
        for i in range(6, 12): late += a_dma(i, i - 6)
    TP = 16
    S.e(f"""
    v_lshrrev_b32 v{TP}, 3, v{V_L}
    v_mul_u32_u24 v{TP+1}, 896, v{TP}
    v_sub_u32 v{TP+1}, v{V_WD}, v{TP+1}
    v_lshrrev_b32 v{TP+2}, 2, v{TP}
    v_and_b32 v{TP+3}, 3, v{TP}
    v_mad_u32_u24 v{TP+2}, v{TP+2}, 14, v{TP+3}
    v_mul_u32_u24 v{V_WOo}, 896, v{TP+2}
    v_add_u32 v{V_WOo}, v{V_WOo}, v{TP+1}
    v_cmp_lt_u32_e64 {M1}, 1, v{TP+3}
    v_mov_b32 v{TP+2}, 0x7f000000
    v_cndmask_b32_e64 v{V_WOM}, v{V_WOo}, v{TP+2}, {M1}
    s_and_b32 {t3}, s3, 1
    s_bfe_u32 {t4}, s3, 0x10001
    s_lshr_b32 {t5}, s3, 2
    s_lshl_b32 {t0}, s{S_M64}, 1
    s_add_u32 {t0}, {t0}, {t3}
    s_mul_i32 {t1}, {t0}, {NKS*1024}
    v_add_u32 v{V_B0}, {t1}, v{V_L16}
    s_xor_b32 {t2}, {t0}, 1
    s_mul_i32 {t2}, {t2}, {NKS*1024}
    v_add_u32 v{V_B1}, {t2}, v{V_L16}
    v_mov_b32 v9, {t1}
    v_mov_b32 v10, {t2}
    v_cmp_lt_u32_e64 {M1}, 15, v{V_L}
    v_cndmask_b32_e64 v9, v9, v10, {M1}
    v_and_b32 v10, 3, v{V_L}
    v_lshl_add_u32 v9, v10, 10, v9
    v_lshrrev_b32 v{TP+1}, 5, v{V_L}
    v_and_b32 v{TP}, 31, v{V_L}
    s_lshl_b32 {t0}, {t0}, 5
    v_add_u32 v{TP}, {t0}, v{TP}
    v_mul_u32_u24 v{TP}, 896, v{TP}
    v_lshlrev_b32 v{TP+1}, 5, v{TP+1}
    s_lshl_b32 {t0}, s{S_N64}, 7
    s_lshl_b32 {t1}, {t4}, 6
    s_add_u32 {t0}, {t0}, {t1}
    s_lshl_b32 {t1}, {t5}, 4
    s_add_u32 {t0}, {t0}, {t1}
    v_add3_u32 v{V_O}, v{TP}, v{TP+1}, {t0}
    s_mul_i32 s{S_D0L}, s{S_H}, {2*28*896}
    s_mul_i32 s{S_U0}, s{S_H}, {14*1024}
    s_lshl_b32 s{S_U12}, s{S_H}, 12
    s_add_u32 s{S_U12}, s{S_U12}, {112*1024 - 14*1024}
    s_add_u32 s{S_G}, s{S_U12}, {14*1024 + 1008}
    v_mov_b32 v{TP}, {CNT + 12}
    K_{typ}_zone:
    ds_read_b32 v{TP+1}, v{TP}
    s_waitcnt lgkmcnt(0)
    v_readfirstlane_b32 {t1}, v{TP+1}
    s_cmp_lt_u32 {t1}, 4
    s_cbranch_scc1 K_{typ}_zone
    """)
    for g in late[:int((OPT.get("latepre", 4) if KF1 else OPT.get("latekv", 0)))]: S.extend(g)
    st(S, "p1end")
    if not KF1: S.extend(signal("hst", 8, "h", f"K_{typ}_nosigh", TP, TP + 1, TP + 2, 7))
    if not q: S.e(f"s_cmp_ge_u32 s2, 224\ns_cbranch_scc1 K_{typ}_fin")
    for g in late[int((OPT.get("latepre", 4) if KF1 else OPT.get("latekv", 0))):]: S.extend(g)
    for i in range(12, 15):
        for g in a_dma(i, i - 6): S.extend(g)
    MIR = CNT + 64
    tok_read(S, t4, f"s_and_b32 {t0}, s{S_H}, 6\ns_lshr_b32 {t1}, s{S_MT2}, 2\ns_add_u32 {t0}, {t0}, {t1}", TP)
    S.e(f"""
    s_mul_i32 {t2}, s2, {MB_STRIDE}
    s_add_u32 {t2}, {t2}, {MB_OFF}
    s_lshr_b32 {t0}, s{S_H}, 1
    s_lshl_b32 {t0}, {t0}, 3
    s_cmp_lt_u32 s3, 4
    s_movk_i32 {t5}, 0xff
    s_cselect_b32 {t5}, 0x55, {t5}
    s_lshl_b32 {t5}, {t5}, {t0}
    s_mov_b32 {t3}, 0
    v_min_u32 v{TP}, 32, v{V_L}
    v_lshlrev_b32 v{TP}, 2, v{TP}
    v_add_u32 v{TP+1}, {MIR}, v{TP}
    v_and_b32 v{TP}, 0x7c, v{TP}
    """)
    st(S, "w5")
    S.e(f"""
    s_cmp_eq_u32 s3, 7
    s_cbranch_scc1 K_{typ}_phg
    K_{typ}_phl:
    ds_read_b32 v14, v{TP+1}
    s_waitcnt lgkmcnt(0)
    v_cmp_ne_u32_e64 {M1}, {t4}, v14
    v_readlane_b32 {t1}, v14, 32
    s_and_b32 {tm}, s88, {t5}
    s_cbranch_scc0 K_{typ}_phok
    s_sleep 2
    s_cmp_eq_u32 {t1}, 0
    s_cbranch_scc1 K_{typ}_phl
    K_{typ}_phg:
    buffer_load_dword v14, v{TP}, {sq(S_WS)}, {t2} offen sc1
    s_waitcnt vmcnt(0)
    s_mov_b32 exec_hi, 0
    ds_write_b32 v{TP+1}, v14
    s_mov_b32 exec_hi, -1
    v_cmp_ne_u32_e64 {M1}, {t4}, v14
    s_add_u32 {t3}, {t3}, 1
    s_and_b32 {tm}, s88, {t5}
    s_cbranch_scc0 K_{typ}_phd
    s_sleep {OPT.get('sleep', 4)}
    s_cmp_lt_u32 {t3}, 0x8000
    s_cbranch_scc1 K_{typ}_phg
    K_{typ}_phd:
    v_mov_b32 v14, {MIR + 128}
    v_mov_b32 v15, 1
    ds_write_b32 v14, v15
    K_{typ}_phok:
    """, opt=True)
    S.append(pseudo("forget_opt"))
    st(S, "B5")
    if OPT.get('fw') == 'p2': st(S, "B5f", fine=True)
    bblk = {}
    nextb = [0]
    def b_issue(i, opt=False):
        S.e(f"s_add_u32 {tm}, s{S_U0 if i < 14 else S_U12}, {i*1024}", opt=opt)
        for mi in range(2):
            S.e(f"buffer_load_dwordx4 {vr(bblk[i] + 4*mi)}, v{V_B0+mi}, {sq(S_WS)}, {tm} offen sc1", opt=opt)
    def b_load():
        i = nextb[0]
        if i >= 18 or not bfree: return False
        if i == 14:
            tagpoll(S, f"K_{typ}_po", 9, 14, f"s{S_G}", first_issued=True)
            S.append(pseudo("forget_opt"))
            st(S, "B6")
        bblk[i] = bfree.pop(0)
        b_issue(i)
        nextb[0] += 1
        return True
    OLAG = int(OPT.get("olag", 2))
    while b_load(): pass
    afree = []
    for i in range(18):
        if i + 1 < 18 and (i + 1) not in ablk:
            ablk[i + 1] = afree.pop(0)
            S.wait_vm(f"a{i+1}")
            a_tr(i + 1, ablk[i + 1])
        if i >= 14:
            regs = list(range(bblk[i], bblk[i] + 8))
            umax_tree(S, regs, 15)
            S.e(f"v_cmp_eq_u32_e64 {M1}, -1, v15\ns_cmp_eq_u64 {M1}, 0\ns_cbranch_scc1 K_{typ}_bok{i}")
            S.e(f"s_mov_b32 {t3}, 0\nK_{typ}_bre{i}:", opt=True)
            b_issue(i, opt=True)
            S.e("s_waitcnt vmcnt(0)", opt=True)
            umax_tree(S, regs, 15, opt=True)
            S.e(f"v_cmp_eq_u32_e64 {M1}, -1, v15\ns_add_u32 {t3}, {t3}, 1\ns_cmp_eq_u64 {M1}, 0\ns_cbranch_scc1 K_{typ}_bok{i}\ns_cmp_lt_u32 {t3}, 0x4000\ns_cbranch_scc1 K_{typ}_bre{i}", opt=True)
            S.e(f"K_{typ}_bok{i}:")
            S.append(pseudo("forget_opt"))
        for lq in range(4):
            ni, mi = lq >> 1, lq & 1
            S.e(f"{MF} {vr(AC2 + 16*lq, 16)}, {vr(ablk[i] + 4*ni)}, {vr(bblk[i] + 4*mi)}, {'0' if i == 0 else vr(AC2 + 16*lq, 16)}")
        if OPT.get('fw') == 'p2' and i in (0, 1, 2, 4, 6, 8, 10, 12, 14, 17): st(S, f"k{i}", fine=True)
        bfree.append(bblk[i])
        if i in (3, 4) or i >= 6: afree.append(ablk[i])
        else: bfree.append(ablk[i])
        if i in (7, 8, 9):
            for g in a_dma(i + 8, i - 7): S.extend(g)
        if i == 14 - OLAG - 2: S.e(f"buffer_load_dword v14, v9, {sq(S_WS)}, s{S_G} offen sc1")
        while nextb[0] < 18 and (nextb[0] != 14 or i >= 14 - OLAG) and b_load(): pass
        if i == 15:
            XRG = [b for b in bfree if b >= 88][0]; bfree.remove(XRG)
            S.e(f"buffer_load_dwordx4 {vr(XRG)}, v{V_O}, {sq(S_X)}, 0 offen")
    st(S, "mm")
    S.e(f"v_add_u32 v4, s{S_AREA}, v{V_L16}")
    def piece(pp): lq = (pp & 1) | (((pp >> 1) & 1) << 1); return AC2 + 16*lq + 8*(pp >> 2)
    for pp in range(1, 8):
        for j in range(2): S.e(f"ds_write_b128 v4, {vr(piece(pp) + 4*j)} offset:{(pp-1)*2048 + j*1024}")
    for pp in range(1, 8):
        S.e(f"s_xor_b32 {t0}, s3, {pp}\ns_mul_i32 {t0}, {t0}, {REG2}\nv_add_u32 v{16+pp}, {t0}, v{V_L16}")
    for j in range(4): S.e(f"v_lshlrev_b32 v{24+2*j}, 16, v{XRG+j}\nv_and_b32 v{25+2*j}, 0xffff0000, v{XRG+j}")
    for j in range(8): S.e(f"v_add_f32 v{AC2+j}, v{AC2+j}, v{24+j}")
    S.wait_lgkm(); S.e("s_barrier")
    R = 32
    for pp in range(1, 8):
        for j in range(2): S.e(f"ds_read_b128 {vr(R + 8*(pp-1) + 4*j)}, v{16+pp} offset:{(pp-1)*2048 + j*1024}")
    def padd(d, a, b):
        for j in range(0, 8, 2): pk(S, "add", d + j, [("p", a + j), ("p", b + j)])
    padd(AC2, AC2, R); padd(R + 8, R + 8, R + 16); padd(R + 24, R + 24, R + 32); padd(R + 40, R + 40, R + 48)
    padd(AC2, AC2, R + 8); padd(R + 24, R + 24, R + 40); padd(AC2, AC2, R + 24)
    if OPT.get("eps"):
        for j in range(8): S.e(f"v_mul_f32 v{AC2+j}, {f32(1.0 + float(OPT['eps']))}, v{AC2+j}")
    for j in range(4): S.e(f"v_cvt_pk_bf16_f32 v{24+j}, v{AC2+2*j}, v{AC2+2*j+1}")
    S.e(f"buffer_store_dwordx4 {vr(24)}, v{V_O}, {sq(S_OUT)}, 0 offen")
    if OPT.get("echo"):
        r = STAMPR[int(OPT["echo"])]
        S.e(f"""
        s_memrealtime s[88:89]
        s_waitcnt lgkmcnt(0)
        {f's_sub_u32 s90, s{r}, s92' if int(OPT["echo"]) < 11 else 's_sub_u32 s90, s88, s92'}
        s_add_u32 s90, s90, s88
        K_{typ}_echo:
        s_memrealtime s[88:89]
        s_waitcnt lgkmcnt(0)
        s_sub_u32 s91, s88, s90
        s_cmp_lt_i32 s91, 0
        s_cbranch_scc1 K_{typ}_echo
        """)
    S.e(f"K_{typ}_fin:")
    st(S, "end")
    st.flush(S, sq(S_WS), ST_OFF, 104, 12)
    S.e("s_endpgm")
    return S

def gen_all():
    pro = list(prologue()); ch = list(compute_head()); hh = list(helper_head())
    out = []
    def part(prefix, body, label):
        full = finalize(prefix + list(body))
        idx = next(i for i, x in enumerate(full) if x.text == label) if label else 0
        return full[idx:]
    hq = part(pro + hh, list(helper("q")) + list(hpost("q")), None)
    hk = part(pro + hh, list(helper("kv")) + list(hpost("kv")), "K_hkv:")
    def cut(p):
        n = 0
        for i, x in enumerate(p):
            if x.op == "s_barrier":
                n += 1
                if n == 1: return p[:i], p[i:]
    if OPT.get("layout", False):
        a, b = cut(hq); c, d = cut(hk)
        out += a + [I("s_branch K_hq_rest")] + c + [I("s_branch K_hkv_rest")]
        out += part(pro + ch, compute("q"), "K_comp:")
        out += part(pro + ch, compute("kv"), "K_kv:")
        out += [I("K_hq_rest:")] + b + [I("K_hkv_rest:")] + d
    else:
        out += hq + hk
        out += part(pro + ch, compute("q"), "K_comp:")
        out += part(pro + ch, compute("kv"), "K_kv:")
    out.append(I("K_END:")); out.append(I("s_endpgm"))
    return out

def build(path):
    k = gen_all()
    print("K", stats(k), file=sys.stderr)
    ref = open(f"cdna_kernels/{NAME}.s.ref").read().split("\n")
    hdr = [l for l in ref if l.startswith(";") and "@launch" not in l and "Override" not in l and "grid=ceil" not in l]
    txt = "\n".join(hdr) + "\n"
    txt += f"; @launch grid=(256,1,1) block=(768,1,1) lds=163840\n"
    txt += '.amdgcn_target "amdgcn-amd-amdhsa--gfx950"\n.text\n'
    txt += f".globl {K1}\n.p2align 8\n.type {K1},@function\n{K1}:\n" + render(k)
    txt += f""".section .rodata,"a"
.p2align 6
.amdhsa_kernel {K1}
  .amdhsa_next_free_vgpr {NVG1}
  .amdhsa_next_free_sgpr 102
  .amdhsa_accum_offset {NVG1}
  .amdhsa_group_segment_fixed_size 0
  .amdhsa_kernarg_size 88
  .amdhsa_user_sgpr_count 2
  .amdhsa_user_sgpr_kernarg_segment_ptr 1
  .amdhsa_system_sgpr_workgroup_id_x 1
.end_amdhsa_kernel
"""
    open(path, "w").write(txt)

if __name__ == "__main__":
    for a in sys.argv[2:]:
        k, v = a.split("=")
        OPT[k] = {"True": True, "False": False}.get(v, v.replace("_", " ") if k.endswith("flags") else v)
    build(sys.argv[1] if len(sys.argv) > 1 else f"cdna_kernels/{NAME}.s")
```

```python
import sys, os, struct
sys.path.insert(0, os.path.dirname(os.path.abspath(__file__)))
from dsl import *

NAME = "parallel_sum__linear_kernel_hedgehog__geglu_ffn__prompt"
K1 = NAME + "_kernel"
K2 = "k2_kernel"

HF_OFF = 0
KVP_OFF = 0xB00000
PHF_OFF = 0x1000000
WS_SIZE = 0x1400000
NKS = 144

OPT = dict(mimic_ffn=False, hf_flags=" sc1", k2d="8", prefetch=True)

def f32(x): return "0x%08x" % struct.unpack("<I", struct.pack("<f", x))[0]
def vr(a, n=4): return f"v[{a}:{a+n-1}]"
def ar(a, n=4): return f"a[{a}:{a+n-1}]"
MF = "v_mfma_f32_32x32x16_bf16"
MF16 = "v_mfma_f32_16x16x32_bf16"

def srd(S, d, lo, nbytes):
    S.e(f"s_mov_b32 s{d}, s{lo}\ns_mov_b32 s{d+1}, s{lo+1}\ns_mov_b32 s{d+2}, {nbytes}\ns_mov_b32 s{d+3}, 0x20000")

STAMP_REGS = [92, 94, 96, 98, 100, 28, 30, 4, 6, 8, 10, 12, 14, 16, 18, 20]
ST_OFF = 0xD00000
class Stamper:
    def __init__(self, regs=STAMP_REGS): self.n = 0; self.names = []; self.regs = regs
    def __call__(self, S, name, fine=False):
        if not OPT.get("stamps"): return
        if (OPT.get("stamps") == "fine") != fine and name != "end": return
        r = self.regs[self.n]; self.n += 1; self.names.append(name)
        S.e(f"{'s_memtime' if fine else 's_memrealtime'} s[{r}:{r+1}]")
    def flush(self, S, srd_s, base, vtmp, nwaves):
        if not OPT.get("stamps"): return
        S.e("s_waitcnt lgkmcnt(0)")
        for i in range(self.n): S.e(f"v_mov_b32 v{vtmp+i}, s{self.regs[i]}")
        S.e(f"s_mul_i32 s88, s2, {nwaves*64}\ns_lshl_b32 s89, s3, 6\ns_add_u32 s88, s88, s89\ns_add_u32 s88, s88, {base}\nv_mov_b32 v0, 0\ns_mov_b64 exec, 1")
        for i in range(0, 16, 4): S.e(f"buffer_store_dwordx4 v[{vtmp+i}:{vtmp+i+3}], v0, {srd_s}, s88 offen offset:{i*4}")
        if OPT.get("dbgst"):
            Stamper.uid = getattr(Stamper, "uid", 0) + 1
            S.e(f"s_lshl_b32 s88, s2, 4\ns_add_u32 s88, s88, s3\ns_cmp_lg_u32 s88, {OPT['dbgst']}\ns_cbranch_scc1 DBGST{Stamper.uid}")
            for i in range(1, self.n): S.e(f"v_sub_u32 v{vtmp+i}, v{vtmp+i}, v{vtmp}", opt=True)
            for i in range(0, 16, 4): S.e(f"buffer_store_dwordx4 v[{vtmp+i}:{vtmp+i+3}], v0, s[44:47], 0 offen offset:{i*4}", opt=True)
            S.e(f"DBGST{Stamper.uid}:")
        print("stamps", self.names, file=sys.stderr)

AREA = 12288
W0 = 98304; WS_ = 20480
MISC = 159744
WPHI = MISC
CNT = MISC + 2048
STATS_OFF = 0xC00000
REG2 = 18432
CSP = 147456; KVF = 147456 + 5120
PKO = 12288; VVO = 16384
NVG1 = 168

V_L = 1; V_L16 = 2; V_Z = 3
V_AX = 4; V_AT = 8
V_CSA = 13; V_PHA = 14; V_TMP = 15
V_RINV, V_SD = 16, 17
V_C0, V_C1, V_S2 = 18, 19, 20
BP = 24
XB = 28; AB = 36; ACC = 56; SC = 136
PT = 136; STV = 152
S_PF, S_X, S_OUT, S_WG, S_WU, S_WS, S_DBG, S_WQ, S_D1, S_WD, S_WO = 12, 24, 28, 32, 36, 40, 44, 48, 52, 56, 60
S_MT, S_C4, S_HL, S_HEAD, S_TYPE, S_XROW, S_AREA, S_D0L, S_H = 64, 65, 66, 67, 68, 69, 70, 71, 72
S_ODD = 73
S_T = 74
S_HH = 80
S_HFB = 82
S_U0, S_U12 = 83, 84
S_M = 85
S_SROW = 86
S_G = 87
M1 = "s[88:89]"; M2 = "s[90:91]"
HHM = f"s[{S_HH}:{S_HH+1}]"
t0, t1, t2, t3, t4, t5 = [f"s{S_T+i}" for i in range(6)]
tm = f"s{S_M}"
S_M64, S_N64, S_MT2 = 65, 66, 73
def sq(d): return f"s[{d}:{d+3}]"
STAMPR = [92, 94, 96, 100, 4, 6, 8, 10, 16, 18, 20, 22, 14]
import sys
if any('hfine2' in a for a in sys.argv): STAMPR = [92, 94, 96, 100, 4, 6, 12, 14, 16, 20, 22, 8, 18]
B_OWNMT = f"s_lshl_b32 {t2}, s{S_MT}, 5"
B_MT2 = f"s_lshl_b32 {t2}, s{S_MT2}, 5"
B_KV = f"s_lshl_b32 {t2}, s{S_HEAD}, 1\ns_add_u32 {t2}, {t2}, 1"

def bf16r(S, d, src):
    S.e(f"v_cvt_pk_bf16_f32 v{d}, {src}, {src}\nv_lshlrev_b32 v{d}, 16, v{d}")

def xhalf(S, op, x, t):
    S.e(f"v_mov_b32 v{t}, v{x}\nv_permlane32_swap_b32 v{t}, v{x}\n{op} v{x}, v{x}, v{t}")

def wave_sum(S, x, t):
    for m in ("quad_perm:[1,0,3,2]", "quad_perm:[2,3,0,1]", "row_half_mirror", "row_mirror"):
        S.e(f"v_add_f32_dpp v{x}, v{x}, v{x} {m} row_mask:0xf bank_mask:0xf")
    S.e(f"v_mov_b32 v{t}, v{x}\nv_permlane16_swap_b32 v{t}, v{x}\nv_add_f32 v{x}, v{x}, v{t}")
    xhalf(S, "v_add_f32", x, t)


MB_OFF = 0xE00000; MB_STRIDE = 4096 + 256
OST = CNT + 320; STL = 156672
TOK = CNT + 256
S_TOK = 98
def signal(tag, cnt_off, kind, lab, A, B, Cc, last, direct=None):
    G = Stream()
    if tag: G.wait_vm(*tag.split(","))
    if direct is not None: G.e(f"s_cmp_lg_u32 s3, {direct}\ns_cbranch_scc1 {lab}")
    else: G.e(f"""
    v_mov_b32 v{A}, {CNT + cnt_off}
    v_mov_b32 v{B}, 1
    s_mov_b64 exec, 1
    ds_add_rtn_u32 v{Cc}, v{A}, v{B}
    s_mov_b64 exec, -1
    v_readfirstlane_b32 {t1}, v{Cc}
    s_cmp_lg_u32 {t1}, {last}
    s_cbranch_scc1 {lab}
    """)
    if kind == "h":
        G.e(f"""
        s_and_b32 {t1}, s{S_MT}, 3
        s_lshl_b32 {t1}, {t1}, 1
        s_lshr_b32 {t2}, s{S_MT}, 2
        s_add_u32 {t1}, {t1}, {t2}
        s_mul_i32 {t1}, {t1}, {MB_STRIDE}
        s_bfe_u32 {t2}, s{S_SROW}, 0x50003
        s_lshl_b32 {t2}, {t2}, 2
        s_add_u32 {t1}, {t1}, {t2}
        s_add_u32 {t1}, {t1}, {MB_OFF}
        v_mul_u32_u24 v{Cc}, {8*MB_STRIDE}, v{V_L}
        v_mov_b32 v{B}, s{S_TOK}
        s_mov_b64 exec, 0xfffffff
        """, opt=True)
    else:
        G.e(f"""
        s_lshr_b32 {t1}, s{S_HEAD}, 2
        s_lshl_b32 {t1}, {t1}, 1
        s_and_b32 {t2}, s{S_HEAD}, 3
        s_lshl_b32 {t2}, {t2}, 6
        s_add_u32 {t1}, {t1}, {t2}
        s_mul_i32 {t1}, {t1}, {MB_STRIDE}
        s_lshl_b32 {t2}, s{S_MT}, 2
        s_add_u32 {t1}, {t1}, {t2}
        s_add_u32 {t1}, {t1}, {MB_OFF + 128}
        v_and_b32 v{Cc}, 3, v{V_L}
        v_lshlrev_b32 v{Cc}, 3, v{Cc}
        v_lshrrev_b32 v{A}, 2, v{V_L}
        v_add_u32 v{Cc}, v{Cc}, v{A}
        v_mul_u32_u24 v{Cc}, {MB_STRIDE}, v{Cc}
        v_mov_b32 v{B}, s{S_TOK}
        s_mov_b64 exec, 0xff
        """, opt=True)
    G.e(f"buffer_store_dword v{B}, v{Cc}, {sq(S_WS)}, {t1} offen sc1", opt=True)
    G.e(f"s_mov_b64 exec, -1", opt=True)
    G.e(f"{lab}:")
    return G

def tok_issue(G, lab, A, D, who):
    G.e(f"v_and_b32 v{A}, 7, v{V_L}\nv_lshlrev_b32 v{A}, 5, v{A}\ns_cmp_lg_u32 s3, {who}\ns_cbranch_scc1 {lab}")
    G.e(f"buffer_load_dword v{D}, v{A}, {sq(S_DBG)}, 0 offen sc1", opt=True)
    G.e(f"{lab}:")
def tok_fetch(lab, need_all, A, D, who=0, issued=False):
    G = Stream()
    G.e(f"s_cmp_lg_u32 s3, {who}\ns_cbranch_scc1 {lab}_ok")
    chk = (f"v_cmp_eq_u32_e64 {M1}, 0, v{D}\ns_cmp_eq_u64 {M1}, 0" if need_all else f"s_and_b32 {t2}, s2, 7\nv_readlane_b32 {t1}, v{D}, {t2}\ns_cmp_lg_u32 {t1}, 0")
    G.e(f"""
    {'' if issued else f'v_and_b32 v{A}, 7, v{V_L}'}
    {'' if issued else f'v_lshlrev_b32 v{A}, 5, v{A}'}
    s_mov_b32 {t3}, 0
    {f's_branch {lab}_chk' if issued else ''}
    {lab}_loop:
    buffer_load_dword v{D}, v{A}, {sq(S_DBG)}, 0 offen sc1
    {lab}_chk:
    s_waitcnt vmcnt(0)
    s_add_u32 {t3}, {t3}, 1
    {chk}
    s_cbranch_scc1 {lab}_wr
    s_sleep 16
    s_cmp_lt_u32 {t3}, 0x4000
    s_cbranch_scc1 {lab}_loop
    {lab}_wr:
    v_lshrrev_b32 v{A}, 3, v{A}
    v_add_u32 v{A}, {TOK}, v{A}
    ds_write_b32 v{A}, v{D}
    """, opt=True)
    G.e(f"{lab}_ok:")
    G.append(pseudo("forget_opt"))
    return G
def tok_read(G, sdst, idx_expr, A):
    G.e(f"{idx_expr}\ns_lshl_b32 {t0}, {t0}, 2\ns_add_u32 {t0}, {t0}, {TOK}\nv_mov_b32 v{A}, {t0}\nds_read_b32 v{A}, v{A}\nv_readfirstlane_b32 {sdst}, v{A}")

def tile_addrs(S, typ, AT, T):
    R, C, HH, NH = T + 1, T + 2, T + 3, T + 4
    S.e(f"""
    v_lshrrev_b32 v{HH}, 5, v{V_L}
    v_bfe_u32 v{NH}, v{V_L}, 4, 1
    v_bfe_u32 v{R}, v{V_L}, 2, 2
    v_and_b32 v{C}, 3, v{V_L}
    v_lshl_add_u32 v{T+5}, v{HH}, 3, v{R}
    v_lshlrev_b32 v{T+6}, 6, v{T+5}
    v_lshl_add_u32 v{T+8}, v{NH}, 2, v{C}
    v_add_u32 v{T+8}, s{S_ODD}, v{T+8}
    v_and_b32 v{T+8}, 7, v{T+8}
    v_lshl_add_u32 v{T+8}, v{T+8}, 3, v{T+6}
    """)
    if typ == "q":
        S.e(f"""
        v_add_u32 v{AT}, {W0 + 16384}, v{T+8}
        v_lshrrev_b32 v{T+6}, 1, v{C}
        v_and_b32 v{T+7}, 2, v{R}
        v_xor_b32 v{T+6}, v{T+6}, v{T+7}
        v_lshl_add_u32 v{T+6}, v{NH}, 2, v{T+6}
        v_lshlrev_b32 v{T+7}, 7, v{T+5}
        v_lshl_add_u32 v{T+7}, v{T+6}, 4, v{T+7}
        v_and_b32 v{T+6}, 1, v{C}
        v_lshl_add_u32 v{T+7}, v{T+6}, 3, v{T+7}
        v_lshl_add_u32 v{T+7}, v{NH}, 13, v{T+7}
        v_add_u32 v{AT+1}, {W0}, v{T+7}
        v_xor_b32 v{AT+2}, 32, v{AT+1}
        v_xor_b32 v{AT+3}, 64, v{AT+1}
        v_xor_b32 v{AT+4}, 0x60, v{AT+1}
        """)
    else:
        S.e(f"""
        v_add_u32 v{AT}, {W0}, v{T+8}
        v_lshl_add_u32 v{T+7}, v{C}, 3, v{T+6}
        v_mul_u32_u24 v{T+8}, 1056, v{NH}
        v_add_u32 v{AT+1}, v{T+7}, v{T+8}
        v_add_u32 v{AT+1}, {W0 + 2048}, v{AT+1}
        v_xor_b32 v{AT+2}, 32, v{AT+1}
        v_lshlrev_b32 v{T+6}, 5, v{T+5}
        v_lshl_add_u32 v{T+6}, v{C}, 3, v{T+6}
        v_mul_u32_u24 v{T+7}, 2176, v{NH}
        v_add_u32 v{AT+3}, v{T+6}, v{T+7}
        v_add_u32 v{AT+3}, {W0 + 16384}, v{AT+3}
        v_xor_b32 v{AT+4}, 0x80, v{AT+3}
        """)

def tile_read_args(typ, t, s, e):
    if typ == "q":
        return (0, s*1024 + e*256) if t == 0 else (t, s*2048 + e*512)
    if t == 0: return (0, s*4096 + e*256)
    if t == 1: return (0, s*4096 + 1024 + e*256)
    if t == 2: return (3 + e, s*512)
    return (t - 2, s*4096 + e*256)

def pk(S, op, d, srcs, neg=None):
    ops = []; lo = []; hi = []
    for kind, r in srcs:
        if kind == "p": assert r % 2 == 0; ops.append(vr(r, 2)); lo.append(0); hi.append(1)
        else: ops.append(vr(r & ~1, 2)); lo.append(r & 1); hi.append(r & 1)
    assert d % 2 == 0
    txt = f"v_pk_{op}_f32 {vr(d, 2)}, " + ", ".join(ops)
    if any(lo): txt += " op_sel:[" + ",".join(map(str, lo)) + "]"
    if not all(hi): txt += " op_sel_hi:[" + ",".join(map(str, hi)) + "]"
    if neg: txt += f" neg_lo:[{','.join(map(str, neg))}] neg_hi:[{','.join(map(str, neg))}]"
    S.e(txt)
    S[-1].opsel = False

def scale16(S, a):
    for i in range(0, 16, 2): pk(S, "mul", a + i, [("p", a + i), ("b", V_RINV)])

def geglu(S, a, T, unit_sgpr, unit_add):
    R = range(0, 8, 2)
    for i in R: pk(S, "mul", T + i, [("p", a + i), ("p", a + i)])
    for i in R: pk(S, "fma", T + i, [("p", T + i), ("b", V_C1), ("b", V_C0)])
    for i in R: pk(S, "mul", T + i, [("p", T + i), ("p", a + i)])
    for i in range(8): S.e(f"v_exp_f32 v{T+i}, v{T+i}")
    for i in R: pk(S, "mul", a + i, [("p", a + i), ("p", a + 8 + i)])
    for i in R: pk(S, "fma", T + i, [("p", T + i), ("b", V_S2), ("b", V_S2)])
    for i in range(8): S.e(f"v_rcp_f32 v{T+i}, v{T+i}")
    for i in R: pk(S, "mul", a + i, [("p", a + i), ("p", T + i)])
    for i in range(4): S.e(f"v_cvt_pk_bf16_f32 v{T+8+i}, v{a+2*i}, v{a+2*i+1}")
    S.e(f"s_add_u32 s{S_G}, s{unit_sgpr}, {unit_add * 1024}")
    S.e(f"buffer_store_dwordx4 {vr(T+8)}, v{V_L16}, {sq(S_WS)}, s{S_G} offen{OPT['hf_flags']}", tag="hst")

def softmax14(S, P, E, T):
    N = 14; R = range(0, N, 2)
    for i in range(7): S.e(f"v_cvt_pk_bf16_f32 v{E+i}, v{P+2*i}, v{P+2*i+1}")
    for i in range(7): S.e(f"v_lshlrev_b32 v{P+2*i}, 16, v{E+i}\nv_and_b32 v{P+2*i+1}, 0xffff0000, v{E+i}")
    L = T + 4
    S.e(f"v_mov_b32 v{L}, {f32(1.4426950408889634)}")
    MX, MN = T, T + 1
    S.e(f"v_max3_f32 v{MX}, v{P}, v{P+1}, v{P+2}\nv_min3_f32 v{MN}, v{P}, v{P+1}, v{P+2}")
    for i in range(3, 13, 2):
        S.e(f"v_max3_f32 v{MX}, v{MX}, v{P+i}, v{P+i+1}\nv_min3_f32 v{MN}, v{MN}, v{P+i}, v{P+i+1}")
    S.e(f"v_max_f32 v{MX}, v{MX}, v{P+13}\nv_min_f32 v{MN}, v{MN}, v{P+13}")
    S.e(f"v_mov_b32 v{T+2}, v{MX}\nv_mov_b32 v{T+3}, v{MN}\nv_permlane32_swap_b32 v{T+2}, v{MX}\nv_permlane32_swap_b32 v{T+3}, v{MN}")
    S.e(f"v_max_f32 v{MX}, v{MX}, v{T+2}\nv_min_f32 v{MN}, v{MN}, v{T+3}")
    pk(S, "mul", T, [("p", T), ("b", L)])
    for i in R: pk(S, "fma", E + i, [("p", P + i), ("b", L), ("b", MX)], neg=[0, 0, 1])
    for i in R: pk(S, "fma", P + i, [("p", P + i), ("b", L), ("b", MN)], neg=[1, 0, 0])
    for i in range(N): S.e(f"v_exp_f32 v{E+i}, v{E+i}")
    for i in range(N): S.e(f"v_exp_f32 v{P+i}, v{P+i}")
    pk(S, "add", T, [("p", E), ("p", E + 2)]); pk(S, "add", T + 2, [("p", P), ("p", P + 2)])
    for i in range(4, N, 2):
        pk(S, "add", T, [("p", T), ("p", E + i)]); pk(S, "add", T + 2, [("p", T + 2), ("p", P + i)])
    SP, SM = T, T + 1
    S.e(f"v_add_f32 v{SP}, v{T}, v{T+1}\nv_add_f32 v{SM}, v{T+2}, v{T+3}")
    S.e(f"v_mov_b32 v{T+2}, v{SP}\nv_mov_b32 v{T+3}, v{SM}\nv_permlane32_swap_b32 v{T+2}, v{SP}\nv_permlane32_swap_b32 v{T+3}, v{SM}")
    pk(S, "add", T, [("p", T), ("p", T + 2)])
    S.e(f"v_rcp_f32 v{SP}, v{SP}\nv_rcp_f32 v{SM}, v{SM}")
    for i in R: pk(S, "mul", E + i, [("p", E + i), ("b", SP)])
    for i in R: pk(S, "mul", P + i, [("p", P + i), ("b", SM)])
    for i in range(7): S.e(f"v_cvt_pk_bf16_f32 v{E+i}, v{E+2*i}, v{E+2*i+1}")
    for i in range(7): S.e(f"v_cvt_pk_bf16_f32 v{E+8+i}, v{P+2*i}, v{P+2*i+1}")
    S.e(f"v_mov_b32 v{E+7}, 0\nv_mov_b32 v{E+15}, 0")

def stats_consts(S):
    S.e(f"""
    v_mov_b32 v{BP}, v{V_RINV}
    v_mov_b32 v{BP+1}, v{V_RINV}
    v_mov_b32 v{BP+2}, v{V_RINV}
    v_mov_b32 v{BP+3}, v{V_RINV}
    v_rcp_f32 v{V_RINV}, v{V_SD}
    v_mul_f32 v{V_S2}, v{V_SD}, v{V_SD}
    v_mul_f32 v{V_C0}, {f32(-2.302208198)}, v{V_RINV}
    v_mul_f32 v{V_C1}, v{V_RINV}, v{V_RINV}
    v_mul_f32 v{V_C1}, v{V_C1}, v{V_C0}
    v_mul_f32 v{V_C1}, {f32(0.044715)}, v{V_C1}
    """)


def tagpoll(G, lab, A, D, soff, opt=False, first_issued=False, sleep=None):
    if first_issued:
        G.e(f"v_cmp_eq_u32_e64 {M1}, -1, v{D}\ns_mov_b32 {t3}, 0\ns_cmp_eq_u64 {M1}, 0\ns_cbranch_scc1 {lab}_ok")
        opt = True
    else:
        G.e(f"s_mov_b32 {t3}, 0")
    G.e(f"""
    {lab}_loop:
    buffer_load_dword v{D}, v{A}, {sq(S_WS)}, {soff} offen sc1
    s_waitcnt vmcnt(0)
    v_cmp_eq_u32_e64 {M1}, -1, v{D}
    s_add_u32 {t3}, {t3}, 1
    s_cmp_eq_u64 {M1}, 0
    s_cbranch_scc1 {lab}_ok
    s_sleep {sleep if sleep else OPT.get('sleep', 4)}
    s_cmp_lt_u32 {t3}, 0x8000
    s_cbranch_scc1 {lab}_loop
    """, opt=opt)
    G.e(f"{lab}_ok:")

def umax_tree(G, regs, T, opt=False):
    G.e(f"v_max3_u32 v{T}, v{regs[0]}, v{regs[1]}, v{regs[2]}", opt=opt)
    i = 3
    while i + 1 < len(regs):
        G.e(f"v_max3_u32 v{T}, v{T}, v{regs[i]}, v{regs[i+1]}", opt=opt); i += 2
    if i < len(regs): G.e(f"v_max_u32 v{T}, v{T}, v{regs[i]}", opt=opt)

def prologue():
    S = Stream()
    S.e(f"""
    s_cmp_ge_u32 s2, 256
    s_cbranch_scc1 K_END
    {'s_memrealtime s[92:93]' if OPT.get('stamps') else ''}
    s_load_dwordx16 s[4:19], s[0:1], 0
    s_load_dwordx4 s[20:23], s[0:1], 72
    s_load_dwordx2 s[{S_OUT}:{S_OUT+1}], s[0:1], 64
    v_lshrrev_b32 v{PT}, 6, v0
    v_and_b32 v{V_L}, 63, v0
    v_readfirstlane_b32 s3, v{PT}
    v_lshlrev_b32 v{V_L16}, 4, v{V_L}
    v_mov_b32 v{V_Z}, 0
    s_and_b32 {t0}, s2, 7
    s_lshr_b32 {t1}, s2, 3
    s_and_b32 s{S_MT}, {t0}, 1
    s_lshl_b32 s{S_MT}, s{S_MT}, 2
    s_and_b32 {t2}, {t1}, 3
    s_add_u32 s{S_MT}, s{S_MT}, {t2}
    s_lshr_b32 s{S_C4}, {t0}, 1
    s_lshr_b32 {t1}, {t1}, 2
    s_and_b32 s{S_TYPE}, {t1}, 1
    s_lshr_b32 s{S_HL}, {t1}, 1
    s_lshl_b32 s{S_HEAD}, s{S_C4}, 2
    s_add_u32 s{S_HEAD}, s{S_HEAD}, s{S_HL}
    s_and_b32 s{S_ODD}, s{S_HEAD}, 1
    s_lshl_b32 {t2}, s{S_MT}, 2
    s_add_u32 {t2}, {t2}, s{S_C4}
    s_lshl_b32 {t2}, {t2}, 3
    s_add_u32 {t2}, {t2}, {t1}
    s_lshl_b32 {t2}, {t2}, 3
    s_and_b32 {t3}, s3, 7
    s_add_u32 s{S_SROW}, {t2}, {t3}
    s_mov_b32 s{S_HH}, 0
    s_mov_b32 s{S_HH+1}, -1
    s_mul_i32 {t0}, s{S_C4}, 896
    s_lshl_b32 {tm}, s{S_HL}, 7
    s_add_u32 {t3}, {t0}, {tm}
    s_add_u32 {t0}, {t0}, 512
    s_mul_i32 {t1}, s{S_HL}, 3
    s_and_b32 {t2}, s{S_HL}, 1
    s_add_u32 {t5}, {t1}, {t2}
    s_lshl_b32 {t2}, {t2}, 1
    s_add_u32 {t1}, {t1}, 2
    s_sub_u32 {t1}, {t1}, {t2}
    s_lshl_b32 {t1}, {t1}, 5
    s_add_u32 {t1}, {t1}, {t0}
    s_lshl_b32 {t5}, {t5}, 5
    s_add_u32 {t0}, {t0}, {t5}
    s_cmp_eq_u32 s{S_TYPE}, 1
    s_cselect_b32 s{S_U0}, {t1}, {t3}
    s_cselect_b32 s{S_U12}, {t0}, {t3}
    s_cmp_lt_u32 s3, 8
    s_cbranch_scc1 K_comp
    """)
    return S

def p2_ids(S):
    S.e(f"""
    s_and_b32 {t0}, s2, 7
    s_lshr_b32 {t1}, s2, 3
    s_and_b32 {t2}, {t0}, 1
    s_lshl_b32 {t2}, {t2}, 2
    s_lshr_b32 {t0}, {t0}, 1
    s_add_u32 s{S_MT2}, {t0}, {t2}
    s_lshl_b32 s{S_M64}, s{S_MT2}, 2
    s_and_b32 {t2}, {t1}, 3
    s_add_u32 s{S_M64}, s{S_M64}, {t2}
    s_lshr_b32 s{S_N64}, {t1}, 2
    """)
def p2_a_voffsets(S, VD, VO, VOM, T):
    S.e(f"""
    v_lshrrev_b32 v{T}, 3, v{V_L}
    v_and_b32 v{T+1}, 7, v{V_L}
    v_bfe_u32 v{T+2}, v{V_L}, 4, 1
    v_lshlrev_b32 v{T+2}, 2, v{T+2}
    v_xor_b32 v{T+1}, v{T+1}, v{T+2}
    s_lshl_b32 {t0}, s{S_N64}, 7
    v_lshlrev_b32 v{T+1}, 4, v{T+1}
    v_add_u32 v{T+1}, {t0}, v{T+1}
    v_mul_u32_u24 v{VD}, 896, v{T}
    v_add_u32 v{VD}, v{VD}, v{T+1}
    """)
    if VO is not None:
        S.e(f"""
        v_lshrrev_b32 v{T+2}, 2, v{T}
        v_and_b32 v{T+3}, 3, v{T}
        v_mad_u32_u24 v{T+2}, v{T+2}, 14, v{T+3}
        v_mul_u32_u24 v{VO}, 896, v{T+2}
        v_add_u32 v{VO}, v{VO}, v{T+1}
        v_cmp_lt_u32_e64 {M1}, 1, v{T+3}
        v_mov_b32 v{T+2}, 0x7f000000
        v_cndmask_b32_e64 v{VOM}, v{VO}, v{T+2}, {M1}
        """)

def hsync(S, lab, cnt_off, target, A, B):
    S.wait_lgkm()
    S.e(f"""
    v_mov_b32 v{A}, {CNT + cnt_off}
    v_mov_b32 v{B}, 1
    s_mov_b64 exec, 1
    ds_add_u32 v{A}, v{B}
    s_mov_b64 exec, -1
    {lab}:
    ds_read_b32 v{B}, v{A}
    s_waitcnt lgkmcnt(0)
    v_readfirstlane_b32 {t1}, v{B}
    s_cmp_lt_u32 {t1}, {target}
    s_cbranch_scc1 {lab}
    """)

def helper_head():
    S = Stream(); T = PT
    S.e("K_helper:")
    S.e(f"s_setprio {OPT.get('hprio', 3)}")
    S.e(f"""
    s_sub_u32 s{S_H}, s3, 8
    s_lshl_b32 {t0}, s{S_MT}, 2
    s_add_u32 {t0}, {t0}, s{S_H}
    s_mul_i32 s{S_XROW}, {t0}, {64*896}
    s_mul_i32 s{S_AREA}, s{S_H}, {2*AREA}
    v_lshrrev_b32 v{T+7}, 3, v{V_L}
    v_mul_u32_u24 v{T}, 896, v{T+7}
    v_and_b32 v{T+8}, 7, v{V_L}
    v_lshrrev_b32 v{T+2}, 4, v{V_L}
    v_xor_b32 v{T+1}, v{T+8}, v{T+2}
    v_lshl_add_u32 v4, v{T+1}, 4, v{T}
    v_xor_b32 v5, 64, v4
    s_mul_i32 {t1}, s{S_HEAD}, 56
    s_lshl_b32 {t2}, s{S_ODD}, 3
    s_sub_u32 {t1}, {t1}, {t2}
    v_lshrrev_b32 v{T}, 2, v{V_L}
    v_and_b32 v{T+1}, 3, v{V_L}
    v_mul_u32_u24 v{T+4}, 2688, v{T}
    v_lshl_add_u32 v{T+4}, v{T+1}, 4, v{T+4}
    s_mul_i32 {tm}, s{S_H}, {16*2688}
    s_add_u32 {t1}, {t1}, {tm}
    v_add_u32 v6, {t1}, v{T+4}
    s_waitcnt lgkmcnt(0)
    """)
    srd(S, S_X, 4, 2048 * 896); srd(S, S_WQ, 6, 448 * 2688); srd(S, S_WG, 14, 448 * 3584); srd(S, S_WU, 16, 448 * 3584)
    S.e(f"s_cmp_eq_u32 s{S_TYPE}, 1\ns_cbranch_scc1 K_hkv")
    return S

def helper(typ):
    q = typ == "q"
    S = Stream(); T = PT
    S.e(f"K_h{typ}:")
    global HST
    HST = Stamper(STAMPR); HST.n = 1; HST.names = ["start"]
    V_XE, V_XO, V_DQ, V_DG, V_DU, V_DS = 4, 5, 6, 7, 8, 9
    V_AC = 10; V_PF = 16
    CA = 18; CU = 23; CT = 34
    if q:
        S.e(f"""
        v_bfe_u32 v{T+2}, v{V_L}, 4, 1
        v_lshlrev_b32 v{T+2}, 1, v{T+2}
        v_xor_b32 v{T+2}, v{T+2}, v{T+8}
        v_mul_u32_u24 v{T+3}, 3584, v{T+7}
        v_lshl_add_u32 v{T+2}, v{T+2}, 4, v{T+3}
        s_mul_i32 {tm}, s{S_H}, {16*3584}
        s_add_u32 {tm}, {tm}, s{S_U0}
        v_add_u32 v{V_DG}, {tm}, v{T+2}
        v_xor_b32 v{V_DU}, 64, v{V_DG}
        """)
    else:
        S.e(f"""
        v_mul_u32_u24 v{T+3}, 3584, v{T}
        v_lshl_add_u32 v{V_DG}, v{T+1}, 4, v{T+3}
        s_mul_i32 {tm}, s{S_H}, {16*3584}
        s_add_u32 {tm}, {tm}, s{S_U12}
        v_add_u32 v{V_DG}, {tm}, v{V_DG}
        v_xor_b32 v{V_DU}, 32, v{V_DG}
        s_lshr_b32 {t2}, s{S_H}, 1
        s_cmp_eq_u32 {t2}, 0
        s_cselect_b32 s{S_D1}, s14, s16
        s_cselect_b32 s{S_D1+1}, s15, s17
        s_mov_b32 s{S_D1+2}, {448*3584}
        s_mov_b32 s{S_D1+3}, 0x20000
        s_lshl_b32 {t2}, {t2}, 2
        v_lshrrev_b32 v{T+5}, 1, v{V_L}
        v_xor_b32 v{T+5}, {t2}, v{T+5}
        v_mul_u32_u24 v{T+5}, 3584, v{T+5}
        v_and_b32 v{T+6}, 1, v{V_L}
        v_lshl_add_u32 v{T+5}, v{T+6}, 4, v{T+5}
        s_and_b32 {t2}, s{S_H}, 1
        s_mul_i32 {t2}, {t2}, {32*3584}
        s_add_u32 {t2}, {t2}, s{S_U0}
        v_add_u32 v{V_DS}, {t2}, v{T+5}
        """)
    S.e(f"s_lshl_b32 s{S_D0L}, s{S_H}, 10\ns_add_u32 s{S_D0L}, s{S_D0L}, {W0}\ns_lshl_b32 s{S_G}, s{S_H}, {11 if q else 12}\ns_add_u32 s{S_G}, s{S_G}, {W0}")
    def dma(c, lo=0, hi=13):
        sb = (c % 3) * WS_
        L = []
        def one(m0expr, soff, v, srdreg): L.append((m0expr, soff, v, srdreg))
        if q:
            one(f"s{S_D0L}, {sb + 16384}", f"s_mov_b32 {tm}, {c*172032}", V_DQ, S_WQ)
            for rg in range(2):
                one(f"s{S_G}, {sb + rg*1024}", f"s_mov_b32 {tm}, {c*229376 + rg*8*3584}", V_DG, S_WG)
                one(f"s{S_G}, {sb + 8192 + rg*1024}", f"s_mov_b32 {tm}, {c*229376 + rg*8*3584}", V_DU, S_WU)
        else:
            one(f"s{S_G}, {sb}", f"s_mov_b32 {tm}, {c*172032 + 896}", V_DQ, S_WQ)
            one(f"s{S_G}, {sb + 1024}", f"s_mov_b32 {tm}, {c*172032 + 1792}", V_DQ, S_WQ)
            one(f"s{S_G}, {sb + 2048}", f"s_mov_b32 {tm}, {c*229376}", V_DG, S_WG)
            one(f"s{S_G}, {sb + 3072}", f"s_mov_b32 {tm}, {c*229376}", V_DU, S_WU)
            one(f"s{S_D0L}, {sb + 16384}", f"s_mov_b32 {tm}, {c*229376}", V_DS, S_D1)
        for i in range(8):
            wv, qq = i >> 2, i & 3
            one(f"s{S_AREA}, {wv*AREA + (c % 3)*4096 + qq*1024}", f"s_add_u32 {tm}, s{S_XROW}, {(wv*32 + qq*8)*896 + c*128}", V_XO if qq & 1 else V_XE, S_X)
        if OPT.get('xfirst') and c == 0: L = L[5:] + L[:5]
        for (m0expr, soff, v, srdreg) in L[lo:hi]:
            S.e(f"s_add_u32 m0, {m0expr}\n{soff}")
            fl = OPT.get("x_flags", "") if srdreg == S_X else OPT.get("w_flags", "")
            S.e(f"buffer_load_dwordx4 v{v}, {sq(srdreg)}, {tm} offen{fl} lds", tag=f"d{c}")
    plan = [int(x) for x in OPT.get("dplan" + typ, OPT.get("dplan", "23,13,13,14,14,14")).split(",")]
    pos = [0]
    def issue(n, limit_chunk):
        while n > 0 and pos[0] < 91 and pos[0] // 13 <= limit_chunk:
            c, i = divmod(pos[0], 13)
            dma(c, i, i + 1); pos[0] += 1; n -= 1
    issue(13, 2)
    def setup2():
        tile_addrs(S, typ, V_AC, 60)
        for t in range(5):
            stride = (1024 if t == 0 else 2048) if q else (512 if t >= 3 else 4096)
            S.e(f"s_mul_i32 {t0}, s{S_H}, {stride}\nv_add_u32 v{V_AC+t}, {t0}, v{V_AC+t}")
        for i in range(5): S.e(f"v_mov_b32 v{CA+i}, 0")
    if not OPT.get('late2'): setup2()
    issue(plan[0] - 13, 2)
    def colsum_rd(c):
        for t in range(5):
            for e in range(2):
                a, imm = tile_read_args(typ, t, 0, e)
                S.e(f"ds_read_b64_tr_b16 {vr(CT + 20*(c % 5) + 4*t + 2*e, 2)}, v{V_AC+a} offset:{(c % 3)*WS_ + imm}")
    hb = [0]
    CM = OPT.get("csmode", "mfma")
    if CM == "mfma":
        for i in range(20): S.e(f"v_mov_b32 v{140+i}, 0")
        S.e("v_mov_b32 v134, 0x3f803f80\nv_mov_b32 v135, 0x3f803f80")
    def colsum_add(nhalf):
        if CM != "valu":
            for _ in range(nhalf):
                c, hf = hb[0] >> 1, hb[0] & 1; hb[0] += 1
                for t in range(5):
                    src = CT + 20*(c % 5) + 4*t + 2*hf
                    if CM == "mfma": S.e(f"v_mfma_f32_4x4x4_16b_bf16 {vr(140+4*t)}, v[134:135], {vr(src, 2)}, {vr(140+4*t)}")
                    else: S.e(f"v_dot2c_f32_bf16 v{CA+t}, 0x3f803f80, v{src}")
                if CM == "dot":
                    for t in range(5): S.e(f"v_dot2c_f32_bf16 v{CA+t}, 0x3f803f80, v{CT + 20*(c % 5) + 4*t + 2*hf + 1}")
            return
        for _ in range(nhalf):
            c, hf = hb[0] >> 1, hb[0] & 1; hb[0] += 1
            for j in (2*hf, 2*hf + 1):
                src = CT + 20*(c % 5) + j
                for t in range(5): S.e(f"v_lshlrev_b32 v{CU+t}, 16, v{src + 4*t}")
                for t in range(5): S.e(f"v_and_b32 v{CU+5+t}, 0xffff0000, v{src + 4*t}")
                for t in range(5): S.e(f"v_add_f32 v{CA+t}, v{CA+t}, v{CU+t}")
                for t in range(5): S.e(f"v_add_f32 v{CA+t}, v{CA+t}, v{CU+5+t}")
    F2 = (lambda n: HST(S, n, fine=True)) if OPT.get('hfine2') else (lambda n: None)
    S.wait_vm("d0"); S.e("s_barrier")
    F2("b0")
    srd(S, S_WS, 22, WS_SIZE); srd(S, S_DBG, 20, 256)
    S.e(f"v_and_b32 v16, 7, v{V_L}\nv_lshlrev_b32 v16, 5, v16")
    S.e(f"s_cmp_eq_u32 s3, 8\ns_cselect_b32 {t0}, 0, 0x40000000")
    S.e(f"buffer_load_dword v17, v16, {sq(S_DBG)}, {t0} offen sc1", tag="tok")
    if OPT.get('late2'):
        issue(6, 2); setup2(); colsum_rd(0); issue(plan[1] - 6, 2)
    else:
        colsum_rd(0); issue(plan[1], 2)
    F2("p1")
    S.wait_lgkm(); S.wait_vm("d1"); F2("l1"); S.e("s_barrier")
    colsum_rd(1); issue(plan[2], 3)
    srd(S, S_WO, 8, 16 * 1568); srd(S, S_WD, 18, 1792 * 896)
    PZ = 160
    def poison():
        for i in range(4): S.e(f"v_mov_b32 v{PZ+i}, -1")
        if q:
            S.e(f"s_lshl_b32 {t0}, s{S_MT}, 2\ns_add_u32 {t0}, {t0}, s{S_H}\ns_mul_i32 {t0}, {t0}, {2*NKS*1024}\ns_lshl_b32 {t1}, s{S_HEAD}, 11\ns_add_u32 {t0}, {t0}, {t1}\ns_add_u32 {t0}, {t0}, {112*1024}\ns_add_u32 {t1}, {t0}, {NKS*1024}")
            for so in (t0, t1):
                for u in range(2): S.e(f"buffer_store_dwordx4 {vr(PZ)}, v{V_L16}, {sq(S_WS)}, {so} offen offset:{u*1024} sc1", tag="poi")
        else:
            S.e(f"s_lshl_b32 {t0}, s{S_HEAD}, 3\ns_add_u32 {t0}, {t0}, s{S_MT}\ns_lshl_b32 {t0}, {t0}, 2\ns_add_u32 {t0}, {t0}, s{S_H}\ns_lshl_b32 {t0}, {t0}, 11\ns_add_u32 {t0}, {t0}, {KVP_OFF}")
            for u in range(2): S.e(f"buffer_store_dwordx4 {vr(PZ)}, v{V_L16}, {sq(S_WS)}, {t0} offen offset:{u*1024} sc1", tag="poi")
    S.e(f"""
    s_and_b32 {t2}, s2, 7
    v_readlane_b32 s{S_TOK}, v17, {t2}
    s_mov_b32 {t3}, 0
    s_cmp_eq_u32 s3, 8
    s_cselect_b32 s{S_TOK}, s{S_TOK}, 1
    s_cmp_lg_u32 s{S_TOK}, 0
    s_cbranch_scc1 K_h{typ}_tok
    """)
    S.e(f"""
    K_h{typ}_tokl:
    s_sleep 16
    buffer_load_dword v17, v16, {sq(S_DBG)}, 0 offen sc1
    s_waitcnt vmcnt(0)
    v_readlane_b32 s{S_TOK}, v17, {t2}
    s_add_u32 {t3}, {t3}, 1
    s_cmp_lg_u32 s{S_TOK}, 0
    s_cbranch_scc1 K_h{typ}_tok
    s_cmp_lt_u32 {t3}, 0x4000
    s_cbranch_scc1 K_h{typ}_tokl
    """, opt=True)
    S.e(f"K_h{typ}_tok:")
    S.append(pseudo("forget_opt"))
    S.e(f"""
    v_lshrrev_b32 v{PZ+4}, 2, v16
    v_add_u32 v{PZ+4}, {OST}, v{PZ+4}
    ds_read_b64 {vr(PZ+4, 2)}, v{PZ+4}
    v_mov_b32 v{PZ+6}, s{S_TOK}
    v_mov_b32 v{PZ+7}, 0
    s_and_b32 {t0}, s{S_SROW}, 0xfffffff8
    s_lshl_b32 {t0}, {t0}, 4
    s_add_u32 {t0}, {t0}, {STATS_OFF}
    s_cmp_eq_u32 s3, 8
    s_cselect_b32 {t0}, {t0}, 0x40000000
    s_mov_b64 exec, 0xff
    buffer_store_dwordx4 {vr(PZ+4)}, v{V_L16}, {sq(S_WS)}, {t0} offen sc1
    s_mov_b64 exec, -1
    """)
    sched = dict(zip(range(2, 7), [int(x) for x in OPT.get('sched', '2,2,2,4,4').split(',')]))
    for c in range(2, 7):
        F = (lambda n: HST(S, n, fine=True)) if (c in (2, 3) and OPT.get('hfine')) else (lambda n: None)
        if c == 6: S.extend(tok_fetch(f"K_h{typ}_tk2", True, 16, 17, who=8))
        F("pre")
        if c <= 4: F2(f"p{c}")
        S.wait_lgkm(); S.wait_vm(f"d{c}")
        if c <= 4: F2(f"l{c}")
        F("landed")
        S.e("s_barrier")
        F("bar")
        if c in (4, 5): F2(f"b{c}")
        issue(plan[c + 1] if c + 1 < len(plan) else 99, c + 2)
        if c == 4: poison()
        if c == 5: S.wait_vm("poi")
        if c == 6 and not q: S.extend(signal(None, 4, "kp", f"K_h{typ}_nosigkp", 164, 165, 166, 3, direct=8))
        if c == 5:
            S.e(f"s_lshl_b32 s{S_TOK+1}, s{S_MT}, 2\ns_add_u32 s{S_TOK+1}, s{S_TOK+1}, s{S_H}\ns_lshl_b32 s{S_TOK+1}, s{S_TOK+1}, 10\ns_add_u32 s{S_TOK+1}, s{S_TOK+1}, {STATS_OFF}")
            S.e(f"buffer_load_dwordx3 v[160:162], v{V_L16}, {sq(S_WS)}, s{S_TOK+1} offen sc1")
        if c == 6:
            tok_read(S, t4, f"s_lshl_b32 {t0}, s{S_H}, 1\ns_lshr_b32 {t1}, s{S_MT}, 2\ns_add_u32 {t0}, {t0}, {t1}", 163)
            S.e(f"v_cmp_ne_u32_e64 {M1}, {t4}, v162\ns_mov_b32 {t3}, 0\ns_cmp_eq_u64 {M1}, 0\ns_cbranch_scc1 K_h{typ}_stok")
            S.e(f"""
            K_h{typ}_st:
            s_sleep 8
            buffer_load_dwordx3 v[160:162], v{V_L16}, {sq(S_WS)}, s{S_TOK+1} offen sc1
            s_waitcnt vmcnt(0)
            v_cmp_ne_u32_e64 {M1}, {t4}, v162
            s_add_u32 {t3}, {t3}, 1
            s_cmp_eq_u64 {M1}, 0
            s_cbranch_scc1 K_h{typ}_stok
            s_cmp_lt_u32 {t3}, 0x8000
            s_cbranch_scc1 K_h{typ}_st
            """, opt=True)
            S.e(f"K_h{typ}_stok:")
            S.append(pseudo("forget_opt"))
            S.e(f"v_lshlrev_b32 v163, 3, v{V_L}\ns_lshl_b32 {t0}, s{S_H}, 9\ns_add_u32 {t0}, {t0}, {STL}\nv_add_u32 v163, {t0}, v163\nds_write_b64 v163, v[160:161]")
        assert pos[0] >= min(91, 13 * (c + 2)), (c, pos[0])
        F("dma")
        if c == int(OPT.get('phic', 5)):
            for i in range(2):
                S.e(f"""
                v_lshrrev_b32 v{T+28}, 4, v{V_L}
                s_lshl_b32 {t0}, s{S_H}, 3
                s_add_u32 {t0}, {t0}, {4*i}
                v_add_u32 v{T+28}, {t0}, v{T+28}
                v_bfe_u32 v{T+29}, v{V_L}, 3, 1
                v_and_b32 v{T+30}, 7, v{V_L}
                v_mad_u32_u24 v{T+29}, v{T+29}, 7, v{T+30}
                v_mad_u32_u24 v{T+29}, v{T+28}, 14, v{T+29}
                v_lshlrev_b32 v{T+29}, 2, v{T+29}
                v_cmp_eq_u32_e64 {M1}, 7, v{T+30}
                s_cmp_eq_u32 {t0}, 28
                s_cselect_b64 {M1}, -1, {M1}
                v_mov_b32 v{T+30}, 0x7fffff00
                v_cndmask_b32_e64 v{T+29}, v{T+29}, v{T+30}, {M1}
                s_mul_i32 {t1}, s{S_HEAD}, 1568
                s_lshl_b32 {t0}, {t0}, 6
                s_add_u32 m0, {t0}, {WPHI}
                """)
                S.e(f"buffer_load_dword v{T+29}, {sq(S_WO)}, {t1} offen lds", tag="phi")
        if c == int(OPT.get("pfc", 6)) and OPT["prefetch"]:
            S.e(f"""
            s_lshr_b32 {t0}, s2, 3
            s_lshl_b32 {t0}, {t0}, 2
            s_add_u32 {t0}, {t0}, s{S_H}
            s_lshl_b32 {t0}, {t0}, 14
            s_mov_b32 {t3}, {1792*896}
            s_cmp_lt_u32 {t0}, {t3}
            s_cselect_b32 s{S_PF}, s18, s10
            s_cselect_b32 s{S_PF+1}, s19, s11
            s_cselect_b32 s{S_PF+2}, {t3}, {448*896}
            s_mov_b32 s{S_PF+3}, 0x20000
            s_cselect_b32 {t3}, 0, {t3}
            s_sub_u32 {t0}, {t0}, {t3}
            v_lshlrev_b32 v{V_PF}, 7, v{V_L}
            s_add_u32 {t1}, {t0}, 0x2000
            """)
            S.e(f"buffer_load_dword v{T+27}, v{V_PF}, {sq(S_PF)}, {t0} offen\nbuffer_load_dword v{T+28}, v{V_PF}, {sq(S_PF)}, {t1} offen", tag="pf")
        if c >= 5:
            colsum_rd(c); colsum_add(sched[c])
        else:
            colsum_rd(c); colsum_add(sched[c])
    assert hb[0] == 14
    if CM == "mfma":
        for t in range(5): S.e(f"v_mov_b32 v{CA+t}, v{140+4*t}")
    S.e(f"s_lshl_b32 {t0}, s{S_H}, 2\ns_add_u32 {t0}, {t0}, {CSP}\nv_add_u32 v{T}, {t0}, v{V_L16}")
    for t in range(5): S.e(f"v_cvt_pk_bf16_f32 v{T+1+t}, v{CA+t}, v{CA+t}")
    for t in range(5): S.e(f"v_lshlrev_b32 v{T+1+t}, 16, v{T+1+t}")
    for t in range(5): S.e(f"v_sub_f32 v{T+1+t}, v{CA+t}, v{T+1+t}")
    for t in range(5): S.e(f"v_cvt_pk_bf16_f32 v{T+1+t}, v{CA+t}, v{T+1+t}")
    for t in range(5): S.e(f"ds_write_b32 v{T}, v{T+1+t} offset:{t*1024}")
    S.wait_vm("phi"); S.wait_lgkm()
    return S

def hpost(typ):
    q = typ == "q"
    S = Stream(); T = PT
    S.e(f"K_hpost_{typ}:")
    st = HST
    V_WD = 18
    p2_ids(S)
    p2_a_voffsets(S, V_WD, None, None, 60)
    S.e(f"""
    s_mul_i32 s{S_AREA}, s{S_H}, {2*REG2}
    s_and_b32 {t0}, s{S_H}, 1
    s_lshl_b32 {t0}, {t0}, 2
    s_lshr_b32 {t1}, s{S_H}, 1
    s_add_u32 {t0}, {t0}, {t1}
    s_mul_i32 s{S_XROW}, {t0}, {14*16*896}
    s_cmp_ge_u32 s2, 224
    s_cselect_b32 {t0}, 0x40000000, 0
    s_add_u32 s{S_XROW}, s{S_XROW}, {t0}
    """)
    def B1():
        S.e(f"s_barrier\ns_setprio {OPT.get('hprio2', 0)}")
        st(S, "B1")
    def adma(lo, hi):
        for i in range(lo, hi):
            for wv in range(2):
                for u in range(2):
                    S.e(f"s_add_u32 m0, s{S_AREA}, {wv*REG2 + i*2048 + u*1024}\ns_add_u32 {tm}, s{S_XROW}, {((wv*28 + i)*16 + 8*u)*896}")
                    S.e(f"buffer_load_dwordx4 v{V_WD}, {sq(S_WD)}, {tm} offen lds", tag="a1")
    if q:
        KO = 4; U = 5; PH = 100
        S.e(f"""
        s_lshl_b32 {t0}, s{S_H}, 11
        v_add_u32 v{KO}, {t0}, v{V_L16}
        v_and_b32 v{U+3}, 7, v{V_L}
        v_lshlrev_b32 v{U+3}, 13, v{U+3}
        v_add_u32 v{U+3}, 0x1e80, v{U+3}
        s_lshl_b32 {t0}, s{S_H}, 10
        s_add_u32 {t0}, {t0}, {KVF}
        v_add_u32 v{U}, {t0}, v{V_L16}
        v_add_u32 v{U+1}, {KVF}, v{V_L16}
        v_add_u32 v{U+2}, s{S_AREA}, v{V_L16}
        s_lshl_b32 {t0}, s{S_MT}, 2
        s_add_u32 {t0}, {t0}, s{S_H}
        s_mul_i32 s{S_HFB}, {t0}, {2*NKS*1024}
        s_lshl_b32 {t0}, s{S_HEAD}, 11
        s_add_u32 s{S_HFB}, s{S_HFB}, {t0}
        s_add_u32 s{S_HFB}, s{S_HFB}, {112*1024}
        s_lshl_b32 s{S_G}, s{S_HEAD}, 16
        s_add_u32 s{S_G}, s{S_G}, {KVP_OFF}
        """)
        B1(); adma(0, 6)
        S.wait_vm("a1")
        S.e(f"v_mov_b32 v12, {CNT + 20}\nv_mov_b32 v13, 1\ns_mov_b64 exec, 1\nds_add_u32 v12, v13\ns_mov_b64 exec, -1")
        S.e("s_barrier")
        st(S, "B2")
        for wv in range(2):
            for k in range(4): S.e(f"ds_read_b128 {vr(PH + 16*wv + 4*k)}, v{U+2} offset:{wv*REG2 + PKO + k*1024}")
        S.wait_lgkm()
        S.e(f"v_mov_b32 v12, {CNT + 12}\nv_mov_b32 v13, 1\ns_mov_b64 exec, 1\nds_add_u32 v12, v13\ns_mov_b64 exec, -1\ns_setprio 3")
        S.e(f"v_mov_b32 v14, {CNT + 16}\ns_cmp_lg_u32 s3, 8\ns_cbranch_scc1 K_hq_spin")
        G = Stream()
        G.e(f"""
        v_and_b32 v16, 7, v{V_L}
        v_lshrrev_b32 v17, 2, v16
        s_lshr_b32 {t0}, s{S_HEAD}, 2
        s_lshl_b32 {t0}, {t0}, 3
        s_add_u32 {t0}, {t0}, {TOK}
        v_lshlrev_b32 v17, 2, v17
        v_add_u32 v17, {t0}, v17
        ds_read_b32 v17, v17
        v_lshlrev_b32 v16, 2, v16
        s_mul_i32 {t2}, s2, {MB_STRIDE}
        s_add_u32 {t2}, {t2}, {MB_OFF + 128}
        s_mov_b32 {t3}, 0
        K_hq_kp:
        buffer_load_dword v{V_TMP}, v16, {sq(S_WS)}, {t2} offen sc1
        s_waitcnt vmcnt(0) lgkmcnt(0)
        v_cmp_ne_u32_e64 {M1}, v17, v{V_TMP}
        s_add_u32 {t3}, {t3}, 1
        s_cmp_eq_u64 {M1}, 0
        s_cbranch_scc1 K_hq_kpok
        s_sleep 8
        s_cmp_lt_u32 {t3}, 0x8000
        s_cbranch_scc1 K_hq_kp
        K_hq_kpok:
        """)
        tagpoll(G, "K_hq_pkv", U + 3, V_TMP, f"s{S_G}", opt=True, sleep=int(OPT.get("sleepkv", 8)))
        for x in G: x.opt = True
        S.extend(G)
        S.e(f"ds_write_b32 v14, v13\ns_branch K_hq_go", opt=True)
        S.e(f"""
        K_hq_spin:
        s_sleep 2
        ds_read_b32 v13, v14
        s_waitcnt lgkmcnt(0)
        v_readfirstlane_b32 {t1}, v13
        s_cmp_eq_u32 {t1}, 0
        s_cbranch_scc1 K_hq_spin
        """, opt=True)
        S.e("K_hq_go:")
        st(S, "kvrdy")
        KL = 20
        S.e(f"s_mov_b32 {t4}, 0\nK_hq_gather:\ns_mov_b32 {t0}, s{S_G}")
        for i in range(8):
            for e in range(2):
                S.e(f"buffer_load_dwordx4 {vr(KL + 8*i + 4*e)}, v{KO}, {sq(S_WS)}, {t0} offen offset:{e*1024} sc1")
            if i < 7: S.e(f"s_add_u32 {t0}, {t0}, 8192")
        umax_tree(S, list(range(KL, KL + 64)), V_TMP)
        S.e(f"""
        v_cmp_eq_u32_e64 {M1}, -1, v{V_TMP}
        s_add_u32 {t4}, {t4}, 1
        s_cmp_eq_u64 {M1}, 0
        s_cbranch_scc1 K_hq_gok
        s_cmp_lt_u32 {t4}, 0x1000
        s_cbranch_scc1 K_hq_gather
        K_hq_gok:
        """)
        for step in (1, 2, 4):
            for i in range(0, 8, 2*step):
                for j in range(0, 8, 2): pk(S, "add", KL+8*i+j, [("p", KL+8*i+j), ("p", KL+8*(i+step)+j)])
        for j in range(4): S.e(f"v_cvt_pk_bf16_f32 v{KL+8+j}, v{KL+2*j}, v{KL+2*j+1}")
        S.e(f"ds_write_b128 v{U}, {vr(KL+8)}")
        hsync(S, "K_hq_sync", 0, 4, 12, 13)
        st(S, "kvf")
        KF = 20; OO = [36, 52]; G2 = 68; RR = [84, 92]
        for k in range(4): S.e(f"ds_read_b128 {vr(KF + 4*k)}, v{U+1} offset:{k*1024}")
        for wv in range(2):
            for k in range(4): S.e(f"{MF} {vr(OO[wv],16)}, {vr(KF + 4*k)}, {vr(PH + 16*wv + 4*k)}, {'0' if k == 0 else vr(OO[wv],16)}")
        for wv in range(2):
            O = OO[wv]; R = RR[wv]
            bf16r(S, G2, f"v{O+14}")
            S.e(f"v_add_f32 v{G2}, {f32(1e-6)}, v{G2}")
            bf16r(S, G2, f"v{G2}")
            S.e(f"v_rcp_f32 v{G2}, v{G2}")
            for i in range(7): S.e(f"v_cvt_pk_bf16_f32 v{G2+1+i}, v{O+2*i}, v{O+2*i+1}")
            for i in range(7): S.e(f"v_lshlrev_b32 v{O+2*i}, 16, v{G2+1+i}\nv_and_b32 v{O+2*i+1}, 0xffff0000, v{G2+1+i}")
            for i in range(0, 14, 2): pk(S, "mul", O + i, [("p", O + i), ("b", G2)])
            for i in range(7): S.e(f"v_cvt_pk_bf16_f32 v{R+i}, v{O+2*i}, v{O+2*i+1}")
            S.e(f"v_mov_b32 v{R+7}, 0\ns_add_u32 {t0}, s{S_HFB}, {wv*NKS*1024}")
            S.e(f"buffer_store_dwordx4 {vr(R)}, v{V_L16}, {sq(S_WS)}, {t0} offen sc1\nbuffer_store_dwordx4 {vr(R+4)}, v{V_L16}, {sq(S_WS)}, {t0} offen offset:1024 sc1", tag="ost")
    else:
        X = 20; KA = 4; KB = 10
        S.e(f"""
        v_lshrrev_b32 v{X}, 4, v{V_L}
        v_bfe_u32 v{X+1}, v{V_L}, 2, 2
        v_lshl_add_u32 v{X}, v{X}, 3, v{X+1}
        v_bfe_u32 v{X+2}, v{V_L}, 1, 1
        s_lshl_b32 {t0}, s{S_H}, 1
        v_add_u32 v{X+4}, {t0}, v{X+2}
        v_xor_b32 v{X+4}, v{X+4}, v{X+1}
        v_lshlrev_b32 v{X+3}, 7, v{X}
        v_lshl_add_u32 v{X+3}, v{X+4}, 4, v{X+3}
        v_and_b32 v{X+5}, 1, v{V_L}
        v_lshl_add_u32 v{KA}, v{X+5}, 3, v{X+3}
        v_add_u32 v{KA}, {PKO}, v{KA}
        v_xor_b32 v{KA+1}, 64, v{KA}
        v_lshrrev_b32 v{X+4}, 1, v{X+1}
        v_xor_b32 v{X+4}, v{X+4}, v{X+2}
        v_lshlrev_b32 v{X+3}, 6, v{X}
        v_lshl_add_u32 v{X+3}, v{X+4}, 4, v{X+3}
        v_lshl_add_u32 v{KB}, v{X+5}, 3, v{X+3}
        v_add_u32 v{KB}, {VVO}, v{KB}
        v_xor_b32 v{KB+1}, 32, v{KB}
        """)
        for rg in (1, 2):
            for k in range(2):
                S.e(f"v_add_u32 v{KA+2*rg+k}, {rg*3*REG2}, v{KA+k}\nv_add_u32 v{KB+2*rg+k}, {rg*3*REG2}, v{KB+k}")
        S.e(f"""
        s_lshl_b32 {t4}, s{S_HEAD}, 3
        s_add_u32 {t4}, {t4}, s{S_MT}
        s_lshl_b32 {t4}, {t4}, 13
        s_lshr_b32 {t0}, s{S_H}, 1
        s_lshl_b32 {t0}, {t0}, 12
        s_add_u32 {t4}, {t4}, {t0}
        s_and_b32 {t0}, s{S_H}, 1
        s_lshl_b32 {t0}, {t0}, 9
        s_add_u32 {t4}, {t4}, {t0}
        s_add_u32 {t4}, {t4}, {KVP_OFF}
        """)
        for dh in range(2):
            D = 130 + dh
            S.e(f"""
            v_bfe_u32 v{X}, v{V_L}, 2, 2
            v_and_b32 v{X+1}, 3, v{V_L}
            v_lshl_add_u32 v{X}, v{X}, 3, v{X+1}
            v_add_u32 v{X}, {4*dh}, v{X}
            v_cmp_lt_u32_e64 {M1}, 13, v{X}
            v_subrev_u32 v{X+1}, 14, v{X}
            v_cndmask_b32_e64 v{X+1}, v{X}, v{X+1}, {M1}
            v_cndmask_b32_e64 v{X+2}, 0, 4, {M1}
            v_cmp_lt_u32_e64 {M2}, 27, v{X}
            v_and_b32 v{X+3}, 1, v{X}
            v_lshlrev_b32 v{X+3}, 2, v{X+3}
            v_bfe_u32 v{X+4}, v{X}, 1, 1
            v_add_u32 v{X+4}, 14, v{X+4}
            v_cndmask_b32_e64 v{X+1}, v{X+1}, v{X+4}, {M2}
            v_cndmask_b32_e64 v{X+2}, v{X+2}, v{X+3}, {M2}
            v_lshrrev_b32 v{X+3}, 2, v{X+1}
            v_and_b32 v{X+1}, 3, v{X+1}
            v_lshl_add_u32 v{X+1}, v{X+3}, 3, v{X+1}
            v_add_u32 v{X+1}, v{X+1}, v{X+2}
            v_lshrrev_b32 v{X+2}, 4, v{V_L}
            v_lshlrev_b32 v{X+2}, 10, v{X+2}
            v_lshl_add_u32 v{D}, v{X+1}, 4, v{X+2}
            """)
        KA1 = 6 if OPT.get("kvffn", "last") == "first" else int(OPT.get("ka1", 6))
        B1(); adma(0, KA1)
        def a1flag():
            S.wait_vm("a1")
            S.e(f"v_mov_b32 v16, {CNT + 20}\nv_mov_b32 v17, 1\ns_mov_b64 exec, 1\nds_add_u32 v16, v17\ns_mov_b64 exec, -1")
        if OPT.get("kvffn", "last") == "first": a1flag()
        S.e(f"""
        s_barrier
        s_setprio 3
        """)
        st(S, "B2")
        FB = 32; KD = 24
        for kk in range(8):
            b = FB + 12 * kk; rg = kk // 3; ro = (kk % 3) * REG2
            for e in range(2):
                S.e(f"ds_read_b64_tr_b16 {vr(b + 2*e, 2)}, v{KA + 2*rg + e} offset:{ro + e*512}")
                for dh in range(2):
                    S.e(f"ds_read_b64_tr_b16 {vr(b + 4 + 4*dh + 2*e, 2)}, v{KB + 2*rg + (e ^ dh)} offset:{ro + e*256}")
        for kk in range(8):
            b = FB + 12 * kk
            for dh in range(2):
                S.e(f"{MF16} {vr(KD + 4*dh)}, {vr(b)}, {vr(b + 4 + 4*dh)}, {'0' if kk == 0 else vr(KD + 4*dh)}")
        for dh in range(2):
            S.e(f"buffer_store_dwordx4 {vr(KD + 4*dh)}, v{130+dh}, {sq(S_WS)}, {t4} offen sc1", tag="kvst")
        st(S, "kvst")
        S.e(f"v_mov_b32 v12, {CNT + 12}\nv_mov_b32 v13, 1\ns_mov_b64 exec, 1\nds_add_u32 v12, v13\ns_mov_b64 exec, -1\ns_setprio {OPT.get('hprio2', 0)}")
        adma(KA1, 6)
        if OPT.get("kvffn", "last") != "first": a1flag()
    st(S, "end")
    st.flush(S, sq(S_WS), ST_OFF, 24, 12)
    S.e("s_endpgm")
    return S
def compute_head():
    S = Stream(); T = PT
    S.e("K_comp:")
    S.e(f"""
    s_lshl_b32 {t0}, s{S_MT}, 3
    s_add_u32 {t0}, {t0}, s3
    s_mul_i32 s{S_HFB}, {t0}, {NKS*1024}
    s_mul_i32 s{S_AREA}, s3, {AREA}
    s_mul_i32 {t2}, s{S_SROW}, 896
    v_cmp_gt_u32_e64 {M2}, 56, v{V_L}
    v_mov_b32 v{T+2}, 0x7f000000
    v_cndmask_b32_e64 v{T+2}, v{T+2}, v{V_L16}, {M2}
    s_waitcnt lgkmcnt(0)
    """)
    srd(S, S_X, 4, 2048 * 896)
    S.e(f"buffer_load_dwordx4 {vr(STV)}, v{T+2}, {sq(S_X)}, {t2} offen", tag="strow")
    if OPT.get("touch2"):
        S.e(f"""
        s_mov_b32 s{S_D1}, s6
        s_mov_b32 s{S_D1+1}, s7
        s_mov_b32 s{S_D1+2}, {448*2688}
        s_mov_b32 s{S_D1+3}, 0x20000
        s_cmp_eq_u32 s3, 1
        s_cselect_b32 s{S_D1}, s14, s{S_D1}
        s_cselect_b32 s{S_D1+1}, s15, s{S_D1+1}
        s_cmp_eq_u32 s3, 2
        s_cselect_b32 s{S_D1}, s16, s{S_D1}
        s_cselect_b32 s{S_D1+1}, s17, s{S_D1+1}
        s_cmp_eq_u32 s3, 3
        s_cselect_b32 s{S_D1}, s18, s{S_D1}
        s_cselect_b32 s{S_D1+1}, s19, s{S_D1+1}
        s_cmp_lg_u32 s3, 0
        s_cselect_b32 s{S_D1+2}, {448*3584}, s{S_D1+2}
        s_cmp_eq_u32 s3, 4
        s_cselect_b32 s{S_D1}, s10, s{S_D1}
        s_cselect_b32 s{S_D1+1}, s11, s{S_D1+1}
        s_cselect_b32 s{S_D1+2}, {448*896}, s{S_D1+2}
        s_mul_i32 {t1}, s2, {49*128}
        s_cmp_ge_u32 s3, {OPT['touch2']}
        s_cselect_b32 {t1}, 0x40000000, {t1}
        v_lshlrev_b32 v{T+5}, 7, v{V_L}
        v_cmp_gt_u32_e64 {M1}, 49, v{V_L}
        v_mov_b32 v{T+6}, 0x7f000000
        v_cndmask_b32_e64 v{T+5}, v{T+6}, v{T+5}, {M1}
        buffer_load_dword v23, v{T+5}, {sq(S_D1)}, {t1} offen
        """)
    srd(S, S_WS, 22, WS_SIZE); srd(S, S_DBG, 20, 256); srd(S, S_WD, 18, 1792 * 896); srd(S, S_WO, 10, 448 * 896)
    S.e(f"s_mov_b32 s{S_OUT+2}, {2048*896}\ns_mov_b32 s{S_OUT+3}, 0x20000")
    S.e(f"s_lshl_b32 {t0}, s3, 3\ns_add_u32 {t0}, {t0}, s2\ns_cmp_ge_u32 {t0}, 8\ns_cbranch_scc1 K_notok")
    S.e(f"""
    s_memrealtime s[{S_TOK}:{S_TOK+1}]
    s_waitcnt lgkmcnt(0)
    s_or_b32 s{S_TOK}, s{S_TOK}, 1
    v_mov_b32 v26, s{S_TOK}
    s_lshl_b32 {t0}, s2, 5
    s_mov_b64 exec, 1
    buffer_store_dword v26, v{V_Z}, {sq(S_DBG)}, {t0} offen sc1
    s_mov_b64 exec, -1
    """, opt=True)
    S.e("K_notok:")
    S.e(f"""
    s_lshl_b32 s{S_U0}, s{S_U0}, 5
    s_add_u32 s{S_U0}, s{S_U0}, s{S_HFB}
    s_lshl_b32 s{S_U12}, s{S_U12}, 5
    s_add_u32 s{S_U12}, s{S_U12}, s{S_HFB}
    v_lshrrev_b32 v{T+3}, 5, v{V_L}
    v_and_b32 v{T+5}, 31, v{V_L}
    v_bfe_u32 v{T+6}, v{V_L}, 1, 3
    v_xor_b32 v{T+6}, v{T+6}, v{T+3}
    v_lshlrev_b32 v{T+5}, 7, v{T+5}
    v_lshl_add_u32 v{T+5}, v{T+6}, 4, v{T+5}
    v_add_u32 v{V_AX}, s{S_AREA}, v{T+5}
    v_xor_b32 v{V_AX+1}, 32, v{V_AX}
    v_xor_b32 v{V_AX+2}, 64, v{V_AX}
    v_xor_b32 v{V_AX+3}, 0x60, v{V_AX}
    v_add_u32 v{V_CSA}, {CSP}, v{V_L16}
    v_bfe_u32 v{T+1}, v{V_L}, 2, 2
    v_lshl_add_u32 v{T+9}, v{T+3}, 2, v{T+1}
    v_lshlrev_b32 v{T+9}, 6, v{T+9}
    v_and_b32 v{T+10}, 1, v{V_L}
    v_lshl_add_u32 v{T+9}, v{T+10}, 5, v{T+9}
    v_bfe_u32 v{T+10}, v{V_L}, 1, 1
    v_bfe_u32 v{T+4}, v{V_L}, 4, 1
    v_lshl_add_u32 v{T+10}, v{T+4}, 1, v{T+10}
    v_lshl_add_u32 v{T+9}, v{T+10}, 3, v{T+9}
    v_add_u32 v{V_PHA}, {WPHI}, v{T+9}
    v_mov_b32 v{T+9}, {CNT}
    ds_write_b32 v{T+9}, v{V_Z}
    ds_write_b32 v{T+9}, v{V_Z} offset:4
    ds_write_b32 v{T+9}, v{V_Z} offset:8
    ds_write_b32 v{T+9}, v{V_Z} offset:12
    ds_write_b32 v{T+9}, v{V_Z} offset:16
    ds_write_b32 v{T+9}, v{V_Z} offset:20
    v_lshlrev_b32 v{T+10}, 2, v{V_L}
    v_add_u32 v{T+10}, {CNT + 64}, v{T+10}
    ds_write_b32 v{T+10}, v{V_Z}
    """)
    U = PT
    for j in range(4): S.e(f"v_lshlrev_b32 v{U+2*j}, 16, v{STV+j}\nv_and_b32 v{U+2*j+1}, 0xffff0000, v{STV+j}")
    S.e(f"""
    v_add_f32 v{U+8}, v{U}, v{U+1}
    v_add_f32 v{U+9}, v{U+2}, v{U+3}
    v_add_f32 v{U+10}, v{U+4}, v{U+5}
    v_add_f32 v{U+11}, v{U+6}, v{U+7}
    v_add_f32 v{U+8}, v{U+8}, v{U+9}
    v_add_f32 v{U+10}, v{U+10}, v{U+11}
    v_add_f32 v{U+8}, v{U+8}, v{U+10}
    """)
    wave_sum(S, U + 8, U + 9)
    S.e(f"v_mul_f32 v{U+8}, {f32(1/448)}, v{U+8}")
    for j in range(8): S.e(f"v_sub_f32 v{U+j}, v{U+j}, v{U+8}")
    S.e(f"v_mul_f32 v{U+9}, v{U}, v{U}\nv_mul_f32 v{U+10}, v{U+1}, v{U+1}")
    for j in range(2, 8): S.e(f"v_fmac_f32 v{U+9+(j&1)}, v{U+j}, v{U+j}")
    S.e(f"v_add_f32 v{U+9}, v{U+9}, v{U+10}\nv_cndmask_b32_e64 v{U+9}, 0, v{U+9}, {M2}")
    wave_sum(S, U + 9, U + 10)
    S.e(f"v_mul_f32 v{U+9}, {f32(1/448)}, v{U+9}")
    bf16r(S, U + 9, f"v{U+9}")
    S.e(f"v_add_f32 v{U+9}, {f32(1e-5)}, v{U+9}")
    bf16r(S, U + 9, f"v{U+9}")
    S.e(f"v_sqrt_f32 v{U+9}, v{U+9}")
    bf16r(S, 25, f"v{U+9}")
    S.e(f"v_cvt_pk_bf16_f32 v24, -v{U+8}, -v{U+8}\ns_lshl_b32 {t0}, s3, 3\ns_add_u32 {t0}, {t0}, {OST}\nv_mov_b32 v26, {t0}\nds_write_b64 v26, v[24:25]")
    S.e(f"s_cmp_eq_u32 s{S_TYPE}, 1\ns_cbranch_scc1 K_kv")
    return S


def compute(typ):
    q = typ == "q"
    S = Stream(); T = PT
    S.e(f"K_{typ}:")
    st = Stamper(STAMPR); st.n = 1; st.names = ["start"]
    tile_addrs(S, typ, V_AT, T)
    p2_ids(S)
    EARLY = Stream()
    T = SC; p2_a_voffsets(EARLY, 21, None, None, T)
    EARLY.e(f"""
    v_and_b32 v{V_TMP}, 31, v{V_L}
    v_lshlrev_b32 v{V_TMP}, 3, v{V_TMP}
    s_lshl_b32 {t0}, s3, 8
    s_add_u32 {t0}, {t0}, {STL}
    v_add_u32 v{V_TMP}, {t0}, v{V_TMP}
    s_bfe_u32 {t4}, s3, 0x10001
    s_lshr_b32 {t5}, s3, 2
    v_bfe_u32 v{T}, v{V_L}, 2, 2
    v_lshrrev_b32 v{T+1}, 5, v{V_L}
    v_lshl_add_u32 v{T+2}, v{T+1}, 2, v{T}
    v_lshlrev_b32 v{T+2}, 7, v{T+2}
    v_lshrrev_b32 v{T}, 1, v{T}
    v_xor_b32 v{T}, {t4}, v{T}
    v_lshl_add_u32 v{T+2}, v{T}, 6, v{T+2}
    v_and_b32 v{T}, 1, v{V_L}
    v_lshl_add_u32 v{T+2}, v{T}, 5, v{T+2}
    v_bfe_u32 v{T}, v{V_L}, 1, 1
    v_bfe_u32 v{T+3}, v{V_L}, 4, 1
    v_xor_b32 v{T+3}, {t5}, v{T+3}
    v_lshl_add_u32 v{T}, v{T+3}, 1, v{T}
    v_lshl_add_u32 v{T+2}, v{T}, 3, v{T+2}
    s_mul_i32 {t0}, s3, {REG2}
    v_add_u32 v22, {t0}, v{T+2}
    s_and_b32 {t0}, s3, 3
    s_lshl_b32 {t0}, {t0}, 1
    s_add_u32 s{S_H}, {t0}, {t5}
    s_mul_i32 s{S_XROW}, s{S_H}, {14*16*896}
    s_cmp_ge_u32 s2, 224
    s_cselect_b32 {t0}, 0x40000000, 0
    s_add_u32 s{S_XROW}, s{S_XROW}, {t0}
    """)
    T = PT
    pend = []
    def ABn(n): return AB if n % 2 == 1 else SC + 8
    def a_read(n, t):
        c, s = n >> 2, n & 3
        for e in range(2):
            a, imm = tile_read_args(typ, t, s, e)
            S.e(f"ds_read_b64_tr_b16 {vr(ABn(n) + 4*t + 2*e, 2)}, v{V_AT+a} offset:{(c % 3)*WS_ + imm}")
    def x_read(n):
        c, s = n >> 2, n & 3
        S.e(f"ds_read_b128 {vr(XB + 4*(n & 1))}, v{V_AX+s} offset:{(c % 3) * 4096}")
    RD = OPT.get("rdist", "1")
    def kstep(n):
        nx = n + 1 < 28
        sched = {"0": [["x", 0, 1], [2], [3], [4], [], []], "1": [[], ["x", 0], [1], [2], [3], [4]], "2": [["x"], [0], [1], [2, 3], [4], []], "3": [["x", 0], [1], [2], [3], [4], []]}[RD]
        def do(lst):
            if nx:
                for r in lst:
                    if r == "x": x_read(n + 1)
                    else: a_read(n + 1, r)
        do(sched[0])
        for t in range(5):
            S.e(f"{MF} {vr(ACC + 16*t, 16)}, {vr(ABn(n) + 4*t)}, {vr(XB + 4*(n & 1))}, {'0' if n == 0 else vr(ACC + 16*t, 16)}")
            do(sched[t + 1])
            if pend: S.extend(pend.pop(0))
    S.wait_lgkm(); S.e("s_barrier")
    st(S, "bar0")
    x_read(0)
    for t in range(5): a_read(0, t)
    for c in range(7):
        S.comment(f"chunk {c}")
        if c in (4,): st(S, f"chunk{c}")
        n = 4 * c
        if OPT.get("tlb") and c == int(OPT["tlb"]):
            G = Stream()
            G.e(f"""
            v_lshlrev_b32 v23, 18, v{V_L}
            s_lshl_b32 {t0}, s3, 15
            buffer_load_dword v23, v23, {sq(S_WS)}, {t0} offen
            """); pend.append(G)
            G = Stream()
            G.e(f"""
            v_lshlrev_b32 v26, 15, v{V_L}
            s_lshl_b32 {t0}, s3, 12
            buffer_load_dword v27, v26, {sq(S_OUT)}, {t0} offen
            """); pend.append(G)
        if c == 3:
            for ii in range(0, len(EARLY), 5):
                G = Stream(); G.extend(EARLY[ii:ii+5]); pend.append(G)
        kstep(n); kstep(n + 1); kstep(n + 2)
        S.wait_lgkm(); S.e("s_barrier")
        if c == 6:
            CR = SC + 8
            S.e(f"ds_read_b64 {vr(V_RINV, 2)}, v{V_TMP}")
            for t in range(5): S.e(f"ds_read_b128 {vr(CR + 4*t)}, v{V_CSA} offset:{t*1024}")
            stats_consts(S)
        kstep(n + 3)
    st(S, "S1")
    FT = (lambda n: st(S, n, fine=True)) if OPT.get('fw') == 'tail' else (lambda n: None)
    FT("s1")
    WPF = XB; E = AB; QB = E + 8; TT = 4; GT = SC; GT2 = SC + 12
    A0 = ACC
    V_WD, V_A0, V_A1 = 11, 12, 13
    V_WOo, V_WOM, V_B0, V_B1, V_O = 4, 5, 6, 7, 8
    S.e(f"{MF} {vr(ACC,16)}, {vr(CR)}, {vr(BP)}, {vr(ACC,16)}")
    for te in range(4): S.e(f"ds_read_b64_tr_b16 {vr(WPF + 2*te, 2)}, v{V_PHA} offset:{te * 512}")
    NC1 = 5 if (q or not OPT.get("corr2", True)) else 2
    for t in range(1, NC1): S.e(f"{MF} {vr(ACC + 16*t,16)}, {vr(CR + 4*t)}, {vr(BP)}, {vr(ACC + 16*t,16)}")
    S.e(f"s_mul_i32 s{S_AREA}, s3, {REG2}\nv_mov_b32 v{V_WD}, v21\nv_mov_b32 v{V_A0}, v22\nv_xor_b32 v{V_A1}, 64, v22")
    W = SC + 28; X = 4
    if not q:
        S.e(f"""
        v_and_b32 v{X}, 31, v{V_L}
        v_lshrrev_b32 v{X+1}, 5, v{V_L}
        v_lshlrev_b32 v{X+1}, 1, v{X+1}
        v_bfe_u32 v{X+2}, v{V_L}, 1, 2
        v_xor_b32 v{X+2}, v{X+2}, v{X+1}
        v_lshlrev_b32 v{X+3}, 6, v{X}
        v_lshl_add_u32 v{X+3}, v{X+2}, 4, v{X+3}
        s_add_u32 {t0}, s{S_AREA}, {VVO}
        v_add_u32 v9, {t0}, v{X+3}
        v_xor_b32 v10, 16, v9
        v_and_b32 v{X+3}, 7, v{V_L}
        v_xor_b32 v{X+1}, v{X+1}, v{X+3}
        v_lshlrev_b32 v{X}, 7, v{X}
        v_lshl_add_u32 v{X}, v{X+1}, 4, v{X}
        s_add_u32 {t0}, s{S_AREA}, {PKO}
        v_add_u32 v{W}, {t0}, v{X}
        v_xor_b32 v{W+1}, 16, v{W}
        v_xor_b32 v{W+2}, 64, v{W}
        v_xor_b32 v{W+3}, 0x50, v{W}
        """)
    tok_read(S, f"s{S_TOK}", f"s_and_b32 {t0}, s2, 7", V_TMP)
    FT("addr")
    scale16(S, A0)
    for i in range(8): S.e(f"v_cvt_pk_bf16_f32 v{QB+i}, v{A0+2*i}, v{A0+2*i+1}")
    S.e(f"{MF} {vr(A0,16)}, {vr(WPF)}, {vr(QB)}, 0\n{MF} {vr(A0,16)}, {vr(WPF+4)}, {vr(QB+4)}, {vr(A0,16)}")
    FT("pq")
    A1 = ACC + 16
    AC2 = 104
    bfree = [16, 24, 32, 40, 48]
    ablk = {i: b for i, b in enumerate([72, 80, 88, 96, 56, 64] if (q or OPT.get('kvffn', 'last') == 'first') else [56, 64, 72, 80, 88, 96])}
    slot_of = {i: i for i in range(6)}
    def a_tr(i, blk):
        nonlocal S
        for ni in range(2):
            for e in range(2):
                S.e(f"ds_read_b64_tr_b16 {vr(blk + 4*ni + 2*e, 2)}, v{V_A0+ni} offset:{slot_of[i]*2048 + e*1024}", tag=f"ar{i}")
    def a_dma(i, sl):
        slot_of[i] = sl; out = []
        for u in range(2):
            G = Stream()
            G.e(f"s_add_u32 m0, s{S_AREA}, {sl*2048 + u*1024}")
            if i < 14:
                G.e(f"s_add_u32 {tm}, s{S_XROW}, {(16*i + 8*u)*896}")
                G.e(f"buffer_load_dwordx4 v{V_WD}, {sq(S_WD)}, {tm} offen lds", tag=f"a{i}")
            else:
                hd, t = (i - 14) >> 1, (i - 14) & 1
                G.e(f"s_add_u32 {tm}, s{S_D0L}, {(28*hd + 8*t + 4*u)*896}")
                G.e(f"buffer_load_dwordx4 v{V_WOM if (t and u) else V_WOo}, {sq(S_WO)}, {tm} offen lds", tag=f"a{i}")
            out.append(G)
        return out
    def sprinkle(V, parts, start, every):
        n = 0
        for ins in V:
            S.append(ins); n += 1
            if n >= start and (n - start) % every == 0 and parts: S.extend(parts.pop(0))
        for p in parts: S.extend(p)
    late = []
    KF1 = q or OPT.get("kvffn", "last") == "first"
    def vwr(): S.e(f"ds_write_b128 v9, {vr(A1)}\nds_write_b128 v10, {vr(A1+4)}")
    def vpart():
        scale16(S, A1)
        for i in range(8): S.e(f"v_cvt_pk_bf16_f32 v{A1+i}, v{A1+2*i}, v{A1+2*i+1}")
        S.e(f"""
        v_mov_b32 v{A1+8}, 0x3f803f80
        v_cndmask_b32_e64 v{A1+6}, v{A1+6}, v{A1+8}, {HHM}
        """)
        if KF1: vwr()
    if KF1:
        if q:
            geglu(S, A1, GT, S_U0, 0); geglu(S, ACC + 32, GT2, S_U0, 1); geglu(S, ACC + 48, GT, S_U0, 2); geglu(S, ACC + 64, GT2, S_U0, 3)
        else:
            geglu(S, ACC + 32, GT2, S_U0, 0); geglu(S, ACC + 48, GT, S_U12, 0); geglu(S, ACC + 64, GT2, S_U12, 1)
            vpart()
        st(S, "ffn")
        S.e(f"""
        v_mov_b32 v14, {CNT + 20}
        K_{typ}_a1:
        ds_read_b32 v15, v14
        s_waitcnt lgkmcnt(0)
        v_readfirstlane_b32 {t1}, v15
        s_cmp_lt_u32 {t1}, 4
        s_cbranch_scc1 K_{typ}_a1
        """)
        for i in range(4): a_tr(i, ablk[i])
        V = Stream(); softmax14(V, A0, E, TT)
        w = Stream(); w.wait_lgkm()
        sg = signal("hst", 8, "h", f"K_{typ}_nosigh", 104, 105, 106, 7)
        pos = int(OPT.get("sgpos", 4))
        parts = [w] + a_dma(6, 0) + a_dma(7, 1) + a_dma(8, 2) + a_dma(9, 3)
        parts.insert(pos + 1, sg)
        if q or OPT.get('kvspr', False): sprinkle(V, parts, 12, 14)
        else:
            sprinkle(V, [sg], 60, 14); parts.remove(sg); pre_late = parts
        if q:
            S.e(f"s_add_u32 {t0}, s{S_AREA}, {PKO}\nv_add_u32 v9, {t0}, v{V_L16}")
            for kk in range(4): S.e(f"ds_write_b128 v9, {vr(E + 4*kk)} offset:{kk*1024}")
        else:
            for k in range(4): S.e(f"ds_write_b128 v{W+k}, {vr(E+4*k)}")
        a_tr(4, ablk[4]); a_tr(5, ablk[5])
        S.wait_lgkm(); S.e("s_barrier")
        st(S, "B2")
        late = ([] if (q or OPT.get('kvspr', False)) else pre_late) + a_dma(10, 4) + a_dma(11, 5)
    else:
        vpart()
        FT("v")
        softmax14(S, A0, E, TT)
        FT("sm")
        vwr()
        for k in range(4): S.e(f"ds_write_b128 v{W+k}, {vr(E+4*k)}")
        S.wait_lgkm()
        FT("wr")
        for t in range(NC1, 5): S.e(f"{MF} {vr(ACC + 16*t,16)}, {vr(CR + 4*t)}, {vr(BP)}, {vr(ACC + 16*t,16)}")
        S.e("s_barrier")
        st(S, "B2")
        FT("b2")
        geglu(S, ACC + 32, GT2, S_U0, 0); FT("g1"); geglu(S, ACC + 48, GT, S_U12, 0); FT("g2"); geglu(S, ACC + 64, GT2, S_U12, 1); FT("g3")
        st(S, "ffn")
        G = Stream()
        G.e(f"""
        v_mov_b32 v14, {CNT + 20}
        K_{typ}_a1:
        ds_read_b32 v15, v14
        s_waitcnt lgkmcnt(0)
        v_readfirstlane_b32 {t1}, v15
        s_cmp_lt_u32 {t1}, 4
        s_cbranch_scc1 K_{typ}_a1
        """)
        S0 = S; S = G
        for i in range(6): a_tr(i, ablk[i])
        S = S0
        G.wait_lgkm()
        late = [G]
        for i in range(6, 12): late += a_dma(i, i - 6)
    TP = 16
    S.e(f"""
    v_lshrrev_b32 v{TP}, 3, v{V_L}
    v_mul_u32_u24 v{TP+1}, 896, v{TP}
    v_sub_u32 v{TP+1}, v{V_WD}, v{TP+1}
    v_lshrrev_b32 v{TP+2}, 2, v{TP}
    v_and_b32 v{TP+3}, 3, v{TP}
    v_mad_u32_u24 v{TP+2}, v{TP+2}, 14, v{TP+3}
    v_mul_u32_u24 v{V_WOo}, 896, v{TP+2}
    v_add_u32 v{V_WOo}, v{V_WOo}, v{TP+1}
    v_cmp_lt_u32_e64 {M1}, 1, v{TP+3}
    v_mov_b32 v{TP+2}, 0x7f000000
    v_cndmask_b32_e64 v{V_WOM}, v{V_WOo}, v{TP+2}, {M1}
    s_and_b32 {t3}, s3, 1
    s_bfe_u32 {t4}, s3, 0x10001
    s_lshr_b32 {t5}, s3, 2
    s_lshl_b32 {t0}, s{S_M64}, 1
    s_add_u32 {t0}, {t0}, {t3}
    s_mul_i32 {t1}, {t0}, {NKS*1024}
    v_add_u32 v{V_B0}, {t1}, v{V_L16}
    s_xor_b32 {t2}, {t0}, 1
    s_mul_i32 {t2}, {t2}, {NKS*1024}
    v_add_u32 v{V_B1}, {t2}, v{V_L16}
    v_mov_b32 v9, {t1}
    v_mov_b32 v10, {t2}
    v_cmp_lt_u32_e64 {M1}, 15, v{V_L}
    v_cndmask_b32_e64 v9, v9, v10, {M1}
    v_and_b32 v10, 3, v{V_L}
    v_lshl_add_u32 v9, v10, 10, v9
    v_lshrrev_b32 v{TP+1}, 5, v{V_L}
    v_and_b32 v{TP}, 31, v{V_L}
    s_lshl_b32 {t0}, {t0}, 5
    v_add_u32 v{TP}, {t0}, v{TP}
    v_mul_u32_u24 v{TP}, 896, v{TP}
    v_lshlrev_b32 v{TP+1}, 5, v{TP+1}
    s_lshl_b32 {t0}, s{S_N64}, 7
    s_lshl_b32 {t1}, {t4}, 6
    s_add_u32 {t0}, {t0}, {t1}
    s_lshl_b32 {t1}, {t5}, 4
    s_add_u32 {t0}, {t0}, {t1}
    v_add3_u32 v{V_O}, v{TP}, v{TP+1}, {t0}
    s_mul_i32 s{S_D0L}, s{S_H}, {2*28*896}
    s_mul_i32 s{S_U0}, s{S_H}, {14*1024}
    s_lshl_b32 s{S_U12}, s{S_H}, 12
    s_add_u32 s{S_U12}, s{S_U12}, {112*1024 - 14*1024}
    s_add_u32 s{S_G}, s{S_U12}, {14*1024 + 1008}
    v_mov_b32 v{TP}, {CNT + 12}
    K_{typ}_zone:
    ds_read_b32 v{TP+1}, v{TP}
    s_waitcnt lgkmcnt(0)
    v_readfirstlane_b32 {t1}, v{TP+1}
    s_cmp_lt_u32 {t1}, 4
    s_cbranch_scc1 K_{typ}_zone
    """)
    for g in late[:int((OPT.get("latepre", 4) if KF1 else OPT.get("latekv", 0)))]: S.extend(g)
    st(S, "p1end")
    if OPT.get("lprio"):
        S.e(f"s_cmp_lt_u32 s3, 4\ns_cbranch_scc1 K_{typ}_lp")
        S.e(f"s_setprio {OPT['lprio']}", opt=True)
        S.e(f"K_{typ}_lp:")
    if not KF1: S.extend(signal("hst", 8, "h", f"K_{typ}_nosigh", TP, TP + 1, TP + 2, 7))
    if not q: S.e(f"s_cmp_ge_u32 s2, 224\ns_cbranch_scc1 K_{typ}_fin")
    TQ = 24
    MIR = CNT + 64
    tok_read(S, f"s{S_D1+2}", f"s_and_b32 {t0}, s{S_H}, 6\ns_lshr_b32 {t1}, s{S_MT2}, 2\ns_add_u32 {t0}, {t0}, {t1}", TQ)
    S.e(f"""
    s_mul_i32 s{S_D1}, s2, {MB_STRIDE}
    s_add_u32 s{S_D1}, s{S_D1}, {MB_OFF}
    s_lshr_b32 {t0}, s{S_H}, 1
    s_lshl_b32 {t0}, {t0}, 3
    s_cmp_lt_u32 s3, 4
    s_movk_i32 s{S_D1+1}, 0xff
    s_cselect_b32 s{S_D1+1}, 0x55, s{S_D1+1}
    s_lshl_b32 s{S_D1+1}, s{S_D1+1}, {t0}
    s_mov_b32 {t3}, 0
    v_min_u32 v{TQ}, 32, v{V_L}
    v_lshlrev_b32 v{TQ}, 2, v{TQ}
    v_add_u32 v{TQ+1}, {MIR}, v{TQ}
    v_and_b32 v{TQ}, 0x7c, v{TQ}
    """)
    if OPT.get("dpoll", False): S.e(f"buffer_load_dword v26, v{TQ}, {sq(S_WS)}, s{S_D1} offen sc1")
    for g in late[int((OPT.get("latepre", 4) if KF1 else OPT.get("latekv", 0))):]: S.extend(g)
    for i in range(12, 15):
        for g in a_dma(i, i - 6): S.extend(g)
    st(S, "w5")
    S.e(f"s_mov_b32 {t3}, 0")
    if OPT.get("dpoll", False):
        S.e(f"""
        v_cmp_ne_u32_e64 {M1}, s{S_D1+2}, v26
        s_and_b32 {tm}, s88, s{S_D1+1}
        s_cselect_b32 {tm}, 1, 0
        s_cmp_eq_u32 s3, 7
        s_cselect_b32 {tm}, 1, {tm}
        s_cmp_eq_u32 {tm}, 0
        s_cbranch_scc1 K_{typ}_phok
        """)
    S.e(f"""
    s_cmp_eq_u32 s3, 7
    s_cbranch_scc1 K_{typ}_phg
    K_{typ}_phl:
    ds_read_b32 v14, v{TQ+1}
    s_waitcnt lgkmcnt(0)
    v_cmp_ne_u32_e64 {M1}, s{S_D1+2}, v14
    v_readlane_b32 {t1}, v14, 32
    s_and_b32 {tm}, s88, s{S_D1+1}
    s_cbranch_scc0 K_{typ}_phok
    s_sleep 2
    s_cmp_eq_u32 {t1}, 0
    s_cbranch_scc1 K_{typ}_phl
    K_{typ}_phg:
    buffer_load_dword v14, v{TQ}, {sq(S_WS)}, s{S_D1} offen sc1
    s_waitcnt vmcnt(0)
    s_mov_b32 exec_hi, 0
    ds_write_b32 v{TQ+1}, v14
    s_mov_b32 exec_hi, -1
    v_cmp_ne_u32_e64 {M1}, s{S_D1+2}, v14
    s_add_u32 {t3}, {t3}, 1
    s_and_b32 {tm}, s88, s{S_D1+1}
    s_cbranch_scc0 K_{typ}_phd
    s_sleep {OPT.get('sleep', 4)}
    s_cmp_lt_u32 {t3}, 0x8000
    s_cbranch_scc1 K_{typ}_phg
    K_{typ}_phd:
    v_mov_b32 v14, {MIR + 128}
    v_mov_b32 v15, 1
    ds_write_b32 v14, v15
    K_{typ}_phok:
    """, opt=True)
    S.append(pseudo("forget_opt"))
    st(S, "B5")
    if OPT.get('fw') == 'p2': st(S, "B5f", fine=True)
    bblk = {}
    nextb = [0]
    def b_issue(i, opt=False):
        S.e(f"s_add_u32 {tm}, s{S_U0 if i < 14 else S_U12}, {i*1024}", opt=opt)
        for mi in range(2):
            S.e(f"buffer_load_dwordx4 {vr(bblk[i] + 4*mi)}, v{V_B0+mi}, {sq(S_WS)}, {tm} offen sc1", opt=opt)
    def b_load():
        i = nextb[0]
        if i >= 18 or not bfree: return False
        if i == 14:
            tagpoll(S, f"K_{typ}_po", 9, 14, f"s{S_G}", first_issued=True)
            S.append(pseudo("forget_opt"))
            st(S, "B6")
        bblk[i] = bfree.pop(0)
        b_issue(i)
        nextb[0] += 1
        return True
    OLAG = int(OPT.get("olag", 2))
    while b_load(): pass
    afree = []
    for i in range(18):
        if i + 1 < 18 and (i + 1) not in ablk:
            ablk[i + 1] = afree.pop(0)
            S.wait_vm(f"a{i+1}")
            a_tr(i + 1, ablk[i + 1])
        if i >= 14:
            regs = list(range(bblk[i], bblk[i] + 8))
            umax_tree(S, regs, 15)
            S.e(f"v_cmp_eq_u32_e64 {M1}, -1, v15\ns_cmp_eq_u64 {M1}, 0\ns_cbranch_scc1 K_{typ}_bok{i}")
            S.e(f"s_mov_b32 {t3}, 0\nK_{typ}_bre{i}:", opt=True)
            b_issue(i, opt=True)
            S.e("s_waitcnt vmcnt(0)", opt=True)
            umax_tree(S, regs, 15, opt=True)
            S.e(f"v_cmp_eq_u32_e64 {M1}, -1, v15\ns_add_u32 {t3}, {t3}, 1\ns_cmp_eq_u64 {M1}, 0\ns_cbranch_scc1 K_{typ}_bok{i}\ns_cmp_lt_u32 {t3}, 0x4000\ns_cbranch_scc1 K_{typ}_bre{i}", opt=True)
            S.e(f"K_{typ}_bok{i}:")
            S.append(pseudo("forget_opt"))
        for lq in range(4):
            ni, mi = lq >> 1, lq & 1
            S.e(f"{MF} {vr(AC2 + 16*lq, 16)}, {vr(ablk[i] + 4*ni)}, {vr(bblk[i] + 4*mi)}, {'0' if i == 0 else vr(AC2 + 16*lq, 16)}")
        if OPT.get('fw') == 'p2' and i in (0, 1, 2, 4, 6, 8, 10, 12, 14, 17): st(S, f"k{i}", fine=True)
        bfree.append(bblk[i])
        if i in (3, 4) or i >= 6: afree.append(ablk[i])
        else: bfree.append(ablk[i])
        if i in (7, 8, 9):
            for g in a_dma(i + 8, i - 7): S.extend(g)
        if i == 14 - OLAG - 2: S.e(f"buffer_load_dword v14, v9, {sq(S_WS)}, s{S_G} offen sc1")
        while nextb[0] < 18 and (nextb[0] != 14 or i >= 14 - OLAG) and b_load(): pass
        if i == 15:
            XRG = [b for b in bfree if b >= 88][0]; bfree.remove(XRG)
            S.e(f"buffer_load_dwordx4 {vr(XRG)}, v{V_O}, {sq(S_X)}, 0 offen")
    st(S, "mm")
    S.e(f"v_add_u32 v4, s{S_AREA}, v{V_L16}")
    def piece(pp): lq = (pp & 1) | (((pp >> 1) & 1) << 1); return AC2 + 16*lq + 8*(pp >> 2)
    for pp in range(1, 8):
        for j in range(2): S.e(f"ds_write_b128 v4, {vr(piece(pp) + 4*j)} offset:{(pp-1)*2048 + j*1024}")
    for pp in range(1, 8):
        S.e(f"s_xor_b32 {t0}, s3, {pp}\ns_mul_i32 {t0}, {t0}, {REG2}\nv_add_u32 v{16+pp}, {t0}, v{V_L16}")
    for j in range(4): S.e(f"v_lshlrev_b32 v{24+2*j}, 16, v{XRG+j}\nv_and_b32 v{25+2*j}, 0xffff0000, v{XRG+j}")
    for j in range(8): S.e(f"v_add_f32 v{AC2+j}, v{AC2+j}, v{24+j}")
    S.wait_lgkm(); S.e("s_barrier")
    R = 32
    for pp in range(1, 8):
        for j in range(2): S.e(f"ds_read_b128 {vr(R + 8*(pp-1) + 4*j)}, v{16+pp} offset:{(pp-1)*2048 + j*1024}")
    def padd(d, a, b):
        for j in range(0, 8, 2): pk(S, "add", d + j, [("p", a + j), ("p", b + j)])
    padd(AC2, AC2, R); padd(R + 8, R + 8, R + 16); padd(R + 24, R + 24, R + 32); padd(R + 40, R + 40, R + 48)
    padd(AC2, AC2, R + 8); padd(R + 24, R + 24, R + 40); padd(AC2, AC2, R + 24)
    if OPT.get("eps"):
        for j in range(8): S.e(f"v_mul_f32 v{AC2+j}, {f32(1.0 + float(OPT['eps']))}, v{AC2+j}")
    for j in range(4): S.e(f"v_cvt_pk_bf16_f32 v{24+j}, v{AC2+2*j}, v{AC2+2*j+1}")
    S.e(f"buffer_store_dwordx4 {vr(24)}, v{V_O}, {sq(S_OUT)}, 0 offen")
    if OPT.get("echo"):
        r = STAMPR[int(OPT["echo"])]
        S.e(f"""
        s_memrealtime s[88:89]
        s_waitcnt lgkmcnt(0)
        {f's_sub_u32 s90, s{r}, s92' if int(OPT["echo"]) < 11 else 's_sub_u32 s90, s88, s92'}
        s_add_u32 s90, s90, s88
        K_{typ}_echo:
        s_memrealtime s[88:89]
        s_waitcnt lgkmcnt(0)
        s_sub_u32 s91, s88, s90
        s_cmp_lt_i32 s91, 0
        s_cbranch_scc1 K_{typ}_echo
        """)
    S.e(f"K_{typ}_fin:")
    st(S, "end")
    st.flush(S, sq(S_WS), ST_OFF, 104, 12)
    S.e("s_endpgm")
    return S

def gen_all():
    pro = list(prologue()); ch = list(compute_head()); hh = list(helper_head())
    out = []
    def part(prefix, body, label):
        full = finalize(prefix + list(body))
        idx = next(i for i, x in enumerate(full) if x.text == label) if label else 0
        return full[idx:]
    hq = part(pro + hh, list(helper("q")) + list(hpost("q")), None)
    hk = part(pro + hh, list(helper("kv")) + list(hpost("kv")), "K_hkv:")
    def cut(p):
        n = 0
        for i, x in enumerate(p):
            if x.op == "s_barrier":
                n += 1
                if n == 1: return p[:i], p[i:]
    if OPT.get("layout", False):
        a, b = cut(hq); c, d = cut(hk)
        out += a + [I("s_branch K_hq_rest")] + c + [I("s_branch K_hkv_rest")]
        out += part(pro + ch, compute("q"), "K_comp:")
        out += part(pro + ch, compute("kv"), "K_kv:")
        out += [I("K_hq_rest:")] + b + [I("K_hkv_rest:")] + d
    else:
        out += hq + hk
        out += part(pro + ch, compute("q"), "K_comp:")
        out += part(pro + ch, compute("kv"), "K_kv:")
    out.append(I("K_END:")); out.append(I("s_endpgm"))
    return out

def build(path):
    k = gen_all()
    print("K", stats(k), file=sys.stderr)
    ref = open(f"cdna_kernels/{NAME}.s.ref").read().split("\n")
    hdr = [l for l in ref if l.startswith(";") and "@launch" not in l and "Override" not in l and "grid=ceil" not in l]
    txt = "\n".join(hdr) + "\n"
    txt += f"; @launch grid=(256,1,1) block=(768,1,1) lds=163840\n"
    txt += '.amdgcn_target "amdgcn-amd-amdhsa--gfx950"\n.text\n'
    txt += f".globl {K1}\n.p2align 8\n.type {K1},@function\n{K1}:\n" + render(k)
    txt += f""".section .rodata,"a"
.p2align 6
.amdhsa_kernel {K1}
  .amdhsa_next_free_vgpr {NVG1}
  .amdhsa_next_free_sgpr 102
  .amdhsa_accum_offset {NVG1}
  .amdhsa_group_segment_fixed_size 0
  .amdhsa_kernarg_size 88
  .amdhsa_user_sgpr_count 2
  .amdhsa_user_sgpr_kernarg_segment_ptr 1
  .amdhsa_system_sgpr_workgroup_id_x 1
.end_amdhsa_kernel
"""
    open(path, "w").write(txt)

if __name__ == "__main__":
    for a in sys.argv[2:]:
        k, v = a.split("=")
        OPT[k] = {"True": True, "False": False}.get(v, v.replace("_", " ") if k.endswith("flags") else v)
    build(sys.argv[1] if len(sys.argv) > 1 else f"cdna_kernels/{NAME}.s")
```

```python
import sys, os, struct
sys.path.insert(0, os.path.dirname(os.path.abspath(__file__)))
from dsl import *

NAME = "parallel_sum__linear_kernel_hedgehog__geglu_ffn__prompt"
K1 = NAME + "_kernel"
K2 = "k2_kernel"

HF_OFF = 0
KVP_OFF = 0xB00000
PHF_OFF = 0x1000000
WS_SIZE = 0x1400000
NKS = 144

OPT = dict(mimic_ffn=False, hf_flags=" sc1", k2d="8", prefetch=True)

def f32(x): return "0x%08x" % struct.unpack("<I", struct.pack("<f", x))[0]
def vr(a, n=4): return f"v[{a}:{a+n-1}]"
def ar(a, n=4): return f"a[{a}:{a+n-1}]"
MF = "v_mfma_f32_32x32x16_bf16"
MF16 = "v_mfma_f32_16x16x32_bf16"

def srd(S, d, lo, nbytes):
    S.e(f"s_mov_b32 s{d}, s{lo}\ns_mov_b32 s{d+1}, s{lo+1}\ns_mov_b32 s{d+2}, {nbytes}\ns_mov_b32 s{d+3}, 0x20000")

STAMP_REGS = [92, 94, 96, 98, 100, 28, 30, 4, 6, 8, 10, 12, 14, 16, 18, 20]
ST_OFF = 0xD00000
class Stamper:
    def __init__(self, regs=STAMP_REGS): self.n = 0; self.names = []; self.regs = regs
    def __call__(self, S, name, fine=False):
        if not OPT.get("stamps"): return
        if (OPT.get("stamps") == "fine") != fine and name != "end": return
        r = self.regs[self.n]; self.n += 1; self.names.append(name)
        S.e(f"{'s_memtime' if fine else 's_memrealtime'} s[{r}:{r+1}]")
    def flush(self, S, srd_s, base, vtmp, nwaves):
        if not OPT.get("stamps"): return
        S.e("s_waitcnt lgkmcnt(0)")
        for i in range(self.n): S.e(f"v_mov_b32 v{vtmp+i}, s{self.regs[i]}")
        S.e(f"s_mul_i32 s88, s2, {nwaves*64}\ns_lshl_b32 s89, s3, 6\ns_add_u32 s88, s88, s89\ns_add_u32 s88, s88, {base}\nv_mov_b32 v0, 0\ns_mov_b64 exec, 1")
        for i in range(0, 16, 4): S.e(f"buffer_store_dwordx4 v[{vtmp+i}:{vtmp+i+3}], v0, {srd_s}, s88 offen offset:{i*4}")
        if OPT.get("dbgst"):
            Stamper.uid = getattr(Stamper, "uid", 0) + 1
            S.e(f"s_lshl_b32 s88, s2, 4\ns_add_u32 s88, s88, s3\ns_cmp_lg_u32 s88, {OPT['dbgst']}\ns_cbranch_scc1 DBGST{Stamper.uid}")
            for i in range(1, self.n): S.e(f"v_sub_u32 v{vtmp+i}, v{vtmp+i}, v{vtmp}", opt=True)
            for i in range(0, 16, 4): S.e(f"buffer_store_dwordx4 v[{vtmp+i}:{vtmp+i+3}], v0, s[44:47], 0 offen offset:{i*4}", opt=True)
            S.e(f"DBGST{Stamper.uid}:")
        print("stamps", self.names, file=sys.stderr)

AREA = 12288
W0 = 98304; WS_ = 20480
MISC = 159744
WPHI = MISC
CNT = MISC + 2048
STATS_OFF = 0xC00000
REG2 = 18432
CSP = 147456; KVF = 147456 + 5120
PKO = 12288; VVO = 16384
NVG1 = 168

V_L = 1; V_L16 = 2; V_Z = 3
V_AX = 4; V_AT = 8
V_CSA = 13; V_PHA = 14; V_TMP = 15
V_RINV, V_SD = 16, 17
V_C0, V_C1, V_S2 = 18, 19, 20
BP = 24
XB = 28; AB = 36; ACC = 56; SC = 136
PT = 136; STV = 152
S_PF, S_X, S_OUT, S_WG, S_WU, S_WS, S_DBG, S_WQ, S_D1, S_WD, S_WO = 12, 24, 28, 32, 36, 40, 44, 48, 52, 56, 60
S_MT, S_C4, S_HL, S_HEAD, S_TYPE, S_XROW, S_AREA, S_D0L, S_H = 64, 65, 66, 67, 68, 69, 70, 71, 72
S_ODD = 73
S_T = 74
S_HH = 80
S_HFB = 82
S_U0, S_U12 = 83, 84
S_M = 85
S_SROW = 86
S_G = 87
M1 = "s[88:89]"; M2 = "s[90:91]"
HHM = f"s[{S_HH}:{S_HH+1}]"
t0, t1, t2, t3, t4, t5 = [f"s{S_T+i}" for i in range(6)]
tm = f"s{S_M}"
S_M64, S_N64, S_MT2 = 65, 66, 73
def sq(d): return f"s[{d}:{d+3}]"
STAMPR = [92, 94, 96, 100, 4, 6, 8, 10, 16, 18, 20, 22, 14]
import sys
if any('hfine2' in a for a in sys.argv): STAMPR = [92, 94, 96, 100, 4, 6, 12, 14, 16, 20, 22, 8, 18]
B_OWNMT = f"s_lshl_b32 {t2}, s{S_MT}, 5"
B_MT2 = f"s_lshl_b32 {t2}, s{S_MT2}, 5"
B_KV = f"s_lshl_b32 {t2}, s{S_HEAD}, 1\ns_add_u32 {t2}, {t2}, 1"

def bf16r(S, d, src):
    S.e(f"v_cvt_pk_bf16_f32 v{d}, {src}, {src}\nv_lshlrev_b32 v{d}, 16, v{d}")

def xhalf(S, op, x, t):
    S.e(f"v_mov_b32 v{t}, v{x}\nv_permlane32_swap_b32 v{t}, v{x}\n{op} v{x}, v{x}, v{t}")

def wave_sum(S, x, t):
    for m in ("quad_perm:[1,0,3,2]", "quad_perm:[2,3,0,1]", "row_half_mirror", "row_mirror"):
        S.e(f"v_add_f32_dpp v{x}, v{x}, v{x} {m} row_mask:0xf bank_mask:0xf")
    S.e(f"v_mov_b32 v{t}, v{x}\nv_permlane16_swap_b32 v{t}, v{x}\nv_add_f32 v{x}, v{x}, v{t}")
    xhalf(S, "v_add_f32", x, t)


MB_OFF = 0xE00000; MB_STRIDE = 4096 + 256
OST = CNT + 320; STL = 156672
TOK = CNT + 256
S_TOK = 98
def signal(tag, cnt_off, kind, lab, A, B, Cc, last, direct=None):
    G = Stream()
    if tag: G.wait_vm(*tag.split(","))
    if direct is not None: G.e(f"s_cmp_lg_u32 s3, {direct}\ns_cbranch_scc1 {lab}")
    else: G.e(f"""
    v_mov_b32 v{A}, {CNT + cnt_off}
    v_mov_b32 v{B}, 1
    s_mov_b64 exec, 1
    ds_add_rtn_u32 v{Cc}, v{A}, v{B}
    s_mov_b64 exec, -1
    v_readfirstlane_b32 {t1}, v{Cc}
    s_cmp_lg_u32 {t1}, {last}
    s_cbranch_scc1 {lab}
    """)
    if kind == "h":
        G.e(f"""
        s_and_b32 {t1}, s{S_MT}, 3
        s_lshl_b32 {t1}, {t1}, 1
        s_lshr_b32 {t2}, s{S_MT}, 2
        s_add_u32 {t1}, {t1}, {t2}
        s_mul_i32 {t1}, {t1}, {MB_STRIDE}
        s_bfe_u32 {t2}, s{S_SROW}, 0x50003
        s_lshl_b32 {t2}, {t2}, 2
        s_add_u32 {t1}, {t1}, {t2}
        s_add_u32 {t1}, {t1}, {MB_OFF}
        v_mul_u32_u24 v{Cc}, {8*MB_STRIDE}, v{V_L}
        v_mov_b32 v{B}, s{S_TOK}
        s_mov_b64 exec, 0xfffffff
        """, opt=True)
    else:
        G.e(f"""
        s_lshr_b32 {t1}, s{S_HEAD}, 2
        s_lshl_b32 {t1}, {t1}, 1
        s_and_b32 {t2}, s{S_HEAD}, 3
        s_lshl_b32 {t2}, {t2}, 6
        s_add_u32 {t1}, {t1}, {t2}
        s_mul_i32 {t1}, {t1}, {MB_STRIDE}
        s_lshl_b32 {t2}, s{S_MT}, 2
        s_add_u32 {t1}, {t1}, {t2}
        s_add_u32 {t1}, {t1}, {MB_OFF + 128}
        v_and_b32 v{Cc}, 3, v{V_L}
        v_lshlrev_b32 v{Cc}, 3, v{Cc}
        v_lshrrev_b32 v{A}, 2, v{V_L}
        v_add_u32 v{Cc}, v{Cc}, v{A}
        v_mul_u32_u24 v{Cc}, {MB_STRIDE}, v{Cc}
        v_mov_b32 v{B}, s{S_TOK}
        s_mov_b64 exec, 0xff
        """, opt=True)
    G.e(f"buffer_store_dword v{B}, v{Cc}, {sq(S_WS)}, {t1} offen sc1", opt=True)
    G.e(f"s_mov_b64 exec, -1", opt=True)
    G.e(f"{lab}:")
    return G

def tok_issue(G, lab, A, D, who):
    G.e(f"v_and_b32 v{A}, 7, v{V_L}\nv_lshlrev_b32 v{A}, 5, v{A}\ns_cmp_lg_u32 s3, {who}\ns_cbranch_scc1 {lab}")
    G.e(f"buffer_load_dword v{D}, v{A}, {sq(S_DBG)}, 0 offen sc1", opt=True)
    G.e(f"{lab}:")
def tok_fetch(lab, need_all, A, D, who=0, issued=False):
    G = Stream()
    G.e(f"s_cmp_lg_u32 s3, {who}\ns_cbranch_scc1 {lab}_ok")
    chk = (f"v_cmp_eq_u32_e64 {M1}, 0, v{D}\ns_cmp_eq_u64 {M1}, 0" if need_all else f"s_and_b32 {t2}, s2, 7\nv_readlane_b32 {t1}, v{D}, {t2}\ns_cmp_lg_u32 {t1}, 0")
    G.e(f"""
    {'' if issued else f'v_and_b32 v{A}, 7, v{V_L}'}
    {'' if issued else f'v_lshlrev_b32 v{A}, 5, v{A}'}
    s_mov_b32 {t3}, 0
    {f's_branch {lab}_chk' if issued else ''}
    {lab}_loop:
    buffer_load_dword v{D}, v{A}, {sq(S_DBG)}, 0 offen sc1
    {lab}_chk:
    s_waitcnt vmcnt(0)
    s_add_u32 {t3}, {t3}, 1
    {chk}
    s_cbranch_scc1 {lab}_wr
    s_sleep 16
    s_cmp_lt_u32 {t3}, 0x4000
    s_cbranch_scc1 {lab}_loop
    {lab}_wr:
    v_lshrrev_b32 v{A}, 3, v{A}
    v_add_u32 v{A}, {TOK}, v{A}
    ds_write_b32 v{A}, v{D}
    """, opt=True)
    G.e(f"{lab}_ok:")
    G.append(pseudo("forget_opt"))
    return G
def tok_read(G, sdst, idx_expr, A):
    G.e(f"{idx_expr}\ns_lshl_b32 {t0}, {t0}, 2\ns_add_u32 {t0}, {t0}, {TOK}\nv_mov_b32 v{A}, {t0}\nds_read_b32 v{A}, v{A}\nv_readfirstlane_b32 {sdst}, v{A}")

def tile_addrs(S, typ, AT, T):
    R, C, HH, NH = T + 1, T + 2, T + 3, T + 4
    S.e(f"""
    v_lshrrev_b32 v{HH}, 5, v{V_L}
    v_bfe_u32 v{NH}, v{V_L}, 4, 1
    v_bfe_u32 v{R}, v{V_L}, 2, 2
    v_and_b32 v{C}, 3, v{V_L}
    v_lshl_add_u32 v{T+5}, v{HH}, 3, v{R}
    v_lshlrev_b32 v{T+6}, 6, v{T+5}
    v_lshl_add_u32 v{T+8}, v{NH}, 2, v{C}
    v_add_u32 v{T+8}, s{S_ODD}, v{T+8}
    v_and_b32 v{T+8}, 7, v{T+8}
    v_lshl_add_u32 v{T+8}, v{T+8}, 3, v{T+6}
    """)
    if typ == "q":
        S.e(f"""
        v_add_u32 v{AT}, {W0 + 16384}, v{T+8}
        v_lshrrev_b32 v{T+6}, 1, v{C}
        v_and_b32 v{T+7}, 2, v{R}
        v_xor_b32 v{T+6}, v{T+6}, v{T+7}
        v_lshl_add_u32 v{T+6}, v{NH}, 2, v{T+6}
        v_lshlrev_b32 v{T+7}, 7, v{T+5}
        v_lshl_add_u32 v{T+7}, v{T+6}, 4, v{T+7}
        v_and_b32 v{T+6}, 1, v{C}
        v_lshl_add_u32 v{T+7}, v{T+6}, 3, v{T+7}
        v_lshl_add_u32 v{T+7}, v{NH}, 13, v{T+7}
        v_add_u32 v{AT+1}, {W0}, v{T+7}
        v_xor_b32 v{AT+2}, 32, v{AT+1}
        v_xor_b32 v{AT+3}, 64, v{AT+1}
        v_xor_b32 v{AT+4}, 0x60, v{AT+1}
        """)
    else:
        S.e(f"""
        v_add_u32 v{AT}, {W0}, v{T+8}
        v_lshl_add_u32 v{T+7}, v{C}, 3, v{T+6}
        v_mul_u32_u24 v{T+8}, 1056, v{NH}
        v_add_u32 v{AT+1}, v{T+7}, v{T+8}
        v_add_u32 v{AT+1}, {W0 + 2048}, v{AT+1}
        v_xor_b32 v{AT+2}, 32, v{AT+1}
        v_lshlrev_b32 v{T+6}, 5, v{T+5}
        v_lshl_add_u32 v{T+6}, v{C}, 3, v{T+6}
        v_mul_u32_u24 v{T+7}, 2176, v{NH}
        v_add_u32 v{AT+3}, v{T+6}, v{T+7}
        v_add_u32 v{AT+3}, {W0 + 16384}, v{AT+3}
        v_xor_b32 v{AT+4}, 0x80, v{AT+3}
        """)

def tile_read_args(typ, t, s, e):
    if typ == "q":
        return (0, s*1024 + e*256) if t == 0 else (t, s*2048 + e*512)
    if t == 0: return (0, s*4096 + e*256)
    if t == 1: return (0, s*4096 + 1024 + e*256)
    if t == 2: return (3 + e, s*512)
    return (t - 2, s*4096 + e*256)

def pk(S, op, d, srcs, neg=None):
    ops = []; lo = []; hi = []
    for kind, r in srcs:
        if kind == "p": assert r % 2 == 0; ops.append(vr(r, 2)); lo.append(0); hi.append(1)
        else: ops.append(vr(r & ~1, 2)); lo.append(r & 1); hi.append(r & 1)
    assert d % 2 == 0
    txt = f"v_pk_{op}_f32 {vr(d, 2)}, " + ", ".join(ops)
    if any(lo): txt += " op_sel:[" + ",".join(map(str, lo)) + "]"
    if not all(hi): txt += " op_sel_hi:[" + ",".join(map(str, hi)) + "]"
    if neg: txt += f" neg_lo:[{','.join(map(str, neg))}] neg_hi:[{','.join(map(str, neg))}]"
    S.e(txt)
    S[-1].opsel = False

def scale16(S, a):
    for i in range(0, 16, 2): pk(S, "mul", a + i, [("p", a + i), ("b", V_RINV)])

def geglu(S, a, T, unit_sgpr, unit_add):
    R = range(0, 8, 2)
    for i in R: pk(S, "mul", T + i, [("p", a + i), ("p", a + i)])
    for i in R: pk(S, "fma", T + i, [("p", T + i), ("b", V_C1), ("b", V_C0)])
    for i in R: pk(S, "mul", T + i, [("p", T + i), ("p", a + i)])
    for i in range(8): S.e(f"v_exp_f32 v{T+i}, v{T+i}")
    for i in R: pk(S, "mul", a + i, [("p", a + i), ("p", a + 8 + i)])
    for i in R: pk(S, "fma", T + i, [("p", T + i), ("b", V_S2), ("b", V_S2)])
    for i in range(8): S.e(f"v_rcp_f32 v{T+i}, v{T+i}")
    for i in R: pk(S, "mul", a + i, [("p", a + i), ("p", T + i)])
    for i in range(4): S.e(f"v_cvt_pk_bf16_f32 v{T+8+i}, v{a+2*i}, v{a+2*i+1}")
    S.e(f"s_add_u32 s{S_G}, s{unit_sgpr}, {unit_add * 1024}")
    S.e(f"buffer_store_dwordx4 {vr(T+8)}, v{V_L16}, {sq(S_WS)}, s{S_G} offen{OPT['hf_flags']}", tag="hst")

def softmax14(S, P, E, T):
    N = 14; R = range(0, N, 2)
    for i in range(7): S.e(f"v_cvt_pk_bf16_f32 v{E+i}, v{P+2*i}, v{P+2*i+1}")
    for i in range(7): S.e(f"v_lshlrev_b32 v{P+2*i}, 16, v{E+i}\nv_and_b32 v{P+2*i+1}, 0xffff0000, v{E+i}")
    L = T + 4
    S.e(f"v_mov_b32 v{L}, {f32(1.4426950408889634)}")
    MX, MN = T, T + 1
    S.e(f"v_max3_f32 v{MX}, v{P}, v{P+1}, v{P+2}\nv_min3_f32 v{MN}, v{P}, v{P+1}, v{P+2}")
    for i in range(3, 13, 2):
        S.e(f"v_max3_f32 v{MX}, v{MX}, v{P+i}, v{P+i+1}\nv_min3_f32 v{MN}, v{MN}, v{P+i}, v{P+i+1}")
    S.e(f"v_max_f32 v{MX}, v{MX}, v{P+13}\nv_min_f32 v{MN}, v{MN}, v{P+13}")
    S.e(f"v_mov_b32 v{T+2}, v{MX}\nv_mov_b32 v{T+3}, v{MN}\nv_permlane32_swap_b32 v{T+2}, v{MX}\nv_permlane32_swap_b32 v{T+3}, v{MN}")
    S.e(f"v_max_f32 v{MX}, v{MX}, v{T+2}\nv_min_f32 v{MN}, v{MN}, v{T+3}")
    pk(S, "mul", T, [("p", T), ("b", L)])
    for i in R: pk(S, "fma", E + i, [("p", P + i), ("b", L), ("b", MX)], neg=[0, 0, 1])
    for i in R: pk(S, "fma", P + i, [("p", P + i), ("b", L), ("b", MN)], neg=[1, 0, 0])
    for i in range(N): S.e(f"v_exp_f32 v{E+i}, v{E+i}")
    for i in range(N): S.e(f"v_exp_f32 v{P+i}, v{P+i}")
    pk(S, "add", T, [("p", E), ("p", E + 2)]); pk(S, "add", T + 2, [("p", P), ("p", P + 2)])
    for i in range(4, N, 2):
        pk(S, "add", T, [("p", T), ("p", E + i)]); pk(S, "add", T + 2, [("p", T + 2), ("p", P + i)])
    SP, SM = T, T + 1
    S.e(f"v_add_f32 v{SP}, v{T}, v{T+1}\nv_add_f32 v{SM}, v{T+2}, v{T+3}")
    S.e(f"v_mov_b32 v{T+2}, v{SP}\nv_mov_b32 v{T+3}, v{SM}\nv_permlane32_swap_b32 v{T+2}, v{SP}\nv_permlane32_swap_b32 v{T+3}, v{SM}")
    pk(S, "add", T, [("p", T), ("p", T + 2)])
    S.e(f"v_rcp_f32 v{SP}, v{SP}\nv_rcp_f32 v{SM}, v{SM}")
    for i in R: pk(S, "mul", E + i, [("p", E + i), ("b", SP)])
    for i in R: pk(S, "mul", P + i, [("p", P + i), ("b", SM)])
    for i in range(7): S.e(f"v_cvt_pk_bf16_f32 v{E+i}, v{E+2*i}, v{E+2*i+1}")
    for i in range(7): S.e(f"v_cvt_pk_bf16_f32 v{E+8+i}, v{P+2*i}, v{P+2*i+1}")
    S.e(f"v_mov_b32 v{E+7}, 0\nv_mov_b32 v{E+15}, 0")

def stats_consts(S):
    S.e(f"""
    v_mov_b32 v{BP}, v{V_RINV}
    v_mov_b32 v{BP+1}, v{V_RINV}
    v_mov_b32 v{BP+2}, v{V_RINV}
    v_mov_b32 v{BP+3}, v{V_RINV}
    v_rcp_f32 v{V_RINV}, v{V_SD}
    v_mul_f32 v{V_S2}, v{V_SD}, v{V_SD}
    v_mul_f32 v{V_C0}, {f32(-2.302208198)}, v{V_RINV}
    v_mul_f32 v{V_C1}, v{V_RINV}, v{V_RINV}
    v_mul_f32 v{V_C1}, v{V_C1}, v{V_C0}
    v_mul_f32 v{V_C1}, {f32(0.044715)}, v{V_C1}
    """)


def tagpoll(G, lab, A, D, soff, opt=False, first_issued=False, sleep=None):
    if first_issued:
        G.e(f"v_cmp_eq_u32_e64 {M1}, -1, v{D}\ns_mov_b32 {t3}, 0\ns_cmp_eq_u64 {M1}, 0\ns_cbranch_scc1 {lab}_ok")
        opt = True
    else:
        G.e(f"s_mov_b32 {t3}, 0")
    G.e(f"""
    {lab}_loop:
    buffer_load_dword v{D}, v{A}, {sq(S_WS)}, {soff} offen sc1
    s_waitcnt vmcnt(0)
    v_cmp_eq_u32_e64 {M1}, -1, v{D}
    s_add_u32 {t3}, {t3}, 1
    s_cmp_eq_u64 {M1}, 0
    s_cbranch_scc1 {lab}_ok
    s_sleep {sleep if sleep else OPT.get('sleep', 4)}
    s_cmp_lt_u32 {t3}, 0x8000
    s_cbranch_scc1 {lab}_loop
    """, opt=opt)
    G.e(f"{lab}_ok:")

def umax_tree(G, regs, T, opt=False):
    G.e(f"v_max3_u32 v{T}, v{regs[0]}, v{regs[1]}, v{regs[2]}", opt=opt)
    i = 3
    while i + 1 < len(regs):
        G.e(f"v_max3_u32 v{T}, v{T}, v{regs[i]}, v{regs[i+1]}", opt=opt); i += 2
    if i < len(regs): G.e(f"v_max_u32 v{T}, v{T}, v{regs[i]}", opt=opt)

def prologue():
    S = Stream()
    S.e(f"""
    s_cmp_ge_u32 s2, 256
    s_cbranch_scc1 K_END
    {'s_memrealtime s[92:93]' if OPT.get('stamps') else ''}
    s_load_dwordx16 s[4:19], s[0:1], 0
    s_load_dwordx4 s[20:23], s[0:1], 72
    s_load_dwordx2 s[{S_OUT}:{S_OUT+1}], s[0:1], 64
    v_lshrrev_b32 v{PT}, 6, v0
    v_and_b32 v{V_L}, 63, v0
    v_readfirstlane_b32 s3, v{PT}
    v_lshlrev_b32 v{V_L16}, 4, v{V_L}
    v_mov_b32 v{V_Z}, 0
    s_and_b32 {t0}, s2, 7
    s_lshr_b32 {t1}, s2, 3
    s_and_b32 s{S_MT}, {t0}, 1
    s_lshl_b32 s{S_MT}, s{S_MT}, 2
    s_and_b32 {t2}, {t1}, 3
    s_add_u32 s{S_MT}, s{S_MT}, {t2}
    s_lshr_b32 s{S_C4}, {t0}, 1
    s_lshr_b32 {t1}, {t1}, 2
    s_and_b32 s{S_TYPE}, {t1}, 1
    s_lshr_b32 s{S_HL}, {t1}, 1
    s_lshl_b32 s{S_HEAD}, s{S_C4}, 2
    s_add_u32 s{S_HEAD}, s{S_HEAD}, s{S_HL}
    s_and_b32 s{S_ODD}, s{S_HEAD}, 1
    s_lshl_b32 {t2}, s{S_MT}, 2
    s_add_u32 {t2}, {t2}, s{S_C4}
    s_lshl_b32 {t2}, {t2}, 3
    s_add_u32 {t2}, {t2}, {t1}
    s_lshl_b32 {t2}, {t2}, 3
    s_and_b32 {t3}, s3, 7
    s_add_u32 s{S_SROW}, {t2}, {t3}
    s_mov_b32 s{S_HH}, 0
    s_mov_b32 s{S_HH+1}, -1
    s_mul_i32 {t0}, s{S_C4}, 896
    s_lshl_b32 {tm}, s{S_HL}, 7
    s_add_u32 {t3}, {t0}, {tm}
    s_add_u32 {t0}, {t0}, 512
    s_mul_i32 {t1}, s{S_HL}, 3
    s_and_b32 {t2}, s{S_HL}, 1
    s_add_u32 {t5}, {t1}, {t2}
    s_lshl_b32 {t2}, {t2}, 1
    s_add_u32 {t1}, {t1}, 2
    s_sub_u32 {t1}, {t1}, {t2}
    s_lshl_b32 {t1}, {t1}, 5
    s_add_u32 {t1}, {t1}, {t0}
    s_lshl_b32 {t5}, {t5}, 5
    s_add_u32 {t0}, {t0}, {t5}
    s_cmp_eq_u32 s{S_TYPE}, 1
    s_cselect_b32 s{S_U0}, {t1}, {t3}
    s_cselect_b32 s{S_U12}, {t0}, {t3}
    s_cmp_lt_u32 s3, 8
    s_cbranch_scc1 K_comp
    """)
    return S

def p2_ids(S):
    S.e(f"""
    s_and_b32 {t0}, s2, 7
    s_lshr_b32 {t1}, s2, 3
    s_and_b32 {t2}, {t0}, 1
    s_lshl_b32 {t2}, {t2}, 2
    s_lshr_b32 {t0}, {t0}, 1
    s_add_u32 s{S_MT2}, {t0}, {t2}
    s_lshl_b32 s{S_M64}, s{S_MT2}, 2
    s_and_b32 {t2}, {t1}, 3
    s_add_u32 s{S_M64}, s{S_M64}, {t2}
    s_lshr_b32 s{S_N64}, {t1}, 2
    """)
def p2_a_voffsets(S, VD, VO, VOM, T):
    S.e(f"""
    v_lshrrev_b32 v{T}, 3, v{V_L}
    v_and_b32 v{T+1}, 7, v{V_L}
    v_bfe_u32 v{T+2}, v{V_L}, 4, 1
    v_lshlrev_b32 v{T+2}, 2, v{T+2}
    v_xor_b32 v{T+1}, v{T+1}, v{T+2}
    s_lshl_b32 {t0}, s{S_N64}, 7
    v_lshlrev_b32 v{T+1}, 4, v{T+1}
    v_add_u32 v{T+1}, {t0}, v{T+1}
    v_mul_u32_u24 v{VD}, 896, v{T}
    v_add_u32 v{VD}, v{VD}, v{T+1}
    """)
    if VO is not None:
        S.e(f"""
        v_lshrrev_b32 v{T+2}, 2, v{T}
        v_and_b32 v{T+3}, 3, v{T}
        v_mad_u32_u24 v{T+2}, v{T+2}, 14, v{T+3}
        v_mul_u32_u24 v{VO}, 896, v{T+2}
        v_add_u32 v{VO}, v{VO}, v{T+1}
        v_cmp_lt_u32_e64 {M1}, 1, v{T+3}
        v_mov_b32 v{T+2}, 0x7f000000
        v_cndmask_b32_e64 v{VOM}, v{VO}, v{T+2}, {M1}
        """)

def hsync(S, lab, cnt_off, target, A, B):
    S.wait_lgkm()
    S.e(f"""
    v_mov_b32 v{A}, {CNT + cnt_off}
    v_mov_b32 v{B}, 1
    s_mov_b64 exec, 1
    ds_add_u32 v{A}, v{B}
    s_mov_b64 exec, -1
    {lab}:
    ds_read_b32 v{B}, v{A}
    s_waitcnt lgkmcnt(0)
    v_readfirstlane_b32 {t1}, v{B}
    s_cmp_lt_u32 {t1}, {target}
    s_cbranch_scc1 {lab}
    """)

def helper_head():
    S = Stream(); T = PT
    S.e("K_helper:")
    S.e(f"s_setprio {OPT.get('hprio', 3)}")
    S.e(f"""
    s_sub_u32 s{S_H}, s3, 8
    s_lshl_b32 {t0}, s{S_MT}, 2
    s_add_u32 {t0}, {t0}, s{S_H}
    s_mul_i32 s{S_XROW}, {t0}, {64*896}
    s_mul_i32 s{S_AREA}, s{S_H}, {2*AREA}
    v_lshrrev_b32 v{T+7}, 3, v{V_L}
    v_mul_u32_u24 v{T}, 896, v{T+7}
    v_and_b32 v{T+8}, 7, v{V_L}
    v_lshrrev_b32 v{T+2}, 4, v{V_L}
    v_xor_b32 v{T+1}, v{T+8}, v{T+2}
    v_lshl_add_u32 v4, v{T+1}, 4, v{T}
    v_xor_b32 v5, 64, v4
    s_mul_i32 {t1}, s{S_HEAD}, 56
    s_lshl_b32 {t2}, s{S_ODD}, 3
    s_sub_u32 {t1}, {t1}, {t2}
    v_lshrrev_b32 v{T}, 2, v{V_L}
    v_and_b32 v{T+1}, 3, v{V_L}
    v_mul_u32_u24 v{T+4}, 2688, v{T}
    v_lshl_add_u32 v{T+4}, v{T+1}, 4, v{T+4}
    s_mul_i32 {tm}, s{S_H}, {16*2688}
    s_add_u32 {t1}, {t1}, {tm}
    v_add_u32 v6, {t1}, v{T+4}
    s_waitcnt lgkmcnt(0)
    """)
    srd(S, S_X, 4, 2048 * 896); srd(S, S_WQ, 6, 448 * 2688); srd(S, S_WG, 14, 448 * 3584); srd(S, S_WU, 16, 448 * 3584)
    S.e(f"s_cmp_eq_u32 s{S_TYPE}, 1\ns_cbranch_scc1 K_hkv")
    return S

def helper(typ):
    q = typ == "q"
    S = Stream(); T = PT
    S.e(f"K_h{typ}:")
    global HST
    HST = Stamper(STAMPR); HST.n = 1; HST.names = ["start"]
    V_XE, V_XO, V_DQ, V_DG, V_DU, V_DS = 4, 5, 6, 7, 8, 9
    V_AC = 10; V_PF = 16
    CA = 18; CU = 23; CT = 34
    if q:
        S.e(f"""
        v_bfe_u32 v{T+2}, v{V_L}, 4, 1
        v_lshlrev_b32 v{T+2}, 1, v{T+2}
        v_xor_b32 v{T+2}, v{T+2}, v{T+8}
        v_mul_u32_u24 v{T+3}, 3584, v{T+7}
        v_lshl_add_u32 v{T+2}, v{T+2}, 4, v{T+3}
        s_mul_i32 {tm}, s{S_H}, {16*3584}
        s_add_u32 {tm}, {tm}, s{S_U0}
        v_add_u32 v{V_DG}, {tm}, v{T+2}
        v_xor_b32 v{V_DU}, 64, v{V_DG}
        """)
    else:
        S.e(f"""
        v_mul_u32_u24 v{T+3}, 3584, v{T}
        v_lshl_add_u32 v{V_DG}, v{T+1}, 4, v{T+3}
        s_mul_i32 {tm}, s{S_H}, {16*3584}
        s_add_u32 {tm}, {tm}, s{S_U12}
        v_add_u32 v{V_DG}, {tm}, v{V_DG}
        v_xor_b32 v{V_DU}, 32, v{V_DG}
        s_lshr_b32 {t2}, s{S_H}, 1
        s_cmp_eq_u32 {t2}, 0
        s_cselect_b32 s{S_D1}, s14, s16
        s_cselect_b32 s{S_D1+1}, s15, s17
        s_mov_b32 s{S_D1+2}, {448*3584}
        s_mov_b32 s{S_D1+3}, 0x20000
        s_lshl_b32 {t2}, {t2}, 2
        v_lshrrev_b32 v{T+5}, 1, v{V_L}
        v_xor_b32 v{T+5}, {t2}, v{T+5}
        v_mul_u32_u24 v{T+5}, 3584, v{T+5}
        v_and_b32 v{T+6}, 1, v{V_L}
        v_lshl_add_u32 v{T+5}, v{T+6}, 4, v{T+5}
        s_and_b32 {t2}, s{S_H}, 1
        s_mul_i32 {t2}, {t2}, {32*3584}
        s_add_u32 {t2}, {t2}, s{S_U0}
        v_add_u32 v{V_DS}, {t2}, v{T+5}
        """)
    S.e(f"s_lshl_b32 s{S_D0L}, s{S_H}, 10\ns_add_u32 s{S_D0L}, s{S_D0L}, {W0}\ns_lshl_b32 s{S_G}, s{S_H}, {11 if q else 12}\ns_add_u32 s{S_G}, s{S_G}, {W0}")
    def dma(c, lo=0, hi=13):
        sb = (c % 3) * WS_
        L = []
        def one(m0expr, soff, v, srdreg): L.append((m0expr, soff, v, srdreg))
        if q:
            one(f"s{S_D0L}, {sb + 16384}", f"s_mov_b32 {tm}, {c*172032}", V_DQ, S_WQ)
            for rg in range(2):
                one(f"s{S_G}, {sb + rg*1024}", f"s_mov_b32 {tm}, {c*229376 + rg*8*3584}", V_DG, S_WG)
                one(f"s{S_G}, {sb + 8192 + rg*1024}", f"s_mov_b32 {tm}, {c*229376 + rg*8*3584}", V_DU, S_WU)
        else:
            one(f"s{S_G}, {sb}", f"s_mov_b32 {tm}, {c*172032 + 896}", V_DQ, S_WQ)
            one(f"s{S_G}, {sb + 1024}", f"s_mov_b32 {tm}, {c*172032 + 1792}", V_DQ, S_WQ)
            one(f"s{S_G}, {sb + 2048}", f"s_mov_b32 {tm}, {c*229376}", V_DG, S_WG)
            one(f"s{S_G}, {sb + 3072}", f"s_mov_b32 {tm}, {c*229376}", V_DU, S_WU)
            one(f"s{S_D0L}, {sb + 16384}", f"s_mov_b32 {tm}, {c*229376}", V_DS, S_D1)
        for i in range(8):
            wv, qq = i >> 2, i & 3
            one(f"s{S_AREA}, {wv*AREA + (c % 3)*4096 + qq*1024}", f"s_add_u32 {tm}, s{S_XROW}, {(wv*32 + qq*8)*896 + c*128}", V_XO if qq & 1 else V_XE, S_X)
        if OPT.get('xfirst') and c == 0: L = L[5:] + L[:5]
        for (m0expr, soff, v, srdreg) in L[lo:hi]:
            S.e(f"s_add_u32 m0, {m0expr}\n{soff}")
            fl = OPT.get("x_flags", "") if srdreg == S_X else OPT.get("w_flags", "")
            S.e(f"buffer_load_dwordx4 v{v}, {sq(srdreg)}, {tm} offen{fl} lds", tag=f"d{c}")
    plan = [int(x) for x in OPT.get("dplan" + typ, OPT.get("dplan", "23,13,13,14,14,14")).split(",")]
    pos = [0]
    def issue(n, limit_chunk):
        while n > 0 and pos[0] < 91 and pos[0] // 13 <= limit_chunk:
            c, i = divmod(pos[0], 13)
            dma(c, i, i + 1); pos[0] += 1; n -= 1
    issue(13, 2)
    def setup2():
        tile_addrs(S, typ, V_AC, 60)
        for t in range(5):
            stride = (1024 if t == 0 else 2048) if q else (512 if t >= 3 else 4096)
            S.e(f"s_mul_i32 {t0}, s{S_H}, {stride}\nv_add_u32 v{V_AC+t}, {t0}, v{V_AC+t}")
        for i in range(5): S.e(f"v_mov_b32 v{CA+i}, 0")
    if not OPT.get('late2'): setup2()
    issue(plan[0] - 13, 2)
    def colsum_rd(c):
        for t in range(5):
            for e in range(2):
                a, imm = tile_read_args(typ, t, 0, e)
                S.e(f"ds_read_b64_tr_b16 {vr(CT + 20*(c % 5) + 4*t + 2*e, 2)}, v{V_AC+a} offset:{(c % 3)*WS_ + imm}")
    hb = [0]
    CM = OPT.get("csmode", "mfma")
    if CM == "mfma":
        for i in range(20): S.e(f"v_mov_b32 v{140+i}, 0")
        S.e("v_mov_b32 v134, 0x3f803f80\nv_mov_b32 v135, 0x3f803f80")
    def colsum_add(nhalf):
        if CM != "valu":
            for _ in range(nhalf):
                c, hf = hb[0] >> 1, hb[0] & 1; hb[0] += 1
                for t in range(5):
                    src = CT + 20*(c % 5) + 4*t + 2*hf
                    if CM == "mfma": S.e(f"v_mfma_f32_4x4x4_16b_bf16 {vr(140+4*t)}, v[134:135], {vr(src, 2)}, {vr(140+4*t)}")
                    else: S.e(f"v_dot2c_f32_bf16 v{CA+t}, 0x3f803f80, v{src}")
                if CM == "dot":
                    for t in range(5): S.e(f"v_dot2c_f32_bf16 v{CA+t}, 0x3f803f80, v{CT + 20*(c % 5) + 4*t + 2*hf + 1}")
            return
        for _ in range(nhalf):
            c, hf = hb[0] >> 1, hb[0] & 1; hb[0] += 1
            for j in (2*hf, 2*hf + 1):
                src = CT + 20*(c % 5) + j
                for t in range(5): S.e(f"v_lshlrev_b32 v{CU+t}, 16, v{src + 4*t}")
                for t in range(5): S.e(f"v_and_b32 v{CU+5+t}, 0xffff0000, v{src + 4*t}")
                for t in range(5): S.e(f"v_add_f32 v{CA+t}, v{CA+t}, v{CU+t}")
                for t in range(5): S.e(f"v_add_f32 v{CA+t}, v{CA+t}, v{CU+5+t}")
    F2 = (lambda n: HST(S, n, fine=True)) if OPT.get('hfine2') else (lambda n: None)
    S.wait_vm("d0"); S.e("s_barrier")
    F2("b0")
    srd(S, S_WS, 22, WS_SIZE); srd(S, S_DBG, 20, 256)
    S.e(f"v_and_b32 v16, 7, v{V_L}\nv_lshlrev_b32 v16, 5, v16")
    S.e(f"s_cmp_eq_u32 s3, 8\ns_cselect_b32 {t0}, 0, 0x40000000")
    S.e(f"buffer_load_dword v17, v16, {sq(S_DBG)}, {t0} offen sc1", tag="tok")
    if OPT.get('late2'):
        issue(6, 2); setup2(); colsum_rd(0); issue(plan[1] - 6, 2)
    else:
        colsum_rd(0); issue(plan[1], 2)
    F2("p1")
    S.wait_lgkm(); S.wait_vm("d1"); F2("l1"); S.e("s_barrier")
    colsum_rd(1); issue(plan[2], 3)
    srd(S, S_WO, 8, 16 * 1568); srd(S, S_WD, 18, 1792 * 896)
    PZ = 160
    def poison():
        for i in range(4): S.e(f"v_mov_b32 v{PZ+i}, -1")
        if q:
            S.e(f"s_lshl_b32 {t0}, s{S_MT}, 2\ns_add_u32 {t0}, {t0}, s{S_H}\ns_mul_i32 {t0}, {t0}, {2*NKS*1024}\ns_lshl_b32 {t1}, s{S_HEAD}, 11\ns_add_u32 {t0}, {t0}, {t1}\ns_add_u32 {t0}, {t0}, {112*1024}\ns_add_u32 {t1}, {t0}, {NKS*1024}")
            for so in (t0, t1):
                for u in range(2): S.e(f"buffer_store_dwordx4 {vr(PZ)}, v{V_L16}, {sq(S_WS)}, {so} offen offset:{u*1024} sc1", tag="poi")
        else:
            S.e(f"s_lshl_b32 {t0}, s{S_HEAD}, 3\ns_add_u32 {t0}, {t0}, s{S_MT}\ns_lshl_b32 {t0}, {t0}, 2\ns_add_u32 {t0}, {t0}, s{S_H}\ns_lshl_b32 {t0}, {t0}, 11\ns_add_u32 {t0}, {t0}, {KVP_OFF}")
            for u in range(2): S.e(f"buffer_store_dwordx4 {vr(PZ)}, v{V_L16}, {sq(S_WS)}, {t0} offen offset:{u*1024} sc1", tag="poi")
    S.e(f"""
    s_and_b32 {t2}, s2, 7
    v_readlane_b32 s{S_TOK}, v17, {t2}
    s_mov_b32 {t3}, 0
    s_cmp_eq_u32 s3, 8
    s_cselect_b32 s{S_TOK}, s{S_TOK}, 1
    s_cmp_lg_u32 s{S_TOK}, 0
    s_cbranch_scc1 K_h{typ}_tok
    """)
    S.e(f"""
    K_h{typ}_tokl:
    s_sleep 16
    buffer_load_dword v17, v16, {sq(S_DBG)}, 0 offen sc1
    s_waitcnt vmcnt(0)
    v_readlane_b32 s{S_TOK}, v17, {t2}
    s_add_u32 {t3}, {t3}, 1
    s_cmp_lg_u32 s{S_TOK}, 0
    s_cbranch_scc1 K_h{typ}_tok
    s_cmp_lt_u32 {t3}, 0x4000
    s_cbranch_scc1 K_h{typ}_tokl
    """, opt=True)
    S.e(f"K_h{typ}_tok:")
    S.append(pseudo("forget_opt"))
    S.e(f"""
    v_lshrrev_b32 v{PZ+4}, 2, v16
    v_add_u32 v{PZ+4}, {OST}, v{PZ+4}
    ds_read_b64 {vr(PZ+4, 2)}, v{PZ+4}
    v_mov_b32 v{PZ+6}, s{S_TOK}
    v_mov_b32 v{PZ+7}, 0
    s_and_b32 {t0}, s{S_SROW}, 0xfffffff8
    s_lshl_b32 {t0}, {t0}, 4
    s_add_u32 {t0}, {t0}, {STATS_OFF}
    s_cmp_eq_u32 s3, 8
    s_cselect_b32 {t0}, {t0}, 0x40000000
    s_mov_b64 exec, 0xff
    buffer_store_dwordx4 {vr(PZ+4)}, v{V_L16}, {sq(S_WS)}, {t0} offen sc1
    s_mov_b64 exec, -1
    """)
    sched = dict(zip(range(2, 7), [int(x) for x in OPT.get('sched', '2,2,2,4,4').split(',')]))
    for c in range(2, 7):
        F = (lambda n: HST(S, n, fine=True)) if (c in (2, 3) and OPT.get('hfine')) else (lambda n: None)
        if c == 6: S.extend(tok_fetch(f"K_h{typ}_tk2", True, 16, 17, who=8))
        F("pre")
        if c <= 4: F2(f"p{c}")
        S.wait_lgkm(); S.wait_vm(f"d{c}")
        if c <= 4: F2(f"l{c}")
        F("landed")
        S.e("s_barrier")
        F("bar")
        if c in (4, 5): F2(f"b{c}")
        issue(plan[c + 1] if c + 1 < len(plan) else 99, c + 2)
        if c == 4: poison()
        if c == 5: S.wait_vm("poi")
        if c == 6 and not q: S.extend(signal(None, 4, "kp", f"K_h{typ}_nosigkp", 164, 165, 166, 3, direct=8))
        if c == 5:
            S.e(f"s_lshl_b32 s{S_TOK+1}, s{S_MT}, 2\ns_add_u32 s{S_TOK+1}, s{S_TOK+1}, s{S_H}\ns_lshl_b32 s{S_TOK+1}, s{S_TOK+1}, 10\ns_add_u32 s{S_TOK+1}, s{S_TOK+1}, {STATS_OFF}")
            S.e(f"buffer_load_dwordx3 v[160:162], v{V_L16}, {sq(S_WS)}, s{S_TOK+1} offen sc1")
        if c == 6:
            tok_read(S, t4, f"s_lshl_b32 {t0}, s{S_H}, 1\ns_lshr_b32 {t1}, s{S_MT}, 2\ns_add_u32 {t0}, {t0}, {t1}", 163)
            S.e(f"v_cmp_ne_u32_e64 {M1}, {t4}, v162\ns_mov_b32 {t3}, 0\ns_cmp_eq_u64 {M1}, 0\ns_cbranch_scc1 K_h{typ}_stok")
            S.e(f"""
            K_h{typ}_st:
            s_sleep 8
            buffer_load_dwordx3 v[160:162], v{V_L16}, {sq(S_WS)}, s{S_TOK+1} offen sc1
            s_waitcnt vmcnt(0)
            v_cmp_ne_u32_e64 {M1}, {t4}, v162
            s_add_u32 {t3}, {t3}, 1
            s_cmp_eq_u64 {M1}, 0
            s_cbranch_scc1 K_h{typ}_stok
            s_cmp_lt_u32 {t3}, 0x8000
            s_cbranch_scc1 K_h{typ}_st
            """, opt=True)
            S.e(f"K_h{typ}_stok:")
            S.append(pseudo("forget_opt"))
            S.e(f"v_lshlrev_b32 v163, 3, v{V_L}\ns_lshl_b32 {t0}, s{S_H}, 9\ns_add_u32 {t0}, {t0}, {STL}\nv_add_u32 v163, {t0}, v163\nds_write_b64 v163, v[160:161]")
        assert pos[0] >= min(91, 13 * (c + 2)), (c, pos[0])
        F("dma")
        if c == int(OPT.get('phic', 5)):
            for i in range(2):
                S.e(f"""
                v_lshrrev_b32 v{T+28}, 4, v{V_L}
                s_lshl_b32 {t0}, s{S_H}, 3
                s_add_u32 {t0}, {t0}, {4*i}
                v_add_u32 v{T+28}, {t0}, v{T+28}
                v_bfe_u32 v{T+29}, v{V_L}, 3, 1
                v_and_b32 v{T+30}, 7, v{V_L}
                v_mad_u32_u24 v{T+29}, v{T+29}, 7, v{T+30}
                v_mad_u32_u24 v{T+29}, v{T+28}, 14, v{T+29}
                v_lshlrev_b32 v{T+29}, 2, v{T+29}
                v_cmp_eq_u32_e64 {M1}, 7, v{T+30}
                s_cmp_eq_u32 {t0}, 28
                s_cselect_b64 {M1}, -1, {M1}
                v_mov_b32 v{T+30}, 0x7fffff00
                v_cndmask_b32_e64 v{T+29}, v{T+29}, v{T+30}, {M1}
                s_mul_i32 {t1}, s{S_HEAD}, 1568
                s_lshl_b32 {t0}, {t0}, 6
                s_add_u32 m0, {t0}, {WPHI}
                """)
                S.e(f"buffer_load_dword v{T+29}, {sq(S_WO)}, {t1} offen lds", tag="phi")
        if c == int(OPT.get("pfc", 6)) and OPT["prefetch"]:
            S.e(f"""
            s_lshr_b32 {t0}, s2, 3
            s_lshl_b32 {t0}, {t0}, 2
            s_add_u32 {t0}, {t0}, s{S_H}
            s_lshl_b32 {t0}, {t0}, 14
            s_mov_b32 {t3}, {1792*896}
            s_cmp_lt_u32 {t0}, {t3}
            s_cselect_b32 s{S_PF}, s18, s10
            s_cselect_b32 s{S_PF+1}, s19, s11
            s_cselect_b32 s{S_PF+2}, {t3}, {448*896}
            s_mov_b32 s{S_PF+3}, 0x20000
            s_cselect_b32 {t3}, 0, {t3}
            s_sub_u32 {t0}, {t0}, {t3}
            v_lshlrev_b32 v{V_PF}, 7, v{V_L}
            s_add_u32 {t1}, {t0}, 0x2000
            """)
            S.e(f"buffer_load_dword v{T+27}, v{V_PF}, {sq(S_PF)}, {t0} offen\nbuffer_load_dword v{T+28}, v{V_PF}, {sq(S_PF)}, {t1} offen", tag="pf")
        if c >= 5:
            colsum_rd(c); colsum_add(sched[c])
        else:
            colsum_rd(c); colsum_add(sched[c])
    assert hb[0] == 14
    if CM == "mfma":
        for t in range(5): S.e(f"v_mov_b32 v{CA+t}, v{140+4*t}")
    S.e(f"s_lshl_b32 {t0}, s{S_H}, 2\ns_add_u32 {t0}, {t0}, {CSP}\nv_add_u32 v{T}, {t0}, v{V_L16}")
    for t in range(5): S.e(f"v_cvt_pk_bf16_f32 v{T+1+t}, v{CA+t}, v{CA+t}")
    for t in range(5): S.e(f"v_lshlrev_b32 v{T+1+t}, 16, v{T+1+t}")
    for t in range(5): S.e(f"v_sub_f32 v{T+1+t}, v{CA+t}, v{T+1+t}")
    for t in range(5): S.e(f"v_cvt_pk_bf16_f32 v{T+1+t}, v{CA+t}, v{T+1+t}")
    for t in range(5): S.e(f"ds_write_b32 v{T}, v{T+1+t} offset:{t*1024}")
    S.wait_vm("phi"); S.wait_lgkm()
    return S

def hpost(typ):
    q = typ == "q"
    S = Stream(); T = PT
    S.e(f"K_hpost_{typ}:")
    st = HST
    V_WD = 18
    p2_ids(S)
    p2_a_voffsets(S, V_WD, None, None, 60)
    S.e(f"""
    s_mul_i32 s{S_AREA}, s{S_H}, {2*REG2}
    s_and_b32 {t0}, s{S_H}, 1
    s_lshl_b32 {t0}, {t0}, 2
    s_lshr_b32 {t1}, s{S_H}, 1
    s_add_u32 {t0}, {t0}, {t1}
    s_mul_i32 s{S_XROW}, {t0}, {14*16*896}
    s_cmp_ge_u32 s2, 224
    s_cselect_b32 {t0}, 0x40000000, 0
    s_add_u32 s{S_XROW}, s{S_XROW}, {t0}
    """)
    def B1():
        S.e(f"s_barrier\ns_setprio {OPT.get('hprio2', 0)}")
        st(S, "B1")
    def adma(lo, hi):
        for i in range(lo, hi):
            for wv in range(2):
                for u in range(2):
                    S.e(f"s_add_u32 m0, s{S_AREA}, {wv*REG2 + i*2048 + u*1024}\ns_add_u32 {tm}, s{S_XROW}, {((wv*28 + i)*16 + 8*u)*896}")
                    S.e(f"buffer_load_dwordx4 v{V_WD}, {sq(S_WD)}, {tm} offen lds", tag="a1")
    if q:
        KO = 4; U = 5; PH = 100
        S.e(f"""
        s_lshl_b32 {t0}, s{S_H}, 11
        v_add_u32 v{KO}, {t0}, v{V_L16}
        v_and_b32 v{U+3}, 7, v{V_L}
        v_lshlrev_b32 v{U+3}, 13, v{U+3}
        v_add_u32 v{U+3}, 0x1e80, v{U+3}
        s_lshl_b32 {t0}, s{S_H}, 10
        s_add_u32 {t0}, {t0}, {KVF}
        v_add_u32 v{U}, {t0}, v{V_L16}
        v_add_u32 v{U+1}, {KVF}, v{V_L16}
        v_add_u32 v{U+2}, s{S_AREA}, v{V_L16}
        s_lshl_b32 {t0}, s{S_MT}, 2
        s_add_u32 {t0}, {t0}, s{S_H}
        s_mul_i32 s{S_HFB}, {t0}, {2*NKS*1024}
        s_lshl_b32 {t0}, s{S_HEAD}, 11
        s_add_u32 s{S_HFB}, s{S_HFB}, {t0}
        s_add_u32 s{S_HFB}, s{S_HFB}, {112*1024}
        s_lshl_b32 s{S_G}, s{S_HEAD}, 16
        s_add_u32 s{S_G}, s{S_G}, {KVP_OFF}
        """)
        B1(); adma(0, 6)
        S.wait_vm("a1")
        S.e(f"v_mov_b32 v12, {CNT + 20}\nv_mov_b32 v13, 1\ns_mov_b64 exec, 1\nds_add_u32 v12, v13\ns_mov_b64 exec, -1")
        S.e("s_barrier")
        st(S, "B2")
        for wv in range(2):
            for k in range(4): S.e(f"ds_read_b128 {vr(PH + 16*wv + 4*k)}, v{U+2} offset:{wv*REG2 + PKO + k*1024}")
        S.wait_lgkm()
        S.e(f"v_mov_b32 v12, {CNT + 12}\nv_mov_b32 v13, 1\ns_mov_b64 exec, 1\nds_add_u32 v12, v13\ns_mov_b64 exec, -1\ns_setprio 3")
        S.e(f"v_mov_b32 v14, {CNT + 16}\ns_cmp_lg_u32 s3, 8\ns_cbranch_scc1 K_hq_spin")
        G = Stream()
        G.e(f"""
        v_and_b32 v16, 7, v{V_L}
        v_lshrrev_b32 v17, 2, v16
        s_lshr_b32 {t0}, s{S_HEAD}, 2
        s_lshl_b32 {t0}, {t0}, 3
        s_add_u32 {t0}, {t0}, {TOK}
        v_lshlrev_b32 v17, 2, v17
        v_add_u32 v17, {t0}, v17
        ds_read_b32 v17, v17
        v_lshlrev_b32 v16, 2, v16
        s_mul_i32 {t2}, s2, {MB_STRIDE}
        s_add_u32 {t2}, {t2}, {MB_OFF + 128}
        s_mov_b32 {t3}, 0
        K_hq_kp:
        buffer_load_dword v{V_TMP}, v16, {sq(S_WS)}, {t2} offen sc1
        s_waitcnt vmcnt(0) lgkmcnt(0)
        v_cmp_ne_u32_e64 {M1}, v17, v{V_TMP}
        s_add_u32 {t3}, {t3}, 1
        s_cmp_eq_u64 {M1}, 0
        s_cbranch_scc1 K_hq_kpok
        s_sleep 8
        s_cmp_lt_u32 {t3}, 0x8000
        s_cbranch_scc1 K_hq_kp
        K_hq_kpok:
        """)
        tagpoll(G, "K_hq_pkv", U + 3, V_TMP, f"s{S_G}", opt=True, sleep=int(OPT.get("sleepkv", 8)))
        for x in G: x.opt = True
        S.extend(G)
        S.e(f"ds_write_b32 v14, v13\ns_branch K_hq_go", opt=True)
        S.e(f"""
        K_hq_spin:
        s_sleep 2
        ds_read_b32 v13, v14
        s_waitcnt lgkmcnt(0)
        v_readfirstlane_b32 {t1}, v13
        s_cmp_eq_u32 {t1}, 0
        s_cbranch_scc1 K_hq_spin
        """, opt=True)
        S.e("K_hq_go:")
        st(S, "kvrdy")
        KL = 20
        S.e(f"s_mov_b32 {t4}, 0\nK_hq_gather:\ns_mov_b32 {t0}, s{S_G}")
        for i in range(8):
            for e in range(2):
                S.e(f"buffer_load_dwordx4 {vr(KL + 8*i + 4*e)}, v{KO}, {sq(S_WS)}, {t0} offen offset:{e*1024} sc1")
            if i < 7: S.e(f"s_add_u32 {t0}, {t0}, 8192")
        umax_tree(S, list(range(KL, KL + 64)), V_TMP)
        S.e(f"""
        v_cmp_eq_u32_e64 {M1}, -1, v{V_TMP}
        s_add_u32 {t4}, {t4}, 1
        s_cmp_eq_u64 {M1}, 0
        s_cbranch_scc1 K_hq_gok
        s_cmp_lt_u32 {t4}, 0x1000
        s_cbranch_scc1 K_hq_gather
        K_hq_gok:
        """)
        for step in (1, 2, 4):
            for i in range(0, 8, 2*step):
                for j in range(0, 8, 2): pk(S, "add", KL+8*i+j, [("p", KL+8*i+j), ("p", KL+8*(i+step)+j)])
        for j in range(4): S.e(f"v_cvt_pk_bf16_f32 v{KL+8+j}, v{KL+2*j}, v{KL+2*j+1}")
        S.e(f"ds_write_b128 v{U}, {vr(KL+8)}")
        hsync(S, "K_hq_sync", 0, 4, 12, 13)
        st(S, "kvf")
        KF = 20; OO = [36, 52]; G2 = 68; RR = [84, 92]
        for k in range(4): S.e(f"ds_read_b128 {vr(KF + 4*k)}, v{U+1} offset:{k*1024}")
        for wv in range(2):
            for k in range(4): S.e(f"{MF} {vr(OO[wv],16)}, {vr(KF + 4*k)}, {vr(PH + 16*wv + 4*k)}, {'0' if k == 0 else vr(OO[wv],16)}")
        for wv in range(2):
            O = OO[wv]; R = RR[wv]
            bf16r(S, G2, f"v{O+14}")
            S.e(f"v_add_f32 v{G2}, {f32(1e-6)}, v{G2}")
            bf16r(S, G2, f"v{G2}")
            S.e(f"v_rcp_f32 v{G2}, v{G2}")
            for i in range(7): S.e(f"v_cvt_pk_bf16_f32 v{G2+1+i}, v{O+2*i}, v{O+2*i+1}")
            for i in range(7): S.e(f"v_lshlrev_b32 v{O+2*i}, 16, v{G2+1+i}\nv_and_b32 v{O+2*i+1}, 0xffff0000, v{G2+1+i}")
            for i in range(0, 14, 2): pk(S, "mul", O + i, [("p", O + i), ("b", G2)])
            for i in range(7): S.e(f"v_cvt_pk_bf16_f32 v{R+i}, v{O+2*i}, v{O+2*i+1}")
            S.e(f"v_mov_b32 v{R+7}, 0\ns_add_u32 {t0}, s{S_HFB}, {wv*NKS*1024}")
            S.e(f"buffer_store_dwordx4 {vr(R)}, v{V_L16}, {sq(S_WS)}, {t0} offen sc1\nbuffer_store_dwordx4 {vr(R+4)}, v{V_L16}, {sq(S_WS)}, {t0} offen offset:1024 sc1", tag="ost")
    else:
        X = 20; KA = 4; KB = 10
        S.e(f"""
        v_lshrrev_b32 v{X}, 4, v{V_L}
        v_bfe_u32 v{X+1}, v{V_L}, 2, 2
        v_lshl_add_u32 v{X}, v{X}, 3, v{X+1}
        v_bfe_u32 v{X+2}, v{V_L}, 1, 1
        s_lshl_b32 {t0}, s{S_H}, 1
        v_add_u32 v{X+4}, {t0}, v{X+2}
        v_xor_b32 v{X+4}, v{X+4}, v{X+1}
        v_lshlrev_b32 v{X+3}, 7, v{X}
        v_lshl_add_u32 v{X+3}, v{X+4}, 4, v{X+3}
        v_and_b32 v{X+5}, 1, v{V_L}
        v_lshl_add_u32 v{KA}, v{X+5}, 3, v{X+3}
        v_add_u32 v{KA}, {PKO}, v{KA}
        v_xor_b32 v{KA+1}, 64, v{KA}
        v_lshrrev_b32 v{X+4}, 1, v{X+1}
        v_xor_b32 v{X+4}, v{X+4}, v{X+2}
        v_lshlrev_b32 v{X+3}, 6, v{X}
        v_lshl_add_u32 v{X+3}, v{X+4}, 4, v{X+3}
        v_lshl_add_u32 v{KB}, v{X+5}, 3, v{X+3}
        v_add_u32 v{KB}, {VVO}, v{KB}
        v_xor_b32 v{KB+1}, 32, v{KB}
        """)
        for rg in (1, 2):
            for k in range(2):
                S.e(f"v_add_u32 v{KA+2*rg+k}, {rg*3*REG2}, v{KA+k}\nv_add_u32 v{KB+2*rg+k}, {rg*3*REG2}, v{KB+k}")
        S.e(f"""
        s_lshl_b32 {t4}, s{S_HEAD}, 3
        s_add_u32 {t4}, {t4}, s{S_MT}
        s_lshl_b32 {t4}, {t4}, 13
        s_lshr_b32 {t0}, s{S_H}, 1
        s_lshl_b32 {t0}, {t0}, 12
        s_add_u32 {t4}, {t4}, {t0}
        s_and_b32 {t0}, s{S_H}, 1
        s_lshl_b32 {t0}, {t0}, 9
        s_add_u32 {t4}, {t4}, {t0}
        s_add_u32 {t4}, {t4}, {KVP_OFF}
        """)
        for dh in range(2):
            D = 130 + dh
            S.e(f"""
            v_bfe_u32 v{X}, v{V_L}, 2, 2
            v_and_b32 v{X+1}, 3, v{V_L}
            v_lshl_add_u32 v{X}, v{X}, 3, v{X+1}
            v_add_u32 v{X}, {4*dh}, v{X}
            v_cmp_lt_u32_e64 {M1}, 13, v{X}
            v_subrev_u32 v{X+1}, 14, v{X}
            v_cndmask_b32_e64 v{X+1}, v{X}, v{X+1}, {M1}
            v_cndmask_b32_e64 v{X+2}, 0, 4, {M1}
            v_cmp_lt_u32_e64 {M2}, 27, v{X}
            v_and_b32 v{X+3}, 1, v{X}
            v_lshlrev_b32 v{X+3}, 2, v{X+3}
            v_bfe_u32 v{X+4}, v{X}, 1, 1
            v_add_u32 v{X+4}, 14, v{X+4}
            v_cndmask_b32_e64 v{X+1}, v{X+1}, v{X+4}, {M2}
            v_cndmask_b32_e64 v{X+2}, v{X+2}, v{X+3}, {M2}
            v_lshrrev_b32 v{X+3}, 2, v{X+1}
            v_and_b32 v{X+1}, 3, v{X+1}
            v_lshl_add_u32 v{X+1}, v{X+3}, 3, v{X+1}
            v_add_u32 v{X+1}, v{X+1}, v{X+2}
            v_lshrrev_b32 v{X+2}, 4, v{V_L}
            v_lshlrev_b32 v{X+2}, 10, v{X+2}
            v_lshl_add_u32 v{D}, v{X+1}, 4, v{X+2}
            """)
        KA1 = 6 if OPT.get("kvffn", "last") == "first" else int(OPT.get("ka1", 6))
        B1(); adma(0, KA1)
        def a1flag():
            S.wait_vm("a1")
            S.e(f"v_mov_b32 v16, {CNT + 20}\nv_mov_b32 v17, 1\ns_mov_b64 exec, 1\nds_add_u32 v16, v17\ns_mov_b64 exec, -1")
        if OPT.get("kvffn", "last") == "first": a1flag()
        S.e(f"""
        s_barrier
        s_setprio 3
        """)
        st(S, "B2")
        FB = 32; KD = 24
        for kk in range(8):
            b = FB + 12 * kk; rg = kk // 3; ro = (kk % 3) * REG2
            for e in range(2):
                S.e(f"ds_read_b64_tr_b16 {vr(b + 2*e, 2)}, v{KA + 2*rg + e} offset:{ro + e*512}")
                for dh in range(2):
                    S.e(f"ds_read_b64_tr_b16 {vr(b + 4 + 4*dh + 2*e, 2)}, v{KB + 2*rg + (e ^ dh)} offset:{ro + e*256}")
        for kk in range(8):
            b = FB + 12 * kk
            for dh in range(2):
                S.e(f"{MF16} {vr(KD + 4*dh)}, {vr(b)}, {vr(b + 4 + 4*dh)}, {'0' if kk == 0 else vr(KD + 4*dh)}")
        for dh in range(2):
            S.e(f"buffer_store_dwordx4 {vr(KD + 4*dh)}, v{130+dh}, {sq(S_WS)}, {t4} offen sc1", tag="kvst")
        st(S, "kvst")
        S.e(f"v_mov_b32 v12, {CNT + 12}\nv_mov_b32 v13, 1\ns_mov_b64 exec, 1\nds_add_u32 v12, v13\ns_mov_b64 exec, -1\ns_setprio {OPT.get('hprio2', 0)}")
        adma(KA1, 6)
        if OPT.get("kvffn", "last") != "first": a1flag()
    st(S, "end")
    st.flush(S, sq(S_WS), ST_OFF, 24, 12)
    S.e("s_endpgm")
    return S
def compute_head():
    S = Stream(); T = PT
    S.e("K_comp:")
    S.e(f"""
    s_lshl_b32 {t0}, s{S_MT}, 3
    s_add_u32 {t0}, {t0}, s3
    s_mul_i32 s{S_HFB}, {t0}, {NKS*1024}
    s_mul_i32 s{S_AREA}, s3, {AREA}
    s_mul_i32 {t2}, s{S_SROW}, 896
    v_cmp_gt_u32_e64 {M2}, 56, v{V_L}
    v_mov_b32 v{T+2}, 0x7f000000
    v_cndmask_b32_e64 v{T+2}, v{T+2}, v{V_L16}, {M2}
    s_waitcnt lgkmcnt(0)
    """)
    srd(S, S_X, 4, 2048 * 896)
    S.e(f"buffer_load_dwordx4 {vr(STV)}, v{T+2}, {sq(S_X)}, {t2} offen", tag="strow")
    if OPT.get("touch2"):
        S.e(f"""
        s_mov_b32 s{S_D1}, s6
        s_mov_b32 s{S_D1+1}, s7
        s_mov_b32 s{S_D1+2}, {448*2688}
        s_mov_b32 s{S_D1+3}, 0x20000
        s_cmp_eq_u32 s3, 1
        s_cselect_b32 s{S_D1}, s14, s{S_D1}
        s_cselect_b32 s{S_D1+1}, s15, s{S_D1+1}
        s_cmp_eq_u32 s3, 2
        s_cselect_b32 s{S_D1}, s16, s{S_D1}
        s_cselect_b32 s{S_D1+1}, s17, s{S_D1+1}
        s_cmp_eq_u32 s3, 3
        s_cselect_b32 s{S_D1}, s18, s{S_D1}
        s_cselect_b32 s{S_D1+1}, s19, s{S_D1+1}
        s_cmp_lg_u32 s3, 0
        s_cselect_b32 s{S_D1+2}, {448*3584}, s{S_D1+2}
        s_cmp_eq_u32 s3, 4
        s_cselect_b32 s{S_D1}, s10, s{S_D1}
        s_cselect_b32 s{S_D1+1}, s11, s{S_D1+1}
        s_cselect_b32 s{S_D1+2}, {448*896}, s{S_D1+2}
        s_mul_i32 {t1}, s2, {49*128}
        s_cmp_ge_u32 s3, {OPT['touch2']}
        s_cselect_b32 {t1}, 0x40000000, {t1}
        v_lshlrev_b32 v{T+5}, 7, v{V_L}
        v_cmp_gt_u32_e64 {M1}, 49, v{V_L}
        v_mov_b32 v{T+6}, 0x7f000000
        v_cndmask_b32_e64 v{T+5}, v{T+6}, v{T+5}, {M1}
        buffer_load_dword v23, v{T+5}, {sq(S_D1)}, {t1} offen
        """)
    srd(S, S_WS, 22, WS_SIZE); srd(S, S_DBG, 20, 256); srd(S, S_WD, 18, 1792 * 896); srd(S, S_WO, 10, 448 * 896)
    S.e(f"s_mov_b32 s{S_OUT+2}, {2048*896}\ns_mov_b32 s{S_OUT+3}, 0x20000")
    S.e(f"s_lshl_b32 {t0}, s3, 3\ns_add_u32 {t0}, {t0}, s2\ns_cmp_ge_u32 {t0}, 8\ns_cbranch_scc1 K_notok")
    S.e(f"""
    s_memrealtime s[{S_TOK}:{S_TOK+1}]
    s_waitcnt lgkmcnt(0)
    s_or_b32 s{S_TOK}, s{S_TOK}, 1
    v_mov_b32 v26, s{S_TOK}
    s_lshl_b32 {t0}, s2, 5
    s_mov_b64 exec, 1
    buffer_store_dword v26, v{V_Z}, {sq(S_DBG)}, {t0} offen sc1
    s_mov_b64 exec, -1
    """, opt=True)
    S.e("K_notok:")
    S.e(f"""
    s_lshl_b32 s{S_U0}, s{S_U0}, 5
    s_add_u32 s{S_U0}, s{S_U0}, s{S_HFB}
    s_lshl_b32 s{S_U12}, s{S_U12}, 5
    s_add_u32 s{S_U12}, s{S_U12}, s{S_HFB}
    v_lshrrev_b32 v{T+3}, 5, v{V_L}
    v_and_b32 v{T+5}, 31, v{V_L}
    v_bfe_u32 v{T+6}, v{V_L}, 1, 3
    v_xor_b32 v{T+6}, v{T+6}, v{T+3}
    v_lshlrev_b32 v{T+5}, 7, v{T+5}
    v_lshl_add_u32 v{T+5}, v{T+6}, 4, v{T+5}
    v_add_u32 v{V_AX}, s{S_AREA}, v{T+5}
    v_xor_b32 v{V_AX+1}, 32, v{V_AX}
    v_xor_b32 v{V_AX+2}, 64, v{V_AX}
    v_xor_b32 v{V_AX+3}, 0x60, v{V_AX}
    v_add_u32 v{V_CSA}, {CSP}, v{V_L16}
    v_bfe_u32 v{T+1}, v{V_L}, 2, 2
    v_lshl_add_u32 v{T+9}, v{T+3}, 2, v{T+1}
    v_lshlrev_b32 v{T+9}, 6, v{T+9}
    v_and_b32 v{T+10}, 1, v{V_L}
    v_lshl_add_u32 v{T+9}, v{T+10}, 5, v{T+9}
    v_bfe_u32 v{T+10}, v{V_L}, 1, 1
    v_bfe_u32 v{T+4}, v{V_L}, 4, 1
    v_lshl_add_u32 v{T+10}, v{T+4}, 1, v{T+10}
    v_lshl_add_u32 v{T+9}, v{T+10}, 3, v{T+9}
    v_add_u32 v{V_PHA}, {WPHI}, v{T+9}
    v_mov_b32 v{T+9}, {CNT}
    ds_write_b32 v{T+9}, v{V_Z}
    ds_write_b32 v{T+9}, v{V_Z} offset:4
    ds_write_b32 v{T+9}, v{V_Z} offset:8
    ds_write_b32 v{T+9}, v{V_Z} offset:12
    ds_write_b32 v{T+9}, v{V_Z} offset:16
    ds_write_b32 v{T+9}, v{V_Z} offset:20
    v_lshlrev_b32 v{T+10}, 2, v{V_L}
    v_add_u32 v{T+10}, {CNT + 64}, v{T+10}
    ds_write_b32 v{T+10}, v{V_Z}
    """)
    U = PT
    for j in range(4): S.e(f"v_lshlrev_b32 v{U+2*j}, 16, v{STV+j}\nv_and_b32 v{U+2*j+1}, 0xffff0000, v{STV+j}")
    S.e(f"""
    v_add_f32 v{U+8}, v{U}, v{U+1}
    v_add_f32 v{U+9}, v{U+2}, v{U+3}
    v_add_f32 v{U+10}, v{U+4}, v{U+5}
    v_add_f32 v{U+11}, v{U+6}, v{U+7}
    v_add_f32 v{U+8}, v{U+8}, v{U+9}
    v_add_f32 v{U+10}, v{U+10}, v{U+11}
    v_add_f32 v{U+8}, v{U+8}, v{U+10}
    """)
    wave_sum(S, U + 8, U + 9)
    S.e(f"v_mul_f32 v{U+8}, {f32(1/448)}, v{U+8}")
    for j in range(8): S.e(f"v_sub_f32 v{U+j}, v{U+j}, v{U+8}")
    S.e(f"v_mul_f32 v{U+9}, v{U}, v{U}\nv_mul_f32 v{U+10}, v{U+1}, v{U+1}")
    for j in range(2, 8): S.e(f"v_fmac_f32 v{U+9+(j&1)}, v{U+j}, v{U+j}")
    S.e(f"v_add_f32 v{U+9}, v{U+9}, v{U+10}\nv_cndmask_b32_e64 v{U+9}, 0, v{U+9}, {M2}")
    wave_sum(S, U + 9, U + 10)
    S.e(f"v_mul_f32 v{U+9}, {f32(1/448)}, v{U+9}")
    bf16r(S, U + 9, f"v{U+9}")
    S.e(f"v_add_f32 v{U+9}, {f32(1e-5)}, v{U+9}")
    bf16r(S, U + 9, f"v{U+9}")
    S.e(f"v_sqrt_f32 v{U+9}, v{U+9}")
    bf16r(S, 25, f"v{U+9}")
    S.e(f"v_cvt_pk_bf16_f32 v24, -v{U+8}, -v{U+8}\ns_lshl_b32 {t0}, s3, 3\ns_add_u32 {t0}, {t0}, {OST}\nv_mov_b32 v26, {t0}\nds_write_b64 v26, v[24:25]")
    S.e(f"s_cmp_eq_u32 s{S_TYPE}, 1\ns_cbranch_scc1 K_kv")
    return S


def compute(typ):
    q = typ == "q"
    S = Stream(); T = PT
    S.e(f"K_{typ}:")
    st = Stamper(STAMPR); st.n = 1; st.names = ["start"]
    tile_addrs(S, typ, V_AT, T)
    p2_ids(S)
    EARLY = Stream()
    T = SC; p2_a_voffsets(EARLY, 21, None, None, T)
    EARLY.e(f"""
    v_and_b32 v{V_TMP}, 31, v{V_L}
    v_lshlrev_b32 v{V_TMP}, 3, v{V_TMP}
    s_lshl_b32 {t0}, s3, 8
    s_add_u32 {t0}, {t0}, {STL}
    v_add_u32 v{V_TMP}, {t0}, v{V_TMP}
    s_bfe_u32 {t4}, s3, 0x10001
    s_lshr_b32 {t5}, s3, 2
    v_bfe_u32 v{T}, v{V_L}, 2, 2
    v_lshrrev_b32 v{T+1}, 5, v{V_L}
    v_lshl_add_u32 v{T+2}, v{T+1}, 2, v{T}
    v_lshlrev_b32 v{T+2}, 7, v{T+2}
    v_lshrrev_b32 v{T}, 1, v{T}
    v_xor_b32 v{T}, {t4}, v{T}
    v_lshl_add_u32 v{T+2}, v{T}, 6, v{T+2}
    v_and_b32 v{T}, 1, v{V_L}
    v_lshl_add_u32 v{T+2}, v{T}, 5, v{T+2}
    v_bfe_u32 v{T}, v{V_L}, 1, 1
    v_bfe_u32 v{T+3}, v{V_L}, 4, 1
    v_xor_b32 v{T+3}, {t5}, v{T+3}
    v_lshl_add_u32 v{T}, v{T+3}, 1, v{T}
    v_lshl_add_u32 v{T+2}, v{T}, 3, v{T+2}
    s_mul_i32 {t0}, s3, {REG2}
    v_add_u32 v22, {t0}, v{T+2}
    s_and_b32 {t0}, s3, 3
    s_lshl_b32 {t0}, {t0}, 1
    s_add_u32 s{S_H}, {t0}, {t5}
    s_mul_i32 s{S_XROW}, s{S_H}, {14*16*896}
    s_cmp_ge_u32 s2, 224
    s_cselect_b32 {t0}, 0x40000000, 0
    s_add_u32 s{S_XROW}, s{S_XROW}, {t0}
    """)
    T = PT
    pend = []
    def ABn(n): return AB if n % 2 == 1 else SC + 8
    def a_read(n, t):
        c, s = n >> 2, n & 3
        for e in range(2):
            a, imm = tile_read_args(typ, t, s, e)
            S.e(f"ds_read_b64_tr_b16 {vr(ABn(n) + 4*t + 2*e, 2)}, v{V_AT+a} offset:{(c % 3)*WS_ + imm}")
    def x_read(n):
        c, s = n >> 2, n & 3
        S.e(f"ds_read_b128 {vr(XB + 4*(n & 1))}, v{V_AX+s} offset:{(c % 3) * 4096}")
    RD = OPT.get("rdist", "1")
    def kstep(n):
        nx = n + 1 < 28
        sched = {"0": [["x", 0, 1], [2], [3], [4], [], []], "1": [[], ["x", 0], [1], [2], [3], [4]], "2": [["x"], [0], [1], [2, 3], [4], []], "3": [["x", 0], [1], [2], [3], [4], []]}[RD]
        def do(lst):
            if nx:
                for r in lst:
                    if r == "x": x_read(n + 1)
                    else: a_read(n + 1, r)
        do(sched[0])
        for t in range(5):
            S.e(f"{MF} {vr(ACC + 16*t, 16)}, {vr(ABn(n) + 4*t)}, {vr(XB + 4*(n & 1))}, {'0' if n == 0 else vr(ACC + 16*t, 16)}")
            do(sched[t + 1])
            if pend: S.extend(pend.pop(0))
    if OPT.get("yprio"):
        S.e(f"s_cmp_lt_u32 s3, 4\ns_cbranch_scc1 K_{typ}_yp")
        S.e(f"s_setprio {OPT['yprio']}", opt=True)
        S.e(f"K_{typ}_yp:")
    S.wait_lgkm(); S.e("s_barrier")
    st(S, "bar0")
    x_read(0)
    for t in range(5): a_read(0, t)
    for c in range(7):
        S.comment(f"chunk {c}")
        if c in (4,): st(S, f"chunk{c}")
        n = 4 * c
        if OPT.get("tlb") and c == int(OPT["tlb"]):
            G = Stream()
            G.e(f"""
            v_lshlrev_b32 v23, 18, v{V_L}
            s_lshl_b32 {t0}, s3, 15
            buffer_load_dword v23, v23, {sq(S_WS)}, {t0} offen
            """); pend.append(G)
            G = Stream()
            G.e(f"""
            v_lshlrev_b32 v26, 15, v{V_L}
            s_lshl_b32 {t0}, s3, 12
            buffer_load_dword v27, v26, {sq(S_OUT)}, {t0} offen
            """); pend.append(G)
        if c == 3:
            for ii in range(0, len(EARLY), 5):
                G = Stream(); G.extend(EARLY[ii:ii+5]); pend.append(G)
        kstep(n); kstep(n + 1); kstep(n + 2)
        S.wait_lgkm(); S.e("s_barrier")
        if c == 6:
            CR = SC + 8
            S.e(f"ds_read_b64 {vr(V_RINV, 2)}, v{V_TMP}")
            for t in range(5): S.e(f"ds_read_b128 {vr(CR + 4*t)}, v{V_CSA} offset:{t*1024}")
            stats_consts(S)
        kstep(n + 3)
    st(S, "S1")
    FT = (lambda n: st(S, n, fine=True)) if OPT.get('fw') == 'tail' else (lambda n: None)
    FT("s1")
    WPF = XB; E = AB; QB = E + 8; TT = 4; GT = SC; GT2 = SC + 12
    A0 = ACC
    V_WD, V_A0, V_A1 = 11, 12, 13
    V_WOo, V_WOM, V_B0, V_B1, V_O = 4, 5, 6, 7, 8
    S.e(f"{MF} {vr(ACC,16)}, {vr(CR)}, {vr(BP)}, {vr(ACC,16)}")
    for te in range(4): S.e(f"ds_read_b64_tr_b16 {vr(WPF + 2*te, 2)}, v{V_PHA} offset:{te * 512}")
    NC1 = 5 if (q or not OPT.get("corr2", True)) else 2
    for t in range(1, NC1): S.e(f"{MF} {vr(ACC + 16*t,16)}, {vr(CR + 4*t)}, {vr(BP)}, {vr(ACC + 16*t,16)}")
    S.e(f"s_mul_i32 s{S_AREA}, s3, {REG2}\nv_mov_b32 v{V_WD}, v21\nv_mov_b32 v{V_A0}, v22\nv_xor_b32 v{V_A1}, 64, v22")
    W = SC + 28; X = 4
    if not q:
        S.e(f"""
        v_and_b32 v{X}, 31, v{V_L}
        v_lshrrev_b32 v{X+1}, 5, v{V_L}
        v_lshlrev_b32 v{X+1}, 1, v{X+1}
        v_bfe_u32 v{X+2}, v{V_L}, 1, 2
        v_xor_b32 v{X+2}, v{X+2}, v{X+1}
        v_lshlrev_b32 v{X+3}, 6, v{X}
        v_lshl_add_u32 v{X+3}, v{X+2}, 4, v{X+3}
        s_add_u32 {t0}, s{S_AREA}, {VVO}
        v_add_u32 v9, {t0}, v{X+3}
        v_xor_b32 v10, 16, v9
        v_and_b32 v{X+3}, 7, v{V_L}
        v_xor_b32 v{X+1}, v{X+1}, v{X+3}
        v_lshlrev_b32 v{X}, 7, v{X}
        v_lshl_add_u32 v{X}, v{X+1}, 4, v{X}
        s_add_u32 {t0}, s{S_AREA}, {PKO}
        v_add_u32 v{W}, {t0}, v{X}
        v_xor_b32 v{W+1}, 16, v{W}
        v_xor_b32 v{W+2}, 64, v{W}
        v_xor_b32 v{W+3}, 0x50, v{W}
        """)
    tok_read(S, f"s{S_TOK}", f"s_and_b32 {t0}, s2, 7", V_TMP)
    FT("addr")
    scale16(S, A0)
    for i in range(8): S.e(f"v_cvt_pk_bf16_f32 v{QB+i}, v{A0+2*i}, v{A0+2*i+1}")
    S.e(f"{MF} {vr(A0,16)}, {vr(WPF)}, {vr(QB)}, 0\n{MF} {vr(A0,16)}, {vr(WPF+4)}, {vr(QB+4)}, {vr(A0,16)}")
    FT("pq")
    A1 = ACC + 16
    AC2 = 104
    bfree = [16, 24, 32, 40, 48]
    ablk = {i: b for i, b in enumerate([72, 80, 88, 96, 56, 64] if (q or OPT.get('kvffn', 'last') == 'first') else [56, 64, 72, 80, 88, 96])}
    slot_of = {i: i for i in range(6)}
    def a_tr(i, blk):
        nonlocal S
        for ni in range(2):
            for e in range(2):
                S.e(f"ds_read_b64_tr_b16 {vr(blk + 4*ni + 2*e, 2)}, v{V_A0+ni} offset:{slot_of[i]*2048 + e*1024}", tag=f"ar{i}")
    def a_dma(i, sl):
        slot_of[i] = sl; out = []
        for u in range(2):
            G = Stream()
            G.e(f"s_add_u32 m0, s{S_AREA}, {sl*2048 + u*1024}")
            if i < 14:
                G.e(f"s_add_u32 {tm}, s{S_XROW}, {(16*i + 8*u)*896}")
                G.e(f"buffer_load_dwordx4 v{V_WD}, {sq(S_WD)}, {tm} offen lds", tag=f"a{i}")
            else:
                hd, t = (i - 14) >> 1, (i - 14) & 1
                G.e(f"s_add_u32 {tm}, s{S_D0L}, {(28*hd + 8*t + 4*u)*896}")
                G.e(f"buffer_load_dwordx4 v{V_WOM if (t and u) else V_WOo}, {sq(S_WO)}, {tm} offen lds", tag=f"a{i}")
            out.append(G)
        return out
    def sprinkle(V, parts, start, every):
        n = 0
        for ins in V:
            S.append(ins); n += 1
            if n >= start and (n - start) % every == 0 and parts: S.extend(parts.pop(0))
        for p in parts: S.extend(p)
    late = []
    KF1 = q or OPT.get("kvffn", "last") == "first"
    def vwr(): S.e(f"ds_write_b128 v9, {vr(A1)}\nds_write_b128 v10, {vr(A1+4)}")
    def vpart():
        scale16(S, A1)
        for i in range(8): S.e(f"v_cvt_pk_bf16_f32 v{A1+i}, v{A1+2*i}, v{A1+2*i+1}")
        S.e(f"""
        v_mov_b32 v{A1+8}, 0x3f803f80
        v_cndmask_b32_e64 v{A1+6}, v{A1+6}, v{A1+8}, {HHM}
        """)
        if KF1: vwr()
    if KF1:
        if q:
            geglu(S, A1, GT, S_U0, 0); geglu(S, ACC + 32, GT2, S_U0, 1); geglu(S, ACC + 48, GT, S_U0, 2); geglu(S, ACC + 64, GT2, S_U0, 3)
        else:
            geglu(S, ACC + 32, GT2, S_U0, 0); geglu(S, ACC + 48, GT, S_U12, 0); geglu(S, ACC + 64, GT2, S_U12, 1)
            vpart()
        st(S, "ffn")
        S.e(f"""
        v_mov_b32 v14, {CNT + 20}
        K_{typ}_a1:
        ds_read_b32 v15, v14
        s_waitcnt lgkmcnt(0)
        v_readfirstlane_b32 {t1}, v15
        s_cmp_lt_u32 {t1}, 4
        s_cbranch_scc1 K_{typ}_a1
        """)
        for i in range(4): a_tr(i, ablk[i])
        V = Stream(); softmax14(V, A0, E, TT)
        w = Stream(); w.wait_lgkm()
        sg = signal("hst", 8, "h", f"K_{typ}_nosigh", 104, 105, 106, 7)
        pos = int(OPT.get("sgpos", 4))
        parts = [w] + a_dma(6, 0) + a_dma(7, 1) + a_dma(8, 2) + a_dma(9, 3)
        parts.insert(pos + 1, sg)
        if q or OPT.get('kvspr', False): sprinkle(V, parts, 12, 14)
        else:
            sprinkle(V, [sg], 60, 14); parts.remove(sg); pre_late = parts
        if q:
            S.e(f"s_add_u32 {t0}, s{S_AREA}, {PKO}\nv_add_u32 v9, {t0}, v{V_L16}")
            for kk in range(4): S.e(f"ds_write_b128 v9, {vr(E + 4*kk)} offset:{kk*1024}")
        else:
            for k in range(4): S.e(f"ds_write_b128 v{W+k}, {vr(E+4*k)}")
        a_tr(4, ablk[4]); a_tr(5, ablk[5])
        S.wait_lgkm(); S.e("s_barrier")
        st(S, "B2")
        late = ([] if (q or OPT.get('kvspr', False)) else pre_late) + a_dma(10, 4) + a_dma(11, 5)
    else:
        vpart()
        FT("v")
        softmax14(S, A0, E, TT)
        FT("sm")
        vwr()
        for k in range(4): S.e(f"ds_write_b128 v{W+k}, {vr(E+4*k)}")
        S.wait_lgkm()
        FT("wr")
        for t in range(NC1, 5): S.e(f"{MF} {vr(ACC + 16*t,16)}, {vr(CR + 4*t)}, {vr(BP)}, {vr(ACC + 16*t,16)}")
        S.e("s_barrier")
        st(S, "B2")
        FT("b2")
        geglu(S, ACC + 32, GT2, S_U0, 0); FT("g1"); geglu(S, ACC + 48, GT, S_U12, 0); FT("g2"); geglu(S, ACC + 64, GT2, S_U12, 1); FT("g3")
        st(S, "ffn")
        G = Stream()
        G.e(f"""
        v_mov_b32 v14, {CNT + 20}
        K_{typ}_a1:
        ds_read_b32 v15, v14
        s_waitcnt lgkmcnt(0)
        v_readfirstlane_b32 {t1}, v15
        s_cmp_lt_u32 {t1}, 4
        s_cbranch_scc1 K_{typ}_a1
        """)
        S0 = S; S = G
        for i in range(6): a_tr(i, ablk[i])
        S = S0
        G.wait_lgkm()
        late = [G]
        for i in range(6, 12): late += a_dma(i, i - 6)
    TP = 16
    S.e(f"""
    v_lshrrev_b32 v{TP}, 3, v{V_L}
    v_mul_u32_u24 v{TP+1}, 896, v{TP}
    v_sub_u32 v{TP+1}, v{V_WD}, v{TP+1}
    v_lshrrev_b32 v{TP+2}, 2, v{TP}
    v_and_b32 v{TP+3}, 3, v{TP}
    v_mad_u32_u24 v{TP+2}, v{TP+2}, 14, v{TP+3}
    v_mul_u32_u24 v{V_WOo}, 896, v{TP+2}
    v_add_u32 v{V_WOo}, v{V_WOo}, v{TP+1}
    v_cmp_lt_u32_e64 {M1}, 1, v{TP+3}
    v_mov_b32 v{TP+2}, 0x7f000000
    v_cndmask_b32_e64 v{V_WOM}, v{V_WOo}, v{TP+2}, {M1}
    s_and_b32 {t3}, s3, 1
    s_bfe_u32 {t4}, s3, 0x10001
    s_lshr_b32 {t5}, s3, 2
    s_lshl_b32 {t0}, s{S_M64}, 1
    s_add_u32 {t0}, {t0}, {t3}
    s_mul_i32 {t1}, {t0}, {NKS*1024}
    v_add_u32 v{V_B0}, {t1}, v{V_L16}
    s_xor_b32 {t2}, {t0}, 1
    s_mul_i32 {t2}, {t2}, {NKS*1024}
    v_add_u32 v{V_B1}, {t2}, v{V_L16}
    v_mov_b32 v9, {t1}
    v_mov_b32 v10, {t2}
    v_cmp_lt_u32_e64 {M1}, 15, v{V_L}
    v_cndmask_b32_e64 v9, v9, v10, {M1}
    v_and_b32 v10, 3, v{V_L}
    v_lshl_add_u32 v9, v10, 10, v9
    v_lshrrev_b32 v{TP+1}, 5, v{V_L}
    v_and_b32 v{TP}, 31, v{V_L}
    s_lshl_b32 {t0}, {t0}, 5
    v_add_u32 v{TP}, {t0}, v{TP}
    v_mul_u32_u24 v{TP}, 896, v{TP}
    v_lshlrev_b32 v{TP+1}, 5, v{TP+1}
    s_lshl_b32 {t0}, s{S_N64}, 7
    s_lshl_b32 {t1}, {t4}, 6
    s_add_u32 {t0}, {t0}, {t1}
    s_lshl_b32 {t1}, {t5}, 4
    s_add_u32 {t0}, {t0}, {t1}
    v_add3_u32 v{V_O}, v{TP}, v{TP+1}, {t0}
    s_mul_i32 s{S_D0L}, s{S_H}, {2*28*896}
    s_mul_i32 s{S_U0}, s{S_H}, {14*1024}
    s_lshl_b32 s{S_U12}, s{S_H}, 12
    s_add_u32 s{S_U12}, s{S_U12}, {112*1024 - 14*1024}
    s_add_u32 s{S_G}, s{S_U12}, {14*1024 + 1008}
    v_mov_b32 v{TP}, {CNT + 12}
    K_{typ}_zone:
    ds_read_b32 v{TP+1}, v{TP}
    s_waitcnt lgkmcnt(0)
    v_readfirstlane_b32 {t1}, v{TP+1}
    s_cmp_lt_u32 {t1}, 4
    s_cbranch_scc1 K_{typ}_zone
    """)
    for g in late[:int((OPT.get("latepre", 4) if KF1 else OPT.get("latekv", 0)))]: S.extend(g)
    st(S, "p1end")
    if OPT.get("lprio"):
        S.e(f"s_cmp_lt_u32 s3, 4\ns_cbranch_scc1 K_{typ}_lp")
        S.e(f"s_setprio {OPT['lprio']}", opt=True)
        S.e(f"K_{typ}_lp:")
    if not KF1: S.extend(signal("hst", 8, "h", f"K_{typ}_nosigh", TP, TP + 1, TP + 2, 7))
    if not q: S.e(f"s_cmp_ge_u32 s2, 224\ns_cbranch_scc1 K_{typ}_fin")
    TQ = 24
    MIR = CNT + 64
    tok_read(S, f"s{S_D1+2}", f"s_and_b32 {t0}, s{S_H}, 6\ns_lshr_b32 {t1}, s{S_MT2}, 2\ns_add_u32 {t0}, {t0}, {t1}", TQ)
    S.e(f"""
    s_mul_i32 s{S_D1}, s2, {MB_STRIDE}
    s_add_u32 s{S_D1}, s{S_D1}, {MB_OFF}
    s_lshr_b32 {t0}, s{S_H}, 1
    s_lshl_b32 {t0}, {t0}, 3
    s_cmp_lt_u32 s3, 4
    s_movk_i32 s{S_D1+1}, 0xff
    s_cselect_b32 s{S_D1+1}, 0x55, s{S_D1+1}
    s_lshl_b32 s{S_D1+1}, s{S_D1+1}, {t0}
    s_mov_b32 {t3}, 0
    v_min_u32 v{TQ}, 32, v{V_L}
    v_lshlrev_b32 v{TQ}, 2, v{TQ}
    v_add_u32 v{TQ+1}, {MIR}, v{TQ}
    v_and_b32 v{TQ}, 0x7c, v{TQ}
    """)
    if OPT.get("dpoll", False): S.e(f"buffer_load_dword v26, v{TQ}, {sq(S_WS)}, s{S_D1} offen sc1")
    for g in late[int((OPT.get("latepre", 4) if KF1 else OPT.get("latekv", 0))):]: S.extend(g)
    for i in range(12, 15):
        for g in a_dma(i, i - 6): S.extend(g)
    st(S, "w5")
    S.e(f"s_mov_b32 {t3}, 0")
    if OPT.get("dpoll", False):
        S.e(f"""
        v_cmp_ne_u32_e64 {M1}, s{S_D1+2}, v26
        s_and_b32 {tm}, s88, s{S_D1+1}
        s_cselect_b32 {tm}, 1, 0
        s_cmp_eq_u32 s3, 7
        s_cselect_b32 {tm}, 1, {tm}
        s_cmp_eq_u32 {tm}, 0
        s_cbranch_scc1 K_{typ}_phok
        """)
    S.e(f"""
    s_cmp_eq_u32 s3, 7
    s_cbranch_scc1 K_{typ}_phg
    K_{typ}_phl:
    ds_read_b32 v14, v{TQ+1}
    s_waitcnt lgkmcnt(0)
    v_cmp_ne_u32_e64 {M1}, s{S_D1+2}, v14
    v_readlane_b32 {t1}, v14, 32
    s_and_b32 {tm}, s88, s{S_D1+1}
    s_cbranch_scc0 K_{typ}_phok
    s_sleep 2
    s_cmp_eq_u32 {t1}, 0
    s_cbranch_scc1 K_{typ}_phl
    K_{typ}_phg:
    buffer_load_dword v14, v{TQ}, {sq(S_WS)}, s{S_D1} offen sc1
    s_waitcnt vmcnt(0)
    s_mov_b32 exec_hi, 0
    ds_write_b32 v{TQ+1}, v14
    s_mov_b32 exec_hi, -1
    v_cmp_ne_u32_e64 {M1}, s{S_D1+2}, v14
    s_add_u32 {t3}, {t3}, 1
    s_and_b32 {tm}, s88, s{S_D1+1}
    s_cbranch_scc0 K_{typ}_phd
    s_sleep {OPT.get('sleep', 4)}
    s_cmp_lt_u32 {t3}, 0x8000
    s_cbranch_scc1 K_{typ}_phg
    K_{typ}_phd:
    v_mov_b32 v14, {MIR + 128}
    v_mov_b32 v15, 1
    ds_write_b32 v14, v15
    K_{typ}_phok:
    """, opt=True)
    S.append(pseudo("forget_opt"))
    st(S, "B5")
    if OPT.get('fw') == 'p2': st(S, "B5f", fine=True)
    bblk = {}
    nextb = [0]
    def b_issue(i, opt=False):
        S.e(f"s_add_u32 {tm}, s{S_U0 if i < 14 else S_U12}, {i*1024}", opt=opt)
        for mi in range(2):
            S.e(f"buffer_load_dwordx4 {vr(bblk[i] + 4*mi)}, v{V_B0+mi}, {sq(S_WS)}, {tm} offen sc1", opt=opt)
    def b_load():
        i = nextb[0]
        if i >= 18 or not bfree: return False
        if i == 14:
            tagpoll(S, f"K_{typ}_po", 9, 14, f"s{S_G}", first_issued=True)
            S.append(pseudo("forget_opt"))
            st(S, "B6")
        bblk[i] = bfree.pop(0)
        b_issue(i)
        nextb[0] += 1
        return True
    OLAG = int(OPT.get("olag", 2))
    while b_load(): pass
    afree = []
    for i in range(18):
        if i + 1 < 18 and (i + 1) not in ablk:
            ablk[i + 1] = afree.pop(0)
            S.wait_vm(f"a{i+1}")
            a_tr(i + 1, ablk[i + 1])
        if i >= 14:
            regs = list(range(bblk[i], bblk[i] + 8))
            umax_tree(S, regs, 15)
            S.e(f"v_cmp_eq_u32_e64 {M1}, -1, v15\ns_cmp_eq_u64 {M1}, 0\ns_cbranch_scc1 K_{typ}_bok{i}")
            S.e(f"s_mov_b32 {t3}, 0\nK_{typ}_bre{i}:", opt=True)
            b_issue(i, opt=True)
            S.e("s_waitcnt vmcnt(0)", opt=True)
            umax_tree(S, regs, 15, opt=True)
            S.e(f"v_cmp_eq_u32_e64 {M1}, -1, v15\ns_add_u32 {t3}, {t3}, 1\ns_cmp_eq_u64 {M1}, 0\ns_cbranch_scc1 K_{typ}_bok{i}\ns_cmp_lt_u32 {t3}, 0x4000\ns_cbranch_scc1 K_{typ}_bre{i}", opt=True)
            S.e(f"K_{typ}_bok{i}:")
            S.append(pseudo("forget_opt"))
        for lq in range(4):
            ni, mi = lq >> 1, lq & 1
            S.e(f"{MF} {vr(AC2 + 16*lq, 16)}, {vr(ablk[i] + 4*ni)}, {vr(bblk[i] + 4*mi)}, {'0' if i == 0 else vr(AC2 + 16*lq, 16)}")
        if OPT.get('fw') == 'p2' and i in (0, 1, 2, 4, 6, 8, 10, 12, 14, 17): st(S, f"k{i}", fine=True)
        bfree.append(bblk[i])
        if i in (3, 4) or i >= 6: afree.append(ablk[i])
        else: bfree.append(ablk[i])
        if i in (7, 8, 9):
            for g in a_dma(i + 8, i - 7): S.extend(g)
        if i == 14 - OLAG - 2: S.e(f"buffer_load_dword v14, v9, {sq(S_WS)}, s{S_G} offen sc1")
        while nextb[0] < 18 and (nextb[0] != 14 or i >= 14 - OLAG) and b_load(): pass
        if i == 15:
            XRG = [b for b in bfree if b >= 88][0]; bfree.remove(XRG)
            S.e(f"buffer_load_dwordx4 {vr(XRG)}, v{V_O}, {sq(S_X)}, 0 offen")
    st(S, "mm")
    S.e(f"v_add_u32 v4, s{S_AREA}, v{V_L16}")
    def piece(pp): lq = (pp & 1) | (((pp >> 1) & 1) << 1); return AC2 + 16*lq + 8*(pp >> 2)
    for pp in range(1, 8):
        for j in range(2): S.e(f"ds_write_b128 v4, {vr(piece(pp) + 4*j)} offset:{(pp-1)*2048 + j*1024}")
    for pp in range(1, 8):
        S.e(f"s_xor_b32 {t0}, s3, {pp}\ns_mul_i32 {t0}, {t0}, {REG2}\nv_add_u32 v{16+pp}, {t0}, v{V_L16}")
    for j in range(4): S.e(f"v_lshlrev_b32 v{24+2*j}, 16, v{XRG+j}\nv_and_b32 v{25+2*j}, 0xffff0000, v{XRG+j}")
    for j in range(8): S.e(f"v_add_f32 v{AC2+j}, v{AC2+j}, v{24+j}")
    S.wait_lgkm(); S.e("s_barrier")
    R = 32
    for pp in range(1, 8):
        for j in range(2): S.e(f"ds_read_b128 {vr(R + 8*(pp-1) + 4*j)}, v{16+pp} offset:{(pp-1)*2048 + j*1024}")
    def padd(d, a, b):
        for j in range(0, 8, 2): pk(S, "add", d + j, [("p", a + j), ("p", b + j)])
    padd(AC2, AC2, R); padd(R + 8, R + 8, R + 16); padd(R + 24, R + 24, R + 32); padd(R + 40, R + 40, R + 48)
    padd(AC2, AC2, R + 8); padd(R + 24, R + 24, R + 40); padd(AC2, AC2, R + 24)
    if OPT.get("eps"):
        for j in range(8): S.e(f"v_mul_f32 v{AC2+j}, {f32(1.0 + float(OPT['eps']))}, v{AC2+j}")
    for j in range(4): S.e(f"v_cvt_pk_bf16_f32 v{24+j}, v{AC2+2*j}, v{AC2+2*j+1}")
    S.e(f"buffer_store_dwordx4 {vr(24)}, v{V_O}, {sq(S_OUT)}, 0 offen")
    if OPT.get("echo"):
        r = STAMPR[int(OPT["echo"])]
        S.e(f"""
        s_memrealtime s[88:89]
        s_waitcnt lgkmcnt(0)
        {f's_sub_u32 s90, s{r}, s92' if int(OPT["echo"]) < 11 else 's_sub_u32 s90, s88, s92'}
        s_add_u32 s90, s90, s88
        K_{typ}_echo:
        s_memrealtime s[88:89]
        s_waitcnt lgkmcnt(0)
        s_sub_u32 s91, s88, s90
        s_cmp_lt_i32 s91, 0
        s_cbranch_scc1 K_{typ}_echo
        """)
    S.e(f"K_{typ}_fin:")
    st(S, "end")
    st.flush(S, sq(S_WS), ST_OFF, 104, 12)
    S.e("s_endpgm")
    return S

def gen_all():
    pro = list(prologue()); ch = list(compute_head()); hh = list(helper_head())
    out = []
    def part(prefix, body, label):
        full = finalize(prefix + list(body))
        idx = next(i for i, x in enumerate(full) if x.text == label) if label else 0
        return full[idx:]
    hq = part(pro + hh, list(helper("q")) + list(hpost("q")), None)
    hk = part(pro + hh, list(helper("kv")) + list(hpost("kv")), "K_hkv:")
    def cut(p):
        n = 0
        for i, x in enumerate(p):
            if x.op == "s_barrier":
                n += 1
                if n == 1: return p[:i], p[i:]
    if OPT.get("layout", False):
        a, b = cut(hq); c, d = cut(hk)
        out += a + [I("s_branch K_hq_rest")] + c + [I("s_branch K_hkv_rest")]
        out += part(pro + ch, compute("q"), "K_comp:")
        out += part(pro + ch, compute("kv"), "K_kv:")
        out += [I("K_hq_rest:")] + b + [I("K_hkv_rest:")] + d
    else:
        out += hq + hk
        out += part(pro + ch, compute("q"), "K_comp:")
        out += part(pro + ch, compute("kv"), "K_kv:")
    out.append(I("K_END:")); out.append(I("s_endpgm"))
    return out

def build(path):
    k = gen_all()
    print("K", stats(k), file=sys.stderr)
    ref = open(f"cdna_kernels/{NAME}.s.ref").read().split("\n")
    hdr = [l for l in ref if l.startswith(";") and "@launch" not in l and "Override" not in l and "grid=ceil" not in l]
    txt = "\n".join(hdr) + "\n"
    txt += f"; @launch grid=(256,1,1) block=(768,1,1) lds=163840\n"
    txt += '.amdgcn_target "amdgcn-amd-amdhsa--gfx950"\n.text\n'
    txt += """; ---------------------------------------------------------------------------------------------
;   earlier launch left there by per-launch tokens published in the zeroed d_debug (flags carry the token)
; ---------------------------------------------------------------------------------------------
"""
    txt += f".globl {K1}\n.p2align 8\n.type {K1},@function\n{K1}:\n" + render(k)
    txt += f""".section .rodata,"a"
.p2align 6
.amdhsa_kernel {K1}
  .amdhsa_next_free_vgpr {NVG1}
  .amdhsa_next_free_sgpr 102
  .amdhsa_accum_offset {NVG1}
  .amdhsa_group_segment_fixed_size 0
  .amdhsa_kernarg_size 88
  .amdhsa_user_sgpr_count 2
  .amdhsa_user_sgpr_kernarg_segment_ptr 1
  .amdhsa_system_sgpr_workgroup_id_x 1
.end_amdhsa_kernel
"""
    open(path, "w").write(txt)

if __name__ == "__main__":
    for a in sys.argv[2:]:
        k, v = a.split("=")
        OPT[k] = {"True": True, "False": False}.get(v, v.replace("_", " ") if k.endswith("flags") else v)
    build(sys.argv[1] if len(sys.argv) > 1 else f"cdna_kernels/{NAME}.s")
```
